```python
import torch

def _softmax(x, axis=-1):
    return torch.softmax(x, dim=axis)

def _gelu(x):
    return torch.nn.functional.gelu(x, approximate='tanh')

def _silu(x):
    return torch.nn.functional.silu(x)

def _sigmoid(x):
    return torch.sigmoid(x)

def _layernorm(x, axis=-1, eps=1e-05):
    m = x.mean(dim=axis, keepdim=True)
    v = x.var(dim=axis, keepdim=True, unbiased=False)
    return (x - m) / torch.sqrt(v + eps)

def _scatter_add(tgt, idx, src, axis=0):
    return tgt.clone().index_add_(axis, idx, src)

def _segment_sum(src, seg, n):
    out = torch.zeros((n,) + src.shape[1:], dtype=src.dtype)
    return out.index_add_(0, seg, src)

def _pad(x, pw):
    flat = tuple((v for pair in reversed(pw) for v in pair))
    return torch.nn.functional.pad(x, flat)
kernel_name = 'parallel_sum__memory_aug_recurrent_mem_tr__glu_gated_bilinear__prompt'

def setup_inputs():

    _w = lambda a: (lambda t: t.to(torch.bfloat16) if t.is_floating_point() else t)(torch.as_tensor(a))

    def _A_setup():
        B, S, Dm = (1, 2048, 448)
        H, Dh = (16, 256)
        M, seg = (8, 32)
        seg = min(seg, S)
        S = S // seg * seg
        return {'x': _w((lambda *s: torch.randn(*s, dtype=torch.bfloat16) * 0.05)(B, S, Dm)), 'mem0': _w((lambda *s: torch.randn(*s, dtype=torch.bfloat16) * 0.2)(B, M, Dm)), 'Wq': _w((lambda *s: torch.randn(*s, dtype=torch.bfloat16) * 1.6)(Dm, H, Dh) * Dm ** (-0.5)), 'Wk': _w((lambda *s: torch.randn(*s, dtype=torch.bfloat16) * 1.6)(Dm, H, Dh) * Dm ** (-0.5)), 'Wv': _w((lambda *s: torch.randn(*s, dtype=torch.bfloat16) * 0.2)(Dm, H, Dh) * Dm ** (-0.5)), 'Wo': _w((lambda *s: torch.randn(*s, dtype=torch.bfloat16) * 0.2)(H, Dh, Dm) * (H * Dh) ** (-0.5)), 'seg_len': seg}
    _A_in = _A_setup()

    def _B_setup():
        B, S, D, F = (1, 2048, 448, 1792)
        return {'x': _w((lambda *s: torch.randn(*s, dtype=torch.bfloat16) * 0.05)(B, S, D)), 'w_gate': _w((lambda *s: torch.randn(*s, dtype=torch.bfloat16) * 0.2)(D, F) * D ** (-0.5)), 'w_up': _w((lambda *s: torch.randn(*s, dtype=torch.bfloat16) * 0.2)(D, F) * D ** (-0.5)), 'w_down': _w((lambda *s: torch.randn(*s, dtype=torch.bfloat16) * 0.2)(F, D) * F ** (-0.5))}
    _B_in = _B_setup()
    return {'A_x': _A_in['x'], 'A_mem0': _A_in['mem0'], 'A_Wq': _A_in['Wq'], 'A_Wk': _A_in['Wk'], 'A_Wv': _A_in['Wv'], 'A_Wo': _A_in['Wo'], 'A_seg_len': _A_in['seg_len'], 'B_x': _B_in['x'], 'B_w_gate': _B_in['w_gate'], 'B_w_up': _B_in['w_up'], 'B_w_down': _B_in['w_down']}

def reference(A_x, A_mem0, A_Wq, A_Wk, A_Wv, A_Wo, A_seg_len, B_x, B_w_gate, B_w_up, B_w_down):

    def _A_ref(x, mem0, Wq, Wk, Wv, Wo, seg_len):
        B, S, Dm = x.shape
        H, Dh = (Wq.shape[1], Wq.shape[2])
        M = mem0.shape[1]
        scale = Dh ** (-0.5)
        n_seg = S // seg_len
        L = M + seg_len
        idx = torch.arange(L)
        mask = (idx[:, None] < M) | (idx[:, None] >= idx[None, :])
        mem = mem0
        outs = []
        for s in range(n_seg):
            xs = x[:, s * seg_len:(s + 1) * seg_len, :].clone()
            h = torch.concatenate([mem, xs], axis=1)
            q = torch.einsum('btd,dhe->bhte', h, Wq)
            k = torch.einsum('btd,dhe->bhte', h, Wk)
            v = torch.einsum('btd,dhe->bhte', h, Wv)
            scores = torch.einsum('bhqe,bhke->bhqk', q, k) * scale
            scores = torch.where(mask[None, None], scores, -1000000000.0)
            p = _softmax(scores, axis=-1)
            o = torch.einsum('bhqk,bhke->bhqe', p, v)
            o = torch.einsum('bhte,hed->btd', o, Wo)
            mem = o[:, :M, :].clone()
            outs.append(o[:, M:, :])
        return torch.concatenate(outs, axis=1)

    def _B_ref(x, w_gate, w_up, w_down):
        g = torch.einsum('bsd,df->bsf', x, w_gate)
        u = torch.einsum('bsd,df->bsf', x, w_up)
        h = g * u
        return torch.einsum('bsf,fd->bsd', h, w_down)
    x = A_x
    xn = _layernorm(x, axis=-1)
    return x + _A_ref(xn, A_mem0, A_Wq, A_Wk, A_Wv, A_Wo, A_seg_len) + _B_ref(xn, B_w_gate, B_w_up, B_w_down)
```

```python
import re

REG_RE = re.compile(r'^(-|abs\()?([vas])(?:(\d+)|\[(\d+):(\d+)\])\)?$')


def regs_of(tok):
    tok = tok.strip()
    if tok in ('vcc', 'vcc_lo', 'vcc_hi'):
        return [('s', 'vcc')]
    if tok in ('exec',):
        return [('s', 'exec')]
    if tok == 'm0':
        return [('s', 'm0')]
    m = REG_RE.match(tok)
    if not m:
        return []
    c = m.group(2)
    if m.group(3) is not None:
        return [(c, int(m.group(3)))]
    return [(c, i) for i in range(int(m.group(4)), int(m.group(5)) + 1)]


def v(i, n=1):
    return f'v{i}' if n == 1 else f'v[{i}:{i + n - 1}]'


def a(i, n=1):
    return f'a{i}' if n == 1 else f'a[{i}:{i + n - 1}]'


def s(i, n=1):
    return f's{i}' if n == 1 else f's[{i}:{i + n - 1}]'


TRANS = ('v_exp_f32', 'v_log_f32', 'v_rcp_f32', 'v_rsq_f32', 'v_sqrt_f32', 'v_sin_f32', 'v_cos_f32')
MFMA_PASSES = {
    'v_mfma_f32_32x32x16_bf16': 8,
    'v_mfma_f32_16x16x32_bf16': 4,
    'v_mfma_f32_16x16x16_bf16': 4,
    'v_smfmac_f32_16x16x64_bf16': 4,
    'v_smfmac_f32_16x16x32_bf16': 4,
}


class Ins:
    __slots__ = ('text', 'op', 'rd', 'wr', 'kind', 'passes', 'srcc', 'states', 'dpp', 'ab', 'sdata')


class Asm:
    def __init__(self):
        self.lines = []
        self.hist = []
        self.vm = []
        self.lg = []
        self.smem_out = []
        self.check_wait = True
        self.nlabel = 0
        self.nins = 0
        self.deferred = []

    def raw(self, t):
        self.lines.append(t)

    def comment(self, t):
        self.lines.append('    ; ' + t)

    def newlabel(self, p='L'):
        self.nlabel += 1
        return f'{p}_{self.nlabel}'

    def label(self, name, keep=False):
        self.lines.append(name + ':')
        if not keep:
            self.hist = []

    def forget(self):
        self.vm = []
        self.lg = []
        self.smem_out = []

    def wait_regs(self, *toks):
        want = set()
        for tk in toks:
            want |= set(regs_of(tk))
        parts = []
        for q, nm, mx in ((self.vm, 'vmcnt', 63), (self.lg, 'lgkmcnt', 15)):
            last = -1
            for i, ent in enumerate(q):
                if ent & want:
                    last = i
            if last >= 0:
                parts.append(f'{nm}({min(len(q) - 1 - last, mx)})')
        if parts:
            self.emit1('s_waitcnt ' + ' '.join(parts))

    def auto(self, text):
        I = self.parse(text.strip())
        toks = []
        regs = set(I.rd) | set(I.wr)
        want = regs
        parts = []
        for q, nm, mx, kinds in ((self.vm, 'vmcnt', 63, ('vmem',)), (self.lg, 'lgkmcnt', 15, ('ds',))):
            last = -1
            for i, ent in enumerate(q):
                w = set(I.rd) if I.kind in kinds else want
                if ent & w:
                    last = i
            if last >= 0:
                parts.append(f'{nm}({min(len(q) - 1 - last, mx)})')
        if parts:
            self.emit1('s_waitcnt ' + ' '.join(parts))
        self.emit1(text.strip())

    def snapshot(self):
        return ([set(x) for x in self.vm], [set(x) for x in self.lg], [set(x) for x in self.smem_out], list(self.hist))

    def restore(self, snap):
        self.vm = [set(x) for x in snap[0]]
        self.lg = [set(x) for x in snap[1]]
        self.smem_out = [set(x) for x in snap[2]]
        self.hist = list(snap[3])

    def parse(self, text):
        I = Ins()
        I.text = text
        t = text.split(';')[0].strip()
        parts = t.split(None, 1)
        op = parts[0]
        I.op = op
        rest = parts[1] if len(parts) > 1 else ''
        ops = []
        cur = ''
        depth = 0
        for ch in rest:
            if ch in '[(':
                depth += 1
            if ch in '])':
                depth -= 1
            if ch == ',' and depth == 0:
                ops.append(cur.strip())
                cur = ''
            else:
                cur += ch
        if cur.strip():
            ops.append(cur.strip())
        mods = ''
        if ops:
            sp = ops[-1].split(None, 1)
            if len(sp) > 1:
                ops[-1] = sp[0]
                mods = sp[1]
        I.rd, I.wr = [], []
        I.kind = 'other'
        I.passes = 0
        I.srcc = []
        I.ab = []
        I.sdata = []
        I.states = 1
        I.dpp = ('_dpp' in op) or ('row_' in mods) or ('quad_perm' in mods)
        R = regs_of
        if op == 's_nop':
            I.states = int(ops[0], 0) + 1
            I.kind = 'nop'
        elif op in MFMA_PASSES:
            I.kind = 'mfma'
            I.passes = MFMA_PASSES[op]
            I.wr = R(ops[0])
            if op.startswith('v_smfmac'):
                I.srcc = R(ops[0])
                I.ab = R(ops[1]) + R(ops[2]) + R(ops[3])
            else:
                I.srcc = R(ops[3])
                I.ab = R(ops[1]) + R(ops[2])
            I.rd = I.srcc + I.ab
        elif op.startswith('buffer_load') or op.startswith('global_load'):
            I.kind = 'vmem'
            if 'lds' in mods.split() or '_lds_' in op:
                I.rd = sum((R(o) for o in ops), []) + [('s', 'm0')]
                I.kind = 'vmem_lds'
            else:
                I.wr = R(ops[0])
                I.rd = sum((R(o) for o in ops[1:]), [])
        elif op.startswith('buffer_store'):
            I.kind = 'vmem'
            I.rd = sum((R(o) for o in ops), [])
            if 'x4' in op or 'x3' in op:
                I.sdata = R(ops[0])
        elif op.startswith('global_store'):
            I.kind = 'vmem'
            I.rd = sum((R(o) for o in ops), [])
            if 'x4' in op or 'x3' in op:
                I.sdata = R(ops[1])
        elif op.startswith('buffer_atomic') or op.startswith('global_atomic'):
            I.kind = 'vmem'
            I.rd = sum((R(o) for o in ops), [])
            if 'sc0' in mods.split():
                I.wr = R(ops[0])
        elif op in ('buffer_inv', 'buffer_wbl2'):
            I.kind = 'vmem'
        elif op.startswith('ds_read') or op.startswith('ds_bpermute') or op.startswith('ds_swizzle'):
            I.kind = 'ds'
            I.wr = R(ops[0])
            I.rd = sum((R(o) for o in ops[1:]), [])
        elif op.startswith('ds_'):
            I.kind = 'ds'
            I.rd = sum((R(o) for o in ops), [])
        elif op.startswith('s_load') or op in ('s_memtime', 's_memrealtime'):
            I.kind = 'smem'
            I.wr = R(ops[0])
            I.rd = sum((R(o) for o in ops[1:]), [])
        elif op.startswith('v_'):
            I.kind = 'valu'
            base = op.replace('_e32', '').replace('_e64', '').replace('_dpp', '')
            if base.startswith('v_permlane'):
                I.wr = R(ops[0]) + R(ops[1])
                I.rd = R(ops[0]) + R(ops[1])
                I.kind = 'valu'
            elif base.startswith('v_cmp'):
                I.wr = R(ops[0])
                I.rd = sum((R(o) for o in ops[1:]), [])
            elif base in ('v_add_co_u32', 'v_addc_co_u32', 'v_sub_co_u32'):
                I.wr = R(ops[0]) + R(ops[1])
                I.rd = sum((R(o) for o in ops[2:]), [])
            else:
                I.wr = R(ops[0])
                I.rd = sum((R(o) for o in ops[1:]), [])
                if base in ('v_fmac_f32', 'v_dot2c_f32_bf16', 'v_writelane_b32') or I.dpp:
                    I.rd += R(ops[0])
        elif op.startswith('s_'):
            I.kind = 'salu'
            if op.startswith('s_cmp') or op.startswith('s_cbranch') or op in (
                    's_branch', 's_barrier', 's_waitcnt', 's_endpgm', 's_sleep', 's_setprio', 's_bitcmp1_b32', 's_bitcmp0_b32'):
                I.rd = sum((R(o) for o in ops), [])
            elif 'saveexec' in op:
                I.wr = R(ops[0]) + [('s', 'exec')]
                I.rd = sum((R(o) for o in ops[1:]), [])
            else:
                I.wr = R(ops[0]) if ops else []
                I.rd = sum((R(o) for o in ops[1:]), [])
        else:
            raise ValueError('unknown op ' + op)
        return I

    def need(self, P, C):
        n = 0
        Pw, Cr, Cw = set(P.wr), set(C.rd), set(C.wr)
        cop = C.op
        if P.kind == 'valu':
            vw = {r for r in Pw if r[0] in 'va'}
            sw = {r for r in Pw if r[0] == 's'}
            if C.kind == 'mfma' and vw & Cr:
                n = max(n, 2)
            if C.kind == 'valu':
                if (cop.startswith('v_permlane') or C.dpp) and vw & Cr:
                    n = max(n, 2)
                if (cop.startswith('v_readfirstlane') or cop.startswith('v_readlane')) and vw & Cr:
                    n = max(n, 1)
                if P.op.replace('_e32', '').replace('_e64', '') in TRANS and vw & Cr:
                    n = max(n, 1)
                if sw & Cr:
                    n = max(n, 4 if (cop.startswith('v_readlane') or cop.startswith('v_writelane')) else 2)
            if C.kind in ('vmem', 'vmem_lds') and sw & Cr:
                n = max(n, 5)
            if C.kind in ('salu', 'smem') and sw & Cr and not cop.startswith('s_cbranch'):
                n = max(n, 1)
        if P.kind == 'mfma':
            big = {2: 5, 4: 8, 8: 12, 16: 20}[P.passes]
            ovl = {2: 4, 4: 6, 8: 10, 16: 18}[P.passes]
            if C.kind == 'mfma':
                if Pw & set(C.ab):
                    n = max(n, big)
                if Pw & set(C.srcc):
                    if not (P.wr == C.srcc and P.passes == C.passes):
                        n = max(n, ovl)
                elif Pw & Cw:
                    n = max(n, ovl)
            elif C.kind in ('valu', 'vmem', 'vmem_lds', 'ds'):
                if Pw & (Cr | Cw):
                    n = max(n, big)
            if C.kind == 'valu' and set(P.srcc) & Cw:
                n = max(n, {2: 1, 4: 3, 8: 7, 16: 15}[P.passes])
        if P.kind == 'vmem' and P.sdata and set(P.sdata) & Cw:
            n = max(n, 2)
        if P.kind == 'salu' and ('s', 'm0') in Pw and C.kind == 'vmem_lds':
            n = max(n, 1)
        return n

    def __call__(self, text):
        for line in text.strip().split('\n'):
            line = line.strip()
            if not line or line.startswith(';'):
                continue
            self.emit1(line)

    def pad_needed(self, text):
        I = self.parse(text.strip())
        dist = 0
        pad = 0
        for P in reversed(self.hist):
            req = self.need(P, I)
            if req > dist:
                pad = max(pad, req - dist)
            dist += P.states
            if dist >= 20:
                break
        return pad

    def emit1(self, text):
        I = self.parse(text)
        dist = 0
        pad = 0
        for P in reversed(self.hist):
            req = self.need(P, I)
            if req > dist:
                pad = max(pad, req - dist)
            dist += P.states
            if dist >= 20:
                break
        while pad > 0:
            k = min(pad, 16)
            N = self.parse(f's_nop {k - 1}')
            self.lines.append(f'    s_nop {k - 1}')
            self.hist.append(N)
            self.nins += 1
            pad -= k
        if self.check_wait:
            touched = set(I.rd) | set(I.wr)
            for q, nm in ((self.vm, 'vmcnt'), (self.lg, 'lgkmcnt'), (self.smem_out, 'smem')):
                for ent in q:
                    if ent & touched:
                        if nm == 'vmcnt' and I.kind == 'vmem' and not (ent & set(I.rd)):
                            continue
                        if nm == 'lgkmcnt' and I.kind == 'ds' and not (ent & set(I.rd)):
                            continue
                        raise RuntimeError(f'register touched while load outstanding ({nm}): {text}  regs {sorted(ent & touched, key=str)}')
        if I.op == 's_waitcnt':
            m = re.search(r'vmcnt\((\d+)\)', text)
            if m:
                n = int(m.group(1))
                self.vm = self.vm[len(self.vm) - n:] if n < len(self.vm) else self.vm
                if n == 0:
                    self.vm = []
            m = re.search(r'lgkmcnt\((\d+)\)', text)
            if m:
                n = int(m.group(1))
                self.lg = self.lg[len(self.lg) - n:] if n < len(self.lg) else self.lg
                if n == 0:
                    self.lg = []
                    self.smem_out = []
        if I.kind in ('vmem', 'vmem_lds'):
            self.vm.append(set(I.wr))
        if I.kind == 'ds':
            self.lg.append(set(I.wr))
        if I.kind == 'smem':
            self.smem_out.append(set(I.wr))
        self.lines.append('    ' + text)
        self.hist.append(I)
        self.nins += 1
        if len(self.hist) > 40:
            self.hist = self.hist[-40:]

    def text(self):
        return '\n'.join(self.lines) + '\n'
```

```python
from asmdsl import v, a, s
import layout as L

SRD = 's[8:11]'
NSTEP = 63


def stamp(A, cfg, slot):
    if cfg.get('stamps'):
        A(f's_memtime s[{40 + 2 * slot}:{41 + 2 * slot}]')


def rstamp(A, cfg, slot):
    if cfg.get('stamps'):
        A(f's_memrealtime s[{40 + 2 * slot}:{41 + 2 * slot}]')


def stamp_flush(A, cfg, nslots, base_sreg, vt):
    if not cfg.get('stamps'):
        return
    A('s_waitcnt lgkmcnt(0)')
    for k in range(nslots):
        A(f'v_mov_b32 {v(vt)}, s{40 + 2 * k}')
        A(f'v_mov_b32 {v(vt + 1)}, 0')
        A(f'buffer_store_dword {v(vt)}, {v(vt + 1)}, {SRD}, s{base_sreg} offen offset:{4 * k}')
    A(f's_add_u32 s{base_sreg}, s{base_sreg}, 64')


def guard(A):
    A('s_add_u32 s33, s33, 1')
    A('s_cmp_gt_u32 s33, 0x80000')
    A('s_cbranch_scc1 L_bail')


def lane_fields(A, vl):
    A(f'v_and_b32 {v(vl)}, 63, v0')


def emit_koffs(A):
    A('s_lshl_b32 s23, s13, 1')
    for k in range(7):
        A(f's_add_u32 s{16 + k}, s23, {k}')
        A(f's_cmp_ge_u32 s{16 + k}, 7')
        A(f's_cselect_b32 s24, 7, 0')
        A(f's_sub_u32 s{16 + k}, s{16 + k}, s24')
        A(f's_lshl_b32 s{16 + k}, s{16 + k}, 10')


def warm_vm(A, n, vw, cfg):
    if cfg.get('nowarm'):
        A(f's_waitcnt vmcnt({n})')
        return
    lab = A.newlabel('W')
    A.label(lab, keep=True)
    A(f'v_mov_b32 {v(vw)}, {v(vw)}')
    A(f's_getreg_b32 s38, hwreg(HW_REG_IB_STS, 0, 4)')
    A(f's_cmp_gt_u32 s38, {n}')
    A(f'v_mov_b32 {v(vw)}, {v(vw)}')
    A(f's_cbranch_scc1 {lab}')
    A(f's_waitcnt vmcnt({n})')


def keepalive(A, vw, n, cfg):
    if cfg.get('nowarm'):
        return
    for _ in range(n):
        A(f'v_mov_b32 {v(vw)}, {v(vw)}')


def warm_mfma(A, base, cfg):
    if cfg.get('nowarm'):
        return
    A(f'v_mfma_f32_32x32x16_bf16 {v(base, 16)}, {v(base + 16, 4)}, {v(base + 16, 4)}, {v(base, 16)}')


def check_regs(A, tmp, regs, autowait=True):
    E = A.auto if autowait else A
    E(f'v_max3_u32 {v(tmp)}, {v(regs[0])}, {v(regs[1])}, {v(regs[2])}')
    i = 3
    while i + 1 < len(regs):
        E(f'v_max3_u32 {v(tmp)}, {v(tmp)}, {v(regs[i])}, {v(regs[i + 1])}')
        i += 2
    if i < len(regs):
        E(f'v_max_u32 {v(tmp)}, {v(tmp)}, {v(regs[i])}')
    A(f'v_cmp_eq_u32 vcc, -1, {v(tmp)}')


def sparse_idx(A, vIDX, vL, t2, t3):
    A(f'v_and_b32 {v(t2)}, 8, {v(vL)}')
    A(f'v_cmp_ne_u32 vcc, 0, {v(t2)}')
    A(f'v_mov_b32 {v(t2)}, 0x4444')
    A(f'v_mov_b32 {v(t3)}, 0xeeee')
    A(f'v_cndmask_b32 {v(vIDX)}, {v(t2)}, {v(t3)}, vcc')


def emit_A(A, cfg):
    W5 = 0x0000
    MIMG = 0xE000
    TIMG = 0x10000
    SIMG = 0x14800
    QS = 144
    vL, vIDX, vMA, vMKa, vMKb, vMK3, vW5, vXK, vXK3, vTW, vTW6, vTR, vTR3, vSW, vSR, vPS, vPF = range(1, 18)
    vM = lambda k: 18 + k
    vSW2 = 25
    vT0 = 26
    M = lambda k: 32 + 4 * k
    ACC = lambda n: 60 + 4 * n
    WS5 = lambda b: 88 + 8 * b
    XK = lambda q, t: 112 + 8 * q + 4 * t
    XK3 = lambda t: 136 + 2 * t
    PSET = lambda r: 140 + 8 * r
    MK = lambda q: 140 + 4 * q
    TB = lambda q: (ACC(2 * q) if q < 3 else ACC(6) + 2)
    SACC = lambda t: 156 + 4 * t
    vDUM = 168
    LT = 1
    PORD = [1, 2, 0]
    regtiles = [0, 2, 3, 4, 5, 6]

    def W(n, k):
        i = regtiles.index(n) * 7 + k
        return a(8 * i, 8) if i < 32 else v(176 + 8 * (i - 32), 8)

    def Whalf(n, k, eh):
        i = regtiles.index(n) * 7 + k
        return a(8 * i + 4 * eh, 4) if i < 32 else v(176 + 8 * (i - 32) + 4 * eh, 4)

    t0, t1, t2, t3 = vT0, vT0 + 1, vT0 + 2, vT0 + 3
    lane_fields(A, vL)
    emit_koffs(A)
    A(f'v_and_b32 {v(t0)}, 15, {v(vL)}')
    A(f'v_lshrrev_b32 {v(t1)}, 4, {v(vL)}')
    sparse_idx(A, vIDX, vL, t2, t3)
    A(f'v_lshlrev_b32 {v(t2)}, 9, {v(t1)}')
    A(f'v_lshl_add_u32 {v(vPF)}, {v(t0)}, 4, {v(t2)}')
    A(f's_mul_i32 s25, s14, {14 * 28672}')
    A(f's_add_u32 s25, s25, {L.WF + L.NB_A * 28672}')
    A(f's_mul_i32 s26, s13, 7')
    A(f's_mul_i32 s28, s13, 14336')
    cnt = 0
    for n in range(7):
        A(f's_add_u32 s23, s26, {n}')
        A(f's_lshr_b32 s24, s23, 1')
        A(f's_mul_i32 s24, s24, 28672')
        A(f's_and_b32 s23, s23, 1')
        A(f's_lshl_b32 s23, s23, 8')
        A(f's_add_u32 s27, s25, s24')
        A(f's_add_u32 s27, s27, s23')
        for k in range(7):
            A(f's_lshl_b32 s23, s{16 + k}, 2')
            A(f's_add_u32 s23, s23, s27')
            for eh in range(2):
                if n == LT:
                    A(f's_add_u32 s24, s28, {W5 + (k * 2 + eh) * 1024}')
                    A(f's_mov_b32 m0, s24')
                    if eh:
                        A(f's_add_u32 s23, s23, 2048')
                    A(f'buffer_load_dwordx4 {v(vPF)}, {SRD}, s23 offen lds')
                else:
                    A(f'buffer_load_dwordx4 {Whalf(n, k, eh)}, {v(vPF)}, {SRD}, s23 offen offset:{2048 * eh}')
                cnt += 1
                if cnt % 16 == 0:
                    A('s_waitcnt vmcnt(40)')
    A(f'v_lshlrev_b32 {v(vMA)}, 4, {v(vL)}')
    A(f'v_add_u32 {v(vW5)}, s28, {v(vMA)}')
    for k in range(7):
        A(f's_add_u32 s23, s{16 + k}, {MIMG}')
        A(f'v_add_u32 {v(vM(k))}, s23, {v(vMA)}')
    A(f'v_add_u32 {v(vMA)}, {L.MEMA}, {v(vMA)}')
    A(f'v_and_b32 {v(t2)}, 7, {v(vL)}')
    A(f'v_lshlrev_b32 {v(t2)}, 4, {v(t2)}')
    A(f's_mul_i32 s23, s13, {7 * 256}')
    A(f's_add_u32 s23, s23, {MIMG}')
    A(f'v_lshrrev_b32 {v(t3)}, 1, {v(t1)}')
    A(f'v_lshl_add_u32 {v(vMKa)}, {v(t3)}, 8, {v(t2)}')
    A(f'v_and_b32 {v(t3)}, 1, {v(t1)}')
    A(f'v_lshl_add_u32 {v(vMKa)}, {v(t3)}, 3, {v(vMKa)}')
    A(f'v_add_u32 {v(vMKa)}, s23, {v(vMKa)}')
    A(f'v_add_u32 {v(vMKb)}, 1024, {v(vMKa)}')
    A(f'v_lshl_add_u32 {v(vMK3)}, {v(t1)}, 2, {v(t2)}')
    A(f's_add_u32 s23, s23, {6 * 256}')
    A(f'v_add_u32 {v(vMK3)}, s23, {v(vMK3)}')
    A(f'v_and_b32 {v(t2)}, 6, {v(t0)}')
    A(f'v_lshlrev_b32 {v(t2)}, 1, {v(t2)}')
    A(f'v_lshrrev_b32 {v(t3)}, 3, {v(t0)}')
    A(f'v_lshl_add_u32 {v(t2)}, {v(t3)}, 1, {v(t2)}')
    A(f'v_and_b32 {v(t3)}, 1, {v(t0)}')
    A(f'v_add_u32 {v(t2)}, {v(t3)}, {v(t2)}')
    A(f'v_lshlrev_b32 {v(t2)}, 4, {v(t2)}')
    A(f'v_lshl_add_u32 {v(vXK)}, {v(t1)}, 9, {v(t2)}')
    A(f'v_lshrrev_b32 {v(t3)}, 1, {v(t1)}')
    A(f'v_lshl_add_u32 {v(vXK3)}, {v(t3)}, 9, {v(t2)}')
    A(f'v_and_b32 {v(t3)}, 1, {v(t1)}')
    A(f'v_lshl_add_u32 {v(vXK3)}, {v(t3)}, 3, {v(vXK3)}')
    A(f'v_add_u32 {v(vXK3)}, {6 * 1024}, {v(vXK3)}')
    A(f's_lshl_b32 s30, s13, 11')
    A(f's_mul_i32 s23, s13, 4352')
    A(f's_add_u32 s23, s23, {TIMG}')
    def plane(dst, src, tmp):
        A(f'v_lshlrev_b32 {v(dst)}, 10, {v(src)}')
        A(f'v_and_b32 {v(tmp)}, 1, {v(src)}')
        A(f'v_lshl_add_u32 {v(dst)}, {v(tmp)}, 5, {v(dst)}')
        A(f'v_lshrrev_b32 {v(tmp)}, 1, {v(src)}')
        A(f'v_lshl_add_u32 {v(dst)}, {v(tmp)}, 7, {v(dst)}')
    plane(t2, t1, t3)
    A(f'v_lshl_add_u32 {v(vTW)}, {v(t0)}, 3, {v(t2)}')
    A(f'v_add_u32 {v(vTW)}, s23, {v(vTW)}')
    A(f'v_and_b32 {v(vTR)}, 3, {v(vL)}')
    plane(t2, vTR, t3)
    A(f'v_bfe_u32 {v(t3)}, {v(vL)}, 2, 2')
    A(f'v_lshl_add_u32 {v(t2)}, {v(t3)}, 3, {v(t2)}')
    A(f'v_lshl_add_u32 {v(vTR)}, {v(t1)}, 6, {v(t2)}')
    A(f'v_add_u32 {v(vTR)}, s23, {v(vTR)}')
    A(f'v_lshl_add_u32 {v(vTR3)}, {v(t1)}, 5, {v(t2)}')
    A(f'v_add_u32 {v(vTR3)}, {96 * 8}, {v(vTR3)}')
    A(f'v_add_u32 {v(vTR3)}, s23, {v(vTR3)}')
    A(f's_add_u32 s23, s30, {SIMG}')
    A(f'v_lshrrev_b32 {v(t3)}, 3, {v(t0)}')
    A(f'v_lshl_add_u32 {v(t2)}, {v(t3)}, 2, {v(t1)}')
    A(f'v_mul_u32_u24 {v(t2)}, {QS}, {v(t2)}')
    A(f'v_and_b32 {v(vSW2)}, 7, {v(t0)}')
    A(f'v_lshl_add_u32 {v(vSW)}, {v(vSW2)}, 4, {v(t2)}')
    A(f'v_add_u32 {v(vSW)}, s23, {v(vSW)}')
    A(f'v_lshlrev_b32 {v(vSW2)}, 4, {v(vSW2)}')
    A(f'v_lshl_add_u32 {v(vSW2)}, {v(t3)}, 3, {v(vSW2)}')
    A(f'v_add_u32 {v(t2)}, 8, {v(t1)}')
    A(f'v_mul_u32_u24 {v(t2)}, {QS}, {v(t2)}')
    A(f'v_add3_u32 {v(vSW2)}, {v(vSW2)}, {v(t2)}, s23')
    A('s_mov_b32 s36, 0xff00ff00')
    A('s_mov_b32 s37, 0xff00ff00')
    A(f'v_mov_b32 {v(t3)}, 12')
    A(f'v_cmp_gt_u32 vcc, 10, {v(t0)}')
    A(f'v_cndmask_b32 {v(t2)}, {v(t3)}, {v(t0)}, vcc')
    A(f'v_mul_u32_u24 {v(t2)}, {QS}, {v(t2)}')
    A(f's_lshl_b32 s23, s13, 2')
    A(f'v_add_u32 {v(t3)}, s23, {v(t1)}')
    A(f'v_and_b32 {v(t3)}, 7, {v(t3)}')
    A(f'v_lshl_add_u32 {v(vSR)}, {v(t3)}, 4, {v(t2)}')
    A(f'v_add_u32 {v(vSR)}, {SIMG}, {v(vSR)}')
    A(f'v_lshrrev_b32 {v(t2)}, 1, {v(t0)}')
    A(f'v_lshlrev_b32 {v(t2)}, 7, {v(t2)}')
    A(f'v_lshl_add_u32 {v(t2)}, {v(t3)}, 4, {v(t2)}')
    A(f'v_and_b32 {v(t3)}, 1, {v(t0)}')
    A(f'v_lshl_add_u32 {v(t2)}, {v(t3)}, 3, {v(t2)}')
    A(f'v_mov_b32 {v(t3)}, 0x40000000')
    A(f'v_cndmask_b32 {v(vPS)}, {v(t3)}, {v(t2)}, vcc')
    A(f'v_mov_b32 {v(t2)}, 0xf149f2ca')
    A(f'v_and_b32 {v(t3)}, 31, {v(vL)}')
    A(f'v_lshlrev_b32 {v(t3)}, 2, {v(t3)}')
    A(f's_add_u32 s23, s30, {SIMG + 12 * QS}')
    A(f'v_add_u32 {v(t3)}, s23, {v(t3)}')
    A(f'ds_write_b32 {v(t3)}, {v(t2)}')
    A('s_waitcnt vmcnt(0)')
    A(f'v_lshlrev_b32 {v(vPF)}, 7, {v(vL)}')
    A(f's_mul_i32 s24, s14, 640')
    A(f's_add_u32 s24, s24, {L.PBUF}')
    A(f's_mul_i32 s25, s13, 7168')
    A(f's_add_u32 s25, s25, {L.XF}')
    NT = cfg.get('ntouch', 2)
    A(f's_mul_i32 s26, s14, {NT}')
    A(f's_add_u32 s26, s26, s13')
    A(f's_min_u32 s26, s26, 55')
    A(f's_lshl_b32 s26, s26, 13')
    A(f's_add_u32 s26, s26, {L.YF + cfg.get("pfdist", 2) * 16 * 28672}')
    A(f's_cmp_ge_u32 s13, {NT}')
    A(f's_cselect_b32 s23, 0x40000000, 0')
    A(f'v_add_u32 {v(vPF)}, s23, {v(vPF)}')
    A(f's_mov_b32 s15, 0')
    if cfg.get('stamps'):
        A(f's_lshl_b32 s32, s14, 2')
        A(f's_add_u32 s32, s32, s13')
        A(f's_lshl_b32 s32, s32, 12')
        A(f's_add_u32 s32, s32, {L.STAMP}')

    def xload():
        for q in range(3):
            if q == 2:
                A(f's_add_u32 s23, s25, 4096')
            for tt in range(2):
                if q < 2:
                    A(f'buffer_load_dwordx4 {v(XK(q, tt), 4)}, {v(vXK)}, {SRD}, s25 offen offset:{q * 2048 + tt * 256} sc1')
                else:
                    A(f'buffer_load_dwordx4 {v(XK(q, tt), 4)}, {v(vXK)}, {SRD}, s23 offen offset:{tt * 256} sc1')
        for tt in range(2):
            A(f'buffer_load_dwordx2 {v(XK3(tt), 2)}, {v(vXK3)}, {SRD}, s25 offen offset:{tt * 256} sc1')
        A(f's_add_u32 s25, s25, 28672')

    xload()
    A('s_waitcnt vmcnt(0) lgkmcnt(0)')
    A('s_barrier')

    top = A.newlabel('A_top')
    poll = A.newlabel('A_poll')
    var1 = A.newlabel('A_var1')
    common = A.newlabel('A_common')
    nxt = A.newlabel('A_next')
    A.label(top)
    A.forget()
    A('s_nop 7')
    for r in range(12):
        A(f'v_mov_b32 {v(SACC(0) + r)}, 0')
    for r in range(28):
        A(f'v_mov_b32 {v(ACC(0) + r)}, 0')

    def w5read(k):
        for eh in range(2):
            A(f'ds_read_b128 {v(WS5(k % 3) + 4 * eh, 4)}, {v(vW5)} offset:{(k * 2 + eh) * 1024}')
    for k in range(3):
        w5read(k)
    A('s_waitcnt vmcnt(0) lgkmcnt(0)')
    if cfg.get('asleep', 0):
        A(f's_sleep {cfg["asleep"]}')

    def pissue(r):
        for k in range(2):
            A(f'buffer_load_dwordx4 {v(PSET(r) + 4 * k, 4)}, {v(vMA)}, {SRD}, s{16 + k} offen sc1')
    var0 = A.newlabel('A_var0')

    def quick(r):
        keepalive(A, vDUM + 1, cfg.get('kap', 0), cfg)
        check_regs(A, t0, [PSET(r) + i for i in range(8)])
    pissue(0)
    keepalive(A, vDUM + 1, cfg.get('pgap', 28), {})
    A.label(poll, keep=True)
    guard(A)
    pissue(1)
    quick(0)
    A(f's_cbranch_vccz {var0}')
    pissue(0)
    quick(1)
    A(f's_cbranch_vccz {var1}')
    A(f's_branch {poll}')

    E6 = cfg.get('early6', 2)
    BPOS = cfg.get('bpos', 3)
    tiles01 = [1, 0, 2, 3, 4, 5] + ([6] if E6 else [])

    def mf(n, k, mreg):
        wreg = v(WS5(k % 3), 8) if n == LT else W(n, k)
        return f'v_smfmac_f32_16x16x64_bf16 {v(ACC(n), 4)}, {v(mreg, 4)}, {wreg}, {v(vIDX)}'

    def variant(r):
        A.vm = [set(('v', PSET(1 - r) + i) for i in range(4)), set(('v', PSET(1 - r) + 4 + i) for i in range(4))]
        A.lg = []
        A.smem_out = []
        stamp(A, cfg, 0)
        seq = [(n, k) for k in range(2) for n in tiles01]
        rd = [k for k in range(2, 7)] + ([] if E6 else [0, 1])
        Q = PSET(r)
        full = []
        w5q = []
        for i, (n, k) in enumerate(seq):
            A(mf(n, k, PSET(r) + 4 * k))
            if i < 2:
                A(f'ds_write_b128 {v(vM(i))}, {v(PSET(r) + 4 * i, 4)}')
            if full:
                A(full.pop(0))
            if i == BPOS - 1:
                stamp(A, cfg, 5)
                A('s_waitcnt lgkmcnt(0)')
                A('s_barrier')
                stamp(A, cfg, 6)
            if n == LT:
                w5q += [(k + 3, 0), (k + 3, 1)]
            if i >= BPOS - 1:
                if rd:
                    kk = rd.pop(0)
                    A(f'ds_read_b128 {v(M(kk), 4)}, {v(vM(kk))}')
                elif w5q:
                    kk, eh = w5q.pop(0)
                    A(f'ds_read_b128 {v(WS5(kk % 3) + 4 * eh, 4)}, {v(vW5)} offset:{(kk * 2 + eh) * 1024}')
        assert not rd
        for kk, eh in w5q:
            A(f'ds_read_b128 {v(WS5(kk % 3) + 4 * eh, 4)}, {v(vW5)} offset:{(kk * 2 + eh) * 1024}')

    A.label(var1)
    variant(1)
    A(f's_branch {common}')
    A.label(var0)
    variant(0)
    A.label(common, keep=True)
    A.vm = [set(('v', PSET(0) + i) for i in range(16))]

    seq = []
    for n in (2, 3, 4, 5, 0, 1, 6):
        for k in range(E6 if n == 6 else 2, 7):
            seq.append((n, k))
    for k, pos in ((2, 0), (3, 5)):
        seq.remove((LT, k))
        seq.insert(pos, (LT, k))
    NS = len(seq)
    memq = []
    memq.append((0, f'buffer_load_dword {v(vDUM)}, {v(vPF)}, {SRD}, s26 offen'))
    for i, (n, k) in enumerate(seq):
        if n == LT and k + 3 < 7:
            for eh in range(2):
                memq.append((i, f'ds_read_b128 {v(WS5((k + 3) % 3) + 4 * eh, 4)}, {v(vW5)} offset:{((k + 3) * 2 + eh) * 1024}'))
    mkstart = cfg.get('mkpos', 3)
    memq.append((mkstart, 's_waitcnt vmcnt(1)'))
    for q in range(3):
        ad = v(vMKa) if q < 2 else v(vMKb)
        o = 128 * q if q < 2 else 0
        memq.append((mkstart, f'ds_read2_b32 {v(MK(q), 2)}, {ad} offset0:{o} offset1:{o + 32}'))
        memq.append((mkstart, f'ds_read2_b32 {v(MK(q) + 2, 2)}, {ad} offset0:{o + 1} offset1:{o + 33}'))
    memq.append((mkstart, f'ds_read2_b32 {v(MK(3), 2)}, {v(vMK3)} offset0:0 offset1:32'))
    memq.sort(key=lambda x: x[0])
    done = {}
    for i, (n, k) in enumerate(seq):
        done[n] = i
    post = []

    def tpost(n):
        C = ACC(n)
        ops = [f'v_cvt_pk_bf16_f32 {v(C)}, {v(C)}, {v(C + 1)}', f'v_cvt_pk_bf16_f32 {v(C + 1)}, {v(C + 2)}, {v(C + 3)}',
               f'ds_write_b64 {v(vTW)}, {v(C, 2)} offset:{128 * n}']
        if n == 6:
            ops += [f'ds_read_b64_tr_b16 {v(TB(3), 2)}, {v(vTR3)}']
        elif n & 1:
            p = n >> 1
            ops += [f'ds_read_b64_tr_b16 {v(TB(p), 2)}, {v(vTR)} offset:{256 * p}',
                    f'ds_read_b64_tr_b16 {v(TB(p) + 2, 2)}, {v(vTR)} offset:{256 * p + 32}']
        return ops
    for n in (2, 3, 4, 5, 0, 1):
        post.append((done[n] + cfg.get('pdelay', 3), tpost(n)))
    smf = []
    for p in PORD:
        for t in range(3):
            key = v(XK(p, t), 4) if t < 2 else v(MK(p), 4)
            smf.append(f'v_mfma_f32_16x16x32_bf16 {v(SACC(t), 4)}, {key}, {v(TB(p), 4)}, {v(SACC(t), 4)}')
    NEARLY = cfg.get('searly', 2)
    queue = []
    A.mfma_states = cfg.get('mfstates', 1)
    for i, (n, k) in enumerate(seq):
        if i in (0, 1, 10, 20, 30):
            stamp(A, cfg, 7 + (0, 1, 10, 20, 30).index(i))
        if i == NS - 3:
            for _ in range(NEARLY):
                A.auto(smf.pop(0))
        A.auto(mf(n, k, M(k)))
        for st, ops in post:
            if st == i:
                queue += ops
        nm = 0
        if queue and not queue[0].startswith('v_'):
            A(queue.pop(0))
            nm = 1
        while memq and memq[0][0] <= i and nm < 1:
            o = memq.pop(0)[1]
            A(o)
            if not o.startswith('s_'):
                nm += 1
        if queue and queue[0].startswith('v_') and A.pad_needed(queue[0]) <= cfg.get('maxpad', 0):
            A(queue.pop(0))
    assert not memq
    tailops = queue
    stamp(A, cfg, 1)
    for o in tailops:
        A(o)
    A.auto(smf.pop(0))
    A.auto(smf.pop(0))
    for o in tpost(6):
        A(o)
    stamp(A, cfg, 13)
    for m_ in smf:
        A.auto(m_)
    for t in range(3):
        key = v(XK3(t), 2) if t < 2 else v(MK(3), 2)
        A.auto(f'v_mfma_f32_16x16x16_bf16 {v(SACC(t), 4)}, {key}, {v(TB(3), 2)}, {v(SACC(t), 4)}')
    stamp(A, cfg, 12)
    for r in range(4):
        A(f'v_add_f32_dpp {v(SACC(0) + r)}, {v(SACC(0) + r)}, {v(SACC(0) + r)} row_ror:8 row_mask:0xf bank_mask:0x3')
    for r in range(4):
        A(f'v_add_f32_dpp {v(SACC(0) + r)}, {v(SACC(1) + r)}, {v(SACC(1) + r)} row_ror:8 row_mask:0xf bank_mask:0xc')
    A(f'ds_write_b128 {v(vSW)}, {v(SACC(0), 4)}')
    for r in range(2):
        A(f'v_add_f32_dpp {v(SACC(2) + r)}, {v(SACC(2) + r)}, {v(SACC(2) + r)} row_ror:8 row_mask:0xf bank_mask:0x3')
    for r in range(2):
        A(f'v_add_f32_dpp {v(SACC(2) + r)}, {v(SACC(2) + 2 + r)}, {v(SACC(2) + 2 + r)} row_ror:8 row_mask:0xf bank_mask:0xc')
    A(f'ds_write_b64 {v(vSW2)}, {v(SACC(2), 2)}')
    A('s_cmp_ge_u32 s13, 2')
    keepalive(A, vDUM + 1, cfg.get('ka1', 6), cfg)
    warm_mfma(A, M(0), cfg)
    A('s_waitcnt lgkmcnt(0)')
    A('s_barrier')
    stamp(A, cfg, 2)
    A(f's_cbranch_scc1 {nxt}')
    R = lambda w: ACC(0) + 4 * w
    for w in range(4):
        A(f'ds_read_b128 {v(R(w), 4)}, {v(vSR)} offset:{w * 2048}')
        keepalive(A, vDUM + 1, 1, cfg)
    keepalive(A, vDUM + 1, cfg.get('ka2', 8), cfg)
    s0 = R(0)
    ml, m, ll, f, e0, cm2 = R(4), R(4) + 2, R(5), R(5) + 2, R(2), R(6)
    A(f'v_mov_b32 {v(cm2)}, -2')
    A.auto(f'v_pk_add_f32 {v(R(0), 2)}, {v(R(0), 2)}, {v(R(1), 2)}')
    A(f'v_pk_add_f32 {v(R(0) + 2, 2)}, {v(R(0) + 2, 2)}, {v(R(1) + 2, 2)}')
    A.auto(f'v_pk_add_f32 {v(R(2), 2)}, {v(R(2), 2)}, {v(R(3), 2)}')
    A(f'v_pk_add_f32 {v(R(2) + 2, 2)}, {v(R(2) + 2, 2)}, {v(R(3) + 2, 2)}')
    A(f'v_pk_add_f32 {v(R(0), 2)}, {v(R(0), 2)}, {v(R(2), 2)}')
    A(f'v_pk_add_f32 {v(R(0) + 2, 2)}, {v(R(0) + 2, 2)}, {v(R(2) + 2, 2)}')
    dpp = 'row_mask:0xf bank_mask:0xf'
    A(f'v_max3_f32 {v(ml)}, {v(s0)}, {v(s0 + 1)}, {v(s0 + 2)}')
    A(f'v_max_f32 {v(ml)}, {v(ml)}, {v(s0 + 3)}')
    A(f'v_sub_f32 {v(e0)}, {v(s0)}, {v(ml)}')
    A(f'v_sub_f32 {v(e0 + 1)}, {v(s0 + 1)}, {v(ml)}')
    A(f'v_max_f32_dpp {v(m)}, {v(ml)}, {v(ml)} row_ror:8 {dpp}')
    A(f'v_sub_f32 {v(e0 + 2)}, {v(s0 + 2)}, {v(ml)}')
    A(f'v_sub_f32 {v(e0 + 3)}, {v(s0 + 3)}, {v(ml)}')
    A(f'v_max_f32_dpp {v(m)}, {v(m)}, {v(m)} row_ror:4 {dpp}')
    A(f'v_exp_f32 {v(e0)}, {v(e0)}')
    A(f'v_exp_f32 {v(e0 + 1)}, {v(e0 + 1)}')
    A(f'v_max_f32_dpp {v(m)}, {v(m)}, {v(m)} row_ror:2 {dpp}')
    A(f'v_exp_f32 {v(e0 + 2)}, {v(e0 + 2)}')
    A(f'v_exp_f32 {v(e0 + 3)}, {v(e0 + 3)}')
    A(f'v_max_f32_dpp {v(m)}, {v(m)}, {v(m)} row_ror:1 {dpp}')
    A(f'v_pk_add_f32 {v(ll, 2)}, {v(e0, 2)}, {v(e0 + 2, 2)}')
    A(f'v_sub_f32 {v(f)}, {v(ml)}, {v(m)}')
    A(f'v_exp_f32 {v(f)}, {v(f)}')
    A(f'v_add_f32 {v(ll)}, {v(ll)}, {v(ll + 1)}')
    A(f'v_mul_f32 {v(ll)}, {v(ll)}, {v(f)}')
    A(f'v_mul_f32 {v(e0)}, {v(e0)}, {v(f)}')
    A(f'v_mul_f32 {v(e0 + 1)}, {v(e0 + 1)}, {v(f)}')
    A(f'v_add_f32_dpp {v(ll)}, {v(ll)}, {v(ll)} row_ror:8 {dpp}')
    A(f'v_mul_f32 {v(e0 + 2)}, {v(e0 + 2)}, {v(f)}')
    A(f'v_mul_f32 {v(e0 + 3)}, {v(e0 + 3)}, {v(f)}')
    A(f'v_add_f32_dpp {v(ll)}, {v(ll)}, {v(ll)} row_ror:4 {dpp}')
    A(f'v_add_f32_dpp {v(ll)}, {v(ll)}, {v(ll)} row_ror:2 {dpp}')
    A(f'v_add_f32_dpp {v(ll)}, {v(ll)}, {v(ll)} row_ror:1 {dpp}')
    A(f'v_rcp_f32 {v(ll)}, {v(ll)}')
    for i in range(4):
        A(f'v_mul_f32 {v(e0 + i)}, {v(e0 + i)}, {v(ll)}')
    A(f'v_cvt_pk_bf16_f32 {v(s0)}, {v(e0)}, {v(e0 + 1)}')
    A(f'v_cvt_pk_bf16_f32 {v(s0 + 1)}, {v(e0 + 2)}, {v(e0 + 3)}')
    A(f'v_min_u32 {v(s0)}, {v(s0)}, {v(cm2)}')
    A(f'v_min_u32 {v(s0 + 1)}, {v(s0 + 1)}, {v(cm2)}')
    A(f'buffer_store_dwordx2 {v(s0, 2)}, {v(vPS)}, {SRD}, s24 offen')
    A.label(nxt, keep=True)
    stamp(A, cfg, 3)
    rstamp(A, cfg, 4)
    xload()
    stamp_flush(A, cfg, 14, 32, vT0 + 4)
    A(f'v_add_u32 {v(vMA)}, 8192, {v(vMA)}')
    A(f's_add_u32 s24, s24, 16384')
    A(f's_add_u32 s26, s26, {16 * 28672}')
    A(f's_add_u32 s15, s15, 1')
    A(f's_cmp_lt_u32 s15, {NSTEP}')
    A(f's_cbranch_scc1 {top}')
    A('s_endpgm')


def emit_B(A, cfg):
    WL = 0x0000
    RIMG = 0x20000
    MIMG = 0x23000
    vL, vIDX, vMA, vWL, vYX, vP, vP2, vRW, vRR, vSA, vSK, vYM, vPF = range(1, 14)
    vT0 = 14
    M = lambda k: 20 + 4 * k
    YACC = lambda hh, t: 48 + 4 * (hh * 2 + t)
    YX = lambda k, t: 80 + 8 * (k * 2 + t)
    YB = lambda t: 112 + 4 * t
    M2 = 120
    YBN = lambda t: 180 + 4 * t
    OACC = lambda t: 128 + 4 * t
    ST = lambda b: 136 + 8 * b
    P = lambda r, k: 20 + 12 * r + 4 * k
    vM = lambda k: 168 + k
    vDUM = 176

    def W(ht, k):
        i = ht * 5 + k
        return a(8 * i, 8) if i < 32 else v(192 + 8 * (i - 32), 8)

    def Whalf(ht, k, eh):
        i = ht * 5 + k
        return a(8 * i + 4 * eh, 4) if i < 32 else v(192 + 8 * (i - 32) + 4 * eh, 4)

    t0, t1, t2, t3 = vT0, vT0 + 1, vT0 + 2, vT0 + 3
    lane_fields(A, vL)
    emit_koffs(A)
    A(f'v_and_b32 {v(t0)}, 15, {v(vL)}')
    A(f'v_lshrrev_b32 {v(t1)}, 4, {v(vL)}')
    sparse_idx(A, vIDX, vL, t2, t3)
    A(f'v_lshlrev_b32 {v(t2)}, 9, {v(t1)}')
    A(f'v_lshl_add_u32 {v(vYX)}, {v(t0)}, 4, {v(t2)}')
    A(f's_mul_i32 s25, s13, 56')
    A(f's_add_u32 s25, s25, s14')
    A(f's_mul_i32 s25, s25, 28672')
    A(f's_add_u32 s25, s25, {L.WF + L.NB_B * 28672}')
    A(f's_lshl_b32 s28, s13, 15')
    cnt = 0
    for hh in range(4):
        for k in range(7):
            A(f's_lshl_b32 s23, s{16 + k}, 2')
            A(f's_add_u32 s23, s23, s25')
            A(f's_add_u32 s23, s23, {hh * 14 * 28672}')
            for eh in range(2):
                for t in range(2):
                    ht = hh * 2 + t
                    if k >= 5:
                        A(f's_add_u32 s24, s28, {WL + ((ht * 2 + (k - 5)) * 2 + eh) * 1024}')
                        A(f's_mov_b32 m0, s24')
                        A(f's_add_u32 s24, s23, {2048 * eh + 256 * t}')
                        A(f'buffer_load_dwordx4 {v(vYX)}, {SRD}, s24 offen lds')
                    else:
                        A(f'buffer_load_dwordx4 {Whalf(ht, k, eh)}, {v(vYX)}, {SRD}, s23 offen offset:{2048 * eh + 256 * t}')
                    cnt += 1
                    if cnt % 16 == 0:
                        A('s_waitcnt vmcnt(40)')
    A(f'v_lshlrev_b32 {v(vMA)}, 4, {v(vL)}')
    A(f'v_add_u32 {v(vWL)}, s28, {v(vMA)}')
    A(f'v_add_u32 {v(vYM)}, 0, {v(vMA)}')
    for k in range(7):
        A(f's_add_u32 s23, s{16 + k}, {MIMG}')
        A(f'v_add_u32 {v(vM(k))}, s23, {v(vMA)}')
    A(f'v_add_u32 {v(vMA)}, {L.MEMA}, {v(vMA)}')
    A(f'v_lshrrev_b32 {v(t2)}, 1, {v(t1)}')
    A(f'v_mul_u32_u24 {v(t2)}, 640, {v(t2)}')
    A(f'v_and_b32 {v(t3)}, 1, {v(t1)}')
    A(f'v_lshl_add_u32 {v(t2)}, {v(t3)}, 8, {v(t2)}')
    A(f'v_lshl_add_u32 {v(vP)}, {v(t0)}, 4, {v(t2)}')
    A(f'v_lshrrev_b32 {v(t2)}, 1, {v(t1)}')
    A(f'v_bfe_u32 {v(t3)}, {v(vL)}, 3, 1')
    A(f'v_lshl_add_u32 {v(t2)}, {v(t3)}, 1, {v(t2)}')
    A(f'v_mul_u32_u24 {v(t2)}, 640, {v(t2)}')
    A(f'v_and_b32 {v(t3)}, 7, {v(vL)}')
    A(f'v_lshl_add_u32 {v(t2)}, {v(t3)}, 4, {v(t2)}')
    A(f'v_and_b32 {v(t3)}, 1, {v(t1)}')
    A(f'v_lshl_add_u32 {v(t2)}, {v(t3)}, 3, {v(t2)}')
    A(f'v_add_u32 {v(vP2)}, 512, {v(t2)}')
    A(f's_mul_i32 s23, s13, 3072')
    A(f's_add_u32 s23, s23, {RIMG}')
    A(f'v_mul_u32_u24 {v(t2)}, {4 * 192}, {v(t1)}')
    A(f'v_lshl_add_u32 {v(vRW)}, {v(t0)}, 3, {v(t2)}')
    A(f'v_add_u32 {v(vRW)}, s23, {v(vRW)}')
    A(f'v_lshrrev_b32 {v(t3)}, 3, {v(vL)}')
    A(f'v_and_b32 {v(t2)}, 3, {v(vL)}')
    A(f'v_lshlrev_b32 {v(vSA)}, 2, {v(t2)}')
    A(f'v_lshlrev_b32 {v(t2)}, 1, {v(t2)}')
    A(f'v_bfe_u32 {v(t0)}, {v(vL)}, 2, 1')
    A(f'v_lshl_add_u32 {v(vSA)}, {v(t0)}, 7, {v(vSA)}')
    A(f'v_lshl_add_u32 {v(vSA)}, {v(t3)}, 4, {v(vSA)}')
    A(f'v_add_u32 {v(t2)}, {v(t2)}, {v(t0)}')
    A(f's_and_b32 s23, s13, 1')
    A(f's_lshl_b32 s23, s23, 3')
    A(f'v_add_u32 {v(t0)}, s23, {v(t2)}')
    A(f'v_mul_u32_u24 {v(t2)}, 192, {v(t3)}')
    A(f'v_lshl_add_u32 {v(vRR)}, {v(t0)}, 3, {v(t2)}')
    A(f'v_add_u32 {v(vRR)}, {RIMG}, {v(vRR)}')
    A(f's_lshl_b32 s23, s14, 9')
    A(f's_and_b32 s24, s13, 1')
    A(f's_lshl_b32 s24, s24, 8')
    A(f's_add_u32 s24, s24, s23')
    A(f'v_add_u32 {v(vSA)}, s24, {v(vSA)}')
    A(f'v_lshlrev_b32 {v(vSK)}, 4, {v(t3)}')
    A(f'v_lshrrev_b32 {v(t2)}, 2, {v(t0)}')
    A(f'v_lshl_add_u32 {v(vSK)}, {v(t2)}, 7, {v(vSK)}')
    A(f'v_and_b32 {v(t2)}, 3, {v(t0)}')
    A(f'v_lshl_add_u32 {v(vSK)}, {v(t2)}, 2, {v(vSK)}')
    A(f'v_add_u32 {v(vSK)}, s23, {v(vSK)}')
    A(f's_cmp_ge_u32 s13, 2')
    A(f's_cselect_b32 s23, 0x40000000, 0')
    A(f'v_add_u32 {v(vSK)}, s23, {v(vSK)}')
    A(f's_mul_i32 s24, s13, {4 * 640}')
    A(f's_add_u32 s24, s24, {L.PBUF}')
    A(f's_mul_i32 s25, s13, 56')
    A(f's_add_u32 s25, s25, s14')
    A(f's_lshl_b32 s25, s25, 11')
    A(f's_add_u32 s25, s25, {L.YF}')
    A(f's_mov_b32 s26, {L.MEMA + 8192}')
    A(f's_mov_b32 s29, {L.MEMX}')
    A(f's_lshl_b32 s31, s14, 2')
    A(f's_add_u32 s31, s31, s13')
    A(f's_lshl_b32 s31, s31, 11')
    A(f's_add_u32 s31, s31, {L.YM}')
    NTA = cfg.get('ntouch', 2)
    NT = cfg.get('ntouchB', 0)
    A(f's_mul_i32 s34, s14, {NT}')
    A(f's_add_u32 s34, s34, {16 * NTA}')
    A(f's_add_u32 s34, s34, s13')
    A(f's_min_u32 s34, s34, 55')
    A(f's_lshl_b32 s34, s34, 13')
    A(f's_add_u32 s34, s34, {L.YF + cfg.get("pfdist", 2) * 16 * 28672}')
    A(f'v_lshlrev_b32 {v(vPF)}, 7, {v(vL)}')
    A(f's_cmp_ge_u32 s13, {NT}')
    A(f's_cselect_b32 s23, 0x40000000, 0')
    A(f'v_add_u32 {v(vPF)}, s23, {v(vPF)}')
    A(f's_mov_b32 s15, 0')
    A(f's_mov_b32 s35, 0x40000000')
    if cfg.get('stamps'):
        A(f's_add_u32 s32, s14, 16')
        A(f's_lshl_b32 s32, s32, 2')
        A(f's_add_u32 s32, s32, s13')
        A(f's_lshl_b32 s32, s32, 12')
        A(f's_add_u32 s32, s32, {L.STAMP}')
    vOUT = vT0 + 5
    A(f'v_mov_b32 {v(vOUT)}, 0')
    for r in range(8):
        A(f'v_mov_b32 {v(YB(0) + r)}, 0')

    def yx_list():
        out = []
        for k in range(2):
            for eh in range(2):
                for t in range(2):
                    out.append([f's_add_u32 s23, s25, {(2 * k + eh) * 14 * 2048}',
                                f'buffer_load_dwordx4 {v(YX(k, t) + 4 * eh, 4)}, {v(vYX)}, {SRD}, s23 offen offset:{256 * t} sc1'])
        return out

    def ym_list(sreg):
        return [[f'buffer_store_dwordx4 {v(YB(t), 4)}, {v(vYM)}, {SRD}, {sreg} offen offset:{t * 1024} sc1'] for t in range(2)]

    A('s_waitcnt vmcnt(0)')
    top = A.newlabel('B_top')
    mpoll = A.newlabel('B_mpoll')
    ppoll = A.newlabel('B_ppoll')
    nxt = A.newlabel('B_next')
    fin = A.newlabel('B_fin')
    A.label(top)
    A.forget()
    A(f's_waitcnt vmcnt({15 if cfg.get("stamps") else 1})')
    for r in range(32):
        A(f'v_mov_b32 {v(YACC(0, 0) + r)}, 0')
    for r in range(8):
        A(f'v_mov_b32 {v(OACC(0) + r)}, 0')
    ldsq = [(hh * 2 + t, k) for t in range(2) for pr in range(2) for k in (5, 6) for hh in (2 * pr, 2 * pr + 1)]

    def wlread(j):
        ht, k = ldsq[j]
        for eh in range(2):
            A(f'ds_read_b128 {v(ST(j & 3) + 4 * eh, 4)}, {v(vWL)} offset:{((ht * 2 + (k - 5)) * 2 + eh) * 1024}')
    for j in range(4):
        wlread(j)
    if cfg.get('bsleep', 0):
        A(f's_sleep {cfg["bsleep"]}')
    MS = lambda r: (M(0) if r == 0 else M2)
    A(f's_add_u32 s36, s31, s35')
    A(f's_add_u32 s37, s29, s35')

    def missue(r):
        for k in range(2):
            A(f'buffer_load_dwordx4 {v(MS(r) + 4 * k, 4)}, {v(vMA)}, {SRD}, s{16 + k} offen sc1')
    mv0, mv1, mcommon = A.newlabel('B_mv0'), A.newlabel('B_mv1'), A.newlabel('B_mc')
    missue(0)
    keepalive(A, vDUM + 1, cfg.get('pgap', 28), {})
    A.label(mpoll, keep=True)
    guard(A)
    missue(1)
    check_regs(A, t0, [MS(0) + i for i in range(8)])
    A(f's_cbranch_vccz {mv0}')
    missue(0)
    check_regs(A, t0, [MS(1) + i for i in range(8)])
    A(f's_cbranch_vccnz {mpoll}')
    lgsnap = [set(x) for x in A.lg]

    def mvariant(r):
        A.vm = [set(('v', MS(1 - r) + i) for i in range(8))]
        A.lg = [set(x) for x in lgsnap]
        A.smem_out = []
        stamp(A, cfg, 0)
        for i, (ht, k) in enumerate([(ht, k) for k in range(2) for ht in range(8)]):
            A(f'v_smfmac_f32_16x16x64_bf16 {v(YACC(ht >> 1, ht & 1), 4)}, {v(MS(r) + 4 * k, 4)}, {W(ht, k)}, {v(vIDX)}')
            if i < 2:
                A(f'ds_write_b128 {v(vM(i))}, {v(MS(r) + 4 * i, 4)}')
            if i == 4:
                A('s_waitcnt lgkmcnt(0)')
                A('s_barrier')
            if 4 <= i < 9:
                A(f'ds_read_b128 {v(M(i - 2), 4)}, {v(vM(i - 2))}')
            if i in (9, 13) and not cfg.get('noym'):
                A(ym_list('s36')[(i - 9) // 4][0])
            if i == 4:
                stamp(A, cfg, 8)
    A.label(mv1, keep=True)
    mvariant(1)
    A(f's_branch {mcommon}')
    A.label(mv0)
    mvariant(0)
    A.label(mcommon, keep=True)
    A.vm = [set(('v', M(0) + i) for i in range(8)) | set(('v', M2 + i) for i in range(8))]
    mem = yx_list() if not cfg.get('noyx') else []
    if NT:
        mem += [[f'buffer_load_dword {v(vDUM)}, {v(vPF)}, {SRD}, s34 offen']]
    seq = []
    groups = [(pr, t) for t in range(2) for pr in range(2)]
    for pr, t in groups:
        ha, hb = (2 * pr) * 2 + t, (2 * pr + 1) * 2 + t
        seq += [(ha, 5), (ha, 2), (hb, 2), (hb, 5), (ha, 3), (ha, 6), (hb, 3), (ha, 4), (hb, 6), (hb, 4)]
    assert [x for x in seq if x[1] >= 5] == ldsq
    lj = 0
    vq = []
    dq = []
    GAP = cfg.get('bmemgap', 4)

    def gpost(pr, t):
        Ya, Yb = YACC(2 * pr, t), YACC(2 * pr + 1, t)
        ops = [f'v_permlane32_swap_b32 {v(Ya + r)}, {v(Yb + r)}' for r in range(4)]
        ops += [f'v_add_f32 {v(Ya + r)}, {v(Ya + r)}, {v(Yb + r)}' for r in range(4)]
        ops += [f'v_cvt_pk_bf16_f32 {v(YB(t) + 2 * p + pr)}, {v(Ya + 2 * p)}, {v(Ya + 2 * p + 1)}' for p in range(2)]
        return ops
    sani = [f'v_min_u32 {v(YB(0) + r)}, -2, {v(YB(0) + r)}' for r in range(8)]
    for i, (ht, k) in enumerate(seq):
        if i % 10 == 0:
            stamp(A, cfg, 9 + i // 10)
        if k >= 5:
            A.auto(f'v_smfmac_f32_16x16x64_bf16 {v(YACC(ht >> 1, ht & 1), 4)}, {v(M(k), 4)}, {v(ST(lj & 3), 8)}, {v(vIDX)}')
            if lj + 4 < 16:
                h2, k2 = ldsq[lj + 4]
                for eh in range(2):
                    dq.append(f'ds_read_b128 {v(ST(lj & 3) + 4 * eh, 4)}, {v(vWL)} offset:{((h2 * 2 + (k2 - 5)) * 2 + eh) * 1024}')
            lj += 1
        else:
            A.auto(f'v_smfmac_f32_16x16x64_bf16 {v(YACC(ht >> 1, ht & 1), 4)}, {v(M(k), 4)}, {W(ht, k)}, {v(vIDX)}')
        if i % 10 == 9:
            vq += gpost(*groups[i // 10])
        if dq:
            A(dq.pop(0))
        if i >= cfg.get('yxstart', 4) and i % GAP == 0 and mem:
            for x in mem.pop(0):
                A(x)
        if vq and A.pad_needed(vq[0]) == 0:
            A(vq.pop(0))
    assert not mem and not dq
    stamp(A, cfg, 13)
    for o in vq + sani:
        A(o)
    A(f's_cmp_eq_u32 s15, 0')
    A(f's_cselect_b32 s23, 0, {14 * 4 * 2048}')
    A(f's_add_u32 s31, s31, s23')
    A(f's_mov_b32 s35, 0')
    A(f's_add_u32 s29, s29, 8192')
    A(f's_add_u32 s25, s25, {16 * 28672}')
    A(f's_add_u32 s34, s34, {16 * 28672}')
    stamp(A, cfg, 1)
    A(f's_cmp_eq_u32 s15, {NSTEP}')
    A(f's_cbranch_scc1 {fin}')
    A('s_waitcnt vmcnt(0)')
    stamp(A, cfg, 5)
    if cfg.get('psleep', 0):
        A(f's_sleep {cfg["psleep"]}')

    def pissue(r):
        A(f'buffer_load_dwordx4 {v(P(r, 0), 4)}, {v(vP)}, {SRD}, s24 offen sc1')
        A(f'buffer_load_dwordx4 {v(P(r, 1), 4)}, {v(vP)}, {SRD}, s24 offen offset:1280 sc1')
        A(f'buffer_load_dwordx2 {v(P(r, 2), 2)}, {v(vP2)}, {SRD}, s24 offen sc1')
    var0 = A.newlabel('B_var0')
    var1 = A.newlabel('B_var1')
    common = A.newlabel('B_common')
    redo = A.newlabel('B_redo')

    def quick(r):
        keepalive(A, vDUM + 1, cfg.get('kbp', 0), cfg)
        A('s_waitcnt vmcnt(3)')
        A(f'v_max3_u32 {v(t0)}, {v(P(r, 0) + 3)}, {v(P(r, 1) + 3)}, {v(P(r, 2) + 1)}')
        A(f'v_cmp_eq_u32 vcc, -1, {v(t0)}')
    A.label(redo, keep=True)
    pissue(0)
    keepalive(A, vDUM + 1, cfg.get('pgap', 28), {})
    A.label(ppoll, keep=True)
    guard(A)
    pissue(1)
    quick(0)
    A(f's_cbranch_vccz {var0}')
    pissue(0)
    quick(1)
    A(f's_cbranch_vccz {var1}')
    A(f's_branch {ppoll}')
    bad = A.newlabel('B_bad')
    A.label(bad)
    A('s_waitcnt vmcnt(0) lgkmcnt(0)')
    A('s_nop 7')
    for r in range(8):
        A(f'v_mov_b32 {v(OACC(0) + r)}, 0')
    A(f's_branch {redo}')

    def variant(r):
        A.vm = [set(('v', P(1 - r, 0) + i) for i in range(12))]
        A.lg = []
        A.smem_out = []
        stamp(A, cfg, 2)
        Q = P(r, 0)
        full = [f'v_max3_u32 {v(t0)}, {v(Q)}, {v(Q + 1)}, {v(Q + 2)}', f'v_max3_u32 {v(t0)}, {v(t0)}, {v(Q + 4)}, {v(Q + 5)}',
                f'v_max3_u32 {v(t0)}, {v(t0)}, {v(Q + 6)}, {v(Q + 8)}',
                f'v_cmp_eq_u32 vcc, -1, {v(t0)}']
        for k in range(3):
            for t in range(2):
                if k < 2:
                    A(f'v_smfmac_f32_16x16x64_bf16 {v(OACC(t), 4)}, {v(P(r, k), 4)}, {v(YX(k, t), 8)}, {v(vIDX)}')
                else:
                    A(f'v_smfmac_f32_16x16x32_bf16 {v(OACC(t), 4)}, {v(P(r, k), 2)}, {v(YB(t), 4)}, {v(vIDX)}')
        for x in full[:2]:
            A(x)
        for rr in range(4):
            A(f'ds_write2_b32 {v(vRW)}, {v(OACC(0) + rr)}, {v(OACC(1) + rr)} offset0:{rr * 48} offset1:{rr * 48 + 1}')
        for x in full[2:]:
            A(x)
        A(f's_cbranch_vccnz {bad}')
    A.label(var1)
    variant(1)
    A(f's_branch {common}')
    A.label(var0)
    variant(0)
    A.label(common, keep=True)
    A.vm = [set(('v', P(0, 0) + i) for i in range(24))]
    A('s_cmp_ge_u32 s13, 2')
    keepalive(A, vDUM + 1, cfg.get('kb1', 0), cfg)
    stamp(A, cfg, 6)
    warm_mfma(A, ST(0), cfg)
    A('s_waitcnt lgkmcnt(0)')
    A('s_barrier')
    stamp(A, cfg, 7)
    A(f's_cbranch_scc1 {nxt}')
    R = lambda w: YACC(0, 0) + 4 * w
    for w in range(4):
        A(f'ds_read2st64_b64 {v(R(w), 4)}, {v(vRR)} offset0:{6 * w} offset1:{6 * w + 3}')
    keepalive(A, vDUM + 1, cfg.get('kb2', 3), cfg)
    A(f'v_mov_b32 {v(t1)}, -2')
    A.auto(f'v_pk_add_f32 {v(R(0), 2)}, {v(R(0), 2)}, {v(R(0) + 2, 2)}')
    A.auto(f'v_pk_add_f32 {v(R(1), 2)}, {v(R(1), 2)}, {v(R(1) + 2, 2)}')
    A(f'v_pk_add_f32 {v(R(0), 2)}, {v(R(0), 2)}, {v(R(1), 2)}')
    A.auto(f'v_pk_add_f32 {v(R(2), 2)}, {v(R(2), 2)}, {v(R(2) + 2, 2)}')
    A(f'v_pk_add_f32 {v(R(0), 2)}, {v(R(0), 2)}, {v(R(2), 2)}')
    A.auto(f'v_pk_add_f32 {v(R(3), 2)}, {v(R(3), 2)}, {v(R(3) + 2, 2)}')
    A(f'v_pk_add_f32 {v(R(0), 2)}, {v(R(0), 2)}, {v(R(3), 2)}')
    A(f'v_cvt_pk_bf16_f32 {v(vOUT)}, {v(R(0))}, {v(R(0) + 1)}')
    A(f'v_min_u32 {v(vOUT)}, {v(vOUT)}, {v(t1)}')
    A.label(nxt, keep=True)
    A(f's_cselect_b32 s23, 0x40000000, s26')
    A(f'buffer_store_dword {v(vOUT)}, {v(vSA)}, {SRD}, s23 offen')
    stamp(A, cfg, 3)
    rstamp(A, cfg, 4)
    stamp_flush(A, cfg, 14, 32, vT0 + 2)
    A(f'v_add_u32 {v(vMA)}, 8192, {v(vMA)}')
    A(f's_add_u32 s24, s24, 16384')
    A(f's_add_u32 s26, s26, 8192')
    A(f's_add_u32 s15, s15, 1')
    A(f's_branch {top}')
    A.label(fin)
    for x in ym_list('s31'):
        A(x[0])
    A('s_endpgm')


def emit_C(A, cfg):
    NT = cfg.get('ntouch', 2)
    D = cfg.get('cdist', 3)
    first = min(16 * NT + 14 * cfg.get('ntouchB', 0), 56)
    nrounds = (56 - first + 7) // 8
    vL, vPF, vPL, vD, vLW, vLR, vST, t0, t1 = 1, 2, 3, 4, 5, 6, 7, 8, 9
    Q = 12
    lane_fields(A, vL)
    A(f'v_lshlrev_b32 {v(vPF)}, 7, {v(vL)}')
    A('s_lshl_b32 s16, s14, 2')
    A('s_add_u32 s16, s16, s13')
    A('s_cmp_eq_u32 s16, 7')
    A('s_cselect_b32 s19, 0, s16')
    A('s_lshl_b32 s19, s19, 10')
    A(f'v_lshlrev_b32 {v(vST)}, 4, {v(vL)}')
    A('s_lshl_b32 s23, s13, 10')
    A(f'v_add_u32 {v(vLW)}, s23, {v(vST)}')
    A(f'v_lshrrev_b32 {v(t0)}, 4, {v(vL)}')
    A(f'v_lshlrev_b32 {v(vLR)}, 8, {v(t0)}')
    A(f'v_and_b32 {v(t0)}, 7, {v(vL)}')
    A(f'v_lshl_add_u32 {v(vLR)}, {v(t0)}, 4, {v(vLR)}')
    A(f'v_bfe_u32 {v(t0)}, {v(vL)}, 3, 1')
    A(f'v_lshl_add_u32 {v(vLR)}, {v(t0)}, 3, {v(vLR)}')
    A(f'v_add_u32 {v(vLR)}, s23, {v(vLR)}')
    A(f'v_add_u32 {v(vST)}, s19, {v(vST)}')
    A(f'v_add_u32 {v(vPL)}, {L.MEMA + 8192}, {v(vST)}')
    A('s_cmp_eq_u32 s16, 7')
    A(f's_cselect_b32 s19, 0x40000000, 0')
    A(f's_add_u32 s19, s19, {L.MEMX + 8192}')
    A('s_lshl_b32 s17, s16, 13')
    A(f's_add_u32 s17, s17, {L.XF}')
    A('s_mov_b32 s18, 28672')
    A('s_cmp_ge_u32 s16, 4')
    A(f's_cselect_b32 s17, {L.MEMA + 8192}, s17')
    A(f's_cselect_b32 s18, 8192, s18')
    A('s_cmp_eq_u32 s16, 6')
    A(f's_cselect_b32 s17, {L.PBUF}, s17')
    A('s_cmp_eq_u32 s16, 7')
    A(f's_cselect_b32 s17, {L.PBUF + 8192}, s17')
    A('s_cmp_ge_u32 s16, 6')
    A(f's_cselect_b32 s18, 16384, s18')
    for r in range(nrounds):
        A(f's_add_u32 s{24 + r}, s16, {first + 8 * r}')
        A(f's_min_u32 s{24 + r}, s{24 + r}, 55')
        A(f's_lshl_b32 s{24 + r}, s{24 + r}, 13')
        A(f's_add_u32 s{24 + r}, s{24 + r}, {L.YF}')
    for sg in range(cfg.get('pfdist', 2)):
        for r in range(7):
            A(f's_add_u32 s23, s16, {8 * r}')
            A(f's_lshl_b32 s23, s23, 13')
            A(f's_add_u32 s23, s23, {L.YF + sg * 16 * 28672}')
            A(f'buffer_load_dword {v(vD)}, {v(vPF)}, {SRD}, s23 offen')

    def touches():
        A(f'buffer_load_dword {v(vD)}, {v(vPF)}, {SRD}, s17 offen')
        A('s_add_u32 s17, s17, s18')
        for r in range(nrounds):
            A(f'buffer_load_dword {v(vD)}, {v(vPF)}, {SRD}, s{24 + r} offen')
            A(f's_add_u32 s{24 + r}, s{24 + r}, {16 * 28672}')
    for _ in range(D):
        touches()
    A('s_mov_b32 s15, 1')
    top = A.newlabel('C_top')
    skip = A.newlabel('C_skip')
    A.label(top)
    A.forget()
    guard(A)
    A(f's_sleep 1')
    A(f'buffer_load_dwordx4 {v(Q, 4)}, {v(vPL)}, {SRD}, 0 offen sc1')
    A('s_waitcnt vmcnt(0)')
    check_regs(A, t0, [Q + i for i in range(4)])
    A(f's_cbranch_vccnz {top}')
    A(f'ds_write_b128 {v(vLW)}, {v(Q, 4)}')
    A(f'ds_read2_b32 {v(Q + 4, 2)}, {v(vLR)} offset0:0 offset1:32')
    A(f'ds_read2_b32 {v(Q + 6, 2)}, {v(vLR)} offset0:1 offset1:33')
    A('s_waitcnt lgkmcnt(0)')
    A(f'buffer_store_dwordx4 {v(Q + 4, 4)}, {v(vST)}, {SRD}, s19 offen sc1')
    A(f'v_add_u32 {v(vPL)}, 8192, {v(vPL)}')
    A('s_add_u32 s19, s19, 8192')
    A(f's_cmp_gt_u32 s15, {64 - D}')
    A(f's_cbranch_scc1 {skip}')
    touches()
    A.label(skip)
    A('s_add_u32 s15, s15, 1')
    A(f's_cmp_lt_u32 s15, 64')
    A(f's_cbranch_scc1 {top}')
    A('s_endpgm')
```

```python
from asmdsl import v, a, s
import layout as L

SRD = 's[8:11]'
CH = 4
NBUF = 3
CHB = 7 * CH * 1024


def perm_lane(A, dst, vl, tmp):
    A(f'v_and_b32 {v(dst)}, 0x33, {v(vl)}')
    A(f'v_bfe_u32 {v(tmp)}, {v(vl)}, 2, 1')
    A(f'v_lshl_add_u32 {v(dst)}, {v(tmp)}, 3, {v(dst)}')
    A(f'v_bfe_u32 {v(tmp)}, {v(vl)}, 3, 1')
    A(f'v_lshl_add_u32 {v(dst)}, {v(tmp)}, 2, {v(dst)}')
    A(f'v_lshlrev_b32 {v(dst)}, 4, {v(dst)}')


VL, VLIN, VPERM = 1, 2, 3
ACC0 = 32


def emit_common_regs(A):
    A(f'v_and_b32 {v(VL)}, 63, v0')
    A(f'v_lshlrev_b32 {v(VLIN)}, 4, {v(VL)}')
    perm_lane(A, VPERM, VL, 4)


def emit_gemm_main(A, name, NTB, KS, XS, WS_, x_is_A, ldflag=' sc1'):
    nch = KS // CH
    acc = lambda tb, nb: ACC0 + 16 * (tb * 7 + nb)
    XB = lambda slot, kq, tb: ((slot * CH + kq) * NTB + tb) * 4
    WB0 = NBUF * CH * NTB * 4
    WB = lambda par, nb: WB0 + (par * 7 + nb) * 4
    xaddr = v(VPERM) if x_is_A else v(VLIN)
    vWR = lambda slot: 5 + slot
    for sl in range(NBUF):
        A(f'v_add_u32 {v(vWR(sl))}, {sl * CHB}, {v(VLIN) if x_is_A else v(VPERM)}')
    A('s_lshl_b32 s44, s13, 1')
    A('s_min_u32 s45, s44, 6')
    A('s_add_u32 s44, s44, 1')
    A('s_min_u32 s46, s44, 6')
    A(f's_mul_i32 s47, s45, {WS_}')
    A('s_add_u32 s47, s47, s41')
    A(f's_mul_i32 s48, s46, {WS_}')
    A('s_add_u32 s48, s48, s41')
    A(f's_lshl_b32 s45, s45, 12')
    A(f's_lshl_b32 s46, s46, 12')
    A('s_mov_b32 s49, s40')

    def issue(slot):
        out = []
        for j, (sg, sl) in enumerate((('s47', 's45'), ('s48', 's46'))):
            out.append([f's_add_u32 s50, {sl}, {slot * CHB}', 's_mov_b32 m0, s50',
                        f'buffer_load_dwordx4 {v(VLIN)}, {SRD}, {sg} offen{ldflag} lds'])
            for kq in range(1, CH):
                out.append([f'buffer_load_dwordx4 {v(VLIN)}, {SRD}, {sg} offen offset:{kq * 1024}{ldflag} lds'])
            out[-1].append(f's_add_u32 {sg}, {sg}, {CH * 1024}')
        for tb in range(NTB):
            for kq in range(CH):
                pre = [f's_add_u32 s51, s49, {tb * XS}'] if (kq == 0 and tb) else []
                sr = 's51' if tb else 's49'
                out.append(pre + [f'buffer_load_dwordx4 {a(XB(slot, kq, tb), 4)}, {xaddr}, {SRD}, {sr} offen offset:{kq * 1024}{ldflag}'])
        out[-1].append(f's_add_u32 s49, s49, {CH * 1024}')
        return out
    NLD = 2 * CH + NTB * CH

    def wread(slot, kq, par):
        return [f'ds_read_b128 {a(WB(par, nb), 4)}, {v(vWR(slot))} offset:{nb * 4096 + kq * 1024}' for nb in range(7)]

    for sl in range(2):
        for grp in issue(sl):
            for x in grp:
                A(x)
    for r in range(NTB * 7 * 16):
        A(f'v_mov_b32 {v(ACC0 + r)}, 0')

    def chunk(slot, more, last_two):
        A.forget()
        A(f's_waitcnt vmcnt({NLD if not last_two else 0})')
        A('s_barrier')
        lds = issue((slot + 2) % NBUF) if more else []
        for x in wread(slot, 0, 0):
            A(x)
        for kq in range(CH):
            par = kq & 1
            nxt = wread(slot, kq + 1, par ^ 1) if kq + 1 < CH else []
            j = 0
            for nb in range(7):
                for tb in range(NTB):
                    xo, wo = a(XB(slot, kq, tb), 4), a(WB(par, nb), 4)
                    sa, sb = (xo, wo) if x_is_A else (wo, xo)
                    A.auto(f'v_mfma_f32_32x32x16_bf16 {v(acc(tb, nb), 16)}, {sa}, {sb}, {v(acc(tb, nb), 16)}')
                    if nxt and (j % NTB == 0):
                        A(nxt.pop(0))
                    elif lds and (NTB == 1 or j % 4 == 1):
                        for x in lds.pop(0):
                            A(x)
                    if NTB == 1 and lds and j in (1, 3, 5):
                        for x in lds.pop(0):
                            A(x)
                    j += 1
        for grp in lds:
            for x in grp:
                A(x)

    full = nch - 2
    trips = full // NBUF
    rem = full % NBUF
    if trips:
        lab = A.newlabel(name + '_loop')
        A(f's_mov_b32 s52, {trips}')
        A.label(lab)
        for sl in range(NBUF):
            chunk(sl, True, False)
        A('s_sub_u32 s52, s52, 1')
        A('s_cmp_lg_u32 s52, 0')
        A(f's_cbranch_scc1 {lab}')
    sl = 0
    for _ in range(rem):
        chunk(sl, True, False)
        sl = (sl + 1) % NBUF
    chunk(sl, False, False)
    sl = (sl + 1) % NBUF
    chunk(sl, False, True)
    return acc


def emit_epi_pack(A, acc, NTB, tb_stride, stflag=' sc1'):
    T = 8
    n = 0
    for tb in range(NTB):
        A(f's_add_u32 s50, s42, {tb * tb_stride}')
        for nb in range(7):
            if nb % 2 == 0 and nb:
                A(f's_add_u32 s50, s50, 4096')
            for ph in range(2):
                t = T + 4 * (n % 4)
                n += 1
                for j in range(4):
                    r = acc(tb, nb) + 8 * ph + 2 * j
                    A(f'v_cvt_pk_bf16_f32 {v(t + j)}, {v(r)}, {v(r + 1)}')
                A(f'buffer_store_dwordx4 {v(t, 4)}, {v(VLIN)}, {SRD}, s50 offen offset:{((nb & 1) * 2 + ph) * 1024}{stflag}')


def emit_epi_gu(A, acc, NTB, tb_stride, stflag=' sc1'):
    T = 8
    n = 0
    for tb in range(NTB):
        A(f's_add_u32 s50, s42, {tb * tb_stride}')
        for nb in range(7):
            if nb == 4:
                A(f's_add_u32 s50, s50, 4096')
            t = T + 4 * (n % 4)
            n += 1
            c = acc(tb, nb)
            for j in range(4):
                A(f'v_pk_mul_f32 {v(c + 2 * j, 2)}, {v(c + 2 * j, 2)}, {v(c + 8 + 2 * j, 2)}')
            for j in range(4):
                A(f'v_cvt_pk_bf16_f32 {v(t + j)}, {v(c + 2 * j)}, {v(c + 2 * j + 1)}')
            A(f'buffer_store_dwordx4 {v(t, 4)}, {v(VLIN)}, {SRD}, s50 offen offset:{(nb & 3) * 1024}{stflag}')


def emit_epi_presum(A, acc, srdx, stflag=' sc1'):
    vX = 6
    A(f'v_and_b32 {v(4)}, 31, {v(VL)}')
    A(f'v_mul_u32_u24 {v(vX)}, 896, {v(4)}')
    A(f'v_lshrrev_b32 {v(4)}, 5, {v(VL)}')
    A(f'v_lshl_add_u32 {v(vX)}, {v(4)}, 4, {v(vX)}')
    XR = 160
    for nb in range(7):
        for ph in range(2):
            A(f'buffer_load_dwordx4 {v(XR + (nb * 2 + ph) * 4, 4)}, {v(vX)}, {srdx}, s43 offen offset:{nb * 64 + ph * 32}')
    A('s_mov_b32 s50, s42')
    for nb in range(7):
        c = acc(0, nb)
        for ph in range(2):
            for j in range(4):
                x = XR + (nb * 2 + ph) * 4 + j
                r = c + 8 * ph + 2 * j
                A.auto(f'v_lshlrev_b32 {v(8)}, 16, {v(x)}')
                A(f'v_and_b32 {v(9)}, 0xffff0000, {v(x)}')
                A(f'v_add_f32 {v(r)}, {v(r)}, {v(8)}')
                A(f'v_add_f32 {v(r + 1)}, {v(r + 1)}, {v(9)}')
        for q in range(4):
            A(f'buffer_store_dwordx4 {v(c + 4 * q, 4)}, {v(VLIN)}, {SRD}, s50 offen offset:{q * 1024}{stflag}')
        A(f's_add_u32 s50, s50, 4096')
```

```python
from asmdsl import v, a, s
import layout as L
import gemm as G

SRD = 's[8:11]'
SRD_X = 's[56:59]'
SRD_OUT = 's[60:63]'


def item_gemm1(A, kind):
    sh = 5 if kind != 'GU' else 4
    A(f's_lshr_b32 s53, s39, {sh}')
    A(f's_and_b32 s54, s39, {(1 << sh) - 1}')
    A('s_lshl_b32 s55, s53, 3')
    A('s_lshl_b32 s50, s13, 1')
    A('s_add_u32 s55, s55, s50')
    A('s_mul_i32 s40, s55, 28672')
    A(f's_add_u32 s40, s40, {L.XF}')
    nb0 = {'Y': L.NB_B, 'T': L.NB_A, 'GU': L.NB_GU}[kind]
    A(f's_mul_i32 s41, s54, {7 * 28672}')
    A(f's_add_u32 s41, s41, {L.WF + nb0 * 28672}')
    if kind == 'GU':
        A(f's_mul_i32 s42, s55, {112 * 1024}')
        A(f's_mul_i32 s50, s54, {7 * 1024}')
        A('s_add_u32 s42, s42, s50')
        A(f's_add_u32 s42, s42, {L.HF}')
    else:
        A(f's_mul_i32 s42, s55, {16 * 28672}')
        A(f's_mul_i32 s50, s54, {7 * 2048}')
        A('s_add_u32 s42, s42, s50')
        A(f's_add_u32 s42, s42, {L.YF if kind == "Y" else L.TF}')
    acc = G.emit_gemm_main(A, 'g1' + kind, 2, 28, 28672, 28672, kind == 'Y')
    if kind == 'GU':
        G.emit_epi_gu(A, acc, 2, 112 * 1024)
    else:
        G.emit_epi_pack(A, acc, 2, 16 * 28672)


def item_gemm2(A):
    A('s_lshr_b32 s53, s39, 1')
    A('s_and_b32 s54, s39, 1')
    A('s_lshl_b32 s55, s53, 2')
    A('s_add_u32 s55, s55, s13')
    A(f's_mul_i32 s40, s55, {112 * 1024}')
    A(f's_add_u32 s40, s40, {L.HF}')
    A(f's_mul_i32 s41, s54, {7 * 112 * 1024}')
    A(f's_add_u32 s41, s41, {L.WDF}')
    A(f's_mul_i32 s42, s55, {14 * 4096}')
    A(f's_mul_i32 s50, s54, {7 * 4096}')
    A('s_add_u32 s42, s42, s50')
    A(f's_add_u32 s42, s42, {L.PS}')
    A(f's_mul_i32 s43, s55, {32 * 896}')
    A(f's_mul_i32 s50, s54, {7 * 64}')
    A('s_add_u32 s43, s43, s50')
    acc = G.emit_gemm_main(A, 'g2', 1, 112, 0, 112 * 1024, False)
    G.emit_epi_presum(A, acc, SRD_X)


PXS = 40960


def guard(A):
    A('s_add_u32 s33, s33, 1')
    A('s_cmp_gt_u32 s33, 0x200000')
    A('s_cbranch_scc1 L_bail')


def sent_check(A, tmp, regs):
    A(f'v_max3_u32 {v(tmp)}, {v(regs[0])}, {v(regs[1])}, {v(regs[2])}')
    i = 3
    while i + 1 < len(regs):
        A(f'v_max3_u32 {v(tmp)}, {v(tmp)}, {v(regs[i])}, {v(regs[i + 1])}')
        i += 2
    if i < len(regs):
        A(f'v_max_u32 {v(tmp)}, {v(tmp)}, {v(regs[i])}')
    A(f'v_cmp_eq_u32 vcc, -1, {v(tmp)}')


def item_punit(A, ld=' sc1', st=' sc1'):
    VL, VLIN, VPERM = G.VL, G.VLIN, G.VPERM
    XL, ML, PM = 0, 28672, 28672 + 8192
    SX, SM, KB, Q = 32, 48, 64, 96
    vMR, vTT, vPW, t0, t1, t2 = 5, 6, 7, 8, 9, 10
    A('s_lshr_b32 s53, s39, 2')
    A('s_and_b32 s54, s39, 3')
    A('s_lshl_b32 s55, s54, 2')
    A('s_add_u32 s55, s55, s13')
    A('s_lshl_b32 s50, s53, 4')
    A('s_add_u32 s50, s50, s55')
    A('s_mul_i32 s40, s50, 28672')
    A(f's_add_u32 s40, s40, {L.TF}')
    A('s_mul_i32 s41, s53, 28672')
    A('s_mul_i32 s50, s13, 7168')
    A('s_add_u32 s41, s41, s50')
    A(f's_add_u32 s41, s41, {L.XF}')
    A(f's_add_u32 s50, s50, {XL}')
    A('s_mov_b32 m0, s50')
    for c in range(7):
        if c == 4:
            A('s_add_u32 s50, s50, 4096')
            A('s_mov_b32 m0, s50')
            A('s_add_u32 s41, s41, 4096')
        A(f'buffer_load_dwordx4 {v(VLIN)}, {SRD}, s41 offen offset:{(c & 3) * 1024}{ld} lds')
    for ks in range(28):
        if ks and ks % 4 == 0:
            A('s_add_u32 s40, s40, 4096')
        A(f'buffer_load_dwordx4 {a(4 * ks, 4)}, {v(VLIN)}, {SRD}, s40 offen offset:{(ks & 3) * 1024}{ld}')
    for r in range(32):
        A(f'v_mov_b32 {v(SX + r)}, 0')
    A(f'v_lshrrev_b32 {v(t0)}, 5, {v(VL)}')
    A(f'v_and_b32 {v(t1)}, 7, {v(VL)}')
    A(f'v_lshlrev_b32 {v(vMR)}, 4, {v(t1)}')
    A(f'v_lshl_add_u32 {v(vMR)}, {v(t0)}, 7, {v(vMR)}')
    A(f'v_add_u32 {v(vMR)}, {ML}, {v(vMR)}')
    A(f'v_and_b32 {v(t1)}, 31, {v(VL)}')
    A(f'v_lshlrev_b32 {v(t0)}, 3, {v(t0)}')
    A(f'v_sub_u32 {v(vTT)}, {v(t1)}, {v(t0)}')
    A('s_waitcnt vmcnt(28)')
    A('s_barrier')

    def pass_(accr, addr, stride):
        D = 6
        for ks in range(D):
            A(f'ds_read_b128 {v(KB + 4 * (ks % 8), 4)}, {v(addr)} offset:{ks * stride}')
        for ks in range(28):
            A.auto(f'v_mfma_f32_32x32x16_bf16 {v(accr, 16)}, {v(KB + 4 * (ks % 8), 4)}, {a(4 * ks, 4)}, {v(accr, 16)}')
            if ks + D < 28:
                A(f'ds_read_b128 {v(KB + 4 * ((ks + D) % 8), 4)}, {v(addr)} offset:{(ks + D) * stride}')
    pass_(SX, VPERM, 1024)
    A(f'v_mov_b32 {v(t2)}, 0xf149f2ca')
    for r in range(16):
        A(f'v_cmp_le_i32 vcc, {16 * (r >> 3) + (r & 7)}, {v(vTT)}')
        A(f'v_cndmask_b32 {v(SX + r)}, {v(t2)}, {v(SX + r)}, vcc')
    A('s_lshl_b32 s41, s53, 13')
    A('s_lshl_b32 s50, s13, 11')
    A('s_add_u32 s41, s41, s50')
    A(f's_add_u32 s41, s41, {L.MEMX}')
    A('s_cmp_eq_u32 s13, 3')
    A('s_cselect_b32 s51, 0, 1024')
    A('s_add_u32 s51, s51, s41')
    A(f'v_add_u32 {v(t0)}, s50, {v(VLIN)}')
    A(f'v_add_u32 {v(t0)}, {ML}, {v(t0)}')
    poll = A.newlabel('P_poll')
    A.label(poll, keep=True)
    guard(A)
    A(f'buffer_load_dwordx4 {v(Q, 4)}, {v(VLIN)}, {SRD}, s41 offen sc1')
    A(f'buffer_load_dwordx4 {v(Q + 4, 4)}, {v(VLIN)}, {SRD}, s51 offen sc1')
    A('s_waitcnt vmcnt(0)')
    sent_check(A, t1, [Q + i for i in range(8)])
    ok = A.newlabel('P_ok')
    A(f's_cbranch_vccz {ok}')
    A('s_sleep 4')
    A(f's_branch {poll}')
    A.label(ok, keep=True)
    A(f'ds_write_b128 {v(t0)}, {v(Q, 4)}')
    A(f'ds_write_b128 {v(t0)}, {v(Q + 4, 4)} offset:1024')
    A('s_waitcnt lgkmcnt(0)')
    A('s_barrier')
    pass_(SM, vMR, 256)
    vals = [SX + r for r in range(16)] + [SM + r for r in range(4)]
    m, m2, l_, l2 = 11, 12, 13, 14
    A(f'v_max3_f32 {v(m)}, {v(vals[0])}, {v(vals[1])}, {v(vals[2])}')
    for i in range(3, 19, 2):
        A(f'v_max3_f32 {v(m)}, {v(m)}, {v(vals[i])}, {v(vals[i + 1])}')
    A(f'v_max_f32 {v(m)}, {v(m)}, {v(vals[19])}')
    A(f'v_mov_b32 {v(m2)}, {v(m)}')
    A(f'v_permlane32_swap_b32 {v(m)}, {v(m2)}')
    A(f'v_max_f32 {v(m)}, {v(m)}, {v(m2)}')
    for x in vals:
        A(f'v_sub_f32 {v(x)}, {v(x)}, {v(m)}')
    for x in vals:
        A(f'v_exp_f32 {v(x)}, {v(x)}')
    A(f'v_add_f32 {v(l_)}, {v(vals[0])}, {v(vals[1])}')
    A(f'v_add_f32 {v(l2)}, {v(vals[2])}, {v(vals[3])}')
    for i in range(4, 20, 2):
        A(f'v_add_f32 {v(l_)}, {v(l_)}, {v(vals[i])}')
        A(f'v_add_f32 {v(l2)}, {v(l2)}, {v(vals[i + 1])}')
    A(f'v_add_f32 {v(l_)}, {v(l_)}, {v(l2)}')
    A(f'v_mov_b32 {v(l2)}, {v(l_)}')
    A(f'v_permlane32_swap_b32 {v(l_)}, {v(l2)}')
    A(f'v_add_f32 {v(l_)}, {v(l_)}, {v(l2)}')
    A(f'v_rcp_f32 {v(l_)}, {v(l_)}')
    for x in vals:
        A(f'v_mul_f32 {v(x)}, {v(x)}, {v(l_)}')
    for i in range(10):
        A(f'v_cvt_pk_bf16_f32 {v(Q + i)}, {v(vals[2 * i])}, {v(vals[2 * i + 1])}')
    A(f's_mul_i32 s42, s53, {PXS}')
    A(f's_add_u32 s42, s42, {L.PX}')
    A('s_lshl_b32 s50, s55, 11')
    A('s_add_u32 s50, s50, s42')
    for ph in range(2):
        A(f'buffer_store_dwordx4 {v(Q + 4 * ph, 4)}, {v(VLIN)}, {SRD}, s50 offen offset:{ph * 1024}{st}')
    A('s_and_b32 s50, s13, 1')
    A('s_lshl_b32 s50, s50, 10')
    A('s_lshr_b32 s51, s13, 1')
    A('s_lshl_b32 s51, s51, 2')
    A('s_add_u32 s51, s51, s50')
    A(f's_add_u32 s51, s51, {PM}')
    A(f'v_add_u32 {v(vPW)}, s51, {v(VLIN)}')
    A(f'ds_write2_b32 {v(vPW)}, {v(Q + 8)}, {v(Q + 9)} offset0:0 offset1:2')
    A('s_waitcnt lgkmcnt(0)')
    A('s_barrier')
    done = A.newlabel('P_done')
    A('s_cmp_ge_u32 s13, 2')
    A(f's_cbranch_scc1 {done}')
    A(f'ds_read_b128 {v(Q + 12, 4)}, {v(vPW)}')
    A('s_lshl_b32 s51, s54, 11')
    A('s_add_u32 s50, s50, s51')
    A('s_add_u32 s50, s50, s42')
    A(f's_add_u32 s50, s50, 32768')
    A('s_waitcnt lgkmcnt(0)')
    A(f'buffer_store_dwordx4 {v(Q + 12, 4)}, {v(VLIN)}, {SRD}, s50 offen{st}')
    A.label(done, keep=True)


def item_pvunit(A, wait_px=None, ld=' sc1'):
    VL, VLIN = G.VL, G.VLIN
    ACC, YMR, RR = 32, 48, 64
    vY, vYM, vO, t0, t1, t2 = 5, 6, 7, 8, 9, 10
    A('s_mul_hi_u32 s53, s39, 0x24924925')
    A('s_mul_i32 s50, s53, 7')
    A('s_sub_u32 s54, s39, s50')
    A('s_lshl_b32 s54, s54, 1')
    A('s_and_b32 s50, s13, 1')
    A('s_add_u32 s54, s54, s50')
    A('s_lshr_b32 s55, s13, 1')
    A(f'v_lshrrev_b32 {v(t0)}, 4, {v(G.VPERM)}')
    A(f'v_and_b32 {v(t0)}, 31, {v(t0)}')
    A(f'v_and_b32 {v(t1)}, 1, {v(t0)}')
    A(f'v_lshrrev_b32 {v(t0)}, 1, {v(t0)}')
    A(f'v_lshrrev_b32 {v(t2)}, 5, {v(VL)}')
    A(f'v_lshlrev_b32 {v(vY)}, 4, {v(t0)}')
    A(f'v_lshl_add_u32 {v(vYM)}, {v(t1)}, 10, {v(vY)}')
    A(f'v_lshl_add_u32 {v(vYM)}, {v(t2)}, 8, {v(vYM)}')
    A(f'v_lshl_add_u32 {v(vY)}, {v(t1)}, 8, {v(vY)}')
    A(f'v_lshl_add_u32 {v(vY)}, {v(t2)}, 9, {v(vY)}')
    A(f'v_and_b32 {v(t0)}, 31, {v(VL)}')
    A(f'v_mul_u32_u24 {v(vO)}, 896, {v(t0)}')
    A(f'v_lshl_add_u32 {v(vO)}, {v(t2)}, 4, {v(vO)}')
    A('s_lshl_b32 s50, s53, 4')
    A('s_lshl_b32 s51, s55, 3')
    A('s_add_u32 s50, s50, s51')
    A('s_mul_i32 s50, s50, 14')
    A('s_add_u32 s50, s50, s54')
    A('s_lshl_b32 s40, s50, 11')
    A(f's_add_u32 s40, s40, {L.YF}')
    for hh in range(8):
        for ph in range(2):
            A(f'buffer_load_dwordx4 {a((hh * 2 + ph) * 4, 4)}, {v(vY)}, {SRD}, s40 offen offset:{ph * 1024}{ld}')
        A(f's_add_u32 s40, s40, {14 * 2048}')
    A('s_mul_i32 s41, s53, 14')
    A('s_add_u32 s41, s41, s54')
    A('s_lshl_b32 s42, s41, 12')
    A(f's_add_u32 s42, s42, {L.PS}')
    A('s_cmp_eq_u32 s55, 0')
    A('s_cselect_b32 s42, s42, 0x40000000')
    for q in range(4):
        A(f'buffer_load_dwordx4 {v(ACC + 4 * q, 4)}, {v(VLIN)}, {SRD}, s42 offen offset:{q * 1024}{ld}')
    A('s_lshl_b32 s41, s41, 2')
    A('s_lshl_b32 s50, s55, 1')
    A('s_add_u32 s41, s41, s50')
    A('s_lshl_b32 s41, s41, 11')
    A(f's_add_u32 s41, s41, {L.YM}')
    poll = A.newlabel('PV_poll')
    A.label(poll, keep=True)
    guard(A)
    for wq in range(2):
        for u in range(2):
            A(f'buffer_load_dwordx4 {v(YMR + (wq * 2 + u) * 4, 4)}, {v(vYM)}, {SRD}, s41 offen offset:{wq * 2048 + u * 512} sc1')
    A('s_waitcnt vmcnt(0)')
    sent_check(A, t0, [YMR + i for i in range(16)])
    ok = A.newlabel('PV_ok')
    A(f's_cbranch_vccz {ok}')
    A('s_sleep 4')
    A(f's_branch {poll}')
    A.label(ok, keep=True)
    if wait_px:
        wait_px(A)
    A(f's_mul_i32 s42, s53, {PXS}')
    A(f's_add_u32 s42, s42, {L.PX}')
    A('s_lshl_b32 s50, s55, 14')
    A('s_add_u32 s40, s42, s50')
    for k in range(16):
        if k and k % 4 == 0:
            A('s_add_u32 s40, s40, 4096')
        A(f'buffer_load_dwordx4 {a(64 + 4 * k, 4)}, {v(VLIN)}, {SRD}, s40 offen offset:{(k & 3) * 1024}{ld}')
    A('s_lshl_b32 s50, s55, 12')
    A('s_add_u32 s40, s42, s50')
    A('s_add_u32 s40, s40, 32768')
    for k in range(4):
        A(f'buffer_load_dwordx4 {a(128 + 4 * k, 4)}, {v(VLIN)}, {SRD}, s40 offen offset:{k * 1024}{ld}')
    for k in range(16):
        A.auto(f'v_mfma_f32_32x32x16_bf16 {v(ACC, 16)}, {a(4 * k, 4)}, {a(64 + 4 * k, 4)}, {v(ACC, 16)}')
    for k in range(4):
        A.auto(f'v_mfma_f32_32x32x16_bf16 {v(ACC, 16)}, {v(YMR + 4 * k, 4)}, {a(128 + 4 * k, 4)}, {v(ACC, 16)}')
    A('s_and_b32 s50, s13, 1')
    A('s_lshl_b32 s50, s50, 12')
    A(f'v_add_u32 {v(t0)}, s50, {v(VLIN)}')
    lo = A.newlabel('PV_lo')
    done = A.newlabel('PV_done')
    A('s_cmp_eq_u32 s55, 0')
    A(f's_cbranch_scc1 {lo}')
    for q in range(4):
        A(f'ds_write_b128 {v(t0)}, {v(ACC + 4 * q, 4)} offset:{q * 1024}')
    A('s_waitcnt lgkmcnt(0)')
    A('s_barrier')
    A(f's_branch {done}')
    A.label(lo)
    A('s_barrier')
    for q in range(4):
        A(f'ds_read_b128 {v(RR + 4 * q, 4)}, {v(t0)} offset:{q * 1024}')
    A(f's_mul_i32 s50, s53, {32 * 896}')
    A('s_lshl_b32 s51, s54, 6')
    A('s_add_u32 s50, s50, s51')
    A('s_nop 7')
    for r in range(8):
        A.auto(f'v_pk_add_f32 {v(ACC + 2 * r, 2)}, {v(ACC + 2 * r, 2)}, {v(RR + 2 * r, 2)}')
    for i in range(8):
        A(f'v_cvt_pk_bf16_f32 {v(RR + i)}, {v(ACC + 2 * i)}, {v(ACC + 2 * i + 1)}')
    for ph in range(2):
        A(f'buffer_store_dwordx4 {v(RR + 4 * ph, 4)}, {v(vO)}, {SRD_OUT}, s50 offen offset:{ph * 32}')
    A.label(done, keep=True)
```

```python
XF = 0x00000000
WF = 0x00200000
WDF = 0x01200000
YF = 0x01400000
TF = 0x03000000
HF = 0x04C00000
PS = 0x05300000
MEMA = 0x05780000
MEMK = 0x05700000
MEMX = 0x05800000
PBUF = 0x05880000
YM = 0x05E00000
PX = 0x05980000
PS1 = 0x06C00000
FLAGS = 0x07000000
STAMP = 0x07800000
WS_BYTES = 0x10000000
NB_A = 0
NB_B = 224
NB_GU = 448
F_Y, F_GU, F_T, F_G2, F_P, F_PV, F_Y0 = 0, 256, 384, 640, 704, 960, 1408
F_AB, F_LN, F_PK, F_INIT, F_YM = 1536, 1792, 2048, 2240, 2304
YMT = PX + 64 * 40960
YMT_DELTA = (YMT - YM - 62 * 114688) & 0xffffffff
```

```python
from asmdsl import v, a, s
import layout as L
import gemm as G

SRD = 's[8:11]'
import struct
CSCALE = struct.unpack('<I', struct.pack('<f', 1.4426950408889634 / 16.0))[0]


def srd(A, d, lo, hi, nbytes):
    A(f's_mov_b32 s{d}, s{lo}')
    A(f's_and_b32 s{d + 1}, s{hi}, 0xffff')
    A(f's_mov_b32 s{d + 2}, {nbytes}')
    A(f's_mov_b32 s{d + 3}, 0x20000')


def item_ab(A, mat, st=''):
    VL, VLIN, VPERM = G.VL, G.VLIN, G.VPERM
    acc = lambda tb, nb: G.ACC0 + 16 * (tb * 7 + nb)
    vOwn, vSh, vRd, vSt, t0, t1 = 5, 6, 7, 24, 8, 9
    A('s_lshr_b32 s53, s39, 2')
    A('s_bfe_u32 s54, s39, 0x10001')
    A('s_and_b32 s55, s39, 1')
    A(f'v_lshrrev_b32 {v(t0)}, 4, {v(VPERM)}')
    A(f'v_and_b32 {v(t0)}, 31, {v(t0)}')
    A(f'v_lshlrev_b32 {v(vOwn)}, 13, {v(t0)}')
    A(f'v_lshrrev_b32 {v(t1)}, 5, {v(VL)}')
    A(f'v_lshl_add_u32 {v(vOwn)}, {v(t1)}, 4, {v(vOwn)}')
    A('s_lshl_b32 s44, s54, 3')
    A('s_lshl_b32 s50, s13, 1')
    A('s_add_u32 s44, s44, s50')
    for tb in range(2):
        A(f's_add_u32 s50, s44, {tb}')
        A('s_min_u32 s50, s50, 13')
        A('s_lshl_b32 s50, s50, 18')
        A('s_lshl_b32 s51, s53, 9')
        A(f's_add_u32 s{45 + tb}, s50, s51')
    if mat == 0:
        A(f'v_and_b32 {v(t0)}, 31, {v(VL)}')
        A(f'v_lshlrev_b32 {v(vSh)}, 13, {v(t0)}')
        A(f'v_lshl_add_u32 {v(vSh)}, {v(t1)}, 4, {v(vSh)}')
        A(f's_mul_i32 s47, s55, {7 << 18}')
        A('s_lshl_b32 s51, s53, 9')
        A('s_add_u32 s47, s47, s51')
        A('s_lshl_b32 s51, s13, 5')
        A('s_add_u32 s47, s47, s51')
        nb_step, c_step = 1 << 18, 128
        A(f'v_mov_b32 {v(vRd)}, {v(VLIN)}')
        A(f'v_mov_b32 {v(vSt)}, {v(VLIN)}')
    else:
        A(f'v_lshrrev_b32 {v(t0)}, 2, {v(VL)}')
        A(f'v_mul_u32_u24 {v(vSh)}, 896, {v(t0)}')
        A(f'v_and_b32 {v(t0)}, 3, {v(VL)}')
        A(f'v_lshl_add_u32 {v(vSh)}, {v(t0)}, 4, {v(vSh)}')
        A(f's_mul_i32 s47, s53, {256 * 896}')
        A(f's_mul_i32 s51, s55, {7 * 64}')
        A('s_add_u32 s47, s47, s51')
        A(f's_mul_i32 s51, s13, {16 * 896}')
        A('s_add_u32 s47, s47, s51')
        nb_step, c_step = 64, 64 * 896
        tr_addr(A, vRd, VL, t0)
        A(f'v_and_b32 {v(t0)}, 1, {v(VL)}')
        A(f'v_lshlrev_b32 {v(vSt)}, 4, {v(t0)}')
        A(f'v_bfe_u32 {v(t0)}, {v(VL)}, 1, 4')
        A(f'v_add_u32 {v(vSt)}, {v(vSt)}, {v(t0)}')
        A(f'v_lshl_add_u32 {v(vSt)}, {v(t1)}, 5, {v(vSt)}')
        A(f'v_lshlrev_b32 {v(vSt)}, 4, {v(vSt)}')
    A(f's_mul_i32 s48, s13, 7168')
    for c in range(4):
        for nb in range(7):
            A(f's_add_u32 s50, s48, {c * 4 * 7168 + nb * 1024}')
            A('s_mov_b32 m0, s50')
            A(f's_add_u32 s51, s47, {c * c_step + nb * nb_step}')
            A(f'buffer_load_dwordx4 {v(vSh)}, s[72:75], s51 offen lds')
        for kq in range(4):
            ks = 4 * c + kq
            for tb in range(2):
                A(f'buffer_load_dwordx4 {a((ks * 2 + tb) * 4, 4)}, {v(vOwn)}, s[68:71], s{45 + tb} offen offset:{ks * 32}')
    for r in range(224):
        A(f'v_mov_b32 {v(G.ACC0 + r)}, 0')
    vRd2 = 25
    A(f'v_add_u32 {v(vRd2)}, {8 * 7168}, {v(vRd)}')
    WB = lambda par, nb: 128 + (par * 7 + nb) * 4

    def rd(ks, par):
        base = v(vRd) if ks < 8 else v(vRd2)
        o = (ks & 7) * 7168
        out = []
        for nb in range(7):
            if mat == 0:
                out.append([f'ds_read_b128 {a(WB(par, nb), 4)}, {base} offset:{o + nb * 1024}'])
            else:
                out.append([f'ds_read_b64_tr_b16 {a(WB(par, nb), 2)}, {base} offset:{o + nb * 1024}',
                            f'ds_read_b64_tr_b16 {a(WB(par, nb) + 2, 2)}, {base} offset:{o + nb * 1024 + 256}'])
        return out
    for c in range(4):
        A(f's_waitcnt vmcnt({45 - 15 * c})')
        A('s_barrier')
        for g in rd(4 * c, 0):
            for x in g:
                A(x)
        for kq in range(4):
            ks = 4 * c + kq
            par = kq & 1
            nxt = rd(ks + 1, par ^ 1) if kq < 3 else []
            for nb in range(7):
                for tb in range(2):
                    A.auto(f'v_mfma_f32_32x32x16_bf16 {v(acc(tb, nb), 16)}, {a((ks * 2 + tb) * 4, 4)}, {a(WB(par, nb), 4)}, {v(acc(tb, nb), 16)}')
                    if tb == 0 and nxt:
                        for x in nxt.pop(0):
                            A(x)
    A('s_mul_i32 s42, s53, 14')
    A('s_mul_i32 s50, s55, 7')
    A('s_add_u32 s42, s42, s50')
    A('s_mul_i32 s42, s42, 28672')
    A(f's_add_u32 s42, s42, {L.WF + (L.NB_A if mat == 0 else L.NB_B) * 28672}')
    A(f's_mov_b32 s52, {CSCALE}')
    n = 0
    for tb in range(2):
        A(f's_add_u32 s50, s44, {tb}')
        A('s_lshl_b32 s51, s50, 11')
        A('s_add_u32 s51, s51, s42')
        A('s_cmp_gt_u32 s50, 13')
        A('s_cselect_b32 s51, 0x40000000, s51')
        for nb in range(7):
            for ph in range(2):
                t = 8 + 4 * (n % 4)
                n += 1
                for j in range(4):
                    r = acc(tb, nb) + 8 * ph + 2 * j
                    if mat == 0:
                        A(f'v_mul_f32 {v(r)}, s52, {v(r)}')
                        A(f'v_mul_f32 {v(r + 1)}, s52, {v(r + 1)}')
                    A(f'v_cvt_pk_bf16_f32 {v(t + j)}, {v(r)}, {v(r + 1)}')
                A(f'buffer_store_dwordx4 {v(t, 4)}, {v(vSt)}, {SRD}, s51 offen offset:{ph * 1024}{st}')
            A('s_add_u32 s51, s51, 28672')


def tr_addr(A, dst, VL, t0):
    A(f'v_lshrrev_b32 {v(t0)}, 5, {v(VL)}')
    A(f'v_lshlrev_b32 {v(dst)}, 9, {v(t0)}')
    A(f'v_bfe_u32 {v(t0)}, {v(VL)}, 2, 2')
    A(f'v_lshl_add_u32 {v(dst)}, {v(t0)}, 6, {v(dst)}')
    A(f'v_bfe_u32 {v(t0)}, {v(VL)}, 4, 1')
    A(f'v_lshl_add_u32 {v(dst)}, {v(t0)}, 5, {v(dst)}')
    A(f'v_and_b32 {v(t0)}, 3, {v(VL)}')
    A(f'v_lshl_add_u32 {v(dst)}, {v(t0)}, 3, {v(dst)}')


def rne_bf16(A, r, t):
    A(f'v_cvt_pk_bf16_f32 {v(r)}, {v(r)}, {v(r)}')
    A(f'v_lshlrev_b32 {v(r)}, 16, {v(r)}')


def wave_ln(A, srdx, st=''):
    VL = G.VL
    vA, vS, t0, t1, sm, sq = 5, 6, 7, 8, 9, 10
    X, F = 16, 48
    A(f'v_lshrrev_b32 {v(t0)}, 3, {v(VL)}')
    A(f'v_and_b32 {v(t1)}, 7, {v(VL)}')
    A(f'v_mul_u32_u24 {v(vA)}, 896, {v(t0)}')
    A(f'v_lshl_add_u32 {v(vA)}, {v(t1)}, 4, {v(vA)}')
    A(f'v_lshlrev_b32 {v(vS)}, 4, {v(t0)}')
    A(f'v_lshl_add_u32 {v(vS)}, {v(t1)}, 9, {v(vS)}')
    A(f's_mul_i32 s50, s39, {8 * 896}')
    for i in range(7):
        A(f'buffer_load_dwordx4 {v(X + 4 * i, 4)}, {v(vA)}, {srdx}, s50 offen offset:{i * 128}')
    for i in range(28):
        A.auto(f'v_lshlrev_b32 {v(F + 2 * i)}, 16, {v(X + i)}')
        A(f'v_and_b32 {v(F + 2 * i + 1)}, 0xffff0000, {v(X + i)}')

    def red8(r):
        for x in (1, 2):
            pat = '[1,0,3,2]' if x == 1 else '[2,3,0,1]'
            A(f'v_add_f32_dpp {v(r)}, {v(r)}, {v(r)} quad_perm:{pat} row_mask:0xf bank_mask:0xf')
        A(f'v_add_f32_dpp {v(r)}, {v(r)}, {v(r)} row_half_mirror row_mask:0xf bank_mask:0xf')
    A(f'v_add_f32 {v(sm)}, {v(F)}, {v(F + 1)}')
    for i in range(2, 56):
        A(f'v_add_f32 {v(sm)}, {v(sm)}, {v(F + i)}')
    red8(sm)
    inv = struct.unpack('<I', struct.pack('<f', 1.0 / 448.0))[0]
    A(f'v_mul_f32 {v(sm)}, {inv:#x}, {v(sm)}')
    A(f'v_mov_b32 {v(sq)}, 0')
    for i in range(56):
        A(f'v_sub_f32 {v(t0)}, {v(F + i)}, {v(sm)}')
        A(f'v_fmac_f32 {v(sq)}, {v(t0)}, {v(t0)}')
    red8(sq)
    A(f'v_mul_f32 {v(sq)}, {inv:#x}, {v(sq)}')
    rne_bf16(A, sm, t0)
    rne_bf16(A, sq, t0)
    eps = struct.unpack('<I', struct.pack('<f', 1e-5))[0]
    A(f'v_add_f32 {v(sq)}, {eps:#x}, {v(sq)}')
    rne_bf16(A, sq, t0)
    A(f'v_sqrt_f32 {v(sq)}, {v(sq)}')
    rne_bf16(A, sq, t0)
    A(f'v_rcp_f32 {v(sq)}, {v(sq)}')
    for i in range(28):
        r = F + 2 * i
        A(f'v_sub_f32 {v(r)}, {v(r)}, {v(sm)}')
        A(f'v_sub_f32 {v(r + 1)}, {v(r + 1)}, {v(sm)}')
        A(f'v_cvt_pk_bf16_f32 {v(t0)}, {v(r)}, {v(r + 1)}')
        A(f'v_lshlrev_b32 {v(r)}, 16, {v(t0)}')
        A(f'v_and_b32 {v(r + 1)}, 0xffff0000, {v(t0)}')
        A(f'v_mul_f32 {v(r)}, {v(r)}, {v(sq)}')
        A(f'v_mul_f32 {v(r + 1)}, {v(r + 1)}, {v(sq)}')
        A(f'v_cvt_pk_bf16_f32 {v(X + i)}, {v(r)}, {v(r + 1)}')
    A('s_lshr_b32 s50, s39, 2')
    A('s_mul_i32 s50, s50, 28672')
    A('s_and_b32 s51, s39, 3')
    A('s_lshl_b32 s51, s51, 7')
    A('s_add_u32 s50, s50, s51')
    A(f's_add_u32 s50, s50, {L.XF}')
    for i in range(7):
        A(f'buffer_store_dwordx4 {v(X + 4 * i, 4)}, {v(vS)}, {SRD}, s50 offen{st}')
        A('s_add_u32 s50, s50, 4096')


def wave_pack(A, which, nfr, st=''):
    VL, VLIN = G.VL, G.VLIN
    vA, vW, vR, t0 = 5, 6, 7, 8
    D = 16
    rowb = 3584 if which == 'GU' else 896
    A(f'v_lshrrev_b32 {v(t0)}, 2, {v(VL)}')
    A(f'v_mul_u32_u24 {v(vA)}, {rowb}, {v(t0)}')
    A(f'v_and_b32 {v(t0)}, {1 if which == "GU" else 3}, {v(VL)}')
    A(f'v_lshl_add_u32 {v(vA)}, {v(t0)}, 4, {v(vA)}')
    A(f's_mul_i32 s48, s13, {nfr * 1024}')
    A(f'v_add_u32 {v(vW)}, s48, {v(VLIN)}')
    tr_addr(A, vR, VL, t0)
    A(f'v_add_u32 {v(vR)}, s48, {v(vR)}')
    sh = 2 if which == 'GU' else 4
    A(f's_lshr_b32 s53, s39, {sh}')
    A(f's_and_b32 s54, s39, {(1 << sh) - 1}')
    A(f's_mul_i32 s50, s54, {nfr * 16 * rowb}')
    A(f's_lshl_b32 s51, s53, {5 if which == "GU" else 6}')
    A('s_add_u32 s50, s50, s51')
    for k in range(nfr):
        if which == 'GU':
            A('s_mov_b32 exec_lo, 0x33333333')
            A('s_mov_b32 exec_hi, 0x33333333')
            A(f'buffer_load_dwordx4 {v(D + 4 * k, 4)}, {v(vA)}, s[68:71], s50 offen')
            A('s_mov_b32 exec_lo, 0xcccccccc')
            A('s_mov_b32 exec_hi, 0xcccccccc')
            A(f'buffer_load_dwordx4 {v(D + 4 * k, 4)}, {v(vA)}, s[72:75], s50 offen')
        else:
            A(f'buffer_load_dwordx4 {v(D + 4 * k, 4)}, {v(vA)}, s[76:79], s50 offen')
        A(f's_add_u32 s50, s50, {16 * rowb}')
    A('s_mov_b64 exec, -1')
    if which == 'GU':
        A('s_mul_i32 s50, s53, 28672')
        A(f's_add_u32 s50, s50, {L.WF + L.NB_GU * 28672}')
    else:
        A(f's_mul_i32 s50, s53, {112 * 1024}')
        A(f's_add_u32 s50, s50, {L.WDF}')
    A(f's_mul_i32 s51, s54, {nfr * 1024}')
    A('s_add_u32 s50, s50, s51')
    for k in range(nfr):
        A.auto(f'ds_write_b128 {v(vW)}, {v(D + 4 * k, 4)} offset:{k * 1024}')
        A(f'ds_read_b64_tr_b16 {v(D + 4 * k, 2)}, {v(vR)} offset:{k * 1024}')
        A(f'ds_read_b64_tr_b16 {v(D + 4 * k + 2, 2)}, {v(vR)} offset:{k * 1024 + 256}')
    for k in range(nfr):
        if k == 4:
            A('s_add_u32 s50, s50, 4096')
        A.auto(f'buffer_store_dwordx4 {v(D + 4 * k, 4)}, {v(VLIN)}, {SRD}, s50 offen offset:{(k & 3) * 1024}{st}')


def wave_fill(A, base, nkb_total, nwaves, val):
    per = (nkb_total + nwaves - 1) // nwaves
    for r in range(4):
        A(f'v_mov_b32 {v(12 + r)}, {val}')
    A(f's_mul_i32 s50, s39, {per}')
    A(f's_add_u32 s51, s50, {per}')
    A(f's_min_u32 s51, s51, {nkb_total}')
    lab, end = A.newlabel('fill'), A.newlabel('fille')
    A.label(lab)
    A('s_cmp_ge_u32 s50, s51')
    A(f's_cbranch_scc1 {end}')
    A('s_lshl_b32 s52, s50, 10')
    A(f's_add_u32 s52, s52, {base}')
    A(f'buffer_store_dwordx4 v[12:15], {v(G.VLIN)}, {SRD}, s52 offen')
    A('s_add_u32 s50, s50, 1')
    A(f's_branch {lab}')
    A.label(end)


def wave_mem0(A, srdm):
    VL, VLIN = G.VL, G.VLIN
    vA, vB, t0 = 5, 6, 7
    A(f'v_and_b32 {v(t0)}, 7, {v(VL)}')
    A(f'v_mul_u32_u24 {v(vA)}, 896, {v(t0)}')
    A(f'v_lshrrev_b32 {v(t0)}, 4, {v(VL)}')
    A(f'v_lshl_add_u32 {v(vB)}, {v(t0)}, 5, {v(vA)}')
    A(f'v_bfe_u32 {v(t0)}, {v(VL)}, 3, 1')
    A(f'v_lshl_add_u32 {v(vA)}, {v(t0)}, 4, {v(vB)}')
    A(f'v_lshl_add_u32 {v(vB)}, {v(t0)}, 2, {v(vB)}')
    A('s_lshl_b32 s50, s39, 7')
    A(f'buffer_load_dwordx4 v[12:15], {v(vA)}, {srdm}, s50 offen')
    for q in range(4):
        A(f'buffer_load_dword {v(16 + q)}, {v(vB)}, {srdm}, s50 offen offset:{8 * q}')
    A(f'v_mov_b32 {v(t0)}, -2')
    A('s_waitcnt vmcnt(0)')
    for r in range(12, 20):
        A(f'v_min_u32 {v(r)}, {v(r)}, {v(t0)}')
    A('s_lshl_b32 s50, s39, 10')
    A(f's_add_u32 s51, s50, {L.MEMX}')
    A(f's_add_u32 s50, s50, {L.MEMA}')
    A(f'buffer_store_dwordx4 v[12:15], {v(VLIN)}, {SRD}, s51 offen')
    A(f'buffer_store_dwordx4 v[16:19], {v(VLIN)}, {SRD}, s50 offen')


def emit_prep(A, cfg):
    A('s_load_dwordx16 s[80:95], s[0:1], 8')
    A('s_load_dwordx4 s[96:99], s[0:1], 72')
    G.emit_common_regs(A)
    A('s_waitcnt lgkmcnt(0)')
    A('s_cmp_ge_u32 s2, 128')
    A('s_cbranch_scc1 prep_misc')
    A('s_and_b32 s39, s2, 63')
    A('s_cmp_ge_u32 s2, 64')
    A('s_cbranch_scc1 prep_B')
    srd(A, 68, 82, 83, 448 * 8192)
    srd(A, 72, 84, 85, 448 * 8192)
    item_ab(A, 0)
    A('s_endpgm')
    A.label('prep_B')
    A.forget()
    srd(A, 68, 86, 87, 448 * 8192)
    srd(A, 72, 88, 89, 4096 * 896)
    item_ab(A, 1)
    A('s_endpgm')
    A.label('prep_misc')
    A.forget()
    srd(A, 68, 94, 95, 448 * 3584)
    srd(A, 72, 96, 97, 448 * 3584)
    srd(A, 76, 98, 99, 1792 * 896)
    srd(A, 84, 80, 81, 8 * 896)
    A('s_sub_u32 s43, s2, 128')
    A('s_lshl_b32 s43, s43, 2')
    A('s_add_u32 s43, s43, s13')
    A('s_cmp_ge_u32 s43, 256')
    A('s_cbranch_scc1 prep_noln')
    A('s_mov_b32 s39, s43')
    wave_ln(A, 's[56:59]')
    A('s_branch prep_gu')
    A.label('prep_noln')
    A.forget()
    A('s_sub_u32 s39, s43, 256')
    A('s_cmp_ge_u32 s39, 224')
    A('s_cbranch_scc1 prep_nowd')
    wave_pack(A, 'WD', 7)
    A('s_branch prep_gu')
    A.label('prep_nowd')
    A.forget()
    A('s_sub_u32 s39, s39, 224')
    A('s_cmp_ge_u32 s39, 7')
    A('s_cbranch_scc1 prep_gu')
    wave_mem0(A, 's[84:87]')
    A.label('prep_gu')
    A.forget()
    A('s_waitcnt vmcnt(0) lgkmcnt(0)')
    A('s_cmp_ge_u32 s43, 448')
    A('s_cbranch_scc1 prep_fill')
    A('s_mov_b32 s39, s43')
    wave_pack(A, 'GU', 7)
    A.label('prep_fill')
    A.forget()
    A('s_waitcnt vmcnt(0) lgkmcnt(0)')
    A('s_mov_b32 s39, s43')
    wave_fill(A, L.MEMA + 8192, 504, 512, -1)
    wave_fill(A, L.MEMX + 8192, 504, 512, -1)
    wave_fill(A, L.PBUF, 1024, 512, -1)
    wave_fill(A, L.YM, 64 * 112, 512, -1)
    wave_fill(A, L.FLAGS, 64, 512, 0)
```

```python
import gemm as G
import items as I
import prep
import chain
INFO = {'prep': (256, 114688), 'punit': (256, 40960), 'pvunit': (448, 16384), 'chain': (256, 151552)}
def emit(A, st, cfg):
    if st == 'prep':
        prep.emit_prep(A, cfg)
    elif st == 'punit':
        G.emit_common_regs(A)
        A('s_mov_b32 s39, s2')
        I.item_punit(A)
    elif st == 'pvunit':
        G.emit_common_regs(A)
        A('s_mov_b32 s39, s2')
        I.item_pvunit(A)
    elif st == 'chain':
        A('s_getreg_b32 s12, hwreg(HW_REG_XCC_ID)')
        A('s_and_b32 s12, s12, 15')
        A('v_mov_b32 v3, 0x24f00')
        A('s_cmp_lg_u32 s13, 0')
        A('s_cbranch_scc1 L_noticket')
        A('s_mov_b64 exec, 1')
        A('s_lshl_b32 s14, s12, 2')
        A('v_mov_b32 v1, s14')
        A('v_mov_b32 v2, 1')
        A('global_atomic_add v2, v1, v2, s[4:5] sc0')
        A('s_waitcnt vmcnt(0)')
        A('ds_write_b32 v3, v2')
        A('s_waitcnt lgkmcnt(0)')
        A('s_mov_b64 exec, -1')
        A.label('L_noticket')
        A('s_barrier')
        A('ds_read_b32 v2, v3')
        A('s_waitcnt lgkmcnt(0)')
        A('v_readfirstlane_b32 s14, v2')
        A('s_cmp_lg_u32 s12, 0')
        A('s_cbranch_scc1 L_bail')
        A('s_cmp_ge_u32 s14, 32')
        A('s_cbranch_scc1 L_bail')
        A('s_cmp_ge_u32 s14, 30')
        A('s_cbranch_scc1 L_roleC')
        A('s_cmp_ge_u32 s14, 16')
        A('s_cbranch_scc1 L_roleB')
        chain.emit_A(A, cfg)
        A.label('L_roleB')
        A.forget()
        A('s_sub_u32 s14, s14, 16')
        chain.emit_B(A, cfg)
        A.label('L_roleC')
        A.forget()
        A('s_sub_u32 s14, s14, 30')
        chain.emit_C(A, cfg)
        A.label('L_bail')
```

```python
import sys
from asmdsl import Asm, v, a, s
import layout as L
import gemm as G
import items as I

KD = '''.amdhsa_kernel {name}
  .amdhsa_next_free_vgpr 512
  .amdhsa_next_free_sgpr 102
  .amdhsa_accum_offset 256
  .amdhsa_group_segment_fixed_size 0
  .amdhsa_kernarg_size 112
  .amdhsa_user_sgpr_count 2
  .amdhsa_user_sgpr_kernarg_segment_ptr 1
  .amdhsa_system_sgpr_workgroup_id_x 1
.end_amdhsa_kernel'''


def srd(A, d, lo, hi, nbytes):
    A(f's_mov_b32 s{d}, s{lo}')
    A(f's_and_b32 s{d + 1}, s{hi}, 0xffff')
    A(f's_mov_b32 s{d + 2}, {nbytes}')
    A(f's_mov_b32 s{d + 3}, 0x20000')


def entry(A, name, ngrid):
    A.raw(f'.globl {name}\n.p2align 8\n.type {name},@function')
    A.label(name)
    A.forget()
    A(f's_cmp_ge_u32 s2, {ngrid}')
    A(f's_cbranch_scc1 {name}_end')
    A('s_load_dwordx4 s[4:7], s[0:1], 96')
    A('s_load_dwordx2 s[64:65], s[0:1], 0')
    A('s_load_dwordx2 s[66:67], s[0:1], 88')
    A('v_lshrrev_b32 v1, 6, v0')
    A('v_readfirstlane_b32 s13, v1')
    A('s_mov_b32 s33, 0')
    A('s_waitcnt lgkmcnt(0)')
    srd(A, 8, 6, 7, L.WS_BYTES)
    srd(A, 56, 64, 65, 2048 * 896)
    srd(A, 60, 66, 67, 2048 * 896)


def leave(A, name):
    A.label(name + '_end')
    A('s_endpgm')


def build(stages, cfg):
    A = Asm()
    info = {'gemm1': (640, 86016), 'gemm2': (32, 86016)}
    import stages_extra
    info.update(stages_extra.INFO)
    for st in stages:
        g, lds = info[st]
        A.raw(f'; @launch kernel={st}_kernel grid=({g},1,1) block=(256,1,1) lds={lds}')
    A.raw('.amdgcn_target "amdgcn-amd-amdhsa--gfx950"\n.text')
    for st in stages:
        name = st + '_kernel'
        entry(A, name, info[st][0])
        if st == 'gemm1':
            G.emit_common_regs(A)
            A('s_cmp_ge_u32 s2, 256')
            A('s_cbranch_scc1 g1_notY')
            A('s_mov_b32 s39, s2')
            I.item_gemm1(A, 'Y')
            A('s_endpgm')
            A.label('g1_notY')
            A.forget()
            A('s_cmp_ge_u32 s2, 512')
            A('s_cbranch_scc1 g1_GU')
            A('s_sub_u32 s39, s2, 256')
            I.item_gemm1(A, 'T')
            A('s_endpgm')
            A.label('g1_GU')
            A.forget()
            A('s_sub_u32 s39, s2, 512')
            I.item_gemm1(A, 'GU')
        elif st == 'gemm2':
            G.emit_common_regs(A)
            A('s_mov_b32 s39, s2')
            I.item_gemm2(A)
        else:
            stages_extra.emit(A, st, cfg)
        leave(A, name)
    A.raw('.section .rodata,"a"')
    for st in stages:
        A.raw('.p2align 6')
        A.raw(KD.format(name=st + '_kernel'))
    return A.text()


if __name__ == '__main__':
    cfg = {}
    for kv in sys.argv[3:]:
        k, val = kv.split('=')
        cfg[k] = int(val)
    open(sys.argv[1], 'w').write(build(sys.argv[2].split(','), cfg))
```

```python
import sys
from asmdsl import Asm, v, a, s
import layout as L
import gemm as G
import items as I

KD = '''.amdhsa_kernel {name}
  .amdhsa_next_free_vgpr 512
  .amdhsa_next_free_sgpr 102
  .amdhsa_accum_offset 256
  .amdhsa_group_segment_fixed_size 0
  .amdhsa_kernarg_size 112
  .amdhsa_user_sgpr_count 2
  .amdhsa_user_sgpr_kernarg_segment_ptr 1
  .amdhsa_system_sgpr_workgroup_id_x 1
.end_amdhsa_kernel'''


def srd(A, d, lo, hi, nbytes):
    A(f's_mov_b32 s{d}, s{lo}')
    A(f's_and_b32 s{d + 1}, s{hi}, 0xffff')
    A(f's_mov_b32 s{d + 2}, {nbytes}')
    A(f's_mov_b32 s{d + 3}, 0x20000')


def entry(A, name, ngrid):
    A.raw(f'.globl {name}\n.p2align 8\n.type {name},@function')
    A.label(name)
    A.forget()
    A(f's_cmp_ge_u32 s2, {ngrid}')
    A(f's_cbranch_scc1 {name}_end')
    A('s_load_dwordx4 s[4:7], s[0:1], 96')
    A('s_load_dwordx2 s[64:65], s[0:1], 0')
    A('s_load_dwordx2 s[66:67], s[0:1], 88')
    A('v_lshrrev_b32 v1, 6, v0')
    A('v_readfirstlane_b32 s13, v1')
    A('s_mov_b32 s33, 0')
    A('s_waitcnt lgkmcnt(0)')
    srd(A, 8, 6, 7, L.WS_BYTES)
    srd(A, 56, 64, 65, 2048 * 896)
    srd(A, 60, 66, 67, 2048 * 896)


def leave(A, name):
    A.label(name + '_end')
    A('s_endpgm')


def build(stages, cfg):
    A = Asm()
    info = {'gemm1': (640, 86016), 'gemm2': (32, 86016)}
    import stages_extra
    info.update(stages_extra.INFO)
    for st in stages:
        g, lds = info[st]
        A.raw(f'; @launch kernel={st}_kernel grid=({g},1,1) block=(256,1,1) lds={lds}')
    A.raw('.amdgcn_target "amdgcn-amd-amdhsa--gfx950"\n.text')
    for st in stages:
        name = st + '_kernel'
        entry(A, name, info[st][0])
        if st == 'gemm1':
            G.emit_common_regs(A)
            fl = (' sc1' if cfg.get('ldsc1') else '', ' sc1' if cfg.get('stsc1') else '')
            if cfg.get('xmap'):
                pass
            else:
                A('s_and_b32 s38, s2, 255')
                A('s_and_b32 s39, s38, 7')
                A('s_lshl_b32 s39, s39, 5')
                A('s_lshr_b32 s38, s38, 3')
                A('s_add_u32 s38, s38, s39')
                A('s_cmp_ge_u32 s2, 512')
                A('s_cbranch_scc1 g1_keep')
                A('s_and_b32 s2, s2, 256')
                A('s_add_u32 s2, s2, s38')
                A.label('g1_keep')
            A('s_cmp_ge_u32 s2, 256')
            A('s_cbranch_scc1 g1_notY')
            A('s_mov_b32 s39, s2')
            I.item_gemm1(A, 'Y', *fl)
            A('s_endpgm')
            A.label('g1_notY')
            A.forget()
            A('s_cmp_ge_u32 s2, 512')
            A('s_cbranch_scc1 g1_GU')
            A('s_sub_u32 s39, s2, 256')
            I.item_gemm1(A, 'T', *fl)
            A('s_endpgm')
            A.label('g1_GU')
            A.forget()
            A('s_sub_u32 s39, s2, 512')
            I.item_gemm1(A, 'GU', *fl)
        elif st == 'gemm2':
            G.emit_common_regs(A)
            A('s_mov_b32 s39, s2')
            I.item_gemm2(A)
        else:
            stages_extra.emit(A, st, cfg)
        leave(A, name)
    A.raw('.section .rodata,"a"')
    for st in stages:
        A.raw('.p2align 6')
        A.raw(KD.format(name=st + '_kernel'))
    return A.text()


if __name__ == '__main__':
    cfg = {}
    for kv in sys.argv[3:]:
        k, val = kv.split('=')
        cfg[k] = int(val)
    open(sys.argv[1], 'w').write(build(sys.argv[2].split(','), cfg))
```

```python
from asmdsl import v, a, s
import layout as L

SRD = 's[8:11]'
NSTEP = 63


def stamp(A, cfg, slot):
    if cfg.get('stamps'):
        A(f's_memtime s[{40 + 2 * slot}:{41 + 2 * slot}]')


def rstamp(A, cfg, slot):
    if cfg.get('stamps'):
        A(f's_memrealtime s[{40 + 2 * slot}:{41 + 2 * slot}]')


def stamp_flush(A, cfg, nslots, base_sreg, vt):
    if not cfg.get('stamps'):
        return
    A('s_waitcnt lgkmcnt(0)')
    for k in range(nslots):
        A(f'v_mov_b32 {v(vt)}, s{40 + 2 * k}')
        A(f'v_mov_b32 {v(vt + 1)}, 0')
        A(f'buffer_store_dword {v(vt)}, {v(vt + 1)}, {SRD}, s{base_sreg} offen offset:{4 * k}')
    A(f's_add_u32 s{base_sreg}, s{base_sreg}, 64')


def guard(A):
    A('s_add_u32 s33, s33, 1')
    A('s_cmp_gt_u32 s33, 0x200000')
    A('s_cbranch_scc1 L_bail')


def tl(A, cfg, idx_sreg_or_int, slot, vt, base=0):
    if not cfg.get('tl'):
        return
    A('s_memrealtime s[100:101]')
    A('s_waitcnt lgkmcnt(0)')
    A(f'v_mov_b32 {v(vt)}, s100')
    A(f'v_mov_b32 {v(vt + 1)}, 0')
    if isinstance(idx_sreg_or_int, int):
        A(f's_mov_b32 s101, {L.STAMP + base + idx_sreg_or_int * 16}')
    else:
        A(f's_lshl_b32 s101, {idx_sreg_or_int}, 4')
        A(f's_add_u32 s101, s101, {L.STAMP + base}')
    A(f'buffer_store_dword {v(vt)}, {v(vt + 1)}, {SRD}, s101 offen offset:{slot * 4}')


def flag_wait(A, first, n, vt, sleep=8):
    A(f'v_and_b32 {v(vt)}, 63, v0')
    A(f'v_min_u32 {v(vt)}, {n - 1}, {v(vt)}')
    A(f'v_lshlrev_b32 {v(vt)}, 2, {v(vt)}')
    if isinstance(first, int):
        A(f's_mov_b32 s38, {L.FLAGS + 4 * first}')
    else:
        A(f's_lshl_b32 s38, {first}, 2')
        A(f's_add_u32 s38, s38, {L.FLAGS}')
    lab, ok = A.newlabel('FW'), A.newlabel('FWok')
    A.label(lab, keep=True)
    guard(A)
    A(f'buffer_load_dword {v(vt + 1)}, {v(vt)}, {SRD}, s38 offen sc1')
    A('s_waitcnt vmcnt(0)')
    A(f'v_cmp_eq_u32 vcc, 0, {v(vt + 1)}')
    A(f's_cbranch_vccz {ok}')
    A(f's_sleep {sleep}')
    A(f's_branch {lab}')
    A.label(ok, keep=True)


def start_gate(A, cfg, vt):
    if not cfg.get('fused'):
        A('s_mov_b32 s12, 0')
        return
    lab, ok = A.newlabel('SG'), A.newlabel('SGok')
    A(f'v_mov_b32 {v(vt)}, 0')
    A.label(lab, keep=True)
    guard(A)
    A(f'global_load_dwordx2 {v(vt + 2, 2)}, {v(vt)}, s[4:5] offset:8 sc1')
    A('s_waitcnt vmcnt(0)')
    A(f'v_readfirstlane_b32 s38, {v(vt + 3)}')
    A(f'v_readfirstlane_b32 s12, {v(vt + 2)}')
    A('s_cmp_ge_u32 s38, 32')
    A(f's_cbranch_scc1 {ok}')
    A('s_sleep 8')
    A(f's_branch {lab}')
    A.label(ok, keep=True)
    A('s_bcnt1_i32_b32 s12, s12')
    A('s_cmp_lg_u32 s12, 1')
    A('s_cselect_b32 s12, 1, 0')
    flag_wait(A, 1408, 64, vt)


def mid_gate(A, cfg, vt):
    if not cfg.get('fused'):
        return
    for step, ranges in ((3, ((32, 64), (96, 32))), (26, ((128, 64), (192, 64)))):
        skip = A.newlabel('MG')
        A(f's_cmp_lg_u32 s15, {step}')
        A(f's_cbranch_scc1 {skip}')
        for f, n in ranges:
            flag_wait(A, f, n, vt)
        A.label(skip, keep=True)


def dual_store(A, text):
    slow, done = A.newlabel('DS'), A.newlabel('DSd')
    A('s_cmp_lg_u32 s12, 0')
    A(f's_cbranch_scc1 {slow}')
    A(text)
    A.label(done, keep=True)
    A.deferred.append((slow, text + ' sc1', done))


def flush_deferred(A):
    for slow, text, done in A.deferred:
        A.label(slow)
        A.raw('    ' + text)
        A.raw(f'    s_branch {done}')
    A.deferred = []


def lane_fields(A, vl):
    A(f'v_and_b32 {v(vl)}, 63, v0')


def emit_koffs(A):
    A('s_lshl_b32 s23, s13, 1')
    for k in range(7):
        A(f's_add_u32 s{16 + k}, s23, {k}')
        A(f's_cmp_ge_u32 s{16 + k}, 7')
        A(f's_cselect_b32 s24, 7, 0')
        A(f's_sub_u32 s{16 + k}, s{16 + k}, s24')
        A(f's_lshl_b32 s{16 + k}, s{16 + k}, 10')


def warm_vm(A, n, vw, cfg):
    if cfg.get('nowarm'):
        A(f's_waitcnt vmcnt({n})')
        return
    lab = A.newlabel('W')
    A.label(lab, keep=True)
    A(f'v_mov_b32 {v(vw)}, {v(vw)}')
    A(f's_getreg_b32 s38, hwreg(HW_REG_IB_STS, 0, 4)')
    A(f's_cmp_gt_u32 s38, {n}')
    A(f'v_mov_b32 {v(vw)}, {v(vw)}')
    A(f's_cbranch_scc1 {lab}')
    A(f's_waitcnt vmcnt({n})')


def keepalive(A, vw, n, cfg):
    if cfg.get('nowarm'):
        return
    for _ in range(n):
        A(f'v_mov_b32 {v(vw)}, {v(vw)}')


def warm_mfma(A, base, cfg):
    if cfg.get('nowarm'):
        return
    A(f'v_mfma_f32_32x32x16_bf16 {v(base, 16)}, {v(base + 16, 4)}, {v(base + 16, 4)}, {v(base, 16)}')


def check_regs(A, tmp, regs, autowait=True):
    E = A.auto if autowait else A
    E(f'v_max3_u32 {v(tmp)}, {v(regs[0])}, {v(regs[1])}, {v(regs[2])}')
    i = 3
    while i + 1 < len(regs):
        E(f'v_max3_u32 {v(tmp)}, {v(tmp)}, {v(regs[i])}, {v(regs[i + 1])}')
        i += 2
    if i < len(regs):
        E(f'v_max_u32 {v(tmp)}, {v(tmp)}, {v(regs[i])}')
    A(f'v_cmp_eq_u32 vcc, -1, {v(tmp)}')


def sparse_idx(A, vIDX, vL, t2, t3):
    A(f'v_and_b32 {v(t2)}, 8, {v(vL)}')
    A(f'v_cmp_ne_u32 vcc, 0, {v(t2)}')
    A(f'v_mov_b32 {v(t2)}, 0x4444')
    A(f'v_mov_b32 {v(t3)}, 0xeeee')
    A(f'v_cndmask_b32 {v(vIDX)}, {v(t2)}, {v(t3)}, vcc')


def emit_A(A, cfg):
    W5 = 0x0000
    MIMG = 0xE000
    TIMG = 0x10000
    SIMG = 0x14800
    QS = 144
    vL, vIDX, vMA, vMKa, vMKb, vMK3, vW5, vXK, vXK3, vTW, vTW6, vTR, vTR3, vSW, vSR, vPS, vPF = range(1, 18)
    vM = lambda k: 18 + k
    vSW2 = 25
    vT0 = 26
    M = lambda k: 32 + 4 * k
    ACC = lambda n: 60 + 4 * n
    WS5 = lambda b: 88 + 8 * b
    XK = lambda q, t: 112 + 8 * q + 4 * t
    XK3 = lambda t: 136 + 2 * t
    PSET = lambda r: 140 + 8 * r
    MK = lambda q: 140 + 4 * q
    TB = lambda q: (ACC(2 * q) if q < 3 else ACC(6) + 2)
    SACC = lambda t: 156 + 4 * t
    vDUM = 168
    LT = 1
    PORD = [1, 2, 0]
    regtiles = [0, 2, 3, 4, 5, 6]

    def W(n, k):
        i = regtiles.index(n) * 7 + k
        return a(8 * i, 8) if i < 32 else v(176 + 8 * (i - 32), 8)

    def Whalf(n, k, eh):
        i = regtiles.index(n) * 7 + k
        return a(8 * i + 4 * eh, 4) if i < 32 else v(176 + 8 * (i - 32) + 4 * eh, 4)

    t0, t1, t2, t3 = vT0, vT0 + 1, vT0 + 2, vT0 + 3
    tl(A, cfg, 's14', 0, 30, 0x8000)
    lane_fields(A, vL)
    emit_koffs(A)
    A(f'v_and_b32 {v(t0)}, 15, {v(vL)}')
    A(f'v_lshrrev_b32 {v(t1)}, 4, {v(vL)}')
    sparse_idx(A, vIDX, vL, t2, t3)
    A(f'v_lshlrev_b32 {v(t2)}, 9, {v(t1)}')
    A(f'v_lshl_add_u32 {v(vPF)}, {v(t0)}, 4, {v(t2)}')
    A(f's_mul_i32 s25, s14, {14 * 28672}')
    A(f's_add_u32 s25, s25, {L.WF + L.NB_A * 28672}')
    A(f's_mul_i32 s26, s13, 7')
    A(f's_mul_i32 s28, s13, 14336')
    cnt = 0
    for n in range(7):
        A(f's_add_u32 s23, s26, {n}')
        A(f's_lshr_b32 s24, s23, 1')
        A(f's_mul_i32 s24, s24, 28672')
        A(f's_and_b32 s23, s23, 1')
        A(f's_lshl_b32 s23, s23, 8')
        A(f's_add_u32 s27, s25, s24')
        A(f's_add_u32 s27, s27, s23')
        for k in range(7):
            A(f's_lshl_b32 s23, s{16 + k}, 2')
            A(f's_add_u32 s23, s23, s27')
            for eh in range(2):
                if n == LT:
                    A(f's_add_u32 s24, s28, {W5 + (k * 2 + eh) * 1024}')
                    A(f's_mov_b32 m0, s24')
                    if eh:
                        A(f's_add_u32 s23, s23, 2048')
                    A(f'buffer_load_dwordx4 {v(vPF)}, {SRD}, s23 offen lds')
                else:
                    A(f'buffer_load_dwordx4 {Whalf(n, k, eh)}, {v(vPF)}, {SRD}, s23 offen offset:{2048 * eh}')
                cnt += 1
                if cnt % 16 == 0:
                    A('s_waitcnt vmcnt(40)')
    A(f'v_lshlrev_b32 {v(vMA)}, 4, {v(vL)}')
    A(f'v_add_u32 {v(vW5)}, s28, {v(vMA)}')
    for k in range(7):
        A(f's_add_u32 s23, s{16 + k}, {MIMG}')
        A(f'v_add_u32 {v(vM(k))}, s23, {v(vMA)}')
    A(f'v_add_u32 {v(vMA)}, {L.MEMA}, {v(vMA)}')
    A(f'v_and_b32 {v(t2)}, 7, {v(vL)}')
    A(f'v_lshlrev_b32 {v(t2)}, 4, {v(t2)}')
    A(f's_mul_i32 s23, s13, {7 * 256}')
    A(f's_add_u32 s23, s23, {MIMG}')
    A(f'v_lshrrev_b32 {v(t3)}, 1, {v(t1)}')
    A(f'v_lshl_add_u32 {v(vMKa)}, {v(t3)}, 8, {v(t2)}')
    A(f'v_and_b32 {v(t3)}, 1, {v(t1)}')
    A(f'v_lshl_add_u32 {v(vMKa)}, {v(t3)}, 3, {v(vMKa)}')
    A(f'v_add_u32 {v(vMKa)}, s23, {v(vMKa)}')
    A(f'v_add_u32 {v(vMKb)}, 1024, {v(vMKa)}')
    A(f'v_lshl_add_u32 {v(vMK3)}, {v(t1)}, 2, {v(t2)}')
    A(f's_add_u32 s23, s23, {6 * 256}')
    A(f'v_add_u32 {v(vMK3)}, s23, {v(vMK3)}')
    A(f'v_and_b32 {v(t2)}, 6, {v(t0)}')
    A(f'v_lshlrev_b32 {v(t2)}, 1, {v(t2)}')
    A(f'v_lshrrev_b32 {v(t3)}, 3, {v(t0)}')
    A(f'v_lshl_add_u32 {v(t2)}, {v(t3)}, 1, {v(t2)}')
    A(f'v_and_b32 {v(t3)}, 1, {v(t0)}')
    A(f'v_add_u32 {v(t2)}, {v(t3)}, {v(t2)}')
    A(f'v_lshlrev_b32 {v(t2)}, 4, {v(t2)}')
    A(f'v_lshl_add_u32 {v(vXK)}, {v(t1)}, 9, {v(t2)}')
    A(f'v_lshrrev_b32 {v(t3)}, 1, {v(t1)}')
    A(f'v_lshl_add_u32 {v(vXK3)}, {v(t3)}, 9, {v(t2)}')
    A(f'v_and_b32 {v(t3)}, 1, {v(t1)}')
    A(f'v_lshl_add_u32 {v(vXK3)}, {v(t3)}, 3, {v(vXK3)}')
    A(f'v_add_u32 {v(vXK3)}, {6 * 1024}, {v(vXK3)}')
    A(f's_lshl_b32 s30, s13, 11')
    A(f's_mul_i32 s23, s13, 4352')
    A(f's_add_u32 s23, s23, {TIMG}')
    def plane(dst, src, tmp):
        A(f'v_lshlrev_b32 {v(dst)}, 10, {v(src)}')
        A(f'v_and_b32 {v(tmp)}, 1, {v(src)}')
        A(f'v_lshl_add_u32 {v(dst)}, {v(tmp)}, 5, {v(dst)}')
        A(f'v_lshrrev_b32 {v(tmp)}, 1, {v(src)}')
        A(f'v_lshl_add_u32 {v(dst)}, {v(tmp)}, 7, {v(dst)}')
    plane(t2, t1, t3)
    A(f'v_lshl_add_u32 {v(vTW)}, {v(t0)}, 3, {v(t2)}')
    A(f'v_add_u32 {v(vTW)}, s23, {v(vTW)}')
    A(f'v_and_b32 {v(vTR)}, 3, {v(vL)}')
    plane(t2, vTR, t3)
    A(f'v_bfe_u32 {v(t3)}, {v(vL)}, 2, 2')
    A(f'v_lshl_add_u32 {v(t2)}, {v(t3)}, 3, {v(t2)}')
    A(f'v_lshl_add_u32 {v(vTR)}, {v(t1)}, 6, {v(t2)}')
    A(f'v_add_u32 {v(vTR)}, s23, {v(vTR)}')
    A(f'v_lshl_add_u32 {v(vTR3)}, {v(t1)}, 5, {v(t2)}')
    A(f'v_add_u32 {v(vTR3)}, {96 * 8}, {v(vTR3)}')
    A(f'v_add_u32 {v(vTR3)}, s23, {v(vTR3)}')
    A(f's_add_u32 s23, s30, {SIMG}')
    A(f'v_lshrrev_b32 {v(t3)}, 3, {v(t0)}')
    A(f'v_lshl_add_u32 {v(t2)}, {v(t3)}, 2, {v(t1)}')
    A(f'v_mul_u32_u24 {v(t2)}, {QS}, {v(t2)}')
    A(f'v_and_b32 {v(vSW2)}, 7, {v(t0)}')
    A(f'v_lshl_add_u32 {v(vSW)}, {v(vSW2)}, 4, {v(t2)}')
    A(f'v_add_u32 {v(vSW)}, s23, {v(vSW)}')
    A(f'v_lshlrev_b32 {v(vSW2)}, 4, {v(vSW2)}')
    A(f'v_lshl_add_u32 {v(vSW2)}, {v(t3)}, 3, {v(vSW2)}')
    A(f'v_add_u32 {v(t2)}, 8, {v(t1)}')
    A(f'v_mul_u32_u24 {v(t2)}, {QS}, {v(t2)}')
    A(f'v_add3_u32 {v(vSW2)}, {v(vSW2)}, {v(t2)}, s23')
    A('s_mov_b32 s36, 0xff00ff00')
    A('s_mov_b32 s37, 0xff00ff00')
    A(f'v_mov_b32 {v(t3)}, 12')
    A(f'v_cmp_gt_u32 vcc, 10, {v(t0)}')
    A(f'v_cndmask_b32 {v(t2)}, {v(t3)}, {v(t0)}, vcc')
    A(f'v_mul_u32_u24 {v(t2)}, {QS}, {v(t2)}')
    A(f's_lshl_b32 s23, s13, 2')
    A(f'v_add_u32 {v(t3)}, s23, {v(t1)}')
    A(f'v_and_b32 {v(t3)}, 7, {v(t3)}')
    A(f'v_lshl_add_u32 {v(vSR)}, {v(t3)}, 4, {v(t2)}')
    A(f'v_add_u32 {v(vSR)}, {SIMG}, {v(vSR)}')
    A(f'v_lshrrev_b32 {v(t2)}, 1, {v(t0)}')
    A(f'v_lshlrev_b32 {v(t2)}, 7, {v(t2)}')
    A(f'v_lshl_add_u32 {v(t2)}, {v(t3)}, 4, {v(t2)}')
    A(f'v_and_b32 {v(t3)}, 1, {v(t0)}')
    A(f'v_lshl_add_u32 {v(t2)}, {v(t3)}, 3, {v(t2)}')
    A(f'v_mov_b32 {v(t3)}, 0x40000000')
    A(f'v_cndmask_b32 {v(vPS)}, {v(t3)}, {v(t2)}, vcc')
    A(f'v_mov_b32 {v(t2)}, 0xf149f2ca')
    A(f'v_and_b32 {v(t3)}, 31, {v(vL)}')
    A(f'v_lshlrev_b32 {v(t3)}, 2, {v(t3)}')
    A(f's_add_u32 s23, s30, {SIMG + 12 * QS}')
    A(f'v_add_u32 {v(t3)}, s23, {v(t3)}')
    A(f'ds_write_b32 {v(t3)}, {v(t2)}')
    A('s_waitcnt vmcnt(0)')
    A(f'v_lshlrev_b32 {v(vPF)}, 7, {v(vL)}')
    A(f's_mul_i32 s24, s14, 640')
    A(f's_add_u32 s24, s24, {L.PBUF}')
    A(f's_mul_i32 s25, s13, 7168')
    A(f's_add_u32 s25, s25, {L.XF}')
    NT = cfg.get('ntouch', 2)
    A(f's_mul_i32 s26, s14, {NT}')
    A(f's_add_u32 s26, s26, s13')
    A(f's_min_u32 s26, s26, 55')
    A(f's_lshl_b32 s26, s26, 13')
    A(f's_add_u32 s26, s26, {L.YF + cfg.get("pfdist", 2) * 16 * 28672}')
    A(f's_cmp_ge_u32 s13, {NT}')
    A(f's_cselect_b32 s23, 0x40000000, 0')
    A(f'v_add_u32 {v(vPF)}, s23, {v(vPF)}')
    A(f's_mov_b32 s15, 0')
    if cfg.get('stamps'):
        A(f's_lshl_b32 s32, s14, 2')
        A(f's_add_u32 s32, s32, s13')
        A(f's_lshl_b32 s32, s32, 12')
        A(f's_add_u32 s32, s32, {L.STAMP}')

    def xload():
        for q in range(3):
            if q == 2:
                A(f's_add_u32 s23, s25, 4096')
            for tt in range(2):
                if q < 2:
                    A(f'buffer_load_dwordx4 {v(XK(q, tt), 4)}, {v(vXK)}, {SRD}, s25 offen offset:{q * 2048 + tt * 256} sc1')
                else:
                    A(f'buffer_load_dwordx4 {v(XK(q, tt), 4)}, {v(vXK)}, {SRD}, s23 offen offset:{tt * 256} sc1')
        for tt in range(2):
            A(f'buffer_load_dwordx2 {v(XK3(tt), 2)}, {v(vXK3)}, {SRD}, s25 offen offset:{tt * 256} sc1')
        A(f's_add_u32 s25, s25, 28672')

    xload()
    A('s_waitcnt vmcnt(0) lgkmcnt(0)')
    tl(A, cfg, 's14', 1, vT0 + 4, 0x8000)
    start_gate(A, cfg, vT0)
    tl(A, cfg, 's14', 2, vT0 + 4, 0x8000)
    A('s_barrier')

    top = A.newlabel('A_top')
    poll = A.newlabel('A_poll')
    var1 = A.newlabel('A_var1')
    common = A.newlabel('A_common')
    nxt = A.newlabel('A_next')
    A.label(top)
    A.forget()
    A('s_nop 7')
    for r in range(12):
        A(f'v_mov_b32 {v(SACC(0) + r)}, 0')
    for r in range(28):
        A(f'v_mov_b32 {v(ACC(0) + r)}, 0')

    def w5read(k):
        for eh in range(2):
            A(f'ds_read_b128 {v(WS5(k % 3) + 4 * eh, 4)}, {v(vW5)} offset:{(k * 2 + eh) * 1024}')
    for k in range(3):
        w5read(k)
    A('s_waitcnt vmcnt(0) lgkmcnt(0)')
    if cfg.get('asleep', 0):
        A(f's_sleep {cfg["asleep"]}')

    def pissue(r):
        for k in range(2):
            A(f'buffer_load_dwordx4 {v(PSET(r) + 4 * k, 4)}, {v(vMA)}, {SRD}, s{16 + k} offen sc1')
    var0 = A.newlabel('A_var0')

    def quick(r):
        keepalive(A, vDUM + 1, cfg.get('kap', 0), cfg)
        check_regs(A, t0, [PSET(r) + i for i in range(8)])
    pissue(0)
    keepalive(A, vDUM + 1, cfg.get('pgap', 28), {})
    A.label(poll, keep=True)
    guard(A)
    pissue(1)
    quick(0)
    A(f's_cbranch_vccz {var0}')
    pissue(0)
    quick(1)
    A(f's_cbranch_vccz {var1}')
    A(f's_branch {poll}')

    E6 = cfg.get('early6', 2)
    BPOS = cfg.get('bpos', 3)
    tiles01 = [1, 0, 2, 3, 4, 5] + ([6] if E6 else [])

    def mf(n, k, mreg):
        wreg = v(WS5(k % 3), 8) if n == LT else W(n, k)
        return f'v_smfmac_f32_16x16x64_bf16 {v(ACC(n), 4)}, {v(mreg, 4)}, {wreg}, {v(vIDX)}'

    def variant(r):
        A.vm = [set(('v', PSET(1 - r) + i) for i in range(4)), set(('v', PSET(1 - r) + 4 + i) for i in range(4))]
        A.lg = []
        A.smem_out = []
        stamp(A, cfg, 0)
        seq = [(n, k) for k in range(2) for n in tiles01]
        rd = [k for k in range(2, 7)] + ([] if E6 else [0, 1])
        Q = PSET(r)
        full = []
        w5q = []
        for i, (n, k) in enumerate(seq):
            A(mf(n, k, PSET(r) + 4 * k))
            if i < 2:
                A(f'ds_write_b128 {v(vM(i))}, {v(PSET(r) + 4 * i, 4)}')
            if full:
                A(full.pop(0))
            if i == BPOS - 1:
                stamp(A, cfg, 5)
                A('s_waitcnt lgkmcnt(0)')
                A('s_barrier')
                stamp(A, cfg, 6)
            if n == LT:
                w5q += [(k + 3, 0), (k + 3, 1)]
            if i >= BPOS - 1:
                if rd:
                    kk = rd.pop(0)
                    A(f'ds_read_b128 {v(M(kk), 4)}, {v(vM(kk))}')
                elif w5q:
                    kk, eh = w5q.pop(0)
                    A(f'ds_read_b128 {v(WS5(kk % 3) + 4 * eh, 4)}, {v(vW5)} offset:{(kk * 2 + eh) * 1024}')
        assert not rd
        for kk, eh in w5q:
            A(f'ds_read_b128 {v(WS5(kk % 3) + 4 * eh, 4)}, {v(vW5)} offset:{(kk * 2 + eh) * 1024}')

    A.label(var1)
    variant(1)
    A(f's_branch {common}')
    A.label(var0)
    variant(0)
    A.label(common, keep=True)
    A.vm = [set(('v', PSET(0) + i) for i in range(16))]

    seq = []
    for n in (2, 3, 4, 5, 0, 1, 6):
        for k in range(E6 if n == 6 else 2, 7):
            seq.append((n, k))
    for k, pos in ((2, 0), (3, 5)):
        seq.remove((LT, k))
        seq.insert(pos, (LT, k))
    NS = len(seq)
    memq = []
    memq.append((0, f'buffer_load_dword {v(vDUM)}, {v(vPF)}, {SRD}, s26 offen'))
    for i, (n, k) in enumerate(seq):
        if n == LT and k + 3 < 7:
            for eh in range(2):
                memq.append((i, f'ds_read_b128 {v(WS5((k + 3) % 3) + 4 * eh, 4)}, {v(vW5)} offset:{((k + 3) * 2 + eh) * 1024}'))
    mkstart = cfg.get('mkpos', 3)
    memq.append((mkstart, 's_waitcnt vmcnt(1)'))
    for q in range(3):
        ad = v(vMKa) if q < 2 else v(vMKb)
        o = 128 * q if q < 2 else 0
        memq.append((mkstart, f'ds_read2_b32 {v(MK(q), 2)}, {ad} offset0:{o} offset1:{o + 32}'))
        memq.append((mkstart, f'ds_read2_b32 {v(MK(q) + 2, 2)}, {ad} offset0:{o + 1} offset1:{o + 33}'))
    memq.append((mkstart, f'ds_read2_b32 {v(MK(3), 2)}, {v(vMK3)} offset0:0 offset1:32'))
    memq.sort(key=lambda x: x[0])
    done = {}
    for i, (n, k) in enumerate(seq):
        done[n] = i
    post = []

    def tpost(n):
        C = ACC(n)
        ops = [f'v_cvt_pk_bf16_f32 {v(C)}, {v(C)}, {v(C + 1)}', f'v_cvt_pk_bf16_f32 {v(C + 1)}, {v(C + 2)}, {v(C + 3)}',
               f'ds_write_b64 {v(vTW)}, {v(C, 2)} offset:{128 * n}']
        if n == 6:
            ops += [f'ds_read_b64_tr_b16 {v(TB(3), 2)}, {v(vTR3)}']
        elif n & 1:
            p = n >> 1
            ops += [f'ds_read_b64_tr_b16 {v(TB(p), 2)}, {v(vTR)} offset:{256 * p}',
                    f'ds_read_b64_tr_b16 {v(TB(p) + 2, 2)}, {v(vTR)} offset:{256 * p + 32}']
        return ops
    for n in (2, 3, 4, 5, 0, 1):
        post.append((done[n] + cfg.get('pdelay', 3), tpost(n)))
    smf = []
    for p in PORD:
        for t in range(3):
            key = v(XK(p, t), 4) if t < 2 else v(MK(p), 4)
            smf.append(f'v_mfma_f32_16x16x32_bf16 {v(SACC(t), 4)}, {key}, {v(TB(p), 4)}, {v(SACC(t), 4)}')
    NEARLY = cfg.get('searly', 2)
    queue = []
    A.mfma_states = cfg.get('mfstates', 1)
    for i, (n, k) in enumerate(seq):
        if i in (0, 1, 10, 20, 30):
            stamp(A, cfg, 7 + (0, 1, 10, 20, 30).index(i))
        if i == NS - 3:
            for _ in range(NEARLY):
                A.auto(smf.pop(0))
        A.auto(mf(n, k, M(k)))
        for st, ops in post:
            if st == i:
                queue += ops
        nm = 0
        if queue and not queue[0].startswith('v_'):
            A(queue.pop(0))
            nm = 1
        while memq and memq[0][0] <= i and nm < 1:
            o = memq.pop(0)[1]
            A(o)
            if not o.startswith('s_'):
                nm += 1
        if queue and queue[0].startswith('v_') and A.pad_needed(queue[0]) <= cfg.get('maxpad', 0):
            A(queue.pop(0))
    assert not memq
    tailops = queue
    stamp(A, cfg, 1)
    for o in tailops:
        A(o)
    A.auto(smf.pop(0))
    A.auto(smf.pop(0))
    for o in tpost(6):
        A(o)
    stamp(A, cfg, 13)
    for m_ in smf:
        A.auto(m_)
    for t in range(3):
        key = v(XK3(t), 2) if t < 2 else v(MK(3), 2)
        A.auto(f'v_mfma_f32_16x16x16_bf16 {v(SACC(t), 4)}, {key}, {v(TB(3), 2)}, {v(SACC(t), 4)}')
    stamp(A, cfg, 12)
    for r in range(4):
        A(f'v_add_f32_dpp {v(SACC(0) + r)}, {v(SACC(0) + r)}, {v(SACC(0) + r)} row_ror:8 row_mask:0xf bank_mask:0x3')
    for r in range(4):
        A(f'v_add_f32_dpp {v(SACC(0) + r)}, {v(SACC(1) + r)}, {v(SACC(1) + r)} row_ror:8 row_mask:0xf bank_mask:0xc')
    A(f'ds_write_b128 {v(vSW)}, {v(SACC(0), 4)}')
    for r in range(2):
        A(f'v_add_f32_dpp {v(SACC(2) + r)}, {v(SACC(2) + r)}, {v(SACC(2) + r)} row_ror:8 row_mask:0xf bank_mask:0x3')
    for r in range(2):
        A(f'v_add_f32_dpp {v(SACC(2) + r)}, {v(SACC(2) + 2 + r)}, {v(SACC(2) + 2 + r)} row_ror:8 row_mask:0xf bank_mask:0xc')
    A(f'ds_write_b64 {v(vSW2)}, {v(SACC(2), 2)}')
    A('s_cmp_ge_u32 s13, 2')
    keepalive(A, vDUM + 1, cfg.get('ka1', 6), cfg)
    warm_mfma(A, M(0), cfg)
    A('s_waitcnt lgkmcnt(0)')
    A('s_barrier')
    stamp(A, cfg, 2)
    A(f's_cbranch_scc1 {nxt}')
    R = lambda w: ACC(0) + 4 * w
    for w in range(4):
        A(f'ds_read_b128 {v(R(w), 4)}, {v(vSR)} offset:{w * 2048}')
        keepalive(A, vDUM + 1, 1, cfg)
    keepalive(A, vDUM + 1, cfg.get('ka2', 8), cfg)
    s0 = R(0)
    ml, m, ll, f, e0, cm2 = R(4), R(4) + 2, R(5), R(5) + 2, R(2), R(6)
    A(f'v_mov_b32 {v(cm2)}, -2')
    A.auto(f'v_pk_add_f32 {v(R(0), 2)}, {v(R(0), 2)}, {v(R(1), 2)}')
    A(f'v_pk_add_f32 {v(R(0) + 2, 2)}, {v(R(0) + 2, 2)}, {v(R(1) + 2, 2)}')
    A.auto(f'v_pk_add_f32 {v(R(2), 2)}, {v(R(2), 2)}, {v(R(3), 2)}')
    A(f'v_pk_add_f32 {v(R(2) + 2, 2)}, {v(R(2) + 2, 2)}, {v(R(3) + 2, 2)}')
    A(f'v_pk_add_f32 {v(R(0), 2)}, {v(R(0), 2)}, {v(R(2), 2)}')
    A(f'v_pk_add_f32 {v(R(0) + 2, 2)}, {v(R(0) + 2, 2)}, {v(R(2) + 2, 2)}')
    dpp = 'row_mask:0xf bank_mask:0xf'
    A(f'v_max3_f32 {v(ml)}, {v(s0)}, {v(s0 + 1)}, {v(s0 + 2)}')
    A(f'v_max_f32 {v(ml)}, {v(ml)}, {v(s0 + 3)}')
    A(f'v_sub_f32 {v(e0)}, {v(s0)}, {v(ml)}')
    A(f'v_sub_f32 {v(e0 + 1)}, {v(s0 + 1)}, {v(ml)}')
    A(f'v_max_f32_dpp {v(m)}, {v(ml)}, {v(ml)} row_ror:8 {dpp}')
    A(f'v_sub_f32 {v(e0 + 2)}, {v(s0 + 2)}, {v(ml)}')
    A(f'v_sub_f32 {v(e0 + 3)}, {v(s0 + 3)}, {v(ml)}')
    A(f'v_max_f32_dpp {v(m)}, {v(m)}, {v(m)} row_ror:4 {dpp}')
    A(f'v_exp_f32 {v(e0)}, {v(e0)}')
    A(f'v_exp_f32 {v(e0 + 1)}, {v(e0 + 1)}')
    A(f'v_max_f32_dpp {v(m)}, {v(m)}, {v(m)} row_ror:2 {dpp}')
    A(f'v_exp_f32 {v(e0 + 2)}, {v(e0 + 2)}')
    A(f'v_exp_f32 {v(e0 + 3)}, {v(e0 + 3)}')
    A(f'v_max_f32_dpp {v(m)}, {v(m)}, {v(m)} row_ror:1 {dpp}')
    A(f'v_pk_add_f32 {v(ll, 2)}, {v(e0, 2)}, {v(e0 + 2, 2)}')
    A(f'v_sub_f32 {v(f)}, {v(ml)}, {v(m)}')
    A(f'v_exp_f32 {v(f)}, {v(f)}')
    A(f'v_add_f32 {v(ll)}, {v(ll)}, {v(ll + 1)}')
    A(f'v_mul_f32 {v(ll)}, {v(ll)}, {v(f)}')
    A(f'v_mul_f32 {v(e0)}, {v(e0)}, {v(f)}')
    A(f'v_mul_f32 {v(e0 + 1)}, {v(e0 + 1)}, {v(f)}')
    A(f'v_add_f32_dpp {v(ll)}, {v(ll)}, {v(ll)} row_ror:8 {dpp}')
    A(f'v_mul_f32 {v(e0 + 2)}, {v(e0 + 2)}, {v(f)}')
    A(f'v_mul_f32 {v(e0 + 3)}, {v(e0 + 3)}, {v(f)}')
    A(f'v_add_f32_dpp {v(ll)}, {v(ll)}, {v(ll)} row_ror:4 {dpp}')
    A(f'v_add_f32_dpp {v(ll)}, {v(ll)}, {v(ll)} row_ror:2 {dpp}')
    A(f'v_add_f32_dpp {v(ll)}, {v(ll)}, {v(ll)} row_ror:1 {dpp}')
    A(f'v_rcp_f32 {v(ll)}, {v(ll)}')
    for i in range(4):
        A(f'v_mul_f32 {v(e0 + i)}, {v(e0 + i)}, {v(ll)}')
    A(f'v_cvt_pk_bf16_f32 {v(s0)}, {v(e0)}, {v(e0 + 1)}')
    A(f'v_cvt_pk_bf16_f32 {v(s0 + 1)}, {v(e0 + 2)}, {v(e0 + 3)}')
    A(f'v_min_u32 {v(s0)}, {v(s0)}, {v(cm2)}')
    A(f'v_min_u32 {v(s0 + 1)}, {v(s0 + 1)}, {v(cm2)}')
    dual_store(A, f'buffer_store_dwordx2 {v(s0, 2)}, {v(vPS)}, {SRD}, s24 offen')
    A.label(nxt, keep=True)
    stamp(A, cfg, 3)
    rstamp(A, cfg, 4)
    xload()
    mid_gate(A, cfg, vT0)
    tl(A, cfg, 's15', 0, vT0 + 4, 0x10000)
    stamp_flush(A, cfg, 14, 32, vT0 + 4)
    A(f'v_add_u32 {v(vMA)}, 8192, {v(vMA)}')
    A(f's_add_u32 s24, s24, 16384')
    A(f's_add_u32 s26, s26, {16 * 28672}')
    A(f's_add_u32 s15, s15, 1')
    A(f's_cmp_lt_u32 s15, {NSTEP}')
    A(f's_cbranch_scc1 {top}')
    A('s_endpgm')
    flush_deferred(A)


def emit_B(A, cfg):
    WL = 0x0000
    RIMG = 0x20000
    MIMG = 0x23000
    vL, vIDX, vMA, vWL, vYX, vP, vP2, vRW, vRR, vSA, vSK, vYM, vPF = range(1, 14)
    vT0 = 14
    M = lambda k: 20 + 4 * k
    YACC = lambda hh, t: 48 + 4 * (hh * 2 + t)
    YX = lambda k, t: 80 + 8 * (k * 2 + t)
    YB = lambda t: 112 + 4 * t
    M2 = 120
    YBN = lambda t: 180 + 4 * t
    OACC = lambda t: 128 + 4 * t
    ST = lambda b: 136 + 8 * b
    P = lambda r, k: 20 + 12 * r + 4 * k
    vM = lambda k: 168 + k
    vDUM = 176

    def W(ht, k):
        i = ht * 5 + k
        return a(8 * i, 8) if i < 32 else v(192 + 8 * (i - 32), 8)

    def Whalf(ht, k, eh):
        i = ht * 5 + k
        return a(8 * i + 4 * eh, 4) if i < 32 else v(192 + 8 * (i - 32) + 4 * eh, 4)

    t0, t1, t2, t3 = vT0, vT0 + 1, vT0 + 2, vT0 + 3
    lane_fields(A, vL)
    emit_koffs(A)
    A(f'v_and_b32 {v(t0)}, 15, {v(vL)}')
    A(f'v_lshrrev_b32 {v(t1)}, 4, {v(vL)}')
    sparse_idx(A, vIDX, vL, t2, t3)
    A(f'v_lshlrev_b32 {v(t2)}, 9, {v(t1)}')
    A(f'v_lshl_add_u32 {v(vYX)}, {v(t0)}, 4, {v(t2)}')
    A(f's_mul_i32 s25, s13, 56')
    A(f's_add_u32 s25, s25, s14')
    A(f's_mul_i32 s25, s25, 28672')
    A(f's_add_u32 s25, s25, {L.WF + L.NB_B * 28672}')
    A(f's_lshl_b32 s28, s13, 15')
    cnt = 0
    for hh in range(4):
        for k in range(7):
            A(f's_lshl_b32 s23, s{16 + k}, 2')
            A(f's_add_u32 s23, s23, s25')
            A(f's_add_u32 s23, s23, {hh * 14 * 28672}')
            for eh in range(2):
                for t in range(2):
                    ht = hh * 2 + t
                    if k >= 5:
                        A(f's_add_u32 s24, s28, {WL + ((ht * 2 + (k - 5)) * 2 + eh) * 1024}')
                        A(f's_mov_b32 m0, s24')
                        A(f's_add_u32 s24, s23, {2048 * eh + 256 * t}')
                        A(f'buffer_load_dwordx4 {v(vYX)}, {SRD}, s24 offen lds')
                    else:
                        A(f'buffer_load_dwordx4 {Whalf(ht, k, eh)}, {v(vYX)}, {SRD}, s23 offen offset:{2048 * eh + 256 * t}')
                    cnt += 1
                    if cnt % 16 == 0:
                        A('s_waitcnt vmcnt(40)')
    A(f'v_lshlrev_b32 {v(vMA)}, 4, {v(vL)}')
    A(f'v_add_u32 {v(vWL)}, s28, {v(vMA)}')
    A(f'v_add_u32 {v(vYM)}, 0, {v(vMA)}')
    for k in range(7):
        A(f's_add_u32 s23, s{16 + k}, {MIMG}')
        A(f'v_add_u32 {v(vM(k))}, s23, {v(vMA)}')
    A(f'v_add_u32 {v(vMA)}, {L.MEMA}, {v(vMA)}')
    A(f'v_lshrrev_b32 {v(t2)}, 1, {v(t1)}')
    A(f'v_mul_u32_u24 {v(t2)}, 640, {v(t2)}')
    A(f'v_and_b32 {v(t3)}, 1, {v(t1)}')
    A(f'v_lshl_add_u32 {v(t2)}, {v(t3)}, 8, {v(t2)}')
    A(f'v_lshl_add_u32 {v(vP)}, {v(t0)}, 4, {v(t2)}')
    A(f'v_lshrrev_b32 {v(t2)}, 1, {v(t1)}')
    A(f'v_bfe_u32 {v(t3)}, {v(vL)}, 3, 1')
    A(f'v_lshl_add_u32 {v(t2)}, {v(t3)}, 1, {v(t2)}')
    A(f'v_mul_u32_u24 {v(t2)}, 640, {v(t2)}')
    A(f'v_and_b32 {v(t3)}, 7, {v(vL)}')
    A(f'v_lshl_add_u32 {v(t2)}, {v(t3)}, 4, {v(t2)}')
    A(f'v_and_b32 {v(t3)}, 1, {v(t1)}')
    A(f'v_lshl_add_u32 {v(t2)}, {v(t3)}, 3, {v(t2)}')
    A(f'v_add_u32 {v(vP2)}, 512, {v(t2)}')
    A(f's_mul_i32 s23, s13, 3072')
    A(f's_add_u32 s23, s23, {RIMG}')
    A(f'v_mul_u32_u24 {v(t2)}, {4 * 192}, {v(t1)}')
    A(f'v_lshl_add_u32 {v(vRW)}, {v(t0)}, 3, {v(t2)}')
    A(f'v_add_u32 {v(vRW)}, s23, {v(vRW)}')
    A(f'v_lshrrev_b32 {v(t3)}, 3, {v(vL)}')
    A(f'v_and_b32 {v(t2)}, 3, {v(vL)}')
    A(f'v_lshlrev_b32 {v(vSA)}, 2, {v(t2)}')
    A(f'v_lshlrev_b32 {v(t2)}, 1, {v(t2)}')
    A(f'v_bfe_u32 {v(t0)}, {v(vL)}, 2, 1')
    A(f'v_lshl_add_u32 {v(vSA)}, {v(t0)}, 7, {v(vSA)}')
    A(f'v_lshl_add_u32 {v(vSA)}, {v(t3)}, 4, {v(vSA)}')
    A(f'v_add_u32 {v(t2)}, {v(t2)}, {v(t0)}')
    A(f's_and_b32 s23, s13, 1')
    A(f's_lshl_b32 s23, s23, 3')
    A(f'v_add_u32 {v(t0)}, s23, {v(t2)}')
    A(f'v_mul_u32_u24 {v(t2)}, 192, {v(t3)}')
    A(f'v_lshl_add_u32 {v(vRR)}, {v(t0)}, 3, {v(t2)}')
    A(f'v_add_u32 {v(vRR)}, {RIMG}, {v(vRR)}')
    A(f's_lshl_b32 s23, s14, 9')
    A(f's_and_b32 s24, s13, 1')
    A(f's_lshl_b32 s24, s24, 8')
    A(f's_add_u32 s24, s24, s23')
    A(f'v_add_u32 {v(vSA)}, s24, {v(vSA)}')
    A(f'v_lshlrev_b32 {v(vSK)}, 4, {v(t3)}')
    A(f'v_lshrrev_b32 {v(t2)}, 2, {v(t0)}')
    A(f'v_lshl_add_u32 {v(vSK)}, {v(t2)}, 7, {v(vSK)}')
    A(f'v_and_b32 {v(t2)}, 3, {v(t0)}')
    A(f'v_lshl_add_u32 {v(vSK)}, {v(t2)}, 2, {v(vSK)}')
    A(f'v_add_u32 {v(vSK)}, s23, {v(vSK)}')
    A(f's_cmp_ge_u32 s13, 2')
    A(f's_cselect_b32 s23, 0x40000000, 0')
    A(f'v_add_u32 {v(vSK)}, s23, {v(vSK)}')
    A(f's_mul_i32 s24, s13, {4 * 640}')
    A(f's_add_u32 s24, s24, {L.PBUF}')
    A(f's_mul_i32 s25, s13, 56')
    A(f's_add_u32 s25, s25, s14')
    A(f's_lshl_b32 s25, s25, 11')
    A(f's_add_u32 s25, s25, {L.YF}')
    A(f's_mov_b32 s26, {L.MEMA + 8192}')
    A(f's_mov_b32 s29, {L.MEMX}')
    A(f's_lshl_b32 s31, s14, 2')
    A(f's_add_u32 s31, s31, s13')
    A(f's_lshl_b32 s31, s31, 11')
    A(f's_add_u32 s31, s31, {L.YM}')
    NTA = cfg.get('ntouch', 2)
    NT = cfg.get('ntouchB', 0)
    A(f's_mul_i32 s34, s14, {NT}')
    A(f's_add_u32 s34, s34, {16 * NTA}')
    A(f's_add_u32 s34, s34, s13')
    A(f's_min_u32 s34, s34, 55')
    A(f's_lshl_b32 s34, s34, 13')
    A(f's_add_u32 s34, s34, {L.YF + cfg.get("pfdist", 2) * 16 * 28672}')
    A(f'v_lshlrev_b32 {v(vPF)}, 7, {v(vL)}')
    A(f's_cmp_ge_u32 s13, {NT}')
    A(f's_cselect_b32 s23, 0x40000000, 0')
    A(f'v_add_u32 {v(vPF)}, s23, {v(vPF)}')
    A(f's_mov_b32 s15, 0')
    A(f's_mov_b32 s35, 0x40000000')
    if cfg.get('stamps'):
        A(f's_add_u32 s32, s14, 16')
        A(f's_lshl_b32 s32, s32, 2')
        A(f's_add_u32 s32, s32, s13')
        A(f's_lshl_b32 s32, s32, 12')
        A(f's_add_u32 s32, s32, {L.STAMP}')
    vOUT = vT0 + 5
    A(f'v_mov_b32 {v(vOUT)}, 0')
    for r in range(8):
        A(f'v_mov_b32 {v(YB(0) + r)}, 0')

    def yx_list():
        out = []
        for k in range(2):
            for eh in range(2):
                for t in range(2):
                    out.append([f's_add_u32 s23, s25, {(2 * k + eh) * 14 * 2048}',
                                f'buffer_load_dwordx4 {v(YX(k, t) + 4 * eh, 4)}, {v(vYX)}, {SRD}, s23 offen offset:{256 * t} sc1'])
        return out

    def ym_list(sreg):
        return [[f'buffer_store_dwordx4 {v(YB(t), 4)}, {v(vYM)}, {SRD}, {sreg} offen offset:{t * 1024} sc1'] for t in range(2)]

    A('s_waitcnt vmcnt(0)')
    tl(A, cfg, 's14', 1, vT0 + 2, 0x8400)
    start_gate(A, cfg, vT0)
    tl(A, cfg, 's14', 2, vT0 + 2, 0x8400)
    top = A.newlabel('B_top')
    mpoll = A.newlabel('B_mpoll')
    ppoll = A.newlabel('B_ppoll')
    nxt = A.newlabel('B_next')
    fin = A.newlabel('B_fin')
    A.label(top)
    A.forget()
    A(f's_waitcnt vmcnt({15 if cfg.get("stamps") else 1})')
    for r in range(32):
        A(f'v_mov_b32 {v(YACC(0, 0) + r)}, 0')
    for r in range(8):
        A(f'v_mov_b32 {v(OACC(0) + r)}, 0')
    ldsq = [(hh * 2 + t, k) for t in range(2) for pr in range(2) for k in (5, 6) for hh in (2 * pr, 2 * pr + 1)]

    def wlread(j):
        ht, k = ldsq[j]
        for eh in range(2):
            A(f'ds_read_b128 {v(ST(j & 3) + 4 * eh, 4)}, {v(vWL)} offset:{((ht * 2 + (k - 5)) * 2 + eh) * 1024}')
    for j in range(4):
        wlread(j)
    if cfg.get('bsleep', 0):
        A(f's_sleep {cfg["bsleep"]}')
    MS = lambda r: (M(0) if r == 0 else M2)
    A(f's_add_u32 s36, s31, s35')
    A(f's_add_u32 s37, s29, s35')

    def missue(r):
        for k in range(2):
            A(f'buffer_load_dwordx4 {v(MS(r) + 4 * k, 4)}, {v(vMA)}, {SRD}, s{16 + k} offen sc1')
    mv0, mv1, mcommon = A.newlabel('B_mv0'), A.newlabel('B_mv1'), A.newlabel('B_mc')
    missue(0)
    keepalive(A, vDUM + 1, cfg.get('pgap', 28), {})
    A.label(mpoll, keep=True)
    guard(A)
    missue(1)
    check_regs(A, t0, [MS(0) + i for i in range(8)])
    A(f's_cbranch_vccz {mv0}')
    missue(0)
    check_regs(A, t0, [MS(1) + i for i in range(8)])
    A(f's_cbranch_vccnz {mpoll}')
    lgsnap = [set(x) for x in A.lg]

    def mvariant(r):
        A.vm = [set(('v', MS(1 - r) + i) for i in range(8))]
        A.lg = [set(x) for x in lgsnap]
        A.smem_out = []
        stamp(A, cfg, 0)
        for i, (ht, k) in enumerate([(ht, k) for k in range(2) for ht in range(8)]):
            A(f'v_smfmac_f32_16x16x64_bf16 {v(YACC(ht >> 1, ht & 1), 4)}, {v(MS(r) + 4 * k, 4)}, {W(ht, k)}, {v(vIDX)}')
            if i < 2:
                A(f'ds_write_b128 {v(vM(i))}, {v(MS(r) + 4 * i, 4)}')
            if i == 4:
                A('s_waitcnt lgkmcnt(0)')
                A('s_barrier')
            if 4 <= i < 9:
                A(f'ds_read_b128 {v(M(i - 2), 4)}, {v(vM(i - 2))}')
            if i in (9, 13) and not cfg.get('noym'):
                A(ym_list('s36')[(i - 9) // 4][0])
            if i == 4:
                stamp(A, cfg, 8)
    A.label(mv1, keep=True)
    mvariant(1)
    A(f's_branch {mcommon}')
    A.label(mv0)
    mvariant(0)
    A.label(mcommon, keep=True)
    A.vm = [set(('v', M(0) + i) for i in range(8)) | set(('v', M2 + i) for i in range(8))]
    mem = yx_list() if not cfg.get('noyx') else []
    if NT:
        mem += [[f'buffer_load_dword {v(vDUM)}, {v(vPF)}, {SRD}, s34 offen']]
    seq = []
    groups = [(pr, t) for t in range(2) for pr in range(2)]
    for pr, t in groups:
        ha, hb = (2 * pr) * 2 + t, (2 * pr + 1) * 2 + t
        seq += [(ha, 5), (ha, 2), (hb, 2), (hb, 5), (ha, 3), (ha, 6), (hb, 3), (ha, 4), (hb, 6), (hb, 4)]
    assert [x for x in seq if x[1] >= 5] == ldsq
    lj = 0
    vq = []
    dq = []
    GAP = cfg.get('bmemgap', 4)

    def gpost(pr, t):
        Ya, Yb = YACC(2 * pr, t), YACC(2 * pr + 1, t)
        ops = [f'v_permlane32_swap_b32 {v(Ya + r)}, {v(Yb + r)}' for r in range(4)]
        ops += [f'v_add_f32 {v(Ya + r)}, {v(Ya + r)}, {v(Yb + r)}' for r in range(4)]
        ops += [f'v_cvt_pk_bf16_f32 {v(YB(t) + 2 * p + pr)}, {v(Ya + 2 * p)}, {v(Ya + 2 * p + 1)}' for p in range(2)]
        return ops
    sani = [f'v_min_u32 {v(YB(0) + r)}, -2, {v(YB(0) + r)}' for r in range(8)]
    for i, (ht, k) in enumerate(seq):
        if i % 10 == 0:
            stamp(A, cfg, 9 + i // 10)
        if k >= 5:
            A.auto(f'v_smfmac_f32_16x16x64_bf16 {v(YACC(ht >> 1, ht & 1), 4)}, {v(M(k), 4)}, {v(ST(lj & 3), 8)}, {v(vIDX)}')
            if lj + 4 < 16:
                h2, k2 = ldsq[lj + 4]
                for eh in range(2):
                    dq.append(f'ds_read_b128 {v(ST(lj & 3) + 4 * eh, 4)}, {v(vWL)} offset:{((h2 * 2 + (k2 - 5)) * 2 + eh) * 1024}')
            lj += 1
        else:
            A.auto(f'v_smfmac_f32_16x16x64_bf16 {v(YACC(ht >> 1, ht & 1), 4)}, {v(M(k), 4)}, {W(ht, k)}, {v(vIDX)}')
        if i % 10 == 9:
            vq += gpost(*groups[i // 10])
        if dq:
            A(dq.pop(0))
        if i >= cfg.get('yxstart', 4) and i % GAP == 0 and mem:
            for x in mem.pop(0):
                A(x)
        if vq and A.pad_needed(vq[0]) == 0:
            A(vq.pop(0))
    assert not mem and not dq
    stamp(A, cfg, 13)
    for o in vq + sani:
        A(o)
    A(f's_cmp_eq_u32 s15, 0')
    A(f's_cselect_b32 s23, 0, {14 * 4 * 2048}')
    A(f's_add_u32 s31, s31, s23')
    A(f's_mov_b32 s35, 0')
    A(f's_add_u32 s29, s29, 8192')
    A(f's_add_u32 s25, s25, {16 * 28672}')
    A(f's_add_u32 s34, s34, {16 * 28672}')
    stamp(A, cfg, 1)
    A(f's_cmp_eq_u32 s15, {NSTEP}')
    A(f's_cbranch_scc1 {fin}')
    A('s_waitcnt vmcnt(0)')
    mid_gate(A, cfg, vT0)
    stamp(A, cfg, 5)
    if cfg.get('psleep', 0):
        A(f's_sleep {cfg["psleep"]}')

    def pissue(r):
        A(f'buffer_load_dwordx4 {v(P(r, 0), 4)}, {v(vP)}, {SRD}, s24 offen sc1')
        A(f'buffer_load_dwordx4 {v(P(r, 1), 4)}, {v(vP)}, {SRD}, s24 offen offset:1280 sc1')
        A(f'buffer_load_dwordx2 {v(P(r, 2), 2)}, {v(vP2)}, {SRD}, s24 offen sc1')
    var0 = A.newlabel('B_var0')
    var1 = A.newlabel('B_var1')
    common = A.newlabel('B_common')
    redo = A.newlabel('B_redo')

    def quick(r):
        keepalive(A, vDUM + 1, cfg.get('kbp', 0), cfg)
        A('s_waitcnt vmcnt(3)')
        A(f'v_max3_u32 {v(t0)}, {v(P(r, 0) + 3)}, {v(P(r, 1) + 3)}, {v(P(r, 2) + 1)}')
        A(f'v_cmp_eq_u32 vcc, -1, {v(t0)}')
    A.label(redo, keep=True)
    pissue(0)
    keepalive(A, vDUM + 1, cfg.get('pgap', 28), {})
    A.label(ppoll, keep=True)
    guard(A)
    pissue(1)
    quick(0)
    A(f's_cbranch_vccz {var0}')
    pissue(0)
    quick(1)
    A(f's_cbranch_vccz {var1}')
    A(f's_branch {ppoll}')
    bad = A.newlabel('B_bad')
    A.label(bad)
    A('s_waitcnt vmcnt(0) lgkmcnt(0)')
    A('s_nop 7')
    for r in range(8):
        A(f'v_mov_b32 {v(OACC(0) + r)}, 0')
    A(f's_branch {redo}')

    def variant(r):
        A.vm = [set(('v', P(1 - r, 0) + i) for i in range(12))]
        A.lg = []
        A.smem_out = []
        stamp(A, cfg, 2)
        Q = P(r, 0)
        full = [f'v_max3_u32 {v(t0)}, {v(Q)}, {v(Q + 1)}, {v(Q + 2)}', f'v_max3_u32 {v(t0)}, {v(t0)}, {v(Q + 4)}, {v(Q + 5)}',
                f'v_max3_u32 {v(t0)}, {v(t0)}, {v(Q + 6)}, {v(Q + 8)}',
                f'v_cmp_eq_u32 vcc, -1, {v(t0)}']
        for k in range(3):
            for t in range(2):
                if k < 2:
                    A(f'v_smfmac_f32_16x16x64_bf16 {v(OACC(t), 4)}, {v(P(r, k), 4)}, {v(YX(k, t), 8)}, {v(vIDX)}')
                else:
                    A(f'v_smfmac_f32_16x16x32_bf16 {v(OACC(t), 4)}, {v(P(r, k), 2)}, {v(YB(t), 4)}, {v(vIDX)}')
        for x in full[:2]:
            A(x)
        for rr in range(4):
            A(f'ds_write2_b32 {v(vRW)}, {v(OACC(0) + rr)}, {v(OACC(1) + rr)} offset0:{rr * 48} offset1:{rr * 48 + 1}')
        for x in full[2:]:
            A(x)
        A(f's_cbranch_vccnz {bad}')
    A.label(var1)
    variant(1)
    A(f's_branch {common}')
    A.label(var0)
    variant(0)
    A.label(common, keep=True)
    A.vm = [set(('v', P(0, 0) + i) for i in range(24))]
    A('s_cmp_ge_u32 s13, 2')
    keepalive(A, vDUM + 1, cfg.get('kb1', 0), cfg)
    stamp(A, cfg, 6)
    warm_mfma(A, ST(0), cfg)
    A('s_waitcnt lgkmcnt(0)')
    A('s_barrier')
    stamp(A, cfg, 7)
    A(f's_cbranch_scc1 {nxt}')
    R = lambda w: YACC(0, 0) + 4 * w
    for w in range(4):
        A(f'ds_read2st64_b64 {v(R(w), 4)}, {v(vRR)} offset0:{6 * w} offset1:{6 * w + 3}')
    keepalive(A, vDUM + 1, cfg.get('kb2', 3), cfg)
    A(f'v_mov_b32 {v(t1)}, -2')
    A.auto(f'v_pk_add_f32 {v(R(0), 2)}, {v(R(0), 2)}, {v(R(0) + 2, 2)}')
    A.auto(f'v_pk_add_f32 {v(R(1), 2)}, {v(R(1), 2)}, {v(R(1) + 2, 2)}')
    A(f'v_pk_add_f32 {v(R(0), 2)}, {v(R(0), 2)}, {v(R(1), 2)}')
    A.auto(f'v_pk_add_f32 {v(R(2), 2)}, {v(R(2), 2)}, {v(R(2) + 2, 2)}')
    A(f'v_pk_add_f32 {v(R(0), 2)}, {v(R(0), 2)}, {v(R(2), 2)}')
    A.auto(f'v_pk_add_f32 {v(R(3), 2)}, {v(R(3), 2)}, {v(R(3) + 2, 2)}')
    A(f'v_pk_add_f32 {v(R(0), 2)}, {v(R(0), 2)}, {v(R(3), 2)}')
    A(f'v_cvt_pk_bf16_f32 {v(vOUT)}, {v(R(0))}, {v(R(0) + 1)}')
    A(f'v_min_u32 {v(vOUT)}, {v(vOUT)}, {v(t1)}')
    A.label(nxt, keep=True)
    A(f's_cselect_b32 s23, 0x40000000, s26')
    dual_store(A, f'buffer_store_dword {v(vOUT)}, {v(vSA)}, {SRD}, s23 offen')
    stamp(A, cfg, 3)
    rstamp(A, cfg, 4)
    stamp_flush(A, cfg, 14, 32, vT0 + 2)
    A(f'v_add_u32 {v(vMA)}, 8192, {v(vMA)}')
    A(f's_add_u32 s24, s24, 16384')
    A(f's_add_u32 s26, s26, 8192')
    A(f's_add_u32 s15, s15, 1')
    A(f's_branch {top}')
    A.label(fin)
    for x in ym_list('s31'):
        A(x[0])
    A('s_endpgm')
    flush_deferred(A)


def emit_C(A, cfg):
    NT = cfg.get('ntouch', 2)
    D = cfg.get('cdist', 3)
    first = min(16 * NT + 14 * cfg.get('ntouchB', 0), 56)
    nrounds = (56 - first + 7) // 8
    vL, vPF, vPL, vD, vLW, vLR, vST, t0, t1 = 1, 2, 3, 4, 5, 6, 7, 8, 9
    Q = 12
    lane_fields(A, vL)
    A(f'v_lshlrev_b32 {v(vPF)}, 7, {v(vL)}')
    A('s_lshl_b32 s16, s14, 2')
    A('s_add_u32 s16, s16, s13')
    A('s_cmp_eq_u32 s16, 7')
    A('s_cselect_b32 s19, 0, s16')
    A('s_lshl_b32 s19, s19, 10')
    A(f'v_lshlrev_b32 {v(vST)}, 4, {v(vL)}')
    A('s_lshl_b32 s23, s13, 10')
    A(f'v_add_u32 {v(vLW)}, s23, {v(vST)}')
    A(f'v_lshrrev_b32 {v(t0)}, 4, {v(vL)}')
    A(f'v_lshlrev_b32 {v(vLR)}, 8, {v(t0)}')
    A(f'v_and_b32 {v(t0)}, 7, {v(vL)}')
    A(f'v_lshl_add_u32 {v(vLR)}, {v(t0)}, 4, {v(vLR)}')
    A(f'v_bfe_u32 {v(t0)}, {v(vL)}, 3, 1')
    A(f'v_lshl_add_u32 {v(vLR)}, {v(t0)}, 3, {v(vLR)}')
    A(f'v_add_u32 {v(vLR)}, s23, {v(vLR)}')
    A(f'v_add_u32 {v(vST)}, s19, {v(vST)}')
    A(f'v_add_u32 {v(vPL)}, {L.MEMA + 8192}, {v(vST)}')
    A('s_cmp_eq_u32 s16, 7')
    A(f's_cselect_b32 s19, 0x40000000, 0')
    A(f's_add_u32 s19, s19, {L.MEMX + 8192}')
    A('s_lshl_b32 s17, s16, 13')
    A(f's_add_u32 s17, s17, {L.XF}')
    A('s_mov_b32 s18, 28672')
    A('s_cmp_ge_u32 s16, 4')
    A(f's_cselect_b32 s17, {L.MEMA + 8192}, s17')
    A(f's_cselect_b32 s18, 8192, s18')
    A('s_cmp_eq_u32 s16, 6')
    A(f's_cselect_b32 s17, {L.PBUF}, s17')
    A('s_cmp_eq_u32 s16, 7')
    A(f's_cselect_b32 s17, {L.PBUF + 8192}, s17')
    A('s_cmp_ge_u32 s16, 6')
    A(f's_cselect_b32 s18, 16384, s18')
    for r in range(nrounds):
        A(f's_add_u32 s{24 + r}, s16, {first + 8 * r}')
        A(f's_min_u32 s{24 + r}, s{24 + r}, 55')
        A(f's_lshl_b32 s{24 + r}, s{24 + r}, 13')
        A(f's_add_u32 s{24 + r}, s{24 + r}, {L.YF}')
    start_gate(A, cfg, Q)
    for sg in range(cfg.get('pfdist', 2)):
        for r in range(7):
            A(f's_add_u32 s23, s16, {8 * r}')
            A(f's_lshl_b32 s23, s23, 13')
            A(f's_add_u32 s23, s23, {L.YF + sg * 16 * 28672}')
            A(f'buffer_load_dword {v(vD)}, {v(vPF)}, {SRD}, s23 offen')

    def touches():
        A(f'buffer_load_dword {v(vD)}, {v(vPF)}, {SRD}, s17 offen')
        A('s_add_u32 s17, s17, s18')
        for r in range(nrounds):
            A(f'buffer_load_dword {v(vD)}, {v(vPF)}, {SRD}, s{24 + r} offen')
            A(f's_add_u32 s{24 + r}, s{24 + r}, {16 * 28672}')
    for _ in range(D):
        touches()
    A('s_mov_b32 s15, 1')
    top = A.newlabel('C_top')
    skip = A.newlabel('C_skip')
    A.label(top)
    A.forget()
    guard(A)
    A(f's_sleep 1')
    A(f'buffer_load_dwordx4 {v(Q, 4)}, {v(vPL)}, {SRD}, 0 offen sc1')
    A('s_waitcnt vmcnt(0)')
    check_regs(A, t0, [Q + i for i in range(4)])
    A(f's_cbranch_vccnz {top}')
    A(f'ds_write_b128 {v(vLW)}, {v(Q, 4)}')
    A(f'ds_read2_b32 {v(Q + 4, 2)}, {v(vLR)} offset0:0 offset1:32')
    A(f'ds_read2_b32 {v(Q + 6, 2)}, {v(vLR)} offset0:1 offset1:33')
    A('s_waitcnt lgkmcnt(0)')
    A(f'buffer_store_dwordx4 {v(Q + 4, 4)}, {v(vST)}, {SRD}, s19 offen sc1')
    A(f'v_add_u32 {v(vPL)}, 8192, {v(vPL)}')
    A('s_add_u32 s19, s19, 8192')
    mid_gate(A, cfg, Q)
    A(f's_cmp_gt_u32 s15, {64 - D}')
    A(f's_cbranch_scc1 {skip}')
    touches()
    A.label(skip)
    A('s_add_u32 s15, s15, 1')
    A(f's_cmp_lt_u32 s15, 64')
    A(f's_cbranch_scc1 {top}')
    A('s_endpgm')
```

```python
from asmdsl import v, a, s
import layout as L

SRD = 's[8:11]'
CH = 4
NBUF = 3
CHB = 7 * CH * 1024


def perm_lane(A, dst, vl, tmp):
    A(f'v_and_b32 {v(dst)}, 0x33, {v(vl)}')
    A(f'v_bfe_u32 {v(tmp)}, {v(vl)}, 2, 1')
    A(f'v_lshl_add_u32 {v(dst)}, {v(tmp)}, 3, {v(dst)}')
    A(f'v_bfe_u32 {v(tmp)}, {v(vl)}, 3, 1')
    A(f'v_lshl_add_u32 {v(dst)}, {v(tmp)}, 2, {v(dst)}')
    A(f'v_lshlrev_b32 {v(dst)}, 4, {v(dst)}')


VL, VLIN, VPERM = 1, 2, 3
ACC0 = 32


def emit_common_regs(A):
    A(f'v_and_b32 {v(VL)}, 63, v0')
    A(f'v_lshlrev_b32 {v(VLIN)}, 4, {v(VL)}')
    perm_lane(A, VPERM, VL, 4)


def emit_gemm_main(A, name, NTB, KS, XS, WS_, x_is_A, ldflag=' sc1', xflag=' sc1', NBUF=3):
    nch = KS // CH
    acc = lambda tb, nb: ACC0 + 16 * (tb * 7 + nb)
    XB = lambda slot, kq, tb: ((slot * CH + kq) * NTB + tb) * 4
    WB0 = NBUF * CH * NTB * 4
    WB = lambda par, nb: WB0 + (par * 7 + nb) * 4
    xaddr = v(VPERM) if x_is_A else v(VLIN)
    vWR = lambda slot: 5 + slot
    for sl in range(NBUF):
        A(f'v_add_u32 {v(vWR(sl))}, {sl * CHB}, {v(VLIN) if x_is_A else v(VPERM)}')
    A('s_lshl_b32 s44, s13, 1')
    A('s_min_u32 s45, s44, 6')
    A('s_add_u32 s44, s44, 1')
    A('s_min_u32 s46, s44, 6')
    A(f's_mul_i32 s47, s45, {WS_}')
    A('s_add_u32 s47, s47, s41')
    A(f's_mul_i32 s48, s46, {WS_}')
    A('s_add_u32 s48, s48, s41')
    A(f's_lshl_b32 s45, s45, 12')
    A(f's_lshl_b32 s46, s46, 12')
    A('s_mov_b32 s49, s40')

    def issue(slot):
        out = []
        for j, (sg, sl) in enumerate((('s47', 's45'), ('s48', 's46'))):
            out.append([f's_add_u32 s50, {sl}, {slot * CHB}', 's_mov_b32 m0, s50',
                        f'buffer_load_dwordx4 {v(VLIN)}, {SRD}, {sg} offen{ldflag} lds'])
            for kq in range(1, CH):
                out.append([f'buffer_load_dwordx4 {v(VLIN)}, {SRD}, {sg} offen offset:{kq * 1024}{ldflag} lds'])
            out[-1].append(f's_add_u32 {sg}, {sg}, {CH * 1024}')
        for tb in range(NTB):
            for kq in range(CH):
                pre = [f's_add_u32 s51, s49, {tb * XS}'] if (kq == 0 and tb) else []
                sr = 's51' if tb else 's49'
                out.append(pre + [f'buffer_load_dwordx4 {a(XB(slot, kq, tb), 4)}, {xaddr}, {SRD}, {sr} offen offset:{kq * 1024}{xflag}'])
        out[-1].append(f's_add_u32 s49, s49, {CH * 1024}')
        return out
    NLD = 2 * CH + NTB * CH

    def wread(slot, kq, par):
        return [f'ds_read_b128 {a(WB(par, nb), 4)}, {v(vWR(slot))} offset:{nb * 4096 + kq * 1024}' for nb in range(7)]

    AH = NBUF - 1
    for sl in range(min(AH, nch)):
        for grp in issue(sl):
            for x in grp:
                A(x)
    for r in range(NTB * 7 * 16):
        A(f'v_mov_b32 {v(ACC0 + r)}, 0')

    def chunk(slot, more, younger):
        A.forget()
        A(f's_waitcnt vmcnt({NLD * younger})')
        A('s_barrier')
        lds = issue((slot + AH) % NBUF) if more else []
        for x in wread(slot, 0, 0):
            A(x)
        for kq in range(CH):
            par = kq & 1
            nxt = wread(slot, kq + 1, par ^ 1) if kq + 1 < CH else []
            j = 0
            for nb in range(7):
                for tb in range(NTB):
                    xo, wo = a(XB(slot, kq, tb), 4), a(WB(par, nb), 4)
                    sa, sb = (xo, wo) if x_is_A else (wo, xo)
                    A.auto(f'v_mfma_f32_32x32x16_bf16 {v(acc(tb, nb), 16)}, {sa}, {sb}, {v(acc(tb, nb), 16)}')
                    if nxt and (j % NTB == 0):
                        A(nxt.pop(0))
                    elif lds and (NTB == 1 or j % 4 == 1):
                        for x in lds.pop(0):
                            A(x)
                    if NTB == 1 and lds and j in (1, 3, 5):
                        for x in lds.pop(0):
                            A(x)
                    j += 1
        for grp in lds:
            for x in grp:
                A(x)

    full = nch - AH
    trips = full // NBUF
    rem = full % NBUF
    if trips > 1:
        lab = A.newlabel(name + '_loop')
        A(f's_mov_b32 s52, {trips}')
        A.label(lab)
        for sl in range(NBUF):
            chunk(sl, True, AH - 1)
        A('s_sub_u32 s52, s52, 1')
        A('s_cmp_lg_u32 s52, 0')
        A(f's_cbranch_scc1 {lab}')
    else:
        rem += trips * NBUF
    sl = 0
    for _ in range(rem):
        chunk(sl, True, AH - 1)
        sl = (sl + 1) % NBUF
    for k in range(AH):
        chunk(sl, False, AH - 1 - k)
        sl = (sl + 1) % NBUF
    return acc


def emit_epi_pack(A, acc, NTB, tb_stride, stflag=' sc1'):
    T = 8
    n = 0
    for tb in range(NTB):
        A(f's_add_u32 s50, s42, {tb * tb_stride}')
        for nb in range(7):
            if nb % 2 == 0 and nb:
                A(f's_add_u32 s50, s50, 4096')
            for ph in range(2):
                t = T + 4 * (n % 4)
                n += 1
                for j in range(4):
                    r = acc(tb, nb) + 8 * ph + 2 * j
                    A(f'v_cvt_pk_bf16_f32 {v(t + j)}, {v(r)}, {v(r + 1)}')
                A(f'buffer_store_dwordx4 {v(t, 4)}, {v(VLIN)}, {SRD}, s50 offen offset:{((nb & 1) * 2 + ph) * 1024}{stflag}')


def emit_epi_gu(A, acc, NTB, tb_stride, stflag=' sc1'):
    T = 8
    n = 0
    for tb in range(NTB):
        A(f's_add_u32 s50, s42, {tb * tb_stride}')
        for nb in range(7):
            if nb == 4:
                A(f's_add_u32 s50, s50, 4096')
            t = T + 4 * (n % 4)
            n += 1
            c = acc(tb, nb)
            for j in range(4):
                A(f'v_pk_mul_f32 {v(c + 2 * j, 2)}, {v(c + 2 * j, 2)}, {v(c + 8 + 2 * j, 2)}')
            for j in range(4):
                A(f'v_cvt_pk_bf16_f32 {v(t + j)}, {v(c + 2 * j)}, {v(c + 2 * j + 1)}')
            A(f'buffer_store_dwordx4 {v(t, 4)}, {v(VLIN)}, {SRD}, s50 offen offset:{(nb & 3) * 1024}{stflag}')


def emit_epi_presum(A, acc, srdx, stflag=' sc1'):
    vX = 6
    A(f'v_and_b32 {v(4)}, 31, {v(VL)}')
    A(f'v_mul_u32_u24 {v(vX)}, 896, {v(4)}')
    A(f'v_lshrrev_b32 {v(4)}, 5, {v(VL)}')
    A(f'v_lshl_add_u32 {v(vX)}, {v(4)}, 4, {v(vX)}')
    XR = 160
    for nb in range(7):
        for ph in range(2):
            A(f'buffer_load_dwordx4 {v(XR + (nb * 2 + ph) * 4, 4)}, {v(vX)}, {srdx}, s43 offen offset:{nb * 64 + ph * 32}')
    A('s_mov_b32 s50, s42')
    for nb in range(7):
        c = acc(0, nb)
        for ph in range(2):
            for j in range(4):
                x = XR + (nb * 2 + ph) * 4 + j
                r = c + 8 * ph + 2 * j
                A.auto(f'v_lshlrev_b32 {v(8)}, 16, {v(x)}')
                A(f'v_and_b32 {v(9)}, 0xffff0000, {v(x)}')
                A(f'v_add_f32 {v(r)}, {v(r)}, {v(8)}')
                A(f'v_add_f32 {v(r + 1)}, {v(r + 1)}, {v(9)}')
        for q in range(4):
            A(f'buffer_store_dwordx4 {v(c + 4 * q, 4)}, {v(VLIN)}, {SRD}, s50 offen offset:{q * 1024}{stflag}')
        A(f's_add_u32 s50, s50, 4096')
```

```python
from asmdsl import v, a, s
import layout as L
import gemm as G

SRD = 's[8:11]'
SRD_X = 's[56:59]'
SRD_OUT = 's[60:63]'


def item_gemm1(A, kind, ld='', st=' sc1'):
    sh = 5 if kind != 'GU' else 4
    A(f's_lshr_b32 s53, s39, {sh}')
    A(f's_and_b32 s54, s39, {(1 << sh) - 1}')
    A('s_lshl_b32 s55, s53, 3')
    A('s_lshl_b32 s50, s13, 1')
    A('s_add_u32 s55, s55, s50')
    A('s_mul_i32 s40, s55, 28672')
    A(f's_add_u32 s40, s40, {L.XF}')
    nb0 = {'Y': L.NB_B, 'T': L.NB_A, 'GU': L.NB_GU}[kind]
    A(f's_mul_i32 s41, s54, {7 * 28672}')
    A(f's_add_u32 s41, s41, {L.WF + nb0 * 28672}')
    if kind == 'GU':
        A(f's_mul_i32 s42, s55, {112 * 1024}')
        A(f's_mul_i32 s50, s54, {7 * 1024}')
        A('s_add_u32 s42, s42, s50')
        A(f's_add_u32 s42, s42, {L.HF}')
    else:
        A(f's_mul_i32 s42, s55, {16 * 28672}')
        A(f's_mul_i32 s50, s54, {7 * 2048}')
        A('s_add_u32 s42, s42, s50')
        A(f's_add_u32 s42, s42, {L.YF if kind == "Y" else L.TF}')
    acc = G.emit_gemm_main(A, 'g1' + kind, 2, 28, 28672, 28672, kind == 'Y', ld, ld, NBUF=3)
    if kind == 'GU':
        G.emit_epi_gu(A, acc, 2, 112 * 1024, st)
    else:
        G.emit_epi_pack(A, acc, 2, 16 * 28672, st)


def item_y0(A):
    A('s_lshr_b32 s53, s39, 5')
    A('s_and_b32 s54, s39, 31')
    A('s_lshl_b32 s55, s53, 2')
    A('s_add_u32 s55, s55, s13')
    A('s_mul_i32 s40, s55, 28672')
    A(f's_add_u32 s40, s40, {L.XF}')
    A(f's_mul_i32 s41, s54, {7 * 28672}')
    A(f's_add_u32 s41, s41, {L.WF + L.NB_B * 28672}')
    A(f's_mul_i32 s42, s55, {16 * 28672}')
    A(f's_mul_i32 s50, s54, {7 * 2048}')
    A('s_add_u32 s42, s42, s50')
    A(f's_add_u32 s42, s42, {L.YF}')
    acc = G.emit_gemm_main(A, 'y0', 1, 28, 0, 28672, True, '', '', NBUF=3)
    G.emit_epi_pack(A, acc, 1, 0)


def item_gemm2(A):
    A('s_and_b32 s52, s39, 1')
    A('s_lshr_b32 s53, s39, 2')
    A('s_bfe_u32 s54, s39, 0x10001')
    A('s_lshl_b32 s55, s53, 2')
    A('s_add_u32 s55, s55, s13')
    A(f's_mul_i32 s51, s52, {56 * 1024}')
    A(f's_mul_i32 s40, s55, {112 * 1024}')
    A('s_add_u32 s40, s40, s51')
    A(f's_add_u32 s40, s40, {L.HF}')
    A(f's_mul_i32 s41, s54, {7 * 112 * 1024}')
    A('s_add_u32 s41, s41, s51')
    A(f's_add_u32 s41, s41, {L.WDF}')
    A(f's_mul_i32 s42, s55, {14 * 4096}')
    A(f's_mul_i32 s50, s54, {7 * 4096}')
    A('s_add_u32 s42, s42, s50')
    A(f's_mul_i32 s50, s52, {L.PS1 - L.PS}')
    A('s_add_u32 s42, s42, s50')
    A(f's_add_u32 s42, s42, {L.PS}')
    A(f's_mul_i32 s43, s55, {32 * 896}')
    A(f's_mul_i32 s50, s54, {7 * 64}')
    A('s_add_u32 s43, s43, s50')
    A('s_cmp_eq_u32 s52, 0')
    A('s_cselect_b32 s43, s43, 0x40000000')
    acc = G.emit_gemm_main(A, 'g2', 1, 56, 0, 112 * 1024, False, '', ' sc1', NBUF=5)
    G.emit_epi_presum(A, acc, SRD_X)


PXS = 40960


def guard(A):
    A('s_add_u32 s33, s33, 1')
    A('s_cmp_gt_u32 s33, 0x200000')
    A('s_cbranch_scc1 L_bail')


def sent_check(A, tmp, regs):
    A(f'v_max3_u32 {v(tmp)}, {v(regs[0])}, {v(regs[1])}, {v(regs[2])}')
    i = 3
    while i + 1 < len(regs):
        A(f'v_max3_u32 {v(tmp)}, {v(tmp)}, {v(regs[i])}, {v(regs[i + 1])}')
        i += 2
    if i < len(regs):
        A(f'v_max_u32 {v(tmp)}, {v(tmp)}, {v(regs[i])}')
    A(f'v_cmp_eq_u32 vcc, -1, {v(tmp)}')


def pregate(A, sseg, vt):
    A(f's_lshl_b32 s38, {sseg}, 13')
    A(f's_add_u32 s38, s38, {L.MEMX}')
    A(f'v_mov_b32 {v(vt)}, 0')
    lab, ok = A.newlabel('PG'), A.newlabel('PGok')
    A.label(lab, keep=True)
    guard(A)
    A(f'buffer_load_dword {v(vt + 1)}, {v(vt)}, {SRD}, s38 offen sc1')
    A('s_waitcnt vmcnt(0)')
    A(f'v_cmp_eq_u32 vcc, -1, {v(vt + 1)}')
    A(f's_cbranch_vccz {ok}')
    A('s_sleep 24')
    A(f's_branch {lab}')
    A.label(ok, keep=True)


def item_punit(A, ld=' sc1', st=' sc1'):
    VL, VLIN, VPERM = G.VL, G.VLIN, G.VPERM
    XL, ML, PM = 0, 28672, 28672 + 8192
    SX, SM, KB, Q = 32, 48, 64, 96
    vMR, vTT, vPW, t0, t1, t2 = 5, 6, 7, 8, 9, 10
    A('s_lshr_b32 s53, s39, 2')
    A('s_and_b32 s54, s39, 3')
    A('s_lshl_b32 s55, s54, 2')
    A('s_add_u32 s55, s55, s13')
    A('s_lshl_b32 s50, s53, 4')
    A('s_add_u32 s50, s50, s55')
    A('s_mul_i32 s40, s50, 28672')
    A(f's_add_u32 s40, s40, {L.TF}')
    A('s_mul_i32 s41, s53, 28672')
    A('s_mul_i32 s50, s13, 7168')
    A('s_add_u32 s41, s41, s50')
    A(f's_add_u32 s41, s41, {L.XF}')
    A(f's_add_u32 s50, s50, {XL}')
    A('s_mov_b32 m0, s50')
    for c in range(7):
        if c == 4:
            A('s_add_u32 s50, s50, 4096')
            A('s_mov_b32 m0, s50')
            A('s_add_u32 s41, s41, 4096')
        A(f'buffer_load_dwordx4 {v(VLIN)}, {SRD}, s41 offen offset:{(c & 3) * 1024}{ld} lds')
    for ks in range(28):
        if ks and ks % 4 == 0:
            A('s_add_u32 s40, s40, 4096')
        A(f'buffer_load_dwordx4 {a(4 * ks, 4)}, {v(VLIN)}, {SRD}, s40 offen offset:{(ks & 3) * 1024}{ld}')
    for r in range(32):
        A(f'v_mov_b32 {v(SX + r)}, 0')
    A(f'v_lshrrev_b32 {v(t0)}, 5, {v(VL)}')
    A(f'v_and_b32 {v(t1)}, 7, {v(VL)}')
    A(f'v_lshlrev_b32 {v(vMR)}, 4, {v(t1)}')
    A(f'v_lshl_add_u32 {v(vMR)}, {v(t0)}, 7, {v(vMR)}')
    A(f'v_add_u32 {v(vMR)}, {ML}, {v(vMR)}')
    A(f'v_and_b32 {v(t1)}, 31, {v(VL)}')
    A(f'v_lshlrev_b32 {v(t0)}, 3, {v(t0)}')
    A(f'v_sub_u32 {v(vTT)}, {v(t1)}, {v(t0)}')
    A('s_waitcnt vmcnt(28)')
    A('s_barrier')

    def pass_(accr, addr, stride):
        D = 6
        for ks in range(D):
            A(f'ds_read_b128 {v(KB + 4 * (ks % 8), 4)}, {v(addr)} offset:{ks * stride}')
        for ks in range(28):
            A.auto(f'v_mfma_f32_32x32x16_bf16 {v(accr, 16)}, {v(KB + 4 * (ks % 8), 4)}, {a(4 * ks, 4)}, {v(accr, 16)}')
            if ks + D < 28:
                A(f'ds_read_b128 {v(KB + 4 * ((ks + D) % 8), 4)}, {v(addr)} offset:{(ks + D) * stride}')
    pass_(SX, VPERM, 1024)
    A(f'v_mov_b32 {v(t2)}, 0xf149f2ca')
    for r in range(16):
        A(f'v_cmp_le_i32 vcc, {16 * (r >> 3) + (r & 7)}, {v(vTT)}')
        A(f'v_cndmask_b32 {v(SX + r)}, {v(t2)}, {v(SX + r)}, vcc')
    A('s_max_u32 s50, s53, 1')
    A('s_sub_u32 s50, s50, 1')
    pregate(A, 's50', t0)
    A('s_lshl_b32 s41, s53, 13')
    A('s_lshl_b32 s50, s13, 11')
    A('s_add_u32 s41, s41, s50')
    A(f's_add_u32 s41, s41, {L.MEMX}')
    A('s_cmp_eq_u32 s13, 3')
    A('s_cselect_b32 s51, 0, 1024')
    A('s_add_u32 s51, s51, s41')
    A(f'v_add_u32 {v(t0)}, s50, {v(VLIN)}')
    A(f'v_add_u32 {v(t0)}, {ML}, {v(t0)}')
    poll = A.newlabel('P_poll')
    A.label(poll, keep=True)
    guard(A)
    A(f'buffer_load_dwordx4 {v(Q, 4)}, {v(VLIN)}, {SRD}, s41 offen sc1')
    A(f'buffer_load_dwordx4 {v(Q + 4, 4)}, {v(VLIN)}, {SRD}, s51 offen sc1')
    A('s_waitcnt vmcnt(0)')
    sent_check(A, t1, [Q + i for i in range(8)])
    ok = A.newlabel('P_ok')
    A(f's_cbranch_vccz {ok}')
    A('s_sleep 4')
    A(f's_branch {poll}')
    A.label(ok, keep=True)
    A(f'ds_write_b128 {v(t0)}, {v(Q, 4)}')
    A(f'ds_write_b128 {v(t0)}, {v(Q + 4, 4)} offset:1024')
    A('s_waitcnt lgkmcnt(0)')
    A('s_barrier')
    pass_(SM, vMR, 256)
    vals = [SX + r for r in range(16)] + [SM + r for r in range(4)]
    m, m2, l_, l2 = 11, 12, 13, 14
    A(f'v_max3_f32 {v(m)}, {v(vals[0])}, {v(vals[1])}, {v(vals[2])}')
    for i in range(3, 19, 2):
        A(f'v_max3_f32 {v(m)}, {v(m)}, {v(vals[i])}, {v(vals[i + 1])}')
    A(f'v_max_f32 {v(m)}, {v(m)}, {v(vals[19])}')
    A(f'v_mov_b32 {v(m2)}, {v(m)}')
    A(f'v_permlane32_swap_b32 {v(m)}, {v(m2)}')
    A(f'v_max_f32 {v(m)}, {v(m)}, {v(m2)}')
    for x in vals:
        A(f'v_sub_f32 {v(x)}, {v(x)}, {v(m)}')
    for x in vals:
        A(f'v_exp_f32 {v(x)}, {v(x)}')
    A(f'v_add_f32 {v(l_)}, {v(vals[0])}, {v(vals[1])}')
    A(f'v_add_f32 {v(l2)}, {v(vals[2])}, {v(vals[3])}')
    for i in range(4, 20, 2):
        A(f'v_add_f32 {v(l_)}, {v(l_)}, {v(vals[i])}')
        A(f'v_add_f32 {v(l2)}, {v(l2)}, {v(vals[i + 1])}')
    A(f'v_add_f32 {v(l_)}, {v(l_)}, {v(l2)}')
    A(f'v_mov_b32 {v(l2)}, {v(l_)}')
    A(f'v_permlane32_swap_b32 {v(l_)}, {v(l2)}')
    A(f'v_add_f32 {v(l_)}, {v(l_)}, {v(l2)}')
    A(f'v_rcp_f32 {v(l_)}, {v(l_)}')
    for x in vals:
        A(f'v_mul_f32 {v(x)}, {v(x)}, {v(l_)}')
    for i in range(10):
        A(f'v_cvt_pk_bf16_f32 {v(Q + i)}, {v(vals[2 * i])}, {v(vals[2 * i + 1])}')
    A(f's_mul_i32 s42, s53, {PXS}')
    A(f's_add_u32 s42, s42, {L.PX}')
    A('s_lshl_b32 s50, s55, 11')
    A('s_add_u32 s50, s50, s42')
    for ph in range(2):
        A(f'buffer_store_dwordx4 {v(Q + 4 * ph, 4)}, {v(VLIN)}, {SRD}, s50 offen offset:{ph * 1024}{st}')
    A('s_and_b32 s50, s13, 1')
    A('s_lshl_b32 s50, s50, 10')
    A('s_lshr_b32 s51, s13, 1')
    A('s_lshl_b32 s51, s51, 2')
    A('s_add_u32 s51, s51, s50')
    A(f's_add_u32 s51, s51, {PM}')
    A(f'v_add_u32 {v(vPW)}, s51, {v(VLIN)}')
    A(f'ds_write2_b32 {v(vPW)}, {v(Q + 8)}, {v(Q + 9)} offset0:0 offset1:2')
    A('s_waitcnt lgkmcnt(0)')
    A('s_barrier')
    done = A.newlabel('P_done')
    A('s_cmp_ge_u32 s13, 2')
    A(f's_cbranch_scc1 {done}')
    A(f'ds_read_b128 {v(Q + 12, 4)}, {v(vPW)}')
    A('s_lshl_b32 s51, s54, 11')
    A('s_add_u32 s50, s50, s51')
    A('s_add_u32 s50, s50, s42')
    A(f's_add_u32 s50, s50, 32768')
    A('s_waitcnt lgkmcnt(0)')
    A(f'buffer_store_dwordx4 {v(Q + 12, 4)}, {v(VLIN)}, {SRD}, s50 offen{st}')
    A.label(done, keep=True)


def item_pvunit(A, wait_px=None, ld=' sc1'):
    VL, VLIN = G.VL, G.VLIN
    ACC, YMR, RR = 32, 48, 64
    vY, vYM, vO, t0, t1, t2 = 5, 6, 7, 8, 9, 10
    A('s_mul_hi_u32 s53, s39, 0x24924925')
    A('s_mul_i32 s50, s53, 7')
    A('s_sub_u32 s54, s39, s50')
    A('s_lshl_b32 s54, s54, 1')
    A('s_and_b32 s50, s13, 1')
    A('s_add_u32 s54, s54, s50')
    A('s_lshr_b32 s55, s13, 1')
    A(f'v_lshrrev_b32 {v(t0)}, 4, {v(G.VPERM)}')
    A(f'v_and_b32 {v(t0)}, 31, {v(t0)}')
    A(f'v_and_b32 {v(t1)}, 1, {v(t0)}')
    A(f'v_lshrrev_b32 {v(t0)}, 1, {v(t0)}')
    A(f'v_lshrrev_b32 {v(t2)}, 5, {v(VL)}')
    A(f'v_lshlrev_b32 {v(vY)}, 4, {v(t0)}')
    A(f'v_lshl_add_u32 {v(vYM)}, {v(t1)}, 10, {v(vY)}')
    A(f'v_lshl_add_u32 {v(vYM)}, {v(t2)}, 8, {v(vYM)}')
    A(f'v_lshl_add_u32 {v(vY)}, {v(t1)}, 8, {v(vY)}')
    A(f'v_lshl_add_u32 {v(vY)}, {v(t2)}, 9, {v(vY)}')
    A(f'v_and_b32 {v(t0)}, 31, {v(VL)}')
    A(f'v_mul_u32_u24 {v(vO)}, 896, {v(t0)}')
    A(f'v_lshl_add_u32 {v(vO)}, {v(t2)}, 4, {v(vO)}')
    A('s_lshl_b32 s50, s53, 4')
    A('s_lshl_b32 s51, s55, 3')
    A('s_add_u32 s50, s50, s51')
    A('s_mul_i32 s50, s50, 14')
    A('s_add_u32 s50, s50, s54')
    A('s_lshl_b32 s40, s50, 11')
    A(f's_add_u32 s40, s40, {L.YF}')
    for hh in range(8):
        for ph in range(2):
            A(f'buffer_load_dwordx4 {a((hh * 2 + ph) * 4, 4)}, {v(vY)}, {SRD}, s40 offen offset:{ph * 1024}{ld}')
        A(f's_add_u32 s40, s40, {14 * 2048}')
    A('s_mul_i32 s41, s53, 14')
    A('s_add_u32 s41, s41, s54')
    A('s_lshl_b32 s42, s41, 12')
    A(f's_mul_i32 s50, s55, {L.PS1 - L.PS}')
    A('s_add_u32 s42, s42, s50')
    A(f's_add_u32 s42, s42, {L.PS}')
    for q in range(4):
        A(f'buffer_load_dwordx4 {v(ACC + 4 * q, 4)}, {v(VLIN)}, {SRD}, s42 offen offset:{q * 1024}{ld}')
    A('s_lshl_b32 s41, s41, 2')
    A('s_lshl_b32 s50, s55, 1')
    A('s_add_u32 s41, s41, s50')
    A('s_lshl_b32 s41, s41, 11')
    A(f's_add_u32 s41, s41, {L.YM}')
    pregate(A, 's53', t0)
    poll = A.newlabel('PV_poll')
    A.label(poll, keep=True)
    guard(A)
    for wq in range(2):
        for u in range(2):
            A(f'buffer_load_dwordx4 {v(YMR + (wq * 2 + u) * 4, 4)}, {v(vYM)}, {SRD}, s41 offen offset:{wq * 2048 + u * 512} sc1')
    A('s_waitcnt vmcnt(0)')
    sent_check(A, t0, [YMR + i for i in range(16)])
    ok = A.newlabel('PV_ok')
    A(f's_cbranch_vccz {ok}')
    A('s_sleep 4')
    A(f's_branch {poll}')
    A.label(ok, keep=True)
    if wait_px:
        wait_px(A)
    A(f's_mul_i32 s42, s53, {PXS}')
    A(f's_add_u32 s42, s42, {L.PX}')
    A('s_lshl_b32 s50, s55, 14')
    A('s_add_u32 s40, s42, s50')
    for k in range(16):
        if k and k % 4 == 0:
            A('s_add_u32 s40, s40, 4096')
        A(f'buffer_load_dwordx4 {a(64 + 4 * k, 4)}, {v(VLIN)}, {SRD}, s40 offen offset:{(k & 3) * 1024}{ld}')
    A('s_lshl_b32 s50, s55, 12')
    A('s_add_u32 s40, s42, s50')
    A('s_add_u32 s40, s40, 32768')
    for k in range(4):
        A(f'buffer_load_dwordx4 {a(128 + 4 * k, 4)}, {v(VLIN)}, {SRD}, s40 offen offset:{k * 1024}{ld}')
    for k in range(16):
        A.auto(f'v_mfma_f32_32x32x16_bf16 {v(ACC, 16)}, {a(4 * k, 4)}, {a(64 + 4 * k, 4)}, {v(ACC, 16)}')
    for k in range(4):
        A.auto(f'v_mfma_f32_32x32x16_bf16 {v(ACC, 16)}, {v(YMR + 4 * k, 4)}, {a(128 + 4 * k, 4)}, {v(ACC, 16)}')
    A('s_and_b32 s50, s13, 1')
    A('s_lshl_b32 s50, s50, 12')
    A(f'v_add_u32 {v(t0)}, s50, {v(VLIN)}')
    lo = A.newlabel('PV_lo')
    done = A.newlabel('PV_done')
    A('s_cmp_eq_u32 s55, 0')
    A(f's_cbranch_scc1 {lo}')
    for q in range(4):
        A(f'ds_write_b128 {v(t0)}, {v(ACC + 4 * q, 4)} offset:{q * 1024}')
    A('s_waitcnt lgkmcnt(0)')
    A('s_barrier')
    A(f's_branch {done}')
    A.label(lo)
    A('s_barrier')
    for q in range(4):
        A(f'ds_read_b128 {v(RR + 4 * q, 4)}, {v(t0)} offset:{q * 1024}')
    A(f's_mul_i32 s50, s53, {32 * 896}')
    A('s_lshl_b32 s51, s54, 6')
    A('s_add_u32 s50, s50, s51')
    A('s_nop 7')
    for r in range(8):
        A.auto(f'v_pk_add_f32 {v(ACC + 2 * r, 2)}, {v(ACC + 2 * r, 2)}, {v(RR + 2 * r, 2)}')
    for i in range(8):
        A(f'v_cvt_pk_bf16_f32 {v(RR + i)}, {v(ACC + 2 * i)}, {v(ACC + 2 * i + 1)}')
    for ph in range(2):
        A(f'buffer_store_dwordx4 {v(RR + 4 * ph, 4)}, {v(vO)}, {SRD_OUT}, s50 offen offset:{ph * 32}')
    A.label(done, keep=True)
```

```python
from asmdsl import v, a, s
import layout as L
import gemm as G
import chain

SRD = 's[8:11]'
import struct
CSCALE = struct.unpack('<I', struct.pack('<f', 1.4426950408889634 / 16.0))[0]


def srd(A, d, lo, hi, nbytes):
    A(f's_mov_b32 s{d}, s{lo}')
    A(f's_and_b32 s{d + 1}, s{hi}, 0xffff')
    A(f's_mov_b32 s{d + 2}, {nbytes}')
    A(f's_mov_b32 s{d + 3}, 0x20000')


def item_ab(A, mat, st=''):
    VL, VLIN, VPERM = G.VL, G.VLIN, G.VPERM
    acc = lambda tb, nb: G.ACC0 + 16 * (tb * 7 + nb)
    vOwn, vSh, vRd, vSt, t0, t1 = 5, 6, 7, 24, 8, 9
    A('s_lshr_b32 s53, s39, 2')
    A('s_bfe_u32 s54, s39, 0x10001')
    A('s_and_b32 s55, s39, 1')
    A(f'v_lshrrev_b32 {v(t0)}, 4, {v(VPERM)}')
    A(f'v_and_b32 {v(t0)}, 31, {v(t0)}')
    A(f'v_lshlrev_b32 {v(vOwn)}, 13, {v(t0)}')
    A(f'v_lshrrev_b32 {v(t1)}, 5, {v(VL)}')
    A(f'v_lshl_add_u32 {v(vOwn)}, {v(t1)}, 4, {v(vOwn)}')
    A('s_lshl_b32 s44, s54, 3')
    A('s_lshl_b32 s50, s13, 1')
    A('s_add_u32 s44, s44, s50')
    for tb in range(2):
        A(f's_add_u32 s50, s44, {tb}')
        A('s_min_u32 s50, s50, 13')
        A('s_lshl_b32 s50, s50, 18')
        A('s_lshl_b32 s51, s53, 9')
        A(f's_add_u32 s{45 + tb}, s50, s51')
    if mat == 0:
        A(f'v_and_b32 {v(t0)}, 31, {v(VL)}')
        A(f'v_lshlrev_b32 {v(vSh)}, 13, {v(t0)}')
        A(f'v_lshl_add_u32 {v(vSh)}, {v(t1)}, 4, {v(vSh)}')
        A(f's_mul_i32 s47, s55, {7 << 18}')
        A('s_lshl_b32 s51, s53, 9')
        A('s_add_u32 s47, s47, s51')
        A('s_lshl_b32 s51, s13, 5')
        A('s_add_u32 s47, s47, s51')
        nb_step, c_step = 1 << 18, 128
        A(f'v_mov_b32 {v(vRd)}, {v(VLIN)}')
        A(f'v_mov_b32 {v(vSt)}, {v(VLIN)}')
    else:
        A(f'v_lshrrev_b32 {v(t0)}, 2, {v(VL)}')
        A(f'v_mul_u32_u24 {v(vSh)}, 896, {v(t0)}')
        A(f'v_and_b32 {v(t0)}, 3, {v(VL)}')
        A(f'v_lshl_add_u32 {v(vSh)}, {v(t0)}, 4, {v(vSh)}')
        A(f's_mul_i32 s47, s53, {256 * 896}')
        A(f's_mul_i32 s51, s55, {7 * 64}')
        A('s_add_u32 s47, s47, s51')
        A(f's_mul_i32 s51, s13, {16 * 896}')
        A('s_add_u32 s47, s47, s51')
        nb_step, c_step = 64, 64 * 896
        tr_addr(A, vRd, VL, t0)
        A(f'v_and_b32 {v(t0)}, 1, {v(VL)}')
        A(f'v_lshlrev_b32 {v(vSt)}, 4, {v(t0)}')
        A(f'v_bfe_u32 {v(t0)}, {v(VL)}, 1, 4')
        A(f'v_add_u32 {v(vSt)}, {v(vSt)}, {v(t0)}')
        A(f'v_lshl_add_u32 {v(vSt)}, {v(t1)}, 5, {v(vSt)}')
        A(f'v_lshlrev_b32 {v(vSt)}, 4, {v(vSt)}')
    A(f's_mul_i32 s48, s13, 7168')
    for c in range(4):
        for nb in range(7):
            A(f's_add_u32 s50, s48, {c * 4 * 7168 + nb * 1024}')
            A('s_mov_b32 m0, s50')
            A(f's_add_u32 s51, s47, {c * c_step + nb * nb_step}')
            A(f'buffer_load_dwordx4 {v(vSh)}, s[72:75], s51 offen lds')
        for kq in range(4):
            ks = 4 * c + kq
            for tb in range(2):
                A(f'buffer_load_dwordx4 {a((ks * 2 + tb) * 4, 4)}, {v(vOwn)}, s[68:71], s{45 + tb} offen offset:{ks * 32}')
    for r in range(224):
        A(f'v_mov_b32 {v(G.ACC0 + r)}, 0')
    vRd2 = 25
    A(f'v_add_u32 {v(vRd2)}, {8 * 7168}, {v(vRd)}')
    WB = lambda par, nb: 128 + (par * 7 + nb) * 4

    def rd(ks, par):
        base = v(vRd) if ks < 8 else v(vRd2)
        o = (ks & 7) * 7168
        out = []
        for nb in range(7):
            if mat == 0:
                out.append([f'ds_read_b128 {a(WB(par, nb), 4)}, {base} offset:{o + nb * 1024}'])
            else:
                out.append([f'ds_read_b64_tr_b16 {a(WB(par, nb), 2)}, {base} offset:{o + nb * 1024}',
                            f'ds_read_b64_tr_b16 {a(WB(par, nb) + 2, 2)}, {base} offset:{o + nb * 1024 + 256}'])
        return out
    for c in range(4):
        A(f's_waitcnt vmcnt({45 - 15 * c})')
        A('s_barrier')
        for g in rd(4 * c, 0):
            for x in g:
                A(x)
        for kq in range(4):
            ks = 4 * c + kq
            par = kq & 1
            nxt = rd(ks + 1, par ^ 1) if kq < 3 else []
            for nb in range(7):
                for tb in range(2):
                    A.auto(f'v_mfma_f32_32x32x16_bf16 {v(acc(tb, nb), 16)}, {a((ks * 2 + tb) * 4, 4)}, {a(WB(par, nb), 4)}, {v(acc(tb, nb), 16)}')
                    if tb == 0 and nxt:
                        for x in nxt.pop(0):
                            A(x)
    A('s_mul_i32 s42, s53, 14')
    A('s_mul_i32 s50, s55, 7')
    A('s_add_u32 s42, s42, s50')
    A('s_mul_i32 s42, s42, 28672')
    A(f's_add_u32 s42, s42, {L.WF + (L.NB_A if mat == 0 else L.NB_B) * 28672}')
    A(f's_mov_b32 s52, {CSCALE}')
    n = 0
    for tb in range(2):
        A(f's_add_u32 s50, s44, {tb}')
        A('s_lshl_b32 s51, s50, 11')
        A('s_add_u32 s51, s51, s42')
        A('s_cmp_gt_u32 s50, 13')
        A('s_cselect_b32 s51, 0x40000000, s51')
        for nb in range(7):
            for ph in range(2):
                t = 8 + 4 * (n % 4)
                n += 1
                for j in range(4):
                    r = acc(tb, nb) + 8 * ph + 2 * j
                    if mat == 0:
                        A(f'v_mul_f32 {v(r)}, s52, {v(r)}')
                        A(f'v_mul_f32 {v(r + 1)}, s52, {v(r + 1)}')
                    A(f'v_cvt_pk_bf16_f32 {v(t + j)}, {v(r)}, {v(r + 1)}')
                A(f'buffer_store_dwordx4 {v(t, 4)}, {v(vSt)}, {SRD}, s51 offen offset:{ph * 1024}{st}')
            A('s_add_u32 s51, s51, 28672')


def tr_addr(A, dst, VL, t0):
    A(f'v_lshrrev_b32 {v(t0)}, 5, {v(VL)}')
    A(f'v_lshlrev_b32 {v(dst)}, 9, {v(t0)}')
    A(f'v_bfe_u32 {v(t0)}, {v(VL)}, 2, 2')
    A(f'v_lshl_add_u32 {v(dst)}, {v(t0)}, 6, {v(dst)}')
    A(f'v_bfe_u32 {v(t0)}, {v(VL)}, 4, 1')
    A(f'v_lshl_add_u32 {v(dst)}, {v(t0)}, 5, {v(dst)}')
    A(f'v_and_b32 {v(t0)}, 3, {v(VL)}')
    A(f'v_lshl_add_u32 {v(dst)}, {v(t0)}, 3, {v(dst)}')


def rne_bf16(A, r, t):
    A(f'v_cvt_pk_bf16_f32 {v(r)}, {v(r)}, {v(r)}')
    A(f'v_lshlrev_b32 {v(r)}, 16, {v(r)}')


def wave_ln(A, srdx, st=''):
    VL = G.VL
    vA, vS, t0, t1, sm, sq = 5, 6, 7, 8, 9, 10
    X, F = 16, 48
    A(f'v_lshrrev_b32 {v(t0)}, 3, {v(VL)}')
    A(f'v_and_b32 {v(t1)}, 7, {v(VL)}')
    A(f'v_mul_u32_u24 {v(vA)}, 896, {v(t0)}')
    A(f'v_lshl_add_u32 {v(vA)}, {v(t1)}, 4, {v(vA)}')
    A(f'v_lshlrev_b32 {v(vS)}, 4, {v(t0)}')
    A(f'v_lshl_add_u32 {v(vS)}, {v(t1)}, 9, {v(vS)}')
    A(f's_mul_i32 s50, s39, {8 * 896}')
    for i in range(7):
        A(f'buffer_load_dwordx4 {v(X + 4 * i, 4)}, {v(vA)}, {srdx}, s50 offen offset:{i * 128}')
    for i in range(28):
        A.auto(f'v_lshlrev_b32 {v(F + 2 * i)}, 16, {v(X + i)}')
        A(f'v_and_b32 {v(F + 2 * i + 1)}, 0xffff0000, {v(X + i)}')

    def red8(r):
        for x in (1, 2):
            pat = '[1,0,3,2]' if x == 1 else '[2,3,0,1]'
            A(f'v_add_f32_dpp {v(r)}, {v(r)}, {v(r)} quad_perm:{pat} row_mask:0xf bank_mask:0xf')
        A(f'v_add_f32_dpp {v(r)}, {v(r)}, {v(r)} row_half_mirror row_mask:0xf bank_mask:0xf')
    A(f'v_add_f32 {v(sm)}, {v(F)}, {v(F + 1)}')
    for i in range(2, 56):
        A(f'v_add_f32 {v(sm)}, {v(sm)}, {v(F + i)}')
    red8(sm)
    inv = struct.unpack('<I', struct.pack('<f', 1.0 / 448.0))[0]
    A(f'v_mul_f32 {v(sm)}, {inv:#x}, {v(sm)}')
    A(f'v_mov_b32 {v(sq)}, 0')
    for i in range(56):
        A(f'v_sub_f32 {v(t0)}, {v(F + i)}, {v(sm)}')
        A(f'v_fmac_f32 {v(sq)}, {v(t0)}, {v(t0)}')
    red8(sq)
    A(f'v_mul_f32 {v(sq)}, {inv:#x}, {v(sq)}')
    rne_bf16(A, sm, t0)
    rne_bf16(A, sq, t0)
    eps = struct.unpack('<I', struct.pack('<f', 1e-5))[0]
    A(f'v_add_f32 {v(sq)}, {eps:#x}, {v(sq)}')
    rne_bf16(A, sq, t0)
    A(f'v_sqrt_f32 {v(sq)}, {v(sq)}')
    rne_bf16(A, sq, t0)
    A(f'v_rcp_f32 {v(sq)}, {v(sq)}')
    for i in range(28):
        r = F + 2 * i
        A(f'v_sub_f32 {v(r)}, {v(r)}, {v(sm)}')
        A(f'v_sub_f32 {v(r + 1)}, {v(r + 1)}, {v(sm)}')
        A(f'v_cvt_pk_bf16_f32 {v(t0)}, {v(r)}, {v(r + 1)}')
        A(f'v_lshlrev_b32 {v(r)}, 16, {v(t0)}')
        A(f'v_and_b32 {v(r + 1)}, 0xffff0000, {v(t0)}')
        A(f'v_mul_f32 {v(r)}, {v(r)}, {v(sq)}')
        A(f'v_mul_f32 {v(r + 1)}, {v(r + 1)}, {v(sq)}')
        A(f'v_cvt_pk_bf16_f32 {v(X + i)}, {v(r)}, {v(r + 1)}')
    A('s_lshr_b32 s50, s39, 2')
    A('s_mul_i32 s50, s50, 28672')
    A('s_and_b32 s51, s39, 3')
    A('s_lshl_b32 s51, s51, 7')
    A('s_add_u32 s50, s50, s51')
    A(f's_add_u32 s50, s50, {L.XF}')
    for i in range(7):
        A(f'buffer_store_dwordx4 {v(X + 4 * i, 4)}, {v(vS)}, {SRD}, s50 offen{st}')
        A('s_add_u32 s50, s50, 4096')


def wave_pack(A, which, nfr, st=''):
    VL, VLIN = G.VL, G.VLIN
    vA, vW, vR, t0 = 5, 6, 7, 8
    D = 16
    rowb = 3584 if which == 'GU' else 896
    A(f'v_lshrrev_b32 {v(t0)}, 2, {v(VL)}')
    A(f'v_mul_u32_u24 {v(vA)}, {rowb}, {v(t0)}')
    A(f'v_and_b32 {v(t0)}, {1 if which == "GU" else 3}, {v(VL)}')
    A(f'v_lshl_add_u32 {v(vA)}, {v(t0)}, 4, {v(vA)}')
    A(f's_mul_i32 s48, s13, {nfr * 1024}')
    A(f'v_add_u32 {v(vW)}, s48, {v(VLIN)}')
    tr_addr(A, vR, VL, t0)
    A(f'v_add_u32 {v(vR)}, s48, {v(vR)}')
    sh = 2 if which == 'GU' else 4
    A(f's_lshr_b32 s53, s39, {sh}')
    A(f's_and_b32 s54, s39, {(1 << sh) - 1}')
    A(f's_mul_i32 s50, s54, {nfr * 16 * rowb}')
    A(f's_lshl_b32 s51, s53, {5 if which == "GU" else 6}')
    A('s_add_u32 s50, s50, s51')
    for k in range(nfr):
        if which == 'GU':
            A('s_mov_b32 exec_lo, 0x33333333')
            A('s_mov_b32 exec_hi, 0x33333333')
            A(f'buffer_load_dwordx4 {v(D + 4 * k, 4)}, {v(vA)}, s[68:71], s50 offen')
            A('s_mov_b32 exec_lo, 0xcccccccc')
            A('s_mov_b32 exec_hi, 0xcccccccc')
            A(f'buffer_load_dwordx4 {v(D + 4 * k, 4)}, {v(vA)}, s[72:75], s50 offen')
        else:
            A(f'buffer_load_dwordx4 {v(D + 4 * k, 4)}, {v(vA)}, s[76:79], s50 offen')
        A(f's_add_u32 s50, s50, {16 * rowb}')
    A('s_mov_b64 exec, -1')
    if which == 'GU':
        A('s_mul_i32 s50, s53, 28672')
        A(f's_add_u32 s50, s50, {L.WF + L.NB_GU * 28672}')
    else:
        A(f's_mul_i32 s50, s53, {112 * 1024}')
        A(f's_add_u32 s50, s50, {L.WDF}')
    A(f's_mul_i32 s51, s54, {nfr * 1024}')
    A('s_add_u32 s50, s50, s51')
    for k in range(nfr):
        A.auto(f'ds_write_b128 {v(vW)}, {v(D + 4 * k, 4)} offset:{k * 1024}')
        A(f'ds_read_b64_tr_b16 {v(D + 4 * k, 2)}, {v(vR)} offset:{k * 1024}')
        A(f'ds_read_b64_tr_b16 {v(D + 4 * k + 2, 2)}, {v(vR)} offset:{k * 1024 + 256}')
    for k in range(nfr):
        if k == 4:
            A('s_add_u32 s50, s50, 4096')
        A.auto(f'buffer_store_dwordx4 {v(D + 4 * k, 4)}, {v(VLIN)}, {SRD}, s50 offen offset:{(k & 3) * 1024}{st}')


def wave_fill(A, base, nkb_total, nwaves, val):
    per = (nkb_total + nwaves - 1) // nwaves
    for r in range(4):
        A(f'v_mov_b32 {v(12 + r)}, {val}')
    A(f's_mul_i32 s50, s39, {per}')
    A(f's_add_u32 s51, s50, {per}')
    A(f's_min_u32 s51, s51, {nkb_total}')
    lab, end = A.newlabel('fill'), A.newlabel('fille')
    A.label(lab)
    A('s_cmp_ge_u32 s50, s51')
    A(f's_cbranch_scc1 {end}')
    A('s_lshl_b32 s52, s50, 10')
    A(f's_add_u32 s52, s52, {base}')
    A(f'buffer_store_dwordx4 v[12:15], {v(G.VLIN)}, {SRD}, s52 offen')
    A('s_add_u32 s50, s50, 1')
    A(f's_branch {lab}')
    A.label(end)


def wave_mem0(A, srdm):
    VL, VLIN = G.VL, G.VLIN
    vA, vB, t0 = 5, 6, 7
    A(f'v_and_b32 {v(t0)}, 7, {v(VL)}')
    A(f'v_mul_u32_u24 {v(vA)}, 896, {v(t0)}')
    A(f'v_lshrrev_b32 {v(t0)}, 4, {v(VL)}')
    A(f'v_lshl_add_u32 {v(vB)}, {v(t0)}, 5, {v(vA)}')
    A(f'v_bfe_u32 {v(t0)}, {v(VL)}, 3, 1')
    A(f'v_lshl_add_u32 {v(vA)}, {v(t0)}, 4, {v(vB)}')
    A(f'v_lshl_add_u32 {v(vB)}, {v(t0)}, 2, {v(vB)}')
    A('s_lshl_b32 s50, s39, 7')
    A(f'buffer_load_dwordx4 v[12:15], {v(vA)}, {srdm}, s50 offen')
    for q in range(4):
        A(f'buffer_load_dword {v(16 + q)}, {v(vB)}, {srdm}, s50 offen offset:{8 * q}')
    A(f'v_mov_b32 {v(t0)}, -2')
    A('s_waitcnt vmcnt(0)')
    for r in range(12, 20):
        A(f'v_min_u32 {v(r)}, {v(r)}, {v(t0)}')
    A('s_lshl_b32 s50, s39, 10')
    A(f's_add_u32 s51, s50, {L.MEMX}')
    A(f's_add_u32 s50, s50, {L.MEMA}')
    A(f'buffer_store_dwordx4 v[12:15], {v(VLIN)}, {SRD}, s51 offen')
    A(f'buffer_store_dwordx4 v[16:19], {v(VLIN)}, {SRD}, s50 offen')


def emit_prep(A, cfg):
    A('s_load_dwordx16 s[80:95], s[0:1], 8')
    A('s_load_dwordx4 s[96:99], s[0:1], 72')
    G.emit_common_regs(A)
    A('s_waitcnt lgkmcnt(0)')
    A('s_cmp_ge_u32 s2, 128')
    A('s_cbranch_scc1 prep_misc')
    A('s_and_b32 s39, s2, 63')
    A('s_cmp_ge_u32 s2, 64')
    A('s_cbranch_scc1 prep_B')
    srd(A, 68, 82, 83, 448 * 8192)
    srd(A, 72, 84, 85, 448 * 8192)
    item_ab(A, 0)
    A('s_waitcnt vmcnt(0)')
    chain.tl(A, cfg, 's2', 1, 24, 0xc000)
    A('s_endpgm')
    A.label('prep_B')
    A.forget()
    srd(A, 68, 86, 87, 448 * 8192)
    srd(A, 72, 88, 89, 4096 * 896)
    item_ab(A, 1)
    A('s_waitcnt vmcnt(0)')
    chain.tl(A, cfg, 's2', 1, 24, 0xc000)
    A('s_endpgm')
    A.label('prep_misc')
    A.forget()
    srd(A, 68, 94, 95, 448 * 3584)
    srd(A, 72, 96, 97, 448 * 3584)
    srd(A, 76, 98, 99, 1792 * 896)
    srd(A, 84, 80, 81, 8 * 896)
    A('s_sub_u32 s43, s2, 128')
    A('s_lshl_b32 s43, s43, 2')
    A('s_add_u32 s43, s43, s13')
    A('s_cmp_ge_u32 s43, 256')
    A('s_cbranch_scc1 prep_noln')
    A('s_mov_b32 s39, s43')
    wave_ln(A, 's[56:59]')
    A('s_branch prep_gu')
    A.label('prep_noln')
    A.forget()
    A('s_sub_u32 s39, s43, 256')
    A('s_cmp_ge_u32 s39, 224')
    A('s_cbranch_scc1 prep_nowd')
    wave_pack(A, 'WD', 7)
    A('s_branch prep_gu')
    A.label('prep_nowd')
    A.forget()
    A('s_sub_u32 s39, s39, 224')
    A('s_cmp_ge_u32 s39, 7')
    A('s_cbranch_scc1 prep_gu')
    wave_mem0(A, 's[84:87]')
    A.label('prep_gu')
    A.forget()
    A('s_waitcnt vmcnt(0) lgkmcnt(0)')
    chain.tl(A, cfg, 's2', 2, 24, 0xc000)
    A('s_cmp_ge_u32 s43, 448')
    A('s_cbranch_scc1 prep_fill')
    A('s_mov_b32 s39, s43')
    wave_pack(A, 'GU', 7)
    A.label('prep_fill')
    A.forget()
    A('s_waitcnt vmcnt(0) lgkmcnt(0)')
    chain.tl(A, cfg, 's2', 3, 24, 0xc000)
    A('s_mov_b32 s39, s43')
    wave_fill(A, L.MEMA + 8192, 504, 512, -1)
    wave_fill(A, L.MEMX + 8192, 504, 512, -1)
    wave_fill(A, L.PBUF, 1024, 512, -1)
    wave_fill(A, L.YM, 64 * 112, 512, -1)
    wave_fill(A, L.FLAGS, 64, 512, 0)
    A('s_waitcnt vmcnt(0)')
    chain.tl(A, cfg, 's2', 1, 24, 0xc000)
```

```python
import sys
from asmdsl import Asm, v, a, s
import layout as L
import gemm as G
import items as I
import prep
import chain
from build_multi import KD, srd, entry, leave

SRD = 's[8:11]'
Q_Y, Q_GU, Q_T1, Q_G2, Q_T2, Q_ATT = 0, 256, 384, 512, 544, 672
Q_END = Q_ATT + 64 * 11
F_Y, F_GU, F_T, F_G2, F_P, F_Y0 = 0, 256, 384, 640, 704, 1408
LDSW = 0x24f00


def emit_main(A, cfg):
    XC = cfg.get('xcc', 0)
    A('s_getreg_b32 s12, hwreg(HW_REG_XCC_ID)')
    A('s_and_b32 s12, s12, 15')
    A(f'v_mov_b32 v28, {LDSW}')
    A('v_mov_b32 v31, 0')
    A('v_mov_b32 v29, 32')
    A('s_add_u32 s75, s12, 6')
    A('s_mul_hi_u32 s38, s75, 0x24924925')
    A('s_mul_i32 s38, s38, 7')
    A('s_sub_u32 s75, s75, s38')
    A('s_mov_b32 s76, 7')
    A(f's_cmp_eq_u32 s12, {XC}')
    A('s_cbranch_scc0 W_first')
    A.label('CLAIM')
    A.forget()
    A('s_cmp_lg_u32 s13, 0')
    A('s_cbranch_scc1 CL_w')
    A('s_mov_b64 exec, 1')
    A('v_mov_b32 v30, 1')
    A('global_atomic_add v30, v31, v30, s[4:5] sc0')
    A('s_waitcnt vmcnt(0)')
    A('ds_write_b32 v28, v30')
    A('s_waitcnt lgkmcnt(0)')
    A('s_mov_b64 exec, -1')
    A.label('CL_w')
    A('s_barrier')
    A('ds_read_b32 v30, v28')
    A('s_waitcnt lgkmcnt(0)')
    A('v_readfirstlane_b32 s14, v30')
    A('s_barrier')
    A('v_mov_b32 v29, 32')
    A('s_cmp_ge_u32 s14, 32')
    A('s_cbranch_scc1 W_first')
    A('s_cmp_lg_u32 s13, 0')
    A('s_cbranch_scc1 CL_r')
    A('s_mov_b64 exec, 1')
    A('s_lshl_b32 s38, 1, s12')
    A('v_mov_b32 v30, s38')
    A('global_atomic_or v30, v31, v30, s[4:5] offset:8 sc0')
    A('s_waitcnt vmcnt(0)')
    A('v_mov_b32 v30, 1')
    A('global_atomic_add v31, v30, s[4:5] offset:12')
    A('s_mov_b64 exec, -1')
    A.label('CL_r')
    A.forget()
    A('s_cmp_ge_u32 s14, 30')
    A('s_cbranch_scc1 L_roleC')
    A('s_cmp_ge_u32 s14, 16')
    A('s_cbranch_scc1 L_roleB')
    chain.emit_A(A, cfg)
    A.label('L_roleB')
    A.forget()
    A('s_sub_u32 s14, s14, 16')
    chain.emit_B(A, cfg)
    A.label('L_roleC')
    A.forget()
    A('s_sub_u32 s14, s14, 30')
    chain.emit_C(A, cfg)
    A.label('L_bail')
    A('s_endpgm')

    def dequeue():
        A('s_lshl_b32 s38, s75, 2')
        A('v_mov_b32 v26, s38')
        A('v_mov_b32 v30, 1')
        A('global_atomic_add v30, v26, v30, s[4:5] offset:64 sc0')

    A.label('W_first')
    A.forget()
    G.emit_common_regs(A)
    A.label('W_deq')
    A('s_cmp_lg_u32 s13, 0')
    A('s_cbranch_scc1 W_f2')
    A('s_mov_b64 exec, 1')
    dequeue()
    A('s_waitcnt vmcnt(0)')
    A('ds_write_b32 v28, v30')
    A('s_waitcnt lgkmcnt(0)')
    A('s_mov_b64 exec, -1')
    A.label('W_f2')
    A('s_barrier')
    A.label('W_next')
    A.forget()
    A('ds_read_b32 v26, v28')
    A('s_waitcnt lgkmcnt(0)')
    A('v_readfirstlane_b32 s68, v26')
    A('s_cmp_eq_u32 s68, -1')
    A('s_cbranch_scc1 W_claim')
    A('s_cmp_eq_u32 s75, 7')
    A('s_cbranch_scc1 W_late')
    c0 = 0
    for ncol, nrow, lab in ((32, 2, 'W_y0'), (32, 7, 'W_y'), (16, 8, 'W_gu'), (16, 8, 'W_t1'), (64, 1, 'W_g2'), (16, 8, 'W_t2')):
        A(f's_add_u32 s70, s75, {(7 - c0 % 7) % 7}')
        A('s_cmp_ge_u32 s70, 7')
        A('s_cselect_b32 s38, 7, 0')
        A('s_sub_u32 s70, s70, s38')
        full, rem = divmod(ncol, 7)
        A(f's_cmp_lt_u32 s70, {rem}')
        A(f's_cselect_b32 s71, {full + 1}, {full}')
        A(f's_cselect_b32 s72, {-(-65536 // (full + 1))}, 0')
        A(f's_cselect_b32 s38, 0, {-(-65536 // full)}')
        A('s_add_u32 s72, s72, s38')
        A(f's_mul_i32 s38, s71, {nrow}')
        A('s_cmp_lt_u32 s68, s38')
        A(f's_cbranch_scc1 {lab}')
        A('s_sub_u32 s68, s68, s38')
        if lab != 'W_y0':
            c0 += ncol
    A('s_add_u32 s75, s75, 1')
    A('s_cmp_ge_u32 s75, 7')
    A('s_cselect_b32 s75, 0, s75')
    A('s_sub_u32 s76, s76, 1')
    A('s_cmp_eq_u32 s76, 0')
    A('s_cselect_b32 s75, 7, s75')
    A('s_barrier')
    A('s_branch W_deq')

    def rbct(sh):
        A('s_mul_i32 s38, s68, s72')
        A('s_lshr_b32 s38, s38, 16')
        A('s_mul_i32 s39, s38, s71')
        A('s_sub_u32 s39, s68, s39')
        A('s_mul_i32 s39, s39, 7')
        A('s_add_u32 s39, s39, s70')
        A(f's_lshl_b32 s38, s38, {sh}')
        A('s_add_u32 s39, s39, s38')
    A.label('W_y0')
    A.forget()
    rbct(5)
    A(f's_add_u32 s69, s39, {F_Y0}')
    chain.tl(A, cfg, 's69', 0, 24)
    I.item_y0(A)
    A('s_branch W_end')
    A.label('W_t2')
    A('s_add_u32 s70, s70, 16')
    for lab, kind, sh, fb, add in (('W_t1', 'T', 5, F_T, 0), ('W_y', 'Y', 5, F_Y, 32), ('W_gu', 'GU', 4, F_GU, 0)):
        A.label(lab)
        A.forget()
        rbct(sh)
        if add:
            A(f's_add_u32 s39, s39, {add}')
        A(f's_add_u32 s69, s39, {fb}')
        chain.tl(A, cfg, 's69', 0, 24)
        I.item_gemm1(A, kind)
        A('s_branch W_end')
    A.label('W_g2')
    A.forget()
    rbct(0)
    A(f's_add_u32 s69, s39, {F_G2}')
    chain.tl(A, cfg, 's69', 0, 24)
    A('s_lshr_b32 s70, s39, 3')
    A('s_lshl_b32 s70, s70, 4')
    A('s_and_b32 s38, s39, 1')
    A('s_lshl_b32 s38, s38, 3')
    A('s_add_u32 s70, s70, s38')
    A(f's_add_u32 s70, s70, {F_GU}')
    chain.flag_wait(A, 's70', 8, 8, sleep=16)
    I.item_gemm2(A)
    A('s_branch W_end')
    A.label('W_late')
    A.forget()
    A(f's_cmp_ge_u32 s68, {64 * 11}')
    A('s_cbranch_scc1 L_bail')
    A('s_mul_hi_u32 s71, s68, 0x1745d175')
    A('s_mul_i32 s38, s71, 11')
    A('s_sub_u32 s72, s68, s38')
    A('s_cmp_ge_u32 s72, 4')
    A('s_cbranch_scc1 W_pv')
    A('s_lshl_b32 s39, s71, 2')
    A('s_add_u32 s39, s39, s72')
    A(f's_add_u32 s69, s39, {F_P}')
    chain.tl(A, cfg, 's69', 0, 24)
    A('s_lshr_b32 s70, s71, 3')
    A('s_lshl_b32 s70, s70, 5')
    A('s_lshl_b32 s38, s72, 3')
    A('s_add_u32 s70, s70, s38')
    A(f's_add_u32 s70, s70, {F_T}')
    chain.flag_wait(A, 's70', 8, 8, sleep=16)
    I.item_punit(A)
    A('s_branch W_end')
    A.label('W_pv')
    A.forget()
    A('s_mul_i32 s39, s71, 7')
    A('s_add_u32 s39, s39, s72')
    A('s_sub_u32 s39, s39, 4')
    A(f's_add_u32 s69, s39, {F_P + 256}')
    chain.tl(A, cfg, 's69', 0, 24)
    A('s_lshr_b32 s70, s71, 3')
    A('s_lshl_b32 s70, s70, 5')
    A('s_lshr_b32 s38, s71, 2')
    A('s_lshl_b32 s38, s38, 5')
    A(f's_add_u32 s38, s38, {F_Y0}')
    A('s_cmp_lt_u32 s71, 8')
    A('s_cselect_b32 s70, s38, s70')
    chain.flag_wait(A, 's70', 32, 8, sleep=16)
    A('s_lshr_b32 s70, s71, 2')
    A('s_lshl_b32 s70, s70, 2')
    A(f's_add_u32 s70, s70, {F_G2}')
    chain.flag_wait(A, 's70', 4, 8, sleep=16)

    def wait_px(A):
        A('s_lshl_b32 s70, s71, 2')
        A(f's_add_u32 s70, s70, {F_P}')
        chain.flag_wait(A, 's70', 4, 8, sleep=2)
    I.item_pvunit(A, wait_px)
    A.label('W_end')
    A.forget()
    A('s_cmp_lg_u32 s13, 0')
    A('s_cbranch_scc1 W_e1')
    A('v_readfirstlane_b32 s38, v29')
    A('v_mov_b32 v30, -1')
    A('s_cmp_lt_u32 s38, 32')
    A('s_cbranch_scc1 W_e1')
    A('s_mov_b64 exec, 1')
    dequeue()
    A('s_mov_b64 exec, -1')
    A('global_load_dword v29, v31, s[4:5] sc1')
    A.label('W_e1')
    A('s_waitcnt vmcnt(0)')
    chain.tl(A, cfg, 's69', 1, 24)
    A('s_cmp_lg_u32 s13, 0')
    A('s_cbranch_scc1 W_e2')
    A('s_mov_b64 exec, 1')
    A('ds_write_b32 v28, v30')
    A('s_waitcnt lgkmcnt(0)')
    A('s_barrier')
    A('s_lshl_b32 s38, s69, 2')
    A(f's_add_u32 s38, s38, {L.FLAGS}')
    A('v_mov_b32 v27, 1')
    A(f'buffer_store_dword v27, v31, {SRD}, s38 offen sc1')
    A('s_mov_b64 exec, -1')
    A('s_branch W_next')
    A.label('W_e2')
    A('s_barrier')
    A('s_branch W_next')
    A.label('W_claim')
    A('s_barrier')
    A('s_branch CLAIM')


def build(cfg):
    cfg = dict(cfg)
    cfg['fused'] = 1
    A = Asm()
    A.raw('; @launch kernel=prep_kernel grid=(256,1,1) block=(256,1,1) lds=114688')
    A.raw('; @launch kernel=main_kernel grid=(256,1,1) block=(256,1,1) lds=151552')
    A.raw('.amdgcn_target "amdgcn-amd-amdhsa--gfx950"\n.text')
    entry(A, 'prep_kernel', 256)
    chain.tl(A, cfg, 's2', 0, 24, 0xc000)
    prep.emit_prep(A, cfg)
    leave(A, 'prep_kernel')
    entry(A, 'main_kernel', 256)
    emit_main(A, cfg)
    leave(A, 'main_kernel')
    A.raw('.section .rodata,"a"')
    for n in ('prep_kernel', 'main_kernel'):
        A.raw('.p2align 6')
        A.raw(KD.format(name=n))
    return A.text()


if __name__ == '__main__':
    cfg = {}
    for kv in sys.argv[2:]:
        k, val = kv.split('=')
        cfg[k] = int(val)
    open(sys.argv[1], 'w').write(build(cfg))
```

```python
from asmdsl import v, a, s
import layout as L

SRD = 's[8:11]'
NSTEP = 63


def stamp(A, cfg, slot):
    if cfg.get('stamps'):
        A(f's_memtime s[{40 + 2 * slot}:{41 + 2 * slot}]')


def rstamp(A, cfg, slot):
    if cfg.get('stamps'):
        A(f's_memrealtime s[{40 + 2 * slot}:{41 + 2 * slot}]')


def stamp_flush(A, cfg, nslots, base_sreg, vt):
    if not cfg.get('stamps'):
        return
    A('s_waitcnt lgkmcnt(0)')
    for k in range(nslots):
        A(f'v_mov_b32 {v(vt)}, s{40 + 2 * k}')
        A(f'v_mov_b32 {v(vt + 1)}, 0')
        A(f'buffer_store_dword {v(vt)}, {v(vt + 1)}, {SRD}, s{base_sreg} offen offset:{4 * k}')
    A(f's_add_u32 s{base_sreg}, s{base_sreg}, 64')


def guard(A):
    A('s_add_u32 s33, s33, 1')
    A('s_cmp_gt_u32 s33, 0x200000')
    A('s_cbranch_scc1 L_bail')


def tl(A, cfg, idx_sreg_or_int, slot, vt, base=0):
    if not cfg.get('tl'):
        return
    A('s_memrealtime s[100:101]')
    A('s_waitcnt lgkmcnt(0)')
    A(f'v_mov_b32 {v(vt)}, s100')
    A(f'v_mov_b32 {v(vt + 1)}, 0')
    if isinstance(idx_sreg_or_int, int):
        A(f's_mov_b32 s101, {L.STAMP + base + idx_sreg_or_int * 16}')
    else:
        A(f's_lshl_b32 s101, {idx_sreg_or_int}, 4')
        A(f's_add_u32 s101, s101, {L.STAMP + base}')
    A(f'buffer_store_dword {v(vt)}, {v(vt + 1)}, {SRD}, s101 offen offset:{slot * 4}')


def flag_wait(A, first, n, vt, sleep=8):
    A(f'v_and_b32 {v(vt)}, 63, v0')
    A(f'v_min_u32 {v(vt)}, {n - 1}, {v(vt)}')
    A(f'v_lshlrev_b32 {v(vt)}, 3, {v(vt)}')
    if isinstance(first, int):
        A(f's_mov_b32 s38, {L.FLAGS + 8 * first}')
    else:
        A(f's_lshl_b32 s38, {first}, 3')
        A(f's_add_u32 s38, s38, {L.FLAGS}')
    lab, ok = A.newlabel('FW'), A.newlabel('FWok')
    A.label(lab, keep=True)
    guard(A)
    A(f'buffer_load_dwordx2 {v(vt + 2, 2)}, {v(vt)}, {SRD}, s38 offen sc1')
    A('s_waitcnt vmcnt(0)')
    A(f'v_cmp_ne_u64 vcc, s[96:97], {v(vt + 2, 2)}')
    A(f's_cbranch_vccz {ok}')
    A(f's_sleep {sleep}')
    A(f's_branch {lab}')
    A.label(ok, keep=True)


def fill_share(A, base, kb_per_wave, widx_sreg, vt, vlin):
    for r in range(4):
        A(f'v_mov_b32 {v(vt + r)}, -1')
    A(f's_mul_i32 s38, {widx_sreg}, {kb_per_wave * 1024}')
    A(f's_add_u32 s38, s38, {base}')
    for k in range(kb_per_wave):
        if k and k % 4 == 0:
            A('s_add_u32 s38, s38, 4096')
        A(f'buffer_store_dwordx4 {v(vt, 4)}, {v(vlin)}, {SRD}, s38 offen offset:{(k & 3) * 1024} sc1')


def start_gate(A, cfg, vt):
    if not cfg.get('fused'):
        A('s_mov_b32 s12, 0')
        return
    lab, ok = A.newlabel('SG'), A.newlabel('SGok')
    A(f'v_mov_b32 {v(vt)}, 0')
    A.label(lab, keep=True)
    guard(A)
    A(f'global_load_dwordx2 {v(vt + 2, 2)}, {v(vt)}, s[4:5] offset:8 sc1')
    A('s_waitcnt vmcnt(0)')
    A(f'v_readfirstlane_b32 s38, {v(vt + 3)}')
    A(f'v_readfirstlane_b32 s12, {v(vt + 2)}')
    A('s_cmp_ge_u32 s38, 32')
    A(f's_cbranch_scc1 {ok}')
    A('s_sleep 8')
    A(f's_branch {lab}')
    A.label(ok, keep=True)
    A('s_bcnt1_i32_b32 s12, s12')
    A('s_cmp_lg_u32 s12, 1')
    A('s_cselect_b32 s12, 1, 0')
    flag_wait(A, L.F_Y0, 64, vt)
    for q in range(4):
        flag_wait(A, L.F_LN + 64 * q, 64, vt)


def mid_gate(A, cfg, vt):
    if not cfg.get('fused'):
        return
    for step, ranges in ((3, ((32, 64), (96, 32))), (26, ((128, 64), (192, 64)))):
        skip = A.newlabel('MG')
        A(f's_cmp_lg_u32 s15, {step}')
        A(f's_cbranch_scc1 {skip}')
        for f, n in ranges:
            flag_wait(A, f, n, vt)
        A.label(skip, keep=True)


def dual_store(A, text):
    slow, done = A.newlabel('DS'), A.newlabel('DSd')
    A('s_cmp_lg_u32 s12, 0')
    A(f's_cbranch_scc1 {slow}')
    A(text)
    A.label(done, keep=True)
    A.deferred.append((slow, text + ' sc1', done))


def flush_deferred(A):
    for slow, text, done in A.deferred:
        A.label(slow)
        A.raw('    ' + text)
        A.raw(f'    s_branch {done}')
    A.deferred = []


def lane_fields(A, vl):
    A(f'v_and_b32 {v(vl)}, 63, v0')


def emit_koffs(A):
    A('s_lshl_b32 s23, s13, 1')
    for k in range(7):
        A(f's_add_u32 s{16 + k}, s23, {k}')
        A(f's_cmp_ge_u32 s{16 + k}, 7')
        A(f's_cselect_b32 s24, 7, 0')
        A(f's_sub_u32 s{16 + k}, s{16 + k}, s24')
        A(f's_lshl_b32 s{16 + k}, s{16 + k}, 10')


def warm_vm(A, n, vw, cfg):
    if cfg.get('nowarm'):
        A(f's_waitcnt vmcnt({n})')
        return
    lab = A.newlabel('W')
    A.label(lab, keep=True)
    A(f'v_mov_b32 {v(vw)}, {v(vw)}')
    A(f's_getreg_b32 s38, hwreg(HW_REG_IB_STS, 0, 4)')
    A(f's_cmp_gt_u32 s38, {n}')
    A(f'v_mov_b32 {v(vw)}, {v(vw)}')
    A(f's_cbranch_scc1 {lab}')
    A(f's_waitcnt vmcnt({n})')


def keepalive(A, vw, n, cfg):
    if cfg.get('nowarm'):
        return
    for _ in range(n):
        A(f'v_mov_b32 {v(vw)}, {v(vw)}')


def warm_mfma(A, base, cfg):
    if cfg.get('nowarm'):
        return
    A(f'v_mfma_f32_32x32x16_bf16 {v(base, 16)}, {v(base + 16, 4)}, {v(base + 16, 4)}, {v(base, 16)}')


def check_regs(A, tmp, regs, autowait=True):
    E = A.auto if autowait else A
    E(f'v_max3_u32 {v(tmp)}, {v(regs[0])}, {v(regs[1])}, {v(regs[2])}')
    i = 3
    while i + 1 < len(regs):
        E(f'v_max3_u32 {v(tmp)}, {v(tmp)}, {v(regs[i])}, {v(regs[i + 1])}')
        i += 2
    if i < len(regs):
        E(f'v_max_u32 {v(tmp)}, {v(tmp)}, {v(regs[i])}')
    A(f'v_cmp_eq_u32 vcc, -1, {v(tmp)}')


def sparse_idx(A, vIDX, vL, t2, t3):
    A(f'v_and_b32 {v(t2)}, 8, {v(vL)}')
    A(f'v_cmp_ne_u32 vcc, 0, {v(t2)}')
    A(f'v_mov_b32 {v(t2)}, 0x4444')
    A(f'v_mov_b32 {v(t3)}, 0xeeee')
    A(f'v_cndmask_b32 {v(vIDX)}, {v(t2)}, {v(t3)}, vcc')


def emit_A(A, cfg):
    W5 = 0x0000
    MIMG = 0xE000
    TIMG = 0x10000
    SIMG = 0x14800
    QS = 144
    vL, vIDX, vMA, vMKa, vMKb, vMK3, vW5, vXK, vXK3, vTW, vTW6, vTR, vTR3, vSW, vSR, vPS, vPF = range(1, 18)
    vM = lambda k: 18 + k
    vSW2 = 25
    vT0 = 26
    M = lambda k: 32 + 4 * k
    ACC = lambda n: 60 + 4 * n
    WS5 = lambda b: 88 + 8 * b
    XK = lambda q, t: 112 + 8 * q + 4 * t
    XK3 = lambda t: 136 + 2 * t
    PSET = lambda r: 140 + 8 * r
    MK = lambda q: 140 + 4 * q
    TB = lambda q: (ACC(2 * q) if q < 3 else ACC(6) + 2)
    SACC = lambda t: 156 + 4 * t
    vDUM = 168
    LT = 1
    PORD = [1, 2, 0]
    regtiles = [0, 2, 3, 4, 5, 6]

    def W(n, k):
        i = regtiles.index(n) * 7 + k
        return a(8 * i, 8) if i < 32 else v(176 + 8 * (i - 32), 8)

    def Whalf(n, k, eh):
        i = regtiles.index(n) * 7 + k
        return a(8 * i + 4 * eh, 4) if i < 32 else v(176 + 8 * (i - 32) + 4 * eh, 4)

    t0, t1, t2, t3 = vT0, vT0 + 1, vT0 + 2, vT0 + 3
    tl(A, cfg, 's14', 0, 30, 0x18000)
    lane_fields(A, vL)
    emit_koffs(A)
    A(f'v_and_b32 {v(t0)}, 15, {v(vL)}')
    A(f'v_lshrrev_b32 {v(t1)}, 4, {v(vL)}')
    sparse_idx(A, vIDX, vL, t2, t3)
    A(f'v_lshlrev_b32 {v(t2)}, 9, {v(t1)}')
    A(f'v_lshl_add_u32 {v(vPF)}, {v(t0)}, 4, {v(t2)}')
    if cfg.get('fused'):
        A('s_lshl_b32 s23, s14, 3')
        A('s_lshr_b32 s24, s13, 1')
        A('s_lshl_b32 s24, s24, 2')
        A('s_add_u32 s23, s23, s24')
        A(f's_add_u32 s23, s23, {L.F_AB}')
        flag_wait(A, 's23', 4, 32, sleep=2)
    A(f's_mul_i32 s25, s14, {14 * 28672}')
    A(f's_add_u32 s25, s25, {L.WF + L.NB_A * 28672}')
    A(f's_mul_i32 s26, s13, 7')
    A(f's_mul_i32 s28, s13, 14336')
    cnt = 0
    for n in range(7):
        A(f's_add_u32 s23, s26, {n}')
        A(f's_lshr_b32 s24, s23, 1')
        A(f's_mul_i32 s24, s24, 28672')
        A(f's_and_b32 s23, s23, 1')
        A(f's_lshl_b32 s23, s23, 8')
        A(f's_add_u32 s27, s25, s24')
        A(f's_add_u32 s27, s27, s23')
        for k in range(7):
            A(f's_lshl_b32 s23, s{16 + k}, 2')
            A(f's_add_u32 s23, s23, s27')
            for eh in range(2):
                if n == LT:
                    A(f's_add_u32 s24, s28, {W5 + (k * 2 + eh) * 1024}')
                    A(f's_mov_b32 m0, s24')
                    if eh:
                        A(f's_add_u32 s23, s23, 2048')
                    A(f'buffer_load_dwordx4 {v(vPF)}, {SRD}, s23 offen sc1 lds')
                else:
                    A(f'buffer_load_dwordx4 {Whalf(n, k, eh)}, {v(vPF)}, {SRD}, s23 offen offset:{2048 * eh} sc1')
                cnt += 1
                if cnt % 16 == 0:
                    A('s_waitcnt vmcnt(40)')
    A(f'v_lshlrev_b32 {v(vMA)}, 4, {v(vL)}')
    A(f'v_add_u32 {v(vW5)}, s28, {v(vMA)}')
    for k in range(7):
        A(f's_add_u32 s23, s{16 + k}, {MIMG}')
        A(f'v_add_u32 {v(vM(k))}, s23, {v(vMA)}')
    A(f'v_add_u32 {v(vMA)}, {L.MEMA}, {v(vMA)}')
    A(f'v_and_b32 {v(t2)}, 7, {v(vL)}')
    A(f'v_lshlrev_b32 {v(t2)}, 4, {v(t2)}')
    A(f's_mul_i32 s23, s13, {7 * 256}')
    A(f's_add_u32 s23, s23, {MIMG}')
    A(f'v_lshrrev_b32 {v(t3)}, 1, {v(t1)}')
    A(f'v_lshl_add_u32 {v(vMKa)}, {v(t3)}, 8, {v(t2)}')
    A(f'v_and_b32 {v(t3)}, 1, {v(t1)}')
    A(f'v_lshl_add_u32 {v(vMKa)}, {v(t3)}, 3, {v(vMKa)}')
    A(f'v_add_u32 {v(vMKa)}, s23, {v(vMKa)}')
    A(f'v_add_u32 {v(vMKb)}, 1024, {v(vMKa)}')
    A(f'v_lshl_add_u32 {v(vMK3)}, {v(t1)}, 2, {v(t2)}')
    A(f's_add_u32 s23, s23, {6 * 256}')
    A(f'v_add_u32 {v(vMK3)}, s23, {v(vMK3)}')
    A(f'v_and_b32 {v(t2)}, 6, {v(t0)}')
    A(f'v_lshlrev_b32 {v(t2)}, 1, {v(t2)}')
    A(f'v_lshrrev_b32 {v(t3)}, 3, {v(t0)}')
    A(f'v_lshl_add_u32 {v(t2)}, {v(t3)}, 1, {v(t2)}')
    A(f'v_and_b32 {v(t3)}, 1, {v(t0)}')
    A(f'v_add_u32 {v(t2)}, {v(t3)}, {v(t2)}')
    A(f'v_lshlrev_b32 {v(t2)}, 4, {v(t2)}')
    A(f'v_lshl_add_u32 {v(vXK)}, {v(t1)}, 9, {v(t2)}')
    A(f'v_lshrrev_b32 {v(t3)}, 1, {v(t1)}')
    A(f'v_lshl_add_u32 {v(vXK3)}, {v(t3)}, 9, {v(t2)}')
    A(f'v_and_b32 {v(t3)}, 1, {v(t1)}')
    A(f'v_lshl_add_u32 {v(vXK3)}, {v(t3)}, 3, {v(vXK3)}')
    A(f'v_add_u32 {v(vXK3)}, {6 * 1024}, {v(vXK3)}')
    A(f's_lshl_b32 s30, s13, 11')
    A(f's_mul_i32 s23, s13, 4352')
    A(f's_add_u32 s23, s23, {TIMG}')
    def plane(dst, src, tmp):
        A(f'v_lshlrev_b32 {v(dst)}, 10, {v(src)}')
        A(f'v_and_b32 {v(tmp)}, 1, {v(src)}')
        A(f'v_lshl_add_u32 {v(dst)}, {v(tmp)}, 5, {v(dst)}')
        A(f'v_lshrrev_b32 {v(tmp)}, 1, {v(src)}')
        A(f'v_lshl_add_u32 {v(dst)}, {v(tmp)}, 7, {v(dst)}')
    plane(t2, t1, t3)
    A(f'v_lshl_add_u32 {v(vTW)}, {v(t0)}, 3, {v(t2)}')
    A(f'v_add_u32 {v(vTW)}, s23, {v(vTW)}')
    A(f'v_and_b32 {v(vTR)}, 3, {v(vL)}')
    plane(t2, vTR, t3)
    A(f'v_bfe_u32 {v(t3)}, {v(vL)}, 2, 2')
    A(f'v_lshl_add_u32 {v(t2)}, {v(t3)}, 3, {v(t2)}')
    A(f'v_lshl_add_u32 {v(vTR)}, {v(t1)}, 6, {v(t2)}')
    A(f'v_add_u32 {v(vTR)}, s23, {v(vTR)}')
    A(f'v_lshl_add_u32 {v(vTR3)}, {v(t1)}, 5, {v(t2)}')
    A(f'v_add_u32 {v(vTR3)}, {96 * 8}, {v(vTR3)}')
    A(f'v_add_u32 {v(vTR3)}, s23, {v(vTR3)}')
    A(f's_add_u32 s23, s30, {SIMG}')
    A(f'v_lshrrev_b32 {v(t3)}, 3, {v(t0)}')
    A(f'v_lshl_add_u32 {v(t2)}, {v(t3)}, 2, {v(t1)}')
    A(f'v_mul_u32_u24 {v(t2)}, {QS}, {v(t2)}')
    A(f'v_and_b32 {v(vSW2)}, 7, {v(t0)}')
    A(f'v_lshl_add_u32 {v(vSW)}, {v(vSW2)}, 4, {v(t2)}')
    A(f'v_add_u32 {v(vSW)}, s23, {v(vSW)}')
    A(f'v_lshlrev_b32 {v(vSW2)}, 4, {v(vSW2)}')
    A(f'v_lshl_add_u32 {v(vSW2)}, {v(t3)}, 3, {v(vSW2)}')
    A(f'v_add_u32 {v(t2)}, 8, {v(t1)}')
    A(f'v_mul_u32_u24 {v(t2)}, {QS}, {v(t2)}')
    A(f'v_add3_u32 {v(vSW2)}, {v(vSW2)}, {v(t2)}, s23')
    A('s_mov_b32 s36, 0xff00ff00')
    A('s_mov_b32 s37, 0xff00ff00')
    A(f'v_mov_b32 {v(t3)}, 12')
    A(f'v_cmp_gt_u32 vcc, 10, {v(t0)}')
    A(f'v_cndmask_b32 {v(t2)}, {v(t3)}, {v(t0)}, vcc')
    A(f'v_mul_u32_u24 {v(t2)}, {QS}, {v(t2)}')
    A(f's_lshl_b32 s23, s13, 2')
    A(f'v_add_u32 {v(t3)}, s23, {v(t1)}')
    A(f'v_and_b32 {v(t3)}, 7, {v(t3)}')
    A(f'v_lshl_add_u32 {v(vSR)}, {v(t3)}, 4, {v(t2)}')
    A(f'v_add_u32 {v(vSR)}, {SIMG}, {v(vSR)}')
    A(f'v_lshrrev_b32 {v(t2)}, 1, {v(t0)}')
    A(f'v_lshlrev_b32 {v(t2)}, 7, {v(t2)}')
    A(f'v_lshl_add_u32 {v(t2)}, {v(t3)}, 4, {v(t2)}')
    A(f'v_and_b32 {v(t3)}, 1, {v(t0)}')
    A(f'v_lshl_add_u32 {v(t2)}, {v(t3)}, 3, {v(t2)}')
    A(f'v_mov_b32 {v(t3)}, 0x40000000')
    A(f'v_cndmask_b32 {v(vPS)}, {v(t3)}, {v(t2)}, vcc')
    A(f'v_mov_b32 {v(t2)}, 0xf149f2ca')
    A(f'v_and_b32 {v(t3)}, 31, {v(vL)}')
    A(f'v_lshlrev_b32 {v(t3)}, 2, {v(t3)}')
    A(f's_add_u32 s23, s30, {SIMG + 12 * QS}')
    A(f'v_add_u32 {v(t3)}, s23, {v(t3)}')
    A(f'ds_write_b32 {v(t3)}, {v(t2)}')
    A('s_waitcnt vmcnt(0)')
    A(f'v_lshlrev_b32 {v(vPF)}, 7, {v(vL)}')
    A(f's_mul_i32 s24, s14, 640')
    A(f's_add_u32 s24, s24, {L.PBUF}')
    A(f's_mul_i32 s25, s13, 7168')
    A(f's_add_u32 s25, s25, {L.XF}')
    NT = cfg.get('ntouch', 2)
    A(f's_mul_i32 s26, s14, {NT}')
    A(f's_add_u32 s26, s26, s13')
    A(f's_min_u32 s26, s26, 55')
    A(f's_lshl_b32 s26, s26, 13')
    A(f's_add_u32 s26, s26, {L.YF + cfg.get("pfdist", 2) * 16 * 28672}')
    A(f's_cmp_ge_u32 s13, {NT}')
    A(f's_cselect_b32 s23, 0x40000000, 0')
    A(f'v_add_u32 {v(vPF)}, s23, {v(vPF)}')
    A(f's_mov_b32 s15, 0')
    if cfg.get('stamps'):
        A(f's_lshl_b32 s32, s14, 2')
        A(f's_add_u32 s32, s32, s13')
        A(f's_lshl_b32 s32, s32, 12')
        A(f's_add_u32 s32, s32, {L.STAMP}')

    def xload():
        for q in range(3):
            if q == 2:
                A(f's_add_u32 s23, s25, 4096')
            for tt in range(2):
                if q < 2:
                    A(f'buffer_load_dwordx4 {v(XK(q, tt), 4)}, {v(vXK)}, {SRD}, s25 offen offset:{q * 2048 + tt * 256} sc1')
                else:
                    A(f'buffer_load_dwordx4 {v(XK(q, tt), 4)}, {v(vXK)}, {SRD}, s23 offen offset:{tt * 256} sc1')
        for tt in range(2):
            A(f'buffer_load_dwordx2 {v(XK3(tt), 2)}, {v(vXK3)}, {SRD}, s25 offen offset:{tt * 256} sc1')
        A(f's_add_u32 s25, s25, 28672')

    A('s_waitcnt vmcnt(0) lgkmcnt(0)')
    tl(A, cfg, 's14', 1, vT0 + 4, 0x18000)
    start_gate(A, cfg, vT0)
    tl(A, cfg, 's14', 2, vT0 + 4, 0x18000)
    xload()
    A('s_barrier')

    top = A.newlabel('A_top')
    poll = A.newlabel('A_poll')
    var1 = A.newlabel('A_var1')
    common = A.newlabel('A_common')
    nxt = A.newlabel('A_next')
    A.label(top)
    A.forget()
    A('s_nop 7')
    for r in range(12):
        A(f'v_mov_b32 {v(SACC(0) + r)}, 0')
    for r in range(28):
        A(f'v_mov_b32 {v(ACC(0) + r)}, 0')

    def w5read(k):
        for eh in range(2):
            A(f'ds_read_b128 {v(WS5(k % 3) + 4 * eh, 4)}, {v(vW5)} offset:{(k * 2 + eh) * 1024}')
    for k in range(3):
        w5read(k)
    A('s_waitcnt vmcnt(0) lgkmcnt(0)')
    if cfg.get('asleep', 0):
        A(f's_sleep {cfg["asleep"]}')

    def pissue(r):
        for k in range(2):
            A(f'buffer_load_dwordx4 {v(PSET(r) + 4 * k, 4)}, {v(vMA)}, {SRD}, s{16 + k} offen sc1')
    var0 = A.newlabel('A_var0')

    def quick(r):
        keepalive(A, vDUM + 1, cfg.get('kap', 0), cfg)
        check_regs(A, t0, [PSET(r) + i for i in range(8)])
    pissue(0)
    keepalive(A, vDUM + 1, cfg.get('pgap', 28), {})
    A.label(poll, keep=True)
    guard(A)
    pissue(1)
    quick(0)
    A(f's_cbranch_vccz {var0}')
    pissue(0)
    quick(1)
    A(f's_cbranch_vccz {var1}')
    A(f's_branch {poll}')

    E6 = cfg.get('early6', 2)
    BPOS = cfg.get('bpos', 3)
    tiles01 = [1, 0, 2, 3, 4, 5] + ([6] if E6 else [])

    def mf(n, k, mreg):
        wreg = v(WS5(k % 3), 8) if n == LT else W(n, k)
        return f'v_smfmac_f32_16x16x64_bf16 {v(ACC(n), 4)}, {v(mreg, 4)}, {wreg}, {v(vIDX)}'

    def variant(r):
        A.vm = [set(('v', PSET(1 - r) + i) for i in range(4)), set(('v', PSET(1 - r) + 4 + i) for i in range(4))]
        A.lg = []
        A.smem_out = []
        stamp(A, cfg, 0)
        seq = [(n, k) for k in range(2) for n in tiles01]
        rd = [k for k in range(2, 7)] + ([] if E6 else [0, 1])
        Q = PSET(r)
        full = []
        w5q = []
        for i, (n, k) in enumerate(seq):
            A(mf(n, k, PSET(r) + 4 * k))
            if i < 2:
                A(f'ds_write_b128 {v(vM(i))}, {v(PSET(r) + 4 * i, 4)}')
            if full:
                A(full.pop(0))
            if i == BPOS - 1:
                stamp(A, cfg, 5)
                A('s_waitcnt lgkmcnt(0)')
                A('s_barrier')
                stamp(A, cfg, 6)
            if n == LT:
                w5q += [(k + 3, 0), (k + 3, 1)]
            if i >= BPOS - 1:
                if rd:
                    kk = rd.pop(0)
                    A(f'ds_read_b128 {v(M(kk), 4)}, {v(vM(kk))}')
                elif w5q:
                    kk, eh = w5q.pop(0)
                    A(f'ds_read_b128 {v(WS5(kk % 3) + 4 * eh, 4)}, {v(vW5)} offset:{(kk * 2 + eh) * 1024}')
        assert not rd
        for kk, eh in w5q:
            A(f'ds_read_b128 {v(WS5(kk % 3) + 4 * eh, 4)}, {v(vW5)} offset:{(kk * 2 + eh) * 1024}')

    A.label(var1)
    variant(1)
    A(f's_branch {common}')
    A.label(var0)
    variant(0)
    A.label(common, keep=True)
    A.vm = [set(('v', PSET(0) + i) for i in range(16))]

    seq = []
    for n in (2, 3, 4, 5, 0, 1, 6):
        for k in range(E6 if n == 6 else 2, 7):
            seq.append((n, k))
    for k, pos in ((2, 0), (3, 5)):
        seq.remove((LT, k))
        seq.insert(pos, (LT, k))
    NS = len(seq)
    memq = []
    memq.append((0, f'buffer_load_dword {v(vDUM)}, {v(vPF)}, {SRD}, s26 offen'))
    for i, (n, k) in enumerate(seq):
        if n == LT and k + 3 < 7:
            for eh in range(2):
                memq.append((i, f'ds_read_b128 {v(WS5((k + 3) % 3) + 4 * eh, 4)}, {v(vW5)} offset:{((k + 3) * 2 + eh) * 1024}'))
    mkstart = cfg.get('mkpos', 3)
    memq.append((mkstart, 's_waitcnt vmcnt(1)'))
    for q in range(3):
        ad = v(vMKa) if q < 2 else v(vMKb)
        o = 128 * q if q < 2 else 0
        memq.append((mkstart, f'ds_read2_b32 {v(MK(q), 2)}, {ad} offset0:{o} offset1:{o + 32}'))
        memq.append((mkstart, f'ds_read2_b32 {v(MK(q) + 2, 2)}, {ad} offset0:{o + 1} offset1:{o + 33}'))
    memq.append((mkstart, f'ds_read2_b32 {v(MK(3), 2)}, {v(vMK3)} offset0:0 offset1:32'))
    memq.sort(key=lambda x: x[0])
    done = {}
    for i, (n, k) in enumerate(seq):
        done[n] = i
    post = []

    def tpost(n):
        C = ACC(n)
        ops = [f'v_cvt_pk_bf16_f32 {v(C)}, {v(C)}, {v(C + 1)}', f'v_cvt_pk_bf16_f32 {v(C + 1)}, {v(C + 2)}, {v(C + 3)}',
               f'ds_write_b64 {v(vTW)}, {v(C, 2)} offset:{128 * n}']
        if n == 6:
            ops += [f'ds_read_b64_tr_b16 {v(TB(3), 2)}, {v(vTR3)}']
        elif n & 1:
            p = n >> 1
            ops += [f'ds_read_b64_tr_b16 {v(TB(p), 2)}, {v(vTR)} offset:{256 * p}',
                    f'ds_read_b64_tr_b16 {v(TB(p) + 2, 2)}, {v(vTR)} offset:{256 * p + 32}']
        return ops
    for n in (2, 3, 4, 5, 0, 1):
        post.append((done[n] + cfg.get('pdelay', 3), tpost(n)))
    smf = []
    for p in PORD:
        for t in range(3):
            key = v(XK(p, t), 4) if t < 2 else v(MK(p), 4)
            smf.append(f'v_mfma_f32_16x16x32_bf16 {v(SACC(t), 4)}, {key}, {v(TB(p), 4)}, {v(SACC(t), 4)}')
    NEARLY = cfg.get('searly', 2)
    queue = []
    A.mfma_states = cfg.get('mfstates', 1)
    for i, (n, k) in enumerate(seq):
        if i in (0, 1, 10, 20, 30):
            stamp(A, cfg, 7 + (0, 1, 10, 20, 30).index(i))
        if i == NS - 3:
            for _ in range(NEARLY):
                A.auto(smf.pop(0))
        A.auto(mf(n, k, M(k)))
        for st, ops in post:
            if st == i:
                queue += ops
        nm = 0
        if queue and not queue[0].startswith('v_'):
            A(queue.pop(0))
            nm = 1
        while memq and memq[0][0] <= i and nm < 1:
            o = memq.pop(0)[1]
            A(o)
            if not o.startswith('s_'):
                nm += 1
        if queue and queue[0].startswith('v_') and A.pad_needed(queue[0]) <= cfg.get('maxpad', 0):
            A(queue.pop(0))
    assert not memq
    tailops = queue
    stamp(A, cfg, 1)
    for o in tailops:
        A(o)
    A.auto(smf.pop(0))
    A.auto(smf.pop(0))
    for o in tpost(6):
        A(o)
    stamp(A, cfg, 13)
    for m_ in smf:
        A.auto(m_)
    for t in range(3):
        key = v(XK3(t), 2) if t < 2 else v(MK(3), 2)
        A.auto(f'v_mfma_f32_16x16x16_bf16 {v(SACC(t), 4)}, {key}, {v(TB(3), 2)}, {v(SACC(t), 4)}')
    stamp(A, cfg, 12)
    for r in range(4):
        A(f'v_add_f32_dpp {v(SACC(0) + r)}, {v(SACC(0) + r)}, {v(SACC(0) + r)} row_ror:8 row_mask:0xf bank_mask:0x3')
    for r in range(4):
        A(f'v_add_f32_dpp {v(SACC(0) + r)}, {v(SACC(1) + r)}, {v(SACC(1) + r)} row_ror:8 row_mask:0xf bank_mask:0xc')
    A(f'ds_write_b128 {v(vSW)}, {v(SACC(0), 4)}')
    for r in range(2):
        A(f'v_add_f32_dpp {v(SACC(2) + r)}, {v(SACC(2) + r)}, {v(SACC(2) + r)} row_ror:8 row_mask:0xf bank_mask:0x3')
    for r in range(2):
        A(f'v_add_f32_dpp {v(SACC(2) + r)}, {v(SACC(2) + 2 + r)}, {v(SACC(2) + 2 + r)} row_ror:8 row_mask:0xf bank_mask:0xc')
    A(f'ds_write_b64 {v(vSW2)}, {v(SACC(2), 2)}')
    A('s_cmp_ge_u32 s13, 2')
    keepalive(A, vDUM + 1, cfg.get('ka1', 6), cfg)
    warm_mfma(A, M(0), cfg)
    A('s_waitcnt lgkmcnt(0)')
    A('s_barrier')
    stamp(A, cfg, 2)
    A(f's_cbranch_scc1 {nxt}')
    R = lambda w: ACC(0) + 4 * w
    for w in range(4):
        A(f'ds_read_b128 {v(R(w), 4)}, {v(vSR)} offset:{w * 2048}')
        keepalive(A, vDUM + 1, 1, cfg)
    keepalive(A, vDUM + 1, cfg.get('ka2', 8), cfg)
    s0 = R(0)
    ml, m, ll, f, e0, cm2 = R(4), R(4) + 2, R(5), R(5) + 2, R(2), R(6)
    A(f'v_mov_b32 {v(cm2)}, -2')
    A.auto(f'v_pk_add_f32 {v(R(0), 2)}, {v(R(0), 2)}, {v(R(1), 2)}')
    A(f'v_pk_add_f32 {v(R(0) + 2, 2)}, {v(R(0) + 2, 2)}, {v(R(1) + 2, 2)}')
    A.auto(f'v_pk_add_f32 {v(R(2), 2)}, {v(R(2), 2)}, {v(R(3), 2)}')
    A(f'v_pk_add_f32 {v(R(2) + 2, 2)}, {v(R(2) + 2, 2)}, {v(R(3) + 2, 2)}')
    A(f'v_pk_add_f32 {v(R(0), 2)}, {v(R(0), 2)}, {v(R(2), 2)}')
    A(f'v_pk_add_f32 {v(R(0) + 2, 2)}, {v(R(0) + 2, 2)}, {v(R(2) + 2, 2)}')
    dpp = 'row_mask:0xf bank_mask:0xf'
    A(f'v_max3_f32 {v(ml)}, {v(s0)}, {v(s0 + 1)}, {v(s0 + 2)}')
    A(f'v_max_f32 {v(ml)}, {v(ml)}, {v(s0 + 3)}')
    A(f'v_sub_f32 {v(e0)}, {v(s0)}, {v(ml)}')
    A(f'v_sub_f32 {v(e0 + 1)}, {v(s0 + 1)}, {v(ml)}')
    A(f'v_max_f32_dpp {v(m)}, {v(ml)}, {v(ml)} row_ror:8 {dpp}')
    A(f'v_sub_f32 {v(e0 + 2)}, {v(s0 + 2)}, {v(ml)}')
    A(f'v_sub_f32 {v(e0 + 3)}, {v(s0 + 3)}, {v(ml)}')
    A(f'v_max_f32_dpp {v(m)}, {v(m)}, {v(m)} row_ror:4 {dpp}')
    A(f'v_exp_f32 {v(e0)}, {v(e0)}')
    A(f'v_exp_f32 {v(e0 + 1)}, {v(e0 + 1)}')
    A(f'v_max_f32_dpp {v(m)}, {v(m)}, {v(m)} row_ror:2 {dpp}')
    A(f'v_exp_f32 {v(e0 + 2)}, {v(e0 + 2)}')
    A(f'v_exp_f32 {v(e0 + 3)}, {v(e0 + 3)}')
    A(f'v_max_f32_dpp {v(m)}, {v(m)}, {v(m)} row_ror:1 {dpp}')
    A(f'v_pk_add_f32 {v(ll, 2)}, {v(e0, 2)}, {v(e0 + 2, 2)}')
    A(f'v_sub_f32 {v(f)}, {v(ml)}, {v(m)}')
    A(f'v_exp_f32 {v(f)}, {v(f)}')
    A(f'v_add_f32 {v(ll)}, {v(ll)}, {v(ll + 1)}')
    A(f'v_mul_f32 {v(ll)}, {v(ll)}, {v(f)}')
    A(f'v_mul_f32 {v(e0)}, {v(e0)}, {v(f)}')
    A(f'v_mul_f32 {v(e0 + 1)}, {v(e0 + 1)}, {v(f)}')
    A(f'v_add_f32_dpp {v(ll)}, {v(ll)}, {v(ll)} row_ror:8 {dpp}')
    A(f'v_mul_f32 {v(e0 + 2)}, {v(e0 + 2)}, {v(f)}')
    A(f'v_mul_f32 {v(e0 + 3)}, {v(e0 + 3)}, {v(f)}')
    A(f'v_add_f32_dpp {v(ll)}, {v(ll)}, {v(ll)} row_ror:4 {dpp}')
    A(f'v_add_f32_dpp {v(ll)}, {v(ll)}, {v(ll)} row_ror:2 {dpp}')
    A(f'v_add_f32_dpp {v(ll)}, {v(ll)}, {v(ll)} row_ror:1 {dpp}')
    A(f'v_rcp_f32 {v(ll)}, {v(ll)}')
    for i in range(4):
        A(f'v_mul_f32 {v(e0 + i)}, {v(e0 + i)}, {v(ll)}')
    A(f'v_cvt_pk_bf16_f32 {v(s0)}, {v(e0)}, {v(e0 + 1)}')
    A(f'v_cvt_pk_bf16_f32 {v(s0 + 1)}, {v(e0 + 2)}, {v(e0 + 3)}')
    A(f'v_min_u32 {v(s0)}, {v(s0)}, {v(cm2)}')
    A(f'v_min_u32 {v(s0 + 1)}, {v(s0 + 1)}, {v(cm2)}')
    dual_store(A, f'buffer_store_dwordx2 {v(s0, 2)}, {v(vPS)}, {SRD}, s24 offen')
    A.label(nxt, keep=True)
    stamp(A, cfg, 3)
    rstamp(A, cfg, 4)
    xload()
    mid_gate(A, cfg, vT0)
    if cfg.get('tl'):
        skp = A.newlabel('TLS')
        A('s_add_u32 s38, s14, s13')
        A('s_cmp_lg_u32 s38, 18')
        A(f's_cbranch_scc1 {skp}')
        tl(A, cfg, 's15', 0, vT0 + 4, 0x10000)
        A('s_memtime s[98:99]')
        A('s_waitcnt lgkmcnt(0)')
        A(f'v_mov_b32 {v(vT0 + 4)}, s98')
        A(f'buffer_store_dword {v(vT0 + 4)}, {v(vT0 + 5)}, {SRD}, s101 offen offset:4')
        A.label(skp, keep=True)
    stamp_flush(A, cfg, 14, 32, vT0 + 4)
    A(f'v_add_u32 {v(vMA)}, 8192, {v(vMA)}')
    A(f's_add_u32 s24, s24, 16384')
    A(f's_add_u32 s26, s26, {16 * 28672}')
    A(f's_add_u32 s15, s15, 1')
    A(f's_cmp_lt_u32 s15, {NSTEP}')
    A(f's_cbranch_scc1 {top}')
    A('s_endpgm')
    flush_deferred(A)


def emit_B(A, cfg):
    WL = 0x0000
    RIMG = 0x20000
    MIMG = 0x23000
    vL, vIDX, vMA, vWL, vYX, vP, vP2, vRW, vRR, vSA, vSK, vYM, vPF = range(1, 14)
    vT0 = 14
    M = lambda k: 20 + 4 * k
    YACC = lambda hh, t: 48 + 4 * (hh * 2 + t)
    YX = lambda k, t: 80 + 8 * (k * 2 + t)
    YB = lambda t: 112 + 4 * t
    M2 = 120
    YBN = lambda t: 180 + 4 * t
    OACC = lambda t: 128 + 4 * t
    ST = lambda b: 136 + 8 * b
    P = lambda r, k: 20 + 12 * r + 4 * k
    vM = lambda k: 168 + k
    vDUM = 176

    def W(ht, k):
        i = ht * 5 + k
        return a(8 * i, 8) if i < 32 else v(192 + 8 * (i - 32), 8)

    def Whalf(ht, k, eh):
        i = ht * 5 + k
        return a(8 * i + 4 * eh, 4) if i < 32 else v(192 + 8 * (i - 32) + 4 * eh, 4)

    t0, t1, t2, t3 = vT0, vT0 + 1, vT0 + 2, vT0 + 3
    lane_fields(A, vL)
    emit_koffs(A)
    A(f'v_and_b32 {v(t0)}, 15, {v(vL)}')
    A(f'v_lshrrev_b32 {v(t1)}, 4, {v(vL)}')
    sparse_idx(A, vIDX, vL, t2, t3)
    A(f'v_lshlrev_b32 {v(t2)}, 9, {v(t1)}')
    A(f'v_lshl_add_u32 {v(vYX)}, {v(t0)}, 4, {v(t2)}')
    if cfg.get('fused'):
        A('s_lshl_b32 s23, s13, 5')
        A(f's_add_u32 s23, s23, {L.F_AB + 128}')
        flag_wait(A, 's23', 32, 20, sleep=2)
    A(f's_mul_i32 s25, s13, 56')
    A(f's_add_u32 s25, s25, s14')
    A(f's_mul_i32 s25, s25, 28672')
    A(f's_add_u32 s25, s25, {L.WF + L.NB_B * 28672}')
    A(f's_lshl_b32 s28, s13, 15')
    cnt = 0
    for hh in range(4):
        for k in range(7):
            A(f's_lshl_b32 s23, s{16 + k}, 2')
            A(f's_add_u32 s23, s23, s25')
            A(f's_add_u32 s23, s23, {hh * 14 * 28672}')
            for eh in range(2):
                for t in range(2):
                    ht = hh * 2 + t
                    if k >= 5:
                        A(f's_add_u32 s24, s28, {WL + ((ht * 2 + (k - 5)) * 2 + eh) * 1024}')
                        A(f's_mov_b32 m0, s24')
                        A(f's_add_u32 s24, s23, {2048 * eh + 256 * t}')
                        A(f'buffer_load_dwordx4 {v(vYX)}, {SRD}, s24 offen sc1 lds')
                    else:
                        A(f'buffer_load_dwordx4 {Whalf(ht, k, eh)}, {v(vYX)}, {SRD}, s23 offen offset:{2048 * eh + 256 * t} sc1')
                    cnt += 1
                    if cnt % 16 == 0:
                        A('s_waitcnt vmcnt(40)')
    A(f'v_lshlrev_b32 {v(vMA)}, 4, {v(vL)}')
    A(f'v_add_u32 {v(vWL)}, s28, {v(vMA)}')
    A(f'v_add_u32 {v(vYM)}, 0, {v(vMA)}')
    for k in range(7):
        A(f's_add_u32 s23, s{16 + k}, {MIMG}')
        A(f'v_add_u32 {v(vM(k))}, s23, {v(vMA)}')
    A(f'v_add_u32 {v(vMA)}, {L.MEMA}, {v(vMA)}')
    A(f'v_lshrrev_b32 {v(t2)}, 1, {v(t1)}')
    A(f'v_mul_u32_u24 {v(t2)}, 640, {v(t2)}')
    A(f'v_and_b32 {v(t3)}, 1, {v(t1)}')
    A(f'v_lshl_add_u32 {v(t2)}, {v(t3)}, 8, {v(t2)}')
    A(f'v_lshl_add_u32 {v(vP)}, {v(t0)}, 4, {v(t2)}')
    A(f'v_lshrrev_b32 {v(t2)}, 1, {v(t1)}')
    A(f'v_bfe_u32 {v(t3)}, {v(vL)}, 3, 1')
    A(f'v_lshl_add_u32 {v(t2)}, {v(t3)}, 1, {v(t2)}')
    A(f'v_mul_u32_u24 {v(t2)}, 640, {v(t2)}')
    A(f'v_and_b32 {v(t3)}, 7, {v(vL)}')
    A(f'v_lshl_add_u32 {v(t2)}, {v(t3)}, 4, {v(t2)}')
    A(f'v_and_b32 {v(t3)}, 1, {v(t1)}')
    A(f'v_lshl_add_u32 {v(t2)}, {v(t3)}, 3, {v(t2)}')
    A(f'v_add_u32 {v(vP2)}, 512, {v(t2)}')
    A(f's_mul_i32 s23, s13, 3072')
    A(f's_add_u32 s23, s23, {RIMG}')
    A(f'v_mul_u32_u24 {v(t2)}, {4 * 192}, {v(t1)}')
    A(f'v_lshl_add_u32 {v(vRW)}, {v(t0)}, 3, {v(t2)}')
    A(f'v_add_u32 {v(vRW)}, s23, {v(vRW)}')
    A(f'v_lshrrev_b32 {v(t3)}, 3, {v(vL)}')
    A(f'v_and_b32 {v(t2)}, 3, {v(vL)}')
    A(f'v_lshlrev_b32 {v(vSA)}, 2, {v(t2)}')
    A(f'v_lshlrev_b32 {v(t2)}, 1, {v(t2)}')
    A(f'v_bfe_u32 {v(t0)}, {v(vL)}, 2, 1')
    A(f'v_lshl_add_u32 {v(vSA)}, {v(t0)}, 7, {v(vSA)}')
    A(f'v_lshl_add_u32 {v(vSA)}, {v(t3)}, 4, {v(vSA)}')
    A(f'v_add_u32 {v(t2)}, {v(t2)}, {v(t0)}')
    A(f's_and_b32 s23, s13, 1')
    A(f's_lshl_b32 s23, s23, 3')
    A(f'v_add_u32 {v(t0)}, s23, {v(t2)}')
    A(f'v_mul_u32_u24 {v(t2)}, 192, {v(t3)}')
    A(f'v_lshl_add_u32 {v(vRR)}, {v(t0)}, 3, {v(t2)}')
    A(f'v_add_u32 {v(vRR)}, {RIMG}, {v(vRR)}')
    A(f's_lshl_b32 s23, s14, 9')
    A(f's_and_b32 s24, s13, 1')
    A(f's_lshl_b32 s24, s24, 8')
    A(f's_add_u32 s24, s24, s23')
    A(f'v_add_u32 {v(vSA)}, s24, {v(vSA)}')
    A(f'v_lshlrev_b32 {v(vSK)}, 4, {v(t3)}')
    A(f'v_lshrrev_b32 {v(t2)}, 2, {v(t0)}')
    A(f'v_lshl_add_u32 {v(vSK)}, {v(t2)}, 7, {v(vSK)}')
    A(f'v_and_b32 {v(t2)}, 3, {v(t0)}')
    A(f'v_lshl_add_u32 {v(vSK)}, {v(t2)}, 2, {v(vSK)}')
    A(f'v_add_u32 {v(vSK)}, s23, {v(vSK)}')
    A(f's_cmp_ge_u32 s13, 2')
    A(f's_cselect_b32 s23, 0x40000000, 0')
    A(f'v_add_u32 {v(vSK)}, s23, {v(vSK)}')
    A(f's_mul_i32 s24, s13, {4 * 640}')
    A(f's_add_u32 s24, s24, {L.PBUF}')
    A(f's_mul_i32 s25, s13, 56')
    A(f's_add_u32 s25, s25, s14')
    A(f's_lshl_b32 s25, s25, 11')
    A(f's_add_u32 s25, s25, {L.YF}')
    A(f's_mov_b32 s26, {L.MEMA + 8192}')
    A(f's_mov_b32 s29, {L.MEMX}')
    A(f's_lshl_b32 s31, s14, 2')
    A(f's_add_u32 s31, s31, s13')
    A(f's_lshl_b32 s31, s31, 11')
    A(f's_add_u32 s31, s31, {L.YM}')
    NTA = cfg.get('ntouch', 2)
    NT = cfg.get('ntouchB', 0)
    A(f's_mul_i32 s34, s14, {NT}')
    A(f's_add_u32 s34, s34, {16 * NTA}')
    A(f's_add_u32 s34, s34, s13')
    A(f's_min_u32 s34, s34, 55')
    A(f's_lshl_b32 s34, s34, 13')
    A(f's_add_u32 s34, s34, {L.YF + cfg.get("pfdist", 2) * 16 * 28672}')
    A(f'v_lshlrev_b32 {v(vPF)}, 7, {v(vL)}')
    A(f's_cmp_ge_u32 s13, {NT}')
    A(f's_cselect_b32 s23, 0x40000000, 0')
    A(f'v_add_u32 {v(vPF)}, s23, {v(vPF)}')
    A(f's_mov_b32 s15, 0')
    A(f's_mov_b32 s35, 0x40000000')
    if cfg.get('stamps'):
        A(f's_add_u32 s32, s14, 16')
        A(f's_lshl_b32 s32, s32, 2')
        A(f's_add_u32 s32, s32, s13')
        A(f's_lshl_b32 s32, s32, 12')
        A(f's_add_u32 s32, s32, {L.STAMP}')
    vNON, vF0 = 178, 180
    A(f'v_mov_b32 {v(vNON)}, s96')
    A(f'v_mov_b32 {v(vNON + 1)}, s97')
    A(f'v_mov_b32 {v(t2)}, 0x40000000')
    A(f'v_cmp_eq_u32 vcc, 0, {v(vL)}')
    A(f'v_cndmask_b32 {v(vF0)}, {v(t2)}, {v(vL)}, vcc')
    A('s_lshl_b32 s27, s14, 2')
    A('s_add_u32 s27, s27, s13')
    A('s_lshl_b32 s27, s27, 3')
    A(f's_add_u32 s27, s27, {L.FLAGS + 8 * L.F_YM - 2 * 56 * 8}')
    ymflag = lambda sreg: f'buffer_store_dwordx2 {v(vNON, 2)}, {v(vF0)}, {SRD}, {sreg} offen sc1'
    vOUT = vT0 + 5
    A(f'v_mov_b32 {v(vOUT)}, 0')
    for r in range(8):
        A(f'v_mov_b32 {v(YB(0) + r)}, 0')

    def yx_list():
        out = []
        for k in range(2):
            for eh in range(2):
                for t in range(2):
                    out.append([f's_add_u32 s23, s25, {(2 * k + eh) * 14 * 2048}',
                                f'buffer_load_dwordx4 {v(YX(k, t) + 4 * eh, 4)}, {v(vYX)}, {SRD}, s23 offen offset:{256 * t} sc1'])
        return out

    def ym_list(sreg):
        return [[f'buffer_store_dwordx4 {v(YB(t), 4)}, {v(vYM)}, {SRD}, {sreg} offen offset:{t * 1024} sc1'] for t in range(2)]

    A('s_waitcnt vmcnt(0)')
    tl(A, cfg, 's14', 1, vT0 + 2, 0x18400)
    start_gate(A, cfg, vT0)
    tl(A, cfg, 's14', 2, vT0 + 2, 0x18400)
    top = A.newlabel('B_top')
    mpoll = A.newlabel('B_mpoll')
    ppoll = A.newlabel('B_ppoll')
    nxt = A.newlabel('B_next')
    fin = A.newlabel('B_fin')
    A.label(top)
    A.forget()
    A(f's_waitcnt vmcnt({15 if cfg.get("stamps") else 1})')
    for r in range(32):
        A(f'v_mov_b32 {v(YACC(0, 0) + r)}, 0')
    for r in range(8):
        A(f'v_mov_b32 {v(OACC(0) + r)}, 0')
    ldsq = [(hh * 2 + t, k) for t in range(2) for pr in range(2) for k in (5, 6) for hh in (2 * pr, 2 * pr + 1)]

    def wlread(j):
        ht, k = ldsq[j]
        for eh in range(2):
            A(f'ds_read_b128 {v(ST(j & 3) + 4 * eh, 4)}, {v(vWL)} offset:{((ht * 2 + (k - 5)) * 2 + eh) * 1024}')
    for j in range(4):
        wlread(j)
    if cfg.get('bsleep', 0):
        A(f's_sleep {cfg["bsleep"]}')
    MS = lambda r: (M(0) if r == 0 else M2)
    A(f's_add_u32 s36, s31, s35')

    def missue(r):
        for k in range(2):
            A(f'buffer_load_dwordx4 {v(MS(r) + 4 * k, 4)}, {v(vMA)}, {SRD}, s{16 + k} offen sc1')
    mv0, mv1, mcommon = A.newlabel('B_mv0'), A.newlabel('B_mv1'), A.newlabel('B_mc')
    missue(0)
    keepalive(A, vDUM + 1, cfg.get('pgap', 28), {})
    A.label(mpoll, keep=True)
    guard(A)
    missue(1)
    check_regs(A, t0, [MS(0) + i for i in range(8)])
    A(f's_cbranch_vccz {mv0}')
    missue(0)
    check_regs(A, t0, [MS(1) + i for i in range(8)])
    A(f's_cbranch_vccnz {mpoll}')
    lgsnap = [set(x) for x in A.lg]

    def mvariant(r):
        A.vm = [set(('v', MS(1 - r) + i) for i in range(8))]
        A.lg = [set(x) for x in lgsnap]
        A.smem_out = []
        stamp(A, cfg, 0)
        for i, (ht, k) in enumerate([(ht, k) for k in range(2) for ht in range(8)]):
            A(f'v_smfmac_f32_16x16x64_bf16 {v(YACC(ht >> 1, ht & 1), 4)}, {v(MS(r) + 4 * k, 4)}, {W(ht, k)}, {v(vIDX)}')
            if i < 2:
                A(f'ds_write_b128 {v(vM(i))}, {v(MS(r) + 4 * i, 4)}')
            if i == 4:
                A('s_waitcnt lgkmcnt(0)')
                A('s_barrier')
            if 4 <= i < 9:
                A(f'ds_read_b128 {v(M(i - 2), 4)}, {v(vM(i - 2))}')
            if i in (9, 13) and not cfg.get('noym'):
                A(ym_list('s36')[(i - 9) // 4][0])
            if i == 4:
                stamp(A, cfg, 8)
    A.label(mv1, keep=True)
    mvariant(1)
    A(f's_branch {mcommon}')
    A.label(mv0)
    mvariant(0)
    A.label(mcommon, keep=True)
    A.vm = [set(('v', M(0) + i) for i in range(8)) | set(('v', M2 + i) for i in range(8))]
    mem = yx_list() if not cfg.get('noyx') else []
    if NT:
        mem += [[f'buffer_load_dword {v(vDUM)}, {v(vPF)}, {SRD}, s34 offen']]
    seq = []
    groups = [(pr, t) for t in range(2) for pr in range(2)]
    for pr, t in groups:
        ha, hb = (2 * pr) * 2 + t, (2 * pr + 1) * 2 + t
        seq += [(ha, 5), (ha, 2), (hb, 2), (hb, 5), (ha, 3), (ha, 6), (hb, 3), (ha, 4), (hb, 6), (hb, 4)]
    assert [x for x in seq if x[1] >= 5] == ldsq
    lj = 0
    vq = []
    dq = []
    GAP = cfg.get('bmemgap', 4)

    def gpost(pr, t):
        Ya, Yb = YACC(2 * pr, t), YACC(2 * pr + 1, t)
        ops = [f'v_permlane32_swap_b32 {v(Ya + r)}, {v(Yb + r)}' for r in range(4)]
        ops += [f'v_add_f32 {v(Ya + r)}, {v(Ya + r)}, {v(Yb + r)}' for r in range(4)]
        ops += [f'v_cvt_pk_bf16_f32 {v(YB(t) + 2 * p + pr)}, {v(Ya + 2 * p)}, {v(Ya + 2 * p + 1)}' for p in range(2)]
        return ops
    sani = [f'v_min_u32 {v(YB(0) + r)}, -2, {v(YB(0) + r)}' for r in range(8)]
    for i, (ht, k) in enumerate(seq):
        if i % 10 == 0:
            stamp(A, cfg, 9 + i // 10)
        if k >= 5:
            A.auto(f'v_smfmac_f32_16x16x64_bf16 {v(YACC(ht >> 1, ht & 1), 4)}, {v(M(k), 4)}, {v(ST(lj & 3), 8)}, {v(vIDX)}')
            if lj + 4 < 16:
                h2, k2 = ldsq[lj + 4]
                for eh in range(2):
                    dq.append(f'ds_read_b128 {v(ST(lj & 3) + 4 * eh, 4)}, {v(vWL)} offset:{((h2 * 2 + (k2 - 5)) * 2 + eh) * 1024}')
            lj += 1
        else:
            A.auto(f'v_smfmac_f32_16x16x64_bf16 {v(YACC(ht >> 1, ht & 1), 4)}, {v(M(k), 4)}, {W(ht, k)}, {v(vIDX)}')
        if i % 10 == 9:
            vq += gpost(*groups[i // 10])
        if dq:
            A(dq.pop(0))
        if i >= cfg.get('yxstart', 4) and i % GAP == 0 and mem:
            for x in mem.pop(0):
                A(x)
        if vq and A.pad_needed(vq[0]) == 0:
            A(vq.pop(0))
    assert not mem and not dq
    stamp(A, cfg, 13)
    for o in vq:
        A(o)
    A(f's_cmp_eq_u32 s15, 0')
    A(f's_cselect_b32 s23, 0, {14 * 4 * 2048}')
    A(f's_add_u32 s31, s31, s23')
    A(f's_mov_b32 s35, 0')
    A(f's_add_u32 s27, s27, {56 * 8}')
    A(f's_add_u32 s25, s25, {16 * 28672}')
    A(f's_add_u32 s34, s34, {16 * 28672}')
    stamp(A, cfg, 1)
    A(f's_cmp_eq_u32 s15, {NSTEP}')
    A(f's_cbranch_scc1 {fin}')
    A('s_waitcnt vmcnt(0)')
    mid_gate(A, cfg, vT0)
    stamp(A, cfg, 5)
    if cfg.get('psleep', 0):
        A(f's_sleep {cfg["psleep"]}')

    def pissue(r):
        A(f'buffer_load_dwordx4 {v(P(r, 0), 4)}, {v(vP)}, {SRD}, s24 offen sc1')
        A(f'buffer_load_dwordx4 {v(P(r, 1), 4)}, {v(vP)}, {SRD}, s24 offen offset:1280 sc1')
        A(f'buffer_load_dwordx2 {v(P(r, 2), 2)}, {v(vP2)}, {SRD}, s24 offen sc1')
    var0 = A.newlabel('B_var0')
    var1 = A.newlabel('B_var1')
    common = A.newlabel('B_common')
    redo = A.newlabel('B_redo')

    def quick(r):
        keepalive(A, vDUM + 1, cfg.get('kbp', 0), cfg)
        A('s_waitcnt vmcnt(3)')
        A(f'v_max3_u32 {v(t0)}, {v(P(r, 0) + 3)}, {v(P(r, 1) + 3)}, {v(P(r, 2) + 1)}')
        A(f'v_cmp_eq_u32 vcc, -1, {v(t0)}')
    A.label(redo, keep=True)
    pissue(0)
    keepalive(A, vDUM + 1, cfg.get('pgap', 28), {})
    A.label(ppoll, keep=True)
    guard(A)
    pissue(1)
    quick(0)
    A(f's_cbranch_vccz {var0}')
    pissue(0)
    quick(1)
    A(f's_cbranch_vccz {var1}')
    A(f's_branch {ppoll}')
    bad = A.newlabel('B_bad')
    A.label(bad)
    A('s_waitcnt vmcnt(0) lgkmcnt(0)')
    A('s_nop 7')
    for r in range(8):
        A(f'v_mov_b32 {v(OACC(0) + r)}, 0')
    A(f's_branch {redo}')

    def variant(r):
        A.vm = [set(('v', P(1 - r, 0) + i) for i in range(12))]
        A.lg = []
        A.smem_out = []
        stamp(A, cfg, 2)
        Q = P(r, 0)
        full = [f'v_max3_u32 {v(t0)}, {v(Q)}, {v(Q + 1)}, {v(Q + 2)}', f'v_max3_u32 {v(t0)}, {v(t0)}, {v(Q + 4)}, {v(Q + 5)}',
                f'v_max3_u32 {v(t0)}, {v(t0)}, {v(Q + 6)}, {v(Q + 8)}',
                f'v_cmp_eq_u32 vcc, -1, {v(t0)}']
        for k in range(3):
            for t in range(2):
                if k < 2:
                    A(f'v_smfmac_f32_16x16x64_bf16 {v(OACC(t), 4)}, {v(P(r, k), 4)}, {v(YX(k, t), 8)}, {v(vIDX)}')
                else:
                    A(f'v_smfmac_f32_16x16x32_bf16 {v(OACC(t), 4)}, {v(P(r, k), 2)}, {v(YB(t), 4)}, {v(vIDX)}')
        for x in full[:2]:
            A(x)
        for rr in range(4):
            A(f'ds_write2_b32 {v(vRW)}, {v(OACC(0) + rr)}, {v(OACC(1) + rr)} offset0:{rr * 48} offset1:{rr * 48 + 1}')
        for x in full[2:]:
            A(x)
        A(f's_cbranch_vccnz {bad}')
    A.label(var1)
    variant(1)
    A(f's_branch {common}')
    A.label(var0)
    variant(0)
    A.label(common, keep=True)
    A.vm = [set(('v', P(0, 0) + i) for i in range(24))]
    A('s_cmp_ge_u32 s13, 2')
    keepalive(A, vDUM + 1, cfg.get('kb1', 0), cfg)
    stamp(A, cfg, 6)
    warm_mfma(A, ST(0), cfg)
    A('s_waitcnt lgkmcnt(0)')
    A('s_barrier')
    stamp(A, cfg, 7)
    A(f's_cbranch_scc1 {nxt}')
    R = lambda w: YACC(0, 0) + 4 * w
    for w in range(4):
        A(f'ds_read2st64_b64 {v(R(w), 4)}, {v(vRR)} offset0:{6 * w} offset1:{6 * w + 3}')
    keepalive(A, vDUM + 1, cfg.get('kb2', 3), cfg)
    A(f'v_mov_b32 {v(t1)}, -2')
    A.auto(f'v_pk_add_f32 {v(R(0), 2)}, {v(R(0), 2)}, {v(R(0) + 2, 2)}')
    A.auto(f'v_pk_add_f32 {v(R(1), 2)}, {v(R(1), 2)}, {v(R(1) + 2, 2)}')
    A(f'v_pk_add_f32 {v(R(0), 2)}, {v(R(0), 2)}, {v(R(1), 2)}')
    A.auto(f'v_pk_add_f32 {v(R(2), 2)}, {v(R(2), 2)}, {v(R(2) + 2, 2)}')
    A(f'v_pk_add_f32 {v(R(0), 2)}, {v(R(0), 2)}, {v(R(2), 2)}')
    A.auto(f'v_pk_add_f32 {v(R(3), 2)}, {v(R(3), 2)}, {v(R(3) + 2, 2)}')
    A(f'v_pk_add_f32 {v(R(0), 2)}, {v(R(0), 2)}, {v(R(3), 2)}')
    A(f'v_cvt_pk_bf16_f32 {v(vOUT)}, {v(R(0))}, {v(R(0) + 1)}')
    A(f'v_min_u32 {v(vOUT)}, {v(vOUT)}, {v(t1)}')
    A.label(nxt, keep=True)
    A(f's_cselect_b32 s23, 0x40000000, s26')
    dual_store(A, f'buffer_store_dword {v(vOUT)}, {v(vSA)}, {SRD}, s23 offen')
    stamp(A, cfg, 3)
    rstamp(A, cfg, 4)
    stamp_flush(A, cfg, 14, 32, vT0 + 2)
    A(f'v_add_u32 {v(vMA)}, 8192, {v(vMA)}')
    A(f's_add_u32 s24, s24, 16384')
    A(f's_add_u32 s26, s26, 8192')
    A(f's_add_u32 s15, s15, 1')
    A(f's_branch {top}')
    A.label(fin)
    for x in ym_list('s31'):
        A(x[0])
    A('s_waitcnt vmcnt(0)')
    A(ymflag('s27'))
    A(f's_add_u32 s27, s27, {56 * 8}')
    A(ymflag('s27'))
    A('s_endpgm')
    flush_deferred(A)


def emit_C(A, cfg):
    NT = cfg.get('ntouch', 2)
    D = cfg.get('cdist', 3)
    first = min(16 * NT + 14 * cfg.get('ntouchB', 0), 56)
    nrounds = (56 - first + 7) // 8
    vL, vPF, vPL, vD, vLW, vLR, vST, t0, t1 = 1, 2, 3, 4, 5, 6, 7, 8, 9
    Q = 12
    lane_fields(A, vL)
    A(f'v_lshlrev_b32 {v(vPF)}, 7, {v(vL)}')
    A('s_lshl_b32 s16, s14, 2')
    A('s_add_u32 s16, s16, s13')
    A('s_cmp_eq_u32 s16, 7')
    A('s_cselect_b32 s19, 0, s16')
    A('s_lshl_b32 s19, s19, 10')
    A(f'v_lshlrev_b32 {v(vST)}, 4, {v(vL)}')
    A('s_lshl_b32 s23, s13, 10')
    A(f'v_add_u32 {v(vLW)}, s23, {v(vST)}')
    A(f'v_lshrrev_b32 {v(t0)}, 4, {v(vL)}')
    A(f'v_lshlrev_b32 {v(vLR)}, 8, {v(t0)}')
    A(f'v_and_b32 {v(t0)}, 7, {v(vL)}')
    A(f'v_lshl_add_u32 {v(vLR)}, {v(t0)}, 4, {v(vLR)}')
    A(f'v_bfe_u32 {v(t0)}, {v(vL)}, 3, 1')
    A(f'v_lshl_add_u32 {v(vLR)}, {v(t0)}, 3, {v(vLR)}')
    A(f'v_add_u32 {v(vLR)}, s23, {v(vLR)}')
    A(f'v_add_u32 {v(vST)}, s19, {v(vST)}')
    A(f'v_add_u32 {v(vPL)}, {L.MEMA + 8192}, {v(vST)}')
    A('s_cmp_eq_u32 s16, 7')
    A(f's_cselect_b32 s19, 0x40000000, 0')
    A(f's_add_u32 s19, s19, {L.MEMX + 8192}')
    A('s_lshl_b32 s17, s16, 13')
    A(f's_add_u32 s17, s17, {L.XF}')
    A('s_mov_b32 s18, 28672')
    A('s_cmp_ge_u32 s16, 4')
    A(f's_cselect_b32 s17, {L.MEMA + 8192}, s17')
    A(f's_cselect_b32 s18, 8192, s18')
    A('s_cmp_eq_u32 s16, 6')
    A(f's_cselect_b32 s17, {L.PBUF}, s17')
    A('s_cmp_eq_u32 s16, 7')
    A(f's_cselect_b32 s17, {L.PBUF + 8192}, s17')
    A('s_cmp_ge_u32 s16, 6')
    A(f's_cselect_b32 s18, 16384, s18')
    for r in range(nrounds):
        A(f's_add_u32 s{24 + r}, s16, {first + 8 * r}')
        A(f's_min_u32 s{24 + r}, s{24 + r}, 55')
        A(f's_lshl_b32 s{24 + r}, s{24 + r}, 13')
        A(f's_add_u32 s{24 + r}, s{24 + r}, {L.YF}')
    start_gate(A, cfg, Q)
    for sg in range(cfg.get('pfdist', 2)):
        for r in range(7):
            A(f's_add_u32 s23, s16, {8 * r}')
            A(f's_lshl_b32 s23, s23, 13')
            A(f's_add_u32 s23, s23, {L.YF + sg * 16 * 28672}')
            A(f'buffer_load_dword {v(vD)}, {v(vPF)}, {SRD}, s23 offen')

    def touches():
        A(f'buffer_load_dword {v(vD)}, {v(vPF)}, {SRD}, s17 offen')
        A('s_add_u32 s17, s17, s18')
        for r in range(nrounds):
            A(f'buffer_load_dword {v(vD)}, {v(vPF)}, {SRD}, s{24 + r} offen')
            A(f's_add_u32 s{24 + r}, s{24 + r}, {16 * 28672}')
    for _ in range(D):
        touches()
    A('s_mov_b32 s15, 1')
    top = A.newlabel('C_top')
    skip = A.newlabel('C_skip')
    A.label(top)
    A.forget()
    guard(A)
    A(f's_sleep 1')
    A(f'buffer_load_dwordx4 {v(Q, 4)}, {v(vPL)}, {SRD}, 0 offen sc1')
    A('s_waitcnt vmcnt(0)')
    check_regs(A, t0, [Q + i for i in range(4)])
    A(f's_cbranch_vccnz {top}')
    A(f'ds_write_b128 {v(vLW)}, {v(Q, 4)}')
    A(f'ds_read2_b32 {v(Q + 4, 2)}, {v(vLR)} offset0:0 offset1:32')
    A(f'ds_read2_b32 {v(Q + 6, 2)}, {v(vLR)} offset0:1 offset1:33')
    A('s_waitcnt lgkmcnt(0)')
    A(f'buffer_store_dwordx4 {v(Q + 4, 4)}, {v(vST)}, {SRD}, s19 offen sc1')
    A(f'v_add_u32 {v(vPL)}, 8192, {v(vPL)}')
    A('s_add_u32 s19, s19, 8192')
    mid_gate(A, cfg, Q)
    A(f's_cmp_gt_u32 s15, {64 - D}')
    A(f's_cbranch_scc1 {skip}')
    touches()
    A.label(skip)
    A('s_add_u32 s15, s15, 1')
    A(f's_cmp_lt_u32 s15, 64')
    A(f's_cbranch_scc1 {top}')
    A('s_endpgm')
```

```python
from asmdsl import v, a, s
import layout as L
import gemm as G
import chain
CFG = {}

SRD = 's[8:11]'
SRD_X = 's[56:59]'
SRD_OUT = 's[60:63]'


def item_gemm1(A, kind, ld=' sc1', st=' sc1'):
    sh = 5 if kind != 'GU' else 4
    A(f's_lshr_b32 s53, s39, {sh}')
    A(f's_and_b32 s54, s39, {(1 << sh) - 1}')
    A('s_lshl_b32 s55, s53, 3')
    A('s_lshl_b32 s50, s13, 1')
    A('s_add_u32 s55, s55, s50')
    A('s_mul_i32 s40, s55, 28672')
    A(f's_add_u32 s40, s40, {L.XF}')
    nb0 = {'Y': L.NB_B, 'T': L.NB_A, 'GU': L.NB_GU}[kind]
    A(f's_mul_i32 s41, s54, {7 * 28672}')
    A(f's_add_u32 s41, s41, {L.WF + nb0 * 28672}')
    if kind == 'GU':
        A(f's_mul_i32 s42, s55, {112 * 1024}')
        A(f's_mul_i32 s50, s54, {7 * 1024}')
        A('s_add_u32 s42, s42, s50')
        A(f's_add_u32 s42, s42, {L.HF}')
    else:
        A(f's_mul_i32 s42, s55, {16 * 28672}')
        A(f's_mul_i32 s50, s54, {7 * 2048}')
        A('s_add_u32 s42, s42, s50')
        A(f's_add_u32 s42, s42, {L.YF if kind == "Y" else L.TF}')
    chain.tl(A, CFG, 's69', 2, 24)
    acc = G.emit_gemm_main(A, 'g1' + kind, 2, 28, 28672, 28672, kind == 'Y', ld, ld, NBUF=3)
    chain.tl(A, CFG, 's69', 3, 24)
    if kind == 'GU':
        G.emit_epi_gu(A, acc, 2, 112 * 1024, st)
    else:
        G.emit_epi_pack(A, acc, 2, 16 * 28672, st)


def item_y0(A):
    A('s_lshr_b32 s53, s39, 5')
    A('s_and_b32 s54, s39, 31')
    A('s_lshl_b32 s55, s53, 2')
    A('s_add_u32 s55, s55, s13')
    A('s_mul_i32 s40, s55, 28672')
    A(f's_add_u32 s40, s40, {L.XF}')
    A(f's_mul_i32 s41, s54, {7 * 28672}')
    A(f's_add_u32 s41, s41, {L.WF + L.NB_B * 28672}')
    A(f's_mul_i32 s42, s55, {16 * 28672}')
    A(f's_mul_i32 s50, s54, {7 * 2048}')
    A('s_add_u32 s42, s42, s50')
    A(f's_add_u32 s42, s42, {L.YF}')
    acc = G.emit_gemm_main(A, 'y0', 1, 28, 0, 28672, True, ' sc1', ' sc1', NBUF=3)
    G.emit_epi_pack(A, acc, 1, 0)


def item_gemm2(A):
    A('s_and_b32 s52, s39, 1')
    A('s_lshr_b32 s53, s39, 2')
    A('s_bfe_u32 s54, s39, 0x10001')
    A('s_lshl_b32 s55, s53, 2')
    A('s_add_u32 s55, s55, s13')
    A(f's_mul_i32 s51, s52, {56 * 1024}')
    A(f's_mul_i32 s40, s55, {112 * 1024}')
    A('s_add_u32 s40, s40, s51')
    A(f's_add_u32 s40, s40, {L.HF}')
    A(f's_mul_i32 s41, s54, {7 * 112 * 1024}')
    A('s_add_u32 s41, s41, s51')
    A(f's_add_u32 s41, s41, {L.WDF}')
    A(f's_mul_i32 s42, s55, {14 * 2048}')
    A(f's_mul_i32 s50, s54, {7 * 2048}')
    A('s_add_u32 s42, s42, s50')
    A(f's_mul_i32 s50, s52, {L.PS1 - L.PS}')
    A('s_add_u32 s42, s42, s50')
    A(f's_add_u32 s42, s42, {L.PS}')
    chain.tl(A, CFG, 's69', 2, 24)
    acc = G.emit_gemm_main(A, 'g2', 1, 56, 0, 112 * 1024, False, ' sc1', ' sc1', NBUF=5)
    chain.tl(A, CFG, 's69', 3, 24)
    G.emit_epi_pack(A, acc, 1, 0)


PXS = 40960


def guard(A):
    A('s_add_u32 s33, s33, 1')
    A('s_cmp_gt_u32 s33, 0x200000')
    A('s_cbranch_scc1 L_bail')


def sent_check(A, tmp, regs):
    A(f'v_max3_u32 {v(tmp)}, {v(regs[0])}, {v(regs[1])}, {v(regs[2])}')
    i = 3
    while i + 1 < len(regs):
        A(f'v_max3_u32 {v(tmp)}, {v(tmp)}, {v(regs[i])}, {v(regs[i + 1])}')
        i += 2
    if i < len(regs):
        A(f'v_max_u32 {v(tmp)}, {v(tmp)}, {v(regs[i])}')
    A(f'v_cmp_eq_u32 vcc, -1, {v(tmp)}')


def pregate(A, sseg, back, vt, sleeps):
    A(f's_max_u32 s38, {sseg}, {back}')
    A(f's_sub_u32 s38, s38, {back}')
    A(f's_lshl_b32 s38, s38, 13')
    A(f's_add_u32 s38, s38, {L.MEMX}')
    A(f'v_mov_b32 {v(vt)}, 0')
    lab, ok = A.newlabel('PG'), A.newlabel('PGok')
    A.label(lab, keep=True)
    guard(A)
    A(f'buffer_load_dword {v(vt + 1)}, {v(vt)}, {SRD}, s38 offen sc1')
    A('s_waitcnt vmcnt(0)')
    A(f'v_cmp_eq_u32 vcc, -1, {v(vt + 1)}')
    A(f's_cbranch_vccz {ok}')
    for sl in sleeps:
        A(f's_sleep {sl}')
    A(f's_branch {lab}')
    A.label(ok, keep=True)


def approach(A, sseg, vt, last_back):
    skip = A.newlabel('AP')
    A('s_cmp_lg_u32 s13, 0')
    A(f's_cbranch_scc1 {skip}')
    pregate(A, sseg, last_back + 6, vt, (127, 127))
    pregate(A, sseg, last_back + 2, vt, (48,))
    pregate(A, sseg, last_back, vt, (10,))
    A.label(skip, keep=True)
    A('s_barrier')


def item_punit(A, ld=' sc1', st=' sc1'):
    VL, VLIN, VPERM = G.VL, G.VLIN, G.VPERM
    XL, ML, PM = 0, 28672, 28672 + 8192
    SX, SM, KB, Q = 32, 48, 64, 96
    vMR, vTT, vPW, t0, t1, t2 = 5, 6, 7, 8, 9, 10
    chain.tl(A, CFG, 's69', 2, 24)
    A('s_lshr_b32 s53, s39, 2')
    A('s_and_b32 s54, s39, 3')
    A('s_lshl_b32 s55, s54, 2')
    A('s_add_u32 s55, s55, s13')
    A('s_lshl_b32 s50, s53, 4')
    A('s_add_u32 s50, s50, s55')
    A('s_mul_i32 s40, s50, 28672')
    A(f's_add_u32 s40, s40, {L.TF}')
    A('s_mul_i32 s41, s53, 28672')
    A('s_mul_i32 s50, s13, 7168')
    A('s_add_u32 s41, s41, s50')
    A(f's_add_u32 s41, s41, {L.XF}')
    A(f's_add_u32 s50, s50, {XL}')
    A('s_mov_b32 m0, s50')
    for c in range(7):
        if c == 4:
            A('s_add_u32 s50, s50, 4096')
            A('s_mov_b32 m0, s50')
            A('s_add_u32 s41, s41, 4096')
        A(f'buffer_load_dwordx4 {v(VLIN)}, {SRD}, s41 offen offset:{(c & 3) * 1024}{ld} lds')
    for ks in range(28):
        if ks and ks % 4 == 0:
            A('s_add_u32 s40, s40, 4096')
        A(f'buffer_load_dwordx4 {a(4 * ks, 4)}, {v(VLIN)}, {SRD}, s40 offen offset:{(ks & 3) * 1024}{ld}')
    A('s_lshl_b32 s44, s53, 13')
    A('s_lshl_b32 s46, s13, 11')
    A('s_add_u32 s44, s44, s46')
    A(f's_add_u32 s44, s44, {L.MEMX}')
    A('s_cmp_eq_u32 s13, 3')
    A('s_cselect_b32 s45, 0, 1024')
    A('s_add_u32 s45, s45, s44')
    A(f'buffer_load_dwordx4 {v(Q, 4)}, {v(VLIN)}, {SRD}, s44 offen sc1')
    A(f'buffer_load_dwordx4 {v(Q + 4, 4)}, {v(VLIN)}, {SRD}, s45 offen sc1')
    for r in range(32):
        A(f'v_mov_b32 {v(SX + r)}, 0')
    A(f'v_lshrrev_b32 {v(t0)}, 5, {v(VL)}')
    A(f'v_and_b32 {v(t1)}, 7, {v(VL)}')
    A(f'v_lshlrev_b32 {v(vMR)}, 4, {v(t1)}')
    A(f'v_lshl_add_u32 {v(vMR)}, {v(t0)}, 7, {v(vMR)}')
    A(f'v_add_u32 {v(vMR)}, {ML}, {v(vMR)}')
    A(f'v_and_b32 {v(t1)}, 31, {v(VL)}')
    A(f'v_lshlrev_b32 {v(t0)}, 3, {v(t0)}')
    A(f'v_sub_u32 {v(vTT)}, {v(t1)}, {v(t0)}')
    A('s_waitcnt vmcnt(30)')
    A('s_barrier')

    def pass_(accr, addr, stride):
        D = 6
        for ks in range(D):
            A(f'ds_read_b128 {v(KB + 4 * (ks % 8), 4)}, {v(addr)} offset:{ks * stride}')
        for ks in range(28):
            A.auto(f'v_mfma_f32_32x32x16_bf16 {v(accr, 16)}, {v(KB + 4 * (ks % 8), 4)}, {a(4 * ks, 4)}, {v(accr, 16)}')
            if ks + D < 28:
                A(f'ds_read_b128 {v(KB + 4 * ((ks + D) % 8), 4)}, {v(addr)} offset:{(ks + D) * stride}')
    pass_(SX, VPERM, 1024)
    A(f'v_mov_b32 {v(t2)}, 0xf149f2ca')
    for r in range(16):
        A(f'v_cmp_le_i32 vcc, {16 * (r >> 3) + (r & 7)}, {v(vTT)}')
        A(f'v_cndmask_b32 {v(SX + r)}, {v(t2)}, {v(SX + r)}, vcc')
    chain.tl(A, CFG, 's69', 3, 24)
    ok = A.newlabel('P_ok')
    near = A.newlabel('P_near')
    A('s_waitcnt vmcnt(0)')
    sent_check(A, t1, [Q + i for i in range(8)])
    A('s_mov_b64 s[48:49], vcc')
    A('s_cmp_lg_u32 s13, 0')
    A(f's_cbranch_scc1 {near}')
    A(f's_cbranch_vccz {near}')
    pregate(A, 's53', 7, t0, (127, 127))
    pregate(A, 's53', 3, t0, (48,))
    pregate(A, 's53', 1, t0, (10,))
    A.label(near, keep=True)
    A('s_barrier')
    A('s_cmp_eq_u64 s[48:49], 0')
    A(f's_cbranch_scc1 {ok}')
    poll = A.newlabel('P_poll')
    A.label(poll, keep=True)
    guard(A)
    A(f'buffer_load_dwordx4 {v(Q, 4)}, {v(VLIN)}, {SRD}, s44 offen sc1')
    A(f'buffer_load_dwordx4 {v(Q + 4, 4)}, {v(VLIN)}, {SRD}, s45 offen sc1')
    A('s_waitcnt vmcnt(0)')
    sent_check(A, t1, [Q + i for i in range(8)])
    A(f's_cbranch_vccz {ok}')
    A('s_sleep 2')
    A(f's_branch {poll}')
    A.label(ok, keep=True)
    A(f'v_add_u32 {v(t0)}, s46, {v(VLIN)}')
    A(f'v_add_u32 {v(t0)}, {ML}, {v(t0)}')
    A(f'ds_write_b128 {v(t0)}, {v(Q, 4)}')
    A(f'ds_write_b128 {v(t0)}, {v(Q + 4, 4)} offset:1024')
    A('s_waitcnt lgkmcnt(0)')
    A('s_barrier')
    pass_(SM, vMR, 256)
    vals = [SX + r for r in range(16)] + [SM + r for r in range(4)]
    m, m2, l_, l2 = 11, 12, 13, 14
    A(f'v_max3_f32 {v(m)}, {v(vals[0])}, {v(vals[1])}, {v(vals[2])}')
    for i in range(3, 19, 2):
        A(f'v_max3_f32 {v(m)}, {v(m)}, {v(vals[i])}, {v(vals[i + 1])}')
    A(f'v_max_f32 {v(m)}, {v(m)}, {v(vals[19])}')
    A(f'v_mov_b32 {v(m2)}, {v(m)}')
    A(f'v_permlane32_swap_b32 {v(m)}, {v(m2)}')
    A(f'v_max_f32 {v(m)}, {v(m)}, {v(m2)}')
    for x in vals:
        A(f'v_sub_f32 {v(x)}, {v(x)}, {v(m)}')
    for x in vals:
        A(f'v_exp_f32 {v(x)}, {v(x)}')
    A(f'v_add_f32 {v(l_)}, {v(vals[0])}, {v(vals[1])}')
    A(f'v_add_f32 {v(l2)}, {v(vals[2])}, {v(vals[3])}')
    for i in range(4, 20, 2):
        A(f'v_add_f32 {v(l_)}, {v(l_)}, {v(vals[i])}')
        A(f'v_add_f32 {v(l2)}, {v(l2)}, {v(vals[i + 1])}')
    A(f'v_add_f32 {v(l_)}, {v(l_)}, {v(l2)}')
    A(f'v_mov_b32 {v(l2)}, {v(l_)}')
    A(f'v_permlane32_swap_b32 {v(l_)}, {v(l2)}')
    A(f'v_add_f32 {v(l_)}, {v(l_)}, {v(l2)}')
    A(f'v_rcp_f32 {v(l_)}, {v(l_)}')
    for x in vals:
        A(f'v_mul_f32 {v(x)}, {v(x)}, {v(l_)}')
    for i in range(10):
        A(f'v_cvt_pk_bf16_f32 {v(Q + i)}, {v(vals[2 * i])}, {v(vals[2 * i + 1])}')
    A(f's_mul_i32 s42, s53, {PXS}')
    A(f's_add_u32 s42, s42, {L.PX}')
    A('s_lshl_b32 s50, s55, 11')
    A('s_add_u32 s50, s50, s42')
    for ph in range(2):
        A(f'buffer_store_dwordx4 {v(Q + 4 * ph, 4)}, {v(VLIN)}, {SRD}, s50 offen offset:{ph * 1024}{st}')
    A('s_and_b32 s50, s13, 1')
    A('s_lshl_b32 s50, s50, 10')
    A('s_lshr_b32 s51, s13, 1')
    A('s_lshl_b32 s51, s51, 2')
    A('s_add_u32 s51, s51, s50')
    A(f's_add_u32 s51, s51, {PM}')
    A(f'v_add_u32 {v(vPW)}, s51, {v(VLIN)}')
    A(f'ds_write2_b32 {v(vPW)}, {v(Q + 8)}, {v(Q + 9)} offset0:0 offset1:2')
    A('s_waitcnt lgkmcnt(0)')
    A('s_barrier')
    done = A.newlabel('P_done')
    A('s_cmp_ge_u32 s13, 2')
    A(f's_cbranch_scc1 {done}')
    A(f'ds_read_b128 {v(Q + 12, 4)}, {v(vPW)}')
    A('s_lshl_b32 s51, s54, 11')
    A('s_add_u32 s50, s50, s51')
    A('s_add_u32 s50, s50, s42')
    A(f's_add_u32 s50, s50, 32768')
    A('s_waitcnt lgkmcnt(0)')
    A(f'buffer_store_dwordx4 {v(Q + 12, 4)}, {v(VLIN)}, {SRD}, s50 offen{st}')
    A.label(done, keep=True)


def item_pvunit(A, wait_px=None, ld=' sc1', hook=None):
    VL, VLIN = G.VL, G.VLIN
    ACC, YMR, RR = 32, 48, 64
    vY, vYM, vO, t0, t1, t2 = 5, 6, 7, 8, 9, 10
    chain.tl(A, CFG, 's69', 2, 24)
    A('s_mul_hi_u32 s53, s39, 0x24924925')
    A('s_mul_i32 s50, s53, 7')
    A('s_sub_u32 s54, s39, s50')
    A('s_lshl_b32 s54, s54, 1')
    A('s_and_b32 s50, s13, 1')
    A('s_add_u32 s54, s54, s50')
    A('s_lshr_b32 s55, s13, 1')
    A(f'v_lshrrev_b32 {v(t0)}, 4, {v(G.VPERM)}')
    A(f'v_and_b32 {v(t0)}, 31, {v(t0)}')
    A(f'v_and_b32 {v(t1)}, 1, {v(t0)}')
    A(f'v_lshrrev_b32 {v(t0)}, 1, {v(t0)}')
    A(f'v_lshrrev_b32 {v(t2)}, 5, {v(VL)}')
    A(f'v_lshlrev_b32 {v(vY)}, 4, {v(t0)}')
    A(f'v_lshl_add_u32 {v(vYM)}, {v(t1)}, 10, {v(vY)}')
    A(f'v_lshl_add_u32 {v(vYM)}, {v(t2)}, 8, {v(vYM)}')
    A(f'v_lshl_add_u32 {v(vY)}, {v(t1)}, 8, {v(vY)}')
    A(f'v_lshl_add_u32 {v(vY)}, {v(t2)}, 9, {v(vY)}')
    A(f'v_and_b32 {v(t0)}, 31, {v(VL)}')
    A(f'v_mul_u32_u24 {v(vO)}, 896, {v(t0)}')
    A(f'v_lshl_add_u32 {v(vO)}, {v(t2)}, 4, {v(vO)}')
    A('s_lshl_b32 s50, s53, 4')
    A('s_lshl_b32 s51, s55, 3')
    A('s_add_u32 s50, s50, s51')
    A('s_mul_i32 s50, s50, 14')
    A('s_add_u32 s50, s50, s54')
    A('s_lshl_b32 s40, s50, 11')
    A(f's_add_u32 s40, s40, {L.YF}')
    for hh in range(8):
        for ph in range(2):
            A(f'buffer_load_dwordx4 {a((hh * 2 + ph) * 4, 4)}, {v(vY)}, {SRD}, s40 offen offset:{ph * 1024}{ld}')
        A(f's_add_u32 s40, s40, {14 * 2048}')
    A('s_mul_i32 s41, s53, 14')
    A('s_add_u32 s41, s41, s54')
    A('s_lshl_b32 s42, s41, 11')
    A(f's_mul_i32 s50, s55, {L.PS1 - L.PS}')
    A('s_add_u32 s42, s42, s50')
    A(f's_add_u32 s42, s42, {L.PS}')
    PSR, XR = 80, 88
    for ph in range(2):
        A(f'buffer_load_dwordx4 {v(PSR + 4 * ph, 4)}, {v(VLIN)}, {SRD}, s42 offen offset:{ph * 1024}{ld}')
    A(f's_mul_i32 s44, s53, {32 * 896}')
    A('s_lshl_b32 s51, s54, 6')
    A('s_add_u32 s44, s44, s51')
    A('s_cmp_eq_u32 s55, 0')
    A('s_cselect_b32 s50, s44, 0x40000000')
    for ph in range(2):
        A(f'buffer_load_dwordx4 {v(XR + 4 * ph, 4)}, {v(vO)}, {SRD_X}, s50 offen offset:{ph * 32}')
    A('s_lshl_b32 s41, s41, 2')
    A('s_lshl_b32 s50, s55, 1')
    A('s_add_u32 s41, s41, s50')
    A(f's_add_u32 s43, s41, {L.F_YM}')
    A('s_lshl_b32 s41, s41, 11')
    A(f's_add_u32 s41, s41, {L.YM}')
    if wait_px:
        wait_px(A)
    chain.tl(A, CFG, 's69', 3, 24)
    if hook:
        hook(A)
    for wq in range(2):
        for u in range(2):
            A(f'buffer_load_dwordx4 {v(YMR + (wq * 2 + u) * 4, 4)}, {v(vYM)}, {SRD}, s41 offen offset:{wq * 2048 + u * 512} sc1')
    A(f's_mul_i32 s42, s53, {PXS}')
    A(f's_add_u32 s42, s42, {L.PX}')
    A('s_lshl_b32 s50, s55, 14')
    A('s_add_u32 s40, s42, s50')
    for k in range(16):
        if k and k % 4 == 0:
            A('s_add_u32 s40, s40, 4096')
        A(f'buffer_load_dwordx4 {a(64 + 4 * k, 4)}, {v(VLIN)}, {SRD}, s40 offen offset:{(k & 3) * 1024}{ld}')
    A('s_lshl_b32 s50, s55, 12')
    A('s_add_u32 s40, s42, s50')
    A('s_add_u32 s40, s40, 32768')
    for k in range(4):
        A(f'buffer_load_dwordx4 {a(128 + 4 * k, 4)}, {v(VLIN)}, {SRD}, s40 offen offset:{k * 1024}{ld}')
    for i in range(8):
        A(f'v_lshlrev_b32 {v(ACC + 2 * i)}, 16, {v(PSR + i)}')
        A(f'v_and_b32 {v(ACC + 2 * i + 1)}, 0xffff0000, {v(PSR + i)}')
        A(f'v_lshlrev_b32 {v(t0)}, 16, {v(XR + i)}')
        A(f'v_and_b32 {v(t1)}, 0xffff0000, {v(XR + i)}')
        A(f'v_add_f32 {v(ACC + 2 * i)}, {v(ACC + 2 * i)}, {v(t0)}')
        A(f'v_add_f32 {v(ACC + 2 * i + 1)}, {v(ACC + 2 * i + 1)}, {v(t1)}')
    for k in range(16):
        A.auto(f'v_mfma_f32_32x32x16_bf16 {v(ACC, 16)}, {a(4 * k, 4)}, {a(64 + 4 * k, 4)}, {v(ACC, 16)}')
    for k in range(4):
        A.auto(f'v_mfma_f32_32x32x16_bf16 {v(ACC, 16)}, {v(YMR + 4 * k, 4)}, {a(128 + 4 * k, 4)}, {v(ACC, 16)}')
    A('s_and_b32 s50, s13, 1')
    A('s_lshl_b32 s50, s50, 12')
    A(f'v_add_u32 {v(t0)}, s50, {v(VLIN)}')
    lo = A.newlabel('PV_lo')
    done = A.newlabel('PV_done')
    A('s_cmp_eq_u32 s55, 0')
    A(f's_cbranch_scc1 {lo}')
    for q in range(4):
        A(f'ds_write_b128 {v(t0)}, {v(ACC + 4 * q, 4)} offset:{q * 1024}')
    A('s_waitcnt lgkmcnt(0)')
    A('s_barrier')
    A(f's_branch {done}')
    A.label(lo)
    A('s_barrier')
    for q in range(4):
        A(f'ds_read_b128 {v(RR + 4 * q, 4)}, {v(t0)} offset:{q * 1024}')
    A('s_nop 7')
    for r in range(8):
        A.auto(f'v_pk_add_f32 {v(ACC + 2 * r, 2)}, {v(ACC + 2 * r, 2)}, {v(RR + 2 * r, 2)}')
    for i in range(8):
        A(f'v_cvt_pk_bf16_f32 {v(RR + i)}, {v(ACC + 2 * i)}, {v(ACC + 2 * i + 1)}')
    for ph in range(2):
        A(f'buffer_store_dwordx4 {v(RR + 4 * ph, 4)}, {v(vO)}, {SRD_OUT}, s44 offen offset:{ph * 32}')
    A.label(done, keep=True)
```

```python
from asmdsl import v, a, s
import layout as L
import gemm as G
import chain

SRD = 's[8:11]'
import struct
CSCALE = struct.unpack('<I', struct.pack('<f', 1.4426950408889634 / 16.0))[0]


def srd(A, d, lo, hi, nbytes):
    A(f's_mov_b32 s{d}, s{lo}')
    A(f's_and_b32 s{d + 1}, s{hi}, 0xffff')
    A(f's_mov_b32 s{d + 2}, {nbytes}')
    A(f's_mov_b32 s{d + 3}, 0x20000')


def item_ab(A, mat, st=''):
    VL, VLIN, VPERM = G.VL, G.VLIN, G.VPERM
    acc = lambda tb, nb: G.ACC0 + 16 * (tb * 7 + nb)
    vOwn, vSh, vRd, vSt, t0, t1 = 5, 6, 7, 24, 8, 9
    A('s_lshr_b32 s53, s39, 2')
    A('s_bfe_u32 s54, s39, 0x10001')
    A('s_and_b32 s55, s39, 1')
    A(f'v_lshrrev_b32 {v(t0)}, 4, {v(VPERM)}')
    A(f'v_and_b32 {v(t0)}, 31, {v(t0)}')
    A(f'v_lshlrev_b32 {v(vOwn)}, 13, {v(t0)}')
    A(f'v_lshrrev_b32 {v(t1)}, 5, {v(VL)}')
    A(f'v_lshl_add_u32 {v(vOwn)}, {v(t1)}, 4, {v(vOwn)}')
    A('s_lshl_b32 s44, s54, 3')
    A('s_lshl_b32 s50, s13, 1')
    A('s_add_u32 s44, s44, s50')
    for tb in range(2):
        A(f's_add_u32 s50, s44, {tb}')
        A('s_min_u32 s50, s50, 13')
        A('s_lshl_b32 s50, s50, 18')
        A('s_lshl_b32 s51, s53, 9')
        A(f's_add_u32 s{45 + tb}, s50, s51')
    if mat == 0:
        A(f'v_and_b32 {v(t0)}, 31, {v(VL)}')
        A(f'v_lshlrev_b32 {v(vSh)}, 13, {v(t0)}')
        A(f'v_lshl_add_u32 {v(vSh)}, {v(t1)}, 4, {v(vSh)}')
        A(f's_mul_i32 s47, s55, {7 << 18}')
        A('s_lshl_b32 s51, s53, 9')
        A('s_add_u32 s47, s47, s51')
        A('s_lshl_b32 s51, s13, 5')
        A('s_add_u32 s47, s47, s51')
        nb_step, c_step = 1 << 18, 128
        A(f'v_mov_b32 {v(vRd)}, {v(VLIN)}')
        A(f'v_mov_b32 {v(vSt)}, {v(VLIN)}')
    else:
        A(f'v_lshrrev_b32 {v(t0)}, 2, {v(VL)}')
        A(f'v_mul_u32_u24 {v(vSh)}, 896, {v(t0)}')
        A(f'v_and_b32 {v(t0)}, 3, {v(VL)}')
        A(f'v_lshl_add_u32 {v(vSh)}, {v(t0)}, 4, {v(vSh)}')
        A(f's_mul_i32 s47, s53, {256 * 896}')
        A(f's_mul_i32 s51, s55, {7 * 64}')
        A('s_add_u32 s47, s47, s51')
        A(f's_mul_i32 s51, s13, {16 * 896}')
        A('s_add_u32 s47, s47, s51')
        nb_step, c_step = 64, 64 * 896
        tr_addr(A, vRd, VL, t0)
        A(f'v_and_b32 {v(t0)}, 1, {v(VL)}')
        A(f'v_lshlrev_b32 {v(vSt)}, 4, {v(t0)}')
        A(f'v_bfe_u32 {v(t0)}, {v(VL)}, 1, 4')
        A(f'v_add_u32 {v(vSt)}, {v(vSt)}, {v(t0)}')
        A(f'v_lshl_add_u32 {v(vSt)}, {v(t1)}, 5, {v(vSt)}')
        A(f'v_lshlrev_b32 {v(vSt)}, 4, {v(vSt)}')
    A(f's_mul_i32 s48, s13, 7168')
    for c in range(4):
        for nb in range(7):
            A(f's_add_u32 s50, s48, {c * 4 * 7168 + nb * 1024}')
            A('s_mov_b32 m0, s50')
            A(f's_add_u32 s51, s47, {c * c_step + nb * nb_step}')
            A(f'buffer_load_dwordx4 {v(vSh)}, s[72:75], s51 offen lds')
        for kq in range(4):
            ks = 4 * c + kq
            for tb in range(2):
                A(f'buffer_load_dwordx4 {a((ks * 2 + tb) * 4, 4)}, {v(vOwn)}, s[68:71], s{45 + tb} offen offset:{ks * 32}')
    for r in range(224):
        A(f'v_mov_b32 {v(G.ACC0 + r)}, 0')
    vRd2 = 25
    A(f'v_add_u32 {v(vRd2)}, {8 * 7168}, {v(vRd)}')
    WB = lambda par, nb: 128 + (par * 7 + nb) * 4

    def rd(ks, par):
        base = v(vRd) if ks < 8 else v(vRd2)
        o = (ks & 7) * 7168
        out = []
        for nb in range(7):
            if mat == 0:
                out.append([f'ds_read_b128 {a(WB(par, nb), 4)}, {base} offset:{o + nb * 1024}'])
            else:
                out.append([f'ds_read_b64_tr_b16 {a(WB(par, nb), 2)}, {base} offset:{o + nb * 1024}',
                            f'ds_read_b64_tr_b16 {a(WB(par, nb) + 2, 2)}, {base} offset:{o + nb * 1024 + 256}'])
        return out
    for c in range(4):
        A(f's_waitcnt vmcnt({45 - 15 * c})')
        A('s_barrier')
        for g in rd(4 * c, 0):
            for x in g:
                A(x)
        for kq in range(4):
            ks = 4 * c + kq
            par = kq & 1
            nxt = rd(ks + 1, par ^ 1) if kq < 3 else []
            for nb in range(7):
                for tb in range(2):
                    A.auto(f'v_mfma_f32_32x32x16_bf16 {v(acc(tb, nb), 16)}, {a((ks * 2 + tb) * 4, 4)}, {a(WB(par, nb), 4)}, {v(acc(tb, nb), 16)}')
                    if tb == 0 and nxt:
                        for x in nxt.pop(0):
                            A(x)
    A('s_mul_i32 s42, s53, 14')
    A('s_mul_i32 s50, s55, 7')
    A('s_add_u32 s42, s42, s50')
    A('s_mul_i32 s42, s42, 28672')
    A(f's_add_u32 s42, s42, {L.WF + (L.NB_A if mat == 0 else L.NB_B) * 28672}')
    A(f's_mov_b32 s52, {CSCALE}')
    n = 0
    for tb in range(2):
        A(f's_add_u32 s50, s44, {tb}')
        A('s_lshl_b32 s51, s50, 11')
        A('s_add_u32 s51, s51, s42')
        A('s_cmp_gt_u32 s50, 13')
        A('s_cselect_b32 s51, 0x40000000, s51')
        for nb in range(7):
            for ph in range(2):
                t = 8 + 4 * (n % 4)
                n += 1
                for j in range(4):
                    r = acc(tb, nb) + 8 * ph + 2 * j
                    if mat == 0:
                        A(f'v_mul_f32 {v(r)}, s52, {v(r)}')
                        A(f'v_mul_f32 {v(r + 1)}, s52, {v(r + 1)}')
                    A(f'v_cvt_pk_bf16_f32 {v(t + j)}, {v(r)}, {v(r + 1)}')
                A(f'buffer_store_dwordx4 {v(t, 4)}, {v(vSt)}, {SRD}, s51 offen offset:{ph * 1024}{st}')
            A('s_add_u32 s51, s51, 28672')


def tr_addr(A, dst, VL, t0):
    A(f'v_lshrrev_b32 {v(t0)}, 5, {v(VL)}')
    A(f'v_lshlrev_b32 {v(dst)}, 9, {v(t0)}')
    A(f'v_bfe_u32 {v(t0)}, {v(VL)}, 2, 2')
    A(f'v_lshl_add_u32 {v(dst)}, {v(t0)}, 6, {v(dst)}')
    A(f'v_bfe_u32 {v(t0)}, {v(VL)}, 4, 1')
    A(f'v_lshl_add_u32 {v(dst)}, {v(t0)}, 5, {v(dst)}')
    A(f'v_and_b32 {v(t0)}, 3, {v(VL)}')
    A(f'v_lshl_add_u32 {v(dst)}, {v(t0)}, 3, {v(dst)}')


def rne_bf16(A, r, t):
    A(f'v_cvt_pk_bf16_f32 {v(r)}, {v(r)}, {v(r)}')
    A(f'v_lshlrev_b32 {v(r)}, 16, {v(r)}')


def wave_ln(A, srdx, st=''):
    VL = G.VL
    vA, vS, t0, t1, sm, sq = 5, 6, 7, 8, 9, 10
    X, F = 16, 48
    A(f'v_lshrrev_b32 {v(t0)}, 3, {v(VL)}')
    A(f'v_and_b32 {v(t1)}, 7, {v(VL)}')
    A(f'v_mul_u32_u24 {v(vA)}, 896, {v(t0)}')
    A(f'v_lshl_add_u32 {v(vA)}, {v(t1)}, 4, {v(vA)}')
    A(f'v_lshlrev_b32 {v(vS)}, 4, {v(t0)}')
    A(f'v_lshl_add_u32 {v(vS)}, {v(t1)}, 9, {v(vS)}')
    A(f's_mul_i32 s50, s39, {8 * 896}')
    for i in range(7):
        A(f'buffer_load_dwordx4 {v(X + 4 * i, 4)}, {v(vA)}, {srdx}, s50 offen offset:{i * 128}')
    for i in range(28):
        A.auto(f'v_lshlrev_b32 {v(F + 2 * i)}, 16, {v(X + i)}')
        A(f'v_and_b32 {v(F + 2 * i + 1)}, 0xffff0000, {v(X + i)}')

    def red8(r):
        for x in (1, 2):
            pat = '[1,0,3,2]' if x == 1 else '[2,3,0,1]'
            A(f'v_add_f32_dpp {v(r)}, {v(r)}, {v(r)} quad_perm:{pat} row_mask:0xf bank_mask:0xf')
        A(f'v_add_f32_dpp {v(r)}, {v(r)}, {v(r)} row_half_mirror row_mask:0xf bank_mask:0xf')
    A(f'v_add_f32 {v(sm)}, {v(F)}, {v(F + 1)}')
    for i in range(2, 56):
        A(f'v_add_f32 {v(sm)}, {v(sm)}, {v(F + i)}')
    red8(sm)
    inv = struct.unpack('<I', struct.pack('<f', 1.0 / 448.0))[0]
    A(f'v_mul_f32 {v(sm)}, {inv:#x}, {v(sm)}')
    A(f'v_mov_b32 {v(sq)}, 0')
    for i in range(56):
        A(f'v_sub_f32 {v(t0)}, {v(F + i)}, {v(sm)}')
        A(f'v_fmac_f32 {v(sq)}, {v(t0)}, {v(t0)}')
    red8(sq)
    A(f'v_mul_f32 {v(sq)}, {inv:#x}, {v(sq)}')
    rne_bf16(A, sm, t0)
    rne_bf16(A, sq, t0)
    eps = struct.unpack('<I', struct.pack('<f', 1e-5))[0]
    A(f'v_add_f32 {v(sq)}, {eps:#x}, {v(sq)}')
    rne_bf16(A, sq, t0)
    A(f'v_sqrt_f32 {v(sq)}, {v(sq)}')
    rne_bf16(A, sq, t0)
    A(f'v_rcp_f32 {v(sq)}, {v(sq)}')
    for i in range(28):
        r = F + 2 * i
        A(f'v_sub_f32 {v(r)}, {v(r)}, {v(sm)}')
        A(f'v_sub_f32 {v(r + 1)}, {v(r + 1)}, {v(sm)}')
        A(f'v_cvt_pk_bf16_f32 {v(t0)}, {v(r)}, {v(r + 1)}')
        A(f'v_lshlrev_b32 {v(r)}, 16, {v(t0)}')
        A(f'v_and_b32 {v(r + 1)}, 0xffff0000, {v(t0)}')
        A(f'v_mul_f32 {v(r)}, {v(r)}, {v(sq)}')
        A(f'v_mul_f32 {v(r + 1)}, {v(r + 1)}, {v(sq)}')
        A(f'v_cvt_pk_bf16_f32 {v(X + i)}, {v(r)}, {v(r + 1)}')
    A('s_lshr_b32 s50, s39, 2')
    A('s_mul_i32 s50, s50, 28672')
    A('s_and_b32 s51, s39, 3')
    A('s_lshl_b32 s51, s51, 7')
    A('s_add_u32 s50, s50, s51')
    A(f's_add_u32 s50, s50, {L.XF}')
    for i in range(7):
        A(f'buffer_store_dwordx4 {v(X + 4 * i, 4)}, {v(vS)}, {SRD}, s50 offen{st}')
        A('s_add_u32 s50, s50, 4096')


def wave_pack(A, which, nfr, st='', srdwd='s[76:79]'):
    VL, VLIN = G.VL, G.VLIN
    vA, vW, vR, t0 = 5, 6, 7, 8
    D = 32
    rowb = 3584 if which == 'GU' else 896
    A(f'v_lshrrev_b32 {v(t0)}, 2, {v(VL)}')
    A(f'v_mul_u32_u24 {v(vA)}, {rowb}, {v(t0)}')
    A(f'v_and_b32 {v(t0)}, {1 if which == "GU" else 3}, {v(VL)}')
    A(f'v_lshl_add_u32 {v(vA)}, {v(t0)}, 4, {v(vA)}')
    A(f's_mul_i32 s48, s13, {nfr * 1024}')
    A(f'v_add_u32 {v(vW)}, s48, {v(VLIN)}')
    tr_addr(A, vR, VL, t0)
    A(f'v_add_u32 {v(vR)}, s48, {v(vR)}')
    sh = 2 if which == 'GU' else 4
    A(f's_lshr_b32 s53, s39, {sh}')
    A(f's_and_b32 s54, s39, {(1 << sh) - 1}')
    A(f's_mul_i32 s50, s54, {nfr * 16 * rowb}')
    A(f's_lshl_b32 s51, s53, {5 if which == "GU" else 6}')
    A('s_add_u32 s50, s50, s51')
    for k in range(nfr):
        if which == 'GU':
            A('s_mov_b32 exec_lo, 0x33333333')
            A('s_mov_b32 exec_hi, 0x33333333')
            A(f'buffer_load_dwordx4 {v(D + 4 * k, 4)}, {v(vA)}, s[68:71], s50 offen')
            A('s_mov_b32 exec_lo, 0xcccccccc')
            A('s_mov_b32 exec_hi, 0xcccccccc')
            A(f'buffer_load_dwordx4 {v(D + 4 * k, 4)}, {v(vA)}, s[72:75], s50 offen')
        else:
            A(f'buffer_load_dwordx4 {v(D + 4 * k, 4)}, {v(vA)}, {srdwd}, s50 offen')
        A(f's_add_u32 s50, s50, {16 * rowb}')
    A('s_mov_b64 exec, -1')
    if which == 'GU':
        A('s_mul_i32 s50, s53, 28672')
        A(f's_add_u32 s50, s50, {L.WF + L.NB_GU * 28672}')
    else:
        A(f's_mul_i32 s50, s53, {112 * 1024}')
        A(f's_add_u32 s50, s50, {L.WDF}')
    A(f's_mul_i32 s51, s54, {nfr * 1024}')
    A('s_add_u32 s50, s50, s51')
    for k in range(nfr):
        A.auto(f'ds_write_b128 {v(vW)}, {v(D + 4 * k, 4)} offset:{k * 1024}')
        A(f'ds_read_b64_tr_b16 {v(D + 4 * k, 2)}, {v(vR)} offset:{k * 1024}')
        A(f'ds_read_b64_tr_b16 {v(D + 4 * k + 2, 2)}, {v(vR)} offset:{k * 1024 + 256}')
    for k in range(nfr):
        if k == 4:
            A('s_add_u32 s50, s50, 4096')
        A.auto(f'buffer_store_dwordx4 {v(D + 4 * k, 4)}, {v(VLIN)}, {SRD}, s50 offen offset:{(k & 3) * 1024}{st}')


def wave_fill(A, base, nkb_total, nwaves, val):
    per = (nkb_total + nwaves - 1) // nwaves
    for r in range(4):
        A(f'v_mov_b32 {v(12 + r)}, {val}')
    A(f's_mul_i32 s50, s39, {per}')
    A(f's_add_u32 s51, s50, {per}')
    A(f's_min_u32 s51, s51, {nkb_total}')
    lab, end = A.newlabel('fill'), A.newlabel('fille')
    A.label(lab)
    A('s_cmp_ge_u32 s50, s51')
    A(f's_cbranch_scc1 {end}')
    A('s_lshl_b32 s52, s50, 10')
    A(f's_add_u32 s52, s52, {base}')
    A(f'buffer_store_dwordx4 v[12:15], {v(G.VLIN)}, {SRD}, s52 offen')
    A('s_add_u32 s50, s50, 1')
    A(f's_branch {lab}')
    A.label(end)


def wave_mem0(A, srdm, st=''):
    VL, VLIN = G.VL, G.VLIN
    vA, vB, t0 = 5, 6, 7
    A(f'v_and_b32 {v(t0)}, 7, {v(VL)}')
    A(f'v_mul_u32_u24 {v(vA)}, 896, {v(t0)}')
    A(f'v_lshrrev_b32 {v(t0)}, 4, {v(VL)}')
    A(f'v_lshl_add_u32 {v(vB)}, {v(t0)}, 5, {v(vA)}')
    A(f'v_bfe_u32 {v(t0)}, {v(VL)}, 3, 1')
    A(f'v_lshl_add_u32 {v(vA)}, {v(t0)}, 4, {v(vB)}')
    A(f'v_lshl_add_u32 {v(vB)}, {v(t0)}, 2, {v(vB)}')
    A('s_lshl_b32 s50, s39, 7')
    A(f'buffer_load_dwordx4 v[12:15], {v(vA)}, {srdm}, s50 offen')
    for q in range(4):
        A(f'buffer_load_dword {v(16 + q)}, {v(vB)}, {srdm}, s50 offen offset:{8 * q}')
    A(f'v_mov_b32 {v(t0)}, -2')
    A('s_waitcnt vmcnt(0)')
    for r in range(12, 20):
        A(f'v_min_u32 {v(r)}, {v(r)}, {v(t0)}')
    A('s_lshl_b32 s50, s39, 10')
    A(f's_add_u32 s51, s50, {L.MEMX}')
    A(f's_add_u32 s50, s50, {L.MEMA}')
    A(f'buffer_store_dwordx4 v[12:15], {v(VLIN)}, {SRD}, s51 offen{st}')
    A(f'buffer_store_dwordx4 v[16:19], {v(VLIN)}, {SRD}, s50 offen{st}')


def emit_prep(A, cfg):
    A('s_load_dwordx16 s[80:95], s[0:1], 8')
    A('s_load_dwordx4 s[96:99], s[0:1], 72')
    G.emit_common_regs(A)
    A('s_waitcnt lgkmcnt(0)')
    A('s_cmp_ge_u32 s2, 128')
    A('s_cbranch_scc1 prep_misc')
    A('s_and_b32 s39, s2, 63')
    A('s_cmp_ge_u32 s2, 64')
    A('s_cbranch_scc1 prep_B')
    srd(A, 68, 82, 83, 448 * 8192)
    srd(A, 72, 84, 85, 448 * 8192)
    item_ab(A, 0)
    A('s_waitcnt vmcnt(0)')
    chain.tl(A, cfg, 's2', 1, 24, 0xc000)
    A('s_endpgm')
    A.label('prep_B')
    A.forget()
    srd(A, 68, 86, 87, 448 * 8192)
    srd(A, 72, 88, 89, 4096 * 896)
    item_ab(A, 1)
    A('s_waitcnt vmcnt(0)')
    chain.tl(A, cfg, 's2', 1, 24, 0xc000)
    A('s_endpgm')
    A.label('prep_misc')
    A.forget()
    srd(A, 68, 94, 95, 448 * 3584)
    srd(A, 72, 96, 97, 448 * 3584)
    srd(A, 76, 98, 99, 1792 * 896)
    srd(A, 84, 80, 81, 8 * 896)
    A('s_sub_u32 s43, s2, 128')
    A('s_lshl_b32 s43, s43, 2')
    A('s_add_u32 s43, s43, s13')
    A('s_cmp_ge_u32 s43, 256')
    A('s_cbranch_scc1 prep_noln')
    A('s_mov_b32 s39, s43')
    wave_ln(A, 's[56:59]')
    A('s_branch prep_gu')
    A.label('prep_noln')
    A.forget()
    A('s_sub_u32 s39, s43, 256')
    A('s_cmp_ge_u32 s39, 224')
    A('s_cbranch_scc1 prep_nowd')
    wave_pack(A, 'WD', 7)
    A('s_branch prep_gu')
    A.label('prep_nowd')
    A.forget()
    A('s_sub_u32 s39, s39, 224')
    A('s_cmp_ge_u32 s39, 7')
    A('s_cbranch_scc1 prep_gu')
    wave_mem0(A, 's[84:87]')
    A.label('prep_gu')
    A.forget()
    A('s_waitcnt vmcnt(0) lgkmcnt(0)')
    chain.tl(A, cfg, 's2', 2, 24, 0xc000)
    A('s_cmp_ge_u32 s43, 448')
    A('s_cbranch_scc1 prep_fill')
    A('s_mov_b32 s39, s43')
    wave_pack(A, 'GU', 7)
    A.label('prep_fill')
    A.forget()
    A('s_waitcnt vmcnt(0) lgkmcnt(0)')
    chain.tl(A, cfg, 's2', 3, 24, 0xc000)
    A('s_mov_b32 s39, s43')
    wave_fill(A, L.MEMA + 8192, 504, 512, -1)
    wave_fill(A, L.MEMX + 8192, 504, 512, -1)
    wave_fill(A, L.PBUF, 1024, 512, -1)
    wave_fill(A, L.YM, 64 * 112, 512, -1)
    wave_fill(A, L.FLAGS, 64, 512, 0)
    A('s_waitcnt vmcnt(0)')
    chain.tl(A, cfg, 's2', 1, 24, 0xc000)
```

```python
import struct
from asmdsl import v, a, s
import layout as L
import gemm as G
from prep import tr_addr, rne_bf16, CSCALE, srd

SRD = 's[8:11]'
STG = 45056


def ln2_issue(A, srdx):
    VL = G.VL
    vA = 20
    A(f'v_lshrrev_b32 v21, 5, {v(VL)}')
    A(f'v_and_b32 v22, 31, {v(VL)}')
    A(f'v_mul_u32_u24 {v(vA)}, 896, v21')
    A(f'v_lshl_add_u32 {v(vA)}, v22, 4, {v(vA)}')
    A(f'v_mov_b32 v23, 0x40000000')
    A(f'v_cmp_gt_u32 vcc, 28, v22')
    A(f'v_cndmask_b32 {v(vA)}, v23, {v(vA)}, vcc')
    A('s_lshl_b32 s50, s2, 2')
    A('s_add_u32 s50, s50, s13')
    A(f's_mul_i32 s79, s50, {2 * 896}')
    A(f'buffer_load_dwordx4 v[208:211], {v(vA)}, {srdx}, s79 offen')
    A(f'buffer_load_dwordx4 v[212:215], {v(vA)}, {srdx}, s79 offen offset:448')


def ln2_compute(A, nyounger):
    VL = G.VL
    X, F = 208, 216
    t0, sm, sq, vS, t1 = 232, 233, 234, 235, 236
    A(f's_waitcnt vmcnt({nyounger})')
    A.vm = []
    for i in range(8):
        A(f'v_lshlrev_b32 {v(F + 2 * i)}, 16, {v(X + i)}')
        A(f'v_and_b32 {v(F + 2 * i + 1)}, 0xffff0000, {v(X + i)}')

    def red32(r):
        for pat in ('quad_perm:[1,0,3,2]', 'quad_perm:[2,3,0,1]', 'row_half_mirror', 'row_mirror'):
            A(f'v_add_f32_dpp {v(r)}, {v(r)}, {v(r)} {pat} row_mask:0xf bank_mask:0xf')
        A(f'v_mov_b32 {v(t1)}, {v(r)}')
        A(f'v_permlane16_swap_b32 {v(r)}, {v(t1)}')
        A(f'v_add_f32 {v(r)}, {v(r)}, {v(t1)}')
    A(f'v_add_f32 {v(sm)}, {v(F)}, {v(F + 1)}')
    for i in range(2, 16):
        A(f'v_add_f32 {v(sm)}, {v(sm)}, {v(F + i)}')
    red32(sm)
    inv = struct.unpack('<I', struct.pack('<f', 1.0 / 448.0))[0]
    A(f'v_mul_f32 {v(sm)}, {inv:#x}, {v(sm)}')
    A(f'v_mov_b32 {v(sq)}, 0')
    for i in range(16):
        A(f'v_sub_f32 {v(t0)}, {v(F + i)}, {v(sm)}')
        A(f'v_fmac_f32 {v(sq)}, {v(t0)}, {v(t0)}')
    A(f'v_and_b32 {v(t0)}, 31, {v(VL)}')
    A(f'v_cmp_gt_u32 vcc, 28, {v(t0)}')
    A(f'v_cndmask_b32 {v(sq)}, 0, {v(sq)}, vcc')
    red32(sq)
    A(f'v_mul_f32 {v(sq)}, {inv:#x}, {v(sq)}')
    rne_bf16(A, sm, t0)
    rne_bf16(A, sq, t0)
    eps = struct.unpack('<I', struct.pack('<f', 1e-5))[0]
    A(f'v_add_f32 {v(sq)}, {eps:#x}, {v(sq)}')
    rne_bf16(A, sq, t0)
    A(f'v_sqrt_f32 {v(sq)}, {v(sq)}')
    rne_bf16(A, sq, t0)
    A(f'v_rcp_f32 {v(sq)}, {v(sq)}')
    for i in range(8):
        r = F + 2 * i
        A(f'v_sub_f32 {v(r)}, {v(r)}, {v(sm)}')
        A(f'v_sub_f32 {v(r + 1)}, {v(r + 1)}, {v(sm)}')
        A(f'v_cvt_pk_bf16_f32 {v(t1)}, {v(r)}, {v(r + 1)}')
        A(f'v_lshlrev_b32 {v(r)}, 16, {v(t1)}')
        A(f'v_and_b32 {v(r + 1)}, 0xffff0000, {v(t1)}')
        A(f'v_mul_f32 {v(r)}, {v(r)}, {v(sq)}')
        A(f'v_mul_f32 {v(r + 1)}, {v(r + 1)}, {v(sq)}')
        A(f'v_cvt_pk_bf16_f32 {v(X + i)}, {v(r)}, {v(r + 1)}')
    A(f'v_lshlrev_b32 {v(vS)}, 9, {v(t0)}')
    A(f'v_lshrrev_b32 {v(t1)}, 5, {v(VL)}')
    A(f'v_lshl_add_u32 {v(vS)}, {v(t1)}, 4, {v(vS)}')
    A(f'v_mov_b32 {v(t1)}, 0x40000000')
    A(f'v_cndmask_b32 {v(vS)}, {v(t1)}, {v(vS)}, vcc')
    A('s_lshr_b32 s50, s2, 2')
    A('s_mul_i32 s50, s50, 28672')
    A('s_and_b32 s51, s2, 3')
    A('s_lshl_b32 s51, s51, 2')
    A('s_add_u32 s51, s51, s13')
    A('s_lshl_b32 s51, s51, 5')
    A('s_add_u32 s50, s50, s51')
    A(f's_add_u32 s79, s50, {L.XF}')
    return [f'buffer_store_dwordx4 {v(X, 4)}, {v(vS)}, {SRD}, s79 offen sc1',
            f's_add_u32 s79, s79, {28 * 512}',
            f'buffer_store_dwordx4 {v(X + 4, 4)}, {v(vS)}, {SRD}, s79 offen sc1']


def item_ab2(A, mat):
    VL, VLIN, VPERM = G.VL, G.VLIN, G.VPERM
    acc = lambda nb: G.ACC0 + 16 * nb
    vS0, vS1, vWo, vSt, t0, t1, t2 = 5, 6, 7, 24, 8, 9, 10
    RO = lambda kq: 12 + kq
    RS = lambda kq: 16 + kq
    A(f'v_lshrrev_b32 {v(t0)}, 3, {v(VL)}')
    A(f'v_and_b32 {v(t1)}, 7, {v(VL)}')
    A(f'v_lshrrev_b32 {v(t2)}, 1, {v(t0)}')
    A(f'v_xor_b32 {v(t1)}, {v(t1)}, {v(t2)}')
    A(f'v_lshlrev_b32 {v(t0)}, 13, {v(t0)}')
    A(f'v_lshl_add_u32 {v(vS0)}, {v(t1)}, 4, {v(t0)}')
    A(f'v_xor_b32 {v(vS1)}, 64, {v(vS0)}')
    A('s_lshl_b32 s44, s54, 2')
    A('s_add_u32 s44, s44, s13')
    A('s_min_u32 s50, s44, 13')
    A('s_lshl_b32 s45, s50, 18')
    A('s_lshl_b32 s51, s53, 9')
    A('s_add_u32 s45, s45, s51')
    A('s_lshl_b32 s46, s13, 12')

    def frag_addr(dst4, rowreg):
        A(f'v_bfe_u32 {v(t1)}, {v(rowreg)}, 1, 3')
        A(f'v_lshrrev_b32 {v(t2)}, 5, {v(VL)}')
        A(f'v_xor_b32 {v(t1)}, {v(t1)}, {v(t2)}')
        A(f'v_lshlrev_b32 {v(t1)}, 4, {v(t1)}')
        A(f'v_lshl_add_u32 {v(t1)}, {v(rowreg)}, 7, {v(t1)}')
        for kq in range(4):
            A(f'v_xor_b32 {v(dst4(kq))}, {32 * kq}, {v(t1)}')
    A(f'v_lshrrev_b32 {v(t0)}, 4, {v(VPERM)}')
    A(f'v_and_b32 {v(t0)}, 31, {v(t0)}')
    frag_addr(RO, t0)
    for kq in range(4):
        A(f'v_add_u32 {v(RO(kq))}, s46, {v(RO(kq))}')
    if mat == 0:
        A(f'v_and_b32 {v(t0)}, 31, {v(VL)}')
        frag_addr(RS, t0)
        A(f's_mul_i32 s47, s55, {7 << 18}')
        A('s_add_u32 s47, s47, s51')
        A('s_lshl_b32 s50, s13, 16')
        A('s_add_u32 s47, s47, s50')
        A('s_and_b32 s50, s13, 1')
        A('s_lshl_b32 s50, s50, 6')
        A(f'v_xor_b32 {v(vWo)}, s50, {v(vS0)}')
        nb_step, st_step = 1 << 18, 128
        A(f'v_mov_b32 {v(vSt)}, {v(VLIN)}')
    else:
        A(f'v_lshrrev_b32 {v(t0)}, 2, {v(VL)}')
        A(f'v_mul_u32_u24 {v(vWo)}, 896, {v(t0)}')
        A(f'v_and_b32 {v(t0)}, 3, {v(VL)}')
        A(f'v_lshl_add_u32 {v(vWo)}, {v(t0)}, 4, {v(vWo)}')
        A(f's_mul_i32 s47, s53, {256 * 896}')
        A(f's_mul_i32 s50, s55, {7 * 64}')
        A('s_add_u32 s47, s47, s50')
        A(f's_mul_i32 s50, s13, {16 * 896}')
        A('s_add_u32 s47, s47, s50')
        nb_step, st_step = 64, 64 * 896
        tr_addr(A, RS(0), VL, t0)
        A(f'v_and_b32 {v(t0)}, 1, {v(VL)}')
        A(f'v_lshlrev_b32 {v(vSt)}, 4, {v(t0)}')
        A(f'v_bfe_u32 {v(t0)}, {v(VL)}, 1, 4')
        A(f'v_add_u32 {v(vSt)}, {v(vSt)}, {v(t0)}')
        A(f'v_lshrrev_b32 {v(t1)}, 5, {v(VL)}')
        A(f'v_lshl_add_u32 {v(vSt)}, {v(t1)}, 5, {v(vSt)}')
        A(f'v_lshlrev_b32 {v(vSt)}, 4, {v(vSt)}')
    A('s_lshl_b32 s48, s13, 10')

    def issue(st):
        buf = (st % 3) * STG
        for j in range(4):
            A(f's_add_u32 s50, s46, {buf + j * 1024}')
            A('s_mov_b32 m0, s50')
            A(f's_add_u32 s51, s45, {st * 128 + j * 65536}')
            A(f'buffer_load_dwordx4 {v(vS1 if j & 1 else vS0)}, s[68:71], s51 offen lds')
        for nb in range(7):
            A(f's_add_u32 s50, s48, {buf + 16384 + nb * 4096}')
            A('s_mov_b32 m0, s50')
            A(f's_add_u32 s51, s47, {st * st_step + nb * nb_step}')
            A(f'buffer_load_dwordx4 {v(vWo)}, s[72:75], s51 offen lds')
    for st in range(3):
        issue(st)
    lnst = ln2_compute(A, 33)
    for r in range(112):
        A(f'v_mov_b32 {v(G.ACC0 + r)}, 0')
    OB = lambda par: 4 * par
    WB = lambda par, nb: 8 + (par * 7 + nb) * 4
    vB = {}

    def rd(st, kq, par):
        buf = (st % 3) * STG
        hi_ = buf >= 45056 * 1.4
        out = []
        ro = v(RO(kq))
        if mat == 0:
            rs = v(RS(kq))
            so = 16384
        else:
            rs = v(RS(0))
            so = 16384 + kq * 1024
        out.append([f'ds_read_b128 {a(OB(par), 4)}, {ro} offset:{0}'])
        for nb in range(7):
            if mat == 0:
                out.append([f'ds_read_b128 {a(WB(par, nb), 4)}, {rs} offset:{so + nb * 4096}'])
            else:
                out.append([f'ds_read_b64_tr_b16 {a(WB(par, nb), 2)}, {rs} offset:{so + nb * 4096}',
                            f'ds_read_b64_tr_b16 {a(WB(par, nb) + 2, 2)}, {rs} offset:{so + nb * 4096 + 256}'])
        return out

    def shift(delta):
        for r in range(12, 20):
            A(f'v_add_u32 {v(r)}, {delta & 0xffffffff:#x}, {v(r)}')
    waits = [22, 11 + 2, 11, 0]
    for st in range(4):
        A.forget()
        A(f's_waitcnt vmcnt({(22, 13, 13, 0)[st]})')
        A('s_barrier')
        if st == 0:
            for x in lnst:
                A(x)
        if st == 1:
            issue(3)
        for g in rd(st, 0, 0):
            for x in g:
                A(x)
        for kq in range(4):
            par = kq & 1
            nxt = rd(st, kq + 1, par ^ 1) if kq < 3 else []
            if nxt:
                for x in nxt.pop(0):
                    A(x)
            for nb in range(7):
                A.auto(f'v_mfma_f32_32x32x16_bf16 {v(acc(nb), 16)}, {a(OB(par), 4)}, {a(WB(par, nb), 4)}, {v(acc(nb), 16)}')
                if nxt:
                    for x in nxt.pop(0):
                        A(x)
        if st < 3:
            shift(STG if st < 2 else -2 * STG)
    A('s_mul_i32 s42, s53, 14')
    A('s_mul_i32 s50, s55, 7')
    A('s_add_u32 s42, s42, s50')
    A('s_mul_i32 s42, s42, 28672')
    A(f's_add_u32 s42, s42, {L.WF + (L.NB_A if mat == 0 else L.NB_B) * 28672}')
    A(f's_mov_b32 s52, {CSCALE}')
    A('s_lshl_b32 s51, s44, 11')
    A('s_add_u32 s51, s51, s42')
    A('s_cmp_gt_u32 s44, 13')
    A('s_cselect_b32 s51, 0x40000000, s51')
    n = 0
    for nb in range(7):
        for ph in range(2):
            t = 160 + 4 * (n % 8)
            n += 1
            for j in range(4):
                r = acc(nb) + 8 * ph + 2 * j
                if mat == 0:
                    A(f'v_mul_f32 {v(r)}, s52, {v(r)}')
                    A(f'v_mul_f32 {v(r + 1)}, s52, {v(r + 1)}')
                A(f'v_cvt_pk_bf16_f32 {v(t + j)}, {v(r)}, {v(r + 1)}')
            A(f'buffer_store_dwordx4 {v(t, 4)}, {v(vSt)}, {SRD}, s51 offen offset:{ph * 1024} sc1')
        A('s_add_u32 s51, s51, 28672')
```

```python
import sys
from asmdsl import Asm, v, a, s
import layout as L
import gemm as G
import items as I
import prep
import prep2
import chain
from build_multi import KD, srd

SRD = 's[8:11]'
LDSW = 0x24f00
NAME = 'parallel_sum__memory_aug_recurrent_mem_tr__glu_gated_bilinear__prompt_kernel'


def flag_store(A, idx_sreg):
    A(f's_lshl_b32 s38, {idx_sreg}, 3')
    A(f's_add_u32 s38, s38, {L.FLAGS}')
    A('v_mov_b32 v24, s96')
    A('v_mov_b32 v25, s97')
    A(f'buffer_store_dwordx2 v[24:25], v31, {SRD}, s38 offen sc1')


def emit_main(A, cfg):
    XC = cfg.get('xcc', 0)
    tl = chain.tl
    A('s_cmp_ge_u32 s2, 256')
    A('s_cbranch_scc1 L_bail')
    A('s_load_dwordx4 s[4:7], s[0:1], 96')
    A('s_load_dwordx16 s[80:95], s[0:1], 0')
    A('s_load_dwordx8 s[16:23], s[0:1], 64')
    A('s_memrealtime s[98:99]')
    A('v_lshrrev_b32 v1, 6, v0')
    A('v_readfirstlane_b32 s13, v1')
    A('s_mov_b32 s33, 0')
    A('s_getreg_b32 s12, hwreg(HW_REG_XCC_ID)')
    A('s_and_b32 s12, s12, 15')
    A(f'v_mov_b32 v28, {LDSW}')
    A('v_mov_b32 v31, 0')
    A('v_mov_b32 v29, 32')
    A('s_add_u32 s75, s12, 6')
    A('s_mul_hi_u32 s38, s75, 0x24924925')
    A('s_mul_i32 s38, s38, 7')
    A('s_sub_u32 s77, s75, s38')
    A('s_mov_b32 s78, 7')
    G.emit_common_regs(A)
    A('s_waitcnt lgkmcnt(0)')
    srd(A, 8, 6, 7, L.WS_BYTES)
    srd(A, 56, 80, 81, 2048 * 896)
    srd(A, 60, 22, 23, 2048 * 896)
    A('s_mov_b64 s[34:35], s[16:17]')
    A('s_mov_b64 s[36:37], s[18:19]')
    A('s_mov_b64 s[64:65], s[20:21]')
    A('s_mov_b64 s[66:67], s[82:83]')
    tl(A, cfg, 's2', 0, 24, 0x1c000)
    A('s_cmp_lg_u32 s13, 0')
    A('s_cbranch_scc1 E_1')
    A('s_mov_b64 exec, 1')
    A('s_or_b32 s98, s98, 1')
    A('v_mov_b32 v240, s98')
    A('v_mov_b32 v241, s99')
    A('v_mov_b32 v242, 0')
    A('v_mov_b32 v243, 0')
    A('global_atomic_cmpswap_x2 v[244:245], v31, v[240:243], s[4:5] offset:16 sc0')
    A('s_mov_b64 exec, -1')
    A.label('E_1')
    A.forget()
    prep2.ln2_issue(A, 's[56:59]')
    A('s_and_b32 s50, s2, 7')
    A('s_lshl_b32 s50, s50, 2')
    A('s_bfe_u32 s51, s2, 0x20003')
    A('s_add_u32 s50, s50, s51')
    A('s_lshr_b32 s51, s2, 5')
    A('s_lshl_b32 s69, s50, 3')
    A('s_add_u32 s3, s69, s51')
    A('s_and_b32 s53, s50, 15')
    A('s_and_b32 s54, s51, 3')
    A('s_lshr_b32 s55, s51, 2')
    A('s_cmp_ge_u32 s50, 16')
    A('s_cbranch_scc1 E_B')
    srd(A, 68, 84, 85, 448 * 8192)
    srd(A, 72, 86, 87, 448 * 8192)
    prep2.item_ab2(A, 0)
    A('s_branch E_2')
    A.label('E_B')
    A.forget()
    srd(A, 68, 88, 89, 448 * 8192)
    srd(A, 72, 90, 91, 4096 * 896)
    prep2.item_ab2(A, 1)
    A.label('E_2')
    A.forget()
    A('s_mov_b32 s75, s77')
    A('s_mov_b32 s76, s78')
    A('s_waitcnt vmcnt(0)')
    tl(A, cfg, 's2', 1, 24, 0x1c000)
    A('s_cmp_lg_u32 s13, 0')
    A('s_cbranch_scc1 E_3')
    A('s_mov_b64 exec, 1')
    A('v_cmp_eq_u64 vcc, 0, v[244:245]')
    A('v_cndmask_b32 v244, v244, v240, vcc')
    A('v_cndmask_b32 v245, v245, v241, vcc')
    A('ds_write_b64 v28, v[244:245] offset:8')
    A('s_waitcnt lgkmcnt(0)')
    A('s_mov_b64 exec, -1')
    A.label('E_3')
    A('s_barrier')
    A('ds_read_b64 v[26:27], v28 offset:8')
    A('s_waitcnt lgkmcnt(0)')
    A('v_readfirstlane_b32 s96, v26')
    A('v_readfirstlane_b32 s97, v27')
    A('s_cmp_lg_u32 s13, 0')
    A('s_cbranch_scc1 E_4')
    A('s_mov_b64 exec, 1')
    A(f's_add_u32 s69, s3, {L.F_AB}')
    flag_store(A, 's69')
    A(f's_add_u32 s69, s2, {L.F_LN}')
    flag_store(A, 's69')
    A('s_mov_b64 exec, -1')
    A.label('E_4')
    A.forget()
    A(f's_cmp_eq_u32 s12, {XC}')
    A('s_cbranch_scc0 W_deq')
    A.label('CLAIM')
    A.forget()
    A('s_cmp_lg_u32 s13, 0')
    A('s_cbranch_scc1 CL_w')
    A('s_mov_b64 exec, 1')
    A('v_mov_b32 v30, 1')
    A('global_atomic_add v30, v31, v30, s[4:5] sc0')
    A('s_waitcnt vmcnt(0)')
    A('ds_write_b32 v28, v30')
    A('s_waitcnt lgkmcnt(0)')
    A('s_mov_b64 exec, -1')
    A.label('CL_w')
    A('s_barrier')
    A('ds_read_b32 v30, v28')
    A('s_waitcnt lgkmcnt(0)')
    A('v_readfirstlane_b32 s14, v30')
    A('s_barrier')
    A('v_mov_b32 v29, 32')
    A('s_cmp_ge_u32 s14, 32')
    A('s_cbranch_scc1 W_deq')
    A('s_lshl_b32 s70, s14, 2')
    A('s_add_u32 s70, s70, s13')
    chain.fill_share(A, L.MEMA, 4, 's70', 12, G.VLIN)
    chain.fill_share(A, L.MEMX, 4, 's70', 12, G.VLIN)
    chain.fill_share(A, L.PBUF, 8, 's70', 12, G.VLIN)
    A('s_waitcnt vmcnt(0)')
    A('s_barrier')
    A('s_cmp_lg_u32 s14, 0')
    A('s_cbranch_scc1 CL_m')
    srd(A, 68, 66, 67, 8 * 896)
    for rep in range(2):
        A(f's_lshl_b32 s39, s13, 1')
        A(f's_add_u32 s39, s39, {rep}')
        A('s_min_u32 s39, s39, 6')
        prep.wave_mem0(A, 's[68:71]', ' sc1')
    A('s_waitcnt vmcnt(0)')
    A('s_barrier')
    A.label('CL_m')
    A.forget()
    A('s_cmp_lg_u32 s13, 0')
    A('s_cbranch_scc1 CL_r')
    A('s_mov_b64 exec, 1')
    A(f's_add_u32 s69, s14, {L.F_INIT}')
    flag_store(A, 's69')
    A('s_lshl_b32 s38, 1, s12')
    A('v_mov_b32 v30, s38')
    A('global_atomic_or v30, v31, v30, s[4:5] offset:8 sc0')
    A('s_waitcnt vmcnt(0)')
    A('v_mov_b32 v30, 1')
    A('global_atomic_add v31, v30, s[4:5] offset:12')
    A('s_mov_b64 exec, -1')
    A.label('CL_r')
    A.forget()
    A('s_cmp_ge_u32 s14, 30')
    A('s_cbranch_scc1 L_roleC')
    A('s_cmp_ge_u32 s14, 16')
    A('s_cbranch_scc1 L_roleB')
    chain.emit_A(A, cfg)
    A.label('L_roleB')
    A.forget()
    A('s_sub_u32 s14, s14, 16')
    chain.emit_B(A, cfg)
    A.label('L_roleC')
    A.forget()
    A('s_sub_u32 s14, s14, 30')
    chain.emit_C(A, cfg)
    A.label('L_bail')
    A('s_endpgm')

    def dequeue():
        A('s_lshl_b32 s38, s75, 2')
        A('v_mov_b32 v26, s38')
        A('v_mov_b32 v30, 1')
        A('global_atomic_add v30, v26, v30, s[4:5] offset:128 sc0')

    A.label('W_deq')
    A.forget()
    A('s_cmp_lg_u32 s13, 0')
    A('s_cbranch_scc1 W_f2')
    A('s_mov_b64 exec, 1')
    dequeue()
    A('s_waitcnt vmcnt(0)')
    A('ds_write_b32 v28, v30')
    A('s_waitcnt lgkmcnt(0)')
    A('s_mov_b64 exec, -1')
    A.label('W_f2')
    A('s_barrier')
    A.label('W_next')
    A.forget()
    A('ds_read_b32 v26, v28')
    A('s_waitcnt lgkmcnt(0)')
    A('v_readfirstlane_b32 s68, v26')
    A('s_cmp_eq_u32 s68, -1')
    A('s_cbranch_scc1 W_claim')
    A('s_cmp_eq_u32 s75, 7')
    A('s_cbranch_scc1 W_late')
    c0 = 0
    phases = ((32, 2, 'W_y0', 0), (32, 7, 'W_y', 1), (16, 7, 'W_pk', 0), (56, 1, 'W_pw', 0), (16, 8, 'W_gu', 1), (16, 8, 'W_t1', 1),
              (64, 1, 'W_g2', 1), (16, 8, 'W_t2', 1))
    for ncol, nrow, lab, adv in phases:
        A(f's_add_u32 s70, s75, {(7 - c0 % 7) % 7}')
        A('s_cmp_ge_u32 s70, 7')
        A('s_cselect_b32 s38, 7, 0')
        A('s_sub_u32 s70, s70, s38')
        full, rem = divmod(ncol, 7)
        A(f's_cmp_lt_u32 s70, {rem}')
        A(f's_cselect_b32 s71, {full + 1}, {full}')
        A(f's_cselect_b32 s72, {-(-65536 // (full + 1))}, 0')
        A(f's_cselect_b32 s38, 0, {-(-65536 // full)}')
        A('s_add_u32 s72, s72, s38')
        A(f's_mul_i32 s38, s71, {nrow}')
        A('s_cmp_lt_u32 s68, s38')
        A(f's_cbranch_scc1 {lab}')
        A('s_sub_u32 s68, s68, s38')
        if adv:
            c0 += ncol
    sizes = []
    for x in range(7):
        c0_, tot = 0, 0
        for ncol, nrow, lab, adv in phases:
            f = (x - c0_) % 7
            tot += len(range(f, ncol, 7)) * nrow
            if adv:
                c0_ += ncol
        sizes.append(tot)
    A('v_and_b32 v8, 7, v0')
    A('v_lshlrev_b32 v8, 2, v8')
    A('global_load_dword v9, v8, s[4:5] offset:128 sc1')
    A('v_mov_b32 v10, 0')
    for x in range(7):
        A(f's_mov_b32 s38, {sizes[x]}')
        A(f'v_writelane_b32 v10, s38, {x}')
    A('s_waitcnt vmcnt(0)')
    A('v_cmp_lt_u32 vcc, v9, v10')
    A('s_and_b32 s38, vcc_lo, 0x7f')
    A('s_or_b32 s38, s38, 0x80')
    A('s_ff1_i32_b32 s38, s38')
    A('v_mov_b32 v9, s38')
    A('s_barrier')
    A('s_cmp_lg_u32 s13, 0')
    A('s_cbranch_scc1 W_x1')
    A('ds_write_b32 v28, v9 offset:4')
    A('s_waitcnt lgkmcnt(0)')
    A.label('W_x1')
    A('s_barrier')
    A('ds_read_b32 v9, v28 offset:4')
    A('s_waitcnt lgkmcnt(0)')
    A('v_readfirstlane_b32 s75, v9')
    A('s_branch W_deq')

    def rbct():
        A('s_mul_i32 s73, s68, s72')
        A('s_lshr_b32 s73, s73, 16')
        A('s_mul_i32 s74, s73, s71')
        A('s_sub_u32 s74, s68, s74')
        A('s_mul_i32 s74, s74, 7')
        A('s_add_u32 s74, s74, s70')

    def fw(base, sreg, shift, n, sleep=4):
        A(f's_lshl_b32 s70, {sreg}, {shift}')
        A(f's_add_u32 s70, s70, {base}')
        chain.flag_wait(A, 's70', n, 8, sleep=sleep)

    A.label('W_y0')
    A.forget()
    rbct()
    A('s_lshl_b32 s39, s73, 5')
    A('s_add_u32 s39, s39, s74')
    A(f's_add_u32 s69, s39, {L.F_Y0}')
    tl(A, cfg, 's69', 0, 24)
    fw(L.F_LN, 's73', 4, 16)
    fw(L.F_AB + 128, 's74', 2, 4)
    I.item_y0(A)
    A('s_branch W_end')
    A.label('W_t2')
    A('s_add_u32 s70, s70, 16')
    for lab, kind, sh, fb, add in (('W_t1', 'T', 5, L.F_T, 0), ('W_y', 'Y', 5, L.F_Y, 1), ('W_gu', 'GU', 4, L.F_GU, 0)):
        A.label(lab)
        A.forget()
        rbct()
        if add:
            A(f's_add_u32 s73, s73, {add}')
        A(f's_lshl_b32 s39, s73, {sh}')
        A('s_add_u32 s39, s39, s74')
        A(f's_add_u32 s69, s39, {fb}')
        tl(A, cfg, 's69', 0, 24)
        fw(L.F_LN, 's73', 5, 32)
        if kind == 'GU':
            A('s_mul_i32 s74, s74, 7')
            fw(L.F_PK, 's74', 0, 7)
        else:
            fw(L.F_AB + (128 if kind == 'Y' else 0), 's74', 2, 4)
        I.item_gemm1(A, kind)
        A('s_branch W_end')
    A.label('W_pk')
    A.forget()
    rbct()
    A('s_mul_i32 s74, s74, 7')
    A('s_add_u32 s74, s74, s73')
    A(f's_add_u32 s43, s74, {L.F_PK}')
    A('s_lshl_b32 s39, s74, 2')
    A('s_add_u32 s39, s39, s13')
    A('s_mov_b64 s[46:47], s[74:75]')
    srd(A, 68, 34, 35, 448 * 3584)
    srd(A, 72, 36, 37, 448 * 3584)
    prep.wave_pack(A, 'GU', 7, ' sc1')
    A('s_mov_b64 s[74:75], s[46:47]')
    A('s_mov_b32 s69, s43')
    A('s_barrier')
    A('s_branch W_end')
    A.label('W_pw')
    A.forget()
    rbct()
    A(f's_add_u32 s43, s74, {L.F_PK + 112}')
    A('s_lshl_b32 s39, s74, 2')
    A('s_add_u32 s39, s39, s13')
    srd(A, 68, 64, 65, 1792 * 896)
    prep.wave_pack(A, 'WD', 7, ' sc1', 's[68:71]')
    A('s_mov_b32 s69, s43')
    A('s_barrier')
    A('s_branch W_end')
    A.label('W_g2')
    A.forget()
    rbct()
    A('s_mov_b32 s39, s74')
    A(f's_add_u32 s69, s39, {L.F_G2}')
    tl(A, cfg, 's69', 0, 24)
    chain.flag_wait(A, L.F_PK + 112, 56, 8, sleep=8)
    A('s_lshr_b32 s70, s39, 3')
    A('s_lshl_b32 s70, s70, 4')
    A('s_and_b32 s38, s39, 1')
    A('s_lshl_b32 s38, s38, 3')
    A('s_add_u32 s70, s70, s38')
    A(f's_add_u32 s70, s70, {L.F_GU}')
    chain.flag_wait(A, 's70', 8, 8, sleep=16)
    I.item_gemm2(A)
    A('s_branch W_end')
    A.label('W_late')
    A.forget()
    LAG = cfg.get('lag', 5)
    A(f's_cmp_ge_u32 s68, {(64 + LAG) * 11}')
    A('s_cbranch_scc1 L_bail')
    A('s_mul_hi_u32 s71, s68, 0x1745d175')
    A('s_mul_i32 s38, s71, 11')
    A('s_sub_u32 s72, s68, s38')
    A('s_cmp_ge_u32 s72, 4')
    A('s_cbranch_scc1 W_pv')
    A('s_cmp_ge_u32 s71, 64')
    A('s_cbranch_scc1 W_skip')
    A('s_lshl_b32 s39, s71, 2')
    A('s_add_u32 s39, s39, s72')
    A(f's_add_u32 s69, s39, {L.F_P}')
    tl(A, cfg, 's69', 0, 24)
    chain.flag_wait(A, L.F_INIT, 32, 8, sleep=16)
    A('s_lshr_b32 s70, s71, 3')
    A('s_lshl_b32 s70, s70, 5')
    A('s_lshl_b32 s38, s72, 3')
    A('s_add_u32 s70, s70, s38')
    A(f's_add_u32 s70, s70, {L.F_T}')
    chain.flag_wait(A, 's70', 8, 8, sleep=16)
    I.item_punit(A)
    A('s_branch W_end')
    A.label('W_skip')
    A('s_barrier')
    A('s_branch W_deq')
    A.label('W_pv')
    A.forget()
    A(f's_cmp_lt_u32 s71, {LAG}')
    A('s_cbranch_scc1 W_skip')
    A(f's_sub_u32 s71, s71, {LAG}')
    A('s_mul_i32 s39, s71, 7')
    A('s_add_u32 s39, s39, s72')
    A('s_sub_u32 s39, s39, 4')
    A(f's_add_u32 s69, s39, {L.F_PV}')
    tl(A, cfg, 's69', 0, 24)
    chain.flag_wait(A, L.F_INIT, 32, 8, sleep=16)
    A('s_lshr_b32 s70, s71, 3')
    A('s_lshl_b32 s70, s70, 5')
    A('s_lshr_b32 s38, s71, 2')
    A('s_lshl_b32 s38, s38, 5')
    A(f's_add_u32 s38, s38, {L.F_Y0}')
    A('s_cmp_lt_u32 s71, 8')
    A('s_cselect_b32 s70, s38, s70')
    chain.flag_wait(A, 's70', 32, 8, sleep=16)
    A('s_lshr_b32 s70, s71, 2')
    A('s_lshl_b32 s70, s70, 2')
    A(f's_add_u32 s70, s70, {L.F_G2}')
    chain.flag_wait(A, 's70', 4, 8, sleep=16)

    def wait_px(A):
        I.approach(A, 's71', 12, 0)
        A('s_cmp_ge_u32 s71, 62')
        A('s_cbranch_scc1 W_ymf')
        A('s_add_u32 s38, s71, 2')
        A('s_lshl_b32 s38, s38, 13')
        A('s_lshr_b32 s70, s54, 1')
        A('s_lshl_b32 s70, s70, 10')
        A('s_add_u32 s38, s38, s70')
        A(f's_add_u32 s38, s38, {L.MEMX}')
        A('v_mov_b32 v12, 0')
        A.label('W_ymp', keep=True)
        I.guard(A)
        A(f'buffer_load_dword v13, v12, {SRD}, s38 offen sc1')
        A('s_waitcnt vmcnt(0)')
        A('v_cmp_eq_u32 vcc, -1, v13')
        A('s_cbranch_vccz W_ymok')
        A('s_sleep 16')
        A('s_branch W_ymp')
        A.label('W_ymf', keep=True)
        chain.flag_wait(A, 's43', 2, 12, sleep=4)
        A.label('W_ymok', keep=True)
        A('s_lshl_b32 s70, s71, 2')
        A(f's_add_u32 s70, s70, {L.F_P}')
        chain.flag_wait(A, 's70', 4, 12, sleep=2)
    def early_deq(A):
        A('s_cmp_lg_u32 s13, 0')
        A('s_cbranch_scc1 W_ed')
        A('s_mov_b64 exec, 1')
        dequeue()
        A('s_mov_b64 exec, -1')
        A.label('W_ed', keep=True)
    I.item_pvunit(A, wait_px, hook=early_deq)
    A.forget()
    tl(A, cfg, 's69', 1, 24)
    A('s_cmp_lg_u32 s13, 0')
    A('s_cbranch_scc1 W_e2')
    A('s_mov_b64 exec, 1')
    A('ds_write_b32 v28, v30')
    A('s_mov_b64 exec, -1')
    A('s_waitcnt lgkmcnt(0)')
    A('s_barrier')
    A('s_branch W_next')
    A.label('W_end')
    A.forget()
    A('s_cmp_lg_u32 s13, 0')
    A('s_cbranch_scc1 W_e1')
    A('v_readfirstlane_b32 s38, v29')
    A('v_mov_b32 v30, -1')
    A('s_cmp_lt_u32 s38, 32')
    A('s_cbranch_scc1 W_e1')
    A('s_mov_b64 exec, 1')
    dequeue()
    A('s_mov_b64 exec, -1')
    A('global_load_dword v29, v31, s[4:5] sc1')
    A.label('W_e1')
    A('s_waitcnt vmcnt(0)')
    tl(A, cfg, 's69', 1, 24)
    A('s_cmp_lg_u32 s13, 0')
    A('s_cbranch_scc1 W_e2')
    A('s_mov_b64 exec, 1')
    A('ds_write_b32 v28, v30')
    A('s_waitcnt lgkmcnt(0)')
    A('s_barrier')
    flag_store(A, 's69')
    A('s_mov_b64 exec, -1')
    A('s_branch W_next')
    A.label('W_e2')
    A('s_barrier')
    A('s_branch W_next')
    A.label('W_claim')
    A('s_barrier')
    A('s_branch CLAIM')


def build(cfg):
    cfg = dict(cfg)
    cfg['fused'] = 1
    I.CFG.update(cfg)
    A = Asm()
    cfg.setdefault('ntouch', 4)
    if cfg.get('aslist'):
        A.raw(f'; @launch kernel={NAME} grid=(256,1,1) block=(256,1,1) lds=151552')
    else:
        A.raw('; @launch grid=(256,1,1) block=(256,1,1) lds=151552')
    A.raw('.amdgcn_target "amdgcn-amd-amdhsa--gfx950"\n.text')
    A.raw(f'.globl {NAME}\n.p2align 8\n.type {NAME},@function')
    A.label(NAME)
    emit_main(A, cfg)
    A.raw('.section .rodata,"a"')
    A.raw('.p2align 6')
    A.raw(KD.format(name=NAME))
    return A.text()


if __name__ == '__main__':
    cfg = {}
    for kv in sys.argv[2:]:
        k, val = kv.split('=')
        cfg[k] = int(val)
    open(sys.argv[1], 'w').write(build(cfg))
```

```python
import re

REG_RE = re.compile(r'^(-|abs\()?([vas])(?:(\d+)|\[(\d+):(\d+)\])\)?$')


def regs_of(tok):
    tok = tok.strip()
    if tok in ('vcc', 'vcc_lo', 'vcc_hi'):
        return [('s', 'vcc')]
    if tok in ('exec',):
        return [('s', 'exec')]
    if tok == 'm0':
        return [('s', 'm0')]
    m = REG_RE.match(tok)
    if not m:
        return []
    c = m.group(2)
    if m.group(3) is not None:
        return [(c, int(m.group(3)))]
    return [(c, i) for i in range(int(m.group(4)), int(m.group(5)) + 1)]


def v(i, n=1):
    return f'v{i}' if n == 1 else f'v[{i}:{i + n - 1}]'


def a(i, n=1):
    return f'a{i}' if n == 1 else f'a[{i}:{i + n - 1}]'


def s(i, n=1):
    return f's{i}' if n == 1 else f's[{i}:{i + n - 1}]'


TRANS = ('v_exp_f32', 'v_log_f32', 'v_rcp_f32', 'v_rsq_f32', 'v_sqrt_f32', 'v_sin_f32', 'v_cos_f32')
MFMA_PASSES = {
    'v_mfma_f32_32x32x16_bf16': 8,
    'v_mfma_f32_16x16x32_bf16': 4,
    'v_mfma_f32_16x16x16_bf16': 4,
    'v_smfmac_f32_16x16x64_bf16': 4,
    'v_smfmac_f32_16x16x32_bf16': 4,
}


class Ins:
    __slots__ = ('text', 'op', 'rd', 'wr', 'kind', 'passes', 'srcc', 'states', 'dpp', 'ab', 'sdata')


class Asm:
    def __init__(self):
        self.lines = []
        self.hist = []
        self.vm = []
        self.lg = []
        self.smem_out = []
        self.check_wait = True
        self.nlabel = 0
        self.nins = 0
        self.deferred = []
        self.pipe_model = False

    def raw(self, t):
        self.lines.append(t)

    def comment(self, t):
        self.lines.append('    ; ' + t)

    def newlabel(self, p='L'):
        self.nlabel += 1
        return f'{p}_{self.nlabel}'

    def label(self, name, keep=False):
        self.lines.append(name + ':')
        if not keep:
            self.hist = []

    def forget(self):
        self.vm = []
        self.lg = []
        self.smem_out = []

    def wait_regs(self, *toks):
        want = set()
        for tk in toks:
            want |= set(regs_of(tk))
        parts = []
        for q, nm, mx in ((self.vm, 'vmcnt', 63), (self.lg, 'lgkmcnt', 15)):
            last = -1
            for i, ent in enumerate(q):
                if ent & want:
                    last = i
            if last >= 0:
                parts.append(f'{nm}({min(len(q) - 1 - last, mx)})')
        if parts:
            self.emit1('s_waitcnt ' + ' '.join(parts))

    def auto(self, text):
        I = self.parse(text.strip())
        toks = []
        regs = set(I.rd) | set(I.wr)
        want = regs
        parts = []
        for q, nm, mx, kinds in ((self.vm, 'vmcnt', 63, ('vmem',)), (self.lg, 'lgkmcnt', 15, ('ds',))):
            last = -1
            for i, ent in enumerate(q):
                w = set(I.rd) if I.kind in kinds else want
                if ent & w:
                    last = i
            if last >= 0:
                parts.append(f'{nm}({min(len(q) - 1 - last, mx)})')
        if parts:
            self.emit1('s_waitcnt ' + ' '.join(parts))
        self.emit1(text.strip())

    def snapshot(self):
        return ([set(x) for x in self.vm], [set(x) for x in self.lg], [set(x) for x in self.smem_out], list(self.hist))

    def restore(self, snap):
        self.vm = [set(x) for x in snap[0]]
        self.lg = [set(x) for x in snap[1]]
        self.smem_out = [set(x) for x in snap[2]]
        self.hist = list(snap[3])

    def parse(self, text):
        I = Ins()
        I.text = text
        t = text.split(';')[0].strip()
        parts = t.split(None, 1)
        op = parts[0]
        I.op = op
        rest = parts[1] if len(parts) > 1 else ''
        ops = []
        cur = ''
        depth = 0
        for ch in rest:
            if ch in '[(':
                depth += 1
            if ch in '])':
                depth -= 1
            if ch == ',' and depth == 0:
                ops.append(cur.strip())
                cur = ''
            else:
                cur += ch
        if cur.strip():
            ops.append(cur.strip())
        mods = ''
        if ops:
            sp = ops[-1].split(None, 1)
            if len(sp) > 1:
                ops[-1] = sp[0]
                mods = sp[1]
        I.rd, I.wr = [], []
        I.kind = 'other'
        I.passes = 0
        I.srcc = []
        I.ab = []
        I.sdata = []
        I.states = 1
        I.dpp = ('_dpp' in op) or ('row_' in mods) or ('quad_perm' in mods)
        R = regs_of
        if op == 's_nop':
            I.states = int(ops[0], 0) + 1
            I.kind = 'nop'
        elif op in MFMA_PASSES:
            I.kind = 'mfma'
            I.passes = MFMA_PASSES[op]
            I.wr = R(ops[0])
            if op.startswith('v_smfmac'):
                I.srcc = R(ops[0])
                I.ab = R(ops[1]) + R(ops[2]) + R(ops[3])
            else:
                I.srcc = R(ops[3])
                I.ab = R(ops[1]) + R(ops[2])
            I.rd = I.srcc + I.ab
        elif op.startswith('buffer_load') or op.startswith('global_load'):
            I.kind = 'vmem'
            if 'lds' in mods.split() or '_lds_' in op:
                I.rd = sum((R(o) for o in ops), []) + [('s', 'm0')]
                I.kind = 'vmem_lds'
            else:
                I.wr = R(ops[0])
                I.rd = sum((R(o) for o in ops[1:]), [])
        elif op.startswith('buffer_store'):
            I.kind = 'vmem'
            I.rd = sum((R(o) for o in ops), [])
            if 'x4' in op or 'x3' in op:
                I.sdata = R(ops[0])
        elif op.startswith('global_store'):
            I.kind = 'vmem'
            I.rd = sum((R(o) for o in ops), [])
            if 'x4' in op or 'x3' in op:
                I.sdata = R(ops[1])
        elif op.startswith('buffer_atomic') or op.startswith('global_atomic'):
            I.kind = 'vmem'
            I.rd = sum((R(o) for o in ops), [])
            if 'sc0' in mods.split():
                I.wr = R(ops[0])
        elif op in ('buffer_inv', 'buffer_wbl2'):
            I.kind = 'vmem'
        elif op.startswith('ds_read') or op.startswith('ds_bpermute') or op.startswith('ds_swizzle'):
            I.kind = 'ds'
            I.wr = R(ops[0])
            I.rd = sum((R(o) for o in ops[1:]), [])
        elif op.startswith('ds_'):
            I.kind = 'ds'
            I.rd = sum((R(o) for o in ops), [])
        elif op.startswith('s_load') or op in ('s_memtime', 's_memrealtime'):
            I.kind = 'smem'
            I.wr = R(ops[0])
            I.rd = sum((R(o) for o in ops[1:]), [])
        elif op.startswith('v_'):
            I.kind = 'valu'
            base = op.replace('_e32', '').replace('_e64', '').replace('_dpp', '')
            if base.startswith('v_permlane'):
                I.wr = R(ops[0]) + R(ops[1])
                I.rd = R(ops[0]) + R(ops[1])
                I.kind = 'valu'
            elif base.startswith('v_cmp'):
                I.wr = R(ops[0])
                I.rd = sum((R(o) for o in ops[1:]), [])
            elif base in ('v_add_co_u32', 'v_addc_co_u32', 'v_sub_co_u32'):
                I.wr = R(ops[0]) + R(ops[1])
                I.rd = sum((R(o) for o in ops[2:]), [])
            else:
                I.wr = R(ops[0])
                I.rd = sum((R(o) for o in ops[1:]), [])
                if base in ('v_fmac_f32', 'v_dot2c_f32_bf16', 'v_writelane_b32') or I.dpp:
                    I.rd += R(ops[0])
        elif op.startswith('s_'):
            I.kind = 'salu'
            if op.startswith('s_cmp') or op.startswith('s_cbranch') or op in (
                    's_branch', 's_barrier', 's_waitcnt', 's_endpgm', 's_sleep', 's_setprio', 's_bitcmp1_b32', 's_bitcmp0_b32'):
                I.rd = sum((R(o) for o in ops), [])
            elif 'saveexec' in op:
                I.wr = R(ops[0]) + [('s', 'exec')]
                I.rd = sum((R(o) for o in ops[1:]), [])
            else:
                I.wr = R(ops[0]) if ops else []
                I.rd = sum((R(o) for o in ops[1:]), [])
        else:
            raise ValueError('unknown op ' + op)
        return I

    def need(self, P, C):
        n = 0
        Pw, Cr, Cw = set(P.wr), set(C.rd), set(C.wr)
        cop = C.op
        if P.kind == 'valu':
            vw = {r for r in Pw if r[0] in 'va'}
            sw = {r for r in Pw if r[0] == 's'}
            if C.kind == 'mfma' and vw & Cr:
                n = max(n, 2)
            if C.kind == 'valu':
                if (cop.startswith('v_permlane') or C.dpp) and vw & Cr:
                    n = max(n, 2)
                if (cop.startswith('v_readfirstlane') or cop.startswith('v_readlane')) and vw & Cr:
                    n = max(n, 1)
                if P.op.replace('_e32', '').replace('_e64', '') in TRANS and vw & Cr:
                    n = max(n, 1)
                if sw & Cr:
                    n = max(n, 4 if (cop.startswith('v_readlane') or cop.startswith('v_writelane')) else 2)
            if C.kind in ('vmem', 'vmem_lds') and sw & Cr:
                n = max(n, 5)
            if C.kind in ('salu', 'smem') and sw & Cr and not cop.startswith('s_cbranch'):
                n = max(n, 1)
        if P.kind == 'mfma':
            big = {2: 5, 4: 8, 8: 12, 16: 20}[P.passes]
            ovl = {2: 4, 4: 6, 8: 10, 16: 18}[P.passes]
            if C.kind == 'mfma':
                if Pw & set(C.ab):
                    n = max(n, big)
                if Pw & set(C.srcc):
                    if not (P.wr == C.srcc and P.passes == C.passes):
                        n = max(n, ovl)
                elif Pw & Cw:
                    n = max(n, ovl)
            elif C.kind in ('valu', 'vmem', 'vmem_lds', 'ds'):
                if Pw & (Cr | Cw):
                    n = max(n, big)
            if C.kind == 'valu' and set(P.srcc) & Cw:
                n = max(n, {2: 1, 4: 3, 8: 7, 16: 15}[P.passes])
        if P.kind == 'vmem' and P.sdata and set(P.sdata) & Cw:
            n = max(n, 2)
        if P.kind == 'salu' and ('s', 'm0') in Pw and C.kind == 'vmem_lds':
            n = max(n, 1)
        return n

    def __call__(self, text):
        for line in text.strip().split('\n'):
            line = line.strip()
            if not line or line.startswith(';'):
                continue
            self.emit1(line)

    def _pad(self, I):
        pad = 0
        dist = 0
        tail = 0
        seen = False
        psum = 0
        for P in reversed(self.hist):
            req = self.need(P, I)
            eff = dist
            if self.pipe_model and P.kind == 'mfma' and seen:
                eff = max(dist, self._occ(P) + psum + tail - 1)
            if req > eff:
                pad = max(pad, req - eff)
            dist += P.states
            if P.kind == 'mfma':
                if seen:
                    psum += self._occ(P)
                else:
                    seen = True
                    tail = dist
            if dist >= 20:
                break
        return pad

    @staticmethod
    def _occ(P):
        return 2 if P.op in ('v_mfma_f32_16x16x16_bf16', 'v_smfmac_f32_16x16x32_bf16') else P.passes

    def pad_needed(self, text):
        return self._pad(self.parse(text.strip()))

    def emit1(self, text):
        I = self.parse(text)
        pad = self._pad(I)
        while pad > 0:
            k = min(pad, 16)
            N = self.parse(f's_nop {k - 1}')
            self.lines.append(f'    s_nop {k - 1}')
            self.hist.append(N)
            self.nins += 1
            pad -= k
        if self.check_wait:
            touched = set(I.rd) | set(I.wr)
            for q, nm in ((self.vm, 'vmcnt'), (self.lg, 'lgkmcnt'), (self.smem_out, 'smem')):
                for ent in q:
                    if ent & touched:
                        if nm == 'vmcnt' and I.kind == 'vmem' and not (ent & set(I.rd)):
                            continue
                        if nm == 'lgkmcnt' and I.kind == 'ds' and not (ent & set(I.rd)):
                            continue
                        raise RuntimeError(f'register touched while load outstanding ({nm}): {text}  regs {sorted(ent & touched, key=str)}')
        if I.op == 's_waitcnt':
            m = re.search(r'vmcnt\((\d+)\)', text)
            if m:
                n = int(m.group(1))
                self.vm = self.vm[len(self.vm) - n:] if n < len(self.vm) else self.vm
                if n == 0:
                    self.vm = []
            m = re.search(r'lgkmcnt\((\d+)\)', text)
            if m:
                n = int(m.group(1))
                self.lg = self.lg[len(self.lg) - n:] if n < len(self.lg) else self.lg
                if n == 0:
                    self.lg = []
                    self.smem_out = []
        if I.kind in ('vmem', 'vmem_lds'):
            self.vm.append(set(I.wr))
        if I.kind == 'ds':
            self.lg.append(set(I.wr))
        if I.kind == 'smem':
            self.smem_out.append(set(I.wr))
        self.lines.append('    ' + text)
        self.hist.append(I)
        self.nins += 1
        if len(self.hist) > 40:
            self.hist = self.hist[-40:]

    def text(self):
        return '\n'.join(self.lines) + '\n'
```

```python
from asmdsl import v, a, s
import layout as L

SRD = 's[8:11]'
NSTEP = 63


def stamp(A, cfg, slot):
    if cfg.get('stamps'):
        A(f's_memtime s[{40 + 2 * slot}:{41 + 2 * slot}]')


def rstamp(A, cfg, slot):
    if cfg.get('stamps'):
        A(f's_memrealtime s[{40 + 2 * slot}:{41 + 2 * slot}]')


def stamp_flush(A, cfg, nslots, base_sreg, vt):
    if not cfg.get('stamps'):
        return
    A('s_waitcnt lgkmcnt(0)')
    for k in range(nslots):
        A(f'v_mov_b32 {v(vt)}, s{40 + 2 * k}')
        A(f'v_mov_b32 {v(vt + 1)}, 0')
        A(f'buffer_store_dword {v(vt)}, {v(vt + 1)}, {SRD}, s{base_sreg} offen offset:{4 * k}')
    A(f's_add_u32 s{base_sreg}, s{base_sreg}, 64')


def guard(A):
    A('s_add_u32 s33, s33, 1')
    A('s_cmp_gt_u32 s33, 0x200000')
    A('s_cbranch_scc1 L_bail')


def tl(A, cfg, idx_sreg_or_int, slot, vt, base=0):
    if not cfg.get('tl'):
        return
    A('s_memrealtime s[100:101]')
    A('s_waitcnt lgkmcnt(0)')
    A(f'v_mov_b32 {v(vt)}, s100')
    A(f'v_mov_b32 {v(vt + 1)}, 0')
    if isinstance(idx_sreg_or_int, int):
        A(f's_mov_b32 s101, {L.STAMP + base + idx_sreg_or_int * 16}')
    else:
        A(f's_lshl_b32 s101, {idx_sreg_or_int}, 4')
        A(f's_add_u32 s101, s101, {L.STAMP + base}')
    A(f'buffer_store_dword {v(vt)}, {v(vt + 1)}, {SRD}, s101 offen offset:{slot * 4}')


def flag_wait(A, first, n, vt, sleep=8):
    A(f'v_and_b32 {v(vt)}, 63, v0')
    A(f'v_min_u32 {v(vt)}, {n - 1}, {v(vt)}')
    A(f'v_lshlrev_b32 {v(vt)}, 3, {v(vt)}')
    if isinstance(first, int):
        A(f's_mov_b32 s38, {L.FLAGS + 8 * first}')
    else:
        A(f's_lshl_b32 s38, {first}, 3')
        A(f's_add_u32 s38, s38, {L.FLAGS}')
    lab, ok = A.newlabel('FW'), A.newlabel('FWok')
    A.label(lab, keep=True)
    guard(A)
    A(f'buffer_load_dwordx2 {v(vt + 2, 2)}, {v(vt)}, {SRD}, s38 offen sc1')
    A('s_waitcnt vmcnt(0)')
    A(f'v_cmp_ne_u64 vcc, s[96:97], {v(vt + 2, 2)}')
    A(f's_cbranch_vccz {ok}')
    A(f's_sleep {sleep}')
    A(f's_branch {lab}')
    A.label(ok, keep=True)


def flag_wait_multi(A, firsts, vt, sleep=4):
    A(f'v_and_b32 {v(vt)}, 63, v0')
    A(f'v_lshlrev_b32 {v(vt)}, 3, {v(vt)}')
    lab, ok = A.newlabel('FM'), A.newlabel('FMok')
    A.label(lab, keep=True)
    guard(A)
    for i, f in enumerate(firsts):
        A(f's_mov_b32 s38, {L.FLAGS + 8 * f}')
        A(f'buffer_load_dwordx2 {v(vt + 2 + 2 * i, 2)}, {v(vt)}, {SRD}, s38 offen sc1')
    A('s_waitcnt vmcnt(0)')
    A('s_mov_b64 s[40:41], 0')
    for i in range(len(firsts)):
        A(f'v_cmp_ne_u64 vcc, s[96:97], {v(vt + 2 + 2 * i, 2)}')
        A('s_or_b64 s[40:41], s[40:41], vcc')
    A(f's_cbranch_scc0 {ok}')
    A(f's_sleep {sleep}')
    A(f's_branch {lab}')
    A.label(ok, keep=True)


def fill_share(A, base, kb_per_wave, widx_sreg, vt, vlin):
    for r in range(4):
        A(f'v_mov_b32 {v(vt + r)}, -1')
    A(f's_mul_i32 s38, {widx_sreg}, {kb_per_wave * 1024}')
    A(f's_add_u32 s38, s38, {base}')
    for k in range(kb_per_wave):
        if k and k % 4 == 0:
            A('s_add_u32 s38, s38, 4096')
        A(f'buffer_store_dwordx4 {v(vt, 4)}, {v(vlin)}, {SRD}, s38 offen offset:{(k & 3) * 1024} sc1')


def start_gate(A, cfg, vt):
    if not cfg.get('fused'):
        A('s_mov_b32 s12, 0')
        return
    flag_wait_multi(A, [L.F_Y0, L.F_LN, L.F_LN + 64, L.F_LN + 128, L.F_LN + 192], vt)
    lab, ok = A.newlabel('SG'), A.newlabel('SGok')
    A(f'v_mov_b32 {v(vt)}, 0')
    A.label(lab, keep=True)
    guard(A)
    A(f'global_load_dword {v(vt + 2)}, {v(vt)}, s[4:5] offset:8 sc1')
    A('s_waitcnt vmcnt(0)')
    A(f'v_readfirstlane_b32 s12, {v(vt + 2)}')
    A('s_and_b32 s38, s12, 63')
    A('s_cmp_ge_u32 s38, 32')
    A(f's_cbranch_scc1 {ok}')
    A('s_sleep 8')
    A(f's_branch {lab}')
    A.label(ok, keep=True)
    A('s_bfe_u32 s38, s12, 0x90006')
    A('s_mul_i32 s38, s38, s38')
    A('s_lshr_b32 s12, s12, 15')
    A('s_lshl_b32 s12, s12, 5')
    A('s_cmp_lg_u32 s12, s38')
    A('s_cselect_b32 s12, 1, 0')


def mid_gate(A, cfg, vt):
    if not cfg.get('fused'):
        return
    for step, ranges in ((5, ((32, 32),)), (13, ((64, 64),)), (29, ((128, 64), (192, 64)))):
        skip = A.newlabel('MG')
        A(f's_cmp_lg_u32 s15, {step}')
        A(f's_cbranch_scc1 {skip}')
        for f, n in ranges:
            flag_wait(A, f, n, vt)
        A.label(skip, keep=True)


def dual_store(A, text):
    slow, done = A.newlabel('DS'), A.newlabel('DSd')
    A('s_cmp_lg_u32 s12, 0')
    A(f's_cbranch_scc1 {slow}')
    A(text)
    A.label(done, keep=True)
    A.deferred.append((slow, text + ' sc1', done))


def flush_deferred(A):
    for slow, text, done in A.deferred:
        A.label(slow)
        A.raw('    ' + text)
        A.raw(f'    s_branch {done}')
    A.deferred = []


def align(A, cfg, key, default=0):
    n = cfg.get(key, default)
    if n < 0:
        return
    A.raw('    .p2align 6')
    for _ in range(n // 4):
        A.raw('    s_nop 0')


def lane_fields(A, vl):
    A(f'v_and_b32 {v(vl)}, 63, v0')


def emit_koffs(A):
    A('s_lshl_b32 s23, s13, 1')
    for k in range(7):
        A(f's_add_u32 s{16 + k}, s23, {k}')
        A(f's_cmp_ge_u32 s{16 + k}, 7')
        A(f's_cselect_b32 s24, 7, 0')
        A(f's_sub_u32 s{16 + k}, s{16 + k}, s24')
        A(f's_lshl_b32 s{16 + k}, s{16 + k}, 10')


def warm_vm(A, n, vw, cfg):
    if cfg.get('nowarm'):
        A(f's_waitcnt vmcnt({n})')
        return
    lab = A.newlabel('W')
    A.label(lab, keep=True)
    A(f'v_mov_b32 {v(vw)}, {v(vw)}')
    A(f's_getreg_b32 s38, hwreg(HW_REG_IB_STS, 0, 4)')
    A(f's_cmp_gt_u32 s38, {n}')
    A(f'v_mov_b32 {v(vw)}, {v(vw)}')
    A(f's_cbranch_scc1 {lab}')
    A(f's_waitcnt vmcnt({n})')


def keepalive(A, vw, n, cfg):
    if cfg.get('nowarm'):
        return
    for _ in range(n):
        A(f'v_mov_b32 {v(vw)}, {v(vw)}')


def warm_mfma(A, base, cfg):
    if cfg.get('nowarm'):
        return
    A(f'v_mfma_f32_32x32x16_bf16 {v(base, 16)}, {v(base + 16, 4)}, {v(base + 16, 4)}, {v(base, 16)}')


def check_regs(A, tmp, regs, autowait=True):
    E = A.auto if autowait else A
    E(f'v_max3_u32 {v(tmp)}, {v(regs[0])}, {v(regs[1])}, {v(regs[2])}')
    i = 3
    while i + 1 < len(regs):
        E(f'v_max3_u32 {v(tmp)}, {v(tmp)}, {v(regs[i])}, {v(regs[i + 1])}')
        i += 2
    if i < len(regs):
        E(f'v_max_u32 {v(tmp)}, {v(tmp)}, {v(regs[i])}')
    A(f'v_cmp_eq_u32 vcc, -1, {v(tmp)}')


def sparse_idx(A, vIDX, vL, t2, t3):
    A(f'v_and_b32 {v(t2)}, 8, {v(vL)}')
    A(f'v_cmp_ne_u32 vcc, 0, {v(t2)}')
    A(f'v_mov_b32 {v(t2)}, 0x4444')
    A(f'v_mov_b32 {v(t3)}, 0xeeee')
    A(f'v_cndmask_b32 {v(vIDX)}, {v(t2)}, {v(t3)}, vcc')


def emit_A(A, cfg):
    W5 = 0x0000
    MIMG = 0xE000
    TIMG = 0x10000
    SIMG = 0x14800
    QS = 144
    vL, vIDX, vMA, vMKa, vMKb, vMK3, vW5, vXK, vXK3, vTW, vTW6, vTR, vTR3, vSW, vSR, vPS, vPF = range(1, 18)
    vM = lambda k: 18 + k
    vSW2 = 25
    vT0 = 26
    M = lambda k: 32 + 4 * k
    ACC = lambda n: 60 + 4 * n
    WS5 = lambda b: 88 + 8 * b
    XK = lambda q, t: 112 + 8 * q + 4 * t
    XK3 = lambda t: 136 + 2 * t
    PSET = lambda r: 140 + 8 * r
    MK = lambda q: 140 + 4 * q
    TB = lambda q: (ACC(2 * q) if q < 3 else ACC(6) + 2)
    SACC = lambda t: 156 + 4 * t
    vDUM = 168
    LT = 1
    PORD = [1, 2, 0]
    regtiles = [0, 2, 3, 4, 5, 6]

    def W(n, k):
        i = regtiles.index(n) * 7 + k
        return a(8 * i, 8) if i < 32 else v(176 + 8 * (i - 32), 8)

    def Whalf(n, k, eh):
        i = regtiles.index(n) * 7 + k
        return a(8 * i + 4 * eh, 4) if i < 32 else v(176 + 8 * (i - 32) + 4 * eh, 4)

    t0, t1, t2, t3 = vT0, vT0 + 1, vT0 + 2, vT0 + 3
    A.pipe_model = bool(cfg.get('pipe', 1))
    tl(A, cfg, 's14', 0, 30, 0x18000)
    lane_fields(A, vL)
    emit_koffs(A)
    A(f'v_and_b32 {v(t0)}, 15, {v(vL)}')
    A(f'v_lshrrev_b32 {v(t1)}, 4, {v(vL)}')
    sparse_idx(A, vIDX, vL, t2, t3)
    A(f'v_lshlrev_b32 {v(t2)}, 9, {v(t1)}')
    A(f'v_lshl_add_u32 {v(vPF)}, {v(t0)}, 4, {v(t2)}')
    if cfg.get('fused'):
        A('s_lshl_b32 s23, s14, 3')
        A('s_lshr_b32 s24, s13, 1')
        A('s_lshl_b32 s24, s24, 2')
        A('s_add_u32 s23, s23, s24')
        A(f's_add_u32 s23, s23, {L.F_AB}')
        flag_wait(A, 's23', 4, 32, sleep=2)
    A(f's_mul_i32 s25, s14, {14 * 28672}')
    A(f's_add_u32 s25, s25, {L.WF + L.NB_A * 28672}')
    A(f's_mul_i32 s26, s13, 7')
    A(f's_mul_i32 s28, s13, 14336')
    cnt = 0
    for n in range(7):
        A(f's_add_u32 s23, s26, {n}')
        A(f's_lshr_b32 s24, s23, 1')
        A(f's_mul_i32 s24, s24, 28672')
        A(f's_and_b32 s23, s23, 1')
        A(f's_lshl_b32 s23, s23, 8')
        A(f's_add_u32 s27, s25, s24')
        A(f's_add_u32 s27, s27, s23')
        for k in range(7):
            A(f's_lshl_b32 s23, s{16 + k}, 2')
            A(f's_add_u32 s23, s23, s27')
            for eh in range(2):
                if n == LT:
                    A(f's_add_u32 s24, s28, {W5 + (k * 2 + eh) * 1024}')
                    A(f's_mov_b32 m0, s24')
                    if eh:
                        A(f's_add_u32 s23, s23, 2048')
                    A(f'buffer_load_dwordx4 {v(vPF)}, {SRD}, s23 offen sc1 lds')
                else:
                    A(f'buffer_load_dwordx4 {Whalf(n, k, eh)}, {v(vPF)}, {SRD}, s23 offen offset:{2048 * eh} sc1')
                cnt += 1
                if cnt % 16 == 0:
                    A('s_waitcnt vmcnt(40)')
    A(f'v_lshlrev_b32 {v(vMA)}, 4, {v(vL)}')
    A(f'v_add_u32 {v(vW5)}, s28, {v(vMA)}')
    for k in range(7):
        A(f's_add_u32 s23, s{16 + k}, {MIMG}')
        A(f'v_add_u32 {v(vM(k))}, s23, {v(vMA)}')
    A(f'v_add_u32 {v(vMA)}, {L.MEMA}, {v(vMA)}')
    A(f'v_and_b32 {v(t2)}, 7, {v(vL)}')
    A(f'v_lshlrev_b32 {v(t2)}, 4, {v(t2)}')
    A(f's_mul_i32 s23, s13, {7 * 256}')
    A(f's_add_u32 s23, s23, {MIMG}')
    A(f'v_lshrrev_b32 {v(t3)}, 1, {v(t1)}')
    A(f'v_lshl_add_u32 {v(vMKa)}, {v(t3)}, 8, {v(t2)}')
    A(f'v_and_b32 {v(t3)}, 1, {v(t1)}')
    A(f'v_lshl_add_u32 {v(vMKa)}, {v(t3)}, 3, {v(vMKa)}')
    A(f'v_add_u32 {v(vMKa)}, s23, {v(vMKa)}')
    A(f'v_add_u32 {v(vMKb)}, 1024, {v(vMKa)}')
    A(f'v_lshl_add_u32 {v(vMK3)}, {v(t1)}, 2, {v(t2)}')
    A(f's_add_u32 s23, s23, {6 * 256}')
    A(f'v_add_u32 {v(vMK3)}, s23, {v(vMK3)}')
    A(f'v_and_b32 {v(t2)}, 6, {v(t0)}')
    A(f'v_lshlrev_b32 {v(t2)}, 1, {v(t2)}')
    A(f'v_lshrrev_b32 {v(t3)}, 3, {v(t0)}')
    A(f'v_lshl_add_u32 {v(t2)}, {v(t3)}, 1, {v(t2)}')
    A(f'v_and_b32 {v(t3)}, 1, {v(t0)}')
    A(f'v_add_u32 {v(t2)}, {v(t3)}, {v(t2)}')
    A(f'v_lshlrev_b32 {v(t2)}, 4, {v(t2)}')
    A(f'v_lshl_add_u32 {v(vXK)}, {v(t1)}, 9, {v(t2)}')
    A(f'v_lshrrev_b32 {v(t3)}, 1, {v(t1)}')
    A(f'v_lshl_add_u32 {v(vXK3)}, {v(t3)}, 9, {v(t2)}')
    A(f'v_and_b32 {v(t3)}, 1, {v(t1)}')
    A(f'v_lshl_add_u32 {v(vXK3)}, {v(t3)}, 3, {v(vXK3)}')
    A(f'v_add_u32 {v(vXK3)}, {6 * 1024}, {v(vXK3)}')
    A(f's_lshl_b32 s30, s13, 11')
    A(f's_mul_i32 s23, s13, 4352')
    A(f's_add_u32 s23, s23, {TIMG}')
    def plane(dst, src, tmp):
        A(f'v_lshlrev_b32 {v(dst)}, 10, {v(src)}')
        A(f'v_and_b32 {v(tmp)}, 1, {v(src)}')
        A(f'v_lshl_add_u32 {v(dst)}, {v(tmp)}, 5, {v(dst)}')
        A(f'v_lshrrev_b32 {v(tmp)}, 1, {v(src)}')
        A(f'v_lshl_add_u32 {v(dst)}, {v(tmp)}, 7, {v(dst)}')
    plane(t2, t1, t3)
    A(f'v_lshl_add_u32 {v(vTW)}, {v(t0)}, 3, {v(t2)}')
    A(f'v_add_u32 {v(vTW)}, s23, {v(vTW)}')
    A(f'v_and_b32 {v(vTR)}, 3, {v(vL)}')
    plane(t2, vTR, t3)
    A(f'v_bfe_u32 {v(t3)}, {v(vL)}, 2, 2')
    A(f'v_lshl_add_u32 {v(t2)}, {v(t3)}, 3, {v(t2)}')
    A(f'v_lshl_add_u32 {v(vTR)}, {v(t1)}, 6, {v(t2)}')
    A(f'v_add_u32 {v(vTR)}, s23, {v(vTR)}')
    A(f'v_lshl_add_u32 {v(vTR3)}, {v(t1)}, 5, {v(t2)}')
    A(f'v_add_u32 {v(vTR3)}, {96 * 8}, {v(vTR3)}')
    A(f'v_add_u32 {v(vTR3)}, s23, {v(vTR3)}')
    A(f's_add_u32 s23, s30, {SIMG}')
    A(f'v_lshrrev_b32 {v(t3)}, 3, {v(t0)}')
    A(f'v_lshl_add_u32 {v(t2)}, {v(t3)}, 2, {v(t1)}')
    A(f'v_mul_u32_u24 {v(t2)}, {QS}, {v(t2)}')
    A(f'v_and_b32 {v(vSW2)}, 7, {v(t0)}')
    A(f'v_lshl_add_u32 {v(vSW)}, {v(vSW2)}, 4, {v(t2)}')
    A(f'v_add_u32 {v(vSW)}, s23, {v(vSW)}')
    A(f'v_lshlrev_b32 {v(vSW2)}, 4, {v(vSW2)}')
    A(f'v_lshl_add_u32 {v(vSW2)}, {v(t3)}, 3, {v(vSW2)}')
    A(f'v_add_u32 {v(t2)}, 8, {v(t1)}')
    A(f'v_mul_u32_u24 {v(t2)}, {QS}, {v(t2)}')
    A(f'v_add3_u32 {v(vSW2)}, {v(vSW2)}, {v(t2)}, s23')
    A('s_mov_b32 s36, 0xff00ff00')
    A('s_mov_b32 s37, 0xff00ff00')
    A(f'v_mov_b32 {v(t3)}, 12')
    A(f'v_cmp_gt_u32 vcc, 10, {v(t0)}')
    A(f'v_cndmask_b32 {v(t2)}, {v(t3)}, {v(t0)}, vcc')
    A(f'v_mul_u32_u24 {v(t2)}, {QS}, {v(t2)}')
    A(f's_lshl_b32 s23, s13, 2')
    A(f'v_add_u32 {v(t3)}, s23, {v(t1)}')
    A(f'v_and_b32 {v(t3)}, 7, {v(t3)}')
    A(f'v_lshl_add_u32 {v(vSR)}, {v(t3)}, 4, {v(t2)}')
    A(f'v_add_u32 {v(vSR)}, {SIMG}, {v(vSR)}')
    A(f'v_lshrrev_b32 {v(t2)}, 1, {v(t0)}')
    A(f'v_lshlrev_b32 {v(t2)}, 7, {v(t2)}')
    A(f'v_lshl_add_u32 {v(t2)}, {v(t3)}, 4, {v(t2)}')
    A(f'v_and_b32 {v(t3)}, 1, {v(t0)}')
    A(f'v_lshl_add_u32 {v(t2)}, {v(t3)}, 3, {v(t2)}')
    A(f'v_mov_b32 {v(t3)}, 0x40000000')
    A(f'v_cndmask_b32 {v(vPS)}, {v(t3)}, {v(t2)}, vcc')
    A(f'v_mov_b32 {v(t2)}, 0xf149f2ca')
    A(f'v_and_b32 {v(t3)}, 31, {v(vL)}')
    A(f'v_lshlrev_b32 {v(t3)}, 2, {v(t3)}')
    A(f's_add_u32 s23, s30, {SIMG + 12 * QS}')
    A(f'v_add_u32 {v(t3)}, s23, {v(t3)}')
    A(f'ds_write_b32 {v(t3)}, {v(t2)}')
    A('s_waitcnt vmcnt(0)')
    A(f'v_lshlrev_b32 {v(vPF)}, 7, {v(vL)}')
    A(f's_mul_i32 s24, s14, 640')
    A(f's_add_u32 s24, s24, {L.PBUF}')
    A(f's_mul_i32 s25, s13, 7168')
    A(f's_add_u32 s25, s25, {L.XF}')
    NT = cfg.get('ntouch', 2)
    A(f's_mul_i32 s26, s14, {NT}')
    A(f's_add_u32 s26, s26, s13')
    A(f's_min_u32 s26, s26, 55')
    A(f's_lshl_b32 s26, s26, 13')
    A(f's_add_u32 s26, s26, {L.YF + cfg.get("pfdist", 2) * 16 * 28672}')
    A(f's_cmp_ge_u32 s13, {NT}')
    A(f's_cselect_b32 s23, 0x40000000, 0')
    A(f'v_add_u32 {v(vPF)}, s23, {v(vPF)}')
    A(f's_mov_b32 s15, 0')
    if cfg.get('stamps'):
        A(f's_lshl_b32 s32, s14, 2')
        A(f's_add_u32 s32, s32, s13')
        A(f's_lshl_b32 s32, s32, 12')
        A(f's_add_u32 s32, s32, {L.STAMP}')

    def xload():
        for q in range(3):
            if q == 2:
                A(f's_add_u32 s23, s25, 4096')
            for tt in range(2):
                if q < 2:
                    A(f'buffer_load_dwordx4 {v(XK(q, tt), 4)}, {v(vXK)}, {SRD}, s25 offen offset:{q * 2048 + tt * 256} sc1')
                else:
                    A(f'buffer_load_dwordx4 {v(XK(q, tt), 4)}, {v(vXK)}, {SRD}, s23 offen offset:{tt * 256} sc1')
        for tt in range(2):
            A(f'buffer_load_dwordx2 {v(XK3(tt), 2)}, {v(vXK3)}, {SRD}, s25 offen offset:{tt * 256} sc1')
        A(f's_add_u32 s25, s25, 28672')

    A('s_waitcnt vmcnt(0) lgkmcnt(0)')
    tl(A, cfg, 's14', 1, vT0 + 4, 0x18000)
    start_gate(A, cfg, M(0))
    tl(A, cfg, 's14', 2, vT0 + 4, 0x18000)
    xload()
    A('s_barrier')

    top = A.newlabel('A_top')
    poll = A.newlabel('A_poll')
    var1 = A.newlabel('A_var1')
    common = A.newlabel('A_common')
    nxt = A.newlabel('A_next')
    A.label(top)
    A.forget()
    A('s_nop 7')
    for r in range(12):
        A(f'v_mov_b32 {v(SACC(0) + r)}, 0')
    for r in range(28):
        A(f'v_mov_b32 {v(ACC(0) + r)}, 0')

    def w5read(k):
        for eh in range(2):
            A(f'ds_read_b128 {v(WS5(k % 3) + 4 * eh, 4)}, {v(vW5)} offset:{(k * 2 + eh) * 1024}')
    for k in range(3):
        w5read(k)
    A('s_waitcnt vmcnt(0) lgkmcnt(0)')
    if cfg.get('asleep', 0):
        A(f's_sleep {cfg["asleep"]}')

    def pissue(r):
        for k in range(2):
            A(f'buffer_load_dwordx4 {v(PSET(r) + 4 * k, 4)}, {v(vMA)}, {SRD}, s{16 + k} offen sc1')
    var0 = A.newlabel('A_var0')

    def quick(r):
        keepalive(A, vDUM + 1, cfg.get('kap', 0), cfg)
        check_regs(A, t0, [PSET(r) + i for i in range(8)])
    pissue(0)
    keepalive(A, vDUM + 1, cfg.get('pgapA', 20), {})
    align(A, cfg, 'alAp')
    A.label(poll, keep=True)
    guard(A)
    pissue(1)
    quick(0)
    A(f's_cbranch_vccz {var0}')
    pissue(0)
    quick(1)
    A(f's_cbranch_vccnz {poll}')

    E6 = cfg.get('early6', 2)
    BPOS = cfg.get('bpos', 3)
    tiles01 = [1, 0, 2, 3, 4, 5] + ([6] if E6 else [])

    def mf(n, k, mreg):
        wreg = v(WS5(k % 3), 8) if n == LT else W(n, k)
        return f'v_smfmac_f32_16x16x64_bf16 {v(ACC(n), 4)}, {v(mreg, 4)}, {wreg}, {v(vIDX)}'

    def variant(r):
        A.vm = [set(('v', PSET(1 - r) + i) for i in range(4)), set(('v', PSET(1 - r) + 4 + i) for i in range(4))]
        A.lg = []
        A.smem_out = []
        stamp(A, cfg, 0)
        seq = [(n, k) for k in range(2) for n in tiles01]
        rd = [k for k in range(2, 7)] + ([] if E6 else [0, 1])
        Q = PSET(r)
        full = []
        w5q = []
        for i, (n, k) in enumerate(seq):
            A(mf(n, k, PSET(r) + 4 * k))
            if i < 2:
                A(f'ds_write_b128 {v(vM(i))}, {v(PSET(r) + 4 * i, 4)}')
            if full:
                A(full.pop(0))
            if i == BPOS - 1:
                stamp(A, cfg, 5)
                A('s_waitcnt lgkmcnt(0)')
                A('s_barrier')
                stamp(A, cfg, 6)
            if n == LT:
                w5q += [(k + 3, 0), (k + 3, 1)]
            if i >= BPOS - 1:
                if rd:
                    kk = rd.pop(0)
                    A(f'ds_read_b128 {v(M(kk), 4)}, {v(vM(kk))}')
                elif w5q:
                    kk, eh = w5q.pop(0)
                    A(f'ds_read_b128 {v(WS5(kk % 3) + 4 * eh, 4)}, {v(vW5)} offset:{(kk * 2 + eh) * 1024}')
        assert not rd
        for kk, eh in w5q:
            A(f'ds_read_b128 {v(WS5(kk % 3) + 4 * eh, 4)}, {v(vW5)} offset:{(kk * 2 + eh) * 1024}')

    A.label(var1)
    variant(1)
    A(f's_branch {common}')
    align(A, cfg, 'alA0')
    A.label(var0)
    variant(0)
    A.label(common, keep=True)
    A.vm = [set(('v', PSET(0) + i) for i in range(16))]

    seq = []
    for n in (2, 3, 4, 5, 0, 1, 6):
        for k in range(E6 if n == 6 else 2, 7):
            seq.append((n, k))
    for k, pos in ((2, 0), (3, 5)):
        seq.remove((LT, k))
        seq.insert(pos, (LT, k))
    NS = len(seq)
    memq = []
    memq.append((0, f'buffer_load_dword {v(vDUM)}, {v(vPF)}, {SRD}, s26 offen'))
    for i, (n, k) in enumerate(seq):
        if n == LT and k + 3 < 7:
            for eh in range(2):
                memq.append((i, f'ds_read_b128 {v(WS5((k + 3) % 3) + 4 * eh, 4)}, {v(vW5)} offset:{((k + 3) * 2 + eh) * 1024}'))
    mkstart = cfg.get('mkpos', 3)
    memq.append((mkstart, 's_waitcnt vmcnt(1)'))
    for q in range(3):
        ad = v(vMKa) if q < 2 else v(vMKb)
        o = 128 * q if q < 2 else 0
        memq.append((mkstart, f'ds_read2_b32 {v(MK(q), 2)}, {ad} offset0:{o} offset1:{o + 32}'))
        memq.append((mkstart, f'ds_read2_b32 {v(MK(q) + 2, 2)}, {ad} offset0:{o + 1} offset1:{o + 33}'))
    memq.append((mkstart, f'ds_read2_b32 {v(MK(3), 2)}, {v(vMK3)} offset0:0 offset1:32'))
    memq.sort(key=lambda x: x[0])
    done = {}
    for i, (n, k) in enumerate(seq):
        done[n] = i
    post = []

    def tpost(n):
        C = ACC(n)
        ops = [f'v_cvt_pk_bf16_f32 {v(C)}, {v(C)}, {v(C + 1)}', f'v_cvt_pk_bf16_f32 {v(C + 1)}, {v(C + 2)}, {v(C + 3)}',
               f'ds_write_b64 {v(vTW)}, {v(C, 2)} offset:{128 * n}']
        if n == 6:
            ops += [f'ds_read_b64_tr_b16 {v(TB(3), 2)}, {v(vTR3)}']
        elif n & 1:
            p = n >> 1
            ops += [f'ds_read_b64_tr_b16 {v(TB(p), 2)}, {v(vTR)} offset:{256 * p}',
                    f'ds_read_b64_tr_b16 {v(TB(p) + 2, 2)}, {v(vTR)} offset:{256 * p + 32}']
        return ops
    for n in (2, 3, 4, 5, 0, 1):
        post.append((done[n] + cfg.get('pdelay', 2), tpost(n)))
    smf = []
    for p in PORD:
        for t in range(3):
            key = v(XK(p, t), 4) if t < 2 else v(MK(p), 4)
            smf.append(f'v_mfma_f32_16x16x32_bf16 {v(SACC(t), 4)}, {key}, {v(TB(p), 4)}, {v(SACC(t), 4)}')
    NEARLY = cfg.get('searly', 2)
    queue = []
    A.mfma_states = cfg.get('mfstates', 1)
    for i, (n, k) in enumerate(seq):
        if i in (0, 1, 10, 20, 30):
            stamp(A, cfg, 7 + (0, 1, 10, 20, 30).index(i))
        if i == NS - 3:
            for _ in range(NEARLY):
                A.auto(smf.pop(0))
        A.auto(mf(n, k, M(k)))
        for st, ops in post:
            if st == i:
                queue += ops
        nm = 0
        if queue and not queue[0].startswith('v_'):
            A(queue.pop(0))
            nm = 1
        while memq and memq[0][0] <= i and nm < 1:
            o = memq.pop(0)[1]
            A(o)
            if not o.startswith('s_'):
                nm += 1
        if queue and queue[0].startswith('v_') and A.pad_needed(queue[0]) <= cfg.get('maxpad', 0):
            A(queue.pop(0))
    assert not memq
    tailops = queue
    stamp(A, cfg, 1)
    for o in tailops:
        A(o)
    A.auto(smf.pop(0))
    A.auto(smf.pop(0))
    for o in tpost(6):
        A(o)
    stamp(A, cfg, 13)
    for m_ in smf:
        A.auto(m_)
    for t in range(3):
        key = v(XK3(t), 2) if t < 2 else v(MK(3), 2)
        A.auto(f'v_mfma_f32_16x16x16_bf16 {v(SACC(t), 4)}, {key}, {v(TB(3), 2)}, {v(SACC(t), 4)}')
    stamp(A, cfg, 12)
    for r in range(4):
        A(f'v_add_f32_dpp {v(SACC(0) + r)}, {v(SACC(0) + r)}, {v(SACC(0) + r)} row_ror:8 row_mask:0xf bank_mask:0x3')
    for r in range(4):
        A(f'v_add_f32_dpp {v(SACC(0) + r)}, {v(SACC(1) + r)}, {v(SACC(1) + r)} row_ror:8 row_mask:0xf bank_mask:0xc')
    A(f'ds_write_b128 {v(vSW)}, {v(SACC(0), 4)}')
    for r in range(2):
        A(f'v_add_f32_dpp {v(SACC(2) + r)}, {v(SACC(2) + r)}, {v(SACC(2) + r)} row_ror:8 row_mask:0xf bank_mask:0x3')
    for r in range(2):
        A(f'v_add_f32_dpp {v(SACC(2) + r)}, {v(SACC(2) + 2 + r)}, {v(SACC(2) + 2 + r)} row_ror:8 row_mask:0xf bank_mask:0xc')
    A(f'ds_write_b64 {v(vSW2)}, {v(SACC(2), 2)}')
    A('s_cmp_ge_u32 s13, 2')
    keepalive(A, vDUM + 1, cfg.get('ka1', 8), cfg)
    warm_mfma(A, M(0), cfg)
    A('s_waitcnt lgkmcnt(0)')
    A('s_barrier')
    stamp(A, cfg, 2)
    A(f's_cbranch_scc1 {nxt}')
    R = lambda w: ACC(0) + 4 * w
    for w in range(4):
        A(f'ds_read_b128 {v(R(w), 4)}, {v(vSR)} offset:{w * 2048}')
        keepalive(A, vDUM + 1, 1, cfg)
    keepalive(A, vDUM + 1, cfg.get('ka2', 8), cfg)
    s0 = R(0)
    ml, m, ll, f, e0, cm2 = R(4), R(4) + 2, R(5), R(5) + 2, R(2), R(6)
    A(f'v_mov_b32 {v(cm2)}, -2')
    A.auto(f'v_pk_add_f32 {v(R(0), 2)}, {v(R(0), 2)}, {v(R(1), 2)}')
    A(f'v_pk_add_f32 {v(R(0) + 2, 2)}, {v(R(0) + 2, 2)}, {v(R(1) + 2, 2)}')
    A.auto(f'v_pk_add_f32 {v(R(2), 2)}, {v(R(2), 2)}, {v(R(3), 2)}')
    A(f'v_pk_add_f32 {v(R(2) + 2, 2)}, {v(R(2) + 2, 2)}, {v(R(3) + 2, 2)}')
    A(f'v_pk_add_f32 {v(R(0), 2)}, {v(R(0), 2)}, {v(R(2), 2)}')
    A(f'v_pk_add_f32 {v(R(0) + 2, 2)}, {v(R(0) + 2, 2)}, {v(R(2) + 2, 2)}')
    dpp = 'row_mask:0xf bank_mask:0xf'
    A(f'v_max3_f32 {v(ml)}, {v(s0)}, {v(s0 + 1)}, {v(s0 + 2)}')
    A(f'v_max_f32 {v(ml)}, {v(ml)}, {v(s0 + 3)}')
    A(f'v_sub_f32 {v(e0)}, {v(s0)}, {v(ml)}')
    A(f'v_sub_f32 {v(e0 + 1)}, {v(s0 + 1)}, {v(ml)}')
    A(f'v_max_f32_dpp {v(m)}, {v(ml)}, {v(ml)} row_ror:8 {dpp}')
    A(f'v_sub_f32 {v(e0 + 2)}, {v(s0 + 2)}, {v(ml)}')
    A(f'v_sub_f32 {v(e0 + 3)}, {v(s0 + 3)}, {v(ml)}')
    A(f'v_max_f32_dpp {v(m)}, {v(m)}, {v(m)} row_ror:4 {dpp}')
    A(f'v_exp_f32 {v(e0)}, {v(e0)}')
    A(f'v_exp_f32 {v(e0 + 1)}, {v(e0 + 1)}')
    A(f'v_max_f32_dpp {v(m)}, {v(m)}, {v(m)} row_ror:2 {dpp}')
    A(f'v_exp_f32 {v(e0 + 2)}, {v(e0 + 2)}')
    A(f'v_exp_f32 {v(e0 + 3)}, {v(e0 + 3)}')
    A(f'v_max_f32_dpp {v(m)}, {v(m)}, {v(m)} row_ror:1 {dpp}')
    A(f'v_pk_add_f32 {v(ll, 2)}, {v(e0, 2)}, {v(e0 + 2, 2)}')
    A(f'v_sub_f32 {v(f)}, {v(ml)}, {v(m)}')
    A(f'v_exp_f32 {v(f)}, {v(f)}')
    A(f'v_add_f32 {v(ll)}, {v(ll)}, {v(ll + 1)}')
    A(f'v_mul_f32 {v(ll)}, {v(ll)}, {v(f)}')
    A(f'v_mul_f32 {v(e0)}, {v(e0)}, {v(f)}')
    A(f'v_mul_f32 {v(e0 + 1)}, {v(e0 + 1)}, {v(f)}')
    A(f'v_add_f32_dpp {v(ll)}, {v(ll)}, {v(ll)} row_ror:8 {dpp}')
    A(f'v_mul_f32 {v(e0 + 2)}, {v(e0 + 2)}, {v(f)}')
    A(f'v_mul_f32 {v(e0 + 3)}, {v(e0 + 3)}, {v(f)}')
    A(f'v_add_f32_dpp {v(ll)}, {v(ll)}, {v(ll)} row_ror:4 {dpp}')
    A(f'v_add_f32_dpp {v(ll)}, {v(ll)}, {v(ll)} row_ror:2 {dpp}')
    A(f'v_add_f32_dpp {v(ll)}, {v(ll)}, {v(ll)} row_ror:1 {dpp}')
    A(f'v_rcp_f32 {v(ll)}, {v(ll)}')
    for i in range(4):
        A(f'v_mul_f32 {v(e0 + i)}, {v(e0 + i)}, {v(ll)}')
    A(f'v_cvt_pk_bf16_f32 {v(s0)}, {v(e0)}, {v(e0 + 1)}')
    A(f'v_cvt_pk_bf16_f32 {v(s0 + 1)}, {v(e0 + 2)}, {v(e0 + 3)}')
    A(f'v_min_u32 {v(s0)}, {v(s0)}, {v(cm2)}')
    A(f'v_min_u32 {v(s0 + 1)}, {v(s0 + 1)}, {v(cm2)}')
    dual_store(A, f'buffer_store_dwordx2 {v(s0, 2)}, {v(vPS)}, {SRD}, s24 offen')
    A.label(nxt, keep=True)
    stamp(A, cfg, 3)
    rstamp(A, cfg, 4)
    if not cfg.get('nohold'):
        A('s_barrier')
    if cfg.get('xdelay', 4):
        A(f's_sleep {cfg.get("xdelay", 4)}')
    xload()
    mid_gate(A, cfg, vT0)
    if cfg.get('tl'):
        skp = A.newlabel('TLS')
        A('s_add_u32 s38, s14, s13')
        A('s_cmp_lg_u32 s38, 18')
        A(f's_cbranch_scc1 {skp}')
        tl(A, cfg, 's15', 0, vT0 + 4, 0x10000)
        A('s_memtime s[98:99]')
        A('s_waitcnt lgkmcnt(0)')
        A(f'v_mov_b32 {v(vT0 + 4)}, s98')
        A(f'buffer_store_dword {v(vT0 + 4)}, {v(vT0 + 5)}, {SRD}, s101 offen offset:4')
        A.label(skp, keep=True)
    stamp_flush(A, cfg, 14, 32, vT0 + 4)
    A(f'v_add_u32 {v(vMA)}, 8192, {v(vMA)}')
    A(f's_add_u32 s24, s24, 16384')
    A(f's_add_u32 s26, s26, {16 * 28672}')
    A(f's_add_u32 s15, s15, 1')
    A(f's_cmp_lt_u32 s15, {NSTEP}')
    A(f's_cbranch_scc1 {top}')
    A('s_endpgm')
    flush_deferred(A)


def emit_B(A, cfg):
    WL = 0x0000
    RIMG = 0x20000
    MIMG = 0x23000
    vL, vIDX, vMA, vWL, vYX, vP, vP2, vRW, vRR, vSA, vSK, vYM, vPF = range(1, 14)
    vT0 = 14
    M = lambda k: 20 + 4 * k
    YACC = lambda hh, t: 48 + 4 * (hh * 2 + t)
    YX = lambda k, t: 80 + 8 * (k * 2 + t)
    YB = lambda t: 112 + 4 * t
    M2 = 120
    YBN = lambda t: 180 + 4 * t
    OACC = lambda t: 128 + 4 * t
    ST = lambda b: 136 + 8 * b
    P = lambda r, k: 20 + 12 * r + 4 * k
    vM = lambda k: 168 + k
    vDUM = 176

    def W(ht, k):
        i = ht * 5 + k
        return a(8 * i, 8) if i < 32 else v(192 + 8 * (i - 32), 8)

    def Whalf(ht, k, eh):
        i = ht * 5 + k
        return a(8 * i + 4 * eh, 4) if i < 32 else v(192 + 8 * (i - 32) + 4 * eh, 4)

    t0, t1, t2, t3 = vT0, vT0 + 1, vT0 + 2, vT0 + 3
    lane_fields(A, vL)
    emit_koffs(A)
    A(f'v_and_b32 {v(t0)}, 15, {v(vL)}')
    A(f'v_lshrrev_b32 {v(t1)}, 4, {v(vL)}')
    sparse_idx(A, vIDX, vL, t2, t3)
    A(f'v_lshlrev_b32 {v(t2)}, 9, {v(t1)}')
    A(f'v_lshl_add_u32 {v(vYX)}, {v(t0)}, 4, {v(t2)}')
    if cfg.get('fused'):
        A('s_lshl_b32 s23, s13, 5')
        A(f's_add_u32 s23, s23, {L.F_AB + 128}')
        flag_wait(A, 's23', 32, 20, sleep=2)
    A(f's_mul_i32 s25, s13, 56')
    A(f's_add_u32 s25, s25, s14')
    A(f's_mul_i32 s25, s25, 28672')
    A(f's_add_u32 s25, s25, {L.WF + L.NB_B * 28672}')
    A(f's_lshl_b32 s28, s13, 15')
    cnt = 0
    for hh in range(4):
        for k in range(7):
            A(f's_lshl_b32 s23, s{16 + k}, 2')
            A(f's_add_u32 s23, s23, s25')
            A(f's_add_u32 s23, s23, {hh * 14 * 28672}')
            for eh in range(2):
                for t in range(2):
                    ht = hh * 2 + t
                    if k >= 5:
                        A(f's_add_u32 s24, s28, {WL + ((ht * 2 + (k - 5)) * 2 + eh) * 1024}')
                        A(f's_mov_b32 m0, s24')
                        A(f's_add_u32 s24, s23, {2048 * eh + 256 * t}')
                        A(f'buffer_load_dwordx4 {v(vYX)}, {SRD}, s24 offen sc1 lds')
                    else:
                        A(f'buffer_load_dwordx4 {Whalf(ht, k, eh)}, {v(vYX)}, {SRD}, s23 offen offset:{2048 * eh + 256 * t} sc1')
                    cnt += 1
                    if cnt % 16 == 0:
                        A('s_waitcnt vmcnt(40)')
    A(f'v_lshlrev_b32 {v(vMA)}, 4, {v(vL)}')
    A(f'v_add_u32 {v(vWL)}, s28, {v(vMA)}')
    A(f'v_add_u32 {v(vYM)}, 0, {v(vMA)}')
    for k in range(7):
        A(f's_add_u32 s23, s{16 + k}, {MIMG}')
        A(f'v_add_u32 {v(vM(k))}, s23, {v(vMA)}')
    A(f'v_add_u32 {v(vMA)}, {L.MEMA}, {v(vMA)}')
    A(f'v_lshrrev_b32 {v(t2)}, 1, {v(t1)}')
    A(f'v_mul_u32_u24 {v(t2)}, 640, {v(t2)}')
    A(f'v_and_b32 {v(t3)}, 1, {v(t1)}')
    A(f'v_lshl_add_u32 {v(t2)}, {v(t3)}, 8, {v(t2)}')
    A(f'v_lshl_add_u32 {v(vP)}, {v(t0)}, 4, {v(t2)}')
    A(f'v_lshrrev_b32 {v(t2)}, 1, {v(t1)}')
    A(f'v_bfe_u32 {v(t3)}, {v(vL)}, 3, 1')
    A(f'v_lshl_add_u32 {v(t2)}, {v(t3)}, 1, {v(t2)}')
    A(f'v_mul_u32_u24 {v(t2)}, 640, {v(t2)}')
    A(f'v_and_b32 {v(t3)}, 7, {v(vL)}')
    A(f'v_lshl_add_u32 {v(t2)}, {v(t3)}, 4, {v(t2)}')
    A(f'v_and_b32 {v(t3)}, 1, {v(t1)}')
    A(f'v_lshl_add_u32 {v(t2)}, {v(t3)}, 3, {v(t2)}')
    A(f'v_add_u32 {v(vP2)}, 512, {v(t2)}')
    A(f's_mul_i32 s23, s13, 3072')
    A(f's_add_u32 s23, s23, {RIMG}')
    A(f'v_mul_u32_u24 {v(t2)}, {4 * 192}, {v(t1)}')
    A(f'v_lshl_add_u32 {v(vRW)}, {v(t0)}, 3, {v(t2)}')
    A(f'v_add_u32 {v(vRW)}, s23, {v(vRW)}')
    A(f'v_lshrrev_b32 {v(t3)}, 3, {v(vL)}')
    A(f'v_and_b32 {v(t2)}, 3, {v(vL)}')
    A(f'v_lshlrev_b32 {v(vSA)}, 2, {v(t2)}')
    A(f'v_lshlrev_b32 {v(t2)}, 1, {v(t2)}')
    A(f'v_bfe_u32 {v(t0)}, {v(vL)}, 2, 1')
    A(f'v_lshl_add_u32 {v(vSA)}, {v(t0)}, 7, {v(vSA)}')
    A(f'v_lshl_add_u32 {v(vSA)}, {v(t3)}, 4, {v(vSA)}')
    A(f'v_add_u32 {v(t2)}, {v(t2)}, {v(t0)}')
    A(f's_and_b32 s23, s13, 1')
    A(f's_lshl_b32 s23, s23, 3')
    A(f'v_add_u32 {v(t0)}, s23, {v(t2)}')
    A(f'v_mul_u32_u24 {v(t2)}, 192, {v(t3)}')
    A(f'v_lshl_add_u32 {v(vRR)}, {v(t0)}, 3, {v(t2)}')
    A(f'v_add_u32 {v(vRR)}, {RIMG}, {v(vRR)}')
    A(f's_lshl_b32 s23, s14, 9')
    A(f's_and_b32 s24, s13, 1')
    A(f's_lshl_b32 s24, s24, 8')
    A(f's_add_u32 s24, s24, s23')
    A(f'v_add_u32 {v(vSA)}, s24, {v(vSA)}')
    A(f'v_lshlrev_b32 {v(vSK)}, 4, {v(t3)}')
    A(f'v_lshrrev_b32 {v(t2)}, 2, {v(t0)}')
    A(f'v_lshl_add_u32 {v(vSK)}, {v(t2)}, 7, {v(vSK)}')
    A(f'v_and_b32 {v(t2)}, 3, {v(t0)}')
    A(f'v_lshl_add_u32 {v(vSK)}, {v(t2)}, 2, {v(vSK)}')
    A(f'v_add_u32 {v(vSK)}, s23, {v(vSK)}')
    A(f's_cmp_ge_u32 s13, 2')
    A(f's_cselect_b32 s23, 0x40000000, 0')
    A(f'v_add_u32 {v(vSK)}, s23, {v(vSK)}')
    A(f's_mul_i32 s24, s13, {4 * 640}')
    A(f's_add_u32 s24, s24, {L.PBUF}')
    A(f's_mul_i32 s25, s13, 56')
    A(f's_add_u32 s25, s25, s14')
    A(f's_lshl_b32 s25, s25, 11')
    A(f's_add_u32 s25, s25, {L.YF}')
    A(f's_mov_b32 s26, {L.MEMA + 8192}')
    A(f's_mov_b32 s29, {L.MEMX}')
    A(f's_lshl_b32 s31, s14, 2')
    A(f's_add_u32 s31, s31, s13')
    A(f's_lshl_b32 s31, s31, 11')
    A(f's_add_u32 s31, s31, {L.YM}')
    NTA = cfg.get('ntouch', 2)
    NT = cfg.get('ntouchB', 0)
    A(f's_mul_i32 s34, s14, {NT}')
    A(f's_add_u32 s34, s34, {16 * NTA}')
    A(f's_add_u32 s34, s34, s13')
    A(f's_min_u32 s34, s34, 55')
    A(f's_lshl_b32 s34, s34, 13')
    A(f's_add_u32 s34, s34, {L.YF + cfg.get("pfdist", 2) * 16 * 28672}')
    A(f'v_lshlrev_b32 {v(vPF)}, 7, {v(vL)}')
    A(f's_cmp_ge_u32 s13, {NT}')
    A(f's_cselect_b32 s23, 0x40000000, 0')
    A(f'v_add_u32 {v(vPF)}, s23, {v(vPF)}')
    A(f's_mov_b32 s15, 0')
    A(f's_mov_b32 s35, 0x40000000')
    if cfg.get('stamps'):
        A(f's_add_u32 s32, s14, 16')
        A(f's_lshl_b32 s32, s32, 2')
        A(f's_add_u32 s32, s32, s13')
        A(f's_lshl_b32 s32, s32, 12')
        A(f's_add_u32 s32, s32, {L.STAMP}')
    vNON, vF0 = 178, 180
    A(f'v_mov_b32 {v(vNON)}, s96')
    A(f'v_mov_b32 {v(vNON + 1)}, s97')
    A(f'v_mov_b32 {v(t2)}, 0x40000000')
    A(f'v_cmp_eq_u32 vcc, 0, {v(vL)}')
    A(f'v_cndmask_b32 {v(vF0)}, {v(t2)}, {v(vL)}, vcc')
    A('s_lshl_b32 s27, s14, 2')
    A('s_add_u32 s27, s27, s13')
    A('s_lshl_b32 s27, s27, 3')
    A(f's_add_u32 s27, s27, {L.FLAGS + 8 * L.F_YM - 2 * 56 * 8}')
    ymflag = lambda sreg: f'buffer_store_dwordx2 {v(vNON, 2)}, {v(vF0)}, {SRD}, {sreg} offen sc1'
    vOUT = vT0 + 5
    A(f'v_mov_b32 {v(vOUT)}, 0')
    for r in range(8):
        A(f'v_mov_b32 {v(YB(0) + r)}, 0')

    def yx_list():
        out = []
        for k in range(2):
            for eh in range(2):
                for t in range(2):
                    out.append([f's_add_u32 s23, s25, {(2 * k + eh) * 14 * 2048}',
                                f'buffer_load_dwordx4 {v(YX(k, t) + 4 * eh, 4)}, {v(vYX)}, {SRD}, s23 offen offset:{256 * t} sc1'])
        return out

    def ym_list(sreg):
        return [[f'buffer_store_dwordx4 {v(YB(t), 4)}, {v(vYM)}, {SRD}, {sreg} offen offset:{t * 1024} sc1'] for t in range(2)]

    A('s_waitcnt vmcnt(0)')
    tl(A, cfg, 's14', 1, vT0 + 2, 0x18400)
    start_gate(A, cfg, M(0))
    tl(A, cfg, 's14', 2, vT0 + 2, 0x18400)
    top = A.newlabel('B_top')
    mpoll = A.newlabel('B_mpoll')
    ppoll = A.newlabel('B_ppoll')
    nxt = A.newlabel('B_next')
    fin = A.newlabel('B_fin')
    A.label(top)
    A.forget()
    A(f's_waitcnt vmcnt({15 if cfg.get("stamps") else 1})')
    zero = [f'v_mov_b32 {v(YACC(0, 0) + r)}, 0' for r in range(32)] + [f'v_mov_b32 {v(OACC(0) + r)}, 0' for r in range(8)]
    if cfg.get('yxearly'):
        for x in yx_list():
            for y in x:
                A(y)
    ZP = cfg.get('zpre', 12)
    for x in zero[:ZP]:
        A(x)
    ldsq = [(hh * 2 + t, k) for t in range(2) for pr in range(2) for k in (5, 6) for hh in (2 * pr, 2 * pr + 1)]

    def wlread(j):
        ht, k = ldsq[j]
        for eh in range(2):
            A(f'ds_read_b128 {v(ST(j & 3) + 4 * eh, 4)}, {v(vWL)} offset:{((ht * 2 + (k - 5)) * 2 + eh) * 1024}')
    for j in range(4):
        wlread(j)
    if cfg.get('bsleep', 0):
        A(f's_sleep {cfg["bsleep"]}')
    MS = lambda r: (M(0) if r == 0 else M2)
    A(f's_add_u32 s36, s31, s35')

    def missue(r):
        for k in range(2):
            A(f'buffer_load_dwordx4 {v(MS(r) + 4 * k, 4)}, {v(vMA)}, {SRD}, s{16 + k} offen sc1')
    mv0, mv1, mcommon = A.newlabel('B_mv0'), A.newlabel('B_mv1'), A.newlabel('B_mc')
    missue(0)
    for x in zero[ZP:]:
        A(x)
    A.label(mpoll, keep=True)
    guard(A)
    missue(1)
    check_regs(A, t0, [MS(0) + i for i in range(8)])
    A(f's_cbranch_vccz {mv0}')
    missue(0)
    check_regs(A, t0, [MS(1) + i for i in range(8)])
    A(f's_cbranch_vccnz {mpoll}')
    lgsnap = [set(x) for x in A.lg]

    def allmem():
        ld_ = yx_list() if not (cfg.get('noyx') or cfg.get('yxearly')) else []
        st_ = ym_list('s36') if not cfg.get('noym') else []
        return st_ + ld_ if cfg.get('stfirst') else ld_ + st_
    left = []

    def mvariant(r):
        A.vm = [set(('v', MS(1 - r) + i) for i in range(8))]
        A.lg = [set(x) for x in lgsnap]
        A.smem_out = []
        stamp(A, cfg, 0)
        vmem = allmem()
        for i, (ht, k) in enumerate([(ht, k) for k in range(2) for ht in range(8)]):
            A(f'v_smfmac_f32_16x16x64_bf16 {v(YACC(ht >> 1, ht & 1), 4)}, {v(MS(r) + 4 * k, 4)}, {W(ht, k)}, {v(vIDX)}')
            if i < 2:
                A(f'ds_write_b128 {v(vM(i))}, {v(MS(r) + 4 * i, 4)}')
            if i == 4:
                A('s_waitcnt lgkmcnt(0)')
                A('s_barrier')
            if 4 <= i < 9:
                A(f'ds_read_b128 {v(M(i - 2), 4)}, {v(vM(i - 2))}')
            if i >= 5 and (i - 5) % cfg.get('vgap', 2) == 0 and vmem:
                for x in vmem.pop(0):
                    A(x)
            if i == 4:
                stamp(A, cfg, 8)
        left[:] = vmem
    A.label(mv1, keep=True)
    mvariant(1)
    A(f's_branch {mcommon}')
    align(A, cfg, 'alBm')
    A.label(mv0)
    mvariant(0)
    A.label(mcommon, keep=True)
    A.vm = [set(('v', M(0) + i) for i in range(8)) | set(('v', M2 + i) for i in range(8)) | set(('v', YX(0, 0) + i) for i in range(32))]
    mem = list(left)
    if NT:
        mem += [[f'buffer_load_dword {v(vDUM)}, {v(vPF)}, {SRD}, s34 offen']]
    seq = []
    groups = [(pr, t) for t in range(2) for pr in range(2)]
    for pr, t in groups:
        ha, hb = (2 * pr) * 2 + t, (2 * pr + 1) * 2 + t
        seq += [(ha, 5), (ha, 2), (hb, 2), (hb, 5), (ha, 3), (ha, 6), (hb, 3), (ha, 4), (hb, 6), (hb, 4)]
    assert [x for x in seq if x[1] >= 5] == ldsq
    lj = 0
    vq = []
    dq = []
    GAP = cfg.get('bmemgap', 2)

    def gpost(pr, t):
        Ya, Yb = YACC(2 * pr, t), YACC(2 * pr + 1, t)
        ops = [f'v_permlane32_swap_b32 {v(Ya + r)}, {v(Yb + r)}' for r in range(4)]
        ops += [f'v_add_f32 {v(Ya + r)}, {v(Ya + r)}, {v(Yb + r)}' for r in range(4)]
        ops += [f'v_cvt_pk_bf16_f32 {v(YB(t) + 2 * p + pr)}, {v(Ya + 2 * p)}, {v(Ya + 2 * p + 1)}' for p in range(2)]
        return ops
    sani = [f'v_min_u32 {v(YB(0) + r)}, -2, {v(YB(0) + r)}' for r in range(8)]
    for i, (ht, k) in enumerate(seq):
        if i % 10 == 0:
            stamp(A, cfg, 9 + i // 10)
        if k >= 5:
            A.auto(f'v_smfmac_f32_16x16x64_bf16 {v(YACC(ht >> 1, ht & 1), 4)}, {v(M(k), 4)}, {v(ST(lj & 3), 8)}, {v(vIDX)}')
            if lj + 4 < 16:
                h2, k2 = ldsq[lj + 4]
                for eh in range(2):
                    dq.append(f'ds_read_b128 {v(ST(lj & 3) + 4 * eh, 4)}, {v(vWL)} offset:{((h2 * 2 + (k2 - 5)) * 2 + eh) * 1024}')
            lj += 1
        else:
            A.auto(f'v_smfmac_f32_16x16x64_bf16 {v(YACC(ht >> 1, ht & 1), 4)}, {v(M(k), 4)}, {W(ht, k)}, {v(vIDX)}')
        if i % 10 == 9:
            vq += gpost(*groups[i // 10])
        if dq:
            A(dq.pop(0))
        if i >= cfg.get('yxstart', 0) and i % GAP == 0 and mem:
            for x in mem.pop(0):
                A(x)
        if vq and A.pad_needed(vq[0]) == 0:
            A(vq.pop(0))
    assert not mem and not dq
    stamp(A, cfg, 13)
    for o in vq:
        A(o)
    A(f's_cmp_eq_u32 s15, 0')
    A(f's_cselect_b32 s23, 0, {14 * 4 * 2048}')
    A(f's_add_u32 s31, s31, s23')
    A(f's_mov_b32 s35, 0')
    A(f's_add_u32 s27, s27, {56 * 8}')
    A(f's_add_u32 s25, s25, {16 * 28672}')
    A(f's_add_u32 s34, s34, {16 * 28672}')
    stamp(A, cfg, 1)
    A(f's_cmp_eq_u32 s15, {NSTEP}')
    A(f's_cbranch_scc1 {fin}')
    A('s_waitcnt vmcnt(0)')
    mid_gate(A, cfg, vT0)
    stamp(A, cfg, 5)
    if cfg.get('psleep', 0):
        A(f's_sleep {cfg["psleep"]}')

    def pissue(r):
        A(f'buffer_load_dwordx4 {v(P(r, 0), 4)}, {v(vP)}, {SRD}, s24 offen sc1')
        A(f'buffer_load_dwordx4 {v(P(r, 1), 4)}, {v(vP)}, {SRD}, s24 offen offset:1280 sc1')
        A(f'buffer_load_dwordx2 {v(P(r, 2), 2)}, {v(vP2)}, {SRD}, s24 offen sc1')
    var0 = A.newlabel('B_var0')
    var1 = A.newlabel('B_var1')
    common = A.newlabel('B_common')
    redo = A.newlabel('B_redo')

    def quick(r):
        keepalive(A, vDUM + 1, cfg.get('kbp', 0), cfg)
        A('s_waitcnt vmcnt(3)')
        A(f'v_max3_u32 {v(t0)}, {v(P(r, 0) + 3)}, {v(P(r, 1) + 3)}, {v(P(r, 2) + 1)}')
        A(f'v_cmp_eq_u32 vcc, -1, {v(t0)}')
    A.label(redo, keep=True)
    pissue(0)
    keepalive(A, vDUM + 1, cfg.get('pgapB', 20), {})
    align(A, cfg, 'alBp')
    A.label(ppoll, keep=True)
    guard(A)
    pissue(1)
    quick(0)
    A(f's_cbranch_vccz {var0}')
    pissue(0)
    quick(1)
    A(f's_cbranch_vccnz {ppoll}')
    bad = A.newlabel('B_bad')

    def variant(r):
        A.vm = [set(('v', P(1 - r, 0) + i) for i in range(12))]
        A.lg = []
        A.smem_out = []
        stamp(A, cfg, 2)
        Q = P(r, 0)
        full = [f'v_max3_u32 {v(t0)}, {v(Q)}, {v(Q + 1)}, {v(Q + 2)}', f'v_max3_u32 {v(t0)}, {v(t0)}, {v(Q + 4)}, {v(Q + 5)}',
                f'v_max3_u32 {v(t0)}, {v(t0)}, {v(Q + 6)}, {v(Q + 8)}',
                f'v_cmp_eq_u32 vcc, -1, {v(t0)}']
        for k in range(3):
            for t in range(2):
                if k < 2:
                    A(f'v_smfmac_f32_16x16x64_bf16 {v(OACC(t), 4)}, {v(P(r, k), 4)}, {v(YX(k, t), 8)}, {v(vIDX)}')
                else:
                    A(f'v_smfmac_f32_16x16x32_bf16 {v(OACC(t), 4)}, {v(P(r, k), 2)}, {v(YB(t), 4)}, {v(vIDX)}')
        for x in full[:2]:
            A(x)
        for rr in range(4):
            A(f'ds_write2_b32 {v(vRW)}, {v(OACC(0) + rr)}, {v(OACC(1) + rr)} offset0:{rr * 48} offset1:{rr * 48 + 1}')
        for x in full[2:]:
            A(x)
        A(f's_cbranch_vccnz {bad}')
    A.label(var1)
    variant(1)
    A(f's_branch {common}')
    A.label(bad)
    A('s_waitcnt vmcnt(0) lgkmcnt(0)')
    A('s_nop 7')
    for r in range(8):
        A(f'v_mov_b32 {v(OACC(0) + r)}, 0')
    A(f's_branch {redo}')
    align(A, cfg, 'alB0')
    A.label(var0)
    variant(0)
    A.label(common, keep=True)
    A.vm = [set(('v', P(0, 0) + i) for i in range(24))]
    A('s_cmp_ge_u32 s13, 2')
    keepalive(A, vDUM + 1, cfg.get('kb1', 0), cfg)
    stamp(A, cfg, 6)
    warm_mfma(A, ST(0), cfg)
    A('s_waitcnt lgkmcnt(0)')
    A('s_barrier')
    stamp(A, cfg, 7)
    A(f's_cbranch_scc1 {nxt}')
    R = lambda w: YACC(0, 0) + 4 * w
    for w in range(4):
        A(f'ds_read2st64_b64 {v(R(w), 4)}, {v(vRR)} offset0:{6 * w} offset1:{6 * w + 3}')
    keepalive(A, vDUM + 1, cfg.get('kb2', 3), cfg)
    A(f'v_mov_b32 {v(t1)}, -2')
    A.auto(f'v_pk_add_f32 {v(R(0), 2)}, {v(R(0), 2)}, {v(R(0) + 2, 2)}')
    A.auto(f'v_pk_add_f32 {v(R(1), 2)}, {v(R(1), 2)}, {v(R(1) + 2, 2)}')
    A(f'v_pk_add_f32 {v(R(0), 2)}, {v(R(0), 2)}, {v(R(1), 2)}')
    A.auto(f'v_pk_add_f32 {v(R(2), 2)}, {v(R(2), 2)}, {v(R(2) + 2, 2)}')
    A(f'v_pk_add_f32 {v(R(0), 2)}, {v(R(0), 2)}, {v(R(2), 2)}')
    A.auto(f'v_pk_add_f32 {v(R(3), 2)}, {v(R(3), 2)}, {v(R(3) + 2, 2)}')
    A(f'v_pk_add_f32 {v(R(0), 2)}, {v(R(0), 2)}, {v(R(3), 2)}')
    A(f'v_cvt_pk_bf16_f32 {v(vOUT)}, {v(R(0))}, {v(R(0) + 1)}')
    A(f'v_min_u32 {v(vOUT)}, {v(vOUT)}, {v(t1)}')
    A.label(nxt, keep=True)
    A(f's_cselect_b32 s23, 0x40000000, s26')
    dual_store(A, f'buffer_store_dword {v(vOUT)}, {v(vSA)}, {SRD}, s23 offen')
    stamp(A, cfg, 3)
    rstamp(A, cfg, 4)
    if not cfg.get('nohold'):
        A('s_barrier')
    stamp_flush(A, cfg, 14, 32, vT0 + 2)
    A(f'v_add_u32 {v(vMA)}, 8192, {v(vMA)}')
    A(f's_add_u32 s24, s24, 16384')
    A(f's_add_u32 s26, s26, 8192')
    A(f's_add_u32 s15, s15, 1')
    A(f's_branch {top}')
    A.label(fin)
    for x in ym_list('s31'):
        A(x[0])
    A('s_waitcnt vmcnt(0)')
    A(ymflag('s27'))
    A(f's_add_u32 s27, s27, {56 * 8}')
    A(ymflag('s27'))
    A('s_endpgm')
    flush_deferred(A)


def emit_C(A, cfg):
    NT = cfg.get('ntouch', 2)
    D = cfg.get('cdist', 3)
    first = min(16 * NT + 14 * cfg.get('ntouchB', 0), 56)
    nrounds = (56 - first + 7) // 8
    vL, vPF, vPL, vD, vLW, vLR, vST, t0, t1 = 1, 2, 3, 4, 5, 6, 7, 8, 9
    Q = 12
    A.pipe_model = False
    lane_fields(A, vL)
    A(f'v_lshlrev_b32 {v(vPF)}, 7, {v(vL)}')
    A('s_lshl_b32 s16, s14, 2')
    A('s_add_u32 s16, s16, s13')
    A('s_cmp_eq_u32 s16, 7')
    A('s_cselect_b32 s19, 0, s16')
    A('s_lshl_b32 s19, s19, 10')
    A(f'v_lshlrev_b32 {v(vST)}, 4, {v(vL)}')
    A('s_lshl_b32 s23, s13, 10')
    A(f'v_add_u32 {v(vLW)}, s23, {v(vST)}')
    A(f'v_lshrrev_b32 {v(t0)}, 4, {v(vL)}')
    A(f'v_lshlrev_b32 {v(vLR)}, 8, {v(t0)}')
    A(f'v_and_b32 {v(t0)}, 7, {v(vL)}')
    A(f'v_lshl_add_u32 {v(vLR)}, {v(t0)}, 4, {v(vLR)}')
    A(f'v_bfe_u32 {v(t0)}, {v(vL)}, 3, 1')
    A(f'v_lshl_add_u32 {v(vLR)}, {v(t0)}, 3, {v(vLR)}')
    A(f'v_add_u32 {v(vLR)}, s23, {v(vLR)}')
    A(f'v_add_u32 {v(vST)}, s19, {v(vST)}')
    A(f'v_add_u32 {v(vPL)}, {L.MEMA + 8192}, {v(vST)}')
    A('s_cmp_eq_u32 s16, 7')
    A(f's_cselect_b32 s19, 0x40000000, 0')
    A(f's_add_u32 s19, s19, {L.MEMX + 8192}')
    A('s_lshl_b32 s17, s16, 13')
    A(f's_add_u32 s17, s17, {L.XF}')
    A('s_mov_b32 s18, 28672')
    A('s_cmp_ge_u32 s16, 4')
    A(f's_cselect_b32 s17, {L.MEMA + 8192}, s17')
    A(f's_cselect_b32 s18, 8192, s18')
    A('s_cmp_eq_u32 s16, 6')
    A(f's_cselect_b32 s17, {L.PBUF}, s17')
    A('s_cmp_eq_u32 s16, 7')
    A(f's_cselect_b32 s17, {L.PBUF + 8192}, s17')
    A('s_cmp_ge_u32 s16, 6')
    A(f's_cselect_b32 s18, 16384, s18')
    for r in range(nrounds):
        A(f's_add_u32 s{24 + r}, s16, {first + 8 * r}')
        A(f's_min_u32 s{24 + r}, s{24 + r}, 55')
        A(f's_lshl_b32 s{24 + r}, s{24 + r}, 13')
        A(f's_add_u32 s{24 + r}, s{24 + r}, {L.YF}')
    start_gate(A, cfg, Q)
    for sg in range(cfg.get('pfdist', 2)):
        for r in range(7):
            A(f's_add_u32 s23, s16, {8 * r}')
            A(f's_lshl_b32 s23, s23, 13')
            A(f's_add_u32 s23, s23, {L.YF + sg * 16 * 28672}')
            A(f'buffer_load_dword {v(vD)}, {v(vPF)}, {SRD}, s23 offen')

    def touches():
        A(f'buffer_load_dword {v(vD)}, {v(vPF)}, {SRD}, s17 offen')
        A('s_add_u32 s17, s17, s18')
        for r in range(nrounds):
            A(f'buffer_load_dword {v(vD)}, {v(vPF)}, {SRD}, s{24 + r} offen')
            A(f's_add_u32 s{24 + r}, s{24 + r}, {16 * 28672}')
    for _ in range(D):
        touches()
    A('s_mov_b32 s15, 1')
    top = A.newlabel('C_top')
    skip = A.newlabel('C_skip')
    A.label(top)
    A.forget()
    guard(A)
    A(f's_sleep 1')
    A(f'buffer_load_dwordx4 {v(Q, 4)}, {v(vPL)}, {SRD}, 0 offen sc1')
    A('s_waitcnt vmcnt(0)')
    check_regs(A, t0, [Q + i for i in range(4)])
    A(f's_cbranch_vccnz {top}')
    A(f'ds_write_b128 {v(vLW)}, {v(Q, 4)}')
    A(f'ds_read2_b32 {v(Q + 4, 2)}, {v(vLR)} offset0:0 offset1:32')
    A(f'ds_read2_b32 {v(Q + 6, 2)}, {v(vLR)} offset0:1 offset1:33')
    A('s_waitcnt lgkmcnt(0)')
    A(f'buffer_store_dwordx4 {v(Q + 4, 4)}, {v(vST)}, {SRD}, s19 offen sc1')
    A(f'v_add_u32 {v(vPL)}, 8192, {v(vPL)}')
    A('s_add_u32 s19, s19, 8192')
    mid_gate(A, cfg, Q)
    A(f's_cmp_gt_u32 s15, {64 - D}')
    A(f's_cbranch_scc1 {skip}')
    touches()
    A.label(skip)
    A('s_add_u32 s15, s15, 1')
    A(f's_cmp_lt_u32 s15, 64')
    A(f's_cbranch_scc1 {top}')
    A('s_endpgm')
```

```python
from asmdsl import v, a, s
import layout as L
import gemm as G
import chain

SRD = 's[8:11]'
import struct
CSCALE = struct.unpack('<I', struct.pack('<f', 1.4426950408889634 / 16.0))[0]


def srd(A, d, lo, hi, nbytes):
    A(f's_mov_b32 s{d}, s{lo}')
    A(f's_and_b32 s{d + 1}, s{hi}, 0xffff')
    A(f's_mov_b32 s{d + 2}, {nbytes}')
    A(f's_mov_b32 s{d + 3}, 0x20000')


def item_ab(A, mat, st=''):
    VL, VLIN, VPERM = G.VL, G.VLIN, G.VPERM
    acc = lambda tb, nb: G.ACC0 + 16 * (tb * 7 + nb)
    vOwn, vSh, vRd, vSt, t0, t1 = 5, 6, 7, 24, 8, 9
    A('s_lshr_b32 s53, s39, 2')
    A('s_bfe_u32 s54, s39, 0x10001')
    A('s_and_b32 s55, s39, 1')
    A(f'v_lshrrev_b32 {v(t0)}, 4, {v(VPERM)}')
    A(f'v_and_b32 {v(t0)}, 31, {v(t0)}')
    A(f'v_lshlrev_b32 {v(vOwn)}, 13, {v(t0)}')
    A(f'v_lshrrev_b32 {v(t1)}, 5, {v(VL)}')
    A(f'v_lshl_add_u32 {v(vOwn)}, {v(t1)}, 4, {v(vOwn)}')
    A('s_lshl_b32 s44, s54, 3')
    A('s_lshl_b32 s50, s13, 1')
    A('s_add_u32 s44, s44, s50')
    for tb in range(2):
        A(f's_add_u32 s50, s44, {tb}')
        A('s_min_u32 s50, s50, 13')
        A('s_lshl_b32 s50, s50, 18')
        A('s_lshl_b32 s51, s53, 9')
        A(f's_add_u32 s{45 + tb}, s50, s51')
    if mat == 0:
        A(f'v_and_b32 {v(t0)}, 31, {v(VL)}')
        A(f'v_lshlrev_b32 {v(vSh)}, 13, {v(t0)}')
        A(f'v_lshl_add_u32 {v(vSh)}, {v(t1)}, 4, {v(vSh)}')
        A(f's_mul_i32 s47, s55, {7 << 18}')
        A('s_lshl_b32 s51, s53, 9')
        A('s_add_u32 s47, s47, s51')
        A('s_lshl_b32 s51, s13, 5')
        A('s_add_u32 s47, s47, s51')
        nb_step, c_step = 1 << 18, 128
        A(f'v_mov_b32 {v(vRd)}, {v(VLIN)}')
        A(f'v_mov_b32 {v(vSt)}, {v(VLIN)}')
    else:
        A(f'v_lshrrev_b32 {v(t0)}, 2, {v(VL)}')
        A(f'v_mul_u32_u24 {v(vSh)}, 896, {v(t0)}')
        A(f'v_and_b32 {v(t0)}, 3, {v(VL)}')
        A(f'v_lshl_add_u32 {v(vSh)}, {v(t0)}, 4, {v(vSh)}')
        A(f's_mul_i32 s47, s53, {256 * 896}')
        A(f's_mul_i32 s51, s55, {7 * 64}')
        A('s_add_u32 s47, s47, s51')
        A(f's_mul_i32 s51, s13, {16 * 896}')
        A('s_add_u32 s47, s47, s51')
        nb_step, c_step = 64, 64 * 896
        tr_addr(A, vRd, VL, t0)
        A(f'v_and_b32 {v(t0)}, 1, {v(VL)}')
        A(f'v_lshlrev_b32 {v(vSt)}, 4, {v(t0)}')
        A(f'v_bfe_u32 {v(t0)}, {v(VL)}, 1, 4')
        A(f'v_add_u32 {v(vSt)}, {v(vSt)}, {v(t0)}')
        A(f'v_lshl_add_u32 {v(vSt)}, {v(t1)}, 5, {v(vSt)}')
        A(f'v_lshlrev_b32 {v(vSt)}, 4, {v(vSt)}')
    A(f's_mul_i32 s48, s13, 7168')
    for c in range(4):
        for nb in range(7):
            A(f's_add_u32 s50, s48, {c * 4 * 7168 + nb * 1024}')
            A('s_mov_b32 m0, s50')
            A(f's_add_u32 s51, s47, {c * c_step + nb * nb_step}')
            A(f'buffer_load_dwordx4 {v(vSh)}, s[72:75], s51 offen lds')
        for kq in range(4):
            ks = 4 * c + kq
            for tb in range(2):
                A(f'buffer_load_dwordx4 {a((ks * 2 + tb) * 4, 4)}, {v(vOwn)}, s[68:71], s{45 + tb} offen offset:{ks * 32}')
    for r in range(224):
        A(f'v_mov_b32 {v(G.ACC0 + r)}, 0')
    vRd2 = 25
    A(f'v_add_u32 {v(vRd2)}, {8 * 7168}, {v(vRd)}')
    WB = lambda par, nb: 128 + (par * 7 + nb) * 4

    def rd(ks, par):
        base = v(vRd) if ks < 8 else v(vRd2)
        o = (ks & 7) * 7168
        out = []
        for nb in range(7):
            if mat == 0:
                out.append([f'ds_read_b128 {a(WB(par, nb), 4)}, {base} offset:{o + nb * 1024}'])
            else:
                out.append([f'ds_read_b64_tr_b16 {a(WB(par, nb), 2)}, {base} offset:{o + nb * 1024}',
                            f'ds_read_b64_tr_b16 {a(WB(par, nb) + 2, 2)}, {base} offset:{o + nb * 1024 + 256}'])
        return out
    for c in range(4):
        A(f's_waitcnt vmcnt({45 - 15 * c})')
        A('s_barrier')
        for g in rd(4 * c, 0):
            for x in g:
                A(x)
        for kq in range(4):
            ks = 4 * c + kq
            par = kq & 1
            nxt = rd(ks + 1, par ^ 1) if kq < 3 else []
            for nb in range(7):
                for tb in range(2):
                    A.auto(f'v_mfma_f32_32x32x16_bf16 {v(acc(tb, nb), 16)}, {a((ks * 2 + tb) * 4, 4)}, {a(WB(par, nb), 4)}, {v(acc(tb, nb), 16)}')
                    if tb == 0 and nxt:
                        for x in nxt.pop(0):
                            A(x)
    A('s_mul_i32 s42, s53, 14')
    A('s_mul_i32 s50, s55, 7')
    A('s_add_u32 s42, s42, s50')
    A('s_mul_i32 s42, s42, 28672')
    A(f's_add_u32 s42, s42, {L.WF + (L.NB_A if mat == 0 else L.NB_B) * 28672}')
    A(f's_mov_b32 s52, {CSCALE}')
    n = 0
    for tb in range(2):
        A(f's_add_u32 s50, s44, {tb}')
        A('s_lshl_b32 s51, s50, 11')
        A('s_add_u32 s51, s51, s42')
        A('s_cmp_gt_u32 s50, 13')
        A('s_cselect_b32 s51, 0x40000000, s51')
        for nb in range(7):
            for ph in range(2):
                t = 8 + 4 * (n % 4)
                n += 1
                for j in range(4):
                    r = acc(tb, nb) + 8 * ph + 2 * j
                    if mat == 0:
                        A(f'v_mul_f32 {v(r)}, s52, {v(r)}')
                        A(f'v_mul_f32 {v(r + 1)}, s52, {v(r + 1)}')
                    A(f'v_cvt_pk_bf16_f32 {v(t + j)}, {v(r)}, {v(r + 1)}')
                A(f'buffer_store_dwordx4 {v(t, 4)}, {v(vSt)}, {SRD}, s51 offen offset:{ph * 1024}{st}')
            A('s_add_u32 s51, s51, 28672')


def tr_addr(A, dst, VL, t0):
    A(f'v_lshrrev_b32 {v(t0)}, 5, {v(VL)}')
    A(f'v_lshlrev_b32 {v(dst)}, 9, {v(t0)}')
    A(f'v_bfe_u32 {v(t0)}, {v(VL)}, 2, 2')
    A(f'v_lshl_add_u32 {v(dst)}, {v(t0)}, 6, {v(dst)}')
    A(f'v_bfe_u32 {v(t0)}, {v(VL)}, 4, 1')
    A(f'v_lshl_add_u32 {v(dst)}, {v(t0)}, 5, {v(dst)}')
    A(f'v_and_b32 {v(t0)}, 3, {v(VL)}')
    A(f'v_lshl_add_u32 {v(dst)}, {v(t0)}, 3, {v(dst)}')


def rne_bf16(A, r, t):
    A(f'v_cvt_pk_bf16_f32 {v(r)}, {v(r)}, {v(r)}')
    A(f'v_lshlrev_b32 {v(r)}, 16, {v(r)}')


def wave_ln(A, srdx, st=''):
    VL = G.VL
    vA, vS, t0, t1, sm, sq = 5, 6, 7, 8, 9, 10
    X, F = 16, 48
    A(f'v_lshrrev_b32 {v(t0)}, 3, {v(VL)}')
    A(f'v_and_b32 {v(t1)}, 7, {v(VL)}')
    A(f'v_mul_u32_u24 {v(vA)}, 896, {v(t0)}')
    A(f'v_lshl_add_u32 {v(vA)}, {v(t1)}, 4, {v(vA)}')
    A(f'v_lshlrev_b32 {v(vS)}, 4, {v(t0)}')
    A(f'v_lshl_add_u32 {v(vS)}, {v(t1)}, 9, {v(vS)}')
    A(f's_mul_i32 s50, s39, {8 * 896}')
    for i in range(7):
        A(f'buffer_load_dwordx4 {v(X + 4 * i, 4)}, {v(vA)}, {srdx}, s50 offen offset:{i * 128}')
    for i in range(28):
        A.auto(f'v_lshlrev_b32 {v(F + 2 * i)}, 16, {v(X + i)}')
        A(f'v_and_b32 {v(F + 2 * i + 1)}, 0xffff0000, {v(X + i)}')

    def red8(r):
        for x in (1, 2):
            pat = '[1,0,3,2]' if x == 1 else '[2,3,0,1]'
            A(f'v_add_f32_dpp {v(r)}, {v(r)}, {v(r)} quad_perm:{pat} row_mask:0xf bank_mask:0xf')
        A(f'v_add_f32_dpp {v(r)}, {v(r)}, {v(r)} row_half_mirror row_mask:0xf bank_mask:0xf')
    A(f'v_add_f32 {v(sm)}, {v(F)}, {v(F + 1)}')
    for i in range(2, 56):
        A(f'v_add_f32 {v(sm)}, {v(sm)}, {v(F + i)}')
    red8(sm)
    inv = struct.unpack('<I', struct.pack('<f', 1.0 / 448.0))[0]
    A(f'v_mul_f32 {v(sm)}, {inv:#x}, {v(sm)}')
    A(f'v_mov_b32 {v(sq)}, 0')
    for i in range(56):
        A(f'v_sub_f32 {v(t0)}, {v(F + i)}, {v(sm)}')
        A(f'v_fmac_f32 {v(sq)}, {v(t0)}, {v(t0)}')
    red8(sq)
    A(f'v_mul_f32 {v(sq)}, {inv:#x}, {v(sq)}')
    rne_bf16(A, sm, t0)
    rne_bf16(A, sq, t0)
    eps = struct.unpack('<I', struct.pack('<f', 1e-5))[0]
    A(f'v_add_f32 {v(sq)}, {eps:#x}, {v(sq)}')
    rne_bf16(A, sq, t0)
    A(f'v_sqrt_f32 {v(sq)}, {v(sq)}')
    rne_bf16(A, sq, t0)
    A(f'v_rcp_f32 {v(sq)}, {v(sq)}')
    for i in range(28):
        r = F + 2 * i
        A(f'v_sub_f32 {v(r)}, {v(r)}, {v(sm)}')
        A(f'v_sub_f32 {v(r + 1)}, {v(r + 1)}, {v(sm)}')
        A(f'v_cvt_pk_bf16_f32 {v(t0)}, {v(r)}, {v(r + 1)}')
        A(f'v_lshlrev_b32 {v(r)}, 16, {v(t0)}')
        A(f'v_and_b32 {v(r + 1)}, 0xffff0000, {v(t0)}')
        A(f'v_mul_f32 {v(r)}, {v(r)}, {v(sq)}')
        A(f'v_mul_f32 {v(r + 1)}, {v(r + 1)}, {v(sq)}')
        A(f'v_cvt_pk_bf16_f32 {v(X + i)}, {v(r)}, {v(r + 1)}')
    A('s_lshr_b32 s50, s39, 2')
    A('s_mul_i32 s50, s50, 28672')
    A('s_and_b32 s51, s39, 3')
    A('s_lshl_b32 s51, s51, 7')
    A('s_add_u32 s50, s50, s51')
    A(f's_add_u32 s50, s50, {L.XF}')
    for i in range(7):
        A(f'buffer_store_dwordx4 {v(X + 4 * i, 4)}, {v(vS)}, {SRD}, s50 offen{st}')
        A('s_add_u32 s50, s50, 4096')


def wave_pack(A, which, nfr, st='', srdwd='s[76:79]'):
    VL, VLIN = G.VL, G.VLIN
    vA, vW, vR, t0 = 5, 6, 7, 8
    D = 32
    rowb = 3584 if which == 'GU' else 896
    A(f'v_lshrrev_b32 {v(t0)}, 2, {v(VL)}')
    A(f'v_mul_u32_u24 {v(vA)}, {rowb}, {v(t0)}')
    A(f'v_and_b32 {v(t0)}, {1 if which == "GU" else 3}, {v(VL)}')
    A(f'v_lshl_add_u32 {v(vA)}, {v(t0)}, 4, {v(vA)}')
    A(f's_mul_i32 s48, s13, {nfr * 1024}')
    A(f'v_add_u32 {v(vW)}, s48, {v(VLIN)}')
    tr_addr(A, vR, VL, t0)
    A(f'v_add_u32 {v(vR)}, s48, {v(vR)}')
    sh = 2 if which == 'GU' else 4
    A(f's_lshr_b32 s53, s39, {sh}')
    A(f's_and_b32 s54, s39, {(1 << sh) - 1}')
    A(f's_mul_i32 s50, s54, {nfr * 16 * rowb}')
    A(f's_lshl_b32 s51, s53, {5 if which == "GU" else 6}')
    A('s_add_u32 s50, s50, s51')
    for k in range(nfr):
        if which == 'GU':
            A('s_mov_b32 exec_lo, 0x33333333')
            A('s_mov_b32 exec_hi, 0x33333333')
            A(f'buffer_load_dwordx4 {v(D + 4 * k, 4)}, {v(vA)}, s[68:71], s50 offen')
            A('s_mov_b32 exec_lo, 0xcccccccc')
            A('s_mov_b32 exec_hi, 0xcccccccc')
            A(f'buffer_load_dwordx4 {v(D + 4 * k, 4)}, {v(vA)}, s[72:75], s50 offen')
        else:
            A(f'buffer_load_dwordx4 {v(D + 4 * k, 4)}, {v(vA)}, {srdwd}, s50 offen')
        A(f's_add_u32 s50, s50, {16 * rowb}')
    A('s_mov_b64 exec, -1')
    if which == 'GU':
        A('s_mul_i32 s50, s53, 28672')
        A(f's_add_u32 s50, s50, {L.WF + L.NB_GU * 28672}')
    else:
        A(f's_mul_i32 s50, s53, {112 * 1024}')
        A(f's_add_u32 s50, s50, {L.WDF}')
    A(f's_mul_i32 s51, s54, {nfr * 1024}')
    A('s_add_u32 s50, s50, s51')
    for k in range(nfr):
        A.auto(f'ds_write_b128 {v(vW)}, {v(D + 4 * k, 4)} offset:{k * 1024}')
        A(f'ds_read_b64_tr_b16 {v(D + 4 * k, 2)}, {v(vR)} offset:{k * 1024}')
        A(f'ds_read_b64_tr_b16 {v(D + 4 * k + 2, 2)}, {v(vR)} offset:{k * 1024 + 256}')
    for k in range(nfr):
        if k == 4:
            A('s_add_u32 s50, s50, 4096')
        A.auto(f'buffer_store_dwordx4 {v(D + 4 * k, 4)}, {v(VLIN)}, {SRD}, s50 offen offset:{(k & 3) * 1024}{st}')


def wave_fill(A, base, nkb_total, nwaves, val):
    per = (nkb_total + nwaves - 1) // nwaves
    for r in range(4):
        A(f'v_mov_b32 {v(12 + r)}, {val}')
    A(f's_mul_i32 s50, s39, {per}')
    A(f's_add_u32 s51, s50, {per}')
    A(f's_min_u32 s51, s51, {nkb_total}')
    lab, end = A.newlabel('fill'), A.newlabel('fille')
    A.label(lab)
    A('s_cmp_ge_u32 s50, s51')
    A(f's_cbranch_scc1 {end}')
    A('s_lshl_b32 s52, s50, 10')
    A(f's_add_u32 s52, s52, {base}')
    A(f'buffer_store_dwordx4 v[12:15], {v(G.VLIN)}, {SRD}, s52 offen')
    A('s_add_u32 s50, s50, 1')
    A(f's_branch {lab}')
    A.label(end)


def wave_mem0(A, srdm, st='', R=12):
    VL, VLIN = G.VL, G.VLIN
    vA, vB, t0 = 5, 6, 7
    A(f'v_and_b32 {v(t0)}, 7, {v(VL)}')
    A(f'v_mul_u32_u24 {v(vA)}, 896, {v(t0)}')
    A(f'v_lshrrev_b32 {v(t0)}, 4, {v(VL)}')
    A(f'v_lshl_add_u32 {v(vB)}, {v(t0)}, 5, {v(vA)}')
    A(f'v_bfe_u32 {v(t0)}, {v(VL)}, 3, 1')
    A(f'v_lshl_add_u32 {v(vA)}, {v(t0)}, 4, {v(vB)}')
    A(f'v_lshl_add_u32 {v(vB)}, {v(t0)}, 2, {v(vB)}')
    A('s_lshl_b32 s50, s39, 7')
    A(f'buffer_load_dwordx4 {v(R, 4)}, {v(vA)}, {srdm}, s50 offen')
    for q in range(4):
        A(f'buffer_load_dword {v(R + 4 + q)}, {v(vB)}, {srdm}, s50 offen offset:{8 * q}')
    A(f'v_mov_b32 {v(t0)}, -2')
    A('s_waitcnt vmcnt(0)')
    for r in range(R, R + 8):
        A(f'v_min_u32 {v(r)}, {v(r)}, {v(t0)}')
    A('s_lshl_b32 s50, s39, 10')
    A(f's_add_u32 s51, s50, {L.MEMX}')
    A(f's_add_u32 s50, s50, {L.MEMA}')
    A(f'buffer_store_dwordx4 {v(R, 4)}, {v(VLIN)}, {SRD}, s51 offen{st}')
    A(f'buffer_store_dwordx4 {v(R + 4, 4)}, {v(VLIN)}, {SRD}, s50 offen{st}')


def emit_prep(A, cfg):
    A('s_load_dwordx16 s[80:95], s[0:1], 8')
    A('s_load_dwordx4 s[96:99], s[0:1], 72')
    G.emit_common_regs(A)
    A('s_waitcnt lgkmcnt(0)')
    A('s_cmp_ge_u32 s2, 128')
    A('s_cbranch_scc1 prep_misc')
    A('s_and_b32 s39, s2, 63')
    A('s_cmp_ge_u32 s2, 64')
    A('s_cbranch_scc1 prep_B')
    srd(A, 68, 82, 83, 448 * 8192)
    srd(A, 72, 84, 85, 448 * 8192)
    item_ab(A, 0)
    A('s_waitcnt vmcnt(0)')
    chain.tl(A, cfg, 's2', 1, 24, 0xc000)
    A('s_endpgm')
    A.label('prep_B')
    A.forget()
    srd(A, 68, 86, 87, 448 * 8192)
    srd(A, 72, 88, 89, 4096 * 896)
    item_ab(A, 1)
    A('s_waitcnt vmcnt(0)')
    chain.tl(A, cfg, 's2', 1, 24, 0xc000)
    A('s_endpgm')
    A.label('prep_misc')
    A.forget()
    srd(A, 68, 94, 95, 448 * 3584)
    srd(A, 72, 96, 97, 448 * 3584)
    srd(A, 76, 98, 99, 1792 * 896)
    srd(A, 84, 80, 81, 8 * 896)
    A('s_sub_u32 s43, s2, 128')
    A('s_lshl_b32 s43, s43, 2')
    A('s_add_u32 s43, s43, s13')
    A('s_cmp_ge_u32 s43, 256')
    A('s_cbranch_scc1 prep_noln')
    A('s_mov_b32 s39, s43')
    wave_ln(A, 's[56:59]')
    A('s_branch prep_gu')
    A.label('prep_noln')
    A.forget()
    A('s_sub_u32 s39, s43, 256')
    A('s_cmp_ge_u32 s39, 224')
    A('s_cbranch_scc1 prep_nowd')
    wave_pack(A, 'WD', 7)
    A('s_branch prep_gu')
    A.label('prep_nowd')
    A.forget()
    A('s_sub_u32 s39, s39, 224')
    A('s_cmp_ge_u32 s39, 7')
    A('s_cbranch_scc1 prep_gu')
    wave_mem0(A, 's[84:87]')
    A.label('prep_gu')
    A.forget()
    A('s_waitcnt vmcnt(0) lgkmcnt(0)')
    chain.tl(A, cfg, 's2', 2, 24, 0xc000)
    A('s_cmp_ge_u32 s43, 448')
    A('s_cbranch_scc1 prep_fill')
    A('s_mov_b32 s39, s43')
    wave_pack(A, 'GU', 7)
    A.label('prep_fill')
    A.forget()
    A('s_waitcnt vmcnt(0) lgkmcnt(0)')
    chain.tl(A, cfg, 's2', 3, 24, 0xc000)
    A('s_mov_b32 s39, s43')
    wave_fill(A, L.MEMA + 8192, 504, 512, -1)
    wave_fill(A, L.MEMX + 8192, 504, 512, -1)
    wave_fill(A, L.PBUF, 1024, 512, -1)
    wave_fill(A, L.YM, 64 * 112, 512, -1)
    wave_fill(A, L.FLAGS, 64, 512, 0)
    A('s_waitcnt vmcnt(0)')
    chain.tl(A, cfg, 's2', 1, 24, 0xc000)
```

```python
import struct
from asmdsl import v, a, s
import layout as L
import gemm as G
from prep import tr_addr, rne_bf16, CSCALE, srd
import chain
CFG = {}

SRD = 's[8:11]'
STG = 45056


def ln2_issue(A, srdx):
    VL = G.VL
    vA = 20
    A(f'v_lshrrev_b32 v21, 5, {v(VL)}')
    A(f'v_and_b32 v22, 31, {v(VL)}')
    A(f'v_mul_u32_u24 {v(vA)}, 896, v21')
    A(f'v_lshl_add_u32 {v(vA)}, v22, 4, {v(vA)}')
    A(f'v_mov_b32 v23, 0x40000000')
    A(f'v_cmp_gt_u32 vcc, 28, v22')
    A(f'v_cndmask_b32 {v(vA)}, v23, {v(vA)}, vcc')
    A('s_lshl_b32 s50, s2, 2')
    A('s_add_u32 s50, s50, s13')
    A(f's_mul_i32 s79, s50, {2 * 896}')
    A(f'buffer_load_dwordx4 v[208:211], {v(vA)}, {srdx}, s79 offen')
    A(f'buffer_load_dwordx4 v[212:215], {v(vA)}, {srdx}, s79 offen offset:448')


def ln2_compute(A, nyounger):
    VL = G.VL
    X, F = 208, 216
    t0, sm, sq, vS, t1 = 232, 233, 234, 235, 236
    A(f's_waitcnt vmcnt({nyounger})')
    A.vm = []
    for i in range(8):
        A(f'v_lshlrev_b32 {v(F + 2 * i)}, 16, {v(X + i)}')
        A(f'v_and_b32 {v(F + 2 * i + 1)}, 0xffff0000, {v(X + i)}')

    def red32(r):
        for pat in ('quad_perm:[1,0,3,2]', 'quad_perm:[2,3,0,1]', 'row_half_mirror', 'row_mirror'):
            A(f'v_add_f32_dpp {v(r)}, {v(r)}, {v(r)} {pat} row_mask:0xf bank_mask:0xf')
        A(f'v_mov_b32 {v(t1)}, {v(r)}')
        A(f'v_permlane16_swap_b32 {v(r)}, {v(t1)}')
        A(f'v_add_f32 {v(r)}, {v(r)}, {v(t1)}')
    A(f'v_add_f32 {v(sm)}, {v(F)}, {v(F + 1)}')
    for i in range(2, 16):
        A(f'v_add_f32 {v(sm)}, {v(sm)}, {v(F + i)}')
    red32(sm)
    inv = struct.unpack('<I', struct.pack('<f', 1.0 / 448.0))[0]
    A(f'v_mul_f32 {v(sm)}, {inv:#x}, {v(sm)}')
    A(f'v_mov_b32 {v(sq)}, 0')
    for i in range(16):
        A(f'v_sub_f32 {v(t0)}, {v(F + i)}, {v(sm)}')
        A(f'v_fmac_f32 {v(sq)}, {v(t0)}, {v(t0)}')
    A(f'v_and_b32 {v(t0)}, 31, {v(VL)}')
    A(f'v_cmp_gt_u32 vcc, 28, {v(t0)}')
    A(f'v_cndmask_b32 {v(sq)}, 0, {v(sq)}, vcc')
    red32(sq)
    A(f'v_mul_f32 {v(sq)}, {inv:#x}, {v(sq)}')
    rne_bf16(A, sm, t0)
    rne_bf16(A, sq, t0)
    eps = struct.unpack('<I', struct.pack('<f', 1e-5))[0]
    A(f'v_add_f32 {v(sq)}, {eps:#x}, {v(sq)}')
    rne_bf16(A, sq, t0)
    A(f'v_sqrt_f32 {v(sq)}, {v(sq)}')
    rne_bf16(A, sq, t0)
    A(f'v_rcp_f32 {v(sq)}, {v(sq)}')
    for i in range(8):
        r = F + 2 * i
        A(f'v_sub_f32 {v(r)}, {v(r)}, {v(sm)}')
        A(f'v_sub_f32 {v(r + 1)}, {v(r + 1)}, {v(sm)}')
        A(f'v_cvt_pk_bf16_f32 {v(t1)}, {v(r)}, {v(r + 1)}')
        A(f'v_lshlrev_b32 {v(r)}, 16, {v(t1)}')
        A(f'v_and_b32 {v(r + 1)}, 0xffff0000, {v(t1)}')
        A(f'v_mul_f32 {v(r)}, {v(r)}, {v(sq)}')
        A(f'v_mul_f32 {v(r + 1)}, {v(r + 1)}, {v(sq)}')
        A(f'v_cvt_pk_bf16_f32 {v(X + i)}, {v(r)}, {v(r + 1)}')
    A(f'v_lshlrev_b32 {v(vS)}, 9, {v(t0)}')
    A(f'v_lshrrev_b32 {v(t1)}, 5, {v(VL)}')
    A(f'v_lshl_add_u32 {v(vS)}, {v(t1)}, 4, {v(vS)}')
    A(f'v_mov_b32 {v(t1)}, 0x40000000')
    A(f'v_cndmask_b32 {v(vS)}, {v(t1)}, {v(vS)}, vcc')
    A('s_lshr_b32 s50, s2, 2')
    A('s_mul_i32 s50, s50, 28672')
    A('s_and_b32 s51, s2, 3')
    A('s_lshl_b32 s51, s51, 2')
    A('s_add_u32 s51, s51, s13')
    A('s_lshl_b32 s51, s51, 5')
    A('s_add_u32 s50, s50, s51')
    A(f's_add_u32 s79, s50, {L.XF}')
    return [f'buffer_store_dwordx4 {v(X, 4)}, {v(vS)}, {SRD}, s79 offen sc1',
            f's_add_u32 s79, s79, {28 * 512}',
            f'buffer_store_dwordx4 {v(X + 4, 4)}, {v(vS)}, {SRD}, s79 offen sc1']


def item_ab2(A, mat):
    VL, VLIN, VPERM = G.VL, G.VLIN, G.VPERM
    acc = lambda nb: G.ACC0 + 16 * nb
    vS0, vS1, vWo, vSt, t0, t1, t2 = 5, 6, 7, 24, 8, 9, 10
    RO = lambda kq: 12 + kq
    RS = lambda kq: 16 + kq
    WOV = 196
    A(f'v_lshrrev_b32 {v(t0)}, 3, {v(VL)}')
    A(f'v_and_b32 {v(t1)}, 7, {v(VL)}')
    A(f'v_lshrrev_b32 {v(t2)}, 1, {v(t0)}')
    A(f'v_xor_b32 {v(t1)}, {v(t1)}, {v(t2)}')
    A(f'v_lshlrev_b32 {v(t0)}, 13, {v(t0)}')
    A(f'v_lshl_add_u32 {v(vS0)}, {v(t1)}, 4, {v(t0)}')
    A(f'v_xor_b32 {v(vS1)}, 64, {v(vS0)}')
    A('s_lshl_b32 s44, s54, 2')
    A('s_add_u32 s44, s44, s13')
    A('s_min_u32 s50, s44, 13')
    A('s_lshl_b32 s45, s50, 18')
    A('s_lshl_b32 s51, s53, 9')
    A('s_add_u32 s45, s45, s51')
    A('s_lshl_b32 s46, s13, 12')

    def frag_addr(dst4, rowreg):
        A(f'v_bfe_u32 {v(t1)}, {v(rowreg)}, 1, 3')
        A(f'v_lshrrev_b32 {v(t2)}, 5, {v(VL)}')
        A(f'v_xor_b32 {v(t1)}, {v(t1)}, {v(t2)}')
        A(f'v_lshlrev_b32 {v(t1)}, 4, {v(t1)}')
        A(f'v_lshl_add_u32 {v(t1)}, {v(rowreg)}, 7, {v(t1)}')
        for kq in range(4):
            A(f'v_xor_b32 {v(dst4(kq))}, {32 * kq}, {v(t1)}')
    A(f'v_lshrrev_b32 {v(t0)}, 4, {v(VPERM)}')
    A(f'v_and_b32 {v(t0)}, 31, {v(t0)}')
    frag_addr(RO, t0)
    for kq in range(4):
        A(f'v_add_u32 {v(RO(kq))}, s46, {v(RO(kq))}')
    if mat == 0:
        A(f'v_and_b32 {v(t0)}, 31, {v(VL)}')
        frag_addr(RS, t0)
        A(f's_mul_i32 s47, s55, {7 << 18}')
        A('s_add_u32 s47, s47, s51')
        A('s_lshl_b32 s50, s13, 16')
        A('s_add_u32 s47, s47, s50')
        A('s_and_b32 s50, s13, 1')
        A('s_lshl_b32 s50, s50, 6')
        A(f'v_xor_b32 {v(vWo)}, s50, {v(vS0)}')
        nb_step, st_step = 1 << 18, 128
        A(f'v_mov_b32 {v(vSt)}, {v(VLIN)}')
    else:
        for j in range(7):
            A(f'v_add_u32 {v(t0)}, {64 * j}, {v(VL)}')
            A(f'v_mul_u32_u24 {v(t1)}, 2341, {v(t0)}')
            A(f'v_lshrrev_b32 {v(t1)}, 16, {v(t1)}')
            A(f'v_mul_u32_u24 {v(t2)}, {896 - 448}, {v(t1)}')
            A(f'v_lshl_add_u32 {v(WOV + j)}, {v(t0)}, 4, {v(t2)}')
        A(f's_mul_i32 s47, s53, {256 * 896}')
        A(f's_mul_i32 s50, s55, {7 * 64}')
        A('s_add_u32 s47, s47, s50')
        A(f's_mul_i32 s50, s13, {16 * 896}')
        A('s_add_u32 s47, s47, s50')
        nb_step, st_step = 64, 64 * 896
        A(f'v_lshrrev_b32 {v(t0)}, 5, {v(VL)}')
        A(f'v_lshlrev_b32 {v(t0)}, 3, {v(t0)}')
        A(f'v_bfe_u32 {v(t1)}, {v(VL)}, 2, 2')
        A(f'v_add_u32 {v(t0)}, {v(t0)}, {v(t1)}')
        A(f'v_mul_u32_u24 {v(RS(0))}, 448, {v(t0)}')
        A(f'v_bfe_u32 {v(t0)}, {v(VL)}, 4, 1')
        A(f'v_lshl_add_u32 {v(RS(0))}, {v(t0)}, 5, {v(RS(0))}')
        A(f'v_and_b32 {v(t0)}, 3, {v(VL)}')
        A(f'v_lshl_add_u32 {v(RS(0))}, {v(t0)}, 3, {v(RS(0))}')
        A(f'v_and_b32 {v(t0)}, 1, {v(VL)}')
        A(f'v_lshlrev_b32 {v(vSt)}, 4, {v(t0)}')
        A(f'v_bfe_u32 {v(t0)}, {v(VL)}, 1, 4')
        A(f'v_add_u32 {v(vSt)}, {v(vSt)}, {v(t0)}')
        A(f'v_lshrrev_b32 {v(t1)}, 5, {v(VL)}')
        A(f'v_lshl_add_u32 {v(vSt)}, {v(t1)}, 5, {v(vSt)}')
        A(f'v_lshlrev_b32 {v(vSt)}, 4, {v(vSt)}')
    A('s_lshl_b32 s48, s13, 10' if mat == 0 else 's_mul_i32 s48, s13, 7168')

    def issue(st):
        buf = (st % 3) * STG
        for j in range(4):
            A(f's_add_u32 s50, s46, {buf + j * 1024}')
            A('s_mov_b32 m0, s50')
            A(f's_add_u32 s51, s45, {st * 128 + j * 65536}')
            A(f'buffer_load_dwordx4 {v(vS1 if j & 1 else vS0)}, s[68:71], s51 offen lds')
        for nb in range(7):
            A(f's_add_u32 s50, s48, {buf + 16384 + nb * (4096 if mat == 0 else 1024)}')
            A('s_mov_b32 m0, s50')
            if mat == 0:
                A(f's_add_u32 s51, s47, {st * st_step + nb * nb_step}')
                A(f'buffer_load_dwordx4 {v(vWo)}, s[72:75], s51 offen lds')
            else:
                A(f's_add_u32 s51, s47, {st * st_step}')
                A(f'buffer_load_dwordx4 {v(WOV + nb)}, s[72:75], s51 offen lds')
    for st in range(3):
        issue(st)
    lnst = ln2_compute(A, 33)
    for r in range(112):
        A(f'v_mov_b32 {v(G.ACC0 + r)}, 0')
    OB = lambda par: 4 * par
    WB = lambda par, nb: 8 + (par * 7 + nb) * 4
    vB = {}

    def rd(st, kq, par):
        buf = (st % 3) * STG
        hi_ = buf >= 45056 * 1.4
        out = []
        ro = v(RO(kq))
        if mat == 0:
            rs = v(RS(kq))
            so = 16384
        else:
            rs = v(RS(0))
            so = 16384 + kq * 7168
        out.append([f'ds_read_b128 {a(OB(par), 4)}, {ro} offset:{0}'])
        for nb in range(7):
            if mat == 0:
                out.append([f'ds_read_b128 {a(WB(par, nb), 4)}, {rs} offset:{so + nb * 4096}'])
            else:
                out.append([f'ds_read_b64_tr_b16 {a(WB(par, nb), 2)}, {rs} offset:{so + nb * 64}',
                            f'ds_read_b64_tr_b16 {a(WB(par, nb) + 2, 2)}, {rs} offset:{so + nb * 64 + 1792}'])
        return out

    def shift(delta):
        for r in range(12, 20):
            A(f'v_add_u32 {v(r)}, {delta & 0xffffffff:#x}, {v(r)}')
    waits = [22, 11 + 2, 11, 0]
    for st in range(4):
        A.forget()
        A(f's_waitcnt vmcnt({(22, 13, 13, 0)[st]})')
        A('s_barrier')
        if st == 0 and CFG.get('tl'):
            A('s_memrealtime s[92:93]')
        if st == 0:
            for x in lnst:
                A(x)
        if st == 1:
            issue(3)
        for g in rd(st, 0, 0):
            for x in g:
                A(x)
        for kq in range(4):
            par = kq & 1
            nxt = rd(st, kq + 1, par ^ 1) if kq < 3 else []
            if nxt:
                for x in nxt.pop(0):
                    A(x)
            for nb in range(7):
                A.auto(f'v_mfma_f32_32x32x16_bf16 {v(acc(nb), 16)}, {a(OB(par), 4)}, {a(WB(par, nb), 4)}, {v(acc(nb), 16)}')
                if nxt:
                    for x in nxt.pop(0):
                        A(x)
        if st < 3:
            shift(STG if st < 2 else -2 * STG)
    if CFG.get('tl'):
        A('s_memrealtime s[94:95]')
    A('s_mul_i32 s42, s53, 14')
    A('s_mul_i32 s50, s55, 7')
    A('s_add_u32 s42, s42, s50')
    A('s_mul_i32 s42, s42, 28672')
    A(f's_add_u32 s42, s42, {L.WF + (L.NB_A if mat == 0 else L.NB_B) * 28672}')
    A(f's_mov_b32 s52, {CSCALE}')
    A('s_lshl_b32 s51, s44, 11')
    A('s_add_u32 s51, s51, s42')
    A('s_cmp_gt_u32 s44, 13')
    A('s_cselect_b32 s51, 0x40000000, s51')
    n = 0
    for nb in range(7):
        for ph in range(2):
            t = 160 + 4 * (n % 8)
            n += 1
            for j in range(4):
                r = acc(nb) + 8 * ph + 2 * j
                if mat == 0:
                    A(f'v_mul_f32 {v(r)}, s52, {v(r)}')
                    A(f'v_mul_f32 {v(r + 1)}, s52, {v(r + 1)}')
                A(f'v_cvt_pk_bf16_f32 {v(t + j)}, {v(r)}, {v(r + 1)}')
            A(f'buffer_store_dwordx4 {v(t, 4)}, {v(vSt)}, {SRD}, s51 offen offset:{ph * 1024} sc1')
        A('s_add_u32 s51, s51, 28672')
```

```python
import sys
from asmdsl import Asm, v, a, s
import layout as L
import gemm as G
import items as I
import prep
import prep2
import chain
from build_multi import KD, srd

SRD = 's[8:11]'
LDSW = 0x24f00
NAME = 'parallel_sum__memory_aug_recurrent_mem_tr__glu_gated_bilinear__prompt_kernel'


def flag_store(A, idx_sreg):
    A(f's_lshl_b32 s38, {idx_sreg}, 3')
    A(f's_add_u32 s38, s38, {L.FLAGS}')
    A('v_mov_b32 v24, s96')
    A('v_mov_b32 v25, s97')
    A(f'buffer_store_dwordx2 v[24:25], v31, {SRD}, s38 offen sc1')


def emit_main(A, cfg):
    XC = cfg.get('xcc', 0)
    tl = chain.tl
    A('s_cmp_ge_u32 s2, 256')
    A('s_cbranch_scc1 L_bail')
    A('s_load_dwordx4 s[4:7], s[0:1], 96')
    A('s_load_dwordx16 s[80:95], s[0:1], 0')
    A('s_load_dwordx8 s[16:23], s[0:1], 64')
    A('s_memrealtime s[98:99]')
    A('v_lshrrev_b32 v1, 6, v0')
    A('v_readfirstlane_b32 s13, v1')
    A('s_mov_b32 s33, 0')
    A('s_getreg_b32 s12, hwreg(HW_REG_XCC_ID)')
    A('s_and_b32 s12, s12, 15')
    A(f'v_mov_b32 v28, {LDSW}')
    A('v_mov_b32 v31, 0')
    A('v_mov_b32 v29, 32')
    A('s_add_u32 s75, s12, 6')
    A('s_mul_hi_u32 s38, s75, 0x24924925')
    A('s_mul_i32 s38, s38, 7')
    A('s_sub_u32 s77, s75, s38')
    A('s_mov_b32 s78, 7')
    G.emit_common_regs(A)
    A('s_waitcnt lgkmcnt(0)')
    srd(A, 8, 6, 7, L.WS_BYTES)
    srd(A, 56, 80, 81, 2048 * 896)
    srd(A, 60, 22, 23, 2048 * 896)
    A('s_mov_b64 s[34:35], s[16:17]')
    A('s_mov_b64 s[36:37], s[18:19]')
    A('s_mov_b64 s[64:65], s[20:21]')
    A('s_mov_b64 s[66:67], s[82:83]')
    tl(A, cfg, 's2', 0, 24, 0x1c000)
    A('s_cmp_lg_u32 s13, 0')
    A('s_cbranch_scc1 E_1')
    A('s_mov_b64 exec, 1')
    A('s_or_b32 s98, s98, 1')
    A('v_mov_b32 v240, s98')
    A('v_mov_b32 v241, s99')
    A('v_mov_b32 v242, 0')
    A('v_mov_b32 v243, 0')
    A('global_atomic_cmpswap_x2 v[244:245], v31, v[240:243], s[4:5] offset:16 sc0')
    A('v_mov_b32 v246, 64')
    A(f's_cmp_eq_u32 s12, {XC}')
    A('s_cbranch_scc0 E_0')
    A('v_mov_b32 v246, 1')
    A('global_atomic_add v246, v31, v246, s[4:5] sc0')
    A.label('E_0')
    A('s_mov_b64 exec, -1')
    A.label('E_1')
    A.forget()
    prep2.ln2_issue(A, 's[56:59]')
    A('s_and_b32 s50, s2, 7')
    A('s_lshl_b32 s50, s50, 2')
    A('s_bfe_u32 s51, s2, 0x20003')
    A('s_add_u32 s50, s50, s51')
    A('s_lshr_b32 s51, s2, 5')
    A('s_lshl_b32 s69, s50, 3')
    A('s_add_u32 s3, s69, s51')
    A('s_and_b32 s53, s50, 15')
    A('s_and_b32 s54, s51, 3')
    A('s_lshr_b32 s55, s51, 2')
    A('s_cmp_ge_u32 s50, 16')
    A('s_cbranch_scc1 E_B')
    srd(A, 68, 84, 85, 448 * 8192)
    srd(A, 72, 86, 87, 448 * 8192)
    prep2.item_ab2(A, 0)
    A('s_branch E_2')
    A.label('E_B')
    A.forget()
    srd(A, 68, 88, 89, 448 * 8192)
    srd(A, 72, 90, 91, 4096 * 896)
    prep2.item_ab2(A, 1)
    A.label('E_2')
    A.forget()
    for r in range(4):
        A(f'v_mov_b32 v{12 + r}, -1')
    A('s_lshl_b32 s50, s2, 2')
    A('s_add_u32 s50, s50, s13')
    A('s_and_b32 s51, s50, 0x2fc')
    A('s_lshl_b32 s50, s50, 11')
    A(f's_add_u32 s50, s50, {L.MEMA}')
    A('s_cmp_eq_u32 s51, 0')
    A('s_cselect_b32 s50, 0x40000000, s50')
    A(f'buffer_store_dwordx4 v[12:15], {v(G.VLIN)}, {SRD}, s50 offen sc1')
    A(f'buffer_store_dwordx4 v[12:15], {v(G.VLIN)}, {SRD}, s50 offen offset:1024 sc1')
    A('s_cmp_ge_u32 s2, 2')
    A('s_cbranch_scc1 E_2b')
    A('s_lshl_b32 s39, s2, 2')
    A('s_add_u32 s39, s39, s13')
    A('s_min_u32 s39, s39, 6')
    srd(A, 68, 66, 67, 8 * 896)
    A('s_nop 1')
    prep.wave_mem0(A, 's[68:71]', ' sc1', 32)
    A.label('E_2b')
    A.forget()
    A('s_mov_b32 s75, s77')
    A('s_mov_b32 s76, s78')
    A('s_waitcnt vmcnt(0)')
    tl(A, cfg, 's2', 1, 24, 0x1c000)
    if cfg.get('tl'):
        A('v_mov_b32 v24, s92')
        A(f'buffer_store_dword v24, v25, {SRD}, s101 offen offset:8')
        A('v_mov_b32 v26, s94')
        A(f'buffer_store_dword v26, v25, {SRD}, s101 offen offset:12')
    A('s_cmp_lg_u32 s13, 0')
    A('s_cbranch_scc1 E_3')
    A('s_mov_b64 exec, 1')
    A('v_cmp_eq_u64 vcc, 0, v[244:245]')
    A('v_cndmask_b32 v244, v244, v240, vcc')
    A('v_cndmask_b32 v245, v245, v241, vcc')
    A('ds_write_b64 v28, v[244:245] offset:8')
    A('ds_write_b32 v28, v246')
    A('s_waitcnt lgkmcnt(0)')
    A('s_mov_b64 exec, -1')
    A.label('E_3')
    A('s_barrier')
    A('ds_read_b64 v[26:27], v28 offset:8')
    A('ds_read_b32 v30, v28')
    A('s_waitcnt lgkmcnt(0)')
    A('v_readfirstlane_b32 s96, v26')
    A('v_readfirstlane_b32 s97, v27')
    A('v_readfirstlane_b32 s14, v30')
    A('s_cmp_lg_u32 s13, 0')
    A('s_cbranch_scc1 E_4')
    A('s_mov_b64 exec, 1')
    A(f's_add_u32 s69, s3, {L.F_AB}')
    flag_store(A, 's69')
    A(f's_add_u32 s69, s2, {L.F_LN}')
    flag_store(A, 's69')
    A('s_mov_b64 exec, -1')
    A.label('E_4')
    A.forget()
    A('s_branch CL_got')
    A.label('CLAIM')
    A.forget()
    A('s_cmp_lg_u32 s13, 0')
    A('s_cbranch_scc1 CL_w')
    A('s_mov_b64 exec, 1')
    A('v_mov_b32 v30, 1')
    A('global_atomic_add v30, v31, v30, s[4:5] sc0')
    A('s_waitcnt vmcnt(0)')
    A('ds_write_b32 v28, v30')
    A('s_waitcnt lgkmcnt(0)')
    A('s_mov_b64 exec, -1')
    A.label('CL_w')
    A('s_barrier')
    A('ds_read_b32 v30, v28')
    A('s_waitcnt lgkmcnt(0)')
    A('v_readfirstlane_b32 s14, v30')
    A.label('CL_got')
    A('s_barrier')
    A('v_mov_b32 v29, 32')
    A('s_cmp_ge_u32 s14, 32')
    A('s_cbranch_scc1 W_deq')
    A('s_cmp_lg_u32 s13, 0')
    A('s_cbranch_scc1 CL_r')
    A('s_mov_b64 exec, 1')
    A('s_mul_i32 s38, s12, s12')
    A('s_lshl_b32 s38, s38, 9')
    A('s_add_u32 s38, s38, s12')
    A('s_lshl_b32 s38, s38, 6')
    A('s_add_u32 s38, s38, 1')
    A('v_mov_b32 v30, s38')
    A('global_atomic_add v31, v30, s[4:5] offset:8')
    A('s_mov_b64 exec, -1')
    A.label('CL_r')
    A.forget()
    A('s_cmp_ge_u32 s14, 30')
    A('s_cbranch_scc1 L_roleC')
    A('s_cmp_ge_u32 s14, 16')
    A('s_cbranch_scc1 L_roleB')
    chain.emit_A(A, cfg)
    A.label('L_roleB')
    A.forget()
    A('s_sub_u32 s14, s14, 16')
    chain.emit_B(A, cfg)
    A.label('L_roleC')
    A.forget()
    A('s_sub_u32 s14, s14, 30')
    chain.emit_C(A, cfg)
    A.label('L_bail')
    A('s_endpgm')

    def dequeue():
        A('s_lshl_b32 s38, s75, 2')
        A('v_mov_b32 v26, s38')
        A('v_mov_b32 v30, 1')
        A('global_atomic_add v30, v26, v30, s[4:5] offset:128 sc0')

    A.label('W_deq')
    A.forget()
    A('s_cmp_lg_u32 s13, 0')
    A('s_cbranch_scc1 W_f2')
    A('s_mov_b64 exec, 1')
    dequeue()
    A('s_waitcnt vmcnt(0)')
    A('ds_write_b32 v28, v30')
    A('s_waitcnt lgkmcnt(0)')
    A('s_mov_b64 exec, -1')
    A.label('W_f2')
    A('s_barrier')
    A.label('W_next')
    A.forget()
    A('ds_read_b32 v26, v28')
    A('s_waitcnt lgkmcnt(0)')
    A('v_readfirstlane_b32 s68, v26')
    A('s_cmp_eq_u32 s68, -1')
    A('s_cbranch_scc1 W_claim')
    A('s_cmp_eq_u32 s75, 7')
    A('s_cbranch_scc1 W_late')
    c0 = 0
    phases = ((32, 2, 'W_y0', 0), (32, 7, 'W_y', 1), (16, 7, 'W_pk', 0), (56, 1, 'W_pw', 0), (16, 8, 'W_gu', 1), (16, 8, 'W_t1', 1),
              (64, 1, 'W_g2', 1), (16, 8, 'W_t2', 1))
    for ncol, nrow, lab, adv in phases:
        A(f's_add_u32 s70, s75, {(7 - c0 % 7) % 7}')
        A('s_cmp_ge_u32 s70, 7')
        A('s_cselect_b32 s38, 7, 0')
        A('s_sub_u32 s70, s70, s38')
        full, rem = divmod(ncol, 7)
        A(f's_cmp_lt_u32 s70, {rem}')
        A(f's_cselect_b32 s71, {full + 1}, {full}')
        A(f's_cselect_b32 s72, {-(-65536 // (full + 1))}, 0')
        A(f's_cselect_b32 s38, 0, {-(-65536 // full)}')
        A('s_add_u32 s72, s72, s38')
        A(f's_mul_i32 s38, s71, {nrow}')
        A('s_cmp_lt_u32 s68, s38')
        A(f's_cbranch_scc1 {lab}')
        A('s_sub_u32 s68, s68, s38')
        if adv:
            c0 += ncol
    sizes = []
    for x in range(7):
        c0_, tot = 0, 0
        for ncol, nrow, lab, adv in phases:
            f = (x - c0_) % 7
            tot += len(range(f, ncol, 7)) * nrow
            if adv:
                c0_ += ncol
        sizes.append(tot)
    A('v_and_b32 v8, 7, v0')
    A('v_lshlrev_b32 v8, 2, v8')
    A('global_load_dword v9, v8, s[4:5] offset:128 sc1')
    A('v_mov_b32 v10, 0')
    for x in range(7):
        A(f's_mov_b32 s38, {sizes[x]}')
        A(f'v_writelane_b32 v10, s38, {x}')
    A('s_waitcnt vmcnt(0)')
    A('v_cmp_lt_u32 vcc, v9, v10')
    A('s_and_b32 s38, vcc_lo, 0x7f')
    A('s_or_b32 s38, s38, 0x80')
    A('s_ff1_i32_b32 s38, s38')
    A('v_mov_b32 v9, s38')
    A('s_barrier')
    A('s_cmp_lg_u32 s13, 0')
    A('s_cbranch_scc1 W_x1')
    A('ds_write_b32 v28, v9 offset:4')
    A('s_waitcnt lgkmcnt(0)')
    A.label('W_x1')
    A('s_barrier')
    A('ds_read_b32 v9, v28 offset:4')
    A('s_waitcnt lgkmcnt(0)')
    A('v_readfirstlane_b32 s75, v9')
    A('s_branch W_deq')

    def rbct():
        A('s_mul_i32 s73, s68, s72')
        A('s_lshr_b32 s73, s73, 16')
        A('s_mul_i32 s74, s73, s71')
        A('s_sub_u32 s74, s68, s74')
        A('s_mul_i32 s74, s74, 7')
        A('s_add_u32 s74, s74, s70')

    def fw(base, sreg, shift, n, sleep=4):
        A(f's_lshl_b32 s70, {sreg}, {shift}')
        A(f's_add_u32 s70, s70, {base}')
        chain.flag_wait(A, 's70', n, 8, sleep=sleep)

    A.label('W_y0')
    A.forget()
    rbct()
    A('s_lshl_b32 s39, s73, 5')
    A('s_add_u32 s39, s39, s74')
    A(f's_add_u32 s69, s39, {L.F_Y0}')
    tl(A, cfg, 's69', 0, 24)
    fw(L.F_LN, 's73', 4, 16)
    fw(L.F_AB + 128, 's74', 2, 4)
    I.item_y0(A)
    A('s_branch W_end')
    A.label('W_t2')
    A('s_add_u32 s70, s70, 16')
    for lab, kind, sh, fb, add in (('W_t1', 'T', 5, L.F_T, 0), ('W_y', 'Y', 5, L.F_Y, 1), ('W_gu', 'GU', 4, L.F_GU, 0)):
        A.label(lab)
        A.forget()
        rbct()
        if add:
            A(f's_add_u32 s73, s73, {add}')
        A(f's_lshl_b32 s39, s73, {sh}')
        A('s_add_u32 s39, s39, s74')
        A(f's_add_u32 s69, s39, {fb}')
        tl(A, cfg, 's69', 0, 24)
        fw(L.F_LN, 's73', 5, 32)
        if kind == 'GU':
            A('s_mul_i32 s74, s74, 7')
            fw(L.F_PK, 's74', 0, 7)
        else:
            fw(L.F_AB + (128 if kind == 'Y' else 0), 's74', 2, 4)
        I.item_gemm1(A, kind)
        A('s_branch W_end')
    A.label('W_pk')
    A.forget()
    rbct()
    A('s_mul_i32 s74, s74, 7')
    A('s_add_u32 s74, s74, s73')
    A(f's_add_u32 s43, s74, {L.F_PK}')
    A('s_lshl_b32 s39, s74, 2')
    A('s_add_u32 s39, s39, s13')
    A('s_mov_b64 s[46:47], s[74:75]')
    srd(A, 68, 34, 35, 448 * 3584)
    srd(A, 72, 36, 37, 448 * 3584)
    prep.wave_pack(A, 'GU', 7, ' sc1')
    A('s_mov_b64 s[74:75], s[46:47]')
    A('s_mov_b32 s69, s43')
    A('s_barrier')
    A('s_branch W_end')
    A.label('W_pw')
    A.forget()
    rbct()
    A(f's_add_u32 s43, s74, {L.F_PK + 112}')
    A('s_lshl_b32 s39, s74, 2')
    A('s_add_u32 s39, s39, s13')
    srd(A, 68, 64, 65, 1792 * 896)
    prep.wave_pack(A, 'WD', 7, ' sc1', 's[68:71]')
    A('s_mov_b32 s69, s43')
    A('s_barrier')
    A('s_branch W_end')
    A.label('W_g2')
    A.forget()
    rbct()
    A('s_mov_b32 s39, s74')
    A(f's_add_u32 s69, s39, {L.F_G2}')
    tl(A, cfg, 's69', 0, 24)
    chain.flag_wait(A, L.F_PK + 112, 56, 8, sleep=8)
    A('s_lshr_b32 s70, s39, 3')
    A('s_lshl_b32 s70, s70, 4')
    A('s_and_b32 s38, s39, 1')
    A('s_lshl_b32 s38, s38, 3')
    A('s_add_u32 s70, s70, s38')
    A(f's_add_u32 s70, s70, {L.F_GU}')
    chain.flag_wait(A, 's70', 8, 8, sleep=16)
    I.item_gemm2(A)
    A('s_branch W_end')
    A.label('W_late')
    A.forget()
    LAG = cfg.get('lag', 5)
    A('s_cmp_eq_u32 s78, 0')
    A('s_cbranch_scc1 W_l2')
    chain.flag_wait_multi(A, [L.F_LN, L.F_LN + 64, L.F_LN + 128, L.F_LN + 192], 8)
    A('s_mov_b32 s78, 0')
    A.label('W_l2')
    A.forget()
    A(f's_cmp_ge_u32 s68, {(64 + LAG) * 11}')
    A('s_cbranch_scc1 L_bail')
    A('s_mul_hi_u32 s71, s68, 0x1745d175')
    A('s_mul_i32 s38, s71, 11')
    A('s_sub_u32 s72, s68, s38')
    A('s_cmp_ge_u32 s72, 4')
    A('s_cbranch_scc1 W_pv')
    A('s_cmp_ge_u32 s71, 64')
    A('s_cbranch_scc1 W_skip')
    A('s_lshl_b32 s39, s71, 2')
    A('s_add_u32 s39, s39, s72')
    A(f's_add_u32 s69, s39, {L.F_P}')
    tl(A, cfg, 's69', 0, 24)
    A('s_lshr_b32 s70, s71, 3')
    A('s_lshl_b32 s70, s70, 5')
    A('s_lshl_b32 s38, s72, 3')
    A('s_add_u32 s70, s70, s38')
    A(f's_add_u32 s70, s70, {L.F_T}')
    chain.flag_wait(A, 's70', 8, 8, sleep=16)
    I.item_punit(A)
    A('s_branch W_end')
    A.label('W_skip')
    A('s_barrier')
    A('s_branch W_deq')
    A.label('W_pv')
    A.forget()
    A(f's_cmp_lt_u32 s71, {LAG}')
    A('s_cbranch_scc1 W_skip')
    A(f's_sub_u32 s71, s71, {LAG}')
    A('s_mul_i32 s39, s71, 7')
    A('s_add_u32 s39, s39, s72')
    A('s_sub_u32 s39, s39, 4')
    A(f's_add_u32 s69, s39, {L.F_PV}')
    tl(A, cfg, 's69', 0, 24)
    A('s_lshr_b32 s70, s71, 3')
    A('s_lshl_b32 s70, s70, 5')
    A('s_lshr_b32 s38, s71, 2')
    A('s_lshl_b32 s38, s38, 5')
    A(f's_add_u32 s38, s38, {L.F_Y0}')
    A('s_cmp_lt_u32 s71, 8')
    A('s_cselect_b32 s70, s38, s70')
    chain.flag_wait(A, 's70', 32, 8, sleep=16)
    A('s_lshr_b32 s70, s71, 2')
    A('s_lshl_b32 s70, s70, 2')
    A(f's_add_u32 s70, s70, {L.F_G2}')
    chain.flag_wait(A, 's70', 4, 8, sleep=16)

    def wait_px(A):
        I.approach(A, 's71', 12, 0)
        A('s_cmp_ge_u32 s71, 62')
        A('s_cbranch_scc1 W_ymf')
        A('s_add_u32 s38, s71, 2')
        A('s_lshl_b32 s38, s38, 13')
        A('s_lshr_b32 s70, s54, 1')
        A('s_lshl_b32 s70, s70, 10')
        A('s_add_u32 s38, s38, s70')
        A(f's_add_u32 s38, s38, {L.MEMX}')
        A('v_mov_b32 v12, 0')
        A.label('W_ymp', keep=True)
        I.guard(A)
        A(f'buffer_load_dword v13, v12, {SRD}, s38 offen sc1')
        A('s_waitcnt vmcnt(0)')
        A('v_cmp_eq_u32 vcc, -1, v13')
        A('s_cbranch_vccz W_ymok')
        A('s_sleep 16')
        A('s_branch W_ymp')
        A.label('W_ymf', keep=True)
        chain.flag_wait(A, 's43', 2, 12, sleep=4)
        A.label('W_ymok', keep=True)
        A('s_lshl_b32 s70, s71, 2')
        A(f's_add_u32 s70, s70, {L.F_P}')
        chain.flag_wait(A, 's70', 4, 12, sleep=2)
    def early_deq(A):
        A('s_cmp_lg_u32 s13, 0')
        A('s_cbranch_scc1 W_ed')
        A('s_mov_b64 exec, 1')
        dequeue()
        A('s_mov_b64 exec, -1')
        A.label('W_ed', keep=True)
    I.item_pvunit(A, wait_px, hook=early_deq)
    A.forget()
    tl(A, cfg, 's69', 1, 24)
    A('s_cmp_lg_u32 s13, 0')
    A('s_cbranch_scc1 W_e2')
    A('s_mov_b64 exec, 1')
    A('ds_write_b32 v28, v30')
    A('s_mov_b64 exec, -1')
    A('s_waitcnt lgkmcnt(0)')
    A('s_barrier')
    A('s_branch W_next')
    A.label('W_end')
    A.forget()
    A('s_cmp_lg_u32 s13, 0')
    A('s_cbranch_scc1 W_e1')
    A('v_readfirstlane_b32 s38, v29')
    A('v_mov_b32 v30, -1')
    A('s_cmp_lt_u32 s38, 32')
    A('s_cbranch_scc1 W_e1')
    A('s_mov_b64 exec, 1')
    dequeue()
    A('s_mov_b64 exec, -1')
    A('global_load_dword v29, v31, s[4:5] sc1')
    A.label('W_e1')
    A('s_waitcnt vmcnt(0)')
    tl(A, cfg, 's69', 1, 24)
    A('s_cmp_lg_u32 s13, 0')
    A('s_cbranch_scc1 W_e2')
    A('s_mov_b64 exec, 1')
    A('ds_write_b32 v28, v30')
    A('s_waitcnt lgkmcnt(0)')
    A('s_barrier')
    flag_store(A, 's69')
    A('s_mov_b64 exec, -1')
    A('s_branch W_next')
    A.label('W_e2')
    A('s_barrier')
    A('s_branch W_next')
    A.label('W_claim')
    A('s_barrier')
    A('s_branch CLAIM')


def build(cfg):
    cfg = dict(cfg)
    cfg['fused'] = 1
    I.CFG.update(cfg)
    prep2.CFG.update(cfg)
    A = Asm()
    cfg.setdefault('ntouch', 4)
    if cfg.get('aslist'):
        A.raw(f'; @launch kernel={NAME} grid=(256,1,1) block=(256,1,1) lds=151552')
    else:
        A.raw('; @launch grid=(256,1,1) block=(256,1,1) lds=151552')
    A.raw('.amdgcn_target "amdgcn-amd-amdhsa--gfx950"\n.text')
    A.raw(f'.globl {NAME}\n.p2align 8\n.type {NAME},@function')
    A.label(NAME)
    emit_main(A, cfg)
    A.raw('.section .rodata,"a"')
    A.raw('.p2align 6')
    A.raw(KD.format(name=NAME))
    return A.text()


if __name__ == '__main__':
    cfg = {}
    for kv in sys.argv[2:]:
        k, val = kv.split('=')
        cfg[k] = int(val)
    open(sys.argv[1], 'w').write(build(cfg))
```

```python
from asmdsl import v, a, s
import layout as L

SRD = 's[8:11]'
NSTEP = 63


def stamp(A, cfg, slot):
    if cfg.get('stamps'):
        A(f's_memtime s[{40 + 2 * slot}:{41 + 2 * slot}]')


def rstamp(A, cfg, slot):
    if cfg.get('stamps'):
        A(f's_memrealtime s[{40 + 2 * slot}:{41 + 2 * slot}]')


def stamp_flush(A, cfg, nslots, base_sreg, vt):
    if not cfg.get('stamps'):
        return
    A('s_waitcnt lgkmcnt(0)')
    for k in range(nslots):
        A(f'v_mov_b32 {v(vt)}, s{40 + 2 * k}')
        A(f'v_mov_b32 {v(vt + 1)}, 0')
        A(f'buffer_store_dword {v(vt)}, {v(vt + 1)}, {SRD}, s{base_sreg} offen offset:{4 * k}')
    A(f's_add_u32 s{base_sreg}, s{base_sreg}, 64')


def guard(A):
    A('s_add_u32 s33, s33, 1')
    A('s_cmp_gt_u32 s33, 0x200000')
    A('s_cbranch_scc1 L_bail')


def tl(A, cfg, idx_sreg_or_int, slot, vt, base=0):
    if not cfg.get('tl'):
        return
    A('s_memrealtime s[100:101]')
    A('s_waitcnt lgkmcnt(0)')
    A(f'v_mov_b32 {v(vt)}, s100')
    A(f'v_mov_b32 {v(vt + 1)}, 0')
    if isinstance(idx_sreg_or_int, int):
        A(f's_mov_b32 s101, {L.STAMP + base + idx_sreg_or_int * 16}')
    else:
        A(f's_lshl_b32 s101, {idx_sreg_or_int}, 4')
        A(f's_add_u32 s101, s101, {L.STAMP + base}')
    A(f'buffer_store_dword {v(vt)}, {v(vt + 1)}, {SRD}, s101 offen offset:{slot * 4}')


def dbgmax(A, cfg, word, vt, clock='s_memrealtime'):
    if not cfg.get('dbg'):
        return
    A(f'{clock} s[100:101]')
    A('s_waitcnt lgkmcnt(0)')
    if clock == 's_memrealtime':
        A('s_sub_u32 s100, s100, s96')
    A(f'v_mov_b32 {v(vt)}, s100')
    A(f'v_mov_b32 {v(vt + 1)}, 0')
    A('s_mov_b64 exec, 1')
    A(f'global_atomic_umax {v(vt + 1)}, {v(vt)}, s[4:5] offset:{4 * word}')
    A('s_mov_b64 exec, -1')


def flag_wait(A, first, n, vt, sleep=8):
    A(f'v_and_b32 {v(vt)}, 63, v0')
    A(f'v_min_u32 {v(vt)}, {n - 1}, {v(vt)}')
    A(f'v_lshlrev_b32 {v(vt)}, 3, {v(vt)}')
    if isinstance(first, int):
        A(f's_mov_b32 s38, {L.FLAGS + 8 * first}')
    else:
        A(f's_lshl_b32 s38, {first}, 3')
        A(f's_add_u32 s38, s38, {L.FLAGS}')
    lab, ok = A.newlabel('FW'), A.newlabel('FWok')
    A.label(lab, keep=True)
    guard(A)
    A(f'buffer_load_dwordx2 {v(vt + 2, 2)}, {v(vt)}, {SRD}, s38 offen sc1')
    A('s_waitcnt vmcnt(0)')
    A(f'v_cmp_ne_u64 vcc, s[96:97], {v(vt + 2, 2)}')
    A(f's_cbranch_vccz {ok}')
    A(f's_sleep {sleep}')
    A(f's_branch {lab}')
    A.label(ok, keep=True)


def flag_wait_multi(A, firsts, vt, sleep=4):
    A(f'v_and_b32 {v(vt)}, 63, v0')
    A(f'v_lshlrev_b32 {v(vt)}, 3, {v(vt)}')
    lab, ok = A.newlabel('FM'), A.newlabel('FMok')
    A.label(lab, keep=True)
    guard(A)
    for i, f in enumerate(firsts):
        A(f's_mov_b32 s38, {L.FLAGS + 8 * f}')
        A(f'buffer_load_dwordx2 {v(vt + 2 + 2 * i, 2)}, {v(vt)}, {SRD}, s38 offen sc1')
    A('s_waitcnt vmcnt(0)')
    A('s_mov_b64 s[40:41], 0')
    for i in range(len(firsts)):
        A(f'v_cmp_ne_u64 vcc, s[96:97], {v(vt + 2 + 2 * i, 2)}')
        A('s_or_b64 s[40:41], s[40:41], vcc')
    A(f's_cbranch_scc0 {ok}')
    A(f's_sleep {sleep}')
    A(f's_branch {lab}')
    A.label(ok, keep=True)


def fill_share(A, base, kb_per_wave, widx_sreg, vt, vlin):
    for r in range(4):
        A(f'v_mov_b32 {v(vt + r)}, -1')
    A(f's_mul_i32 s38, {widx_sreg}, {kb_per_wave * 1024}')
    A(f's_add_u32 s38, s38, {base}')
    for k in range(kb_per_wave):
        if k and k % 4 == 0:
            A('s_add_u32 s38, s38, 4096')
        A(f'buffer_store_dwordx4 {v(vt, 4)}, {v(vlin)}, {SRD}, s38 offen offset:{(k & 3) * 1024} sc1')


def start_gate(A, cfg, vt):
    if not cfg.get('fused'):
        A('s_mov_b32 s12, 0')
        return
    flag_wait_multi(A, [L.F_Y0, L.F_LN, L.F_LN + 64, L.F_LN + 128, L.F_LN + 192], vt)
    lab, ok = A.newlabel('SG'), A.newlabel('SGok')
    A(f'v_mov_b32 {v(vt)}, 0')
    A.label(lab, keep=True)
    guard(A)
    A(f'global_load_dword {v(vt + 2)}, {v(vt)}, s[4:5] offset:8 sc1')
    A('s_waitcnt vmcnt(0)')
    A(f'v_readfirstlane_b32 s12, {v(vt + 2)}')
    A('s_and_b32 s38, s12, 63')
    A('s_cmp_ge_u32 s38, 32')
    A(f's_cbranch_scc1 {ok}')
    A('s_sleep 8')
    A(f's_branch {lab}')
    A.label(ok, keep=True)
    A('s_bfe_u32 s38, s12, 0x90006')
    A('s_mul_i32 s38, s38, s38')
    A('s_lshr_b32 s12, s12, 15')
    A('s_lshl_b32 s12, s12, 5')
    A('s_cmp_lg_u32 s12, s38')
    A('s_cselect_b32 s12, 1, 0')


def mid_gate(A, cfg, vt):
    if not cfg.get('fused'):
        return
    for step, ranges in ((5, ((32, 32),)), (13, ((64, 64),)), (29, ((128, 64), (192, 64)))):
        skip = A.newlabel('MG')
        A(f's_cmp_lg_u32 s15, {step}')
        A(f's_cbranch_scc1 {skip}')
        for f, n in ranges:
            flag_wait(A, f, n, vt)
        A.label(skip, keep=True)


def dual_store(A, text):
    slow, done = A.newlabel('DS'), A.newlabel('DSd')
    A('s_cmp_lg_u32 s12, 0')
    A(f's_cbranch_scc1 {slow}')
    A(text)
    A.label(done, keep=True)
    A.deferred.append((slow, text + ' sc1', done))


def flush_deferred(A):
    for slow, text, done in A.deferred:
        A.label(slow)
        A.raw('    ' + text)
        A.raw(f'    s_branch {done}')
    A.deferred = []


def align(A, cfg, key, default=0):
    n = cfg.get(key, default)
    if n < 0:
        return
    A.raw('    .p2align 6')
    for _ in range(n // 4):
        A.raw('    s_nop 0')


def lane_fields(A, vl):
    A(f'v_and_b32 {v(vl)}, 63, v0')


def emit_koffs(A):
    A('s_lshl_b32 s23, s13, 1')
    for k in range(7):
        A(f's_add_u32 s{16 + k}, s23, {k}')
        A(f's_cmp_ge_u32 s{16 + k}, 7')
        A(f's_cselect_b32 s24, 7, 0')
        A(f's_sub_u32 s{16 + k}, s{16 + k}, s24')
        A(f's_lshl_b32 s{16 + k}, s{16 + k}, 10')


def warm_vm(A, n, vw, cfg):
    if cfg.get('nowarm'):
        A(f's_waitcnt vmcnt({n})')
        return
    lab = A.newlabel('W')
    A.label(lab, keep=True)
    A(f'v_mov_b32 {v(vw)}, {v(vw)}')
    A(f's_getreg_b32 s38, hwreg(HW_REG_IB_STS, 0, 4)')
    A(f's_cmp_gt_u32 s38, {n}')
    A(f'v_mov_b32 {v(vw)}, {v(vw)}')
    A(f's_cbranch_scc1 {lab}')
    A(f's_waitcnt vmcnt({n})')


def keepalive(A, vw, n, cfg):
    if cfg.get('nowarm'):
        return
    for _ in range(n):
        A(f'v_mov_b32 {v(vw)}, {v(vw)}')


def warm_mfma(A, base, cfg):
    if cfg.get('nowarm'):
        return
    A(f'v_mfma_f32_32x32x16_bf16 {v(base, 16)}, {v(base + 16, 4)}, {v(base + 16, 4)}, {v(base, 16)}')


def check_regs(A, tmp, regs, autowait=True):
    E = A.auto if autowait else A
    E(f'v_max3_u32 {v(tmp)}, {v(regs[0])}, {v(regs[1])}, {v(regs[2])}')
    i = 3
    while i + 1 < len(regs):
        E(f'v_max3_u32 {v(tmp)}, {v(tmp)}, {v(regs[i])}, {v(regs[i + 1])}')
        i += 2
    if i < len(regs):
        E(f'v_max_u32 {v(tmp)}, {v(tmp)}, {v(regs[i])}')
    A(f'v_cmp_eq_u32 vcc, -1, {v(tmp)}')


def sparse_idx(A, vIDX, vL, t2, t3):
    A(f'v_and_b32 {v(t2)}, 8, {v(vL)}')
    A(f'v_cmp_ne_u32 vcc, 0, {v(t2)}')
    A(f'v_mov_b32 {v(t2)}, 0x4444')
    A(f'v_mov_b32 {v(t3)}, 0xeeee')
    A(f'v_cndmask_b32 {v(vIDX)}, {v(t2)}, {v(t3)}, vcc')


def emit_A(A, cfg):
    W5 = 0x0000
    MIMG = 0xE000
    TIMG = 0x10000
    SIMG = 0x14800
    QS = 144
    vL, vIDX, vMA, vMKa, vMKb, vMK3, vW5, vXK, vXK3, vTW, vTW6, vTR, vTR3, vSW, vSR, vPS, vPF = range(1, 18)
    vM = lambda k: 18 + k
    vSW2 = 25
    vT0 = 26
    M = lambda k: 32 + 4 * k
    ACC = lambda n: 60 + 4 * n
    WS5 = lambda b: 88 + 8 * b
    XK = lambda q, t: 112 + 8 * q + 4 * t
    XK3 = lambda t: 136 + 2 * t
    PSET = lambda r: 140 + 8 * r
    MK = lambda q: 140 + 4 * q
    TB = lambda q: (ACC(2 * q) if q < 3 else ACC(6) + 2)
    SACC = lambda t: 156 + 4 * t
    vDUM = 168
    LT = 1
    PORD = [1, 2, 0]
    regtiles = [0, 2, 3, 4, 5, 6]

    def W(n, k):
        i = regtiles.index(n) * 7 + k
        return a(8 * i, 8) if i < 32 else v(176 + 8 * (i - 32), 8)

    def Whalf(n, k, eh):
        i = regtiles.index(n) * 7 + k
        return a(8 * i + 4 * eh, 4) if i < 32 else v(176 + 8 * (i - 32) + 4 * eh, 4)

    t0, t1, t2, t3 = vT0, vT0 + 1, vT0 + 2, vT0 + 3
    A.pipe_model = bool(cfg.get('pipe', 1))
    tl(A, cfg, 's14', 0, 30, 0x18000)
    lane_fields(A, vL)
    emit_koffs(A)
    A(f'v_and_b32 {v(t0)}, 15, {v(vL)}')
    A(f'v_lshrrev_b32 {v(t1)}, 4, {v(vL)}')
    sparse_idx(A, vIDX, vL, t2, t3)
    A(f'v_lshlrev_b32 {v(t2)}, 9, {v(t1)}')
    A(f'v_lshl_add_u32 {v(vPF)}, {v(t0)}, 4, {v(t2)}')
    if cfg.get('fused'):
        A('s_lshl_b32 s23, s14, 3')
        A('s_lshr_b32 s24, s13, 1')
        A('s_lshl_b32 s24, s24, 2')
        A('s_add_u32 s23, s23, s24')
        A(f's_add_u32 s23, s23, {L.F_AB}')
        flag_wait(A, 's23', 4, 32, sleep=2)
    A(f's_mul_i32 s25, s14, {14 * 28672}')
    A(f's_add_u32 s25, s25, {L.WF + L.NB_A * 28672}')
    A(f's_mul_i32 s26, s13, 7')
    A(f's_mul_i32 s28, s13, 14336')
    cnt = 0
    for n in range(7):
        A(f's_add_u32 s23, s26, {n}')
        A(f's_lshr_b32 s24, s23, 1')
        A(f's_mul_i32 s24, s24, 28672')
        A(f's_and_b32 s23, s23, 1')
        A(f's_lshl_b32 s23, s23, 8')
        A(f's_add_u32 s27, s25, s24')
        A(f's_add_u32 s27, s27, s23')
        for k in range(7):
            A(f's_lshl_b32 s23, s{16 + k}, 2')
            A(f's_add_u32 s23, s23, s27')
            for eh in range(2):
                if n == LT:
                    A(f's_add_u32 s24, s28, {W5 + (k * 2 + eh) * 1024}')
                    A(f's_mov_b32 m0, s24')
                    if eh:
                        A(f's_add_u32 s23, s23, 2048')
                    A(f'buffer_load_dwordx4 {v(vPF)}, {SRD}, s23 offen sc1 lds')
                else:
                    A(f'buffer_load_dwordx4 {Whalf(n, k, eh)}, {v(vPF)}, {SRD}, s23 offen offset:{2048 * eh} sc1')
                cnt += 1
                if cnt % 16 == 0:
                    A('s_waitcnt vmcnt(40)')
    A(f'v_lshlrev_b32 {v(vMA)}, 4, {v(vL)}')
    A(f'v_add_u32 {v(vW5)}, s28, {v(vMA)}')
    for k in range(7):
        A(f's_add_u32 s23, s{16 + k}, {MIMG}')
        A(f'v_add_u32 {v(vM(k))}, s23, {v(vMA)}')
    A(f'v_add_u32 {v(vMA)}, {L.MEMA}, {v(vMA)}')
    A(f'v_and_b32 {v(t2)}, 7, {v(vL)}')
    A(f'v_lshlrev_b32 {v(t2)}, 4, {v(t2)}')
    A(f's_mul_i32 s23, s13, {7 * 256}')
    A(f's_add_u32 s23, s23, {MIMG}')
    A(f'v_lshrrev_b32 {v(t3)}, 1, {v(t1)}')
    A(f'v_lshl_add_u32 {v(vMKa)}, {v(t3)}, 8, {v(t2)}')
    A(f'v_and_b32 {v(t3)}, 1, {v(t1)}')
    A(f'v_lshl_add_u32 {v(vMKa)}, {v(t3)}, 3, {v(vMKa)}')
    A(f'v_add_u32 {v(vMKa)}, s23, {v(vMKa)}')
    A(f'v_add_u32 {v(vMKb)}, 1024, {v(vMKa)}')
    A(f'v_lshl_add_u32 {v(vMK3)}, {v(t1)}, 2, {v(t2)}')
    A(f's_add_u32 s23, s23, {6 * 256}')
    A(f'v_add_u32 {v(vMK3)}, s23, {v(vMK3)}')
    A(f'v_and_b32 {v(t2)}, 6, {v(t0)}')
    A(f'v_lshlrev_b32 {v(t2)}, 1, {v(t2)}')
    A(f'v_lshrrev_b32 {v(t3)}, 3, {v(t0)}')
    A(f'v_lshl_add_u32 {v(t2)}, {v(t3)}, 1, {v(t2)}')
    A(f'v_and_b32 {v(t3)}, 1, {v(t0)}')
    A(f'v_add_u32 {v(t2)}, {v(t3)}, {v(t2)}')
    A(f'v_lshlrev_b32 {v(t2)}, 4, {v(t2)}')
    A(f'v_lshl_add_u32 {v(vXK)}, {v(t1)}, 9, {v(t2)}')
    A(f'v_lshrrev_b32 {v(t3)}, 1, {v(t1)}')
    A(f'v_lshl_add_u32 {v(vXK3)}, {v(t3)}, 9, {v(t2)}')
    A(f'v_and_b32 {v(t3)}, 1, {v(t1)}')
    A(f'v_lshl_add_u32 {v(vXK3)}, {v(t3)}, 3, {v(vXK3)}')
    A(f'v_add_u32 {v(vXK3)}, {6 * 1024}, {v(vXK3)}')
    A(f's_lshl_b32 s30, s13, 11')
    A(f's_mul_i32 s23, s13, 4352')
    A(f's_add_u32 s23, s23, {TIMG}')
    def plane(dst, src, tmp):
        A(f'v_lshlrev_b32 {v(dst)}, 10, {v(src)}')
        A(f'v_and_b32 {v(tmp)}, 1, {v(src)}')
        A(f'v_lshl_add_u32 {v(dst)}, {v(tmp)}, 5, {v(dst)}')
        A(f'v_lshrrev_b32 {v(tmp)}, 1, {v(src)}')
        A(f'v_lshl_add_u32 {v(dst)}, {v(tmp)}, 7, {v(dst)}')
    plane(t2, t1, t3)
    A(f'v_lshl_add_u32 {v(vTW)}, {v(t0)}, 3, {v(t2)}')
    A(f'v_add_u32 {v(vTW)}, s23, {v(vTW)}')
    A(f'v_and_b32 {v(vTR)}, 3, {v(vL)}')
    plane(t2, vTR, t3)
    A(f'v_bfe_u32 {v(t3)}, {v(vL)}, 2, 2')
    A(f'v_lshl_add_u32 {v(t2)}, {v(t3)}, 3, {v(t2)}')
    A(f'v_lshl_add_u32 {v(vTR)}, {v(t1)}, 6, {v(t2)}')
    A(f'v_add_u32 {v(vTR)}, s23, {v(vTR)}')
    A(f'v_lshl_add_u32 {v(vTR3)}, {v(t1)}, 5, {v(t2)}')
    A(f'v_add_u32 {v(vTR3)}, {96 * 8}, {v(vTR3)}')
    A(f'v_add_u32 {v(vTR3)}, s23, {v(vTR3)}')
    A(f's_add_u32 s23, s30, {SIMG}')
    A(f'v_lshrrev_b32 {v(t3)}, 3, {v(t0)}')
    A(f'v_lshl_add_u32 {v(t2)}, {v(t3)}, 2, {v(t1)}')
    A(f'v_mul_u32_u24 {v(t2)}, {QS}, {v(t2)}')
    A(f'v_and_b32 {v(vSW2)}, 7, {v(t0)}')
    A(f'v_lshl_add_u32 {v(vSW)}, {v(vSW2)}, 4, {v(t2)}')
    A(f'v_add_u32 {v(vSW)}, s23, {v(vSW)}')
    A(f'v_lshlrev_b32 {v(vSW2)}, 4, {v(vSW2)}')
    A(f'v_lshl_add_u32 {v(vSW2)}, {v(t3)}, 3, {v(vSW2)}')
    A(f'v_add_u32 {v(t2)}, 8, {v(t1)}')
    A(f'v_mul_u32_u24 {v(t2)}, {QS}, {v(t2)}')
    A(f'v_add3_u32 {v(vSW2)}, {v(vSW2)}, {v(t2)}, s23')
    A('s_mov_b32 s36, 0xff00ff00')
    A('s_mov_b32 s37, 0xff00ff00')
    A(f'v_mov_b32 {v(t3)}, 12')
    A(f'v_cmp_gt_u32 vcc, 10, {v(t0)}')
    A(f'v_cndmask_b32 {v(t2)}, {v(t3)}, {v(t0)}, vcc')
    A(f'v_mul_u32_u24 {v(t2)}, {QS}, {v(t2)}')
    A(f's_lshl_b32 s23, s13, 2')
    A(f'v_add_u32 {v(t3)}, s23, {v(t1)}')
    A(f'v_and_b32 {v(t3)}, 7, {v(t3)}')
    A(f'v_lshl_add_u32 {v(vSR)}, {v(t3)}, 4, {v(t2)}')
    A(f'v_add_u32 {v(vSR)}, {SIMG}, {v(vSR)}')
    A(f'v_lshrrev_b32 {v(t2)}, 1, {v(t0)}')
    A(f'v_lshlrev_b32 {v(t2)}, 7, {v(t2)}')
    A(f'v_lshl_add_u32 {v(t2)}, {v(t3)}, 4, {v(t2)}')
    A(f'v_and_b32 {v(t3)}, 1, {v(t0)}')
    A(f'v_lshl_add_u32 {v(t2)}, {v(t3)}, 3, {v(t2)}')
    A(f'v_mov_b32 {v(t3)}, 0x40000000')
    A(f'v_cndmask_b32 {v(vPS)}, {v(t3)}, {v(t2)}, vcc')
    A(f'v_mov_b32 {v(t2)}, 0xf149f2ca')
    A(f'v_and_b32 {v(t3)}, 31, {v(vL)}')
    A(f'v_lshlrev_b32 {v(t3)}, 2, {v(t3)}')
    A(f's_add_u32 s23, s30, {SIMG + 12 * QS}')
    A(f'v_add_u32 {v(t3)}, s23, {v(t3)}')
    A(f'ds_write_b32 {v(t3)}, {v(t2)}')
    A('s_waitcnt vmcnt(0)')
    A(f'v_lshlrev_b32 {v(vPF)}, 7, {v(vL)}')
    A(f's_mul_i32 s24, s14, 640')
    A(f's_add_u32 s24, s24, {L.PBUF}')
    A(f's_mul_i32 s25, s13, 7168')
    A(f's_add_u32 s25, s25, {L.XF}')
    NT = cfg.get('ntouch', 2)
    A(f's_mul_i32 s26, s14, {NT}')
    A(f's_add_u32 s26, s26, s13')
    A(f's_min_u32 s26, s26, 55')
    A(f's_lshl_b32 s26, s26, 13')
    A(f's_add_u32 s26, s26, {L.YF + cfg.get("pfdist", 2) * 16 * 28672}')
    A(f's_cmp_ge_u32 s13, {NT}')
    A(f's_cselect_b32 s23, 0x40000000, 0')
    A(f'v_add_u32 {v(vPF)}, s23, {v(vPF)}')
    A(f's_mov_b32 s15, 0')
    if cfg.get('stamps'):
        A(f's_lshl_b32 s32, s14, 2')
        A(f's_add_u32 s32, s32, s13')
        A(f's_lshl_b32 s32, s32, 12')
        A(f's_add_u32 s32, s32, {L.STAMP}')

    def xload():
        for q in range(3):
            if q == 2:
                A(f's_add_u32 s23, s25, 4096')
            for tt in range(2):
                if q < 2:
                    A(f'buffer_load_dwordx4 {v(XK(q, tt), 4)}, {v(vXK)}, {SRD}, s25 offen offset:{q * 2048 + tt * 256} sc1')
                else:
                    A(f'buffer_load_dwordx4 {v(XK(q, tt), 4)}, {v(vXK)}, {SRD}, s23 offen offset:{tt * 256} sc1')
        for tt in range(2):
            A(f'buffer_load_dwordx2 {v(XK3(tt), 2)}, {v(vXK3)}, {SRD}, s25 offen offset:{tt * 256} sc1')
        A(f's_add_u32 s25, s25, 28672')

    A('s_waitcnt vmcnt(0) lgkmcnt(0)')
    tl(A, cfg, 's14', 1, vT0 + 4, 0x18000)
    dbgmax(A, cfg, 6, vT0 + 4)
    start_gate(A, cfg, M(0))
    tl(A, cfg, 's14', 2, vT0 + 4, 0x18000)
    dbgmax(A, cfg, 8, vT0 + 4)
    xload()
    A('s_barrier')

    top = A.newlabel('A_top')
    poll = A.newlabel('A_poll')
    var1 = A.newlabel('A_var1')
    common = A.newlabel('A_common')
    nxt = A.newlabel('A_next')
    A.label(top)
    A.forget()
    A('s_nop 7')
    for r in range(12):
        A(f'v_mov_b32 {v(SACC(0) + r)}, 0')
    for r in range(28):
        A(f'v_mov_b32 {v(ACC(0) + r)}, 0')

    def w5read(k):
        for eh in range(2):
            A(f'ds_read_b128 {v(WS5(k % 3) + 4 * eh, 4)}, {v(vW5)} offset:{(k * 2 + eh) * 1024}')
    for k in range(3):
        w5read(k)
    A('s_waitcnt vmcnt(0) lgkmcnt(0)')
    if cfg.get('asleep', 0):
        A(f's_sleep {cfg["asleep"]}')

    def pissue(r):
        for k in range(2):
            A(f'buffer_load_dwordx4 {v(PSET(r) + 4 * k, 4)}, {v(vMA)}, {SRD}, s{16 + k} offen sc1')
    var0 = A.newlabel('A_var0')

    def quick(r):
        keepalive(A, vDUM + 1, cfg.get('kap', 0), cfg)
        check_regs(A, t0, [PSET(r) + i for i in range(8)])
    pissue(0)
    keepalive(A, vDUM + 1, cfg.get('pgapA', 20), {})
    align(A, cfg, 'alAp')
    A.label(poll, keep=True)
    guard(A)
    pissue(1)
    quick(0)
    A(f's_cbranch_vccz {var0}')
    pissue(0)
    quick(1)
    A(f's_cbranch_vccnz {poll}')

    E6 = cfg.get('early6', 2)
    BPOS = cfg.get('bpos', 3)
    tiles01 = [1, 0, 2, 3, 4, 5] + ([6] if E6 else [])

    def mf(n, k, mreg):
        wreg = v(WS5(k % 3), 8) if n == LT else W(n, k)
        return f'v_smfmac_f32_16x16x64_bf16 {v(ACC(n), 4)}, {v(mreg, 4)}, {wreg}, {v(vIDX)}'

    def variant(r):
        A.vm = [set(('v', PSET(1 - r) + i) for i in range(4)), set(('v', PSET(1 - r) + 4 + i) for i in range(4))]
        A.lg = []
        A.smem_out = []
        stamp(A, cfg, 0)
        seq = [(n, k) for k in range(2) for n in tiles01]
        rd = [k for k in range(2, 7)] + ([] if E6 else [0, 1])
        Q = PSET(r)
        full = []
        w5q = []
        for i, (n, k) in enumerate(seq):
            A(mf(n, k, PSET(r) + 4 * k))
            if i < 2:
                A(f'ds_write_b128 {v(vM(i))}, {v(PSET(r) + 4 * i, 4)}')
            if full:
                A(full.pop(0))
            if i == BPOS - 1:
                stamp(A, cfg, 5)
                A('s_waitcnt lgkmcnt(0)')
                A('s_barrier')
                stamp(A, cfg, 6)
            if n == LT:
                w5q += [(k + 3, 0), (k + 3, 1)]
            if i >= BPOS - 1:
                if rd:
                    kk = rd.pop(0)
                    A(f'ds_read_b128 {v(M(kk), 4)}, {v(vM(kk))}')
                elif w5q:
                    kk, eh = w5q.pop(0)
                    A(f'ds_read_b128 {v(WS5(kk % 3) + 4 * eh, 4)}, {v(vW5)} offset:{(kk * 2 + eh) * 1024}')
        assert not rd
        for kk, eh in w5q:
            A(f'ds_read_b128 {v(WS5(kk % 3) + 4 * eh, 4)}, {v(vW5)} offset:{(kk * 2 + eh) * 1024}')

    A.label(var1)
    variant(1)
    A(f's_branch {common}')
    align(A, cfg, 'alA0')
    A.label(var0)
    variant(0)
    A.label(common, keep=True)
    A.vm = [set(('v', PSET(0) + i) for i in range(16))]

    seq = []
    for n in (2, 3, 4, 5, 0, 1, 6):
        for k in range(E6 if n == 6 else 2, 7):
            seq.append((n, k))
    for k, pos in ((2, 0), (3, 5)):
        seq.remove((LT, k))
        seq.insert(pos, (LT, k))
    NS = len(seq)
    memq = []
    memq.append((0, f'buffer_load_dword {v(vDUM)}, {v(vPF)}, {SRD}, s26 offen'))
    for i, (n, k) in enumerate(seq):
        if n == LT and k + 3 < 7:
            for eh in range(2):
                memq.append((i, f'ds_read_b128 {v(WS5((k + 3) % 3) + 4 * eh, 4)}, {v(vW5)} offset:{((k + 3) * 2 + eh) * 1024}'))
    mkstart = cfg.get('mkpos', 3)
    memq.append((mkstart, 's_waitcnt vmcnt(1)'))
    for q in range(3):
        ad = v(vMKa) if q < 2 else v(vMKb)
        o = 128 * q if q < 2 else 0
        memq.append((mkstart, f'ds_read2_b32 {v(MK(q), 2)}, {ad} offset0:{o} offset1:{o + 32}'))
        memq.append((mkstart, f'ds_read2_b32 {v(MK(q) + 2, 2)}, {ad} offset0:{o + 1} offset1:{o + 33}'))
    memq.append((mkstart, f'ds_read2_b32 {v(MK(3), 2)}, {v(vMK3)} offset0:0 offset1:32'))
    memq.sort(key=lambda x: x[0])
    done = {}
    for i, (n, k) in enumerate(seq):
        done[n] = i
    post = []

    def tpost(n):
        C = ACC(n)
        ops = [f'v_cvt_pk_bf16_f32 {v(C)}, {v(C)}, {v(C + 1)}', f'v_cvt_pk_bf16_f32 {v(C + 1)}, {v(C + 2)}, {v(C + 3)}',
               f'ds_write_b64 {v(vTW)}, {v(C, 2)} offset:{128 * n}']
        if n == 6:
            ops += [f'ds_read_b64_tr_b16 {v(TB(3), 2)}, {v(vTR3)}']
        elif n & 1:
            p = n >> 1
            ops += [f'ds_read_b64_tr_b16 {v(TB(p), 2)}, {v(vTR)} offset:{256 * p}',
                    f'ds_read_b64_tr_b16 {v(TB(p) + 2, 2)}, {v(vTR)} offset:{256 * p + 32}']
        return ops
    for n in (2, 3, 4, 5, 0, 1):
        post.append((done[n] + cfg.get('pdelay', 2), tpost(n)))
    smf = []
    for p in PORD:
        for t in range(3):
            key = v(XK(p, t), 4) if t < 2 else v(MK(p), 4)
            smf.append(f'v_mfma_f32_16x16x32_bf16 {v(SACC(t), 4)}, {key}, {v(TB(p), 4)}, {v(SACC(t), 4)}')
    NEARLY = cfg.get('searly', 2)
    queue = []
    A.mfma_states = cfg.get('mfstates', 1)
    for i, (n, k) in enumerate(seq):
        if i in (0, 1, 10, 20, 30):
            stamp(A, cfg, 7 + (0, 1, 10, 20, 30).index(i))
        if i == NS - 3:
            for _ in range(NEARLY):
                A.auto(smf.pop(0))
        A.auto(mf(n, k, M(k)))
        for st, ops in post:
            if st == i:
                queue += ops
        nm = 0
        if queue and not queue[0].startswith('v_'):
            A(queue.pop(0))
            nm = 1
        while memq and memq[0][0] <= i and nm < 1:
            o = memq.pop(0)[1]
            A(o)
            if not o.startswith('s_'):
                nm += 1
        if queue and queue[0].startswith('v_') and A.pad_needed(queue[0]) <= cfg.get('maxpad', 0):
            A(queue.pop(0))
    assert not memq
    tailops = queue
    stamp(A, cfg, 1)
    for o in tailops:
        A(o)
    A.auto(smf.pop(0))
    A.auto(smf.pop(0))
    for o in tpost(6):
        A(o)
    stamp(A, cfg, 13)
    for m_ in smf:
        A.auto(m_)
    for t in range(3):
        key = v(XK3(t), 2) if t < 2 else v(MK(3), 2)
        A.auto(f'v_mfma_f32_16x16x16_bf16 {v(SACC(t), 4)}, {key}, {v(TB(3), 2)}, {v(SACC(t), 4)}')
    stamp(A, cfg, 12)
    for r in range(4):
        A(f'v_add_f32_dpp {v(SACC(0) + r)}, {v(SACC(0) + r)}, {v(SACC(0) + r)} row_ror:8 row_mask:0xf bank_mask:0x3')
    for r in range(4):
        A(f'v_add_f32_dpp {v(SACC(0) + r)}, {v(SACC(1) + r)}, {v(SACC(1) + r)} row_ror:8 row_mask:0xf bank_mask:0xc')
    A(f'ds_write_b128 {v(vSW)}, {v(SACC(0), 4)}')
    for r in range(2):
        A(f'v_add_f32_dpp {v(SACC(2) + r)}, {v(SACC(2) + r)}, {v(SACC(2) + r)} row_ror:8 row_mask:0xf bank_mask:0x3')
    for r in range(2):
        A(f'v_add_f32_dpp {v(SACC(2) + r)}, {v(SACC(2) + 2 + r)}, {v(SACC(2) + 2 + r)} row_ror:8 row_mask:0xf bank_mask:0xc')
    A(f'ds_write_b64 {v(vSW2)}, {v(SACC(2), 2)}')
    A('s_cmp_ge_u32 s13, 2')
    keepalive(A, vDUM + 1, cfg.get('ka1', 8), cfg)
    warm_mfma(A, M(0), cfg)
    A('s_waitcnt lgkmcnt(0)')
    A('s_barrier')
    stamp(A, cfg, 2)
    A(f's_cbranch_scc1 {nxt}')
    R = lambda w: ACC(0) + 4 * w
    for w in range(4):
        A(f'ds_read_b128 {v(R(w), 4)}, {v(vSR)} offset:{w * 2048}')
        keepalive(A, vDUM + 1, 1, cfg)
    keepalive(A, vDUM + 1, cfg.get('ka2', 8), cfg)
    s0 = R(0)
    ml, m, ll, f, e0, cm2 = R(4), R(4) + 2, R(5), R(5) + 2, R(2), R(6)
    A(f'v_mov_b32 {v(cm2)}, -2')
    A.auto(f'v_pk_add_f32 {v(R(0), 2)}, {v(R(0), 2)}, {v(R(1), 2)}')
    A(f'v_pk_add_f32 {v(R(0) + 2, 2)}, {v(R(0) + 2, 2)}, {v(R(1) + 2, 2)}')
    A.auto(f'v_pk_add_f32 {v(R(2), 2)}, {v(R(2), 2)}, {v(R(3), 2)}')
    A(f'v_pk_add_f32 {v(R(2) + 2, 2)}, {v(R(2) + 2, 2)}, {v(R(3) + 2, 2)}')
    A(f'v_pk_add_f32 {v(R(0), 2)}, {v(R(0), 2)}, {v(R(2), 2)}')
    A(f'v_pk_add_f32 {v(R(0) + 2, 2)}, {v(R(0) + 2, 2)}, {v(R(2) + 2, 2)}')
    dpp = 'row_mask:0xf bank_mask:0xf'
    A(f'v_max3_f32 {v(ml)}, {v(s0)}, {v(s0 + 1)}, {v(s0 + 2)}')
    A(f'v_max_f32 {v(ml)}, {v(ml)}, {v(s0 + 3)}')
    A(f'v_sub_f32 {v(e0)}, {v(s0)}, {v(ml)}')
    A(f'v_sub_f32 {v(e0 + 1)}, {v(s0 + 1)}, {v(ml)}')
    A(f'v_max_f32_dpp {v(m)}, {v(ml)}, {v(ml)} row_ror:8 {dpp}')
    A(f'v_sub_f32 {v(e0 + 2)}, {v(s0 + 2)}, {v(ml)}')
    A(f'v_sub_f32 {v(e0 + 3)}, {v(s0 + 3)}, {v(ml)}')
    A(f'v_max_f32_dpp {v(m)}, {v(m)}, {v(m)} row_ror:4 {dpp}')
    A(f'v_exp_f32 {v(e0)}, {v(e0)}')
    A(f'v_exp_f32 {v(e0 + 1)}, {v(e0 + 1)}')
    A(f'v_max_f32_dpp {v(m)}, {v(m)}, {v(m)} row_ror:2 {dpp}')
    A(f'v_exp_f32 {v(e0 + 2)}, {v(e0 + 2)}')
    A(f'v_exp_f32 {v(e0 + 3)}, {v(e0 + 3)}')
    A(f'v_max_f32_dpp {v(m)}, {v(m)}, {v(m)} row_ror:1 {dpp}')
    A(f'v_pk_add_f32 {v(ll, 2)}, {v(e0, 2)}, {v(e0 + 2, 2)}')
    A(f'v_sub_f32 {v(f)}, {v(ml)}, {v(m)}')
    A(f'v_exp_f32 {v(f)}, {v(f)}')
    A(f'v_add_f32 {v(ll)}, {v(ll)}, {v(ll + 1)}')
    A(f'v_mul_f32 {v(ll)}, {v(ll)}, {v(f)}')
    A(f'v_mul_f32 {v(e0)}, {v(e0)}, {v(f)}')
    A(f'v_mul_f32 {v(e0 + 1)}, {v(e0 + 1)}, {v(f)}')
    A(f'v_add_f32_dpp {v(ll)}, {v(ll)}, {v(ll)} row_ror:8 {dpp}')
    A(f'v_mul_f32 {v(e0 + 2)}, {v(e0 + 2)}, {v(f)}')
    A(f'v_mul_f32 {v(e0 + 3)}, {v(e0 + 3)}, {v(f)}')
    A(f'v_add_f32_dpp {v(ll)}, {v(ll)}, {v(ll)} row_ror:4 {dpp}')
    A(f'v_add_f32_dpp {v(ll)}, {v(ll)}, {v(ll)} row_ror:2 {dpp}')
    A(f'v_add_f32_dpp {v(ll)}, {v(ll)}, {v(ll)} row_ror:1 {dpp}')
    A(f'v_rcp_f32 {v(ll)}, {v(ll)}')
    for i in range(4):
        A(f'v_mul_f32 {v(e0 + i)}, {v(e0 + i)}, {v(ll)}')
    A(f'v_cvt_pk_bf16_f32 {v(s0)}, {v(e0)}, {v(e0 + 1)}')
    A(f'v_cvt_pk_bf16_f32 {v(s0 + 1)}, {v(e0 + 2)}, {v(e0 + 3)}')
    A(f'v_min_u32 {v(s0)}, {v(s0)}, {v(cm2)}')
    A(f'v_min_u32 {v(s0 + 1)}, {v(s0 + 1)}, {v(cm2)}')
    dual_store(A, f'buffer_store_dwordx2 {v(s0, 2)}, {v(vPS)}, {SRD}, s24 offen')
    A.label(nxt, keep=True)
    stamp(A, cfg, 3)
    rstamp(A, cfg, 4)
    if not cfg.get('nohold'):
        A('s_barrier')
    if cfg.get('xdelay', 4):
        A(f's_sleep {cfg.get("xdelay", 4)}')
    xload()
    mid_gate(A, cfg, vT0)
    if cfg.get('tl'):
        skp = A.newlabel('TLS')
        A('s_add_u32 s38, s14, s13')
        A('s_cmp_lg_u32 s38, 18')
        A(f's_cbranch_scc1 {skp}')
        tl(A, cfg, 's15', 0, vT0 + 4, 0x10000)
        A('s_memtime s[98:99]')
        A('s_waitcnt lgkmcnt(0)')
        A(f'v_mov_b32 {v(vT0 + 4)}, s98')
        A(f'buffer_store_dword {v(vT0 + 4)}, {v(vT0 + 5)}, {SRD}, s101 offen offset:4')
        A.label(skp, keep=True)
    stamp_flush(A, cfg, 14, 32, vT0 + 4)
    A(f'v_add_u32 {v(vMA)}, 8192, {v(vMA)}')
    A(f's_add_u32 s24, s24, 16384')
    A(f's_add_u32 s26, s26, {16 * 28672}')
    A(f's_add_u32 s15, s15, 1')
    if cfg.get('dbg'):
        for stp, wd in ((8, 9), (32, 10)):
            sk = A.newlabel('DB')
            A(f's_cmp_lg_u32 s15, {stp}')
            A(f's_cbranch_scc1 {sk}')
            dbgmax(A, cfg, wd, vT0 + 4)
            A.label(sk, keep=True)
    A(f's_cmp_lt_u32 s15, {NSTEP}')
    A(f's_cbranch_scc1 {top}')
    dbgmax(A, cfg, 11, vT0 + 4)
    A('s_endpgm')
    flush_deferred(A)


def emit_B(A, cfg):
    WL = 0x0000
    RIMG = 0x20000
    MIMG = 0x23000
    vL, vIDX, vMA, vWL, vYX, vP, vP2, vRW, vRR, vSA, vSK, vYM, vPF = range(1, 14)
    vT0 = 14
    M = lambda k: 20 + 4 * k
    YACC = lambda hh, t: 48 + 4 * (hh * 2 + t)
    YX = lambda k, t: 80 + 8 * (k * 2 + t)
    YB = lambda t: 112 + 4 * t
    M2 = 120
    YBN = lambda t: 180 + 4 * t
    OACC = lambda t: 128 + 4 * t
    ST = lambda b: 136 + 8 * b
    P = lambda r, k: 20 + 12 * r + 4 * k
    vM = lambda k: 168 + k
    vDUM = 176

    def W(ht, k):
        i = ht * 5 + k
        return a(8 * i, 8) if i < 32 else v(192 + 8 * (i - 32), 8)

    def Whalf(ht, k, eh):
        i = ht * 5 + k
        return a(8 * i + 4 * eh, 4) if i < 32 else v(192 + 8 * (i - 32) + 4 * eh, 4)

    t0, t1, t2, t3 = vT0, vT0 + 1, vT0 + 2, vT0 + 3
    lane_fields(A, vL)
    emit_koffs(A)
    A(f'v_and_b32 {v(t0)}, 15, {v(vL)}')
    A(f'v_lshrrev_b32 {v(t1)}, 4, {v(vL)}')
    sparse_idx(A, vIDX, vL, t2, t3)
    A(f'v_lshlrev_b32 {v(t2)}, 9, {v(t1)}')
    A(f'v_lshl_add_u32 {v(vYX)}, {v(t0)}, 4, {v(t2)}')
    if cfg.get('fused'):
        A('s_lshl_b32 s23, s13, 5')
        A(f's_add_u32 s23, s23, {L.F_AB + 128}')
        flag_wait(A, 's23', 32, 20, sleep=2)
    A(f's_mul_i32 s25, s13, 56')
    A(f's_add_u32 s25, s25, s14')
    A(f's_mul_i32 s25, s25, 28672')
    A(f's_add_u32 s25, s25, {L.WF + L.NB_B * 28672}')
    A(f's_lshl_b32 s28, s13, 15')
    cnt = 0
    for hh in range(4):
        for k in range(7):
            A(f's_lshl_b32 s23, s{16 + k}, 2')
            A(f's_add_u32 s23, s23, s25')
            A(f's_add_u32 s23, s23, {hh * 14 * 28672}')
            for eh in range(2):
                for t in range(2):
                    ht = hh * 2 + t
                    if k >= 5:
                        A(f's_add_u32 s24, s28, {WL + ((ht * 2 + (k - 5)) * 2 + eh) * 1024}')
                        A(f's_mov_b32 m0, s24')
                        A(f's_add_u32 s24, s23, {2048 * eh + 256 * t}')
                        A(f'buffer_load_dwordx4 {v(vYX)}, {SRD}, s24 offen sc1 lds')
                    else:
                        A(f'buffer_load_dwordx4 {Whalf(ht, k, eh)}, {v(vYX)}, {SRD}, s23 offen offset:{2048 * eh + 256 * t} sc1')
                    cnt += 1
                    if cnt % 16 == 0:
                        A('s_waitcnt vmcnt(40)')
    A(f'v_lshlrev_b32 {v(vMA)}, 4, {v(vL)}')
    A(f'v_add_u32 {v(vWL)}, s28, {v(vMA)}')
    A(f'v_add_u32 {v(vYM)}, 0, {v(vMA)}')
    for k in range(7):
        A(f's_add_u32 s23, s{16 + k}, {MIMG}')
        A(f'v_add_u32 {v(vM(k))}, s23, {v(vMA)}')
    A(f'v_add_u32 {v(vMA)}, {L.MEMA}, {v(vMA)}')
    A(f'v_lshrrev_b32 {v(t2)}, 1, {v(t1)}')
    A(f'v_mul_u32_u24 {v(t2)}, 640, {v(t2)}')
    A(f'v_and_b32 {v(t3)}, 1, {v(t1)}')
    A(f'v_lshl_add_u32 {v(t2)}, {v(t3)}, 8, {v(t2)}')
    A(f'v_lshl_add_u32 {v(vP)}, {v(t0)}, 4, {v(t2)}')
    A(f'v_lshrrev_b32 {v(t2)}, 1, {v(t1)}')
    A(f'v_bfe_u32 {v(t3)}, {v(vL)}, 3, 1')
    A(f'v_lshl_add_u32 {v(t2)}, {v(t3)}, 1, {v(t2)}')
    A(f'v_mul_u32_u24 {v(t2)}, 640, {v(t2)}')
    A(f'v_and_b32 {v(t3)}, 7, {v(vL)}')
    A(f'v_lshl_add_u32 {v(t2)}, {v(t3)}, 4, {v(t2)}')
    A(f'v_and_b32 {v(t3)}, 1, {v(t1)}')
    A(f'v_lshl_add_u32 {v(t2)}, {v(t3)}, 3, {v(t2)}')
    A(f'v_add_u32 {v(vP2)}, 512, {v(t2)}')
    A(f's_mul_i32 s23, s13, 3072')
    A(f's_add_u32 s23, s23, {RIMG}')
    A(f'v_mul_u32_u24 {v(t2)}, {4 * 192}, {v(t1)}')
    A(f'v_lshl_add_u32 {v(vRW)}, {v(t0)}, 3, {v(t2)}')
    A(f'v_add_u32 {v(vRW)}, s23, {v(vRW)}')
    A(f'v_lshrrev_b32 {v(t3)}, 3, {v(vL)}')
    A(f'v_and_b32 {v(t2)}, 3, {v(vL)}')
    A(f'v_lshlrev_b32 {v(vSA)}, 2, {v(t2)}')
    A(f'v_lshlrev_b32 {v(t2)}, 1, {v(t2)}')
    A(f'v_bfe_u32 {v(t0)}, {v(vL)}, 2, 1')
    A(f'v_lshl_add_u32 {v(vSA)}, {v(t0)}, 7, {v(vSA)}')
    A(f'v_lshl_add_u32 {v(vSA)}, {v(t3)}, 4, {v(vSA)}')
    A(f'v_add_u32 {v(t2)}, {v(t2)}, {v(t0)}')
    A(f's_and_b32 s23, s13, 1')
    A(f's_lshl_b32 s23, s23, 3')
    A(f'v_add_u32 {v(t0)}, s23, {v(t2)}')
    A(f'v_mul_u32_u24 {v(t2)}, 192, {v(t3)}')
    A(f'v_lshl_add_u32 {v(vRR)}, {v(t0)}, 3, {v(t2)}')
    A(f'v_add_u32 {v(vRR)}, {RIMG}, {v(vRR)}')
    A(f's_lshl_b32 s23, s14, 9')
    A(f's_and_b32 s24, s13, 1')
    A(f's_lshl_b32 s24, s24, 8')
    A(f's_add_u32 s24, s24, s23')
    A(f'v_add_u32 {v(vSA)}, s24, {v(vSA)}')
    A(f'v_lshlrev_b32 {v(vSK)}, 4, {v(t3)}')
    A(f'v_lshrrev_b32 {v(t2)}, 2, {v(t0)}')
    A(f'v_lshl_add_u32 {v(vSK)}, {v(t2)}, 7, {v(vSK)}')
    A(f'v_and_b32 {v(t2)}, 3, {v(t0)}')
    A(f'v_lshl_add_u32 {v(vSK)}, {v(t2)}, 2, {v(vSK)}')
    A(f'v_add_u32 {v(vSK)}, s23, {v(vSK)}')
    A(f's_cmp_ge_u32 s13, 2')
    A(f's_cselect_b32 s23, 0x40000000, 0')
    A(f'v_add_u32 {v(vSK)}, s23, {v(vSK)}')
    A(f's_mul_i32 s24, s13, {4 * 640}')
    A(f's_add_u32 s24, s24, {L.PBUF}')
    A(f's_mul_i32 s25, s13, 56')
    A(f's_add_u32 s25, s25, s14')
    A(f's_lshl_b32 s25, s25, 11')
    A(f's_add_u32 s25, s25, {L.YF}')
    A(f's_mov_b32 s26, {L.MEMA + 8192}')
    A(f's_mov_b32 s29, {L.MEMX}')
    A(f's_lshl_b32 s31, s14, 2')
    A(f's_add_u32 s31, s31, s13')
    A(f's_lshl_b32 s31, s31, 11')
    A(f's_add_u32 s31, s31, {L.YM}')
    NTA = cfg.get('ntouch', 2)
    NT = cfg.get('ntouchB', 0)
    A(f's_mul_i32 s34, s14, {NT}')
    A(f's_add_u32 s34, s34, {16 * NTA}')
    A(f's_add_u32 s34, s34, s13')
    A(f's_min_u32 s34, s34, 55')
    A(f's_lshl_b32 s34, s34, 13')
    A(f's_add_u32 s34, s34, {L.YF + cfg.get("pfdist", 2) * 16 * 28672}')
    A(f'v_lshlrev_b32 {v(vPF)}, 7, {v(vL)}')
    A(f's_cmp_ge_u32 s13, {NT}')
    A(f's_cselect_b32 s23, 0x40000000, 0')
    A(f'v_add_u32 {v(vPF)}, s23, {v(vPF)}')
    A(f's_mov_b32 s15, 0')
    A(f's_mov_b32 s35, 0x40000000')
    if cfg.get('stamps'):
        A(f's_add_u32 s32, s14, 16')
        A(f's_lshl_b32 s32, s32, 2')
        A(f's_add_u32 s32, s32, s13')
        A(f's_lshl_b32 s32, s32, 12')
        A(f's_add_u32 s32, s32, {L.STAMP}')
    vNON, vF0 = 178, 180
    A(f'v_mov_b32 {v(vNON)}, s96')
    A(f'v_mov_b32 {v(vNON + 1)}, s97')
    A(f'v_mov_b32 {v(t2)}, 0x40000000')
    A(f'v_cmp_eq_u32 vcc, 0, {v(vL)}')
    A(f'v_cndmask_b32 {v(vF0)}, {v(t2)}, {v(vL)}, vcc')
    A('s_lshl_b32 s27, s14, 2')
    A('s_add_u32 s27, s27, s13')
    A('s_lshl_b32 s27, s27, 3')
    A(f's_add_u32 s27, s27, {L.FLAGS + 8 * L.F_YM - 2 * 56 * 8}')
    ymflag = lambda sreg: f'buffer_store_dwordx2 {v(vNON, 2)}, {v(vF0)}, {SRD}, {sreg} offen sc1'
    vOUT = vT0 + 5
    A(f'v_mov_b32 {v(vOUT)}, 0')
    for r in range(8):
        A(f'v_mov_b32 {v(YB(0) + r)}, 0')

    def yx_list():
        out = []
        for k in range(2):
            for eh in range(2):
                for t in range(2):
                    out.append([f's_add_u32 s23, s25, {(2 * k + eh) * 14 * 2048}',
                                f'buffer_load_dwordx4 {v(YX(k, t) + 4 * eh, 4)}, {v(vYX)}, {SRD}, s23 offen offset:{256 * t} sc1'])
        return out

    def ym_list(sreg):
        return [[f'buffer_store_dwordx4 {v(YB(t), 4)}, {v(vYM)}, {SRD}, {sreg} offen offset:{t * 1024} sc1'] for t in range(2)]

    A('s_waitcnt vmcnt(0)')
    tl(A, cfg, 's14', 1, vT0 + 2, 0x18400)
    dbgmax(A, cfg, 7, vT0 + 2)
    start_gate(A, cfg, M(0))
    tl(A, cfg, 's14', 2, vT0 + 2, 0x18400)
    top = A.newlabel('B_top')
    mpoll = A.newlabel('B_mpoll')
    ppoll = A.newlabel('B_ppoll')
    nxt = A.newlabel('B_next')
    fin = A.newlabel('B_fin')
    A.label(top)
    A.forget()
    A(f's_waitcnt vmcnt({15 if cfg.get("stamps") else 1})')
    zero = [f'v_mov_b32 {v(YACC(0, 0) + r)}, 0' for r in range(32)] + [f'v_mov_b32 {v(OACC(0) + r)}, 0' for r in range(8)]
    if cfg.get('yxearly'):
        for x in yx_list():
            for y in x:
                A(y)
    ZP = cfg.get('zpre', 12)
    for x in zero[:ZP]:
        A(x)
    ldsq = [(hh * 2 + t, k) for t in range(2) for pr in range(2) for k in (5, 6) for hh in (2 * pr, 2 * pr + 1)]

    def wlread(j):
        ht, k = ldsq[j]
        for eh in range(2):
            A(f'ds_read_b128 {v(ST(j & 3) + 4 * eh, 4)}, {v(vWL)} offset:{((ht * 2 + (k - 5)) * 2 + eh) * 1024}')
    for j in range(4):
        wlread(j)
    if cfg.get('bsleep', 0):
        A(f's_sleep {cfg["bsleep"]}')
    MS = lambda r: (M(0) if r == 0 else M2)
    A(f's_add_u32 s36, s31, s35')

    def missue(r):
        for k in range(2):
            A(f'buffer_load_dwordx4 {v(MS(r) + 4 * k, 4)}, {v(vMA)}, {SRD}, s{16 + k} offen sc1')
    mv0, mv1, mcommon = A.newlabel('B_mv0'), A.newlabel('B_mv1'), A.newlabel('B_mc')
    missue(0)
    for x in zero[ZP:]:
        A(x)
    A.label(mpoll, keep=True)
    guard(A)
    missue(1)
    check_regs(A, t0, [MS(0) + i for i in range(8)])
    A(f's_cbranch_vccz {mv0}')
    missue(0)
    check_regs(A, t0, [MS(1) + i for i in range(8)])
    A(f's_cbranch_vccnz {mpoll}')
    lgsnap = [set(x) for x in A.lg]

    def allmem():
        ld_ = yx_list() if not (cfg.get('noyx') or cfg.get('yxearly')) else []
        st_ = ym_list('s36') if not cfg.get('noym') else []
        return st_ + ld_ if cfg.get('stfirst') else ld_ + st_
    left = []

    def mvariant(r):
        A.vm = [set(('v', MS(1 - r) + i) for i in range(8))]
        A.lg = [set(x) for x in lgsnap]
        A.smem_out = []
        stamp(A, cfg, 0)
        vmem = allmem()
        for i, (ht, k) in enumerate([(ht, k) for k in range(2) for ht in range(8)]):
            A(f'v_smfmac_f32_16x16x64_bf16 {v(YACC(ht >> 1, ht & 1), 4)}, {v(MS(r) + 4 * k, 4)}, {W(ht, k)}, {v(vIDX)}')
            if i < 2:
                A(f'ds_write_b128 {v(vM(i))}, {v(MS(r) + 4 * i, 4)}')
            if i == 4:
                A('s_waitcnt lgkmcnt(0)')
                A('s_barrier')
            if 4 <= i < 9:
                A(f'ds_read_b128 {v(M(i - 2), 4)}, {v(vM(i - 2))}')
            if i >= 5 and (i - 5) % cfg.get('vgap', 2) == 0 and vmem:
                for x in vmem.pop(0):
                    A(x)
            if i == 4:
                stamp(A, cfg, 8)
        left[:] = vmem
    A.label(mv1, keep=True)
    mvariant(1)
    A(f's_branch {mcommon}')
    align(A, cfg, 'alBm')
    A.label(mv0)
    mvariant(0)
    A.label(mcommon, keep=True)
    A.vm = [set(('v', M(0) + i) for i in range(8)) | set(('v', M2 + i) for i in range(8)) | set(('v', YX(0, 0) + i) for i in range(32))]
    mem = list(left)
    if NT:
        mem += [[f'buffer_load_dword {v(vDUM)}, {v(vPF)}, {SRD}, s34 offen']]
    seq = []
    groups = [(pr, t) for t in range(2) for pr in range(2)]
    for pr, t in groups:
        ha, hb = (2 * pr) * 2 + t, (2 * pr + 1) * 2 + t
        seq += [(ha, 5), (ha, 2), (hb, 2), (hb, 5), (ha, 3), (ha, 6), (hb, 3), (ha, 4), (hb, 6), (hb, 4)]
    assert [x for x in seq if x[1] >= 5] == ldsq
    lj = 0
    vq = []
    dq = []
    GAP = cfg.get('bmemgap', 2)

    def gpost(pr, t):
        Ya, Yb = YACC(2 * pr, t), YACC(2 * pr + 1, t)
        ops = [f'v_permlane32_swap_b32 {v(Ya + r)}, {v(Yb + r)}' for r in range(4)]
        ops += [f'v_add_f32 {v(Ya + r)}, {v(Ya + r)}, {v(Yb + r)}' for r in range(4)]
        ops += [f'v_cvt_pk_bf16_f32 {v(YB(t) + 2 * p + pr)}, {v(Ya + 2 * p)}, {v(Ya + 2 * p + 1)}' for p in range(2)]
        return ops
    sani = [f'v_min_u32 {v(YB(0) + r)}, -2, {v(YB(0) + r)}' for r in range(8)]
    for i, (ht, k) in enumerate(seq):
        if i % 10 == 0:
            stamp(A, cfg, 9 + i // 10)
        if k >= 5:
            A.auto(f'v_smfmac_f32_16x16x64_bf16 {v(YACC(ht >> 1, ht & 1), 4)}, {v(M(k), 4)}, {v(ST(lj & 3), 8)}, {v(vIDX)}')
            if lj + 4 < 16:
                h2, k2 = ldsq[lj + 4]
                for eh in range(2):
                    dq.append(f'ds_read_b128 {v(ST(lj & 3) + 4 * eh, 4)}, {v(vWL)} offset:{((h2 * 2 + (k2 - 5)) * 2 + eh) * 1024}')
            lj += 1
        else:
            A.auto(f'v_smfmac_f32_16x16x64_bf16 {v(YACC(ht >> 1, ht & 1), 4)}, {v(M(k), 4)}, {W(ht, k)}, {v(vIDX)}')
        if i % 10 == 9:
            vq += gpost(*groups[i // 10])
        if dq:
            A(dq.pop(0))
        if i >= cfg.get('yxstart', 0) and i % GAP == 0 and mem:
            for x in mem.pop(0):
                A(x)
        if vq and A.pad_needed(vq[0]) == 0:
            A(vq.pop(0))
    assert not mem and not dq
    stamp(A, cfg, 13)
    for o in vq:
        A(o)
    A(f's_cmp_eq_u32 s15, 0')
    A(f's_cselect_b32 s23, 0, {14 * 4 * 2048}')
    A(f's_add_u32 s31, s31, s23')
    A(f's_mov_b32 s35, 0')
    A(f's_add_u32 s27, s27, {56 * 8}')
    A(f's_add_u32 s25, s25, {16 * 28672}')
    A(f's_add_u32 s34, s34, {16 * 28672}')
    stamp(A, cfg, 1)
    A(f's_cmp_eq_u32 s15, {NSTEP}')
    A(f's_cbranch_scc1 {fin}')
    A('s_waitcnt vmcnt(0)')
    mid_gate(A, cfg, vT0)
    stamp(A, cfg, 5)
    if cfg.get('psleep', 0):
        A(f's_sleep {cfg["psleep"]}')

    def pissue(r):
        A(f'buffer_load_dwordx4 {v(P(r, 0), 4)}, {v(vP)}, {SRD}, s24 offen sc1')
        A(f'buffer_load_dwordx4 {v(P(r, 1), 4)}, {v(vP)}, {SRD}, s24 offen offset:1280 sc1')
        A(f'buffer_load_dwordx2 {v(P(r, 2), 2)}, {v(vP2)}, {SRD}, s24 offen sc1')
    var0 = A.newlabel('B_var0')
    var1 = A.newlabel('B_var1')
    common = A.newlabel('B_common')
    redo = A.newlabel('B_redo')

    def quick(r):
        keepalive(A, vDUM + 1, cfg.get('kbp', 0), cfg)
        A('s_waitcnt vmcnt(3)')
        A(f'v_max3_u32 {v(t0)}, {v(P(r, 0) + 3)}, {v(P(r, 1) + 3)}, {v(P(r, 2) + 1)}')
        A(f'v_cmp_eq_u32 vcc, -1, {v(t0)}')
    A.label(redo, keep=True)
    pissue(0)
    keepalive(A, vDUM + 1, cfg.get('pgapB', 20), {})
    align(A, cfg, 'alBp')
    A.label(ppoll, keep=True)
    guard(A)
    pissue(1)
    quick(0)
    A(f's_cbranch_vccz {var0}')
    pissue(0)
    quick(1)
    A(f's_cbranch_vccnz {ppoll}')
    bad = A.newlabel('B_bad')

    def variant(r):
        A.vm = [set(('v', P(1 - r, 0) + i) for i in range(12))]
        A.lg = []
        A.smem_out = []
        stamp(A, cfg, 2)
        Q = P(r, 0)
        full = [f'v_max3_u32 {v(t0)}, {v(Q)}, {v(Q + 1)}, {v(Q + 2)}', f'v_max3_u32 {v(t0)}, {v(t0)}, {v(Q + 4)}, {v(Q + 5)}',
                f'v_max3_u32 {v(t0)}, {v(t0)}, {v(Q + 6)}, {v(Q + 8)}',
                f'v_cmp_eq_u32 vcc, -1, {v(t0)}']
        for k in range(3):
            for t in range(2):
                if k < 2:
                    A(f'v_smfmac_f32_16x16x64_bf16 {v(OACC(t), 4)}, {v(P(r, k), 4)}, {v(YX(k, t), 8)}, {v(vIDX)}')
                else:
                    A(f'v_smfmac_f32_16x16x32_bf16 {v(OACC(t), 4)}, {v(P(r, k), 2)}, {v(YB(t), 4)}, {v(vIDX)}')
        for x in full[:2]:
            A(x)
        for rr in range(4):
            A(f'ds_write2_b32 {v(vRW)}, {v(OACC(0) + rr)}, {v(OACC(1) + rr)} offset0:{rr * 48} offset1:{rr * 48 + 1}')
        for x in full[2:]:
            A(x)
        A(f's_cbranch_vccnz {bad}')
    A.label(var1)
    variant(1)
    A(f's_branch {common}')
    A.label(bad)
    A('s_waitcnt vmcnt(0) lgkmcnt(0)')
    A('s_nop 7')
    for r in range(8):
        A(f'v_mov_b32 {v(OACC(0) + r)}, 0')
    A(f's_branch {redo}')
    align(A, cfg, 'alB0')
    A.label(var0)
    variant(0)
    A.label(common, keep=True)
    A.vm = [set(('v', P(0, 0) + i) for i in range(24))]
    A('s_cmp_ge_u32 s13, 2')
    keepalive(A, vDUM + 1, cfg.get('kb1', 0), cfg)
    stamp(A, cfg, 6)
    warm_mfma(A, ST(0), cfg)
    A('s_waitcnt lgkmcnt(0)')
    A('s_barrier')
    stamp(A, cfg, 7)
    A(f's_cbranch_scc1 {nxt}')
    R = lambda w: YACC(0, 0) + 4 * w
    for w in range(4):
        A(f'ds_read2st64_b64 {v(R(w), 4)}, {v(vRR)} offset0:{6 * w} offset1:{6 * w + 3}')
    keepalive(A, vDUM + 1, cfg.get('kb2', 3), cfg)
    A(f'v_mov_b32 {v(t1)}, -2')
    A.auto(f'v_pk_add_f32 {v(R(0), 2)}, {v(R(0), 2)}, {v(R(0) + 2, 2)}')
    A.auto(f'v_pk_add_f32 {v(R(1), 2)}, {v(R(1), 2)}, {v(R(1) + 2, 2)}')
    A(f'v_pk_add_f32 {v(R(0), 2)}, {v(R(0), 2)}, {v(R(1), 2)}')
    A.auto(f'v_pk_add_f32 {v(R(2), 2)}, {v(R(2), 2)}, {v(R(2) + 2, 2)}')
    A(f'v_pk_add_f32 {v(R(0), 2)}, {v(R(0), 2)}, {v(R(2), 2)}')
    A.auto(f'v_pk_add_f32 {v(R(3), 2)}, {v(R(3), 2)}, {v(R(3) + 2, 2)}')
    A(f'v_pk_add_f32 {v(R(0), 2)}, {v(R(0), 2)}, {v(R(3), 2)}')
    A(f'v_cvt_pk_bf16_f32 {v(vOUT)}, {v(R(0))}, {v(R(0) + 1)}')
    A(f'v_min_u32 {v(vOUT)}, {v(vOUT)}, {v(t1)}')
    A.label(nxt, keep=True)
    A(f's_cselect_b32 s23, 0x40000000, s26')
    dual_store(A, f'buffer_store_dword {v(vOUT)}, {v(vSA)}, {SRD}, s23 offen')
    stamp(A, cfg, 3)
    rstamp(A, cfg, 4)
    if not cfg.get('nohold'):
        A('s_barrier')
    stamp_flush(A, cfg, 14, 32, vT0 + 2)
    A(f'v_add_u32 {v(vMA)}, 8192, {v(vMA)}')
    A(f's_add_u32 s24, s24, 16384')
    A(f's_add_u32 s26, s26, 8192')
    A(f's_add_u32 s15, s15, 1')
    A(f's_branch {top}')
    A.label(fin)
    for x in ym_list('s31'):
        A(x[0])
    A('s_waitcnt vmcnt(0)')
    A(ymflag('s27'))
    A(f's_add_u32 s27, s27, {56 * 8}')
    A(ymflag('s27'))
    A('s_endpgm')
    flush_deferred(A)


def emit_C(A, cfg):
    NT = cfg.get('ntouch', 2)
    D = cfg.get('cdist', 3)
    first = min(16 * NT + 14 * cfg.get('ntouchB', 0), 56)
    nrounds = (56 - first + 7) // 8
    vL, vPF, vPL, vD, vLW, vLR, vST, t0, t1 = 1, 2, 3, 4, 5, 6, 7, 8, 9
    Q = 12
    A.pipe_model = False
    lane_fields(A, vL)
    A(f'v_lshlrev_b32 {v(vPF)}, 7, {v(vL)}')
    A('s_lshl_b32 s16, s14, 2')
    A('s_add_u32 s16, s16, s13')
    A('s_cmp_eq_u32 s16, 7')
    A('s_cselect_b32 s19, 0, s16')
    A('s_lshl_b32 s19, s19, 10')
    A(f'v_lshlrev_b32 {v(vST)}, 4, {v(vL)}')
    A('s_lshl_b32 s23, s13, 10')
    A(f'v_add_u32 {v(vLW)}, s23, {v(vST)}')
    A(f'v_lshrrev_b32 {v(t0)}, 4, {v(vL)}')
    A(f'v_lshlrev_b32 {v(vLR)}, 8, {v(t0)}')
    A(f'v_and_b32 {v(t0)}, 7, {v(vL)}')
    A(f'v_lshl_add_u32 {v(vLR)}, {v(t0)}, 4, {v(vLR)}')
    A(f'v_bfe_u32 {v(t0)}, {v(vL)}, 3, 1')
    A(f'v_lshl_add_u32 {v(vLR)}, {v(t0)}, 3, {v(vLR)}')
    A(f'v_add_u32 {v(vLR)}, s23, {v(vLR)}')
    A(f'v_add_u32 {v(vST)}, s19, {v(vST)}')
    A(f'v_add_u32 {v(vPL)}, {L.MEMA + 8192}, {v(vST)}')
    A('s_cmp_eq_u32 s16, 7')
    A(f's_cselect_b32 s19, 0x40000000, 0')
    A(f's_add_u32 s19, s19, {L.MEMX + 8192}')
    A('s_lshl_b32 s17, s16, 13')
    A(f's_add_u32 s17, s17, {L.XF}')
    A('s_mov_b32 s18, 28672')
    A('s_cmp_ge_u32 s16, 4')
    A(f's_cselect_b32 s17, {L.MEMA + 8192}, s17')
    A(f's_cselect_b32 s18, 8192, s18')
    A('s_cmp_eq_u32 s16, 6')
    A(f's_cselect_b32 s17, {L.PBUF}, s17')
    A('s_cmp_eq_u32 s16, 7')
    A(f's_cselect_b32 s17, {L.PBUF + 8192}, s17')
    A('s_cmp_ge_u32 s16, 6')
    A(f's_cselect_b32 s18, 16384, s18')
    for r in range(nrounds):
        A(f's_add_u32 s{24 + r}, s16, {first + 8 * r}')
        A(f's_min_u32 s{24 + r}, s{24 + r}, 55')
        A(f's_lshl_b32 s{24 + r}, s{24 + r}, 13')
        A(f's_add_u32 s{24 + r}, s{24 + r}, {L.YF}')
    start_gate(A, cfg, Q)
    for sg in range(cfg.get('pfdist', 2)):
        for r in range(7):
            A(f's_add_u32 s23, s16, {8 * r}')
            A(f's_lshl_b32 s23, s23, 13')
            A(f's_add_u32 s23, s23, {L.YF + sg * 16 * 28672}')
            A(f'buffer_load_dword {v(vD)}, {v(vPF)}, {SRD}, s23 offen')

    def touches():
        A(f'buffer_load_dword {v(vD)}, {v(vPF)}, {SRD}, s17 offen')
        A('s_add_u32 s17, s17, s18')
        for r in range(nrounds):
            A(f'buffer_load_dword {v(vD)}, {v(vPF)}, {SRD}, s{24 + r} offen')
            A(f's_add_u32 s{24 + r}, s{24 + r}, {16 * 28672}')
    for _ in range(D):
        touches()
    A('s_mov_b32 s15, 1')
    top = A.newlabel('C_top')
    skip = A.newlabel('C_skip')
    A.label(top)
    A.forget()
    guard(A)
    A(f's_sleep 1')
    A(f'buffer_load_dwordx4 {v(Q, 4)}, {v(vPL)}, {SRD}, 0 offen sc1')
    A('s_waitcnt vmcnt(0)')
    check_regs(A, t0, [Q + i for i in range(4)])
    A(f's_cbranch_vccnz {top}')
    A(f'ds_write_b128 {v(vLW)}, {v(Q, 4)}')
    A(f'ds_read2_b32 {v(Q + 4, 2)}, {v(vLR)} offset0:0 offset1:32')
    A(f'ds_read2_b32 {v(Q + 6, 2)}, {v(vLR)} offset0:1 offset1:33')
    A('s_waitcnt lgkmcnt(0)')
    A(f'buffer_store_dwordx4 {v(Q + 4, 4)}, {v(vST)}, {SRD}, s19 offen sc1')
    A(f'v_add_u32 {v(vPL)}, 8192, {v(vPL)}')
    A('s_add_u32 s19, s19, 8192')
    mid_gate(A, cfg, Q)
    A(f's_cmp_gt_u32 s15, {64 - D}')
    A(f's_cbranch_scc1 {skip}')
    touches()
    A.label(skip)
    A('s_add_u32 s15, s15, 1')
    A(f's_cmp_lt_u32 s15, 64')
    A(f's_cbranch_scc1 {top}')
    A('s_endpgm')
```

```python
import sys
from asmdsl import Asm, v, a, s
import layout as L
import gemm as G
import items as I
import prep
import prep2
import chain
from build_multi import KD, srd

SRD = 's[8:11]'
LDSW = 0x24f00
NAME = 'parallel_sum__memory_aug_recurrent_mem_tr__glu_gated_bilinear__prompt_kernel'


def flag_store(A, idx_sreg):
    A(f's_lshl_b32 s38, {idx_sreg}, 3')
    A(f's_add_u32 s38, s38, {L.FLAGS}')
    A('v_mov_b32 v24, s96')
    A('v_mov_b32 v25, s97')
    A(f'buffer_store_dwordx2 v[24:25], v31, {SRD}, s38 offen sc1')


def emit_main(A, cfg):
    XC = cfg.get('xcc', 0)
    tl = chain.tl
    A('s_cmp_ge_u32 s2, 256')
    A('s_cbranch_scc1 L_bail')
    A('s_load_dwordx4 s[4:7], s[0:1], 96')
    A('s_load_dwordx16 s[80:95], s[0:1], 0')
    A('s_load_dwordx8 s[16:23], s[0:1], 64')
    A('s_memrealtime s[98:99]')
    A('v_lshrrev_b32 v1, 6, v0')
    A('v_readfirstlane_b32 s13, v1')
    A('s_mov_b32 s33, 0')
    A('s_getreg_b32 s12, hwreg(HW_REG_XCC_ID)')
    A('s_and_b32 s12, s12, 15')
    A(f'v_mov_b32 v28, {LDSW}')
    A('v_mov_b32 v31, 0')
    A('v_mov_b32 v29, 32')
    A('s_add_u32 s75, s12, 6')
    A('s_mul_hi_u32 s38, s75, 0x24924925')
    A('s_mul_i32 s38, s38, 7')
    A('s_sub_u32 s77, s75, s38')
    A('s_mov_b32 s78, 7')
    G.emit_common_regs(A)
    A('s_waitcnt lgkmcnt(0)')
    srd(A, 8, 6, 7, L.WS_BYTES)
    srd(A, 56, 80, 81, 2048 * 896)
    srd(A, 60, 22, 23, 2048 * 896)
    A('s_mov_b64 s[34:35], s[16:17]')
    A('s_mov_b64 s[36:37], s[18:19]')
    A('s_mov_b64 s[64:65], s[20:21]')
    A('s_mov_b64 s[66:67], s[82:83]')
    tl(A, cfg, 's2', 0, 24, 0x1c000)
    A('s_cmp_lg_u32 s13, 0')
    A('s_cbranch_scc1 E_1')
    A('s_mov_b64 exec, 1')
    A('s_or_b32 s98, s98, 1')
    A('v_mov_b32 v240, s98')
    A('v_mov_b32 v241, s99')
    A('v_mov_b32 v242, 0')
    A('v_mov_b32 v243, 0')
    A('global_atomic_cmpswap_x2 v[244:245], v31, v[240:243], s[4:5] offset:16 sc0')
    A('v_mov_b32 v246, 64')
    A(f's_cmp_eq_u32 s12, {XC}')
    A('s_cbranch_scc0 E_0')
    A('v_mov_b32 v246, 1')
    A('global_atomic_add v246, v31, v246, s[4:5] sc0')
    A.label('E_0')
    A('s_mov_b64 exec, -1')
    A.label('E_1')
    A.forget()
    prep2.ln2_issue(A, 's[56:59]')
    A('s_and_b32 s50, s2, 7')
    A('s_lshl_b32 s50, s50, 2')
    A('s_bfe_u32 s51, s2, 0x20003')
    A('s_add_u32 s50, s50, s51')
    A('s_lshr_b32 s51, s2, 5')
    A('s_lshl_b32 s69, s50, 3')
    A('s_add_u32 s3, s69, s51')
    A('s_and_b32 s53, s50, 15')
    A('s_and_b32 s54, s51, 3')
    A('s_lshr_b32 s55, s51, 2')
    A('s_cmp_ge_u32 s50, 16')
    A('s_cbranch_scc1 E_B')
    srd(A, 68, 84, 85, 448 * 8192)
    srd(A, 72, 86, 87, 448 * 8192)
    prep2.item_ab2(A, 0)
    A('s_branch E_2')
    A.label('E_B')
    A.forget()
    srd(A, 68, 88, 89, 448 * 8192)
    srd(A, 72, 90, 91, 4096 * 896)
    prep2.item_ab2(A, 1)
    A.label('E_2')
    A.forget()
    for r in range(4):
        A(f'v_mov_b32 v{12 + r}, -1')
    A('s_lshl_b32 s50, s2, 2')
    A('s_add_u32 s50, s50, s13')
    A('s_and_b32 s51, s50, 0x2fc')
    A('s_lshl_b32 s50, s50, 11')
    A(f's_add_u32 s50, s50, {L.MEMA}')
    A('s_cmp_eq_u32 s51, 0')
    A('s_cselect_b32 s50, 0x40000000, s50')
    A(f'buffer_store_dwordx4 v[12:15], {v(G.VLIN)}, {SRD}, s50 offen sc1')
    A(f'buffer_store_dwordx4 v[12:15], {v(G.VLIN)}, {SRD}, s50 offen offset:1024 sc1')
    A('s_cmp_ge_u32 s2, 2')
    A('s_cbranch_scc1 E_2b')
    A('s_lshl_b32 s39, s2, 2')
    A('s_add_u32 s39, s39, s13')
    A('s_min_u32 s39, s39, 6')
    srd(A, 68, 66, 67, 8 * 896)
    A('s_nop 1')
    prep.wave_mem0(A, 's[68:71]', ' sc1', 32)
    A.label('E_2b')
    A.forget()
    A('s_mov_b32 s75, s77')
    A('s_mov_b32 s76, s78')
    A('s_waitcnt vmcnt(0)')
    tl(A, cfg, 's2', 1, 24, 0x1c000)
    if cfg.get('tl'):
        A('v_mov_b32 v24, s92')
        A(f'buffer_store_dword v24, v25, {SRD}, s101 offen offset:8')
        A('v_mov_b32 v26, s94')
        A(f'buffer_store_dword v26, v25, {SRD}, s101 offen offset:12')
    A('s_cmp_lg_u32 s13, 0')
    A('s_cbranch_scc1 E_3')
    A('s_mov_b64 exec, 1')
    A('v_cmp_eq_u64 vcc, 0, v[244:245]')
    A('v_cndmask_b32 v244, v244, v240, vcc')
    A('v_cndmask_b32 v245, v245, v241, vcc')
    A('ds_write_b64 v28, v[244:245] offset:8')
    A('ds_write_b32 v28, v246')
    A('s_waitcnt lgkmcnt(0)')
    A('s_mov_b64 exec, -1')
    A.label('E_3')
    A('s_barrier')
    A('ds_read_b64 v[26:27], v28 offset:8')
    A('ds_read_b32 v30, v28')
    A('s_waitcnt lgkmcnt(0)')
    A('v_readfirstlane_b32 s96, v26')
    A('v_readfirstlane_b32 s97, v27')
    A('v_readfirstlane_b32 s14, v30')
    A('s_cmp_lg_u32 s13, 0')
    A('s_cbranch_scc1 E_4')
    A('s_mov_b64 exec, 1')
    A(f's_add_u32 s69, s3, {L.F_AB}')
    flag_store(A, 's69')
    A(f's_add_u32 s69, s2, {L.F_LN}')
    flag_store(A, 's69')
    A('s_mov_b64 exec, -1')
    A.label('E_4')
    A.forget()
    chain.dbgmax(A, cfg, 12, 24)
    A('s_branch CL_got')
    A.label('CLAIM')
    A.forget()
    A('s_cmp_lg_u32 s13, 0')
    A('s_cbranch_scc1 CL_w')
    A('s_mov_b64 exec, 1')
    A('v_mov_b32 v30, 1')
    A('global_atomic_add v30, v31, v30, s[4:5] sc0')
    A('s_waitcnt vmcnt(0)')
    A('ds_write_b32 v28, v30')
    A('s_waitcnt lgkmcnt(0)')
    A('s_mov_b64 exec, -1')
    A.label('CL_w')
    A('s_barrier')
    A('ds_read_b32 v30, v28')
    A('s_waitcnt lgkmcnt(0)')
    A('v_readfirstlane_b32 s14, v30')
    A.label('CL_got')
    A('s_barrier')
    A('v_mov_b32 v29, 32')
    A('s_cmp_ge_u32 s14, 32')
    A('s_cbranch_scc1 W_deq')
    A('s_cmp_lg_u32 s13, 0')
    A('s_cbranch_scc1 CL_r')
    A('s_mov_b64 exec, 1')
    A('s_mul_i32 s38, s12, s12')
    A('s_lshl_b32 s38, s38, 9')
    A('s_add_u32 s38, s38, s12')
    A('s_lshl_b32 s38, s38, 6')
    A('s_add_u32 s38, s38, 1')
    A('v_mov_b32 v30, s38')
    A('global_atomic_add v31, v30, s[4:5] offset:8')
    A('s_mov_b64 exec, -1')
    A.label('CL_r')
    A.forget()
    A('s_cmp_ge_u32 s14, 30')
    A('s_cbranch_scc1 L_roleC')
    A('s_cmp_ge_u32 s14, 16')
    A('s_cbranch_scc1 L_roleB')
    chain.emit_A(A, cfg)
    A.label('L_roleB')
    A.forget()
    A('s_sub_u32 s14, s14, 16')
    chain.emit_B(A, cfg)
    A.label('L_roleC')
    A.forget()
    A('s_sub_u32 s14, s14, 30')
    chain.emit_C(A, cfg)
    A.label('L_bail')
    A('s_endpgm')

    def dequeue():
        A('s_lshl_b32 s38, s75, 2')
        A('v_mov_b32 v26, s38')
        A('v_mov_b32 v30, 1')
        A('global_atomic_add v30, v26, v30, s[4:5] offset:128 sc0')

    A.label('W_deq')
    A.forget()
    A('s_cmp_lg_u32 s13, 0')
    A('s_cbranch_scc1 W_f2')
    A('s_mov_b64 exec, 1')
    dequeue()
    A('s_waitcnt vmcnt(0)')
    A('ds_write_b32 v28, v30')
    A('s_waitcnt lgkmcnt(0)')
    A('s_mov_b64 exec, -1')
    A.label('W_f2')
    A('s_barrier')
    A.label('W_next')
    A.forget()
    A('ds_read_b32 v26, v28')
    A('s_waitcnt lgkmcnt(0)')
    A('v_readfirstlane_b32 s68, v26')
    A('s_cmp_eq_u32 s68, -1')
    A('s_cbranch_scc1 W_claim')
    A('s_cmp_eq_u32 s75, 7')
    A('s_cbranch_scc1 W_late')
    c0 = 0
    phases = ((32, 2, 'W_y0', 0), (32, 7, 'W_y', 1), (16, 7, 'W_pk', 0), (56, 1, 'W_pw', 0), (16, 8, 'W_gu', 1), (16, 8, 'W_t1', 1),
              (64, 1, 'W_g2', 1), (16, 8, 'W_t2', 1))
    for ncol, nrow, lab, adv in phases:
        A(f's_add_u32 s70, s75, {(7 - c0 % 7) % 7}')
        A('s_cmp_ge_u32 s70, 7')
        A('s_cselect_b32 s38, 7, 0')
        A('s_sub_u32 s70, s70, s38')
        full, rem = divmod(ncol, 7)
        A(f's_cmp_lt_u32 s70, {rem}')
        A(f's_cselect_b32 s71, {full + 1}, {full}')
        A(f's_cselect_b32 s72, {-(-65536 // (full + 1))}, 0')
        A(f's_cselect_b32 s38, 0, {-(-65536 // full)}')
        A('s_add_u32 s72, s72, s38')
        A(f's_mul_i32 s38, s71, {nrow}')
        A('s_cmp_lt_u32 s68, s38')
        A(f's_cbranch_scc1 {lab}')
        A('s_sub_u32 s68, s68, s38')
        if adv:
            c0 += ncol
    sizes = []
    for x in range(7):
        c0_, tot = 0, 0
        for ncol, nrow, lab, adv in phases:
            f = (x - c0_) % 7
            tot += len(range(f, ncol, 7)) * nrow
            if adv:
                c0_ += ncol
        sizes.append(tot)
    A('v_and_b32 v8, 7, v0')
    A('v_lshlrev_b32 v8, 2, v8')
    A('global_load_dword v9, v8, s[4:5] offset:128 sc1')
    A('v_mov_b32 v10, 0')
    for x in range(7):
        A(f's_mov_b32 s38, {sizes[x]}')
        A(f'v_writelane_b32 v10, s38, {x}')
    A('s_waitcnt vmcnt(0)')
    A('v_cmp_lt_u32 vcc, v9, v10')
    A('s_and_b32 s38, vcc_lo, 0x7f')
    A('s_or_b32 s38, s38, 0x80')
    A('s_ff1_i32_b32 s38, s38')
    A('v_mov_b32 v9, s38')
    A('s_barrier')
    A('s_cmp_lg_u32 s13, 0')
    A('s_cbranch_scc1 W_x1')
    A('ds_write_b32 v28, v9 offset:4')
    A('s_waitcnt lgkmcnt(0)')
    A.label('W_x1')
    A('s_barrier')
    A('ds_read_b32 v9, v28 offset:4')
    A('s_waitcnt lgkmcnt(0)')
    A('v_readfirstlane_b32 s75, v9')
    A('s_branch W_deq')

    def rbct():
        A('s_mul_i32 s73, s68, s72')
        A('s_lshr_b32 s73, s73, 16')
        A('s_mul_i32 s74, s73, s71')
        A('s_sub_u32 s74, s68, s74')
        A('s_mul_i32 s74, s74, 7')
        A('s_add_u32 s74, s74, s70')

    def fw(base, sreg, shift, n, sleep=4):
        A(f's_lshl_b32 s70, {sreg}, {shift}')
        A(f's_add_u32 s70, s70, {base}')
        chain.flag_wait(A, 's70', n, 8, sleep=sleep)

    A.label('W_y0')
    A.forget()
    rbct()
    A('s_lshl_b32 s39, s73, 5')
    A('s_add_u32 s39, s39, s74')
    A(f's_add_u32 s69, s39, {L.F_Y0}')
    tl(A, cfg, 's69', 0, 24)
    fw(L.F_LN, 's73', 4, 16)
    fw(L.F_AB + 128, 's74', 2, 4)
    I.item_y0(A)
    chain.dbgmax(A, cfg, 14, 24)
    A('s_branch W_end')
    A.label('W_t2')
    A('s_add_u32 s70, s70, 16')
    for lab, kind, sh, fb, add in (('W_t1', 'T', 5, L.F_T, 0), ('W_y', 'Y', 5, L.F_Y, 1), ('W_gu', 'GU', 4, L.F_GU, 0)):
        A.label(lab)
        A.forget()
        rbct()
        if add:
            A(f's_add_u32 s73, s73, {add}')
        A(f's_lshl_b32 s39, s73, {sh}')
        A('s_add_u32 s39, s39, s74')
        A(f's_add_u32 s69, s39, {fb}')
        tl(A, cfg, 's69', 0, 24)
        fw(L.F_LN, 's73', 5, 32)
        if kind == 'GU':
            A('s_mul_i32 s74, s74, 7')
            fw(L.F_PK, 's74', 0, 7)
        else:
            fw(L.F_AB + (128 if kind == 'Y' else 0), 's74', 2, 4)
        I.item_gemm1(A, kind)
        A('s_branch W_end')
    A.label('W_pk')
    A.forget()
    rbct()
    A('s_mul_i32 s74, s74, 7')
    A('s_add_u32 s74, s74, s73')
    A(f's_add_u32 s43, s74, {L.F_PK}')
    A('s_lshl_b32 s39, s74, 2')
    A('s_add_u32 s39, s39, s13')
    A('s_mov_b64 s[46:47], s[74:75]')
    srd(A, 68, 34, 35, 448 * 3584)
    srd(A, 72, 36, 37, 448 * 3584)
    prep.wave_pack(A, 'GU', 7, ' sc1')
    A('s_mov_b64 s[74:75], s[46:47]')
    A('s_mov_b32 s69, s43')
    A('s_barrier')
    A('s_branch W_end')
    A.label('W_pw')
    A.forget()
    rbct()
    A(f's_add_u32 s43, s74, {L.F_PK + 112}')
    A('s_lshl_b32 s39, s74, 2')
    A('s_add_u32 s39, s39, s13')
    srd(A, 68, 64, 65, 1792 * 896)
    prep.wave_pack(A, 'WD', 7, ' sc1', 's[68:71]')
    A('s_mov_b32 s69, s43')
    A('s_barrier')
    A('s_branch W_end')
    A.label('W_g2')
    A.forget()
    rbct()
    A('s_mov_b32 s39, s74')
    A(f's_add_u32 s69, s39, {L.F_G2}')
    tl(A, cfg, 's69', 0, 24)
    chain.flag_wait(A, L.F_PK + 112, 56, 8, sleep=8)
    A('s_lshr_b32 s70, s39, 3')
    A('s_lshl_b32 s70, s70, 4')
    A('s_and_b32 s38, s39, 1')
    A('s_lshl_b32 s38, s38, 3')
    A('s_add_u32 s70, s70, s38')
    A(f's_add_u32 s70, s70, {L.F_GU}')
    chain.flag_wait(A, 's70', 8, 8, sleep=16)
    I.item_gemm2(A)
    chain.dbgmax(A, cfg, 15, 24)
    A('s_branch W_end')
    A.label('W_late')
    A.forget()
    LAG = cfg.get('lag', 5)
    A('s_cmp_eq_u32 s78, 0')
    A('s_cbranch_scc1 W_l2')
    chain.flag_wait_multi(A, [L.F_LN, L.F_LN + 64, L.F_LN + 128, L.F_LN + 192], 8)
    A('s_mov_b32 s78, 0')
    A.label('W_l2')
    A.forget()
    A(f's_cmp_ge_u32 s68, {(64 + LAG) * 11}')
    A('s_cbranch_scc1 L_bail')
    A('s_mul_hi_u32 s71, s68, 0x1745d175')
    A('s_mul_i32 s38, s71, 11')
    A('s_sub_u32 s72, s68, s38')
    A('s_cmp_ge_u32 s72, 4')
    A('s_cbranch_scc1 W_pv')
    A('s_cmp_ge_u32 s71, 64')
    A('s_cbranch_scc1 W_skip')
    A('s_lshl_b32 s39, s71, 2')
    A('s_add_u32 s39, s39, s72')
    A(f's_add_u32 s69, s39, {L.F_P}')
    tl(A, cfg, 's69', 0, 24)
    A('s_lshr_b32 s70, s71, 3')
    A('s_lshl_b32 s70, s70, 5')
    A('s_lshl_b32 s38, s72, 3')
    A('s_add_u32 s70, s70, s38')
    A(f's_add_u32 s70, s70, {L.F_T}')
    chain.flag_wait(A, 's70', 8, 8, sleep=16)
    I.item_punit(A)
    A('s_branch W_end')
    A.label('W_skip')
    A('s_barrier')
    A('s_branch W_deq')
    A.label('W_pv')
    A.forget()
    A(f's_cmp_lt_u32 s71, {LAG}')
    A('s_cbranch_scc1 W_skip')
    A(f's_sub_u32 s71, s71, {LAG}')
    A('s_mul_i32 s39, s71, 7')
    A('s_add_u32 s39, s39, s72')
    A('s_sub_u32 s39, s39, 4')
    A(f's_add_u32 s69, s39, {L.F_PV}')
    tl(A, cfg, 's69', 0, 24)
    A('s_lshr_b32 s70, s71, 3')
    A('s_lshl_b32 s70, s70, 5')
    A('s_lshr_b32 s38, s71, 2')
    A('s_lshl_b32 s38, s38, 5')
    A(f's_add_u32 s38, s38, {L.F_Y0}')
    A('s_cmp_lt_u32 s71, 8')
    A('s_cselect_b32 s70, s38, s70')
    chain.flag_wait(A, 's70', 32, 8, sleep=16)
    A('s_lshr_b32 s70, s71, 2')
    A('s_lshl_b32 s70, s70, 2')
    A(f's_add_u32 s70, s70, {L.F_G2}')
    chain.flag_wait(A, 's70', 4, 8, sleep=16)

    def wait_px(A):
        I.approach(A, 's71', 12, 0)
        A('s_cmp_ge_u32 s71, 62')
        A('s_cbranch_scc1 W_ymf')
        A('s_add_u32 s38, s71, 2')
        A('s_lshl_b32 s38, s38, 13')
        A('s_lshr_b32 s70, s54, 1')
        A('s_lshl_b32 s70, s70, 10')
        A('s_add_u32 s38, s38, s70')
        A(f's_add_u32 s38, s38, {L.MEMX}')
        A('v_mov_b32 v12, 0')
        A.label('W_ymp', keep=True)
        I.guard(A)
        A(f'buffer_load_dword v13, v12, {SRD}, s38 offen sc1')
        A('s_waitcnt vmcnt(0)')
        A('v_cmp_eq_u32 vcc, -1, v13')
        A('s_cbranch_vccz W_ymok')
        A('s_sleep 16')
        A('s_branch W_ymp')
        A.label('W_ymf', keep=True)
        chain.flag_wait(A, 's43', 2, 12, sleep=4)
        A.label('W_ymok', keep=True)
        A('s_lshl_b32 s70, s71, 2')
        A(f's_add_u32 s70, s70, {L.F_P}')
        chain.flag_wait(A, 's70', 4, 12, sleep=2)
    def early_deq(A):
        A('s_cmp_lg_u32 s13, 0')
        A('s_cbranch_scc1 W_ed')
        A('s_mov_b64 exec, 1')
        dequeue()
        A('s_mov_b64 exec, -1')
        A.label('W_ed', keep=True)
    I.item_pvunit(A, wait_px, hook=early_deq)
    A.forget()
    chain.dbgmax(A, cfg, 13, 24)
    tl(A, cfg, 's69', 1, 24)
    A('s_cmp_lg_u32 s13, 0')
    A('s_cbranch_scc1 W_e2')
    A('s_mov_b64 exec, 1')
    A('ds_write_b32 v28, v30')
    A('s_mov_b64 exec, -1')
    A('s_waitcnt lgkmcnt(0)')
    A('s_barrier')
    A('s_branch W_next')
    A.label('W_end')
    A.forget()
    A('s_cmp_lg_u32 s13, 0')
    A('s_cbranch_scc1 W_e1')
    A('v_readfirstlane_b32 s38, v29')
    A('v_mov_b32 v30, -1')
    A('s_cmp_lt_u32 s38, 32')
    A('s_cbranch_scc1 W_e1')
    A('s_mov_b64 exec, 1')
    dequeue()
    A('s_mov_b64 exec, -1')
    A('global_load_dword v29, v31, s[4:5] sc1')
    A.label('W_e1')
    A('s_waitcnt vmcnt(0)')
    tl(A, cfg, 's69', 1, 24)
    A('s_cmp_lg_u32 s13, 0')
    A('s_cbranch_scc1 W_e2')
    A('s_mov_b64 exec, 1')
    A('ds_write_b32 v28, v30')
    A('s_waitcnt lgkmcnt(0)')
    A('s_barrier')
    flag_store(A, 's69')
    A('s_mov_b64 exec, -1')
    A('s_branch W_next')
    A.label('W_e2')
    A('s_barrier')
    A('s_branch W_next')
    A.label('W_claim')
    A('s_barrier')
    A('s_branch CLAIM')


def build(cfg):
    cfg = dict(cfg)
    cfg['fused'] = 1
    I.CFG.update(cfg)
    prep2.CFG.update(cfg)
    A = Asm()
    cfg.setdefault('ntouch', 4)
    if cfg.get('aslist'):
        A.raw(f'; @launch kernel={NAME} grid=(256,1,1) block=(256,1,1) lds=151552')
    else:
        A.raw('; @launch grid=(256,1,1) block=(256,1,1) lds=151552')
    A.raw('.amdgcn_target "amdgcn-amd-amdhsa--gfx950"\n.text')
    A.raw(f'.globl {NAME}\n.p2align 8\n.type {NAME},@function')
    A.label(NAME)
    emit_main(A, cfg)
    A.raw('.section .rodata,"a"')
    A.raw('.p2align 6')
    A.raw(KD.format(name=NAME))
    return A.text()


if __name__ == '__main__':
    cfg = {}
    for kv in sys.argv[2:]:
        k, val = kv.split('=')
        cfg[k] = int(val)
    open(sys.argv[1], 'w').write(build(cfg))
```

```python
import sys
from asmdsl import Asm, v, a, s
import layout as L
import gemm as G
import items as I
import prep
import prep2
import chain
from build_multi import KD, srd

SRD = 's[8:11]'
LDSW = 0x24f00
NAME = 'parallel_sum__memory_aug_recurrent_mem_tr__glu_gated_bilinear__prompt_kernel'


def flag_store(A, idx_sreg):
    A(f's_lshl_b32 s38, {idx_sreg}, 3')
    A(f's_add_u32 s38, s38, {L.FLAGS}')
    A('v_mov_b32 v24, s96')
    A('v_mov_b32 v25, s97')
    A(f'buffer_store_dwordx2 v[24:25], v31, {SRD}, s38 offen sc1')


def emit_main(A, cfg):
    XC = cfg.get('xcc', 0)
    tl = chain.tl
    A('s_cmp_ge_u32 s2, 256')
    A('s_cbranch_scc1 L_bail')
    A('s_load_dwordx4 s[4:7], s[0:1], 96')
    A('s_load_dwordx16 s[80:95], s[0:1], 0')
    A('s_load_dwordx8 s[16:23], s[0:1], 64')
    A('s_memrealtime s[98:99]')
    A('v_lshrrev_b32 v1, 6, v0')
    A('v_readfirstlane_b32 s13, v1')
    A('s_mov_b32 s33, 0')
    A('s_getreg_b32 s12, hwreg(HW_REG_XCC_ID)')
    A('s_and_b32 s12, s12, 15')
    A(f'v_mov_b32 v28, {LDSW}')
    A('v_mov_b32 v31, 0')
    A('v_mov_b32 v29, 32')
    A('s_add_u32 s75, s12, 6')
    A('s_mul_hi_u32 s38, s75, 0x24924925')
    A('s_mul_i32 s38, s38, 7')
    A('s_sub_u32 s77, s75, s38')
    A('s_mov_b32 s78, 7')
    G.emit_common_regs(A)
    if cfg.get('codepf', 1):
        A.raw('    s_getpc_b64 s[24:25]')
        A.raw('CODE_PC:')
        A('s_lshr_b32 s26, s2, 3')
        A('s_lshl_b32 s26, s26, 2')
        A('s_add_u32 s26, s26, s13')
        A.raw('    s_cmp_ge_u32 s26, (CODE_END - CODE_PC) / 8192')
        A('s_cbranch_scc1 E_pf')
        A('s_lshl_b32 s26, s26, 13')
        A('v_lshlrev_b32 v4, 7, v1')
        A('v_add_u32 v4, s26, v4')
        A('global_load_dword v247, v4, s[24:25]')
        A.label('E_pf', keep=True)
        A.vm = []
    A('s_waitcnt lgkmcnt(0)')
    srd(A, 8, 6, 7, L.WS_BYTES)
    srd(A, 56, 80, 81, 2048 * 896)
    srd(A, 60, 22, 23, 2048 * 896)
    A('s_mov_b64 s[34:35], s[16:17]')
    A('s_mov_b64 s[36:37], s[18:19]')
    A('s_mov_b64 s[64:65], s[20:21]')
    A('s_mov_b64 s[66:67], s[82:83]')
    tl(A, cfg, 's2', 0, 24, 0x1c000)
    A('s_cmp_lg_u32 s13, 0')
    A('s_cbranch_scc1 E_1')
    A('s_mov_b64 exec, 1')
    A('s_or_b32 s98, s98, 1')
    A('v_mov_b32 v240, s98')
    A('v_mov_b32 v241, s99')
    A('v_mov_b32 v242, 0')
    A('v_mov_b32 v243, 0')
    A('global_atomic_cmpswap_x2 v[244:245], v31, v[240:243], s[4:5] offset:16 sc0')
    A('v_mov_b32 v246, 64')
    A(f's_cmp_eq_u32 s12, {XC}')
    A('s_cbranch_scc0 E_0')
    A('v_mov_b32 v246, 1')
    A('global_atomic_add v246, v31, v246, s[4:5] sc0')
    A.label('E_0')
    A('s_mov_b64 exec, -1')
    A.label('E_1')
    A.forget()
    prep2.ln2_issue(A, 's[56:59]')
    A('s_and_b32 s50, s2, 7')
    A('s_lshl_b32 s50, s50, 2')
    A('s_bfe_u32 s51, s2, 0x20003')
    A('s_add_u32 s50, s50, s51')
    A('s_lshr_b32 s51, s2, 5')
    A('s_lshl_b32 s69, s50, 3')
    A('s_add_u32 s3, s69, s51')
    A('s_and_b32 s53, s50, 15')
    A('s_and_b32 s54, s51, 3')
    A('s_lshr_b32 s55, s51, 2')
    A('s_cmp_ge_u32 s50, 16')
    A('s_cbranch_scc1 E_B')
    srd(A, 68, 84, 85, 448 * 8192)
    srd(A, 72, 86, 87, 448 * 8192)
    prep2.item_ab2(A, 0)
    A('s_branch E_2')
    A.label('E_B')
    A.forget()
    srd(A, 68, 88, 89, 448 * 8192)
    srd(A, 72, 90, 91, 4096 * 896)
    prep2.item_ab2(A, 1)
    A.label('E_2')
    A.forget()
    for r in range(4):
        A(f'v_mov_b32 v{12 + r}, -1')
    A('s_lshl_b32 s50, s2, 2')
    A('s_add_u32 s50, s50, s13')
    A('s_and_b32 s51, s50, 0x2fc')
    A('s_lshl_b32 s50, s50, 11')
    A(f's_add_u32 s50, s50, {L.MEMA}')
    A('s_cmp_eq_u32 s51, 0')
    A('s_cselect_b32 s50, 0x40000000, s50')
    A(f'buffer_store_dwordx4 v[12:15], {v(G.VLIN)}, {SRD}, s50 offen sc1')
    A(f'buffer_store_dwordx4 v[12:15], {v(G.VLIN)}, {SRD}, s50 offen offset:1024 sc1')
    A('s_cmp_ge_u32 s2, 2')
    A('s_cbranch_scc1 E_2b')
    A('s_lshl_b32 s39, s2, 2')
    A('s_add_u32 s39, s39, s13')
    A('s_min_u32 s39, s39, 6')
    srd(A, 68, 66, 67, 8 * 896)
    A('s_nop 1')
    prep.wave_mem0(A, 's[68:71]', ' sc1', 32)
    A.label('E_2b')
    A.forget()
    A('s_mov_b32 s75, s77')
    A('s_mov_b32 s76, s78')
    A('s_waitcnt vmcnt(0)')
    tl(A, cfg, 's2', 1, 24, 0x1c000)
    if cfg.get('tl'):
        A('v_mov_b32 v24, s92')
        A(f'buffer_store_dword v24, v25, {SRD}, s101 offen offset:8')
        A('v_mov_b32 v26, s94')
        A(f'buffer_store_dword v26, v25, {SRD}, s101 offen offset:12')
    A('s_cmp_lg_u32 s13, 0')
    A('s_cbranch_scc1 E_3')
    A('s_mov_b64 exec, 1')
    A('v_cmp_eq_u64 vcc, 0, v[244:245]')
    A('v_cndmask_b32 v244, v244, v240, vcc')
    A('v_cndmask_b32 v245, v245, v241, vcc')
    A('ds_write_b64 v28, v[244:245] offset:8')
    A('ds_write_b32 v28, v246')
    A('s_waitcnt lgkmcnt(0)')
    A('s_mov_b64 exec, -1')
    A.label('E_3')
    A('s_barrier')
    A('ds_read_b64 v[26:27], v28 offset:8')
    A('ds_read_b32 v30, v28')
    A('s_waitcnt lgkmcnt(0)')
    A('v_readfirstlane_b32 s96, v26')
    A('v_readfirstlane_b32 s97, v27')
    A('v_readfirstlane_b32 s14, v30')
    A('s_cmp_lg_u32 s13, 0')
    A('s_cbranch_scc1 E_4')
    A('s_mov_b64 exec, 1')
    A(f's_add_u32 s69, s3, {L.F_AB}')
    flag_store(A, 's69')
    A(f's_add_u32 s69, s2, {L.F_LN}')
    flag_store(A, 's69')
    A('s_mov_b64 exec, -1')
    A.label('E_4')
    A.forget()
    chain.dbgmax(A, cfg, 12, 24)
    A('s_branch CL_got')
    A.label('CLAIM')
    A.forget()
    A('s_cmp_lg_u32 s13, 0')
    A('s_cbranch_scc1 CL_w')
    A('s_mov_b64 exec, 1')
    A('v_mov_b32 v30, 1')
    A('global_atomic_add v30, v31, v30, s[4:5] sc0')
    A('s_waitcnt vmcnt(0)')
    A('ds_write_b32 v28, v30')
    A('s_waitcnt lgkmcnt(0)')
    A('s_mov_b64 exec, -1')
    A.label('CL_w')
    A('s_barrier')
    A('ds_read_b32 v30, v28')
    A('s_waitcnt lgkmcnt(0)')
    A('v_readfirstlane_b32 s14, v30')
    A.label('CL_got')
    A('s_barrier')
    A('v_mov_b32 v29, 32')
    A('s_cmp_ge_u32 s14, 32')
    A('s_cbranch_scc1 W_deq')
    A('s_cmp_lg_u32 s13, 0')
    A('s_cbranch_scc1 CL_r')
    A('s_mov_b64 exec, 1')
    A('s_mul_i32 s38, s12, s12')
    A('s_lshl_b32 s38, s38, 9')
    A('s_add_u32 s38, s38, s12')
    A('s_lshl_b32 s38, s38, 6')
    A('s_add_u32 s38, s38, 1')
    A('v_mov_b32 v30, s38')
    A('global_atomic_add v31, v30, s[4:5] offset:8')
    A('s_mov_b64 exec, -1')
    A.label('CL_r')
    A.forget()
    A('s_cmp_ge_u32 s14, 30')
    A('s_cbranch_scc1 L_roleC')
    A('s_cmp_ge_u32 s14, 16')
    A('s_cbranch_scc1 L_roleB')
    chain.emit_A(A, cfg)
    A.label('L_roleB')
    A.forget()
    A('s_sub_u32 s14, s14, 16')
    chain.emit_B(A, cfg)
    A.label('L_roleC')
    A.forget()
    A('s_sub_u32 s14, s14, 30')
    chain.emit_C(A, cfg)
    A.label('L_bail')
    A('s_endpgm')

    def dequeue():
        A('s_lshl_b32 s38, s75, 2')
        A('v_mov_b32 v26, s38')
        A('v_mov_b32 v30, 1')
        A('global_atomic_add v30, v26, v30, s[4:5] offset:128 sc0')

    A.label('W_deq')
    A.forget()
    A('s_cmp_lg_u32 s13, 0')
    A('s_cbranch_scc1 W_f2')
    A('s_mov_b64 exec, 1')
    dequeue()
    A('s_waitcnt vmcnt(0)')
    A('ds_write_b32 v28, v30')
    A('s_waitcnt lgkmcnt(0)')
    A('s_mov_b64 exec, -1')
    A.label('W_f2')
    A('s_barrier')
    A.label('W_next')
    A.forget()
    A('ds_read_b32 v26, v28')
    A('s_waitcnt lgkmcnt(0)')
    A('v_readfirstlane_b32 s68, v26')
    A('s_cmp_eq_u32 s68, -1')
    A('s_cbranch_scc1 W_claim')
    A('s_cmp_eq_u32 s75, 7')
    A('s_cbranch_scc1 W_late')
    c0 = 0
    phases = ((32, 2, 'W_y0', 0), (32, 7, 'W_y', 1), (16, 7, 'W_pk', 0), (56, 1, 'W_pw', 0), (16, 8, 'W_gu', 1), (16, 8, 'W_t1', 1),
              (64, 1, 'W_g2', 1), (16, 8, 'W_t2', 1))
    for ncol, nrow, lab, adv in phases:
        A(f's_add_u32 s70, s75, {(7 - c0 % 7) % 7}')
        A('s_cmp_ge_u32 s70, 7')
        A('s_cselect_b32 s38, 7, 0')
        A('s_sub_u32 s70, s70, s38')
        full, rem = divmod(ncol, 7)
        A(f's_cmp_lt_u32 s70, {rem}')
        A(f's_cselect_b32 s71, {full + 1}, {full}')
        A(f's_cselect_b32 s72, {-(-65536 // (full + 1))}, 0')
        A(f's_cselect_b32 s38, 0, {-(-65536 // full)}')
        A('s_add_u32 s72, s72, s38')
        A(f's_mul_i32 s38, s71, {nrow}')
        A('s_cmp_lt_u32 s68, s38')
        A(f's_cbranch_scc1 {lab}')
        A('s_sub_u32 s68, s68, s38')
        if adv:
            c0 += ncol
    sizes = []
    for x in range(7):
        c0_, tot = 0, 0
        for ncol, nrow, lab, adv in phases:
            f = (x - c0_) % 7
            tot += len(range(f, ncol, 7)) * nrow
            if adv:
                c0_ += ncol
        sizes.append(tot)
    A('v_and_b32 v8, 7, v0')
    A('v_lshlrev_b32 v8, 2, v8')
    A('global_load_dword v9, v8, s[4:5] offset:128 sc1')
    A('v_mov_b32 v10, 0')
    for x in range(7):
        A(f's_mov_b32 s38, {sizes[x]}')
        A(f'v_writelane_b32 v10, s38, {x}')
    A('s_waitcnt vmcnt(0)')
    A('v_cmp_lt_u32 vcc, v9, v10')
    A('s_and_b32 s38, vcc_lo, 0x7f')
    A('s_or_b32 s38, s38, 0x80')
    A('s_ff1_i32_b32 s38, s38')
    A('v_mov_b32 v9, s38')
    A('s_barrier')
    A('s_cmp_lg_u32 s13, 0')
    A('s_cbranch_scc1 W_x1')
    A('ds_write_b32 v28, v9 offset:4')
    A('s_waitcnt lgkmcnt(0)')
    A.label('W_x1')
    A('s_barrier')
    A('ds_read_b32 v9, v28 offset:4')
    A('s_waitcnt lgkmcnt(0)')
    A('v_readfirstlane_b32 s75, v9')
    A('s_branch W_deq')

    def rbct():
        A('s_mul_i32 s73, s68, s72')
        A('s_lshr_b32 s73, s73, 16')
        A('s_mul_i32 s74, s73, s71')
        A('s_sub_u32 s74, s68, s74')
        A('s_mul_i32 s74, s74, 7')
        A('s_add_u32 s74, s74, s70')

    def fw(base, sreg, shift, n, sleep=4):
        A(f's_lshl_b32 s70, {sreg}, {shift}')
        A(f's_add_u32 s70, s70, {base}')
        chain.flag_wait(A, 's70', n, 8, sleep=sleep)

    A.label('W_y0')
    A.forget()
    rbct()
    A('s_lshl_b32 s39, s73, 5')
    A('s_add_u32 s39, s39, s74')
    A(f's_add_u32 s69, s39, {L.F_Y0}')
    tl(A, cfg, 's69', 0, 24)
    fw(L.F_LN, 's73', 4, 16)
    fw(L.F_AB + 128, 's74', 2, 4)
    I.item_y0(A)
    chain.dbgmax(A, cfg, 14, 24)
    A('s_branch W_end')
    A.label('W_t2')
    A('s_add_u32 s70, s70, 16')
    for lab, kind, sh, fb, add in (('W_t1', 'T', 5, L.F_T, 0), ('W_y', 'Y', 5, L.F_Y, 1), ('W_gu', 'GU', 4, L.F_GU, 0)):
        A.label(lab)
        A.forget()
        rbct()
        if add:
            A(f's_add_u32 s73, s73, {add}')
        A(f's_lshl_b32 s39, s73, {sh}')
        A('s_add_u32 s39, s39, s74')
        A(f's_add_u32 s69, s39, {fb}')
        tl(A, cfg, 's69', 0, 24)
        fw(L.F_LN, 's73', 5, 32)
        if kind == 'GU':
            A('s_mul_i32 s74, s74, 7')
            fw(L.F_PK, 's74', 0, 7)
        else:
            fw(L.F_AB + (128 if kind == 'Y' else 0), 's74', 2, 4)
        I.item_gemm1(A, kind)
        A('s_branch W_end')
    A.label('W_pk')
    A.forget()
    rbct()
    A('s_mul_i32 s74, s74, 7')
    A('s_add_u32 s74, s74, s73')
    A(f's_add_u32 s43, s74, {L.F_PK}')
    A('s_lshl_b32 s39, s74, 2')
    A('s_add_u32 s39, s39, s13')
    A('s_mov_b64 s[46:47], s[74:75]')
    srd(A, 68, 34, 35, 448 * 3584)
    srd(A, 72, 36, 37, 448 * 3584)
    prep.wave_pack(A, 'GU', 7, ' sc1')
    A('s_mov_b64 s[74:75], s[46:47]')
    A('s_mov_b32 s69, s43')
    A('s_barrier')
    A('s_branch W_end')
    A.label('W_pw')
    A.forget()
    rbct()
    A(f's_add_u32 s43, s74, {L.F_PK + 112}')
    A('s_lshl_b32 s39, s74, 2')
    A('s_add_u32 s39, s39, s13')
    srd(A, 68, 64, 65, 1792 * 896)
    prep.wave_pack(A, 'WD', 7, ' sc1', 's[68:71]')
    A('s_mov_b32 s69, s43')
    A('s_barrier')
    A('s_branch W_end')
    A.label('W_g2')
    A.forget()
    rbct()
    A('s_mov_b32 s39, s74')
    A(f's_add_u32 s69, s39, {L.F_G2}')
    tl(A, cfg, 's69', 0, 24)
    chain.flag_wait(A, L.F_PK + 112, 56, 8, sleep=8)
    A('s_lshr_b32 s70, s39, 3')
    A('s_lshl_b32 s70, s70, 4')
    A('s_and_b32 s38, s39, 1')
    A('s_lshl_b32 s38, s38, 3')
    A('s_add_u32 s70, s70, s38')
    A(f's_add_u32 s70, s70, {L.F_GU}')
    chain.flag_wait(A, 's70', 8, 8, sleep=16)
    I.item_gemm2(A)
    chain.dbgmax(A, cfg, 15, 24)
    A('s_branch W_end')
    A.label('W_late')
    A.forget()
    LAG = cfg.get('lag', 5)
    A('s_cmp_eq_u32 s78, 0')
    A('s_cbranch_scc1 W_l2')
    chain.flag_wait_multi(A, [L.F_LN, L.F_LN + 64, L.F_LN + 128, L.F_LN + 192], 8)
    A('s_mov_b32 s78, 0')
    A.label('W_l2')
    A.forget()
    A(f's_cmp_ge_u32 s68, {(64 + LAG) * 11}')
    A('s_cbranch_scc1 L_bail')
    A('s_mul_hi_u32 s71, s68, 0x1745d175')
    A('s_mul_i32 s38, s71, 11')
    A('s_sub_u32 s72, s68, s38')
    A('s_cmp_ge_u32 s72, 4')
    A('s_cbranch_scc1 W_pv')
    A('s_cmp_ge_u32 s71, 64')
    A('s_cbranch_scc1 W_skip')
    A('s_lshl_b32 s39, s71, 2')
    A('s_add_u32 s39, s39, s72')
    A(f's_add_u32 s69, s39, {L.F_P}')
    tl(A, cfg, 's69', 0, 24)
    A('s_lshr_b32 s70, s71, 3')
    A('s_lshl_b32 s70, s70, 5')
    A('s_lshl_b32 s38, s72, 3')
    A('s_add_u32 s70, s70, s38')
    A(f's_add_u32 s70, s70, {L.F_T}')
    chain.flag_wait(A, 's70', 8, 8, sleep=16)
    I.item_punit(A)
    A('s_branch W_end')
    A.label('W_skip')
    A('s_barrier')
    A('s_branch W_deq')
    A.label('W_pv')
    A.forget()
    A(f's_cmp_lt_u32 s71, {LAG}')
    A('s_cbranch_scc1 W_skip')
    A(f's_sub_u32 s71, s71, {LAG}')
    A('s_mul_i32 s39, s71, 7')
    A('s_add_u32 s39, s39, s72')
    A('s_sub_u32 s39, s39, 4')
    A(f's_add_u32 s69, s39, {L.F_PV}')
    tl(A, cfg, 's69', 0, 24)
    A('s_lshr_b32 s70, s71, 3')
    A('s_lshl_b32 s70, s70, 5')
    A('s_lshr_b32 s38, s71, 2')
    A('s_lshl_b32 s38, s38, 5')
    A(f's_add_u32 s38, s38, {L.F_Y0}')
    A('s_cmp_lt_u32 s71, 8')
    A('s_cselect_b32 s70, s38, s70')
    chain.flag_wait(A, 's70', 32, 8, sleep=16)
    A('s_lshr_b32 s70, s71, 2')
    A('s_lshl_b32 s70, s70, 2')
    A(f's_add_u32 s70, s70, {L.F_G2}')
    chain.flag_wait(A, 's70', 4, 8, sleep=16)

    def wait_px(A):
        I.approach(A, 's71', 12, 0)
        A('s_cmp_ge_u32 s71, 62')
        A('s_cbranch_scc1 W_ymf')
        A('s_add_u32 s38, s71, 2')
        A('s_lshl_b32 s38, s38, 13')
        A('s_lshr_b32 s70, s54, 1')
        A('s_lshl_b32 s70, s70, 10')
        A('s_add_u32 s38, s38, s70')
        A(f's_add_u32 s38, s38, {L.MEMX}')
        A('v_mov_b32 v12, 0')
        A.label('W_ymp', keep=True)
        I.guard(A)
        A(f'buffer_load_dword v13, v12, {SRD}, s38 offen sc1')
        A('s_waitcnt vmcnt(0)')
        A('v_cmp_eq_u32 vcc, -1, v13')
        A('s_cbranch_vccz W_ymok')
        A('s_sleep 16')
        A('s_branch W_ymp')
        A.label('W_ymf', keep=True)
        chain.flag_wait(A, 's43', 2, 12, sleep=4)
        A.label('W_ymok', keep=True)
        A('s_lshl_b32 s70, s71, 2')
        A(f's_add_u32 s70, s70, {L.F_P}')
        chain.flag_wait(A, 's70', 4, 12, sleep=2)
    def early_deq(A):
        A('s_cmp_lg_u32 s13, 0')
        A('s_cbranch_scc1 W_ed')
        A('s_mov_b64 exec, 1')
        dequeue()
        A('s_mov_b64 exec, -1')
        A.label('W_ed', keep=True)
    I.item_pvunit(A, wait_px, hook=early_deq)
    A.forget()
    chain.dbgmax(A, cfg, 13, 24)
    tl(A, cfg, 's69', 1, 24)
    A('s_cmp_lg_u32 s13, 0')
    A('s_cbranch_scc1 W_e2')
    A('s_mov_b64 exec, 1')
    A('ds_write_b32 v28, v30')
    A('s_mov_b64 exec, -1')
    A('s_waitcnt lgkmcnt(0)')
    A('s_barrier')
    A('s_branch W_next')
    A.label('W_end')
    A.forget()
    A('s_cmp_lg_u32 s13, 0')
    A('s_cbranch_scc1 W_e1')
    A('v_readfirstlane_b32 s38, v29')
    A('v_mov_b32 v30, -1')
    A('s_cmp_lt_u32 s38, 32')
    A('s_cbranch_scc1 W_e1')
    A('s_mov_b64 exec, 1')
    dequeue()
    A('s_mov_b64 exec, -1')
    A('global_load_dword v29, v31, s[4:5] sc1')
    A.label('W_e1')
    A('s_waitcnt vmcnt(0)')
    tl(A, cfg, 's69', 1, 24)
    A('s_cmp_lg_u32 s13, 0')
    A('s_cbranch_scc1 W_e2')
    A('s_mov_b64 exec, 1')
    A('ds_write_b32 v28, v30')
    A('s_waitcnt lgkmcnt(0)')
    A('s_barrier')
    flag_store(A, 's69')
    A('s_mov_b64 exec, -1')
    A('s_branch W_next')
    A.label('W_e2')
    A('s_barrier')
    A('s_branch W_next')
    A.label('W_claim')
    A('s_barrier')
    A('s_branch CLAIM')


def build(cfg):
    cfg = dict(cfg)
    cfg['fused'] = 1
    I.CFG.update(cfg)
    prep2.CFG.update(cfg)
    A = Asm()
    cfg.setdefault('ntouch', 4)
    if cfg.get('aslist'):
        A.raw(f'; @launch kernel={NAME} grid=(256,1,1) block=(256,1,1) lds=151552')
    else:
        A.raw('; @launch grid=(256,1,1) block=(256,1,1) lds=151552')
    A.raw('.amdgcn_target "amdgcn-amd-amdhsa--gfx950"\n.text')
    A.raw(f'.globl {NAME}\n.p2align 8\n.type {NAME},@function')
    A.label(NAME)
    emit_main(A, cfg)
    A.raw('CODE_END:')
    A.raw('.section .rodata,"a"')
    A.raw('.p2align 6')
    A.raw(KD.format(name=NAME))
    return A.text()


if __name__ == '__main__':
    cfg = {}
    for kv in sys.argv[2:]:
        k, val = kv.split('=')
        cfg[k] = int(val)
    open(sys.argv[1], 'w').write(build(cfg))
```

```python
from asmdsl import v, a, s
import layout as L

SRD = 's[8:11]'
NSTEP = 63


def stamp(A, cfg, slot):
    if cfg.get('stamps'):
        A(f's_memtime s[{40 + 2 * slot}:{41 + 2 * slot}]')


def rstamp(A, cfg, slot):
    if cfg.get('stamps'):
        A(f's_memrealtime s[{40 + 2 * slot}:{41 + 2 * slot}]')


def stamp_flush(A, cfg, nslots, base_sreg, vt):
    if not cfg.get('stamps'):
        return
    A('s_waitcnt lgkmcnt(0)')
    for k in range(nslots):
        A(f'v_mov_b32 {v(vt)}, s{40 + 2 * k}')
        A(f'v_mov_b32 {v(vt + 1)}, 0')
        A(f'buffer_store_dword {v(vt)}, {v(vt + 1)}, {SRD}, s{base_sreg} offen offset:{4 * k}')
    A(f's_add_u32 s{base_sreg}, s{base_sreg}, 64')


def guard(A):
    A('s_add_u32 s33, s33, 1')
    A('s_cmp_gt_u32 s33, 0x200000')
    A('s_cbranch_scc1 L_bail')


def tl(A, cfg, idx_sreg_or_int, slot, vt, base=0):
    if not cfg.get('tl'):
        return
    A('s_memrealtime s[100:101]')
    A('s_waitcnt lgkmcnt(0)')
    A(f'v_mov_b32 {v(vt)}, s100')
    A(f'v_mov_b32 {v(vt + 1)}, 0')
    if isinstance(idx_sreg_or_int, int):
        A(f's_mov_b32 s101, {L.STAMP + base + idx_sreg_or_int * 16}')
    else:
        A(f's_lshl_b32 s101, {idx_sreg_or_int}, 4')
        A(f's_add_u32 s101, s101, {L.STAMP + base}')
    A(f'buffer_store_dword {v(vt)}, {v(vt + 1)}, {SRD}, s101 offen offset:{slot * 4}')


def dbgmax(A, cfg, word, vt, sel=('s14', 13)):
    if not cfg.get('dbg'):
        return
    sk = A.newlabel('DM')
    A(f's_cmp_lg_u32 {sel[0]}, {sel[1]}')
    A(f's_cbranch_scc1 {sk}')
    A('s_cmp_lg_u32 s13, 3')
    A(f's_cbranch_scc1 {sk}')
    A('s_memrealtime s[100:101]')
    A('s_waitcnt lgkmcnt(0)')
    A('s_sub_u32 s100, s100, s96')
    A(f'v_mov_b32 {v(vt)}, s100')
    A(f'v_mov_b32 {v(vt + 1)}, 0')
    A(f'global_store_dword {v(vt + 1)}, {v(vt)}, s[4:5] offset:{4 * word}')
    A.label(sk, keep=True)


def flag_wait(A, first, n, vt, sleep=8):
    A(f'v_and_b32 {v(vt)}, 63, v0')
    A(f'v_min_u32 {v(vt)}, {n - 1}, {v(vt)}')
    A(f'v_lshlrev_b32 {v(vt)}, 3, {v(vt)}')
    if isinstance(first, int):
        A(f's_mov_b32 s38, {L.FLAGS + 8 * first}')
    else:
        A(f's_lshl_b32 s38, {first}, 3')
        A(f's_add_u32 s38, s38, {L.FLAGS}')
    lab, ok = A.newlabel('FW'), A.newlabel('FWok')
    A.label(lab, keep=True)
    guard(A)
    A(f'buffer_load_dwordx2 {v(vt + 2, 2)}, {v(vt)}, {SRD}, s38 offen sc1')
    A('s_waitcnt vmcnt(0)')
    A(f'v_cmp_ne_u64 vcc, s[96:97], {v(vt + 2, 2)}')
    A(f's_cbranch_vccz {ok}')
    A(f's_sleep {sleep}')
    A(f's_branch {lab}')
    A.label(ok, keep=True)


def flag_wait_multi(A, firsts, vt, sleep=4):
    A(f'v_and_b32 {v(vt)}, 63, v0')
    A(f'v_lshlrev_b32 {v(vt)}, 3, {v(vt)}')
    lab, ok = A.newlabel('FM'), A.newlabel('FMok')
    A.label(lab, keep=True)
    guard(A)
    for i, f in enumerate(firsts):
        A(f's_mov_b32 s38, {L.FLAGS + 8 * f}')
        A(f'buffer_load_dwordx2 {v(vt + 2 + 2 * i, 2)}, {v(vt)}, {SRD}, s38 offen sc1')
    A('s_waitcnt vmcnt(0)')
    A('s_mov_b64 s[40:41], 0')
    for i in range(len(firsts)):
        A(f'v_cmp_ne_u64 vcc, s[96:97], {v(vt + 2 + 2 * i, 2)}')
        A('s_or_b64 s[40:41], s[40:41], vcc')
    A(f's_cbranch_scc0 {ok}')
    A(f's_sleep {sleep}')
    A(f's_branch {lab}')
    A.label(ok, keep=True)


def fill_share(A, base, kb_per_wave, widx_sreg, vt, vlin):
    for r in range(4):
        A(f'v_mov_b32 {v(vt + r)}, -1')
    A(f's_mul_i32 s38, {widx_sreg}, {kb_per_wave * 1024}')
    A(f's_add_u32 s38, s38, {base}')
    for k in range(kb_per_wave):
        if k and k % 4 == 0:
            A('s_add_u32 s38, s38, 4096')
        A(f'buffer_store_dwordx4 {v(vt, 4)}, {v(vlin)}, {SRD}, s38 offen offset:{(k & 3) * 1024} sc1')


def start_gate(A, cfg, vt):
    if not cfg.get('fused'):
        A('s_mov_b32 s12, 0')
        return
    flag_wait_multi(A, [L.F_Y0, L.F_LN, L.F_LN + 64, L.F_LN + 128, L.F_LN + 192], vt)
    lab, ok = A.newlabel('SG'), A.newlabel('SGok')
    A(f'v_mov_b32 {v(vt)}, 0')
    A.label(lab, keep=True)
    guard(A)
    A(f'global_load_dword {v(vt + 2)}, {v(vt)}, s[4:5] offset:8 sc1')
    A('s_waitcnt vmcnt(0)')
    A(f'v_readfirstlane_b32 s12, {v(vt + 2)}')
    A('s_and_b32 s38, s12, 63')
    A('s_cmp_ge_u32 s38, 32')
    A(f's_cbranch_scc1 {ok}')
    A('s_sleep 8')
    A(f's_branch {lab}')
    A.label(ok, keep=True)
    A('s_bfe_u32 s38, s12, 0x90006')
    A('s_mul_i32 s38, s38, s38')
    A('s_lshr_b32 s12, s12, 15')
    A('s_lshl_b32 s12, s12, 5')
    A('s_cmp_lg_u32 s12, s38')
    A('s_cselect_b32 s12, 1, 0')


def mid_gate(A, cfg, vt):
    if not cfg.get('fused'):
        return
    for step, ranges in ((5, ((32, 32),)), (13, ((64, 64),)), (29, ((128, 64), (192, 64)))):
        skip = A.newlabel('MG')
        A(f's_cmp_lg_u32 s15, {step}')
        A(f's_cbranch_scc1 {skip}')
        for f, n in ranges:
            flag_wait(A, f, n, vt)
        A.label(skip, keep=True)


def dual_store(A, text):
    slow, done = A.newlabel('DS'), A.newlabel('DSd')
    A('s_cmp_lg_u32 s12, 0')
    A(f's_cbranch_scc1 {slow}')
    A(text)
    A.label(done, keep=True)
    A.deferred.append((slow, text + ' sc1', done))


def flush_deferred(A):
    for slow, text, done in A.deferred:
        A.label(slow)
        A.raw('    ' + text)
        A.raw(f'    s_branch {done}')
    A.deferred = []


def align(A, cfg, key, default=0):
    n = cfg.get(key, default)
    if n < 0:
        return
    A.raw('    .p2align 6')
    for _ in range(n // 4):
        A.raw('    s_nop 0')


def lane_fields(A, vl):
    A(f'v_and_b32 {v(vl)}, 63, v0')


def emit_koffs(A):
    A('s_lshl_b32 s23, s13, 1')
    for k in range(7):
        A(f's_add_u32 s{16 + k}, s23, {k}')
        A(f's_cmp_ge_u32 s{16 + k}, 7')
        A(f's_cselect_b32 s24, 7, 0')
        A(f's_sub_u32 s{16 + k}, s{16 + k}, s24')
        A(f's_lshl_b32 s{16 + k}, s{16 + k}, 10')


def warm_vm(A, n, vw, cfg):
    if cfg.get('nowarm'):
        A(f's_waitcnt vmcnt({n})')
        return
    lab = A.newlabel('W')
    A.label(lab, keep=True)
    A(f'v_mov_b32 {v(vw)}, {v(vw)}')
    A(f's_getreg_b32 s38, hwreg(HW_REG_IB_STS, 0, 4)')
    A(f's_cmp_gt_u32 s38, {n}')
    A(f'v_mov_b32 {v(vw)}, {v(vw)}')
    A(f's_cbranch_scc1 {lab}')
    A(f's_waitcnt vmcnt({n})')


def keepalive(A, vw, n, cfg):
    if cfg.get('nowarm'):
        return
    for _ in range(n):
        A(f'v_mov_b32 {v(vw)}, {v(vw)}')


def warm_mfma(A, base, cfg):
    if cfg.get('nowarm'):
        return
    A(f'v_mfma_f32_32x32x16_bf16 {v(base, 16)}, {v(base + 16, 4)}, {v(base + 16, 4)}, {v(base, 16)}')


def check_regs(A, tmp, regs, autowait=True):
    E = A.auto if autowait else A
    E(f'v_max3_u32 {v(tmp)}, {v(regs[0])}, {v(regs[1])}, {v(regs[2])}')
    i = 3
    while i + 1 < len(regs):
        E(f'v_max3_u32 {v(tmp)}, {v(tmp)}, {v(regs[i])}, {v(regs[i + 1])}')
        i += 2
    if i < len(regs):
        E(f'v_max_u32 {v(tmp)}, {v(tmp)}, {v(regs[i])}')
    A(f'v_cmp_eq_u32 vcc, -1, {v(tmp)}')


def sparse_idx(A, vIDX, vL, t2, t3):
    A(f'v_and_b32 {v(t2)}, 8, {v(vL)}')
    A(f'v_cmp_ne_u32 vcc, 0, {v(t2)}')
    A(f'v_mov_b32 {v(t2)}, 0x4444')
    A(f'v_mov_b32 {v(t3)}, 0xeeee')
    A(f'v_cndmask_b32 {v(vIDX)}, {v(t2)}, {v(t3)}, vcc')


def emit_A(A, cfg):
    W5 = 0x0000
    MIMG = 0xE000
    TIMG = 0x10000
    SIMG = 0x14800
    QS = 144
    vL, vIDX, vMA, vMKa, vMKb, vMK3, vW5, vXK, vXK3, vTW, vTW6, vTR, vTR3, vSW, vSR, vPS, vPF = range(1, 18)
    vM = lambda k: 18 + k
    vSW2 = 25
    vT0 = 26
    M = lambda k: 32 + 4 * k
    ACC = lambda n: 60 + 4 * n
    WS5 = lambda b: 88 + 8 * b
    XK = lambda q, t: 112 + 8 * q + 4 * t
    XK3 = lambda t: 136 + 2 * t
    PSET = lambda r: 140 + 8 * r
    MK = lambda q: 140 + 4 * q
    TB = lambda q: (ACC(2 * q) if q < 3 else ACC(6) + 2)
    SACC = lambda t: 156 + 4 * t
    vDUM = 168
    LT = 1
    PORD = [1, 2, 0]
    regtiles = [0, 2, 3, 4, 5, 6]

    def W(n, k):
        i = regtiles.index(n) * 7 + k
        return a(8 * i, 8) if i < 32 else v(176 + 8 * (i - 32), 8)

    def Whalf(n, k, eh):
        i = regtiles.index(n) * 7 + k
        return a(8 * i + 4 * eh, 4) if i < 32 else v(176 + 8 * (i - 32) + 4 * eh, 4)

    t0, t1, t2, t3 = vT0, vT0 + 1, vT0 + 2, vT0 + 3
    A.pipe_model = bool(cfg.get('pipe', 1))
    tl(A, cfg, 's14', 0, 30, 0x18000)
    lane_fields(A, vL)
    emit_koffs(A)
    A(f'v_and_b32 {v(t0)}, 15, {v(vL)}')
    A(f'v_lshrrev_b32 {v(t1)}, 4, {v(vL)}')
    sparse_idx(A, vIDX, vL, t2, t3)
    A(f'v_lshlrev_b32 {v(t2)}, 9, {v(t1)}')
    A(f'v_lshl_add_u32 {v(vPF)}, {v(t0)}, 4, {v(t2)}')
    if cfg.get('fused'):
        A('s_lshl_b32 s23, s14, 3')
        A('s_lshr_b32 s24, s13, 1')
        A('s_lshl_b32 s24, s24, 2')
        A('s_add_u32 s23, s23, s24')
        A(f's_add_u32 s23, s23, {L.F_AB}')
        flag_wait(A, 's23', 4, 32, sleep=2)
    A(f's_mul_i32 s25, s14, {14 * 28672}')
    A(f's_add_u32 s25, s25, {L.WF + L.NB_A * 28672}')
    A(f's_mul_i32 s26, s13, 7')
    A(f's_mul_i32 s28, s13, 14336')
    cnt = 0
    for n in range(7):
        A(f's_add_u32 s23, s26, {n}')
        A(f's_lshr_b32 s24, s23, 1')
        A(f's_mul_i32 s24, s24, 28672')
        A(f's_and_b32 s23, s23, 1')
        A(f's_lshl_b32 s23, s23, 8')
        A(f's_add_u32 s27, s25, s24')
        A(f's_add_u32 s27, s27, s23')
        for k in range(7):
            A(f's_lshl_b32 s23, s{16 + k}, 2')
            A(f's_add_u32 s23, s23, s27')
            for eh in range(2):
                if n == LT:
                    A(f's_add_u32 s24, s28, {W5 + (k * 2 + eh) * 1024}')
                    A(f's_mov_b32 m0, s24')
                    if eh:
                        A(f's_add_u32 s23, s23, 2048')
                    A(f'buffer_load_dwordx4 {v(vPF)}, {SRD}, s23 offen sc1 lds')
                else:
                    A(f'buffer_load_dwordx4 {Whalf(n, k, eh)}, {v(vPF)}, {SRD}, s23 offen offset:{2048 * eh} sc1')
                cnt += 1
                if cnt % 16 == 0:
                    A('s_waitcnt vmcnt(40)')
    A(f'v_lshlrev_b32 {v(vMA)}, 4, {v(vL)}')
    A(f'v_add_u32 {v(vW5)}, s28, {v(vMA)}')
    for k in range(7):
        A(f's_add_u32 s23, s{16 + k}, {MIMG}')
        A(f'v_add_u32 {v(vM(k))}, s23, {v(vMA)}')
    A(f'v_add_u32 {v(vMA)}, {L.MEMA}, {v(vMA)}')
    A(f'v_and_b32 {v(t2)}, 7, {v(vL)}')
    A(f'v_lshlrev_b32 {v(t2)}, 4, {v(t2)}')
    A(f's_mul_i32 s23, s13, {7 * 256}')
    A(f's_add_u32 s23, s23, {MIMG}')
    A(f'v_lshrrev_b32 {v(t3)}, 1, {v(t1)}')
    A(f'v_lshl_add_u32 {v(vMKa)}, {v(t3)}, 8, {v(t2)}')
    A(f'v_and_b32 {v(t3)}, 1, {v(t1)}')
    A(f'v_lshl_add_u32 {v(vMKa)}, {v(t3)}, 3, {v(vMKa)}')
    A(f'v_add_u32 {v(vMKa)}, s23, {v(vMKa)}')
    A(f'v_add_u32 {v(vMKb)}, 1024, {v(vMKa)}')
    A(f'v_lshl_add_u32 {v(vMK3)}, {v(t1)}, 2, {v(t2)}')
    A(f's_add_u32 s23, s23, {6 * 256}')
    A(f'v_add_u32 {v(vMK3)}, s23, {v(vMK3)}')
    A(f'v_and_b32 {v(t2)}, 6, {v(t0)}')
    A(f'v_lshlrev_b32 {v(t2)}, 1, {v(t2)}')
    A(f'v_lshrrev_b32 {v(t3)}, 3, {v(t0)}')
    A(f'v_lshl_add_u32 {v(t2)}, {v(t3)}, 1, {v(t2)}')
    A(f'v_and_b32 {v(t3)}, 1, {v(t0)}')
    A(f'v_add_u32 {v(t2)}, {v(t3)}, {v(t2)}')
    A(f'v_lshlrev_b32 {v(t2)}, 4, {v(t2)}')
    A(f'v_lshl_add_u32 {v(vXK)}, {v(t1)}, 9, {v(t2)}')
    A(f'v_lshrrev_b32 {v(t3)}, 1, {v(t1)}')
    A(f'v_lshl_add_u32 {v(vXK3)}, {v(t3)}, 9, {v(t2)}')
    A(f'v_and_b32 {v(t3)}, 1, {v(t1)}')
    A(f'v_lshl_add_u32 {v(vXK3)}, {v(t3)}, 3, {v(vXK3)}')
    A(f'v_add_u32 {v(vXK3)}, {6 * 1024}, {v(vXK3)}')
    A(f's_lshl_b32 s30, s13, 11')
    A(f's_mul_i32 s23, s13, 4352')
    A(f's_add_u32 s23, s23, {TIMG}')
    def plane(dst, src, tmp):
        A(f'v_lshlrev_b32 {v(dst)}, 10, {v(src)}')
        A(f'v_and_b32 {v(tmp)}, 1, {v(src)}')
        A(f'v_lshl_add_u32 {v(dst)}, {v(tmp)}, 5, {v(dst)}')
        A(f'v_lshrrev_b32 {v(tmp)}, 1, {v(src)}')
        A(f'v_lshl_add_u32 {v(dst)}, {v(tmp)}, 7, {v(dst)}')
    plane(t2, t1, t3)
    A(f'v_lshl_add_u32 {v(vTW)}, {v(t0)}, 3, {v(t2)}')
    A(f'v_add_u32 {v(vTW)}, s23, {v(vTW)}')
    A(f'v_and_b32 {v(vTR)}, 3, {v(vL)}')
    plane(t2, vTR, t3)
    A(f'v_bfe_u32 {v(t3)}, {v(vL)}, 2, 2')
    A(f'v_lshl_add_u32 {v(t2)}, {v(t3)}, 3, {v(t2)}')
    A(f'v_lshl_add_u32 {v(vTR)}, {v(t1)}, 6, {v(t2)}')
    A(f'v_add_u32 {v(vTR)}, s23, {v(vTR)}')
    A(f'v_lshl_add_u32 {v(vTR3)}, {v(t1)}, 5, {v(t2)}')
    A(f'v_add_u32 {v(vTR3)}, {96 * 8}, {v(vTR3)}')
    A(f'v_add_u32 {v(vTR3)}, s23, {v(vTR3)}')
    A(f's_add_u32 s23, s30, {SIMG}')
    A(f'v_lshrrev_b32 {v(t3)}, 3, {v(t0)}')
    A(f'v_lshl_add_u32 {v(t2)}, {v(t3)}, 2, {v(t1)}')
    A(f'v_mul_u32_u24 {v(t2)}, {QS}, {v(t2)}')
    A(f'v_and_b32 {v(vSW2)}, 7, {v(t0)}')
    A(f'v_lshl_add_u32 {v(vSW)}, {v(vSW2)}, 4, {v(t2)}')
    A(f'v_add_u32 {v(vSW)}, s23, {v(vSW)}')
    A(f'v_lshlrev_b32 {v(vSW2)}, 4, {v(vSW2)}')
    A(f'v_lshl_add_u32 {v(vSW2)}, {v(t3)}, 3, {v(vSW2)}')
    A(f'v_add_u32 {v(t2)}, 8, {v(t1)}')
    A(f'v_mul_u32_u24 {v(t2)}, {QS}, {v(t2)}')
    A(f'v_add3_u32 {v(vSW2)}, {v(vSW2)}, {v(t2)}, s23')
    A('s_mov_b32 s36, 0xff00ff00')
    A('s_mov_b32 s37, 0xff00ff00')
    A(f'v_mov_b32 {v(t3)}, 12')
    A(f'v_cmp_gt_u32 vcc, 10, {v(t0)}')
    A(f'v_cndmask_b32 {v(t2)}, {v(t3)}, {v(t0)}, vcc')
    A(f'v_mul_u32_u24 {v(t2)}, {QS}, {v(t2)}')
    A(f's_lshl_b32 s23, s13, 2')
    A(f'v_add_u32 {v(t3)}, s23, {v(t1)}')
    A(f'v_and_b32 {v(t3)}, 7, {v(t3)}')
    A(f'v_lshl_add_u32 {v(vSR)}, {v(t3)}, 4, {v(t2)}')
    A(f'v_add_u32 {v(vSR)}, {SIMG}, {v(vSR)}')
    A(f'v_lshrrev_b32 {v(t2)}, 1, {v(t0)}')
    A(f'v_lshlrev_b32 {v(t2)}, 7, {v(t2)}')
    A(f'v_lshl_add_u32 {v(t2)}, {v(t3)}, 4, {v(t2)}')
    A(f'v_and_b32 {v(t3)}, 1, {v(t0)}')
    A(f'v_lshl_add_u32 {v(t2)}, {v(t3)}, 3, {v(t2)}')
    A(f'v_mov_b32 {v(t3)}, 0x40000000')
    A(f'v_cndmask_b32 {v(vPS)}, {v(t3)}, {v(t2)}, vcc')
    A(f'v_mov_b32 {v(t2)}, 0xf149f2ca')
    A(f'v_and_b32 {v(t3)}, 31, {v(vL)}')
    A(f'v_lshlrev_b32 {v(t3)}, 2, {v(t3)}')
    A(f's_add_u32 s23, s30, {SIMG + 12 * QS}')
    A(f'v_add_u32 {v(t3)}, s23, {v(t3)}')
    A(f'ds_write_b32 {v(t3)}, {v(t2)}')
    A('s_waitcnt vmcnt(0)')
    A(f'v_lshlrev_b32 {v(vPF)}, 7, {v(vL)}')
    A(f's_mul_i32 s24, s14, 640')
    A(f's_add_u32 s24, s24, {L.PBUF}')
    A(f's_mul_i32 s25, s13, 7168')
    A(f's_add_u32 s25, s25, {L.XF}')
    NT = cfg.get('ntouch', 2)
    A(f's_mul_i32 s26, s14, {NT}')
    A(f's_add_u32 s26, s26, s13')
    A(f's_min_u32 s26, s26, 55')
    A(f's_lshl_b32 s26, s26, 13')
    A(f's_add_u32 s26, s26, {L.YF + cfg.get("pfdist", 2) * 16 * 28672}')
    A(f's_cmp_ge_u32 s13, {NT}')
    A(f's_cselect_b32 s23, 0x40000000, 0')
    A(f'v_add_u32 {v(vPF)}, s23, {v(vPF)}')
    A(f's_mov_b32 s15, 0')
    if cfg.get('stamps'):
        A(f's_lshl_b32 s32, s14, 2')
        A(f's_add_u32 s32, s32, s13')
        A(f's_lshl_b32 s32, s32, 12')
        A(f's_add_u32 s32, s32, {L.STAMP}')

    def xload():
        for q in range(3):
            if q == 2:
                A(f's_add_u32 s23, s25, 4096')
            for tt in range(2):
                if q < 2:
                    A(f'buffer_load_dwordx4 {v(XK(q, tt), 4)}, {v(vXK)}, {SRD}, s25 offen offset:{q * 2048 + tt * 256} sc1')
                else:
                    A(f'buffer_load_dwordx4 {v(XK(q, tt), 4)}, {v(vXK)}, {SRD}, s23 offen offset:{tt * 256} sc1')
        for tt in range(2):
            A(f'buffer_load_dwordx2 {v(XK3(tt), 2)}, {v(vXK3)}, {SRD}, s25 offen offset:{tt * 256} sc1')
        A(f's_add_u32 s25, s25, 28672')

    A('s_waitcnt vmcnt(0) lgkmcnt(0)')
    tl(A, cfg, 's14', 1, vT0 + 4, 0x18000)
    dbgmax(A, cfg, 6, vT0 + 4)
    start_gate(A, cfg, M(0))
    tl(A, cfg, 's14', 2, vT0 + 4, 0x18000)
    dbgmax(A, cfg, 8, vT0 + 4)
    xload()
    A('s_barrier')

    top = A.newlabel('A_top')
    poll = A.newlabel('A_poll')
    var1 = A.newlabel('A_var1')
    common = A.newlabel('A_common')
    nxt = A.newlabel('A_next')
    A.label(top)
    A.forget()
    A('s_nop 7')
    for r in range(12):
        A(f'v_mov_b32 {v(SACC(0) + r)}, 0')
    for r in range(28):
        A(f'v_mov_b32 {v(ACC(0) + r)}, 0')

    def w5read(k):
        for eh in range(2):
            A(f'ds_read_b128 {v(WS5(k % 3) + 4 * eh, 4)}, {v(vW5)} offset:{(k * 2 + eh) * 1024}')
    for k in range(3):
        w5read(k)
    A('s_waitcnt vmcnt(0) lgkmcnt(0)')
    if cfg.get('asleep', 0):
        A(f's_sleep {cfg["asleep"]}')

    def pissue(r):
        for k in range(2):
            A(f'buffer_load_dwordx4 {v(PSET(r) + 4 * k, 4)}, {v(vMA)}, {SRD}, s{16 + k} offen sc1')
    var0 = A.newlabel('A_var0')

    def quick(r):
        keepalive(A, vDUM + 1, cfg.get('kap', 0), cfg)
        check_regs(A, t0, [PSET(r) + i for i in range(8)])
    pissue(0)
    keepalive(A, vDUM + 1, cfg.get('pgapA', 20), {})
    align(A, cfg, 'alAp')
    A.label(poll, keep=True)
    guard(A)
    pissue(1)
    quick(0)
    A(f's_cbranch_vccz {var0}')
    pissue(0)
    quick(1)
    A(f's_cbranch_vccnz {poll}')

    E6 = cfg.get('early6', 2)
    BPOS = cfg.get('bpos', 3)
    tiles01 = [1, 0, 2, 3, 4, 5] + ([6] if E6 else [])

    def mf(n, k, mreg):
        wreg = v(WS5(k % 3), 8) if n == LT else W(n, k)
        return f'v_smfmac_f32_16x16x64_bf16 {v(ACC(n), 4)}, {v(mreg, 4)}, {wreg}, {v(vIDX)}'

    def variant(r):
        A.vm = [set(('v', PSET(1 - r) + i) for i in range(4)), set(('v', PSET(1 - r) + 4 + i) for i in range(4))]
        A.lg = []
        A.smem_out = []
        stamp(A, cfg, 0)
        seq = [(n, k) for k in range(2) for n in tiles01]
        rd = [k for k in range(2, 7)] + ([] if E6 else [0, 1])
        Q = PSET(r)
        full = []
        w5q = []
        for i, (n, k) in enumerate(seq):
            A(mf(n, k, PSET(r) + 4 * k))
            if i < 2:
                A(f'ds_write_b128 {v(vM(i))}, {v(PSET(r) + 4 * i, 4)}')
            if full:
                A(full.pop(0))
            if i == BPOS - 1:
                stamp(A, cfg, 5)
                A('s_waitcnt lgkmcnt(0)')
                A('s_barrier')
                stamp(A, cfg, 6)
            if n == LT:
                w5q += [(k + 3, 0), (k + 3, 1)]
            if i >= BPOS - 1:
                if rd:
                    kk = rd.pop(0)
                    A(f'ds_read_b128 {v(M(kk), 4)}, {v(vM(kk))}')
                elif w5q:
                    kk, eh = w5q.pop(0)
                    A(f'ds_read_b128 {v(WS5(kk % 3) + 4 * eh, 4)}, {v(vW5)} offset:{(kk * 2 + eh) * 1024}')
        assert not rd
        for kk, eh in w5q:
            A(f'ds_read_b128 {v(WS5(kk % 3) + 4 * eh, 4)}, {v(vW5)} offset:{(kk * 2 + eh) * 1024}')

    A.label(var1)
    variant(1)
    A(f's_branch {common}')
    align(A, cfg, 'alA0')
    A.label(var0)
    variant(0)
    A.label(common, keep=True)
    A.vm = [set(('v', PSET(0) + i) for i in range(16))]

    seq = []
    for n in (2, 3, 4, 5, 0, 1, 6):
        for k in range(E6 if n == 6 else 2, 7):
            seq.append((n, k))
    for k, pos in ((2, 0), (3, 5)):
        seq.remove((LT, k))
        seq.insert(pos, (LT, k))
    NS = len(seq)
    memq = []
    memq.append((0, f'buffer_load_dword {v(vDUM)}, {v(vPF)}, {SRD}, s26 offen'))
    for i, (n, k) in enumerate(seq):
        if n == LT and k + 3 < 7:
            for eh in range(2):
                memq.append((i, f'ds_read_b128 {v(WS5((k + 3) % 3) + 4 * eh, 4)}, {v(vW5)} offset:{((k + 3) * 2 + eh) * 1024}'))
    mkstart = cfg.get('mkpos', 3)
    memq.append((mkstart, 's_waitcnt vmcnt(1)'))
    for q in range(3):
        ad = v(vMKa) if q < 2 else v(vMKb)
        o = 128 * q if q < 2 else 0
        memq.append((mkstart, f'ds_read2_b32 {v(MK(q), 2)}, {ad} offset0:{o} offset1:{o + 32}'))
        memq.append((mkstart, f'ds_read2_b32 {v(MK(q) + 2, 2)}, {ad} offset0:{o + 1} offset1:{o + 33}'))
    memq.append((mkstart, f'ds_read2_b32 {v(MK(3), 2)}, {v(vMK3)} offset0:0 offset1:32'))
    memq.sort(key=lambda x: x[0])
    done = {}
    for i, (n, k) in enumerate(seq):
        done[n] = i
    post = []

    def tpost(n):
        C = ACC(n)
        ops = [f'v_cvt_pk_bf16_f32 {v(C)}, {v(C)}, {v(C + 1)}', f'v_cvt_pk_bf16_f32 {v(C + 1)}, {v(C + 2)}, {v(C + 3)}',
               f'ds_write_b64 {v(vTW)}, {v(C, 2)} offset:{128 * n}']
        if n == 6:
            ops += [f'ds_read_b64_tr_b16 {v(TB(3), 2)}, {v(vTR3)}']
        elif n & 1:
            p = n >> 1
            ops += [f'ds_read_b64_tr_b16 {v(TB(p), 2)}, {v(vTR)} offset:{256 * p}',
                    f'ds_read_b64_tr_b16 {v(TB(p) + 2, 2)}, {v(vTR)} offset:{256 * p + 32}']
        return ops
    for n in (2, 3, 4, 5, 0, 1):
        post.append((done[n] + cfg.get('pdelay', 2), tpost(n)))
    smf = []
    for p in PORD:
        for t in range(3):
            key = v(XK(p, t), 4) if t < 2 else v(MK(p), 4)
            smf.append(f'v_mfma_f32_16x16x32_bf16 {v(SACC(t), 4)}, {key}, {v(TB(p), 4)}, {v(SACC(t), 4)}')
    NEARLY = cfg.get('searly', 2)
    queue = []
    A.mfma_states = cfg.get('mfstates', 1)
    for i, (n, k) in enumerate(seq):
        if i in (0, 1, 10, 20, 30):
            stamp(A, cfg, 7 + (0, 1, 10, 20, 30).index(i))
        if i == NS - 3:
            for _ in range(NEARLY):
                A.auto(smf.pop(0))
        A.auto(mf(n, k, M(k)))
        for st, ops in post:
            if st == i:
                queue += ops
        nm = 0
        if queue and not queue[0].startswith('v_'):
            A(queue.pop(0))
            nm = 1
        while memq and memq[0][0] <= i and nm < 1:
            o = memq.pop(0)[1]
            A(o)
            if not o.startswith('s_'):
                nm += 1
        if queue and queue[0].startswith('v_') and A.pad_needed(queue[0]) <= cfg.get('maxpad', 0):
            A(queue.pop(0))
    assert not memq
    tailops = queue
    stamp(A, cfg, 1)
    for o in tailops:
        A(o)
    A.auto(smf.pop(0))
    A.auto(smf.pop(0))
    for o in tpost(6):
        A(o)
    stamp(A, cfg, 13)
    for m_ in smf:
        A.auto(m_)
    for t in range(3):
        key = v(XK3(t), 2) if t < 2 else v(MK(3), 2)
        A.auto(f'v_mfma_f32_16x16x16_bf16 {v(SACC(t), 4)}, {key}, {v(TB(3), 2)}, {v(SACC(t), 4)}')
    stamp(A, cfg, 12)
    for r in range(4):
        A(f'v_add_f32_dpp {v(SACC(0) + r)}, {v(SACC(0) + r)}, {v(SACC(0) + r)} row_ror:8 row_mask:0xf bank_mask:0x3')
    for r in range(4):
        A(f'v_add_f32_dpp {v(SACC(0) + r)}, {v(SACC(1) + r)}, {v(SACC(1) + r)} row_ror:8 row_mask:0xf bank_mask:0xc')
    A(f'ds_write_b128 {v(vSW)}, {v(SACC(0), 4)}')
    for r in range(2):
        A(f'v_add_f32_dpp {v(SACC(2) + r)}, {v(SACC(2) + r)}, {v(SACC(2) + r)} row_ror:8 row_mask:0xf bank_mask:0x3')
    for r in range(2):
        A(f'v_add_f32_dpp {v(SACC(2) + r)}, {v(SACC(2) + 2 + r)}, {v(SACC(2) + 2 + r)} row_ror:8 row_mask:0xf bank_mask:0xc')
    A(f'ds_write_b64 {v(vSW2)}, {v(SACC(2), 2)}')
    A('s_cmp_ge_u32 s13, 2')
    keepalive(A, vDUM + 1, cfg.get('ka1', 8), cfg)
    warm_mfma(A, M(0), cfg)
    A('s_waitcnt lgkmcnt(0)')
    A('s_barrier')
    stamp(A, cfg, 2)
    A(f's_cbranch_scc1 {nxt}')
    R = lambda w: ACC(0) + 4 * w
    for w in range(4):
        A(f'ds_read_b128 {v(R(w), 4)}, {v(vSR)} offset:{w * 2048}')
        keepalive(A, vDUM + 1, 1, cfg)
    keepalive(A, vDUM + 1, cfg.get('ka2', 8), cfg)
    s0 = R(0)
    ml, m, ll, f, e0, cm2 = R(4), R(4) + 2, R(5), R(5) + 2, R(2), R(6)
    A(f'v_mov_b32 {v(cm2)}, -2')
    A.auto(f'v_pk_add_f32 {v(R(0), 2)}, {v(R(0), 2)}, {v(R(1), 2)}')
    A(f'v_pk_add_f32 {v(R(0) + 2, 2)}, {v(R(0) + 2, 2)}, {v(R(1) + 2, 2)}')
    A.auto(f'v_pk_add_f32 {v(R(2), 2)}, {v(R(2), 2)}, {v(R(3), 2)}')
    A(f'v_pk_add_f32 {v(R(2) + 2, 2)}, {v(R(2) + 2, 2)}, {v(R(3) + 2, 2)}')
    A(f'v_pk_add_f32 {v(R(0), 2)}, {v(R(0), 2)}, {v(R(2), 2)}')
    A(f'v_pk_add_f32 {v(R(0) + 2, 2)}, {v(R(0) + 2, 2)}, {v(R(2) + 2, 2)}')
    dpp = 'row_mask:0xf bank_mask:0xf'
    A(f'v_max3_f32 {v(ml)}, {v(s0)}, {v(s0 + 1)}, {v(s0 + 2)}')
    A(f'v_max_f32 {v(ml)}, {v(ml)}, {v(s0 + 3)}')
    A(f'v_sub_f32 {v(e0)}, {v(s0)}, {v(ml)}')
    A(f'v_sub_f32 {v(e0 + 1)}, {v(s0 + 1)}, {v(ml)}')
    A(f'v_max_f32_dpp {v(m)}, {v(ml)}, {v(ml)} row_ror:8 {dpp}')
    A(f'v_sub_f32 {v(e0 + 2)}, {v(s0 + 2)}, {v(ml)}')
    A(f'v_sub_f32 {v(e0 + 3)}, {v(s0 + 3)}, {v(ml)}')
    A(f'v_max_f32_dpp {v(m)}, {v(m)}, {v(m)} row_ror:4 {dpp}')
    A(f'v_exp_f32 {v(e0)}, {v(e0)}')
    A(f'v_exp_f32 {v(e0 + 1)}, {v(e0 + 1)}')
    A(f'v_max_f32_dpp {v(m)}, {v(m)}, {v(m)} row_ror:2 {dpp}')
    A(f'v_exp_f32 {v(e0 + 2)}, {v(e0 + 2)}')
    A(f'v_exp_f32 {v(e0 + 3)}, {v(e0 + 3)}')
    A(f'v_max_f32_dpp {v(m)}, {v(m)}, {v(m)} row_ror:1 {dpp}')
    A(f'v_pk_add_f32 {v(ll, 2)}, {v(e0, 2)}, {v(e0 + 2, 2)}')
    A(f'v_sub_f32 {v(f)}, {v(ml)}, {v(m)}')
    A(f'v_exp_f32 {v(f)}, {v(f)}')
    A(f'v_add_f32 {v(ll)}, {v(ll)}, {v(ll + 1)}')
    A(f'v_mul_f32 {v(ll)}, {v(ll)}, {v(f)}')
    A(f'v_mul_f32 {v(e0)}, {v(e0)}, {v(f)}')
    A(f'v_mul_f32 {v(e0 + 1)}, {v(e0 + 1)}, {v(f)}')
    A(f'v_add_f32_dpp {v(ll)}, {v(ll)}, {v(ll)} row_ror:8 {dpp}')
    A(f'v_mul_f32 {v(e0 + 2)}, {v(e0 + 2)}, {v(f)}')
    A(f'v_mul_f32 {v(e0 + 3)}, {v(e0 + 3)}, {v(f)}')
    A(f'v_add_f32_dpp {v(ll)}, {v(ll)}, {v(ll)} row_ror:4 {dpp}')
    A(f'v_add_f32_dpp {v(ll)}, {v(ll)}, {v(ll)} row_ror:2 {dpp}')
    A(f'v_add_f32_dpp {v(ll)}, {v(ll)}, {v(ll)} row_ror:1 {dpp}')
    A(f'v_rcp_f32 {v(ll)}, {v(ll)}')
    for i in range(4):
        A(f'v_mul_f32 {v(e0 + i)}, {v(e0 + i)}, {v(ll)}')
    A(f'v_cvt_pk_bf16_f32 {v(s0)}, {v(e0)}, {v(e0 + 1)}')
    A(f'v_cvt_pk_bf16_f32 {v(s0 + 1)}, {v(e0 + 2)}, {v(e0 + 3)}')
    A(f'v_min_u32 {v(s0)}, {v(s0)}, {v(cm2)}')
    A(f'v_min_u32 {v(s0 + 1)}, {v(s0 + 1)}, {v(cm2)}')
    dual_store(A, f'buffer_store_dwordx2 {v(s0, 2)}, {v(vPS)}, {SRD}, s24 offen')
    A.label(nxt, keep=True)
    stamp(A, cfg, 3)
    rstamp(A, cfg, 4)
    if not cfg.get('nohold'):
        A('s_barrier')
    if cfg.get('xdelay', 4):
        A(f's_sleep {cfg.get("xdelay", 4)}')
    xload()
    mid_gate(A, cfg, vT0)
    if cfg.get('tl'):
        skp = A.newlabel('TLS')
        A('s_add_u32 s38, s14, s13')
        A('s_cmp_lg_u32 s38, 18')
        A(f's_cbranch_scc1 {skp}')
        tl(A, cfg, 's15', 0, vT0 + 4, 0x10000)
        A('s_memtime s[98:99]')
        A('s_waitcnt lgkmcnt(0)')
        A(f'v_mov_b32 {v(vT0 + 4)}, s98')
        A(f'buffer_store_dword {v(vT0 + 4)}, {v(vT0 + 5)}, {SRD}, s101 offen offset:4')
        A.label(skp, keep=True)
    stamp_flush(A, cfg, 14, 32, vT0 + 4)
    A(f'v_add_u32 {v(vMA)}, 8192, {v(vMA)}')
    A(f's_add_u32 s24, s24, 16384')
    A(f's_add_u32 s26, s26, {16 * 28672}')
    A(f's_add_u32 s15, s15, 1')
    if cfg.get('dbg'):
        for stp, wd in ((8, 9), (32, 10)):
            sk = A.newlabel('DB')
            A(f's_cmp_lg_u32 s15, {stp}')
            A(f's_cbranch_scc1 {sk}')
            dbgmax(A, cfg, wd, vT0 + 4)
            A.label(sk, keep=True)
    A(f's_cmp_lt_u32 s15, {NSTEP}')
    A(f's_cbranch_scc1 {top}')
    dbgmax(A, cfg, 11, vT0 + 4)
    A('s_endpgm')
    flush_deferred(A)


def emit_B(A, cfg):
    WL = 0x0000
    RIMG = 0x20000
    MIMG = 0x23000
    vL, vIDX, vMA, vWL, vYX, vP, vP2, vRW, vRR, vSA, vSK, vYM, vPF = range(1, 14)
    vT0 = 14
    M = lambda k: 20 + 4 * k
    YACC = lambda hh, t: 48 + 4 * (hh * 2 + t)
    YX = lambda k, t: 80 + 8 * (k * 2 + t)
    YB = lambda t: 112 + 4 * t
    M2 = 120
    YBN = lambda t: 180 + 4 * t
    OACC = lambda t: 128 + 4 * t
    ST = lambda b: 136 + 8 * b
    P = lambda r, k: 20 + 12 * r + 4 * k
    vM = lambda k: 168 + k
    vDUM = 176

    def W(ht, k):
        i = ht * 5 + k
        return a(8 * i, 8) if i < 32 else v(192 + 8 * (i - 32), 8)

    def Whalf(ht, k, eh):
        i = ht * 5 + k
        return a(8 * i + 4 * eh, 4) if i < 32 else v(192 + 8 * (i - 32) + 4 * eh, 4)

    t0, t1, t2, t3 = vT0, vT0 + 1, vT0 + 2, vT0 + 3
    lane_fields(A, vL)
    emit_koffs(A)
    A(f'v_and_b32 {v(t0)}, 15, {v(vL)}')
    A(f'v_lshrrev_b32 {v(t1)}, 4, {v(vL)}')
    sparse_idx(A, vIDX, vL, t2, t3)
    A(f'v_lshlrev_b32 {v(t2)}, 9, {v(t1)}')
    A(f'v_lshl_add_u32 {v(vYX)}, {v(t0)}, 4, {v(t2)}')
    if cfg.get('fused'):
        A('s_lshl_b32 s23, s13, 5')
        A(f's_add_u32 s23, s23, {L.F_AB + 128}')
        flag_wait(A, 's23', 32, 20, sleep=2)
    A(f's_mul_i32 s25, s13, 56')
    A(f's_add_u32 s25, s25, s14')
    A(f's_mul_i32 s25, s25, 28672')
    A(f's_add_u32 s25, s25, {L.WF + L.NB_B * 28672}')
    A(f's_lshl_b32 s28, s13, 15')
    cnt = 0
    for hh in range(4):
        for k in range(7):
            A(f's_lshl_b32 s23, s{16 + k}, 2')
            A(f's_add_u32 s23, s23, s25')
            A(f's_add_u32 s23, s23, {hh * 14 * 28672}')
            for eh in range(2):
                for t in range(2):
                    ht = hh * 2 + t
                    if k >= 5:
                        A(f's_add_u32 s24, s28, {WL + ((ht * 2 + (k - 5)) * 2 + eh) * 1024}')
                        A(f's_mov_b32 m0, s24')
                        A(f's_add_u32 s24, s23, {2048 * eh + 256 * t}')
                        A(f'buffer_load_dwordx4 {v(vYX)}, {SRD}, s24 offen sc1 lds')
                    else:
                        A(f'buffer_load_dwordx4 {Whalf(ht, k, eh)}, {v(vYX)}, {SRD}, s23 offen offset:{2048 * eh + 256 * t} sc1')
                    cnt += 1
                    if cnt % 16 == 0:
                        A('s_waitcnt vmcnt(40)')
    A(f'v_lshlrev_b32 {v(vMA)}, 4, {v(vL)}')
    A(f'v_add_u32 {v(vWL)}, s28, {v(vMA)}')
    A(f'v_add_u32 {v(vYM)}, 0, {v(vMA)}')
    for k in range(7):
        A(f's_add_u32 s23, s{16 + k}, {MIMG}')
        A(f'v_add_u32 {v(vM(k))}, s23, {v(vMA)}')
    A(f'v_add_u32 {v(vMA)}, {L.MEMA}, {v(vMA)}')
    A(f'v_lshrrev_b32 {v(t2)}, 1, {v(t1)}')
    A(f'v_mul_u32_u24 {v(t2)}, 640, {v(t2)}')
    A(f'v_and_b32 {v(t3)}, 1, {v(t1)}')
    A(f'v_lshl_add_u32 {v(t2)}, {v(t3)}, 8, {v(t2)}')
    A(f'v_lshl_add_u32 {v(vP)}, {v(t0)}, 4, {v(t2)}')
    A(f'v_lshrrev_b32 {v(t2)}, 1, {v(t1)}')
    A(f'v_bfe_u32 {v(t3)}, {v(vL)}, 3, 1')
    A(f'v_lshl_add_u32 {v(t2)}, {v(t3)}, 1, {v(t2)}')
    A(f'v_mul_u32_u24 {v(t2)}, 640, {v(t2)}')
    A(f'v_and_b32 {v(t3)}, 7, {v(vL)}')
    A(f'v_lshl_add_u32 {v(t2)}, {v(t3)}, 4, {v(t2)}')
    A(f'v_and_b32 {v(t3)}, 1, {v(t1)}')
    A(f'v_lshl_add_u32 {v(t2)}, {v(t3)}, 3, {v(t2)}')
    A(f'v_add_u32 {v(vP2)}, 512, {v(t2)}')
    A(f's_mul_i32 s23, s13, 3072')
    A(f's_add_u32 s23, s23, {RIMG}')
    A(f'v_mul_u32_u24 {v(t2)}, {4 * 192}, {v(t1)}')
    A(f'v_lshl_add_u32 {v(vRW)}, {v(t0)}, 3, {v(t2)}')
    A(f'v_add_u32 {v(vRW)}, s23, {v(vRW)}')
    A(f'v_lshrrev_b32 {v(t3)}, 3, {v(vL)}')
    A(f'v_and_b32 {v(t2)}, 3, {v(vL)}')
    A(f'v_lshlrev_b32 {v(vSA)}, 2, {v(t2)}')
    A(f'v_lshlrev_b32 {v(t2)}, 1, {v(t2)}')
    A(f'v_bfe_u32 {v(t0)}, {v(vL)}, 2, 1')
    A(f'v_lshl_add_u32 {v(vSA)}, {v(t0)}, 7, {v(vSA)}')
    A(f'v_lshl_add_u32 {v(vSA)}, {v(t3)}, 4, {v(vSA)}')
    A(f'v_add_u32 {v(t2)}, {v(t2)}, {v(t0)}')
    A(f's_and_b32 s23, s13, 1')
    A(f's_lshl_b32 s23, s23, 3')
    A(f'v_add_u32 {v(t0)}, s23, {v(t2)}')
    A(f'v_mul_u32_u24 {v(t2)}, 192, {v(t3)}')
    A(f'v_lshl_add_u32 {v(vRR)}, {v(t0)}, 3, {v(t2)}')
    A(f'v_add_u32 {v(vRR)}, {RIMG}, {v(vRR)}')
    A(f's_lshl_b32 s23, s14, 9')
    A(f's_and_b32 s24, s13, 1')
    A(f's_lshl_b32 s24, s24, 8')
    A(f's_add_u32 s24, s24, s23')
    A(f'v_add_u32 {v(vSA)}, s24, {v(vSA)}')
    A(f'v_lshlrev_b32 {v(vSK)}, 4, {v(t3)}')
    A(f'v_lshrrev_b32 {v(t2)}, 2, {v(t0)}')
    A(f'v_lshl_add_u32 {v(vSK)}, {v(t2)}, 7, {v(vSK)}')
    A(f'v_and_b32 {v(t2)}, 3, {v(t0)}')
    A(f'v_lshl_add_u32 {v(vSK)}, {v(t2)}, 2, {v(vSK)}')
    A(f'v_add_u32 {v(vSK)}, s23, {v(vSK)}')
    A(f's_cmp_ge_u32 s13, 2')
    A(f's_cselect_b32 s23, 0x40000000, 0')
    A(f'v_add_u32 {v(vSK)}, s23, {v(vSK)}')
    A(f's_mul_i32 s24, s13, {4 * 640}')
    A(f's_add_u32 s24, s24, {L.PBUF}')
    A(f's_mul_i32 s25, s13, 56')
    A(f's_add_u32 s25, s25, s14')
    A(f's_lshl_b32 s25, s25, 11')
    A(f's_add_u32 s25, s25, {L.YF}')
    A(f's_mov_b32 s26, {L.MEMA + 8192}')
    A(f's_mov_b32 s29, {L.MEMX}')
    A(f's_lshl_b32 s31, s14, 2')
    A(f's_add_u32 s31, s31, s13')
    A(f's_lshl_b32 s31, s31, 11')
    A(f's_add_u32 s31, s31, {L.YM}')
    NTA = cfg.get('ntouch', 2)
    NT = cfg.get('ntouchB', 0)
    A(f's_mul_i32 s34, s14, {NT}')
    A(f's_add_u32 s34, s34, {16 * NTA}')
    A(f's_add_u32 s34, s34, s13')
    A(f's_min_u32 s34, s34, 55')
    A(f's_lshl_b32 s34, s34, 13')
    A(f's_add_u32 s34, s34, {L.YF + cfg.get("pfdist", 2) * 16 * 28672}')
    A(f'v_lshlrev_b32 {v(vPF)}, 7, {v(vL)}')
    A(f's_cmp_ge_u32 s13, {NT}')
    A(f's_cselect_b32 s23, 0x40000000, 0')
    A(f'v_add_u32 {v(vPF)}, s23, {v(vPF)}')
    A(f's_mov_b32 s15, 0')
    A(f's_mov_b32 s35, 0x40000000')
    if cfg.get('stamps'):
        A(f's_add_u32 s32, s14, 16')
        A(f's_lshl_b32 s32, s32, 2')
        A(f's_add_u32 s32, s32, s13')
        A(f's_lshl_b32 s32, s32, 12')
        A(f's_add_u32 s32, s32, {L.STAMP}')
    vNON, vF0 = 178, 180
    A(f'v_mov_b32 {v(vNON)}, s96')
    A(f'v_mov_b32 {v(vNON + 1)}, s97')
    A(f'v_mov_b32 {v(t2)}, 0x40000000')
    A(f'v_cmp_eq_u32 vcc, 0, {v(vL)}')
    A(f'v_cndmask_b32 {v(vF0)}, {v(t2)}, {v(vL)}, vcc')
    A('s_lshl_b32 s27, s14, 2')
    A('s_add_u32 s27, s27, s13')
    A('s_lshl_b32 s27, s27, 3')
    A(f's_add_u32 s27, s27, {L.FLAGS + 8 * L.F_YM - 2 * 56 * 8}')
    ymflag = lambda sreg: f'buffer_store_dwordx2 {v(vNON, 2)}, {v(vF0)}, {SRD}, {sreg} offen sc1'
    vOUT = vT0 + 5
    A(f'v_mov_b32 {v(vOUT)}, 0')
    for r in range(8):
        A(f'v_mov_b32 {v(YB(0) + r)}, 0')

    def yx_list():
        out = []
        for k in range(2):
            for eh in range(2):
                for t in range(2):
                    out.append([f's_add_u32 s23, s25, {(2 * k + eh) * 14 * 2048}',
                                f'buffer_load_dwordx4 {v(YX(k, t) + 4 * eh, 4)}, {v(vYX)}, {SRD}, s23 offen offset:{256 * t} sc1'])
        return out

    def ym_list(sreg):
        return [[f'buffer_store_dwordx4 {v(YB(t), 4)}, {v(vYM)}, {SRD}, {sreg} offen offset:{t * 1024} sc1'] for t in range(2)]

    A('s_waitcnt vmcnt(0)')
    tl(A, cfg, 's14', 1, vT0 + 2, 0x18400)
    dbgmax(A, cfg, 7, vT0 + 2)
    start_gate(A, cfg, M(0))
    tl(A, cfg, 's14', 2, vT0 + 2, 0x18400)
    top = A.newlabel('B_top')
    mpoll = A.newlabel('B_mpoll')
    ppoll = A.newlabel('B_ppoll')
    nxt = A.newlabel('B_next')
    fin = A.newlabel('B_fin')
    A.label(top)
    A.forget()
    A(f's_waitcnt vmcnt({15 if cfg.get("stamps") else 1})')
    zero = [f'v_mov_b32 {v(YACC(0, 0) + r)}, 0' for r in range(32)] + [f'v_mov_b32 {v(OACC(0) + r)}, 0' for r in range(8)]
    if cfg.get('yxearly'):
        for x in yx_list():
            for y in x:
                A(y)
    ZP = cfg.get('zpre', 12)
    for x in zero[:ZP]:
        A(x)
    ldsq = [(hh * 2 + t, k) for t in range(2) for pr in range(2) for k in (5, 6) for hh in (2 * pr, 2 * pr + 1)]

    def wlread(j):
        ht, k = ldsq[j]
        for eh in range(2):
            A(f'ds_read_b128 {v(ST(j & 3) + 4 * eh, 4)}, {v(vWL)} offset:{((ht * 2 + (k - 5)) * 2 + eh) * 1024}')
    for j in range(4):
        wlread(j)
    if cfg.get('bsleep', 0):
        A(f's_sleep {cfg["bsleep"]}')
    MS = lambda r: (M(0) if r == 0 else M2)
    A(f's_add_u32 s36, s31, s35')

    def missue(r):
        for k in range(2):
            A(f'buffer_load_dwordx4 {v(MS(r) + 4 * k, 4)}, {v(vMA)}, {SRD}, s{16 + k} offen sc1')
    mv0, mv1, mcommon = A.newlabel('B_mv0'), A.newlabel('B_mv1'), A.newlabel('B_mc')
    missue(0)
    for x in zero[ZP:]:
        A(x)
    A.label(mpoll, keep=True)
    guard(A)
    missue(1)
    check_regs(A, t0, [MS(0) + i for i in range(8)])
    A(f's_cbranch_vccz {mv0}')
    missue(0)
    check_regs(A, t0, [MS(1) + i for i in range(8)])
    A(f's_cbranch_vccnz {mpoll}')
    lgsnap = [set(x) for x in A.lg]

    def allmem():
        ld_ = yx_list() if not (cfg.get('noyx') or cfg.get('yxearly')) else []
        st_ = ym_list('s36') if not cfg.get('noym') else []
        return st_ + ld_ if cfg.get('stfirst') else ld_ + st_
    left = []

    def mvariant(r):
        A.vm = [set(('v', MS(1 - r) + i) for i in range(8))]
        A.lg = [set(x) for x in lgsnap]
        A.smem_out = []
        stamp(A, cfg, 0)
        vmem = allmem()
        for i, (ht, k) in enumerate([(ht, k) for k in range(2) for ht in range(8)]):
            A(f'v_smfmac_f32_16x16x64_bf16 {v(YACC(ht >> 1, ht & 1), 4)}, {v(MS(r) + 4 * k, 4)}, {W(ht, k)}, {v(vIDX)}')
            if i < 2:
                A(f'ds_write_b128 {v(vM(i))}, {v(MS(r) + 4 * i, 4)}')
            if i == 4:
                A('s_waitcnt lgkmcnt(0)')
                A('s_barrier')
            if 4 <= i < 9:
                A(f'ds_read_b128 {v(M(i - 2), 4)}, {v(vM(i - 2))}')
            if i >= 5 and (i - 5) % cfg.get('vgap', 2) == 0 and vmem:
                for x in vmem.pop(0):
                    A(x)
            if i == 4:
                stamp(A, cfg, 8)
        left[:] = vmem
    A.label(mv1, keep=True)
    mvariant(1)
    A(f's_branch {mcommon}')
    align(A, cfg, 'alBm')
    A.label(mv0)
    mvariant(0)
    A.label(mcommon, keep=True)
    A.vm = [set(('v', M(0) + i) for i in range(8)) | set(('v', M2 + i) for i in range(8)) | set(('v', YX(0, 0) + i) for i in range(32))]
    mem = list(left)
    if NT:
        mem += [[f'buffer_load_dword {v(vDUM)}, {v(vPF)}, {SRD}, s34 offen']]
    seq = []
    groups = [(pr, t) for t in range(2) for pr in range(2)]
    for pr, t in groups:
        ha, hb = (2 * pr) * 2 + t, (2 * pr + 1) * 2 + t
        seq += [(ha, 5), (ha, 2), (hb, 2), (hb, 5), (ha, 3), (ha, 6), (hb, 3), (ha, 4), (hb, 6), (hb, 4)]
    assert [x for x in seq if x[1] >= 5] == ldsq
    lj = 0
    vq = []
    dq = []
    GAP = cfg.get('bmemgap', 2)

    def gpost(pr, t):
        Ya, Yb = YACC(2 * pr, t), YACC(2 * pr + 1, t)
        ops = [f'v_permlane32_swap_b32 {v(Ya + r)}, {v(Yb + r)}' for r in range(4)]
        ops += [f'v_add_f32 {v(Ya + r)}, {v(Ya + r)}, {v(Yb + r)}' for r in range(4)]
        ops += [f'v_cvt_pk_bf16_f32 {v(YB(t) + 2 * p + pr)}, {v(Ya + 2 * p)}, {v(Ya + 2 * p + 1)}' for p in range(2)]
        return ops
    sani = [f'v_min_u32 {v(YB(0) + r)}, -2, {v(YB(0) + r)}' for r in range(8)]
    for i, (ht, k) in enumerate(seq):
        if i % 10 == 0:
            stamp(A, cfg, 9 + i // 10)
        if k >= 5:
            A.auto(f'v_smfmac_f32_16x16x64_bf16 {v(YACC(ht >> 1, ht & 1), 4)}, {v(M(k), 4)}, {v(ST(lj & 3), 8)}, {v(vIDX)}')
            if lj + 4 < 16:
                h2, k2 = ldsq[lj + 4]
                for eh in range(2):
                    dq.append(f'ds_read_b128 {v(ST(lj & 3) + 4 * eh, 4)}, {v(vWL)} offset:{((h2 * 2 + (k2 - 5)) * 2 + eh) * 1024}')
            lj += 1
        else:
            A.auto(f'v_smfmac_f32_16x16x64_bf16 {v(YACC(ht >> 1, ht & 1), 4)}, {v(M(k), 4)}, {W(ht, k)}, {v(vIDX)}')
        if i % 10 == 9:
            vq += gpost(*groups[i // 10])
        if dq:
            A(dq.pop(0))
        if i >= cfg.get('yxstart', 0) and i % GAP == 0 and mem:
            for x in mem.pop(0):
                A(x)
        if vq and A.pad_needed(vq[0]) == 0:
            A(vq.pop(0))
    assert not mem and not dq
    stamp(A, cfg, 13)
    for o in vq:
        A(o)
    A(f's_cmp_eq_u32 s15, 0')
    A(f's_cselect_b32 s23, 0, {14 * 4 * 2048}')
    A(f's_add_u32 s31, s31, s23')
    A(f's_mov_b32 s35, 0')
    A(f's_add_u32 s27, s27, {56 * 8}')
    A(f's_add_u32 s25, s25, {16 * 28672}')
    A(f's_add_u32 s34, s34, {16 * 28672}')
    stamp(A, cfg, 1)
    A(f's_cmp_eq_u32 s15, {NSTEP}')
    A(f's_cbranch_scc1 {fin}')
    A('s_waitcnt vmcnt(0)')
    mid_gate(A, cfg, vT0)
    stamp(A, cfg, 5)
    if cfg.get('psleep', 0):
        A(f's_sleep {cfg["psleep"]}')

    def pissue(r):
        A(f'buffer_load_dwordx4 {v(P(r, 0), 4)}, {v(vP)}, {SRD}, s24 offen sc1')
        A(f'buffer_load_dwordx4 {v(P(r, 1), 4)}, {v(vP)}, {SRD}, s24 offen offset:1280 sc1')
        A(f'buffer_load_dwordx2 {v(P(r, 2), 2)}, {v(vP2)}, {SRD}, s24 offen sc1')
    var0 = A.newlabel('B_var0')
    var1 = A.newlabel('B_var1')
    common = A.newlabel('B_common')
    redo = A.newlabel('B_redo')

    def quick(r):
        keepalive(A, vDUM + 1, cfg.get('kbp', 0), cfg)
        A('s_waitcnt vmcnt(3)')
        A(f'v_max3_u32 {v(t0)}, {v(P(r, 0) + 3)}, {v(P(r, 1) + 3)}, {v(P(r, 2) + 1)}')
        A(f'v_cmp_eq_u32 vcc, -1, {v(t0)}')
    A.label(redo, keep=True)
    pissue(0)
    keepalive(A, vDUM + 1, cfg.get('pgapB', 20), {})
    align(A, cfg, 'alBp')
    A.label(ppoll, keep=True)
    guard(A)
    pissue(1)
    quick(0)
    A(f's_cbranch_vccz {var0}')
    pissue(0)
    quick(1)
    A(f's_cbranch_vccnz {ppoll}')
    bad = A.newlabel('B_bad')

    def variant(r):
        A.vm = [set(('v', P(1 - r, 0) + i) for i in range(12))]
        A.lg = []
        A.smem_out = []
        stamp(A, cfg, 2)
        Q = P(r, 0)
        full = [f'v_max3_u32 {v(t0)}, {v(Q)}, {v(Q + 1)}, {v(Q + 2)}', f'v_max3_u32 {v(t0)}, {v(t0)}, {v(Q + 4)}, {v(Q + 5)}',
                f'v_max3_u32 {v(t0)}, {v(t0)}, {v(Q + 6)}, {v(Q + 8)}',
                f'v_cmp_eq_u32 vcc, -1, {v(t0)}']
        for k in range(3):
            for t in range(2):
                if k < 2:
                    A(f'v_smfmac_f32_16x16x64_bf16 {v(OACC(t), 4)}, {v(P(r, k), 4)}, {v(YX(k, t), 8)}, {v(vIDX)}')
                else:
                    A(f'v_smfmac_f32_16x16x32_bf16 {v(OACC(t), 4)}, {v(P(r, k), 2)}, {v(YB(t), 4)}, {v(vIDX)}')
        for x in full[:2]:
            A(x)
        for rr in range(4):
            A(f'ds_write2_b32 {v(vRW)}, {v(OACC(0) + rr)}, {v(OACC(1) + rr)} offset0:{rr * 48} offset1:{rr * 48 + 1}')
        for x in full[2:]:
            A(x)
        A(f's_cbranch_vccnz {bad}')
    A.label(var1)
    variant(1)
    A(f's_branch {common}')
    A.label(bad)
    A('s_waitcnt vmcnt(0) lgkmcnt(0)')
    A('s_nop 7')
    for r in range(8):
        A(f'v_mov_b32 {v(OACC(0) + r)}, 0')
    A(f's_branch {redo}')
    align(A, cfg, 'alB0')
    A.label(var0)
    variant(0)
    A.label(common, keep=True)
    A.vm = [set(('v', P(0, 0) + i) for i in range(24))]
    A('s_cmp_ge_u32 s13, 2')
    keepalive(A, vDUM + 1, cfg.get('kb1', 0), cfg)
    stamp(A, cfg, 6)
    warm_mfma(A, ST(0), cfg)
    A('s_waitcnt lgkmcnt(0)')
    A('s_barrier')
    stamp(A, cfg, 7)
    A(f's_cbranch_scc1 {nxt}')
    R = lambda w: YACC(0, 0) + 4 * w
    for w in range(4):
        A(f'ds_read2st64_b64 {v(R(w), 4)}, {v(vRR)} offset0:{6 * w} offset1:{6 * w + 3}')
    keepalive(A, vDUM + 1, cfg.get('kb2', 3), cfg)
    A(f'v_mov_b32 {v(t1)}, -2')
    A.auto(f'v_pk_add_f32 {v(R(0), 2)}, {v(R(0), 2)}, {v(R(0) + 2, 2)}')
    A.auto(f'v_pk_add_f32 {v(R(1), 2)}, {v(R(1), 2)}, {v(R(1) + 2, 2)}')
    A(f'v_pk_add_f32 {v(R(0), 2)}, {v(R(0), 2)}, {v(R(1), 2)}')
    A.auto(f'v_pk_add_f32 {v(R(2), 2)}, {v(R(2), 2)}, {v(R(2) + 2, 2)}')
    A(f'v_pk_add_f32 {v(R(0), 2)}, {v(R(0), 2)}, {v(R(2), 2)}')
    A.auto(f'v_pk_add_f32 {v(R(3), 2)}, {v(R(3), 2)}, {v(R(3) + 2, 2)}')
    A(f'v_pk_add_f32 {v(R(0), 2)}, {v(R(0), 2)}, {v(R(3), 2)}')
    A(f'v_cvt_pk_bf16_f32 {v(vOUT)}, {v(R(0))}, {v(R(0) + 1)}')
    A(f'v_min_u32 {v(vOUT)}, {v(vOUT)}, {v(t1)}')
    A.label(nxt, keep=True)
    A(f's_cselect_b32 s23, 0x40000000, s26')
    dual_store(A, f'buffer_store_dword {v(vOUT)}, {v(vSA)}, {SRD}, s23 offen')
    stamp(A, cfg, 3)
    rstamp(A, cfg, 4)
    if not cfg.get('nohold'):
        A('s_barrier')
    stamp_flush(A, cfg, 14, 32, vT0 + 2)
    A(f'v_add_u32 {v(vMA)}, 8192, {v(vMA)}')
    A(f's_add_u32 s24, s24, 16384')
    A(f's_add_u32 s26, s26, 8192')
    A(f's_add_u32 s15, s15, 1')
    A(f's_branch {top}')
    A.label(fin)
    for x in ym_list('s31'):
        A(x[0])
    A('s_waitcnt vmcnt(0)')
    A(ymflag('s27'))
    A(f's_add_u32 s27, s27, {56 * 8}')
    A(ymflag('s27'))
    A('s_endpgm')
    flush_deferred(A)


def emit_C(A, cfg):
    NT = cfg.get('ntouch', 2)
    D = cfg.get('cdist', 3)
    first = min(16 * NT + 14 * cfg.get('ntouchB', 0), 56)
    nrounds = (56 - first + 7) // 8
    vL, vPF, vPL, vD, vLW, vLR, vST, t0, t1 = 1, 2, 3, 4, 5, 6, 7, 8, 9
    Q = 12
    A.pipe_model = False
    lane_fields(A, vL)
    A(f'v_lshlrev_b32 {v(vPF)}, 7, {v(vL)}')
    A('s_lshl_b32 s16, s14, 2')
    A('s_add_u32 s16, s16, s13')
    A('s_cmp_eq_u32 s16, 7')
    A('s_cselect_b32 s19, 0, s16')
    A('s_lshl_b32 s19, s19, 10')
    A(f'v_lshlrev_b32 {v(vST)}, 4, {v(vL)}')
    A('s_lshl_b32 s23, s13, 10')
    A(f'v_add_u32 {v(vLW)}, s23, {v(vST)}')
    A(f'v_lshrrev_b32 {v(t0)}, 4, {v(vL)}')
    A(f'v_lshlrev_b32 {v(vLR)}, 8, {v(t0)}')
    A(f'v_and_b32 {v(t0)}, 7, {v(vL)}')
    A(f'v_lshl_add_u32 {v(vLR)}, {v(t0)}, 4, {v(vLR)}')
    A(f'v_bfe_u32 {v(t0)}, {v(vL)}, 3, 1')
    A(f'v_lshl_add_u32 {v(vLR)}, {v(t0)}, 3, {v(vLR)}')
    A(f'v_add_u32 {v(vLR)}, s23, {v(vLR)}')
    A(f'v_add_u32 {v(vST)}, s19, {v(vST)}')
    A(f'v_add_u32 {v(vPL)}, {L.MEMA + 8192}, {v(vST)}')
    A('s_cmp_eq_u32 s16, 7')
    A(f's_cselect_b32 s19, 0x40000000, 0')
    A(f's_add_u32 s19, s19, {L.MEMX + 8192}')
    A('s_lshl_b32 s17, s16, 13')
    A(f's_add_u32 s17, s17, {L.XF}')
    A('s_mov_b32 s18, 28672')
    A('s_cmp_ge_u32 s16, 4')
    A(f's_cselect_b32 s17, {L.MEMA + 8192}, s17')
    A(f's_cselect_b32 s18, 8192, s18')
    A('s_cmp_eq_u32 s16, 6')
    A(f's_cselect_b32 s17, {L.PBUF}, s17')
    A('s_cmp_eq_u32 s16, 7')
    A(f's_cselect_b32 s17, {L.PBUF + 8192}, s17')
    A('s_cmp_ge_u32 s16, 6')
    A(f's_cselect_b32 s18, 16384, s18')
    for r in range(nrounds):
        A(f's_add_u32 s{24 + r}, s16, {first + 8 * r}')
        A(f's_min_u32 s{24 + r}, s{24 + r}, 55')
        A(f's_lshl_b32 s{24 + r}, s{24 + r}, 13')
        A(f's_add_u32 s{24 + r}, s{24 + r}, {L.YF}')
    start_gate(A, cfg, Q)
    for sg in range(cfg.get('pfdist', 2)):
        for r in range(7):
            A(f's_add_u32 s23, s16, {8 * r}')
            A(f's_lshl_b32 s23, s23, 13')
            A(f's_add_u32 s23, s23, {L.YF + sg * 16 * 28672}')
            A(f'buffer_load_dword {v(vD)}, {v(vPF)}, {SRD}, s23 offen')

    def touches():
        A(f'buffer_load_dword {v(vD)}, {v(vPF)}, {SRD}, s17 offen')
        A('s_add_u32 s17, s17, s18')
        for r in range(nrounds):
            A(f'buffer_load_dword {v(vD)}, {v(vPF)}, {SRD}, s{24 + r} offen')
            A(f's_add_u32 s{24 + r}, s{24 + r}, {16 * 28672}')
    for _ in range(D):
        touches()
    A('s_mov_b32 s15, 1')
    top = A.newlabel('C_top')
    skip = A.newlabel('C_skip')
    A.label(top)
    A.forget()
    guard(A)
    A(f's_sleep 1')
    A(f'buffer_load_dwordx4 {v(Q, 4)}, {v(vPL)}, {SRD}, 0 offen sc1')
    A('s_waitcnt vmcnt(0)')
    check_regs(A, t0, [Q + i for i in range(4)])
    A(f's_cbranch_vccnz {top}')
    A(f'ds_write_b128 {v(vLW)}, {v(Q, 4)}')
    A(f'ds_read2_b32 {v(Q + 4, 2)}, {v(vLR)} offset0:0 offset1:32')
    A(f'ds_read2_b32 {v(Q + 6, 2)}, {v(vLR)} offset0:1 offset1:33')
    A('s_waitcnt lgkmcnt(0)')
    A(f'buffer_store_dwordx4 {v(Q + 4, 4)}, {v(vST)}, {SRD}, s19 offen sc1')
    A(f'v_add_u32 {v(vPL)}, 8192, {v(vPL)}')
    A('s_add_u32 s19, s19, 8192')
    mid_gate(A, cfg, Q)
    A(f's_cmp_gt_u32 s15, {64 - D}')
    A(f's_cbranch_scc1 {skip}')
    touches()
    A.label(skip)
    A('s_add_u32 s15, s15, 1')
    A(f's_cmp_lt_u32 s15, 64')
    A(f's_cbranch_scc1 {top}')
    A('s_endpgm')
```

```python
import sys
from asmdsl import Asm, v, a, s
import layout as L
import gemm as G
import items as I
import prep
import prep2
import chain
from build_multi import KD, srd

SRD = 's[8:11]'
LDSW = 0x24f00
NAME = 'parallel_sum__memory_aug_recurrent_mem_tr__glu_gated_bilinear__prompt_kernel'


def flag_store(A, idx_sreg):
    A(f's_lshl_b32 s38, {idx_sreg}, 3')
    A(f's_add_u32 s38, s38, {L.FLAGS}')
    A('v_mov_b32 v24, s96')
    A('v_mov_b32 v25, s97')
    A(f'buffer_store_dwordx2 v[24:25], v31, {SRD}, s38 offen sc1')


def emit_main(A, cfg):
    XC = cfg.get('xcc', 0)
    tl = chain.tl
    A('s_cmp_ge_u32 s2, 256')
    A('s_cbranch_scc1 L_bail')
    A('s_load_dwordx4 s[4:7], s[0:1], 96')
    A('s_load_dwordx16 s[80:95], s[0:1], 0')
    A('s_load_dwordx8 s[16:23], s[0:1], 64')
    A('s_memrealtime s[98:99]')
    A('v_lshrrev_b32 v1, 6, v0')
    A('v_readfirstlane_b32 s13, v1')
    A('s_mov_b32 s33, 0')
    A('s_getreg_b32 s12, hwreg(HW_REG_XCC_ID)')
    A('s_and_b32 s12, s12, 15')
    A(f'v_mov_b32 v28, {LDSW}')
    A('v_mov_b32 v31, 0')
    A('v_mov_b32 v29, 32')
    A('s_add_u32 s75, s12, 6')
    A('s_mul_hi_u32 s38, s75, 0x24924925')
    A('s_mul_i32 s38, s38, 7')
    A('s_sub_u32 s77, s75, s38')
    A('s_mov_b32 s78, 7')
    G.emit_common_regs(A)
    if cfg.get('codepf', 0):
        A.raw('    s_getpc_b64 s[24:25]')
        A.raw('CODE_PC:')
        A('s_lshr_b32 s26, s2, 3')
        A('s_lshl_b32 s26, s26, 2')
        A('s_add_u32 s26, s26, s13')
        A.raw('    s_cmp_ge_u32 s26, (CODE_END - CODE_PC) / 8192')
        A('s_cbranch_scc1 E_pf')
        A('s_lshl_b32 s26, s26, 13')
        A('v_lshlrev_b32 v4, 7, v1')
        A('v_add_u32 v4, s26, v4')
        A('global_load_dword v247, v4, s[24:25]')
        A.label('E_pf', keep=True)
        A.vm = []
    A('s_waitcnt lgkmcnt(0)')
    srd(A, 8, 6, 7, L.WS_BYTES)
    srd(A, 56, 80, 81, 2048 * 896)
    srd(A, 60, 22, 23, 2048 * 896)
    A('s_mov_b64 s[34:35], s[16:17]')
    A('s_mov_b64 s[36:37], s[18:19]')
    A('s_mov_b64 s[64:65], s[20:21]')
    A('s_mov_b64 s[66:67], s[82:83]')
    tl(A, cfg, 's2', 0, 24, 0x1c000)
    A('s_cmp_lg_u32 s13, 0')
    A('s_cbranch_scc1 E_1')
    A('s_mov_b64 exec, 1')
    A('s_or_b32 s98, s98, 1')
    A('v_mov_b32 v240, s98')
    A('v_mov_b32 v241, s99')
    A('v_mov_b32 v242, 0')
    A('v_mov_b32 v243, 0')
    A('global_atomic_cmpswap_x2 v[244:245], v31, v[240:243], s[4:5] offset:16 sc0')
    A('v_mov_b32 v246, 64')
    A(f's_cmp_eq_u32 s12, {XC}')
    A('s_cbranch_scc0 E_0')
    A('v_mov_b32 v246, 1')
    A('global_atomic_add v246, v31, v246, s[4:5] sc0')
    A.label('E_0')
    A('s_mov_b64 exec, -1')
    A.label('E_1')
    A.forget()
    prep2.ln2_issue(A, 's[56:59]')
    A('s_and_b32 s50, s2, 7')
    A('s_lshl_b32 s50, s50, 2')
    A('s_bfe_u32 s51, s2, 0x20003')
    A('s_add_u32 s50, s50, s51')
    A('s_lshr_b32 s51, s2, 5')
    A('s_lshl_b32 s69, s50, 3')
    A('s_add_u32 s3, s69, s51')
    A('s_and_b32 s53, s50, 15')
    A('s_and_b32 s54, s51, 3')
    A('s_lshr_b32 s55, s51, 2')
    A('s_cmp_ge_u32 s50, 16')
    A('s_cbranch_scc1 E_B')
    srd(A, 68, 84, 85, 448 * 8192)
    srd(A, 72, 86, 87, 448 * 8192)
    prep2.item_ab2(A, 0)
    A('s_branch E_2')
    A.label('E_B')
    A.forget()
    srd(A, 68, 88, 89, 448 * 8192)
    srd(A, 72, 90, 91, 4096 * 896)
    prep2.item_ab2(A, 1)
    A.label('E_2')
    A.forget()
    for r in range(4):
        A(f'v_mov_b32 v{12 + r}, -1')
    A('s_lshl_b32 s50, s2, 2')
    A('s_add_u32 s50, s50, s13')
    A('s_and_b32 s51, s50, 0x2fc')
    A('s_lshl_b32 s50, s50, 11')
    A(f's_add_u32 s50, s50, {L.MEMA}')
    A('s_cmp_eq_u32 s51, 0')
    A('s_cselect_b32 s50, 0x40000000, s50')
    A(f'buffer_store_dwordx4 v[12:15], {v(G.VLIN)}, {SRD}, s50 offen sc1')
    A(f'buffer_store_dwordx4 v[12:15], {v(G.VLIN)}, {SRD}, s50 offen offset:1024 sc1')
    A('s_cmp_ge_u32 s2, 2')
    A('s_cbranch_scc1 E_2b')
    A('s_lshl_b32 s39, s2, 2')
    A('s_add_u32 s39, s39, s13')
    A('s_min_u32 s39, s39, 6')
    srd(A, 68, 66, 67, 8 * 896)
    A('s_nop 1')
    prep.wave_mem0(A, 's[68:71]', ' sc1', 32)
    A.label('E_2b')
    A.forget()
    A('s_mov_b32 s75, s77')
    A('s_mov_b32 s76, s78')
    A('s_waitcnt vmcnt(0)')
    tl(A, cfg, 's2', 1, 24, 0x1c000)
    if cfg.get('tl'):
        A('v_mov_b32 v24, s92')
        A(f'buffer_store_dword v24, v25, {SRD}, s101 offen offset:8')
        A('v_mov_b32 v26, s94')
        A(f'buffer_store_dword v26, v25, {SRD}, s101 offen offset:12')
    A('s_cmp_lg_u32 s13, 0')
    A('s_cbranch_scc1 E_3')
    A('s_mov_b64 exec, 1')
    A('v_cmp_eq_u64 vcc, 0, v[244:245]')
    A('v_cndmask_b32 v244, v244, v240, vcc')
    A('v_cndmask_b32 v245, v245, v241, vcc')
    A('ds_write_b64 v28, v[244:245] offset:8')
    A('ds_write_b32 v28, v246')
    A('s_waitcnt lgkmcnt(0)')
    A('s_mov_b64 exec, -1')
    A.label('E_3')
    A('s_barrier')
    A('ds_read_b64 v[26:27], v28 offset:8')
    A('ds_read_b32 v30, v28')
    A('s_waitcnt lgkmcnt(0)')
    A('v_readfirstlane_b32 s96, v26')
    A('v_readfirstlane_b32 s97, v27')
    A('v_readfirstlane_b32 s14, v30')
    A('s_cmp_lg_u32 s13, 0')
    A('s_cbranch_scc1 E_4')
    A('s_mov_b64 exec, 1')
    A(f's_add_u32 s69, s3, {L.F_AB}')
    flag_store(A, 's69')
    A(f's_add_u32 s69, s2, {L.F_LN}')
    flag_store(A, 's69')
    A('s_mov_b64 exec, -1')
    A.label('E_4')
    A.forget()
    chain.dbgmax(A, cfg, 12, 24, ('s2', 77))
    A('s_branch CL_got')
    A.label('CLAIM')
    A.forget()
    A('s_cmp_lg_u32 s13, 0')
    A('s_cbranch_scc1 CL_w')
    A('s_mov_b64 exec, 1')
    A('v_mov_b32 v30, 1')
    A('global_atomic_add v30, v31, v30, s[4:5] sc0')
    A('s_waitcnt vmcnt(0)')
    A('ds_write_b32 v28, v30')
    A('s_waitcnt lgkmcnt(0)')
    A('s_mov_b64 exec, -1')
    A.label('CL_w')
    A('s_barrier')
    A('ds_read_b32 v30, v28')
    A('s_waitcnt lgkmcnt(0)')
    A('v_readfirstlane_b32 s14, v30')
    A.label('CL_got')
    A('s_barrier')
    A('v_mov_b32 v29, 32')
    A('s_cmp_ge_u32 s14, 32')
    A('s_cbranch_scc1 W_deq')
    A('s_cmp_lg_u32 s13, 0')
    A('s_cbranch_scc1 CL_r')
    A('s_mov_b64 exec, 1')
    A('s_mul_i32 s38, s12, s12')
    A('s_lshl_b32 s38, s38, 9')
    A('s_add_u32 s38, s38, s12')
    A('s_lshl_b32 s38, s38, 6')
    A('s_add_u32 s38, s38, 1')
    A('v_mov_b32 v30, s38')
    A('global_atomic_add v31, v30, s[4:5] offset:8')
    A('s_mov_b64 exec, -1')
    A.label('CL_r')
    A.forget()
    A('s_cmp_ge_u32 s14, 30')
    A('s_cbranch_scc1 L_roleC')
    A('s_cmp_ge_u32 s14, 16')
    A('s_cbranch_scc1 L_roleB')
    chain.emit_A(A, cfg)
    A.label('L_roleB')
    A.forget()
    A('s_sub_u32 s14, s14, 16')
    chain.emit_B(A, cfg)
    A.label('L_roleC')
    A.forget()
    A('s_sub_u32 s14, s14, 30')
    chain.emit_C(A, cfg)
    A.label('L_bail')
    A('s_endpgm')

    def dequeue():
        A('s_lshl_b32 s38, s75, 2')
        A('v_mov_b32 v26, s38')
        A('v_mov_b32 v30, 1')
        A('global_atomic_add v30, v26, v30, s[4:5] offset:128 sc0')

    A.label('W_deq')
    A.forget()
    A('s_cmp_lg_u32 s13, 0')
    A('s_cbranch_scc1 W_f2')
    A('s_mov_b64 exec, 1')
    dequeue()
    A('s_waitcnt vmcnt(0)')
    A('ds_write_b32 v28, v30')
    A('s_waitcnt lgkmcnt(0)')
    A('s_mov_b64 exec, -1')
    A.label('W_f2')
    A('s_barrier')
    A.label('W_next')
    A.forget()
    A('ds_read_b32 v26, v28')
    A('s_waitcnt lgkmcnt(0)')
    A('v_readfirstlane_b32 s68, v26')
    A('s_cmp_eq_u32 s68, -1')
    A('s_cbranch_scc1 W_claim')
    A('s_cmp_eq_u32 s75, 7')
    A('s_cbranch_scc1 W_late')
    c0 = 0
    phases = ((32, 2, 'W_y0', 0), (32, 7, 'W_y', 1), (16, 7, 'W_pk', 0), (56, 1, 'W_pw', 0), (16, 8, 'W_gu', 1), (16, 8, 'W_t1', 1),
              (64, 1, 'W_g2', 1), (16, 8, 'W_t2', 1))
    for ncol, nrow, lab, adv in phases:
        A(f's_add_u32 s70, s75, {(7 - c0 % 7) % 7}')
        A('s_cmp_ge_u32 s70, 7')
        A('s_cselect_b32 s38, 7, 0')
        A('s_sub_u32 s70, s70, s38')
        full, rem = divmod(ncol, 7)
        A(f's_cmp_lt_u32 s70, {rem}')
        A(f's_cselect_b32 s71, {full + 1}, {full}')
        A(f's_cselect_b32 s72, {-(-65536 // (full + 1))}, 0')
        A(f's_cselect_b32 s38, 0, {-(-65536 // full)}')
        A('s_add_u32 s72, s72, s38')
        A(f's_mul_i32 s38, s71, {nrow}')
        A('s_cmp_lt_u32 s68, s38')
        A(f's_cbranch_scc1 {lab}')
        A('s_sub_u32 s68, s68, s38')
        if adv:
            c0 += ncol
    sizes = []
    for x in range(7):
        c0_, tot = 0, 0
        for ncol, nrow, lab, adv in phases:
            f = (x - c0_) % 7
            tot += len(range(f, ncol, 7)) * nrow
            if adv:
                c0_ += ncol
        sizes.append(tot)
    A('v_and_b32 v8, 7, v0')
    A('v_lshlrev_b32 v8, 2, v8')
    A('global_load_dword v9, v8, s[4:5] offset:128 sc1')
    A('v_mov_b32 v10, 0')
    for x in range(7):
        A(f's_mov_b32 s38, {sizes[x]}')
        A(f'v_writelane_b32 v10, s38, {x}')
    A('s_waitcnt vmcnt(0)')
    A('v_cmp_lt_u32 vcc, v9, v10')
    A('s_and_b32 s38, vcc_lo, 0x7f')
    A('s_or_b32 s38, s38, 0x80')
    A('s_ff1_i32_b32 s38, s38')
    A('v_mov_b32 v9, s38')
    A('s_barrier')
    A('s_cmp_lg_u32 s13, 0')
    A('s_cbranch_scc1 W_x1')
    A('ds_write_b32 v28, v9 offset:4')
    A('s_waitcnt lgkmcnt(0)')
    A.label('W_x1')
    A('s_barrier')
    A('ds_read_b32 v9, v28 offset:4')
    A('s_waitcnt lgkmcnt(0)')
    A('v_readfirstlane_b32 s75, v9')
    A('s_branch W_deq')

    def rbct():
        A('s_mul_i32 s73, s68, s72')
        A('s_lshr_b32 s73, s73, 16')
        A('s_mul_i32 s74, s73, s71')
        A('s_sub_u32 s74, s68, s74')
        A('s_mul_i32 s74, s74, 7')
        A('s_add_u32 s74, s74, s70')

    def fw(base, sreg, shift, n, sleep=4):
        A(f's_lshl_b32 s70, {sreg}, {shift}')
        A(f's_add_u32 s70, s70, {base}')
        chain.flag_wait(A, 's70', n, 8, sleep=sleep)

    A.label('W_y0')
    A.forget()
    rbct()
    A('s_lshl_b32 s39, s73, 5')
    A('s_add_u32 s39, s39, s74')
    A(f's_add_u32 s69, s39, {L.F_Y0}')
    tl(A, cfg, 's69', 0, 24)
    fw(L.F_LN, 's73', 4, 16)
    fw(L.F_AB + 128, 's74', 2, 4)
    I.item_y0(A)
    chain.dbgmax(A, cfg, 14, 24, ('s39', 40))
    A('s_branch W_end')
    A.label('W_t2')
    A('s_add_u32 s70, s70, 16')
    for lab, kind, sh, fb, add in (('W_t1', 'T', 5, L.F_T, 0), ('W_y', 'Y', 5, L.F_Y, 1), ('W_gu', 'GU', 4, L.F_GU, 0)):
        A.label(lab)
        A.forget()
        rbct()
        if add:
            A(f's_add_u32 s73, s73, {add}')
        A(f's_lshl_b32 s39, s73, {sh}')
        A('s_add_u32 s39, s39, s74')
        A(f's_add_u32 s69, s39, {fb}')
        tl(A, cfg, 's69', 0, 24)
        fw(L.F_LN, 's73', 5, 32)
        if kind == 'GU':
            A('s_mul_i32 s74, s74, 7')
            fw(L.F_PK, 's74', 0, 7)
        else:
            fw(L.F_AB + (128 if kind == 'Y' else 0), 's74', 2, 4)
        I.item_gemm1(A, kind)
        A('s_branch W_end')
    A.label('W_pk')
    A.forget()
    rbct()
    A('s_mul_i32 s74, s74, 7')
    A('s_add_u32 s74, s74, s73')
    A(f's_add_u32 s43, s74, {L.F_PK}')
    A('s_lshl_b32 s39, s74, 2')
    A('s_add_u32 s39, s39, s13')
    A('s_mov_b64 s[46:47], s[74:75]')
    srd(A, 68, 34, 35, 448 * 3584)
    srd(A, 72, 36, 37, 448 * 3584)
    prep.wave_pack(A, 'GU', 7, ' sc1')
    A('s_mov_b64 s[74:75], s[46:47]')
    A('s_mov_b32 s69, s43')
    A('s_barrier')
    A('s_branch W_end')
    A.label('W_pw')
    A.forget()
    rbct()
    A(f's_add_u32 s43, s74, {L.F_PK + 112}')
    A('s_lshl_b32 s39, s74, 2')
    A('s_add_u32 s39, s39, s13')
    srd(A, 68, 64, 65, 1792 * 896)
    prep.wave_pack(A, 'WD', 7, ' sc1', 's[68:71]')
    A('s_mov_b32 s69, s43')
    A('s_barrier')
    A('s_branch W_end')
    A.label('W_g2')
    A.forget()
    rbct()
    A('s_mov_b32 s39, s74')
    A(f's_add_u32 s69, s39, {L.F_G2}')
    tl(A, cfg, 's69', 0, 24)
    chain.flag_wait(A, L.F_PK + 112, 56, 8, sleep=8)
    A('s_lshr_b32 s70, s39, 3')
    A('s_lshl_b32 s70, s70, 4')
    A('s_and_b32 s38, s39, 1')
    A('s_lshl_b32 s38, s38, 3')
    A('s_add_u32 s70, s70, s38')
    A(f's_add_u32 s70, s70, {L.F_GU}')
    chain.flag_wait(A, 's70', 8, 8, sleep=16)
    I.item_gemm2(A)
    chain.dbgmax(A, cfg, 15, 24, ('s39', 60))
    A('s_branch W_end')
    A.label('W_late')
    A.forget()
    LAG = cfg.get('lag', 5)
    A('s_cmp_eq_u32 s78, 0')
    A('s_cbranch_scc1 W_l2')
    chain.flag_wait_multi(A, [L.F_LN, L.F_LN + 64, L.F_LN + 128, L.F_LN + 192], 8)
    A('s_mov_b32 s78, 0')
    A.label('W_l2')
    A.forget()
    A(f's_cmp_ge_u32 s68, {(64 + LAG) * 11}')
    A('s_cbranch_scc1 L_bail')
    A('s_mul_hi_u32 s71, s68, 0x1745d175')
    A('s_mul_i32 s38, s71, 11')
    A('s_sub_u32 s72, s68, s38')
    A('s_cmp_ge_u32 s72, 4')
    A('s_cbranch_scc1 W_pv')
    A('s_cmp_ge_u32 s71, 64')
    A('s_cbranch_scc1 W_skip')
    A('s_lshl_b32 s39, s71, 2')
    A('s_add_u32 s39, s39, s72')
    A(f's_add_u32 s69, s39, {L.F_P}')
    tl(A, cfg, 's69', 0, 24)
    A('s_lshr_b32 s70, s71, 3')
    A('s_lshl_b32 s70, s70, 5')
    A('s_lshl_b32 s38, s72, 3')
    A('s_add_u32 s70, s70, s38')
    A(f's_add_u32 s70, s70, {L.F_T}')
    chain.flag_wait(A, 's70', 8, 8, sleep=16)
    I.item_punit(A)
    A('s_branch W_end')
    A.label('W_skip')
    A('s_barrier')
    A('s_branch W_deq')
    A.label('W_pv')
    A.forget()
    A(f's_cmp_lt_u32 s71, {LAG}')
    A('s_cbranch_scc1 W_skip')
    A(f's_sub_u32 s71, s71, {LAG}')
    A('s_mul_i32 s39, s71, 7')
    A('s_add_u32 s39, s39, s72')
    A('s_sub_u32 s39, s39, 4')
    A(f's_add_u32 s69, s39, {L.F_PV}')
    tl(A, cfg, 's69', 0, 24)
    A('s_lshr_b32 s70, s71, 3')
    A('s_lshl_b32 s70, s70, 5')
    A('s_lshr_b32 s38, s71, 2')
    A('s_lshl_b32 s38, s38, 5')
    A(f's_add_u32 s38, s38, {L.F_Y0}')
    A('s_cmp_lt_u32 s71, 8')
    A('s_cselect_b32 s70, s38, s70')
    chain.flag_wait(A, 's70', 32, 8, sleep=16)
    A('s_lshr_b32 s70, s71, 2')
    A('s_lshl_b32 s70, s70, 2')
    A(f's_add_u32 s70, s70, {L.F_G2}')
    chain.flag_wait(A, 's70', 4, 8, sleep=16)

    def wait_px(A):
        I.approach(A, 's71', 12, 0)
        A('s_cmp_ge_u32 s71, 62')
        A('s_cbranch_scc1 W_ymf')
        A('s_add_u32 s38, s71, 2')
        A('s_lshl_b32 s38, s38, 13')
        A('s_lshr_b32 s70, s54, 1')
        A('s_lshl_b32 s70, s70, 10')
        A('s_add_u32 s38, s38, s70')
        A(f's_add_u32 s38, s38, {L.MEMX}')
        A('v_mov_b32 v12, 0')
        A.label('W_ymp', keep=True)
        I.guard(A)
        A(f'buffer_load_dword v13, v12, {SRD}, s38 offen sc1')
        A('s_waitcnt vmcnt(0)')
        A('v_cmp_eq_u32 vcc, -1, v13')
        A('s_cbranch_vccz W_ymok')
        A('s_sleep 16')
        A('s_branch W_ymp')
        A.label('W_ymf', keep=True)
        chain.flag_wait(A, 's43', 2, 12, sleep=4)
        A.label('W_ymok', keep=True)
        A('s_lshl_b32 s70, s71, 2')
        A(f's_add_u32 s70, s70, {L.F_P}')
        chain.flag_wait(A, 's70', 4, 12, sleep=2)
    def early_deq(A):
        A('s_cmp_lg_u32 s13, 0')
        A('s_cbranch_scc1 W_ed')
        A('s_mov_b64 exec, 1')
        dequeue()
        A('s_mov_b64 exec, -1')
        A.label('W_ed', keep=True)
    I.item_pvunit(A, wait_px, hook=early_deq)
    A.forget()
    chain.dbgmax(A, cfg, 13, 24, ('s39', 447))
    tl(A, cfg, 's69', 1, 24)
    A('s_cmp_lg_u32 s13, 0')
    A('s_cbranch_scc1 W_e2')
    A('s_mov_b64 exec, 1')
    A('ds_write_b32 v28, v30')
    A('s_mov_b64 exec, -1')
    A('s_waitcnt lgkmcnt(0)')
    A('s_barrier')
    A('s_branch W_next')
    A.label('W_end')
    A.forget()
    A('s_cmp_lg_u32 s13, 0')
    A('s_cbranch_scc1 W_e1')
    A('v_readfirstlane_b32 s38, v29')
    A('v_mov_b32 v30, -1')
    A('s_cmp_lt_u32 s38, 32')
    A('s_cbranch_scc1 W_e1')
    A('s_mov_b64 exec, 1')
    dequeue()
    A('s_mov_b64 exec, -1')
    A('global_load_dword v29, v31, s[4:5] sc1')
    A.label('W_e1')
    A('s_waitcnt vmcnt(0)')
    tl(A, cfg, 's69', 1, 24)
    A('s_cmp_lg_u32 s13, 0')
    A('s_cbranch_scc1 W_e2')
    A('s_mov_b64 exec, 1')
    A('ds_write_b32 v28, v30')
    A('s_waitcnt lgkmcnt(0)')
    A('s_barrier')
    flag_store(A, 's69')
    A('s_mov_b64 exec, -1')
    A('s_branch W_next')
    A.label('W_e2')
    A('s_barrier')
    A('s_branch W_next')
    A.label('W_claim')
    A('s_barrier')
    A('s_branch CLAIM')


def build(cfg):
    cfg = dict(cfg)
    cfg['fused'] = 1
    I.CFG.update(cfg)
    prep2.CFG.update(cfg)
    A = Asm()
    cfg.setdefault('ntouch', 4)
    if cfg.get('aslist'):
        A.raw(f'; @launch kernel={NAME} grid=(256,1,1) block=(256,1,1) lds=151552')
    else:
        A.raw('; @launch grid=(256,1,1) block=(256,1,1) lds=151552')
    A.raw('.amdgcn_target "amdgcn-amd-amdhsa--gfx950"\n.text')
    A.raw(f'.globl {NAME}\n.p2align 8\n.type {NAME},@function')
    A.label(NAME)
    emit_main(A, cfg)
    A.raw('CODE_END:')
    A.raw('.section .rodata,"a"')
    A.raw('.p2align 6')
    A.raw(KD.format(name=NAME))
    return A.text()


if __name__ == '__main__':
    cfg = {}
    for kv in sys.argv[2:]:
        k, val = kv.split('=')
        cfg[k] = int(val)
    open(sys.argv[1], 'w').write(build(cfg))
```

```python
from asmdsl import v, a, s
import layout as L

SRD = 's[8:11]'
NSTEP = 63


def stamp(A, cfg, slot):
    if cfg.get('stamps'):
        A(f's_memtime s[{40 + 2 * slot}:{41 + 2 * slot}]')


def rstamp(A, cfg, slot):
    if cfg.get('stamps'):
        A(f's_memrealtime s[{40 + 2 * slot}:{41 + 2 * slot}]')


def stamp_flush(A, cfg, nslots, base_sreg, vt):
    if not cfg.get('stamps'):
        return
    A('s_waitcnt lgkmcnt(0)')
    for k in range(nslots):
        A(f'v_mov_b32 {v(vt)}, s{40 + 2 * k}')
        A(f'v_mov_b32 {v(vt + 1)}, 0')
        A(f'buffer_store_dword {v(vt)}, {v(vt + 1)}, {SRD}, s{base_sreg} offen offset:{4 * k}')
    A(f's_add_u32 s{base_sreg}, s{base_sreg}, 64')


def guard(A):
    A('s_add_u32 s33, s33, 1')
    A('s_cmp_gt_u32 s33, 0x200000')
    A('s_cbranch_scc1 L_bail')


def tl(A, cfg, idx_sreg_or_int, slot, vt, base=0):
    if not cfg.get('tl'):
        return
    A('s_memrealtime s[100:101]')
    A('s_waitcnt lgkmcnt(0)')
    A(f'v_mov_b32 {v(vt)}, s100')
    A(f'v_mov_b32 {v(vt + 1)}, 0')
    if isinstance(idx_sreg_or_int, int):
        A(f's_mov_b32 s101, {L.STAMP + base + idx_sreg_or_int * 16}')
    else:
        A(f's_lshl_b32 s101, {idx_sreg_or_int}, 4')
        A(f's_add_u32 s101, s101, {L.STAMP + base}')
    A(f'buffer_store_dword {v(vt)}, {v(vt + 1)}, {SRD}, s101 offen offset:{slot * 4}')


def dbgmax(A, cfg, word, vt, sel=('s14', 13)):
    if not cfg.get('dbg'):
        return
    sk = A.newlabel('DM')
    A(f's_cmp_lg_u32 {sel[0]}, {sel[1]}')
    A(f's_cbranch_scc1 {sk}')
    A('s_cmp_lg_u32 s13, 3')
    A(f's_cbranch_scc1 {sk}')
    A('s_memrealtime s[100:101]')
    A('s_waitcnt lgkmcnt(0)')
    A('s_sub_u32 s100, s100, s96')
    A(f'v_mov_b32 {v(vt)}, s100')
    A(f'v_mov_b32 {v(vt + 1)}, 0')
    A(f'global_store_dword {v(vt + 1)}, {v(vt)}, s[4:5] offset:{4 * word}')
    A.label(sk, keep=True)


def flag_wait(A, first, n, vt, sleep=8):
    A(f'v_and_b32 {v(vt)}, 63, v0')
    A(f'v_min_u32 {v(vt)}, {n - 1}, {v(vt)}')
    A(f'v_lshlrev_b32 {v(vt)}, 3, {v(vt)}')
    if isinstance(first, int):
        A(f's_mov_b32 s38, {L.FLAGS + 8 * first}')
    else:
        A(f's_lshl_b32 s38, {first}, 3')
        A(f's_add_u32 s38, s38, {L.FLAGS}')
    lab, ok = A.newlabel('FW'), A.newlabel('FWok')
    A.label(lab, keep=True)
    guard(A)
    A(f'buffer_load_dwordx2 {v(vt + 2, 2)}, {v(vt)}, {SRD}, s38 offen sc1')
    A('s_waitcnt vmcnt(0)')
    A(f'v_cmp_ne_u64 vcc, s[96:97], {v(vt + 2, 2)}')
    A(f's_cbranch_vccz {ok}')
    A(f's_sleep {sleep}')
    A(f's_branch {lab}')
    A.label(ok, keep=True)


def flag_wait_multi(A, firsts, vt, sleep=4):
    A(f'v_and_b32 {v(vt)}, 63, v0')
    A(f'v_lshlrev_b32 {v(vt)}, 3, {v(vt)}')
    lab, ok = A.newlabel('FM'), A.newlabel('FMok')
    A.label(lab, keep=True)
    guard(A)
    for i, f in enumerate(firsts):
        A(f's_mov_b32 s38, {L.FLAGS + 8 * f}')
        A(f'buffer_load_dwordx2 {v(vt + 2 + 2 * i, 2)}, {v(vt)}, {SRD}, s38 offen sc1')
    A('s_waitcnt vmcnt(0)')
    A('s_mov_b64 s[40:41], 0')
    for i in range(len(firsts)):
        A(f'v_cmp_ne_u64 vcc, s[96:97], {v(vt + 2 + 2 * i, 2)}')
        A('s_or_b64 s[40:41], s[40:41], vcc')
    A(f's_cbranch_scc0 {ok}')
    A(f's_sleep {sleep}')
    A(f's_branch {lab}')
    A.label(ok, keep=True)


def loaded_flag(A, cfg, add, vt):
    if not cfg.get('fused'):
        return
    sk = A.newlabel('LF')
    A('s_cmp_lg_u32 s13, 3')
    A(f's_cbranch_scc1 {sk}')
    A(f's_add_u32 s38, s14, {L.F_INIT + add}')
    A('s_lshl_b32 s38, s38, 3')
    A(f's_add_u32 s38, s38, {L.FLAGS}')
    A(f'v_mov_b32 {v(vt)}, s96')
    A(f'v_mov_b32 {v(vt + 1)}, s97')
    A(f'v_mov_b32 {v(vt + 2)}, 0')
    A('s_mov_b64 exec, 1')
    A(f'buffer_store_dwordx2 {v(vt, 2)}, {v(vt + 2)}, {SRD}, s38 offen sc1')
    A('s_mov_b64 exec, -1')
    A.label(sk, keep=True)


def soft_wait(A, first, n, vt, maxpolls, sleep):
    A(f'v_and_b32 {v(vt)}, 63, v0')
    A(f'v_min_u32 {v(vt)}, {n - 1}, {v(vt)}')
    A(f'v_lshlrev_b32 {v(vt)}, 3, {v(vt)}')
    A(f's_mov_b32 s38, {L.FLAGS + 8 * first}')
    A(f's_mov_b32 s40, {maxpolls}')
    lab, ok = A.newlabel('SW'), A.newlabel('SWok')
    A.label(lab, keep=True)
    A(f'buffer_load_dwordx2 {v(vt + 2, 2)}, {v(vt)}, {SRD}, s38 offen sc1')
    A('s_waitcnt vmcnt(0)')
    A(f'v_cmp_ne_u64 vcc, s[96:97], {v(vt + 2, 2)}')
    A(f's_cbranch_vccz {ok}')
    A(f's_sleep {sleep}')
    A('s_sub_u32 s40, s40, 1')
    A('s_cmp_lg_u32 s40, 0')
    A(f's_cbranch_scc1 {lab}')
    A.label(ok, keep=True)


def fill_share(A, base, kb_per_wave, widx_sreg, vt, vlin):
    for r in range(4):
        A(f'v_mov_b32 {v(vt + r)}, -1')
    A(f's_mul_i32 s38, {widx_sreg}, {kb_per_wave * 1024}')
    A(f's_add_u32 s38, s38, {base}')
    for k in range(kb_per_wave):
        if k and k % 4 == 0:
            A('s_add_u32 s38, s38, 4096')
        A(f'buffer_store_dwordx4 {v(vt, 4)}, {v(vlin)}, {SRD}, s38 offen offset:{(k & 3) * 1024} sc1')


def start_gate(A, cfg, vt, ranges=None):
    if not cfg.get('fused'):
        A('s_mov_b32 s12, 0')
        return
    firsts = ranges or [L.F_Y0, L.F_LN, L.F_LN + 64, L.F_LN + 128, L.F_LN + 192]
    A(f'v_and_b32 {v(vt)}, 63, v0')
    A(f'v_lshlrev_b32 {v(vt)}, 3, {v(vt)}')
    A(f'v_mov_b32 {v(vt + 1)}, 0')
    lab, ok, again = A.newlabel('SG'), A.newlabel('SGok'), A.newlabel('SGa')
    A.label(lab, keep=True)
    guard(A)
    for i, f in enumerate(firsts):
        A(f's_mov_b32 s38, {L.FLAGS + 8 * f}')
        A(f'buffer_load_dwordx2 {v(vt + 2 + 2 * i, 2)}, {v(vt)}, {SRD}, s38 offen sc1')
    A(f'global_load_dword {v(vt + 14)}, {v(vt + 1)}, s[4:5] offset:8 sc1')
    A('s_waitcnt vmcnt(0)')
    A(f'v_readfirstlane_b32 s12, {v(vt + 14)}')
    A('s_mov_b64 s[40:41], 0')
    for i in range(len(firsts)):
        A(f'v_cmp_ne_u64 vcc, s[96:97], {v(vt + 2 + 2 * i, 2)}')
        A('s_or_b64 s[40:41], s[40:41], vcc')
    A(f's_cbranch_scc1 {again}')
    A('s_and_b32 s38, s12, 63')
    A('s_cmp_ge_u32 s38, 32')
    A(f's_cbranch_scc1 {ok}')
    A.label(again, keep=True)
    A('s_sleep 3')
    A(f's_branch {lab}')
    A.label(ok, keep=True)
    A('s_bfe_u32 s38, s12, 0x90006')
    A('s_mul_i32 s38, s38, s38')
    A('s_lshr_b32 s12, s12, 15')
    A('s_lshl_b32 s12, s12, 5')
    A('s_cmp_lg_u32 s12, s38')
    A('s_cselect_b32 s12, 1, 0')


def mid_gate(A, cfg, vt, vfl):
    if not cfg.get('fused'):
        return
    skip = A.newlabel('MG')
    A('s_cmp_ge_u32 s39, 0x40000000')
    A(f's_cbranch_scc1 {skip}')
    A('s_waitcnt vmcnt(0)')
    A(f'v_cmp_ne_u64 vcc, s[96:97], {v(vfl, 2)}')
    A(f's_cbranch_vccz {skip}')
    A(f's_sub_u32 s39, s39, {L.FLAGS}')
    A('s_lshr_b32 s39, s39, 3')
    flag_wait(A, 's39', 32, vt, sleep=2)
    A.label(skip, keep=True)


def gate_prep(A, cfg):
    if not cfg.get('fused'):
        A('s_mov_b32 s39, 0x40000000')
        return
    A('s_lshr_b32 s39, s15, 3')
    A('s_add_u32 s39, s39, 1')
    A('s_min_u32 s39, s39, 7')
    A('s_lshl_b32 s39, s39, 8')
    A(f's_add_u32 s39, s39, {L.FLAGS}')
    A('s_and_b32 s38, s15, 7')
    A('s_lshl_b32 s38, s38, 8')
    A('s_add_u32 s38, s38, s31')
    A(f's_cmp_eq_u32 s38, {(4 << 8) + 3}')
    A('s_cselect_b32 s39, s39, 0x40000000')


def dual_prep(A, sreg, sfast, sslow):
    A('s_cmp_eq_u32 s12, 0')
    A(f's_cselect_b32 {sfast}, {sreg}, 0x40000000')
    A(f's_cselect_b32 {sslow}, 0x40000000, {sreg}')


def dual_store(A, fmt, sfast, sslow):
    A(fmt.format(s=sfast))
    A(fmt.format(s=sslow) + ' sc1')


def flush_deferred(A):
    for slow, text, done in A.deferred:
        A.label(slow)
        A.raw('    ' + text)
        A.raw(f'    s_branch {done}')
    A.deferred = []


def align(A, cfg, key, default=0):
    n = cfg.get(key, default)
    if n < 0:
        return
    A.raw('    .p2align 6')
    for _ in range(n // 4):
        A.raw('    s_nop 0')


def lane_fields(A, vl):
    A(f'v_and_b32 {v(vl)}, 63, v0')


def emit_koffs(A):
    A('s_lshl_b32 s23, s13, 1')
    for k in range(7):
        A(f's_add_u32 s{16 + k}, s23, {k}')
        A(f's_cmp_ge_u32 s{16 + k}, 7')
        A(f's_cselect_b32 s24, 7, 0')
        A(f's_sub_u32 s{16 + k}, s{16 + k}, s24')
        A(f's_lshl_b32 s{16 + k}, s{16 + k}, 10')


def warm_vm(A, n, vw, cfg):
    if cfg.get('nowarm'):
        A(f's_waitcnt vmcnt({n})')
        return
    lab = A.newlabel('W')
    A.label(lab, keep=True)
    A(f'v_mov_b32 {v(vw)}, {v(vw)}')
    A(f's_getreg_b32 s38, hwreg(HW_REG_IB_STS, 0, 4)')
    A(f's_cmp_gt_u32 s38, {n}')
    A(f'v_mov_b32 {v(vw)}, {v(vw)}')
    A(f's_cbranch_scc1 {lab}')
    A(f's_waitcnt vmcnt({n})')


def keepalive(A, vw, n, cfg):
    if cfg.get('nowarm'):
        return
    for _ in range(n):
        A(f'v_mov_b32 {v(vw)}, {v(vw)}')


def warm_mfma(A, base, cfg):
    if cfg.get('nowarm'):
        return
    A(f'v_mfma_f32_32x32x16_bf16 {v(base, 16)}, {v(base + 16, 4)}, {v(base + 16, 4)}, {v(base, 16)}')


def check_regs(A, tmp, regs, autowait=True):
    E = A.auto if autowait else A
    E(f'v_max3_u32 {v(tmp)}, {v(regs[0])}, {v(regs[1])}, {v(regs[2])}')
    i = 3
    while i + 1 < len(regs):
        E(f'v_max3_u32 {v(tmp)}, {v(tmp)}, {v(regs[i])}, {v(regs[i + 1])}')
        i += 2
    if i < len(regs):
        E(f'v_max_u32 {v(tmp)}, {v(tmp)}, {v(regs[i])}')
    A(f'v_cmp_eq_u32 vcc, -1, {v(tmp)}')


def sparse_idx(A, vIDX, vL, t2, t3):
    A(f'v_and_b32 {v(t2)}, 8, {v(vL)}')
    A(f'v_cmp_ne_u32 vcc, 0, {v(t2)}')
    A(f'v_mov_b32 {v(t2)}, 0x4444')
    A(f'v_mov_b32 {v(t3)}, 0xeeee')
    A(f'v_cndmask_b32 {v(vIDX)}, {v(t2)}, {v(t3)}, vcc')


def emit_A(A, cfg):
    W5 = 0x0000
    MIMG = 0xE000
    TIMG = 0x10000
    SIMG = 0x14800
    QS = 144
    vL, vIDX, vMA, vMKa, vMKb, vMK3, vW5, vXK, vXK3, vTW, vTW6, vTR, vTR3, vSW, vSR, vPS, vPF = range(1, 18)
    vM = lambda k: 18 + k
    vSW2 = 25
    vT0 = 26
    M = lambda k: 32 + 4 * k
    ACC = lambda n: 60 + 4 * n
    WS5 = lambda b: 88 + 8 * b
    XK = lambda q, t: 112 + 8 * q + 4 * t
    XK3 = lambda t: 136 + 2 * t
    PSET = lambda r: 140 + 8 * r
    MK = lambda q: 140 + 4 * q
    TB = lambda q: (ACC(2 * q) if q < 3 else ACC(6) + 2)
    SACC = lambda t: 156 + 4 * t
    vDUM = 168
    vFL, vFA = 170, 172
    LT = 1
    PORD = [1, 2, 0]
    regtiles = [0, 2, 3, 4, 5, 6]

    def W(n, k):
        i = regtiles.index(n) * 7 + k
        return a(8 * i, 8) if i < 32 else v(176 + 8 * (i - 32), 8)

    def Whalf(n, k, eh):
        i = regtiles.index(n) * 7 + k
        return a(8 * i + 4 * eh, 4) if i < 32 else v(176 + 8 * (i - 32) + 4 * eh, 4)

    t0, t1, t2, t3 = vT0, vT0 + 1, vT0 + 2, vT0 + 3
    A.pipe_model = bool(cfg.get('pipe', 1))
    tl(A, cfg, 's14', 0, 30, 0x18000)
    lane_fields(A, vL)
    emit_koffs(A)
    A(f'v_and_b32 {v(t0)}, 15, {v(vL)}')
    A(f'v_lshrrev_b32 {v(t1)}, 4, {v(vL)}')
    sparse_idx(A, vIDX, vL, t2, t3)
    A(f'v_lshlrev_b32 {v(t2)}, 9, {v(t1)}')
    A(f'v_lshl_add_u32 {v(vPF)}, {v(t0)}, 4, {v(t2)}')
    if cfg.get('fused'):
        A('s_lshl_b32 s23, s14, 3')
        A('s_lshr_b32 s24, s13, 1')
        A('s_lshl_b32 s24, s24, 2')
        A('s_add_u32 s23, s23, s24')
        A(f's_add_u32 s23, s23, {L.F_AB}')
        flag_wait(A, 's23', 4, 32, sleep=2)
    A(f's_mul_i32 s25, s14, {14 * 28672}')
    A(f's_add_u32 s25, s25, {L.WF + L.NB_A * 28672}')
    A(f's_mul_i32 s26, s13, 7')
    A(f's_mul_i32 s28, s13, 14336')
    cnt = 0
    for n in range(7):
        A(f's_add_u32 s23, s26, {n}')
        A(f's_lshr_b32 s24, s23, 1')
        A(f's_mul_i32 s24, s24, 28672')
        A(f's_and_b32 s23, s23, 1')
        A(f's_lshl_b32 s23, s23, 8')
        A(f's_add_u32 s27, s25, s24')
        A(f's_add_u32 s27, s27, s23')
        for k in range(7):
            A(f's_lshl_b32 s23, s{16 + k}, 2')
            A(f's_add_u32 s23, s23, s27')
            for eh in range(2):
                if n == LT:
                    A(f's_add_u32 s24, s28, {W5 + (k * 2 + eh) * 1024}')
                    A(f's_mov_b32 m0, s24')
                    if eh:
                        A(f's_add_u32 s23, s23, 2048')
                    A(f'buffer_load_dwordx4 {v(vPF)}, {SRD}, s23 offen sc1 lds')
                else:
                    A(f'buffer_load_dwordx4 {Whalf(n, k, eh)}, {v(vPF)}, {SRD}, s23 offen offset:{2048 * eh} sc1')
                cnt += 1
                if cnt % 16 == 0:
                    A('s_waitcnt vmcnt(40)')
    A(f'v_lshlrev_b32 {v(vMA)}, 4, {v(vL)}')
    A(f'v_add_u32 {v(vW5)}, s28, {v(vMA)}')
    for k in range(7):
        A(f's_add_u32 s23, s{16 + k}, {MIMG}')
        A(f'v_add_u32 {v(vM(k))}, s23, {v(vMA)}')
    A(f'v_add_u32 {v(vMA)}, {L.MEMA}, {v(vMA)}')
    A(f'v_and_b32 {v(t2)}, 7, {v(vL)}')
    A(f'v_lshlrev_b32 {v(t2)}, 4, {v(t2)}')
    A(f's_mul_i32 s23, s13, {7 * 256}')
    A(f's_add_u32 s23, s23, {MIMG}')
    A(f'v_lshrrev_b32 {v(t3)}, 1, {v(t1)}')
    A(f'v_lshl_add_u32 {v(vMKa)}, {v(t3)}, 8, {v(t2)}')
    A(f'v_and_b32 {v(t3)}, 1, {v(t1)}')
    A(f'v_lshl_add_u32 {v(vMKa)}, {v(t3)}, 3, {v(vMKa)}')
    A(f'v_add_u32 {v(vMKa)}, s23, {v(vMKa)}')
    A(f'v_add_u32 {v(vMKb)}, 1024, {v(vMKa)}')
    A(f'v_lshl_add_u32 {v(vMK3)}, {v(t1)}, 2, {v(t2)}')
    A(f's_add_u32 s23, s23, {6 * 256}')
    A(f'v_add_u32 {v(vMK3)}, s23, {v(vMK3)}')
    A(f'v_and_b32 {v(t2)}, 6, {v(t0)}')
    A(f'v_lshlrev_b32 {v(t2)}, 1, {v(t2)}')
    A(f'v_lshrrev_b32 {v(t3)}, 3, {v(t0)}')
    A(f'v_lshl_add_u32 {v(t2)}, {v(t3)}, 1, {v(t2)}')
    A(f'v_and_b32 {v(t3)}, 1, {v(t0)}')
    A(f'v_add_u32 {v(t2)}, {v(t3)}, {v(t2)}')
    A(f'v_lshlrev_b32 {v(t2)}, 4, {v(t2)}')
    A(f'v_lshl_add_u32 {v(vXK)}, {v(t1)}, 9, {v(t2)}')
    A(f'v_lshrrev_b32 {v(t3)}, 1, {v(t1)}')
    A(f'v_lshl_add_u32 {v(vXK3)}, {v(t3)}, 9, {v(t2)}')
    A(f'v_and_b32 {v(t3)}, 1, {v(t1)}')
    A(f'v_lshl_add_u32 {v(vXK3)}, {v(t3)}, 3, {v(vXK3)}')
    A(f'v_add_u32 {v(vXK3)}, {6 * 1024}, {v(vXK3)}')
    A(f's_lshl_b32 s30, s13, 11')
    A(f's_mul_i32 s23, s13, 4352')
    A(f's_add_u32 s23, s23, {TIMG}')
    def plane(dst, src, tmp):
        A(f'v_lshlrev_b32 {v(dst)}, 10, {v(src)}')
        A(f'v_and_b32 {v(tmp)}, 1, {v(src)}')
        A(f'v_lshl_add_u32 {v(dst)}, {v(tmp)}, 5, {v(dst)}')
        A(f'v_lshrrev_b32 {v(tmp)}, 1, {v(src)}')
        A(f'v_lshl_add_u32 {v(dst)}, {v(tmp)}, 7, {v(dst)}')
    plane(t2, t1, t3)
    A(f'v_lshl_add_u32 {v(vTW)}, {v(t0)}, 3, {v(t2)}')
    A(f'v_add_u32 {v(vTW)}, s23, {v(vTW)}')
    A(f'v_and_b32 {v(vTR)}, 3, {v(vL)}')
    plane(t2, vTR, t3)
    A(f'v_bfe_u32 {v(t3)}, {v(vL)}, 2, 2')
    A(f'v_lshl_add_u32 {v(t2)}, {v(t3)}, 3, {v(t2)}')
    A(f'v_lshl_add_u32 {v(vTR)}, {v(t1)}, 6, {v(t2)}')
    A(f'v_add_u32 {v(vTR)}, s23, {v(vTR)}')
    A(f'v_lshl_add_u32 {v(vTR3)}, {v(t1)}, 5, {v(t2)}')
    A(f'v_add_u32 {v(vTR3)}, {96 * 8}, {v(vTR3)}')
    A(f'v_add_u32 {v(vTR3)}, s23, {v(vTR3)}')
    A(f's_add_u32 s23, s30, {SIMG}')
    A(f'v_lshrrev_b32 {v(t3)}, 3, {v(t0)}')
    A(f'v_lshl_add_u32 {v(t2)}, {v(t3)}, 2, {v(t1)}')
    A(f'v_mul_u32_u24 {v(t2)}, {QS}, {v(t2)}')
    A(f'v_and_b32 {v(vSW2)}, 7, {v(t0)}')
    A(f'v_lshl_add_u32 {v(vSW)}, {v(vSW2)}, 4, {v(t2)}')
    A(f'v_add_u32 {v(vSW)}, s23, {v(vSW)}')
    A(f'v_lshlrev_b32 {v(vSW2)}, 4, {v(vSW2)}')
    A(f'v_lshl_add_u32 {v(vSW2)}, {v(t3)}, 3, {v(vSW2)}')
    A(f'v_add_u32 {v(t2)}, 8, {v(t1)}')
    A(f'v_mul_u32_u24 {v(t2)}, {QS}, {v(t2)}')
    A(f'v_add3_u32 {v(vSW2)}, {v(vSW2)}, {v(t2)}, s23')
    A('s_mov_b32 s36, 0xff00ff00')
    A('s_mov_b32 s37, 0xff00ff00')
    A(f'v_mov_b32 {v(t3)}, 12')
    A(f'v_cmp_gt_u32 vcc, 10, {v(t0)}')
    A(f'v_cndmask_b32 {v(t2)}, {v(t3)}, {v(t0)}, vcc')
    A(f'v_mul_u32_u24 {v(t2)}, {QS}, {v(t2)}')
    A(f's_lshl_b32 s23, s13, 2')
    A(f'v_add_u32 {v(t3)}, s23, {v(t1)}')
    A(f'v_and_b32 {v(t3)}, 7, {v(t3)}')
    A(f'v_lshl_add_u32 {v(vSR)}, {v(t3)}, 4, {v(t2)}')
    A(f'v_add_u32 {v(vSR)}, {SIMG}, {v(vSR)}')
    A(f'v_lshrrev_b32 {v(t2)}, 1, {v(t0)}')
    A(f'v_lshlrev_b32 {v(t2)}, 7, {v(t2)}')
    A(f'v_lshl_add_u32 {v(t2)}, {v(t3)}, 4, {v(t2)}')
    A(f'v_and_b32 {v(t3)}, 1, {v(t0)}')
    A(f'v_lshl_add_u32 {v(t2)}, {v(t3)}, 3, {v(t2)}')
    A(f'v_mov_b32 {v(t3)}, 0x40000000')
    A(f'v_cndmask_b32 {v(vPS)}, {v(t3)}, {v(t2)}, vcc')
    A(f'v_mov_b32 {v(t2)}, 0xf149f2ca')
    A(f'v_and_b32 {v(t3)}, 31, {v(vL)}')
    A(f'v_lshlrev_b32 {v(t3)}, 2, {v(t3)}')
    A(f's_add_u32 s23, s30, {SIMG + 12 * QS}')
    A(f'v_add_u32 {v(t3)}, s23, {v(t3)}')
    A(f'ds_write_b32 {v(t3)}, {v(t2)}')
    A('s_waitcnt vmcnt(0)')
    A(f'v_lshlrev_b32 {v(vPF)}, 7, {v(vL)}')
    A(f's_mul_i32 s24, s14, 640')
    A(f's_add_u32 s24, s24, {L.PBUF}')
    A(f's_mul_i32 s25, s13, 7168')
    A(f's_add_u32 s25, s25, {L.XF}')
    NT = cfg.get('ntouch', 2)
    A(f's_mul_i32 s26, s14, {NT}')
    A(f's_add_u32 s26, s26, s13')
    A(f's_min_u32 s26, s26, 55')
    A(f's_lshl_b32 s26, s26, 13')
    A(f's_add_u32 s26, s26, {L.YF + cfg.get("pfdist", 2) * 16 * 28672}')
    A(f's_cmp_ge_u32 s13, {NT}')
    A(f's_cselect_b32 s23, 0x40000000, 0')
    A(f'v_add_u32 {v(vPF)}, s23, {v(vPF)}')
    A(f's_mov_b32 s15, 0')
    A('s_lshl_b32 s31, s14, 2')
    A('s_add_u32 s31, s31, s13')
    A(f'v_and_b32 {v(vFA)}, 31, {v(vL)}')
    A(f'v_lshlrev_b32 {v(vFA)}, 3, {v(vFA)}')
    if cfg.get('stamps'):
        A(f's_lshl_b32 s32, s14, 2')
        A(f's_add_u32 s32, s32, s13')
        A(f's_lshl_b32 s32, s32, 12')
        A(f's_add_u32 s32, s32, {L.STAMP}')

    def xload():
        for q in range(3):
            if q == 2:
                A(f's_add_u32 s23, s25, 4096')
            for tt in range(2):
                if q < 2:
                    A(f'buffer_load_dwordx4 {v(XK(q, tt), 4)}, {v(vXK)}, {SRD}, s25 offen offset:{q * 2048 + tt * 256} sc1')
                else:
                    A(f'buffer_load_dwordx4 {v(XK(q, tt), 4)}, {v(vXK)}, {SRD}, s23 offen offset:{tt * 256} sc1')
        for tt in range(2):
            A(f'buffer_load_dwordx2 {v(XK3(tt), 2)}, {v(vXK3)}, {SRD}, s25 offen offset:{tt * 256} sc1')
        A(f's_add_u32 s25, s25, 28672')

    A('s_waitcnt vmcnt(0) lgkmcnt(0)')
    tl(A, cfg, 's14', 1, vT0 + 4, 0x18000)
    loaded_flag(A, cfg, 0, M(4))
    start_gate(A, cfg, M(0))
    tl(A, cfg, 's14', 2, vT0 + 4, 0x18000)
    dbgmax(A, cfg, 8, vT0 + 4)
    xload()
    A('s_barrier')

    top = A.newlabel('A_top')
    poll = A.newlabel('A_poll')
    var1 = A.newlabel('A_var1')
    common = A.newlabel('A_common')
    nxt = A.newlabel('A_next')
    def w5read(k):
        for eh in range(2):
            A(f'ds_read_b128 {v(WS5(k % 3) + 4 * eh, 4)}, {v(vW5)} offset:{(k * 2 + eh) * 1024}')

    def prepare():
        for k in range(3):
            w5read(k)
        for r in range(12):
            A(f'v_mov_b32 {v(SACC(0) + r)}, 0')
        for r in range(28):
            A(f'v_mov_b32 {v(ACC(0) + r)}, 0')
    prepare()
    A.label(top)
    A.forget()
    dual_prep(A, 's24', 's34', 's35')
    gate_prep(A, cfg)
    A('s_cmp_lt_u32 s39, 0x40000000')
    A('s_cselect_b32 s30, 1, 0')
    A('s_cmp_eq_u32 s15, 0')
    A('s_cselect_b32 s30, 1, s30')
    A('s_waitcnt lgkmcnt(0)')
    if cfg.get('asleep', 5):
        A(f's_sleep {cfg.get("asleep", 5)}')

    SPLIT = cfg.get('split', 0)

    def pissue(r):
        for k in range(2):
            A(f'buffer_load_dwordx4 {v(PSET(r) + 4 * k, 4)}, {v(vMA)}, {SRD}, s{16 + k} offen sc1')
            if k == 0 and SPLIT:
                A(f's_nop {cfg.get("kgap", 11)}')
    var0 = A.newlabel('A_var0')

    def quick(r):
        keepalive(A, vDUM + 1, cfg.get('kap', 12), cfg)
        check_regs(A, t0, [PSET(r) + i for i in range(4 if SPLIT else 8)])
    keepalive(A, vDUM + 1, cfg.get('adel', 0), {})
    pissue(0)
    keepalive(A, vDUM + 1, cfg.get('pgapA', 20), {})
    align(A, cfg, 'alAp')
    A.label(poll, keep=True)
    guard(A)
    pissue(1)
    quick(0)
    A(f's_cbranch_vccz {var0}')
    pissue(0)
    quick(1)
    A(f's_cbranch_vccnz {poll}')

    E6 = cfg.get('early6', 2)
    BPOS = cfg.get('bpos', 5)
    tiles01 = [1, 0, 2, 3, 4, 5] + ([6] if E6 else [])

    def mf(n, k, mreg):
        wreg = v(WS5(k % 3), 8) if n == LT else W(n, k)
        return f'v_smfmac_f32_16x16x64_bf16 {v(ACC(n), 4)}, {v(mreg, 4)}, {wreg}, {v(vIDX)}'

    lates = []

    def variant(r):
        A.vm = [set(('v', PSET(1 - r) + i) for i in range(4)), set(('v', PSET(1 - r) + 4 + i) for i in range(4))]
        if SPLIT:
            A.vm.insert(0, set(('v', PSET(r) + 4 + i) for i in range(4)))
        A.lg = []
        A.smem_out = []
        stamp(A, cfg, 0)
        seq = [(n, k) for k in range(2) for n in tiles01]
        rd = [k for k in range(2, 7)] + ([] if E6 else [0, 1])
        Q = PSET(r) + 4
        C1 = cfg.get('c1pos', 2)
        late, late_back = A.newlabel('A_late'), A.newlabel('A_lb')
        w5q = []
        for i, (n, k) in enumerate(seq):
            A(mf(n, k, PSET(r) + 4 * k))
            if i == 0 or (i == 1 and not SPLIT):
                A(f'ds_write_b128 {v(vM(i))}, {v(PSET(r) + 4 * i, 4)}')
            if SPLIT:
                if i == C1:
                    A('s_waitcnt vmcnt(2)')
                    A(f'ds_write_b128 {v(vM(1))}, {v(Q, 4)}')
                    A(f'v_max3_u32 {v(t0)}, {v(Q)}, {v(Q + 1)}, {v(Q + 2)}')
                if i == C1 + 1:
                    A(f'v_max_u32 {v(t0)}, {v(t0)}, {v(Q + 3)}')
                if i == C1 + 2:
                    A(f'v_cmp_eq_u32 vcc, -1, {v(t0)}')
                    A(f's_cbranch_vccnz {late}')
                    A.label(late_back, keep=True)
                    lates.append((late, late_back, Q))
            if i == BPOS - 1:
                assert not SPLIT or i >= C1 + 2
                stamp(A, cfg, 5)
                A('s_waitcnt lgkmcnt(0)')
                A('s_barrier')
                stamp(A, cfg, 6)
            if n == LT:
                w5q += [(k + 3, 0), (k + 3, 1)]
            if i >= BPOS - 1:
                if rd:
                    kk = rd.pop(0)
                    A(f'ds_read_b128 {v(M(kk), 4)}, {v(vM(kk))}')
                elif w5q:
                    kk, eh = w5q.pop(0)
                    A(f'ds_read_b128 {v(WS5(kk % 3) + 4 * eh, 4)}, {v(vW5)} offset:{(kk * 2 + eh) * 1024}')
        assert not rd
        for kk, eh in w5q:
            A(f'ds_read_b128 {v(WS5(kk % 3) + 4 * eh, 4)}, {v(vW5)} offset:{(kk * 2 + eh) * 1024}')

    A.label(var1)
    variant(1)
    A(f's_branch {common}')
    align(A, cfg, 'alA0')
    A.label(var0)
    variant(0)
    A.label(common, keep=True)
    A.vm = [set(('v', PSET(0) + i) for i in range(16))]

    seq = []
    for n in (2, 3, 4, 5, 0, 1, 6):
        for k in range(E6 if n == 6 else 2, 7):
            seq.append((n, k))
    for k, pos in ((2, 0), (3, 5)):
        seq.remove((LT, k))
        seq.insert(pos, (LT, k))
    NS = len(seq)
    rare, rare_back = A.newlabel('A_rare'), A.newlabel('A_rb')
    memq = []
    memq.append((0, f'buffer_load_dword {v(vDUM)}, {v(vPF)}, {SRD}, s26 offen'))
    memq.append((16, 'RARE'))
    for i, (n, k) in enumerate(seq):
        if n == LT and k + 3 < 7:
            for eh in range(2):
                memq.append((i, f'ds_read_b128 {v(WS5((k + 3) % 3) + 4 * eh, 4)}, {v(vW5)} offset:{((k + 3) * 2 + eh) * 1024}'))
    mkstart = cfg.get('mkpos', 3)
    memq.append((mkstart, 's_waitcnt vmcnt(1)'))
    for q in range(3):
        ad = v(vMKa) if q < 2 else v(vMKb)
        o = 128 * q if q < 2 else 0
        memq.append((mkstart, f'ds_read2_b32 {v(MK(q), 2)}, {ad} offset0:{o} offset1:{o + 32}'))
        memq.append((mkstart, f'ds_read2_b32 {v(MK(q) + 2, 2)}, {ad} offset0:{o + 1} offset1:{o + 33}'))
    memq.append((mkstart, f'ds_read2_b32 {v(MK(3), 2)}, {v(vMK3)} offset0:0 offset1:32'))
    memq.sort(key=lambda x: x[0])
    done = {}
    for i, (n, k) in enumerate(seq):
        done[n] = i
    post = []

    def tpost(n):
        C = ACC(n)
        ops = [f'v_cvt_pk_bf16_f32 {v(C)}, {v(C)}, {v(C + 1)}', f'v_cvt_pk_bf16_f32 {v(C + 1)}, {v(C + 2)}, {v(C + 3)}',
               f'ds_write_b64 {v(vTW)}, {v(C, 2)} offset:{128 * n}']
        if n == 6:
            ops += [f'ds_read_b64_tr_b16 {v(TB(3), 2)}, {v(vTR3)}']
        elif n & 1:
            p = n >> 1
            ops += [f'ds_read_b64_tr_b16 {v(TB(p), 2)}, {v(vTR)} offset:{256 * p}',
                    f'ds_read_b64_tr_b16 {v(TB(p) + 2, 2)}, {v(vTR)} offset:{256 * p + 32}']
        return ops
    for n in (2, 3, 4, 5, 0, 1):
        post.append((done[n] + cfg.get('pdelay', 2), tpost(n)))
    smf = []
    for p in PORD:
        for t in range(3):
            key = v(XK(p, t), 4) if t < 2 else v(MK(p), 4)
            smf.append(f'v_mfma_f32_16x16x32_bf16 {v(SACC(t), 4)}, {key}, {v(TB(p), 4)}, {v(SACC(t), 4)}')
    NEARLY = cfg.get('searly', 2)
    queue = []
    A.mfma_states = cfg.get('mfstates', 1)
    for i, (n, k) in enumerate(seq):
        if i in (0, 1, 10, 20, 30):
            stamp(A, cfg, 7 + (0, 1, 10, 20, 30).index(i))
        if i == NS - 3:
            for _ in range(NEARLY):
                A.auto(smf.pop(0))
        A.auto(mf(n, k, M(k)))
        for st, ops in post:
            if st == i:
                queue += ops
        nm = 0
        if queue and not queue[0].startswith('v_'):
            A(queue.pop(0))
            nm = 1
        while memq and memq[0][0] <= i and nm < 1:
            o = memq.pop(0)[1]
            if o == 'RARE':
                A('s_cmp_lg_u32 s30, 0')
                A(f's_cbranch_scc1 {rare}')
                A.label(rare_back, keep=True)
                nm += 1
                continue
            A(o)
            if not o.startswith('s_'):
                nm += 1
        if queue and queue[0].startswith('v_') and A.pad_needed(queue[0]) <= cfg.get('maxpad', 0):
            A(queue.pop(0))
    assert not memq
    tailops = queue
    stamp(A, cfg, 1)
    for o in tailops:
        A(o)
    A.auto(smf.pop(0))
    A.auto(smf.pop(0))
    for o in tpost(6):
        A(o)
    stamp(A, cfg, 13)
    for m_ in smf:
        A.auto(m_)
    for t in range(3):
        key = v(XK3(t), 2) if t < 2 else v(MK(3), 2)
        A.auto(f'v_mfma_f32_16x16x16_bf16 {v(SACC(t), 4)}, {key}, {v(TB(3), 2)}, {v(SACC(t), 4)}')
    stamp(A, cfg, 12)
    for r in range(4):
        A(f'v_add_f32_dpp {v(SACC(0) + r)}, {v(SACC(0) + r)}, {v(SACC(0) + r)} row_ror:8 row_mask:0xf bank_mask:0x3')
    for r in range(4):
        A(f'v_add_f32_dpp {v(SACC(0) + r)}, {v(SACC(1) + r)}, {v(SACC(1) + r)} row_ror:8 row_mask:0xf bank_mask:0xc')
    A(f'ds_write_b128 {v(vSW)}, {v(SACC(0), 4)}')
    for r in range(2):
        A(f'v_add_f32_dpp {v(SACC(2) + r)}, {v(SACC(2) + r)}, {v(SACC(2) + r)} row_ror:8 row_mask:0xf bank_mask:0x3')
    for r in range(2):
        A(f'v_add_f32_dpp {v(SACC(2) + r)}, {v(SACC(2) + 2 + r)}, {v(SACC(2) + 2 + r)} row_ror:8 row_mask:0xf bank_mask:0xc')
    A(f'ds_write_b64 {v(vSW2)}, {v(SACC(2), 2)}')
    A('s_cmp_ge_u32 s13, 2')
    keepalive(A, vDUM + 1, cfg.get('ka1', 8), cfg)
    warm_mfma(A, M(0), cfg)
    A('s_waitcnt lgkmcnt(0)')
    A('s_barrier')
    stamp(A, cfg, 2)
    A(f's_cbranch_scc1 {nxt}')
    R = lambda w: ACC(0) + 4 * w
    for w in range(4):
        A(f'ds_read_b128 {v(R(w), 4)}, {v(vSR)} offset:{w * 2048}')
        keepalive(A, vDUM + 1, 1, cfg)
    keepalive(A, vDUM + 1, cfg.get('ka2', 8), cfg)
    s0 = R(0)
    ml, m, ll, f, e0, cm2 = R(4), R(4) + 2, R(5), R(5) + 2, R(2), R(6)
    A(f'v_mov_b32 {v(cm2)}, -2')
    A.auto(f'v_pk_add_f32 {v(R(0), 2)}, {v(R(0), 2)}, {v(R(1), 2)}')
    A(f'v_pk_add_f32 {v(R(0) + 2, 2)}, {v(R(0) + 2, 2)}, {v(R(1) + 2, 2)}')
    A.auto(f'v_pk_add_f32 {v(R(2), 2)}, {v(R(2), 2)}, {v(R(3), 2)}')
    A(f'v_pk_add_f32 {v(R(2) + 2, 2)}, {v(R(2) + 2, 2)}, {v(R(3) + 2, 2)}')
    A(f'v_pk_add_f32 {v(R(0), 2)}, {v(R(0), 2)}, {v(R(2), 2)}')
    A(f'v_pk_add_f32 {v(R(0) + 2, 2)}, {v(R(0) + 2, 2)}, {v(R(2) + 2, 2)}')
    dpp = 'row_mask:0xf bank_mask:0xf'
    A(f'v_max3_f32 {v(ml)}, {v(s0)}, {v(s0 + 1)}, {v(s0 + 2)}')
    A(f'v_max_f32 {v(ml)}, {v(ml)}, {v(s0 + 3)}')
    A(f'v_sub_f32 {v(e0)}, {v(s0)}, {v(ml)}')
    A(f'v_sub_f32 {v(e0 + 1)}, {v(s0 + 1)}, {v(ml)}')
    A(f'v_max_f32_dpp {v(m)}, {v(ml)}, {v(ml)} row_ror:8 {dpp}')
    A(f'v_sub_f32 {v(e0 + 2)}, {v(s0 + 2)}, {v(ml)}')
    A(f'v_sub_f32 {v(e0 + 3)}, {v(s0 + 3)}, {v(ml)}')
    A(f'v_max_f32_dpp {v(m)}, {v(m)}, {v(m)} row_ror:4 {dpp}')
    A(f'v_exp_f32 {v(e0)}, {v(e0)}')
    A(f'v_exp_f32 {v(e0 + 1)}, {v(e0 + 1)}')
    A(f'v_max_f32_dpp {v(m)}, {v(m)}, {v(m)} row_ror:2 {dpp}')
    A(f'v_exp_f32 {v(e0 + 2)}, {v(e0 + 2)}')
    A(f'v_exp_f32 {v(e0 + 3)}, {v(e0 + 3)}')
    A(f'v_max_f32_dpp {v(m)}, {v(m)}, {v(m)} row_ror:1 {dpp}')
    A(f'v_pk_add_f32 {v(ll, 2)}, {v(e0, 2)}, {v(e0 + 2, 2)}')
    A(f'v_sub_f32 {v(f)}, {v(ml)}, {v(m)}')
    A(f'v_exp_f32 {v(f)}, {v(f)}')
    A(f'v_add_f32 {v(ll)}, {v(ll)}, {v(ll + 1)}')
    A(f'v_mul_f32 {v(ll)}, {v(ll)}, {v(f)}')
    A(f'v_mul_f32 {v(e0)}, {v(e0)}, {v(f)}')
    A(f'v_mul_f32 {v(e0 + 1)}, {v(e0 + 1)}, {v(f)}')
    A(f'v_add_f32_dpp {v(ll)}, {v(ll)}, {v(ll)} row_ror:8 {dpp}')
    A(f'v_mul_f32 {v(e0 + 2)}, {v(e0 + 2)}, {v(f)}')
    A(f'v_mul_f32 {v(e0 + 3)}, {v(e0 + 3)}, {v(f)}')
    A(f'v_add_f32_dpp {v(ll)}, {v(ll)}, {v(ll)} row_ror:4 {dpp}')
    A(f'v_add_f32_dpp {v(ll)}, {v(ll)}, {v(ll)} row_ror:2 {dpp}')
    A(f'v_add_f32_dpp {v(ll)}, {v(ll)}, {v(ll)} row_ror:1 {dpp}')
    A(f'v_rcp_f32 {v(ll)}, {v(ll)}')
    for i in range(4):
        A(f'v_mul_f32 {v(e0 + i)}, {v(e0 + i)}, {v(ll)}')
    A(f'v_cvt_pk_bf16_f32 {v(s0)}, {v(e0)}, {v(e0 + 1)}')
    A(f'v_cvt_pk_bf16_f32 {v(s0 + 1)}, {v(e0 + 2)}, {v(e0 + 3)}')
    A(f'v_min_u32 {v(s0)}, {v(s0)}, {v(cm2)}')
    A(f'v_min_u32 {v(s0 + 1)}, {v(s0 + 1)}, {v(cm2)}')
    dual_store(A, f'buffer_store_dwordx2 {v(s0, 2)}, {v(vPS)}, {SRD}, {{s}} offen', 's34', 's35')
    A.label(nxt, keep=True)
    stamp(A, cfg, 3)
    rstamp(A, cfg, 4)
    if not cfg.get('nohold'):
        A('s_barrier')
    A('s_nop 1')
    prepare()
    if cfg.get('xdelay', 0):
        A(f's_sleep {cfg.get("xdelay", 0)}')
    xload()
    mid_gate(A, cfg, vT0, vFL)
    if cfg.get('tl'):
        skp = A.newlabel('TLS')
        A('s_add_u32 s38, s14, s13')
        A('s_cmp_lg_u32 s38, 18')
        A(f's_cbranch_scc1 {skp}')
        tl(A, cfg, 's15', 0, vT0 + 4, 0x10000)
        A('s_memtime s[98:99]')
        A('s_waitcnt lgkmcnt(0)')
        A(f'v_mov_b32 {v(vT0 + 4)}, s98')
        A(f'buffer_store_dword {v(vT0 + 4)}, {v(vT0 + 5)}, {SRD}, s101 offen offset:4')
        A.label(skp, keep=True)
    stamp_flush(A, cfg, 14, 32, vT0 + 4)
    A(f'v_add_u32 {v(vMA)}, 8192, {v(vMA)}')
    A(f's_add_u32 s24, s24, 16384')
    A(f's_add_u32 s26, s26, {16 * 28672}')
    A(f's_add_u32 s15, s15, 1')
    if cfg.get('dbg'):
        for stp, wd in ((8, 9), (32, 10), (2, 6), (4, 7)):
            sk = A.newlabel('DB')
            A(f's_cmp_lg_u32 s15, {stp}')
            A(f's_cbranch_scc1 {sk}')
            dbgmax(A, cfg, wd, vT0 + 4)
            A.label(sk, keep=True)
    A(f's_cmp_lt_u32 s15, {NSTEP}')
    A(f's_cbranch_scc1 {top}')
    dbgmax(A, cfg, 11, vT0 + 4)
    A('s_endpgm')
    A.label(rare)
    A.forget()
    A(f'buffer_load_dwordx2 {v(vFL, 2)}, {v(vFA)}, {SRD}, s39 offen sc1')
    A(f's_sub_u32 s38, s26, {16 * 28672}')
    A('s_cmp_eq_u32 s15, 0')
    A('s_cselect_b32 s38, s38, 0x40000000')
    A(f'buffer_load_dword {v(vDUM)}, {v(vPF)}, {SRD}, s38 offen')
    A(f's_branch {rare_back}')
    for late, late_back, Q in lates:
        A.label(late)
        A.forget()
        guard(A)
        A(f'buffer_load_dwordx4 {v(Q, 4)}, {v(vMA)}, {SRD}, s17 offen sc1')
        A('s_waitcnt vmcnt(0)')
        check_regs(A, t0, [Q + i for i in range(4)])
        A(f's_cbranch_vccnz {late}')
        A(f'ds_write_b128 {v(vM(1))}, {v(Q, 4)}')
        A(f's_branch {late_back}')
    flush_deferred(A)


def emit_B(A, cfg):
    WL = 0x0000
    RIMG = 0x20000
    MIMG = 0x23000
    vL, vIDX, vMA, vWL, vYX, vP, vP2, vRW, vRR, vSA, vSK, vYM, vPF = range(1, 14)
    vT0 = 14
    M = lambda k: 20 + 4 * k
    YACC = lambda hh, t: 48 + 4 * (hh * 2 + t)
    YX = lambda k, t: 80 + 8 * (k * 2 + t)
    YB = lambda t: 112 + 4 * t
    M2 = 120
    YBN = lambda t: 180 + 4 * t
    OACC = lambda t: 128 + 4 * t
    ST = lambda b: 136 + 8 * b
    P = lambda r, k: ((20 if r == 0 else 120) + 4 * k) if k < 2 else 182 + 2 * r
    Pregs = lambda r: [P(r, 0) + i for i in range(8)] + [P(r, 2), P(r, 2) + 1]
    vM = lambda k: 168 + k
    vDUM = 176

    def W(ht, k):
        i = ht * 5 + k
        return a(8 * i, 8) if i < 32 else v(192 + 8 * (i - 32), 8)

    def Whalf(ht, k, eh):
        i = ht * 5 + k
        return a(8 * i + 4 * eh, 4) if i < 32 else v(192 + 8 * (i - 32) + 4 * eh, 4)

    t0, t1, t2, t3 = vT0, vT0 + 1, vT0 + 2, vT0 + 3
    lane_fields(A, vL)
    emit_koffs(A)
    A(f'v_and_b32 {v(t0)}, 15, {v(vL)}')
    A(f'v_lshrrev_b32 {v(t1)}, 4, {v(vL)}')
    sparse_idx(A, vIDX, vL, t2, t3)
    A(f'v_lshlrev_b32 {v(t2)}, 9, {v(t1)}')
    A(f'v_lshl_add_u32 {v(vYX)}, {v(t0)}, 4, {v(t2)}')
    if cfg.get('fused'):
        A('s_lshl_b32 s23, s13, 5')
        A(f's_add_u32 s23, s23, {L.F_AB + 128}')
        flag_wait(A, 's23', 32, 20, sleep=2)
    A(f's_mul_i32 s25, s13, 56')
    A(f's_add_u32 s25, s25, s14')
    A(f's_mul_i32 s25, s25, 28672')
    A(f's_add_u32 s25, s25, {L.WF + L.NB_B * 28672}')
    A(f's_lshl_b32 s28, s13, 15')
    cnt = 0
    for hh in range(4):
        for k in range(7):
            A(f's_lshl_b32 s23, s{16 + k}, 2')
            A(f's_add_u32 s23, s23, s25')
            A(f's_add_u32 s23, s23, {hh * 14 * 28672}')
            for eh in range(2):
                for t in range(2):
                    ht = hh * 2 + t
                    if k >= 5:
                        A(f's_add_u32 s24, s28, {WL + ((ht * 2 + (k - 5)) * 2 + eh) * 1024}')
                        A(f's_mov_b32 m0, s24')
                        A(f's_add_u32 s24, s23, {2048 * eh + 256 * t}')
                        A(f'buffer_load_dwordx4 {v(vYX)}, {SRD}, s24 offen sc1 lds')
                    else:
                        A(f'buffer_load_dwordx4 {Whalf(ht, k, eh)}, {v(vYX)}, {SRD}, s23 offen offset:{2048 * eh + 256 * t} sc1')
                    cnt += 1
                    if cnt % 16 == 0:
                        A('s_waitcnt vmcnt(40)')
    A(f'v_lshlrev_b32 {v(vMA)}, 4, {v(vL)}')
    A(f'v_add_u32 {v(vWL)}, s28, {v(vMA)}')
    A(f'v_add_u32 {v(vYM)}, 0, {v(vMA)}')
    for k in range(7):
        A(f's_add_u32 s23, s{16 + k}, {MIMG}')
        A(f'v_add_u32 {v(vM(k))}, s23, {v(vMA)}')
    A(f'v_add_u32 {v(vMA)}, {L.MEMA}, {v(vMA)}')
    A(f'v_lshrrev_b32 {v(t2)}, 1, {v(t1)}')
    A(f'v_mul_u32_u24 {v(t2)}, 640, {v(t2)}')
    A(f'v_and_b32 {v(t3)}, 1, {v(t1)}')
    A(f'v_lshl_add_u32 {v(t2)}, {v(t3)}, 8, {v(t2)}')
    A(f'v_lshl_add_u32 {v(vP)}, {v(t0)}, 4, {v(t2)}')
    A(f'v_lshrrev_b32 {v(t2)}, 1, {v(t1)}')
    A(f'v_bfe_u32 {v(t3)}, {v(vL)}, 3, 1')
    A(f'v_lshl_add_u32 {v(t2)}, {v(t3)}, 1, {v(t2)}')
    A(f'v_mul_u32_u24 {v(t2)}, 640, {v(t2)}')
    A(f'v_and_b32 {v(t3)}, 7, {v(vL)}')
    A(f'v_lshl_add_u32 {v(t2)}, {v(t3)}, 4, {v(t2)}')
    A(f'v_and_b32 {v(t3)}, 1, {v(t1)}')
    A(f'v_lshl_add_u32 {v(t2)}, {v(t3)}, 3, {v(t2)}')
    A(f'v_add_u32 {v(vP2)}, 512, {v(t2)}')
    A(f's_mul_i32 s23, s13, 3072')
    A(f's_add_u32 s23, s23, {RIMG}')
    A(f'v_mul_u32_u24 {v(t2)}, {4 * 192}, {v(t1)}')
    A(f'v_lshl_add_u32 {v(vRW)}, {v(t0)}, 3, {v(t2)}')
    A(f'v_add_u32 {v(vRW)}, s23, {v(vRW)}')
    A(f'v_lshrrev_b32 {v(t3)}, 3, {v(vL)}')
    A(f'v_and_b32 {v(t2)}, 3, {v(vL)}')
    A(f'v_lshlrev_b32 {v(vSA)}, 2, {v(t2)}')
    A(f'v_lshlrev_b32 {v(t2)}, 1, {v(t2)}')
    A(f'v_bfe_u32 {v(t0)}, {v(vL)}, 2, 1')
    A(f'v_lshl_add_u32 {v(vSA)}, {v(t0)}, 7, {v(vSA)}')
    A(f'v_lshl_add_u32 {v(vSA)}, {v(t3)}, 4, {v(vSA)}')
    A(f'v_add_u32 {v(t2)}, {v(t2)}, {v(t0)}')
    A(f's_and_b32 s23, s13, 1')
    A(f's_lshl_b32 s23, s23, 3')
    A(f'v_add_u32 {v(t0)}, s23, {v(t2)}')
    A(f'v_mul_u32_u24 {v(t2)}, 192, {v(t3)}')
    A(f'v_lshl_add_u32 {v(vRR)}, {v(t0)}, 3, {v(t2)}')
    A(f'v_add_u32 {v(vRR)}, {RIMG}, {v(vRR)}')
    A(f's_lshl_b32 s23, s14, 9')
    A(f's_and_b32 s24, s13, 1')
    A(f's_lshl_b32 s24, s24, 8')
    A(f's_add_u32 s24, s24, s23')
    A(f'v_add_u32 {v(vSA)}, s24, {v(vSA)}')
    A(f'v_lshlrev_b32 {v(vSK)}, 4, {v(t3)}')
    A(f'v_lshrrev_b32 {v(t2)}, 2, {v(t0)}')
    A(f'v_lshl_add_u32 {v(vSK)}, {v(t2)}, 7, {v(vSK)}')
    A(f'v_and_b32 {v(t2)}, 3, {v(t0)}')
    A(f'v_lshl_add_u32 {v(vSK)}, {v(t2)}, 2, {v(vSK)}')
    A(f'v_add_u32 {v(vSK)}, s23, {v(vSK)}')
    A(f's_cmp_ge_u32 s13, 2')
    A(f's_cselect_b32 s23, 0x40000000, 0')
    A(f'v_add_u32 {v(vSK)}, s23, {v(vSK)}')
    A(f's_mul_i32 s24, s13, {4 * 640}')
    A(f's_add_u32 s24, s24, {L.PBUF}')
    A(f's_mul_i32 s25, s13, 56')
    A(f's_add_u32 s25, s25, s14')
    A(f's_lshl_b32 s25, s25, 11')
    A(f's_add_u32 s25, s25, {L.YF}')
    A(f's_mov_b32 s26, {L.MEMA + 8192}')
    A(f's_mov_b32 s29, {L.MEMX}')
    A(f's_lshl_b32 s31, s14, 2')
    A(f's_add_u32 s31, s31, s13')
    A(f's_lshl_b32 s31, s31, 11')
    A(f's_add_u32 s31, s31, {L.YM}')
    NTA = cfg.get('ntouch', 2)
    NT = cfg.get('ntouchB', 0)
    A(f's_mul_i32 s34, s14, {NT}')
    A(f's_add_u32 s34, s34, {16 * NTA}')
    A(f's_add_u32 s34, s34, s13')
    A(f's_min_u32 s34, s34, 55')
    A(f's_lshl_b32 s34, s34, 13')
    A(f's_add_u32 s34, s34, {L.YF + cfg.get("pfdist", 2) * 16 * 28672}')
    A(f'v_lshlrev_b32 {v(vPF)}, 7, {v(vL)}')
    A(f's_cmp_ge_u32 s13, {NT}')
    A(f's_cselect_b32 s23, 0x40000000, 0')
    A(f'v_add_u32 {v(vPF)}, s23, {v(vPF)}')
    A(f's_mov_b32 s15, 0')
    A(f's_mov_b32 s35, 0x40000000')
    if cfg.get('stamps'):
        A(f's_add_u32 s32, s14, 16')
        A(f's_lshl_b32 s32, s32, 2')
        A(f's_add_u32 s32, s32, s13')
        A(f's_lshl_b32 s32, s32, 12')
        A(f's_add_u32 s32, s32, {L.STAMP}')
    vNON, vF0 = 178, 180
    A(f'v_mov_b32 {v(vNON)}, s96')
    A(f'v_mov_b32 {v(vNON + 1)}, s97')
    A(f'v_mov_b32 {v(t2)}, 0x40000000')
    A(f'v_cmp_eq_u32 vcc, 0, {v(vL)}')
    A(f'v_cndmask_b32 {v(vF0)}, {v(t2)}, {v(vL)}, vcc')
    A('s_lshl_b32 s27, s14, 2')
    A('s_add_u32 s27, s27, s13')
    A('s_lshl_b32 s27, s27, 3')
    A(f's_add_u32 s27, s27, {L.FLAGS + 8 * L.F_YM - 2 * 56 * 8}')
    ymflag = lambda sreg: f'buffer_store_dwordx2 {v(vNON, 2)}, {v(vF0)}, {SRD}, {sreg} offen sc1'
    vOUT = vT0 + 5
    A(f'v_mov_b32 {v(vOUT)}, 0')
    for r in range(8):
        A(f'v_mov_b32 {v(YB(0) + r)}, 0')

    def yx_list():
        out = []
        for k in range(2):
            for eh in range(2):
                for t in range(2):
                    out.append([f's_add_u32 s23, s25, {(2 * k + eh) * 14 * 2048}',
                                f'buffer_load_dwordx4 {v(YX(k, t) + 4 * eh, 4)}, {v(vYX)}, {SRD}, s23 offen offset:{256 * t} sc1'])
        return out

    def ym_list(sreg):
        return [[f'buffer_store_dwordx4 {v(YB(t), 4)}, {v(vYM)}, {SRD}, {sreg} offen offset:{t * 1024} sc1'] for t in range(2)]

    A('s_waitcnt vmcnt(0)')
    tl(A, cfg, 's14', 1, vT0 + 2, 0x18400)
    loaded_flag(A, cfg, 16, M(4))
    start_gate(A, cfg, M(0))
    tl(A, cfg, 's14', 2, vT0 + 2, 0x18400)
    dbgmax(A, cfg, 12, vT0 + 2)
    top = A.newlabel('B_top')
    mpoll = A.newlabel('B_mpoll')
    ppoll = A.newlabel('B_ppoll')
    nxt = A.newlabel('B_next')
    fin = A.newlabel('B_fin')
    A.label(top)
    A.forget()
    zero = [f'v_mov_b32 {v(YACC(0, 0) + r)}, 0' for r in range(32)] + [f'v_mov_b32 {v(OACC(0) + r)}, 0' for r in range(8)]
    if cfg.get('yxearly'):
        for x in yx_list():
            for y in x:
                A(y)
    ZP = cfg.get('zpre', 12)
    for x in zero[:ZP]:
        A(x)
    ldsq = [(hh * 2 + t, k) for t in range(2) for pr in range(2) for k in (5, 6) for hh in (2 * pr, 2 * pr + 1)]

    def wlread(j):
        ht, k = ldsq[j]
        for eh in range(2):
            A(f'ds_read_b128 {v(ST(j & 3) + 4 * eh, 4)}, {v(vWL)} offset:{((ht * 2 + (k - 5)) * 2 + eh) * 1024}')
    for j in range(4):
        wlread(j)
    if cfg.get('bsleep', 0):
        A(f's_sleep {cfg["bsleep"]}')
    MS = lambda r: (M(0) if r == 0 else M2)
    A(f's_add_u32 s36, s31, s35')

    def missue(r):
        for k in range(2):
            A(f'buffer_load_dwordx4 {v(MS(r) + 4 * k, 4)}, {v(vMA)}, {SRD}, s{16 + k} offen sc1')
    mv0, mv1, mcommon = A.newlabel('B_mv0'), A.newlabel('B_mv1'), A.newlabel('B_mc')
    missue(0)
    for x in zero[ZP:]:
        A(x)
    A.label(mpoll, keep=True)
    guard(A)
    missue(1)
    check_regs(A, t0, [MS(0) + i for i in range(8)])
    A(f's_cbranch_vccz {mv0}')
    missue(0)
    check_regs(A, t0, [MS(1) + i for i in range(8)])
    A(f's_cbranch_vccnz {mpoll}')
    lgsnap = [set(x) for x in A.lg]

    def allmem():
        ld_ = yx_list() if not (cfg.get('noyx') or cfg.get('yxearly')) else []
        st_ = ym_list('s36') if not cfg.get('noym') else []
        return st_ + ld_ if cfg.get('stfirst') else ld_ + st_
    left = []

    def mvariant(r):
        A.vm = [set(('v', MS(1 - r) + i) for i in range(8))]
        A.lg = [set(x) for x in lgsnap]
        A.smem_out = []
        stamp(A, cfg, 0)
        vmem = allmem()
        for i, (ht, k) in enumerate([(ht, k) for k in range(2) for ht in range(8)]):
            A(f'v_smfmac_f32_16x16x64_bf16 {v(YACC(ht >> 1, ht & 1), 4)}, {v(MS(r) + 4 * k, 4)}, {W(ht, k)}, {v(vIDX)}')
            if i < 2:
                A(f'ds_write_b128 {v(vM(i))}, {v(MS(r) + 4 * i, 4)}')
            if i == 4:
                A('s_waitcnt lgkmcnt(0)')
                A('s_barrier')
            if 4 <= i < 9:
                A(f'ds_read_b128 {v(M(i - 2), 4)}, {v(vM(i - 2))}')
            if i >= 5 and (i - 5) % cfg.get('vgap', 2) == 0 and vmem:
                for x in vmem.pop(0):
                    A(x)
            if i == 4:
                stamp(A, cfg, 8)
        left[:] = vmem
    A.label(mv1, keep=True)
    mvariant(1)
    A(f's_branch {mcommon}')
    align(A, cfg, 'alBm')
    A.label(mv0)
    mvariant(0)
    A.label(mcommon, keep=True)
    A.vm = [set(('v', M(0) + i) for i in range(8)) | set(('v', M2 + i) for i in range(8)) | set(('v', YX(0, 0) + i) for i in range(32))]
    mem = list(left)
    if NT:
        mem += [[f'buffer_load_dword {v(vDUM)}, {v(vPF)}, {SRD}, s34 offen']]
    def pissue(r):
        A(f'buffer_load_dwordx4 {v(P(r, 0), 4)}, {v(vP)}, {SRD}, s24 offen sc1')
        A(f'buffer_load_dwordx4 {v(P(r, 1), 4)}, {v(vP)}, {SRD}, s24 offen offset:1280 sc1')
        A(f'buffer_load_dwordx2 {v(P(r, 2), 2)}, {v(vP2)}, {SRD}, s24 offen sc1')
    seq = []
    groups = [(pr, t) for t in range(2) for pr in range(2)]
    for pr, t in groups:
        ha, hb = (2 * pr) * 2 + t, (2 * pr + 1) * 2 + t
        seq += [(ha, 5), (ha, 2), (hb, 2), (hb, 5), (ha, 3), (ha, 6), (hb, 3), (ha, 4), (hb, 6), (hb, 4)]
    assert [x for x in seq if x[1] >= 5] == ldsq
    lj = 0
    vq = []
    dq = []
    GAP = cfg.get('bmemgap', 2)

    def gpost(pr, t):
        Ya, Yb = YACC(2 * pr, t), YACC(2 * pr + 1, t)
        ops = [f'v_permlane32_swap_b32 {v(Ya + r)}, {v(Yb + r)}' for r in range(4)]
        ops += [f'v_add_f32 {v(Ya + r)}, {v(Ya + r)}, {v(Yb + r)}' for r in range(4)]
        ops += [f'v_cvt_pk_bf16_f32 {v(YB(t) + 2 * p + pr)}, {v(Ya + 2 * p)}, {v(Ya + 2 * p + 1)}' for p in range(2)]
        return ops
    sani = [f'v_min_u32 {v(YB(0) + r)}, -2, {v(YB(0) + r)}' for r in range(8)]
    for i, (ht, k) in enumerate(seq):
        if i % 10 == 0:
            stamp(A, cfg, 9 + i // 10)
        if k >= 5:
            A.auto(f'v_smfmac_f32_16x16x64_bf16 {v(YACC(ht >> 1, ht & 1), 4)}, {v(M(k), 4)}, {v(ST(lj & 3), 8)}, {v(vIDX)}')
            if lj + 4 < 16:
                h2, k2 = ldsq[lj + 4]
                for eh in range(2):
                    dq.append(f'ds_read_b128 {v(ST(lj & 3) + 4 * eh, 4)}, {v(vWL)} offset:{((h2 * 2 + (k2 - 5)) * 2 + eh) * 1024}')
            lj += 1
        else:
            A.auto(f'v_smfmac_f32_16x16x64_bf16 {v(YACC(ht >> 1, ht & 1), 4)}, {v(M(k), 4)}, {W(ht, k)}, {v(vIDX)}')
        if i % 10 == 9:
            vq += gpost(*groups[i // 10])
        if dq:
            A(dq.pop(0))
        if i >= cfg.get('yxstart', 0) and i % GAP == 0 and mem:
            for x in mem.pop(0):
                A(x)
        if i == cfg.get('pearly', -1):
            pissue(0)
        if vq and A.pad_needed(vq[0]) == 0:
            A(vq.pop(0))
    assert not mem and not dq
    stamp(A, cfg, 13)
    for o in vq:
        A(o)
    A(f's_cmp_eq_u32 s15, 0')
    A(f's_cselect_b32 s23, 0, {14 * 4 * 2048}')
    A(f's_add_u32 s31, s31, s23')
    A(f's_mov_b32 s35, 0')
    A(f's_add_u32 s27, s27, {56 * 8}')
    A(f's_add_u32 s25, s25, {16 * 28672}')
    A(f's_add_u32 s34, s34, {16 * 28672}')
    stamp(A, cfg, 1)
    A(f's_cmp_eq_u32 s15, {NSTEP}')
    A(f's_cbranch_scc1 {fin}')
    A('s_cmp_ge_u32 s13, 2')
    A('s_cselect_b32 s23, 0x40000000, s26')
    dual_prep(A, 's23', 's29', 's37')
    stamp(A, cfg, 5)
    if cfg.get('psleep', 0):
        A(f's_sleep {cfg["psleep"]}')

    var0 = A.newlabel('B_var0')
    var1 = A.newlabel('B_var1')
    common = A.newlabel('B_common')
    redo = A.newlabel('B_redo')

    def quick(r):
        keepalive(A, vDUM + 1, cfg.get('kbp', 0), cfg)
        A('s_waitcnt vmcnt(3)')
        A(f'v_max3_u32 {v(t0)}, {v(P(r, 0) + 3)}, {v(P(r, 1) + 3)}, {v(P(r, 2) + 1)}')
        A(f'v_cmp_eq_u32 vcc, -1, {v(t0)}')
    if cfg.get('pearly', -1) < 0:
        keepalive(A, vDUM + 1, cfg.get('pdel', 40), {})
        pissue(0)
        keepalive(A, vDUM + 1, cfg.get('pgapB', 8), {})
    align(A, cfg, 'alBp', -1)
    A.label(ppoll, keep=True)
    guard(A)
    pissue(1)
    quick(0)
    A(f's_cbranch_vccz {var0}')
    pissue(0)
    quick(1)
    A(f's_cbranch_vccnz {ppoll}')
    bad = A.newlabel('B_bad')

    def variant(r):
        A.vm = [set(('v', x) for x in Pregs(1 - r))]
        A.lg = []
        A.smem_out = []
        stamp(A, cfg, 2)
        Q = P(r, 0)
        full = [f'v_max3_u32 {v(t0)}, {v(Q)}, {v(Q + 1)}, {v(Q + 2)}', f'v_max3_u32 {v(t0)}, {v(t0)}, {v(Q + 4)}, {v(Q + 5)}',
                f'v_max3_u32 {v(t0)}, {v(t0)}, {v(Q + 6)}, {v(P(r, 2))}',
                f'v_cmp_eq_u32 vcc, -1, {v(t0)}']
        for k in range(3):
            for t in range(2):
                if k < 2:
                    A(f'v_smfmac_f32_16x16x64_bf16 {v(OACC(t), 4)}, {v(P(r, k), 4)}, {v(YX(k, t), 8)}, {v(vIDX)}')
                else:
                    A(f'v_smfmac_f32_16x16x32_bf16 {v(OACC(t), 4)}, {v(P(r, k), 2)}, {v(YB(t), 4)}, {v(vIDX)}')
        for x in full[:2]:
            A(x)
        for rr in range(4):
            A(f'ds_write2_b32 {v(vRW)}, {v(OACC(0) + rr)}, {v(OACC(1) + rr)} offset0:{rr * 48} offset1:{rr * 48 + 1}')
        for x in full[2:]:
            A(x)
        A(f's_cbranch_vccnz {bad}')
    A.label(var1)
    variant(1)
    A(f's_branch {common}')
    A.label(bad)
    A('s_waitcnt vmcnt(0) lgkmcnt(0)')
    A('s_nop 7')
    for r in range(8):
        A(f'v_mov_b32 {v(OACC(0) + r)}, 0')
    pissue(0)
    A(f's_branch {ppoll}')
    align(A, cfg, 'alB0')
    A.label(var0)
    variant(0)
    A.label(common, keep=True)
    A.vm = [set(('v', x) for x in Pregs(0) + Pregs(1))]
    A('s_cmp_ge_u32 s13, 2')
    keepalive(A, vDUM + 1, cfg.get('kb1', 0), cfg)
    stamp(A, cfg, 6)
    warm_mfma(A, ST(0), cfg)
    A('s_waitcnt lgkmcnt(0)')
    A('s_barrier')
    stamp(A, cfg, 7)
    A(f's_cbranch_scc1 {nxt}')
    R = lambda w: YACC(0, 0) + 4 * w
    for w in range(4):
        A(f'ds_read2st64_b64 {v(R(w), 4)}, {v(vRR)} offset0:{6 * w} offset1:{6 * w + 3}')
    keepalive(A, vDUM + 1, cfg.get('kb2', 3), cfg)
    A(f'v_mov_b32 {v(t1)}, -2')
    A.auto(f'v_pk_add_f32 {v(R(0), 2)}, {v(R(0), 2)}, {v(R(0) + 2, 2)}')
    A.auto(f'v_pk_add_f32 {v(R(1), 2)}, {v(R(1), 2)}, {v(R(1) + 2, 2)}')
    A(f'v_pk_add_f32 {v(R(0), 2)}, {v(R(0), 2)}, {v(R(1), 2)}')
    A.auto(f'v_pk_add_f32 {v(R(2), 2)}, {v(R(2), 2)}, {v(R(2) + 2, 2)}')
    A(f'v_pk_add_f32 {v(R(0), 2)}, {v(R(0), 2)}, {v(R(2), 2)}')
    A.auto(f'v_pk_add_f32 {v(R(3), 2)}, {v(R(3), 2)}, {v(R(3) + 2, 2)}')
    A(f'v_pk_add_f32 {v(R(0), 2)}, {v(R(0), 2)}, {v(R(3), 2)}')
    A(f'v_cvt_pk_bf16_f32 {v(vOUT)}, {v(R(0))}, {v(R(0) + 1)}')
    A(f'v_min_u32 {v(vOUT)}, {v(vOUT)}, {v(t1)}')
    A.label(nxt, keep=True)
    dual_store(A, f'buffer_store_dword {v(vOUT)}, {v(vSA)}, {SRD}, {{s}} offen', 's29', 's37')
    stamp(A, cfg, 3)
    rstamp(A, cfg, 4)
    if not cfg.get('nohold'):
        A('s_barrier')
    nl = A.newlabel('B_nl')
    A(f's_cmp_lg_u32 s15, {NSTEP - 1}')
    A(f's_cbranch_scc1 {nl}')
    A(f's_mov_b32 s23, {L.MEMX + 63 * 8192}')
    A('s_waitcnt vmcnt(2)')
    A(f'buffer_store_dword {v(vOUT)}, {v(vSK)}, {SRD}, s23 offen sc1')
    A(f's_branch {nl}x')
    A.label(nl, keep=True)
    A('s_waitcnt vmcnt(2)')
    A.label(nl + 'x', keep=True)
    stamp_flush(A, cfg, 14, 32, vT0 + 2)
    A(f'v_add_u32 {v(vMA)}, 8192, {v(vMA)}')
    A(f's_add_u32 s24, s24, 16384')
    A(f's_add_u32 s26, s26, 8192')
    A(f's_add_u32 s15, s15, 1')
    A(f's_branch {top}')
    A.label(fin)
    for x in ym_list('s31'):
        A(x[0])
    A('s_waitcnt vmcnt(0)')
    A(ymflag('s27'))
    A(f's_add_u32 s27, s27, {56 * 8}')
    A(ymflag('s27'))
    A('s_endpgm')
    flush_deferred(A)


def emit_C(A, cfg):
    NT = cfg.get('ntouch', 2)
    D = cfg.get('cdist', 3)
    first = min(16 * NT + 14 * cfg.get('ntouchB', 0), 56)
    nrounds = (56 - first + 7) // 8
    vL, vPF, vPL, vD, vLW, vLR, vST, t0, t1 = 1, 2, 3, 4, 5, 6, 7, 8, 9
    Q = 12
    A.pipe_model = False
    lane_fields(A, vL)
    A(f'v_lshlrev_b32 {v(vPF)}, 7, {v(vL)}')
    A('s_lshl_b32 s16, s14, 2')
    A('s_add_u32 s16, s16, s13')
    A('s_cmp_eq_u32 s16, 7')
    A('s_cselect_b32 s19, 0, s16')
    A('s_lshl_b32 s19, s19, 10')
    A(f'v_lshlrev_b32 {v(vST)}, 4, {v(vL)}')
    A('s_lshl_b32 s23, s13, 10')
    A(f'v_add_u32 {v(vLW)}, s23, {v(vST)}')
    A(f'v_lshrrev_b32 {v(t0)}, 4, {v(vL)}')
    A(f'v_lshlrev_b32 {v(vLR)}, 8, {v(t0)}')
    A(f'v_and_b32 {v(t0)}, 7, {v(vL)}')
    A(f'v_lshl_add_u32 {v(vLR)}, {v(t0)}, 4, {v(vLR)}')
    A(f'v_bfe_u32 {v(t0)}, {v(vL)}, 3, 1')
    A(f'v_lshl_add_u32 {v(vLR)}, {v(t0)}, 3, {v(vLR)}')
    A(f'v_add_u32 {v(vLR)}, s23, {v(vLR)}')
    A(f'v_add_u32 {v(vST)}, s19, {v(vST)}')
    A(f'v_add_u32 {v(vPL)}, {L.MEMA + 8192}, {v(vST)}')
    A('s_cmp_eq_u32 s16, 7')
    A(f's_cselect_b32 s19, 0x40000000, 0')
    A(f's_add_u32 s19, s19, {L.MEMX + 8192}')
    A('s_lshl_b32 s17, s16, 13')
    A(f's_add_u32 s17, s17, {L.XF}')
    A('s_mov_b32 s18, 28672')
    A('s_cmp_ge_u32 s16, 4')
    A(f's_cselect_b32 s17, {L.MEMA + 8192}, s17')
    A(f's_cselect_b32 s18, 8192, s18')
    A('s_cmp_eq_u32 s16, 6')
    A(f's_cselect_b32 s17, {L.PBUF}, s17')
    A('s_cmp_eq_u32 s16, 7')
    A(f's_cselect_b32 s17, {L.PBUF + 8192}, s17')
    A('s_cmp_ge_u32 s16, 6')
    A(f's_cselect_b32 s18, 16384, s18')
    for r in range(nrounds):
        A(f's_add_u32 s{24 + r}, s16, {first + 8 * r}')
        A(f's_min_u32 s{24 + r}, s{24 + r}, 55')
        A(f's_lshl_b32 s{24 + r}, s{24 + r}, 13')
        A(f's_add_u32 s{24 + r}, s{24 + r}, {L.YF}')
    assert nrounds == 0 or not cfg.get('fused')

    def touches():
        A(f'buffer_load_dword {v(vD)}, {v(vPF)}, {SRD}, s17 offen')
        A('s_add_u32 s17, s17, s18')
        for r in range(nrounds):
            A(f'buffer_load_dword {v(vD)}, {v(vPF)}, {SRD}, s{24 + r} offen')
            A(f's_add_u32 s{24 + r}, s{24 + r}, {16 * 28672}')
    if cfg.get('fused'):
        flag_wait_multi(A, [L.F_LN, L.F_LN + 64, L.F_LN + 128, L.F_LN + 192], Q)
    A(f's_mov_b32 s23, {L.MEMA}')
    A(f'buffer_load_dword {v(vD)}, {v(vPF)}, {SRD}, s23 offen')
    for _ in range(D):
        touches()
    start_gate(A, cfg, Q, [L.F_Y0])
    assert cfg.get('pfdist', 2) == 2
    for sg in range(1):
        for r in range(7):
            A(f's_add_u32 s23, s16, {8 * r}')
            A(f's_lshl_b32 s23, s23, 13')
            A(f's_add_u32 s23, s23, {L.YF + sg * 16 * 28672}')
            A(f'buffer_load_dword {v(vD)}, {v(vPF)}, {SRD}, s23 offen')
    A('s_mov_b32 s15, 1')
    top = A.newlabel('C_top')
    skip = A.newlabel('C_skip')
    A.label(top)
    A.forget()
    guard(A)
    A(f's_sleep 1')
    A(f'buffer_load_dwordx4 {v(Q, 4)}, {v(vPL)}, {SRD}, 0 offen sc1')
    A('s_waitcnt vmcnt(0)')
    check_regs(A, t0, [Q + i for i in range(4)])
    A(f's_cbranch_vccnz {top}')
    A(f'ds_write_b128 {v(vLW)}, {v(Q, 4)}')
    A(f'ds_read2_b32 {v(Q + 4, 2)}, {v(vLR)} offset0:0 offset1:32')
    A(f'ds_read2_b32 {v(Q + 6, 2)}, {v(vLR)} offset0:1 offset1:33')
    A('s_waitcnt lgkmcnt(0)')
    A(f'buffer_store_dwordx4 {v(Q + 4, 4)}, {v(vST)}, {SRD}, s19 offen sc1')
    A(f'v_add_u32 {v(vPL)}, 8192, {v(vPL)}')
    A('s_add_u32 s19, s19, 8192')
    A(f's_cmp_gt_u32 s15, {64 - D}')
    A(f's_cbranch_scc1 {skip}')
    touches()
    A.label(skip)
    A('s_add_u32 s15, s15, 1')
    A(f's_cmp_lt_u32 s15, 64')
    A(f's_cbranch_scc1 {top}')
    A('s_endpgm')
```

```python
from asmdsl import v, a, s
import layout as L
import gemm as G
import chain
CFG = {}

SRD = 's[8:11]'
SRD_X = 's[56:59]'
SRD_OUT = 's[60:63]'


def item_gemm1(A, kind, ld=' sc1', st=' sc1'):
    sh = 5 if kind != 'GU' else 4
    A(f's_lshr_b32 s53, s39, {sh}')
    A(f's_and_b32 s54, s39, {(1 << sh) - 1}')
    A('s_lshl_b32 s55, s53, 3')
    A('s_lshl_b32 s50, s13, 1')
    A('s_add_u32 s55, s55, s50')
    A('s_mul_i32 s40, s55, 28672')
    A(f's_add_u32 s40, s40, {L.XF}')
    nb0 = {'Y': L.NB_B, 'T': L.NB_A, 'GU': L.NB_GU}[kind]
    A(f's_mul_i32 s41, s54, {7 * 28672}')
    A(f's_add_u32 s41, s41, {L.WF + nb0 * 28672}')
    if kind == 'GU':
        A(f's_mul_i32 s42, s55, {112 * 1024}')
        A(f's_mul_i32 s50, s54, {7 * 1024}')
        A('s_add_u32 s42, s42, s50')
        A(f's_add_u32 s42, s42, {L.HF}')
    else:
        A(f's_mul_i32 s42, s55, {16 * 28672}')
        A(f's_mul_i32 s50, s54, {7 * 2048}')
        A('s_add_u32 s42, s42, s50')
        A(f's_add_u32 s42, s42, {L.YF if kind == "Y" else L.TF}')
    chain.tl(A, CFG, 's69', 2, 24)
    acc = G.emit_gemm_main(A, 'g1' + kind, 2, 28, 28672, 28672, kind == 'Y', ld, ld, NBUF=3)
    chain.tl(A, CFG, 's69', 3, 24)
    if kind == 'GU':
        G.emit_epi_gu(A, acc, 2, 112 * 1024, st)
    else:
        G.emit_epi_pack(A, acc, 2, 16 * 28672, st)


def item_y0(A):
    A('s_lshr_b32 s53, s39, 5')
    A('s_and_b32 s54, s39, 31')
    A('s_lshl_b32 s55, s53, 2')
    A('s_add_u32 s55, s55, s13')
    A('s_mul_i32 s40, s55, 28672')
    A(f's_add_u32 s40, s40, {L.XF}')
    A(f's_mul_i32 s41, s54, {7 * 28672}')
    A(f's_add_u32 s41, s41, {L.WF + L.NB_B * 28672}')
    A(f's_mul_i32 s42, s55, {16 * 28672}')
    A(f's_mul_i32 s50, s54, {7 * 2048}')
    A('s_add_u32 s42, s42, s50')
    A(f's_add_u32 s42, s42, {L.YF}')
    acc = G.emit_gemm_main(A, 'y0', 1, 28, 0, 28672, True, ' sc1', ' sc1', NBUF=3)
    G.emit_epi_pack(A, acc, 1, 0)


def item_gemm2(A):
    A('s_and_b32 s52, s39, 1')
    A('s_lshr_b32 s53, s39, 2')
    A('s_bfe_u32 s54, s39, 0x10001')
    A('s_lshl_b32 s55, s53, 2')
    A('s_add_u32 s55, s55, s13')
    A(f's_mul_i32 s51, s52, {56 * 1024}')
    A(f's_mul_i32 s40, s55, {112 * 1024}')
    A('s_add_u32 s40, s40, s51')
    A(f's_add_u32 s40, s40, {L.HF}')
    A(f's_mul_i32 s41, s54, {7 * 112 * 1024}')
    A('s_add_u32 s41, s41, s51')
    A(f's_add_u32 s41, s41, {L.WDF}')
    A(f's_mul_i32 s42, s55, {14 * 2048}')
    A(f's_mul_i32 s50, s54, {7 * 2048}')
    A('s_add_u32 s42, s42, s50')
    A(f's_mul_i32 s50, s52, {L.PS1 - L.PS}')
    A('s_add_u32 s42, s42, s50')
    A(f's_add_u32 s42, s42, {L.PS}')
    chain.tl(A, CFG, 's69', 2, 24)
    acc = G.emit_gemm_main(A, 'g2', 1, 56, 0, 112 * 1024, False, ' sc1', ' sc1', NBUF=5)
    chain.tl(A, CFG, 's69', 3, 24)
    G.emit_epi_pack(A, acc, 1, 0)


PXS = 40960


def guard(A):
    A('s_add_u32 s33, s33, 1')
    A('s_cmp_gt_u32 s33, 0x200000')
    A('s_cbranch_scc1 L_bail')


def sent_check(A, tmp, regs):
    A(f'v_max3_u32 {v(tmp)}, {v(regs[0])}, {v(regs[1])}, {v(regs[2])}')
    i = 3
    while i + 1 < len(regs):
        A(f'v_max3_u32 {v(tmp)}, {v(tmp)}, {v(regs[i])}, {v(regs[i + 1])}')
        i += 2
    if i < len(regs):
        A(f'v_max_u32 {v(tmp)}, {v(tmp)}, {v(regs[i])}')
    A(f'v_cmp_eq_u32 vcc, -1, {v(tmp)}')


def pregate(A, sseg, back, vt, sleeps):
    A(f's_max_u32 s38, {sseg}, {back}')
    A(f's_sub_u32 s38, s38, {back}')
    A(f's_lshl_b32 s38, s38, 13')
    A(f's_add_u32 s38, s38, {L.MEMX}')
    A(f'v_mov_b32 {v(vt)}, 0')
    lab, ok = A.newlabel('PG'), A.newlabel('PGok')
    A.label(lab, keep=True)
    guard(A)
    A(f'buffer_load_dword {v(vt + 1)}, {v(vt)}, {SRD}, s38 offen sc1')
    A('s_waitcnt vmcnt(0)')
    A(f'v_cmp_eq_u32 vcc, -1, {v(vt + 1)}')
    A(f's_cbranch_vccz {ok}')
    for sl in sleeps:
        A(f's_sleep {sl}')
    A(f's_branch {lab}')
    A.label(ok, keep=True)


def approach(A, sseg, vt, last_back):
    skip = A.newlabel('AP')
    A('s_cmp_lg_u32 s13, 0')
    A(f's_cbranch_scc1 {skip}')
    pregate(A, sseg, last_back + 6, vt, (127, 127))
    pregate(A, sseg, last_back + 2, vt, (48,))
    pregate(A, sseg, last_back, vt, (10,))
    A.label(skip, keep=True)
    A('s_barrier')


def item_punit(A, ld=' sc1', st=' sc1', hook=None):
    VL, VLIN, VPERM = G.VL, G.VLIN, G.VPERM
    XL, ML, PM = 0, 28672, 28672 + 8192
    SX, SM, KB, Q = 32, 48, 64, 96
    vMR, vTT, vPW, t0, t1, t2 = 5, 6, 7, 8, 9, 10
    chain.tl(A, CFG, 's69', 2, 24)
    A('s_lshr_b32 s53, s39, 2')
    A('s_and_b32 s54, s39, 3')
    A('s_lshl_b32 s55, s54, 2')
    A('s_add_u32 s55, s55, s13')
    A('s_lshl_b32 s50, s53, 4')
    A('s_add_u32 s50, s50, s55')
    A('s_mul_i32 s40, s50, 28672')
    A(f's_add_u32 s40, s40, {L.TF}')
    A('s_mul_i32 s41, s53, 28672')
    A('s_mul_i32 s50, s13, 7168')
    A('s_add_u32 s41, s41, s50')
    A(f's_add_u32 s41, s41, {L.XF}')
    A(f's_add_u32 s50, s50, {XL}')
    A('s_mov_b32 m0, s50')
    for c in range(7):
        if c == 4:
            A('s_add_u32 s50, s50, 4096')
            A('s_mov_b32 m0, s50')
            A('s_add_u32 s41, s41, 4096')
        A(f'buffer_load_dwordx4 {v(VLIN)}, {SRD}, s41 offen offset:{(c & 3) * 1024}{ld} lds')
    for ks in range(28):
        if ks and ks % 4 == 0:
            A('s_add_u32 s40, s40, 4096')
        A(f'buffer_load_dwordx4 {a(4 * ks, 4)}, {v(VLIN)}, {SRD}, s40 offen offset:{(ks & 3) * 1024}{ld}')
    A('s_lshl_b32 s44, s53, 13')
    A('s_lshl_b32 s46, s13, 11')
    A('s_add_u32 s44, s44, s46')
    A(f's_add_u32 s44, s44, {L.MEMX}')
    A('s_cmp_eq_u32 s13, 3')
    A('s_cselect_b32 s45, 0, 1024')
    A('s_add_u32 s45, s45, s44')
    A(f'buffer_load_dwordx4 {v(Q, 4)}, {v(VLIN)}, {SRD}, s44 offen sc1')
    A(f'buffer_load_dwordx4 {v(Q + 4, 4)}, {v(VLIN)}, {SRD}, s45 offen sc1')
    for r in range(32):
        A(f'v_mov_b32 {v(SX + r)}, 0')
    A(f'v_lshrrev_b32 {v(t0)}, 5, {v(VL)}')
    A(f'v_and_b32 {v(t1)}, 7, {v(VL)}')
    A(f'v_lshlrev_b32 {v(vMR)}, 4, {v(t1)}')
    A(f'v_lshl_add_u32 {v(vMR)}, {v(t0)}, 7, {v(vMR)}')
    A(f'v_add_u32 {v(vMR)}, {ML}, {v(vMR)}')
    A(f'v_and_b32 {v(t1)}, 31, {v(VL)}')
    A(f'v_lshlrev_b32 {v(t0)}, 3, {v(t0)}')
    A(f'v_sub_u32 {v(vTT)}, {v(t1)}, {v(t0)}')
    A('s_waitcnt vmcnt(30)')
    A('s_barrier')

    def pass_(accr, addr, stride):
        D = 6
        for ks in range(D):
            A(f'ds_read_b128 {v(KB + 4 * (ks % 8), 4)}, {v(addr)} offset:{ks * stride}')
        for ks in range(28):
            A.auto(f'v_mfma_f32_32x32x16_bf16 {v(accr, 16)}, {v(KB + 4 * (ks % 8), 4)}, {a(4 * ks, 4)}, {v(accr, 16)}')
            if ks + D < 28:
                A(f'ds_read_b128 {v(KB + 4 * ((ks + D) % 8), 4)}, {v(addr)} offset:{(ks + D) * stride}')
    pass_(SX, VPERM, 1024)
    A(f'v_mov_b32 {v(t2)}, 0xf149f2ca')
    for r in range(16):
        A(f'v_cmp_le_i32 vcc, {16 * (r >> 3) + (r & 7)}, {v(vTT)}')
        A(f'v_cndmask_b32 {v(SX + r)}, {v(t2)}, {v(SX + r)}, vcc')
    chain.tl(A, CFG, 's69', 3, 24)
    ok = A.newlabel('P_ok')
    near = A.newlabel('P_near')
    A('s_waitcnt vmcnt(0)')
    sent_check(A, t1, [Q + i for i in range(8)])
    A('s_mov_b64 s[48:49], vcc')
    A('s_cmp_lg_u32 s13, 0')
    A(f's_cbranch_scc1 {near}')
    A(f's_cbranch_vccz {near}')
    pregate(A, 's53', 7, t0, (127, 127))
    pregate(A, 's53', 3, t0, (48,))
    pregate(A, 's53', 1, t0, (10,))
    A.label(near, keep=True)
    A('s_barrier')
    A('s_cmp_eq_u64 s[48:49], 0')
    A(f's_cbranch_scc1 {ok}')
    poll = A.newlabel('P_poll')
    A.label(poll, keep=True)
    guard(A)
    A(f'buffer_load_dwordx4 {v(Q, 4)}, {v(VLIN)}, {SRD}, s44 offen sc1')
    A(f'buffer_load_dwordx4 {v(Q + 4, 4)}, {v(VLIN)}, {SRD}, s45 offen sc1')
    A('s_waitcnt vmcnt(0)')
    sent_check(A, t1, [Q + i for i in range(8)])
    A(f's_cbranch_vccz {ok}')
    A('s_sleep 2')
    A(f's_branch {poll}')
    A.label(ok, keep=True)
    if hook:
        hook(A)
    A(f'v_add_u32 {v(t0)}, s46, {v(VLIN)}')
    A(f'v_add_u32 {v(t0)}, {ML}, {v(t0)}')
    A(f'ds_write_b128 {v(t0)}, {v(Q, 4)}')
    A(f'ds_write_b128 {v(t0)}, {v(Q + 4, 4)} offset:1024')
    A('s_waitcnt lgkmcnt(0)')
    A('s_barrier')
    pass_(SM, vMR, 256)
    vals = [SX + r for r in range(16)] + [SM + r for r in range(4)]
    m, m2, l_, l2 = 11, 12, 13, 14
    A(f'v_max3_f32 {v(m)}, {v(vals[0])}, {v(vals[1])}, {v(vals[2])}')
    for i in range(3, 19, 2):
        A(f'v_max3_f32 {v(m)}, {v(m)}, {v(vals[i])}, {v(vals[i + 1])}')
    A(f'v_max_f32 {v(m)}, {v(m)}, {v(vals[19])}')
    A(f'v_mov_b32 {v(m2)}, {v(m)}')
    A(f'v_permlane32_swap_b32 {v(m)}, {v(m2)}')
    A(f'v_max_f32 {v(m)}, {v(m)}, {v(m2)}')
    for x in vals:
        A(f'v_sub_f32 {v(x)}, {v(x)}, {v(m)}')
    for x in vals:
        A(f'v_exp_f32 {v(x)}, {v(x)}')
    A(f'v_add_f32 {v(l_)}, {v(vals[0])}, {v(vals[1])}')
    A(f'v_add_f32 {v(l2)}, {v(vals[2])}, {v(vals[3])}')
    for i in range(4, 20, 2):
        A(f'v_add_f32 {v(l_)}, {v(l_)}, {v(vals[i])}')
        A(f'v_add_f32 {v(l2)}, {v(l2)}, {v(vals[i + 1])}')
    A(f'v_add_f32 {v(l_)}, {v(l_)}, {v(l2)}')
    A(f'v_mov_b32 {v(l2)}, {v(l_)}')
    A(f'v_permlane32_swap_b32 {v(l_)}, {v(l2)}')
    A(f'v_add_f32 {v(l_)}, {v(l_)}, {v(l2)}')
    A(f'v_rcp_f32 {v(l_)}, {v(l_)}')
    for x in vals:
        A(f'v_mul_f32 {v(x)}, {v(x)}, {v(l_)}')
    for i in range(10):
        A(f'v_cvt_pk_bf16_f32 {v(Q + i)}, {v(vals[2 * i])}, {v(vals[2 * i + 1])}')
    for i in range(10):
        A(f'v_min_u32 {v(Q + i)}, -2, {v(Q + i)}')
    A(f's_mul_i32 s42, s53, {PXS}')
    A(f's_add_u32 s42, s42, {L.PX}')
    A('s_lshl_b32 s50, s55, 11')
    A('s_add_u32 s50, s50, s42')
    for ph in range(2):
        A(f'buffer_store_dwordx4 {v(Q + 4 * ph, 4)}, {v(VLIN)}, {SRD}, s50 offen offset:{ph * 1024}{st}')
    A('s_and_b32 s50, s13, 1')
    A('s_lshl_b32 s50, s50, 10')
    A('s_lshr_b32 s51, s13, 1')
    A('s_lshl_b32 s51, s51, 2')
    A('s_add_u32 s51, s51, s50')
    A(f's_add_u32 s51, s51, {PM}')
    A(f'v_add_u32 {v(vPW)}, s51, {v(VLIN)}')
    A(f'ds_write2_b32 {v(vPW)}, {v(Q + 8)}, {v(Q + 9)} offset0:0 offset1:2')
    A('s_waitcnt lgkmcnt(0)')
    A('s_barrier')
    done = A.newlabel('P_done')
    A('s_cmp_ge_u32 s13, 2')
    A(f's_cbranch_scc1 {done}')
    A(f'ds_read_b128 {v(Q + 12, 4)}, {v(vPW)}')
    A('s_lshl_b32 s51, s54, 11')
    A('s_add_u32 s50, s50, s51')
    A('s_add_u32 s50, s50, s42')
    A(f's_add_u32 s50, s50, 32768')
    A('s_waitcnt lgkmcnt(0)')
    A(f'buffer_store_dwordx4 {v(Q + 12, 4)}, {v(VLIN)}, {SRD}, s50 offen{st}')
    A.label(done, keep=True)


def item_pvunit(A, wait_px=None, ld=' sc1', hook=None):
    VL, VLIN = G.VL, G.VLIN
    ACC, YMR, RR = 32, 48, 64
    vY, vYM, vO, t0, t1, t2 = 5, 6, 7, 8, 9, 10
    chain.tl(A, CFG, 's69', 2, 24)
    A('s_mul_hi_u32 s53, s39, 0x24924925')
    A('s_mul_i32 s50, s53, 7')
    A('s_sub_u32 s54, s39, s50')
    A('s_lshl_b32 s54, s54, 1')
    A('s_and_b32 s50, s13, 1')
    A('s_add_u32 s54, s54, s50')
    A('s_lshr_b32 s55, s13, 1')
    A(f'v_lshrrev_b32 {v(t0)}, 4, {v(G.VPERM)}')
    A(f'v_and_b32 {v(t0)}, 31, {v(t0)}')
    A(f'v_and_b32 {v(t1)}, 1, {v(t0)}')
    A(f'v_lshrrev_b32 {v(t0)}, 1, {v(t0)}')
    A(f'v_lshrrev_b32 {v(t2)}, 5, {v(VL)}')
    A(f'v_lshlrev_b32 {v(vY)}, 4, {v(t0)}')
    A(f'v_lshl_add_u32 {v(vYM)}, {v(t1)}, 10, {v(vY)}')
    A(f'v_lshl_add_u32 {v(vYM)}, {v(t2)}, 8, {v(vYM)}')
    A(f'v_lshl_add_u32 {v(vY)}, {v(t1)}, 8, {v(vY)}')
    A(f'v_lshl_add_u32 {v(vY)}, {v(t2)}, 9, {v(vY)}')
    A(f'v_and_b32 {v(t0)}, 31, {v(VL)}')
    A(f'v_mul_u32_u24 {v(vO)}, 896, {v(t0)}')
    A(f'v_lshl_add_u32 {v(vO)}, {v(t2)}, 4, {v(vO)}')
    A('s_lshl_b32 s50, s53, 4')
    A('s_lshl_b32 s51, s55, 3')
    A('s_add_u32 s50, s50, s51')
    A('s_mul_i32 s50, s50, 14')
    A('s_add_u32 s50, s50, s54')
    A('s_lshl_b32 s40, s50, 11')
    A(f's_add_u32 s40, s40, {L.YF}')
    for hh in range(8):
        for ph in range(2):
            A(f'buffer_load_dwordx4 {a((hh * 2 + ph) * 4, 4)}, {v(vY)}, {SRD}, s40 offen offset:{ph * 1024}{ld}')
        A(f's_add_u32 s40, s40, {14 * 2048}')
    A('s_mul_i32 s41, s53, 14')
    A('s_add_u32 s41, s41, s54')
    A('s_lshl_b32 s42, s41, 11')
    A(f's_mul_i32 s50, s55, {L.PS1 - L.PS}')
    A('s_add_u32 s42, s42, s50')
    A(f's_add_u32 s42, s42, {L.PS}')
    PSR, XR = 80, 88
    for ph in range(2):
        A(f'buffer_load_dwordx4 {v(PSR + 4 * ph, 4)}, {v(VLIN)}, {SRD}, s42 offen offset:{ph * 1024}{ld}')
    A(f's_mul_i32 s44, s53, {32 * 896}')
    A('s_lshl_b32 s51, s54, 6')
    A('s_add_u32 s44, s44, s51')
    A('s_cmp_eq_u32 s55, 0')
    A('s_cselect_b32 s50, s44, 0x40000000')
    for ph in range(2):
        A(f'buffer_load_dwordx4 {v(XR + 4 * ph, 4)}, {v(vO)}, {SRD_X}, s50 offen offset:{ph * 32}')
    A('s_lshl_b32 s41, s41, 2')
    A('s_lshl_b32 s50, s55, 1')
    A('s_add_u32 s41, s41, s50')
    A(f's_add_u32 s43, s41, {L.F_YM}')
    A('s_lshl_b32 s41, s41, 11')
    A(f's_add_u32 s41, s41, {L.YM}')
    if wait_px:
        wait_px(A)
    chain.tl(A, CFG, 's69', 3, 24)
    if hook:
        hook(A)
    for wq in range(2):
        for u in range(2):
            A(f'buffer_load_dwordx4 {v(YMR + (wq * 2 + u) * 4, 4)}, {v(vYM)}, {SRD}, s41 offen offset:{wq * 2048 + u * 512} sc1')
    for i in range(8):
        A(f'v_lshlrev_b32 {v(ACC + 2 * i)}, 16, {v(PSR + i)}')
        A(f'v_and_b32 {v(ACC + 2 * i + 1)}, 0xffff0000, {v(PSR + i)}')
        A(f'v_lshlrev_b32 {v(t0)}, 16, {v(XR + i)}')
        A(f'v_and_b32 {v(t1)}, 0xffff0000, {v(XR + i)}')
        A(f'v_add_f32 {v(ACC + 2 * i)}, {v(ACC + 2 * i)}, {v(t0)}')
        A(f'v_add_f32 {v(ACC + 2 * i + 1)}, {v(ACC + 2 * i + 1)}, {v(t1)}')
    PR = 96
    A(f's_mul_i32 s42, s53, {PXS}')
    A(f's_add_u32 s42, s42, {L.PX}')
    poll, ok = A.newlabel('PV_poll'), A.newlabel('PV_ok')
    A.label(poll, keep=True)
    guard(A)
    A('s_lshl_b32 s50, s55, 14')
    A('s_add_u32 s40, s42, s50')
    for k in range(16):
        if k and k % 4 == 0:
            A('s_add_u32 s40, s40, 4096')
        A(f'buffer_load_dwordx4 {v(PR + 4 * k, 4)}, {v(VLIN)}, {SRD}, s40 offen offset:{(k & 3) * 1024} sc1')
    A('s_lshl_b32 s50, s55, 12')
    A('s_add_u32 s40, s42, s50')
    A('s_add_u32 s40, s40, 32768')
    for k in range(4):
        A(f'buffer_load_dwordx4 {v(PR + 64 + 4 * k, 4)}, {v(VLIN)}, {SRD}, s40 offen offset:{k * 1024} sc1')
    A(f'v_mov_b32 {v(t0)}, 0')
    for i in range(40):
        A.auto(f'v_max3_u32 {v(t0)}, {v(t0)}, {v(PR + 2 * i)}, {v(PR + 2 * i + 1)}')
    A(f'v_cmp_eq_u32 vcc, -1, {v(t0)}')
    A(f's_cbranch_vccz {ok}')
    A('s_sleep 2')
    A(f's_branch {poll}')
    A.label(ok, keep=True)
    for k in range(16):
        A.auto(f'v_mfma_f32_32x32x16_bf16 {v(ACC, 16)}, {a(4 * k, 4)}, {v(PR + 4 * k, 4)}, {v(ACC, 16)}')
    for k in range(4):
        A.auto(f'v_mfma_f32_32x32x16_bf16 {v(ACC, 16)}, {v(YMR + 4 * k, 4)}, {v(PR + 64 + 4 * k, 4)}, {v(ACC, 16)}')
    A('s_and_b32 s50, s13, 1')
    A('s_lshl_b32 s50, s50, 12')
    A(f'v_add_u32 {v(t0)}, s50, {v(VLIN)}')
    lo = A.newlabel('PV_lo')
    done = A.newlabel('PV_done')
    A('s_cmp_eq_u32 s55, 0')
    A(f's_cbranch_scc1 {lo}')
    for q in range(4):
        A(f'ds_write_b128 {v(t0)}, {v(ACC + 4 * q, 4)} offset:{q * 1024}')
    A('s_waitcnt lgkmcnt(0)')
    A('s_barrier')
    A(f's_branch {done}')
    A.label(lo)
    A('s_barrier')
    for q in range(4):
        A(f'ds_read_b128 {v(RR + 4 * q, 4)}, {v(t0)} offset:{q * 1024}')
    A('s_nop 7')
    for r in range(8):
        A.auto(f'v_pk_add_f32 {v(ACC + 2 * r, 2)}, {v(ACC + 2 * r, 2)}, {v(RR + 2 * r, 2)}')
    for i in range(8):
        A(f'v_cvt_pk_bf16_f32 {v(RR + i)}, {v(ACC + 2 * i)}, {v(ACC + 2 * i + 1)}')
    for ph in range(2):
        A(f'buffer_store_dwordx4 {v(RR + 4 * ph, 4)}, {v(vO)}, {SRD_OUT}, s44 offen offset:{ph * 32}')
    A.label(done, keep=True)
```

```python
import sys
from asmdsl import Asm, v, a, s
import layout as L
import gemm as G
import items as I
import prep
import prep2
import chain
from build_multi import KD, srd

SRD = 's[8:11]'
LDSW = 0x24f00
NAME = 'parallel_sum__memory_aug_recurrent_mem_tr__glu_gated_bilinear__prompt_kernel'


def flag_store(A, idx_sreg):
    A(f's_lshl_b32 s38, {idx_sreg}, 3')
    A(f's_add_u32 s38, s38, {L.FLAGS}')
    A('v_mov_b32 v24, s96')
    A('v_mov_b32 v25, s97')
    A(f'buffer_store_dwordx2 v[24:25], v31, {SRD}, s38 offen sc1')


def emit_main(A, cfg):
    XC = cfg.get('xcc', 0)
    tl = chain.tl
    A('s_cmp_ge_u32 s2, 256')
    A('s_cbranch_scc1 L_bail')
    A('s_load_dwordx4 s[4:7], s[0:1], 96')
    A('s_load_dwordx16 s[80:95], s[0:1], 0')
    A('s_load_dwordx8 s[16:23], s[0:1], 64')
    A('s_memrealtime s[98:99]')
    A('v_lshrrev_b32 v1, 6, v0')
    A('v_readfirstlane_b32 s13, v1')
    A('s_mov_b32 s33, 0')
    A('s_getreg_b32 s12, hwreg(HW_REG_XCC_ID)')
    A('s_and_b32 s12, s12, 15')
    A(f'v_mov_b32 v28, {LDSW}')
    A('v_mov_b32 v31, 0')
    A('v_mov_b32 v29, 32')
    A('s_add_u32 s75, s12, 6')
    A('s_mul_hi_u32 s38, s75, 0x24924925')
    A('s_mul_i32 s38, s38, 7')
    A('s_sub_u32 s77, s75, s38')
    A('s_mov_b32 s78, 7')
    G.emit_common_regs(A)
    if cfg.get('codepf', 0):
        A.raw('    s_getpc_b64 s[24:25]')
        A.raw('CODE_PC:')
        A('s_lshr_b32 s26, s2, 3')
        A('s_lshl_b32 s26, s26, 2')
        A('s_add_u32 s26, s26, s13')
        A.raw('    s_cmp_ge_u32 s26, (CODE_END - CODE_PC) / 8192')
        A('s_cbranch_scc1 E_pf')
        A('s_lshl_b32 s26, s26, 13')
        A('v_lshlrev_b32 v4, 7, v1')
        A('v_add_u32 v4, s26, v4')
        A('global_load_dword v247, v4, s[24:25]')
        A.label('E_pf', keep=True)
        A.vm = []
    A('s_waitcnt lgkmcnt(0)')
    srd(A, 8, 6, 7, L.WS_BYTES)
    srd(A, 56, 80, 81, 2048 * 896)
    srd(A, 60, 22, 23, 2048 * 896)
    A('s_mov_b64 s[34:35], s[16:17]')
    A('s_mov_b64 s[36:37], s[18:19]')
    A('s_mov_b64 s[64:65], s[20:21]')
    A('s_mov_b64 s[66:67], s[82:83]')
    tl(A, cfg, 's2', 0, 24, 0x1c000)
    A('s_cmp_lg_u32 s13, 0')
    A('s_cbranch_scc1 E_1')
    A('s_mov_b64 exec, 1')
    A('s_or_b32 s98, s98, 1')
    A('v_mov_b32 v240, s98')
    A('v_mov_b32 v241, s99')
    A('v_mov_b32 v242, 0')
    A('v_mov_b32 v243, 0')
    A('global_atomic_cmpswap_x2 v[244:245], v31, v[240:243], s[4:5] offset:16 sc0')
    A('v_mov_b32 v246, 64')
    A(f's_cmp_eq_u32 s12, {XC}')
    A('s_cbranch_scc0 E_0')
    A('v_mov_b32 v246, 1')
    A('global_atomic_add v246, v31, v246, s[4:5] sc0')
    A.label('E_0')
    A('s_mov_b64 exec, -1')
    A.label('E_1')
    A.forget()
    prep2.ln2_issue(A, 's[56:59]')
    A('s_and_b32 s50, s2, 7')
    A('s_lshl_b32 s50, s50, 2')
    A('s_bfe_u32 s51, s2, 0x20003')
    A('s_add_u32 s50, s50, s51')
    A('s_lshr_b32 s51, s2, 5')
    A('s_lshl_b32 s69, s50, 3')
    A('s_add_u32 s3, s69, s51')
    A('s_and_b32 s53, s50, 15')
    A('s_and_b32 s54, s51, 3')
    A('s_lshr_b32 s55, s51, 2')
    A('s_cmp_ge_u32 s50, 16')
    A('s_cbranch_scc1 E_B')
    srd(A, 68, 84, 85, 448 * 8192)
    srd(A, 72, 86, 87, 448 * 8192)
    prep2.item_ab2(A, 0)
    A('s_branch E_2')
    A.label('E_B')
    A.forget()
    srd(A, 68, 88, 89, 448 * 8192)
    srd(A, 72, 90, 91, 4096 * 896)
    prep2.item_ab2(A, 1)
    A.label('E_2')
    A.forget()
    for r in range(4):
        A(f'v_mov_b32 v{12 + r}, -1')
    A('s_lshl_b32 s50, s2, 2')
    A('s_add_u32 s50, s50, s13')
    A('s_mul_i32 s52, s50, 3072')
    A(f's_add_u32 s52, s52, {L.PX}')
    A('s_and_b32 s51, s50, 0x2fc')
    A('s_lshl_b32 s50, s50, 11')
    A(f's_add_u32 s50, s50, {L.MEMA}')
    A('s_cmp_eq_u32 s51, 0')
    A('s_cselect_b32 s50, 0x40000000, s50')
    A(f'buffer_store_dwordx4 v[12:15], {v(G.VLIN)}, {SRD}, s50 offen sc1')
    A(f'buffer_store_dwordx4 v[12:15], {v(G.VLIN)}, {SRD}, s50 offen offset:1024 sc1')
    for k in range(3):
        A(f'buffer_store_dwordx4 v[12:15], {v(G.VLIN)}, {SRD}, s52 offen offset:{k * 1024} sc1')
    A('s_cmp_ge_u32 s2, 2')
    A('s_cbranch_scc1 E_2b')
    A('s_lshl_b32 s39, s2, 2')
    A('s_add_u32 s39, s39, s13')
    A('s_min_u32 s39, s39, 6')
    srd(A, 68, 66, 67, 8 * 896)
    A('s_nop 1')
    prep.wave_mem0(A, 's[68:71]', ' sc1', 32)
    A.label('E_2b')
    A.forget()
    A('s_mov_b32 s75, s77')
    A('s_mov_b32 s76, s78')
    A('s_waitcnt vmcnt(0)')
    tl(A, cfg, 's2', 1, 24, 0x1c000)
    if cfg.get('tl'):
        A('v_mov_b32 v24, s92')
        A(f'buffer_store_dword v24, v25, {SRD}, s101 offen offset:8')
        A('v_mov_b32 v26, s94')
        A(f'buffer_store_dword v26, v25, {SRD}, s101 offen offset:12')
    A('s_cmp_lg_u32 s13, 0')
    A('s_cbranch_scc1 E_3')
    A('s_mov_b64 exec, 1')
    A('v_cmp_eq_u64 vcc, 0, v[244:245]')
    A('v_cndmask_b32 v244, v244, v240, vcc')
    A('v_cndmask_b32 v245, v245, v241, vcc')
    A('ds_write_b64 v28, v[244:245] offset:8')
    A('ds_write_b32 v28, v246')
    A('s_waitcnt lgkmcnt(0)')
    A('s_mov_b64 exec, -1')
    A.label('E_3')
    A('s_barrier')
    A('ds_read_b64 v[26:27], v28 offset:8')
    A('ds_read_b32 v30, v28')
    A('s_waitcnt lgkmcnt(0)')
    A('v_readfirstlane_b32 s96, v26')
    A('v_readfirstlane_b32 s97, v27')
    A('v_readfirstlane_b32 s14, v30')
    A('s_cmp_lg_u32 s13, 0')
    A('s_cbranch_scc1 E_4')
    A('s_mov_b64 exec, 1')
    A(f's_add_u32 s69, s3, {L.F_AB}')
    flag_store(A, 's69')
    A(f's_add_u32 s69, s2, {L.F_LN}')
    flag_store(A, 's69')
    A('s_mov_b64 exec, -1')
    A.label('E_4')
    A.forget()
    A('s_branch CL_got')
    A.label('CLAIM')
    A.forget()
    A('s_cmp_lg_u32 s13, 0')
    A('s_cbranch_scc1 CL_w')
    A('s_mov_b64 exec, 1')
    A('v_mov_b32 v30, 1')
    A('global_atomic_add v30, v31, v30, s[4:5] sc0')
    A('s_waitcnt vmcnt(0)')
    A('ds_write_b32 v28, v30')
    A('s_waitcnt lgkmcnt(0)')
    A('s_mov_b64 exec, -1')
    A.label('CL_w')
    A('s_barrier')
    A('ds_read_b32 v30, v28')
    A('s_waitcnt lgkmcnt(0)')
    A('v_readfirstlane_b32 s14, v30')
    A.label('CL_got')
    A('s_barrier')
    A('v_mov_b32 v29, 32')
    A('s_cmp_ge_u32 s14, 32')
    A('s_cbranch_scc1 W_deq')
    A('s_cmp_lg_u32 s13, 0')
    A('s_cbranch_scc1 CL_r')
    A('s_mov_b64 exec, 1')
    A('s_mul_i32 s38, s12, s12')
    A('s_lshl_b32 s38, s38, 9')
    A('s_add_u32 s38, s38, s12')
    A('s_lshl_b32 s38, s38, 6')
    A('s_add_u32 s38, s38, 1')
    A('v_mov_b32 v30, s38')
    A('global_atomic_add v31, v30, s[4:5] offset:8')
    A('s_mov_b64 exec, -1')
    A.label('CL_r')
    A.forget()
    A('s_cmp_ge_u32 s14, 30')
    A('s_cbranch_scc1 L_roleC')
    A('s_cmp_ge_u32 s14, 16')
    A('s_cbranch_scc1 L_roleB')
    A.raw('CHAIN_BEGIN:')
    chain.emit_A(A, cfg)
    A.label('L_roleB')
    A.forget()
    A('s_sub_u32 s14, s14, 16')
    chain.emit_B(A, cfg)
    A.label('L_roleC')
    A.forget()
    A('s_sub_u32 s14, s14, 30')
    chain.emit_C(A, cfg)
    A.label('L_bail')
    A('s_endpgm')

    def dequeue():
        A('s_lshl_b32 s38, s75, 2')
        A('v_mov_b32 v26, s38')
        A('v_mov_b32 v30, 1')
        A('global_atomic_add v30, v26, v30, s[4:5] offset:128 sc0')

    A.label('W_deq')
    A.forget()
    A('s_cmp_lg_u32 s13, 0')
    A('s_cbranch_scc1 W_f2')
    A('s_mov_b64 exec, 1')
    dequeue()
    A('s_waitcnt vmcnt(0)')
    A('ds_write_b32 v28, v30')
    A('s_waitcnt lgkmcnt(0)')
    A('s_mov_b64 exec, -1')
    A.label('W_f2')
    A('s_barrier')
    A.label('W_next')
    A.forget()
    A('ds_read_b32 v26, v28')
    A('s_waitcnt lgkmcnt(0)')
    A('v_readfirstlane_b32 s68, v26')
    A('s_cmp_eq_u32 s68, -1')
    A('s_cbranch_scc1 W_claim')
    A('s_cmp_eq_u32 s75, 7')
    A('s_cbranch_scc1 W_late')
    c0 = 0
    phases = ((32, 2, 'W_y0', 0), (32, 7, 'W_y', 1), (16, 7, 'W_pk', 0), (56, 1, 'W_pw', 0), (16, 8, 'W_gu', 1), (16, 8, 'W_t1', 1),
              (64, 1, 'W_g2', 1), (16, 8, 'W_t2', 1))
    for ncol, nrow, lab, adv in phases:
        A(f's_add_u32 s70, s75, {(7 - c0 % 7) % 7}')
        A('s_cmp_ge_u32 s70, 7')
        A('s_cselect_b32 s38, 7, 0')
        A('s_sub_u32 s70, s70, s38')
        full, rem = divmod(ncol, 7)
        A(f's_cmp_lt_u32 s70, {rem}')
        A(f's_cselect_b32 s71, {full + 1}, {full}')
        A(f's_cselect_b32 s72, {-(-65536 // (full + 1))}, 0')
        A(f's_cselect_b32 s38, 0, {-(-65536 // full)}')
        A('s_add_u32 s72, s72, s38')
        A(f's_mul_i32 s38, s71, {nrow}')
        A('s_cmp_lt_u32 s68, s38')
        A(f's_cbranch_scc1 {lab}')
        A('s_sub_u32 s68, s68, s38')
        if adv:
            c0 += ncol
    sizes = []
    for x in range(7):
        c0_, tot = 0, 0
        for ncol, nrow, lab, adv in phases:
            f = (x - c0_) % 7
            tot += len(range(f, ncol, 7)) * nrow
            if adv:
                c0_ += ncol
        sizes.append(tot)
    A('v_and_b32 v8, 7, v0')
    A('v_lshlrev_b32 v8, 2, v8')
    A('global_load_dword v9, v8, s[4:5] offset:128 sc1')
    A('v_mov_b32 v10, 0')
    for x in range(7):
        A(f's_mov_b32 s38, {sizes[x]}')
        A(f'v_writelane_b32 v10, s38, {x}')
    A('s_waitcnt vmcnt(0)')
    A('v_cmp_lt_u32 vcc, v9, v10')
    A('s_and_b32 s38, vcc_lo, 0x7f')
    A('s_or_b32 s38, s38, 0x80')
    A('s_ff1_i32_b32 s38, s38')
    A('v_mov_b32 v9, s38')
    A('s_barrier')
    A('s_cmp_lg_u32 s13, 0')
    A('s_cbranch_scc1 W_x1')
    A('ds_write_b32 v28, v9 offset:4')
    A('s_waitcnt lgkmcnt(0)')
    A.label('W_x1')
    A('s_barrier')
    A('ds_read_b32 v9, v28 offset:4')
    A('s_waitcnt lgkmcnt(0)')
    A('v_readfirstlane_b32 s75, v9')
    A('s_branch W_deq')

    def rbct():
        A('s_mul_i32 s73, s68, s72')
        A('s_lshr_b32 s73, s73, 16')
        A('s_mul_i32 s74, s73, s71')
        A('s_sub_u32 s74, s68, s74')
        A('s_mul_i32 s74, s74, 7')
        A('s_add_u32 s74, s74, s70')

    def fw(base, sreg, shift, n, sleep=4):
        A(f's_lshl_b32 s70, {sreg}, {shift}')
        A(f's_add_u32 s70, s70, {base}')
        chain.flag_wait(A, 's70', n, 8, sleep=sleep)

    A.label('W_y0')
    A.forget()
    rbct()
    A('s_lshl_b32 s39, s73, 5')
    A('s_add_u32 s39, s39, s74')
    A(f's_add_u32 s69, s39, {L.F_Y0}')
    tl(A, cfg, 's69', 0, 24)
    fw(L.F_LN, 's73', 4, 16)
    fw(L.F_AB + 128, 's74', 2, 4)
    I.item_y0(A)
    chain.dbgmax(A, cfg, 14, 24, ('s39', 40))
    A('s_branch W_end')
    A.label('W_t2')
    A('s_add_u32 s70, s70, 16')
    for lab, kind, sh, fb, add in (('W_t1', 'T', 5, L.F_T, 0), ('W_y', 'Y', 5, L.F_Y, 1), ('W_gu', 'GU', 4, L.F_GU, 0)):
        A.label(lab)
        A.forget()
        rbct()
        if add:
            A(f's_add_u32 s73, s73, {add}')
        A(f's_lshl_b32 s39, s73, {sh}')
        A('s_add_u32 s39, s39, s74')
        A(f's_add_u32 s69, s39, {fb}')
        tl(A, cfg, 's69', 0, 24)
        if kind == 'Y' and cfg.get('yield', 2) < 8:
            A(f's_cmp_lt_u32 s73, {cfg.get("yield", 2)}')
            A('s_cbranch_scc1 W_ny')
            A('s_cmp_lg_u32 s13, 0')
            A('s_cbranch_scc1 W_ny2')
            chain.soft_wait(A, L.F_INIT, 30, 8, cfg.get('ypolls', 10), 24)
            A.label('W_ny2', keep=True)
            A('s_barrier')
            A.label('W_ny', keep=True)
        fw(L.F_LN, 's73', 5, 32)
        if kind == 'GU':
            A('s_mul_i32 s74, s74, 7')
            fw(L.F_PK, 's74', 0, 7)
        else:
            fw(L.F_AB + (128 if kind == 'Y' else 0), 's74', 2, 4)
        I.item_gemm1(A, kind)
        A('s_branch W_end')
    A.label('W_pk')
    A.forget()
    rbct()
    A('s_mul_i32 s74, s74, 7')
    A('s_add_u32 s74, s74, s73')
    A(f's_add_u32 s43, s74, {L.F_PK}')
    A('s_lshl_b32 s39, s74, 2')
    A('s_add_u32 s39, s39, s13')
    A('s_mov_b64 s[46:47], s[74:75]')
    srd(A, 68, 34, 35, 448 * 3584)
    srd(A, 72, 36, 37, 448 * 3584)
    prep.wave_pack(A, 'GU', 7, ' sc1')
    A('s_mov_b64 s[74:75], s[46:47]')
    A('s_mov_b32 s69, s43')
    A('s_barrier')
    A('s_branch W_end')
    A.label('W_pw')
    A.forget()
    rbct()
    A(f's_add_u32 s43, s74, {L.F_PK + 112}')
    A('s_lshl_b32 s39, s74, 2')
    A('s_add_u32 s39, s39, s13')
    srd(A, 68, 64, 65, 1792 * 896)
    prep.wave_pack(A, 'WD', 7, ' sc1', 's[68:71]')
    A('s_mov_b32 s69, s43')
    A('s_barrier')
    A('s_branch W_end')
    A.label('W_g2')
    A.forget()
    rbct()
    A('s_mov_b32 s39, s74')
    A(f's_add_u32 s69, s39, {L.F_G2}')
    tl(A, cfg, 's69', 0, 24)
    chain.flag_wait(A, L.F_PK + 112, 56, 8, sleep=8)
    A('s_lshr_b32 s70, s39, 3')
    A('s_lshl_b32 s70, s70, 4')
    A('s_and_b32 s38, s39, 1')
    A('s_lshl_b32 s38, s38, 3')
    A('s_add_u32 s70, s70, s38')
    A(f's_add_u32 s70, s70, {L.F_GU}')
    chain.flag_wait(A, 's70', 8, 8, sleep=16)
    I.item_gemm2(A)
    chain.dbgmax(A, cfg, 15, 24, ('s39', 60))
    A('s_branch W_end')
    A.label('W_late')
    A.forget()
    LAG = cfg.get('lag', 5)
    A('s_cmp_eq_u32 s78, 0')
    A('s_cbranch_scc1 W_l2')
    chain.flag_wait_multi(A, [L.F_LN, L.F_LN + 64, L.F_LN + 128, L.F_LN + 192], 8)
    A('s_mov_b32 s78, 0')
    A.label('W_l2')
    A.forget()
    A(f's_cmp_ge_u32 s68, {(64 + LAG) * 11}')
    A('s_cbranch_scc1 L_bail')
    A('s_mul_hi_u32 s71, s68, 0x1745d175')
    A('s_mul_i32 s38, s71, 11')
    A('s_sub_u32 s72, s68, s38')
    A('s_cmp_ge_u32 s72, 4')
    A('s_cbranch_scc1 W_pv')
    A('s_cmp_ge_u32 s71, 64')
    A('s_cbranch_scc1 W_skip')
    A('s_lshl_b32 s39, s71, 2')
    A('s_add_u32 s39, s39, s72')
    A(f's_add_u32 s69, s39, {L.F_P}')
    tl(A, cfg, 's69', 0, 24)
    A('s_lshr_b32 s70, s71, 3')
    A('s_lshl_b32 s70, s70, 5')
    A('s_lshl_b32 s38, s72, 3')
    A('s_add_u32 s70, s70, s38')
    A(f's_add_u32 s70, s70, {L.F_T}')
    chain.flag_wait(A, 's70', 8, 8, sleep=16)
    def early_deq2(A):
        A('s_cmp_lg_u32 s13, 0')
        A('s_cbranch_scc1 W_ed2')
        A('s_mov_b64 exec, 1')
        dequeue()
        A('s_mov_b64 exec, -1')
        A.label('W_ed2', keep=True)
    I.item_punit(A, hook=early_deq2)
    A.forget()
    A('s_waitcnt vmcnt(3)')
    A('s_branch W_nf')
    A.label('W_skip')
    A('s_barrier')
    A('s_branch W_deq')
    A.label('W_pv')
    A.forget()
    A(f's_cmp_lt_u32 s71, {LAG}')
    A('s_cbranch_scc1 W_skip')
    A(f's_sub_u32 s71, s71, {LAG}')
    A('s_mul_i32 s39, s71, 7')
    A('s_add_u32 s39, s39, s72')
    A('s_sub_u32 s39, s39, 4')
    A(f's_add_u32 s69, s39, {L.F_PV}')
    tl(A, cfg, 's69', 0, 24)
    A('s_lshr_b32 s70, s71, 3')
    A('s_lshl_b32 s70, s70, 5')
    A('s_lshr_b32 s38, s71, 2')
    A('s_lshl_b32 s38, s38, 5')
    A(f's_add_u32 s38, s38, {L.F_Y0}')
    A('s_cmp_lt_u32 s71, 8')
    A('s_cselect_b32 s70, s38, s70')
    chain.flag_wait(A, 's70', 32, 8, sleep=16)
    A('s_lshr_b32 s70, s71, 2')
    A('s_lshl_b32 s70, s70, 2')
    A(f's_add_u32 s70, s70, {L.F_G2}')
    chain.flag_wait(A, 's70', 4, 8, sleep=16)

    def wait_px(A):
        I.approach(A, 's71', 12, 0)
        A('s_cmp_ge_u32 s71, 62')
        A('s_cbranch_scc1 W_ymf')
        A('s_add_u32 s38, s71, 2')
        A('s_lshl_b32 s38, s38, 13')
        A('s_lshl_b32 s70, s54, 9')
        A('s_add_u32 s38, s38, s70')
        A(f's_add_u32 s38, s38, {L.MEMX}')
        A('v_mov_b32 v12, 0')
        A.label('W_ymp', keep=True)
        I.guard(A)
        A(f'buffer_load_dword v13, v12, {SRD}, s38 offen sc1')
        A('s_waitcnt vmcnt(0)')
        A('v_cmp_eq_u32 vcc, -1, v13')
        A('s_cbranch_vccz W_ymok')
        A('s_sleep 16')
        A('s_branch W_ymp')
        A.label('W_ymf', keep=True)
        chain.flag_wait(A, 's43', 2, 12, sleep=4)
        A.label('W_ymok', keep=True)
    def early_deq(A):
        A('s_cmp_lg_u32 s13, 0')
        A('s_cbranch_scc1 W_ed')
        A('s_mov_b64 exec, 1')
        dequeue()
        A('s_mov_b64 exec, -1')
        A.label('W_ed', keep=True)
    I.item_pvunit(A, wait_px, hook=early_deq)
    A.forget()
    chain.dbgmax(A, cfg, 13, 24, ('s39', 447))
    A.label('W_nf')
    tl(A, cfg, 's69', 1, 24)
    A('s_cmp_lg_u32 s13, 0')
    A('s_cbranch_scc1 W_e2')
    A('s_mov_b64 exec, 1')
    A('ds_write_b32 v28, v30')
    A('s_mov_b64 exec, -1')
    A('s_waitcnt lgkmcnt(0)')
    A('s_barrier')
    A('s_branch W_next')
    A.label('W_end')
    A.forget()
    A('s_cmp_lg_u32 s13, 0')
    A('s_cbranch_scc1 W_e1')
    A('v_readfirstlane_b32 s38, v29')
    A('v_mov_b32 v30, -1')
    A('s_cmp_lt_u32 s38, 32')
    A('s_cbranch_scc1 W_e1')
    A('s_mov_b64 exec, 1')
    dequeue()
    A('s_mov_b64 exec, -1')
    A('global_load_dword v29, v31, s[4:5] sc1')
    A.label('W_e1')
    A('s_waitcnt vmcnt(0)')
    tl(A, cfg, 's69', 1, 24)
    A('s_cmp_lg_u32 s13, 0')
    A('s_cbranch_scc1 W_e2')
    A('s_mov_b64 exec, 1')
    A('ds_write_b32 v28, v30')
    A('s_waitcnt lgkmcnt(0)')
    A('s_barrier')
    flag_store(A, 's69')
    A('s_mov_b64 exec, -1')
    A('s_branch W_next')
    A.label('W_e2')
    A('s_barrier')
    A('s_branch W_next')
    A.label('W_claim')
    A('s_barrier')
    A('s_branch CLAIM')


def build(cfg):
    cfg = dict(cfg)
    cfg['fused'] = 1
    I.CFG.update(cfg)
    prep2.CFG.update(cfg)
    A = Asm()
    cfg.setdefault('ntouch', 4)
    if cfg.get('aslist'):
        A.raw(f'; @launch kernel={NAME} grid=(256,1,1) block=(256,1,1) lds=151552')
    else:
        A.raw('; @launch grid=(256,1,1) block=(256,1,1) lds=151552')
    A.raw('.amdgcn_target "amdgcn-amd-amdhsa--gfx950"\n.text')
    A.raw(f'.globl {NAME}\n.p2align 8\n.type {NAME},@function')
    A.label(NAME)
    emit_main(A, cfg)
    A.raw('CODE_END:')
    A.raw('.section .rodata,"a"')
    A.raw('.p2align 6')
    A.raw(KD.format(name=NAME))
    return A.text()


if __name__ == '__main__':
    cfg = {}
    for kv in sys.argv[2:]:
        k, val = kv.split('=')
        cfg[k] = int(val)
    open(sys.argv[1], 'w').write(build(cfg))
```

```python
from asmdsl import v, a, s
import layout as L

SRD = 's[8:11]'
NSTEP = 63


def stamp(A, cfg, slot):
    if cfg.get('stamps'):
        A(f's_memtime s[{40 + 2 * slot}:{41 + 2 * slot}]')


def rstamp(A, cfg, slot):
    if cfg.get('stamps'):
        A(f's_memrealtime s[{40 + 2 * slot}:{41 + 2 * slot}]')


def stamp_flush(A, cfg, nslots, base_sreg, vt):
    if not cfg.get('stamps'):
        return
    A('s_waitcnt lgkmcnt(0)')
    for k in range(nslots):
        A(f'v_mov_b32 {v(vt)}, s{40 + 2 * k}')
        A(f'v_mov_b32 {v(vt + 1)}, 0')
        A(f'buffer_store_dword {v(vt)}, {v(vt + 1)}, {SRD}, s{base_sreg} offen offset:{4 * k}')
    A(f's_add_u32 s{base_sreg}, s{base_sreg}, 64')


def guard(A):
    A('s_add_u32 s33, s33, 1')
    A('s_cmp_gt_u32 s33, 0x200000')
    A('s_cbranch_scc1 L_bail')


def tl(A, cfg, idx_sreg_or_int, slot, vt, base=0):
    if not cfg.get('tl'):
        return
    A('s_memrealtime s[100:101]')
    A('s_waitcnt lgkmcnt(0)')
    A(f'v_mov_b32 {v(vt)}, s100')
    A(f'v_mov_b32 {v(vt + 1)}, 0')
    if isinstance(idx_sreg_or_int, int):
        A(f's_mov_b32 s101, {L.STAMP + base + idx_sreg_or_int * 16}')
    else:
        A(f's_lshl_b32 s101, {idx_sreg_or_int}, 4')
        A(f's_add_u32 s101, s101, {L.STAMP + base}')
    A(f'buffer_store_dword {v(vt)}, {v(vt + 1)}, {SRD}, s101 offen offset:{slot * 4}')


def dbgmax(A, cfg, word, vt, sel=('s14', 13)):
    if not cfg.get('dbg'):
        return
    sk = A.newlabel('DM')
    A(f's_cmp_lg_u32 {sel[0]}, {sel[1]}')
    A(f's_cbranch_scc1 {sk}')
    A('s_cmp_lg_u32 s13, 3')
    A(f's_cbranch_scc1 {sk}')
    A('s_memrealtime s[100:101]')
    A('s_waitcnt lgkmcnt(0)')
    A('s_sub_u32 s100, s100, s96')
    A(f'v_mov_b32 {v(vt)}, s100')
    A(f'v_mov_b32 {v(vt + 1)}, 0')
    A(f'global_store_dword {v(vt + 1)}, {v(vt)}, s[4:5] offset:{4 * word}')
    A.label(sk, keep=True)


def flag_wait(A, first, n, vt, sleep=8):
    A(f'v_and_b32 {v(vt)}, 63, v0')
    A(f'v_min_u32 {v(vt)}, {n - 1}, {v(vt)}')
    A(f'v_lshlrev_b32 {v(vt)}, 3, {v(vt)}')
    if isinstance(first, int):
        A(f's_mov_b32 s38, {L.FLAGS + 8 * first}')
    else:
        A(f's_lshl_b32 s38, {first}, 3')
        A(f's_add_u32 s38, s38, {L.FLAGS}')
    lab, ok = A.newlabel('FW'), A.newlabel('FWok')
    A.label(lab, keep=True)
    guard(A)
    A(f'buffer_load_dwordx2 {v(vt + 2, 2)}, {v(vt)}, {SRD}, s38 offen sc1')
    A('s_waitcnt vmcnt(0)')
    A(f'v_cmp_ne_u64 vcc, s[96:97], {v(vt + 2, 2)}')
    A(f's_cbranch_vccz {ok}')
    A(f's_sleep {sleep}')
    A(f's_branch {lab}')
    A.label(ok, keep=True)


def flag_wait_multi(A, firsts, vt, sleep=4):
    A(f'v_and_b32 {v(vt)}, 63, v0')
    A(f'v_lshlrev_b32 {v(vt)}, 3, {v(vt)}')
    lab, ok = A.newlabel('FM'), A.newlabel('FMok')
    A.label(lab, keep=True)
    guard(A)
    for i, f in enumerate(firsts):
        A(f's_mov_b32 s38, {L.FLAGS + 8 * f}')
        A(f'buffer_load_dwordx2 {v(vt + 2 + 2 * i, 2)}, {v(vt)}, {SRD}, s38 offen sc1')
    A('s_waitcnt vmcnt(0)')
    A('s_mov_b64 s[40:41], 0')
    for i in range(len(firsts)):
        A(f'v_cmp_ne_u64 vcc, s[96:97], {v(vt + 2 + 2 * i, 2)}')
        A('s_or_b64 s[40:41], s[40:41], vcc')
    A(f's_cbranch_scc0 {ok}')
    A(f's_sleep {sleep}')
    A(f's_branch {lab}')
    A.label(ok, keep=True)


def loaded_flag(A, cfg, add, vt):
    if not cfg.get('fused'):
        return
    sk = A.newlabel('LF')
    A('s_cmp_lg_u32 s13, 3')
    A(f's_cbranch_scc1 {sk}')
    A(f's_add_u32 s38, s14, {L.F_INIT + add}')
    A('s_lshl_b32 s38, s38, 3')
    A(f's_add_u32 s38, s38, {L.FLAGS}')
    A(f'v_mov_b32 {v(vt)}, s96')
    A(f'v_mov_b32 {v(vt + 1)}, s97')
    A(f'v_mov_b32 {v(vt + 2)}, 0')
    A('s_mov_b64 exec, 1')
    A(f'buffer_store_dwordx2 {v(vt, 2)}, {v(vt + 2)}, {SRD}, s38 offen sc1')
    A('s_mov_b64 exec, -1')
    A.label(sk, keep=True)


def soft_wait(A, first, n, vt, maxpolls, sleep):
    A(f'v_and_b32 {v(vt)}, 63, v0')
    A(f'v_min_u32 {v(vt)}, {n - 1}, {v(vt)}')
    A(f'v_lshlrev_b32 {v(vt)}, 3, {v(vt)}')
    A(f's_mov_b32 s38, {L.FLAGS + 8 * first}')
    A(f's_mov_b32 s40, {maxpolls}')
    lab, ok = A.newlabel('SW'), A.newlabel('SWok')
    A.label(lab, keep=True)
    A(f'buffer_load_dwordx2 {v(vt + 2, 2)}, {v(vt)}, {SRD}, s38 offen sc1')
    A('s_waitcnt vmcnt(0)')
    A(f'v_cmp_ne_u64 vcc, s[96:97], {v(vt + 2, 2)}')
    A(f's_cbranch_vccz {ok}')
    A(f's_sleep {sleep}')
    A('s_sub_u32 s40, s40, 1')
    A('s_cmp_lg_u32 s40, 0')
    A(f's_cbranch_scc1 {lab}')
    A.label(ok, keep=True)


def fill_share(A, base, kb_per_wave, widx_sreg, vt, vlin):
    for r in range(4):
        A(f'v_mov_b32 {v(vt + r)}, -1')
    A(f's_mul_i32 s38, {widx_sreg}, {kb_per_wave * 1024}')
    A(f's_add_u32 s38, s38, {base}')
    for k in range(kb_per_wave):
        if k and k % 4 == 0:
            A('s_add_u32 s38, s38, 4096')
        A(f'buffer_store_dwordx4 {v(vt, 4)}, {v(vlin)}, {SRD}, s38 offen offset:{(k & 3) * 1024} sc1')


def start_gate(A, cfg, vt, ranges=None):
    if not cfg.get('fused'):
        A('s_mov_b32 s12, 0')
        return
    firsts = ranges or [L.F_Y0, L.F_LN, L.F_LN + 64, L.F_LN + 128, L.F_LN + 192]
    A(f'v_and_b32 {v(vt)}, 63, v0')
    A(f'v_lshlrev_b32 {v(vt)}, 3, {v(vt)}')
    A(f'v_mov_b32 {v(vt + 1)}, 0')
    lab, ok, again = A.newlabel('SG'), A.newlabel('SGok'), A.newlabel('SGa')
    A.label(lab, keep=True)
    guard(A)
    for i, f in enumerate(firsts):
        A(f's_mov_b32 s38, {L.FLAGS + 8 * f}')
        A(f'buffer_load_dwordx2 {v(vt + 2 + 2 * i, 2)}, {v(vt)}, {SRD}, s38 offen sc1')
    A(f'global_load_dword {v(vt + 14)}, {v(vt + 1)}, s[4:5] offset:8 sc1')
    A('s_waitcnt vmcnt(0)')
    A(f'v_readfirstlane_b32 s12, {v(vt + 14)}')
    A('s_mov_b64 s[40:41], 0')
    for i in range(len(firsts)):
        A(f'v_cmp_ne_u64 vcc, s[96:97], {v(vt + 2 + 2 * i, 2)}')
        A('s_or_b64 s[40:41], s[40:41], vcc')
    A(f's_cbranch_scc1 {again}')
    A('s_and_b32 s38, s12, 63')
    A('s_cmp_ge_u32 s38, 32')
    A(f's_cbranch_scc1 {ok}')
    A.label(again, keep=True)
    A('s_sleep 3')
    A(f's_branch {lab}')
    A.label(ok, keep=True)
    A('s_bfe_u32 s38, s12, 0x90006')
    A('s_mul_i32 s38, s38, s38')
    A('s_lshr_b32 s12, s12, 15')
    A('s_lshl_b32 s12, s12, 5')
    A('s_cmp_lg_u32 s12, s38')
    A('s_cselect_b32 s12, 1, 0')


def mid_gate(A, cfg, vt, vfl):
    if not cfg.get('fused'):
        return
    skip = A.newlabel('MG')
    A('s_cmp_ge_u32 s39, 0x40000000')
    A(f's_cbranch_scc1 {skip}')
    A('s_waitcnt vmcnt(0)')
    A(f'v_cmp_ne_u64 vcc, s[96:97], {v(vfl, 2)}')
    A(f's_cbranch_vccz {skip}')
    A(f's_sub_u32 s39, s39, {L.FLAGS}')
    A('s_lshr_b32 s39, s39, 3')
    flag_wait(A, 's39', 32, vt, sleep=2)
    A.label(skip, keep=True)


def gate_prep(A, cfg):
    if not cfg.get('fused'):
        A('s_mov_b32 s39, 0x40000000')
        return
    A('s_lshr_b32 s39, s15, 3')
    A('s_add_u32 s39, s39, 1')
    A('s_min_u32 s39, s39, 7')
    A('s_lshl_b32 s39, s39, 8')
    A(f's_add_u32 s39, s39, {L.FLAGS}')
    A('s_and_b32 s38, s15, 7')
    A('s_lshl_b32 s38, s38, 8')
    A('s_add_u32 s38, s38, s31')
    A(f's_cmp_eq_u32 s38, {((6 - cfg.get("pfdist", 2)) << 8) + 3}')
    A('s_cselect_b32 s39, s39, 0x40000000')


def dual_prep(A, sreg, sfast, sslow):
    A('s_cmp_eq_u32 s12, 0')
    A(f's_cselect_b32 {sfast}, {sreg}, 0x40000000')
    A(f's_cselect_b32 {sslow}, 0x40000000, {sreg}')


def dual_store(A, fmt, sfast, sslow):
    A(fmt.format(s=sfast))
    A(fmt.format(s=sslow) + ' sc1')


def flush_deferred(A):
    for slow, text, done in A.deferred:
        A.label(slow)
        A.raw('    ' + text)
        A.raw(f'    s_branch {done}')
    A.deferred = []


def align(A, cfg, key, default=0):
    n = cfg.get(key, default)
    if n < 0:
        return
    A.raw('    .p2align 6')
    for _ in range(n // 4):
        A.raw('    s_nop 0')


def lane_fields(A, vl):
    A(f'v_and_b32 {v(vl)}, 63, v0')


def emit_koffs(A):
    A('s_lshl_b32 s23, s13, 1')
    for k in range(7):
        A(f's_add_u32 s{16 + k}, s23, {k}')
        A(f's_cmp_ge_u32 s{16 + k}, 7')
        A(f's_cselect_b32 s24, 7, 0')
        A(f's_sub_u32 s{16 + k}, s{16 + k}, s24')
        A(f's_lshl_b32 s{16 + k}, s{16 + k}, 10')


def warm_vm(A, n, vw, cfg):
    if cfg.get('nowarm'):
        A(f's_waitcnt vmcnt({n})')
        return
    lab = A.newlabel('W')
    A.label(lab, keep=True)
    A(f'v_mov_b32 {v(vw)}, {v(vw)}')
    A(f's_getreg_b32 s38, hwreg(HW_REG_IB_STS, 0, 4)')
    A(f's_cmp_gt_u32 s38, {n}')
    A(f'v_mov_b32 {v(vw)}, {v(vw)}')
    A(f's_cbranch_scc1 {lab}')
    A(f's_waitcnt vmcnt({n})')


def keepalive(A, vw, n, cfg):
    if cfg.get('nowarm'):
        return
    for _ in range(n):
        A(f'v_mov_b32 {v(vw)}, {v(vw)}')


def warm_mfma(A, base, cfg):
    if cfg.get('nowarm'):
        return
    A(f'v_mfma_f32_32x32x16_bf16 {v(base, 16)}, {v(base + 16, 4)}, {v(base + 16, 4)}, {v(base, 16)}')


def check_regs(A, tmp, regs, autowait=True):
    E = A.auto if autowait else A
    E(f'v_max3_u32 {v(tmp)}, {v(regs[0])}, {v(regs[1])}, {v(regs[2])}')
    i = 3
    while i + 1 < len(regs):
        E(f'v_max3_u32 {v(tmp)}, {v(tmp)}, {v(regs[i])}, {v(regs[i + 1])}')
        i += 2
    if i < len(regs):
        E(f'v_max_u32 {v(tmp)}, {v(tmp)}, {v(regs[i])}')
    A(f'v_cmp_eq_u32 vcc, -1, {v(tmp)}')


def sparse_idx(A, vIDX, vL, t2, t3):
    A(f'v_and_b32 {v(t2)}, 8, {v(vL)}')
    A(f'v_cmp_ne_u32 vcc, 0, {v(t2)}')
    A(f'v_mov_b32 {v(t2)}, 0x4444')
    A(f'v_mov_b32 {v(t3)}, 0xeeee')
    A(f'v_cndmask_b32 {v(vIDX)}, {v(t2)}, {v(t3)}, vcc')


def emit_A(A, cfg):
    W5 = 0x0000
    MIMG = 0xE000
    TIMG = 0x10000
    SIMG = 0x14800
    QS = 144
    vL, vIDX, vMA, vMKa, vMKb, vMK3, vW5, vXK, vXK3, vTW, vTW6, vTR, vTR3, vSW, vSR, vPS, vPF = range(1, 18)
    vM = lambda k: 18 + k
    vSW2 = 25
    vT0 = 26
    M = lambda k: 32 + 4 * k
    ACC = lambda n: 60 + 4 * n
    WS5 = lambda b: 88 + 8 * b
    XK = lambda q, t: 112 + 8 * q + 4 * t
    XK3 = lambda t: 136 + 2 * t
    PSET = lambda r: 140 + 8 * r
    MK = lambda q: 140 + 4 * q
    TB = lambda q: (ACC(2 * q) if q < 3 else ACC(6) + 2)
    SACC = lambda t: 156 + 4 * t
    vDUM = 168
    vFL, vFA = 170, 172
    LT = 1
    PORD = [1, 2, 0]
    regtiles = [0, 2, 3, 4, 5, 6]

    def W(n, k):
        i = regtiles.index(n) * 7 + k
        return a(8 * i, 8) if i < 32 else v(176 + 8 * (i - 32), 8)

    def Whalf(n, k, eh):
        i = regtiles.index(n) * 7 + k
        return a(8 * i + 4 * eh, 4) if i < 32 else v(176 + 8 * (i - 32) + 4 * eh, 4)

    t0, t1, t2, t3 = vT0, vT0 + 1, vT0 + 2, vT0 + 3
    A.pipe_model = bool(cfg.get('pipe', 1))
    tl(A, cfg, 's14', 0, 30, 0x18000)
    lane_fields(A, vL)
    emit_koffs(A)
    A(f'v_and_b32 {v(t0)}, 15, {v(vL)}')
    A(f'v_lshrrev_b32 {v(t1)}, 4, {v(vL)}')
    sparse_idx(A, vIDX, vL, t2, t3)
    A(f'v_lshlrev_b32 {v(t2)}, 9, {v(t1)}')
    A(f'v_lshl_add_u32 {v(vPF)}, {v(t0)}, 4, {v(t2)}')
    if cfg.get('fused'):
        A('s_lshl_b32 s23, s14, 3')
        A('s_lshr_b32 s24, s13, 1')
        A('s_lshl_b32 s24, s24, 2')
        A('s_add_u32 s23, s23, s24')
        A(f's_add_u32 s23, s23, {L.F_AB}')
        flag_wait(A, 's23', 4, 32, sleep=2)
    A(f's_mul_i32 s25, s14, {14 * 28672}')
    A(f's_add_u32 s25, s25, {L.WF + L.NB_A * 28672}')
    A(f's_mul_i32 s26, s13, 7')
    A(f's_mul_i32 s28, s13, 14336')
    cnt = 0
    for n in range(7):
        A(f's_add_u32 s23, s26, {n}')
        A(f's_lshr_b32 s24, s23, 1')
        A(f's_mul_i32 s24, s24, 28672')
        A(f's_and_b32 s23, s23, 1')
        A(f's_lshl_b32 s23, s23, 8')
        A(f's_add_u32 s27, s25, s24')
        A(f's_add_u32 s27, s27, s23')
        for k in range(7):
            A(f's_lshl_b32 s23, s{16 + k}, 2')
            A(f's_add_u32 s23, s23, s27')
            for eh in range(2):
                if n == LT:
                    A(f's_add_u32 s24, s28, {W5 + (k * 2 + eh) * 1024}')
                    A(f's_mov_b32 m0, s24')
                    if eh:
                        A(f's_add_u32 s23, s23, 2048')
                    A(f'buffer_load_dwordx4 {v(vPF)}, {SRD}, s23 offen sc1 lds')
                else:
                    A(f'buffer_load_dwordx4 {Whalf(n, k, eh)}, {v(vPF)}, {SRD}, s23 offen offset:{2048 * eh} sc1')
                cnt += 1
                if cnt % 16 == 0:
                    A('s_waitcnt vmcnt(40)')
    A(f'v_lshlrev_b32 {v(vMA)}, 4, {v(vL)}')
    A(f'v_add_u32 {v(vW5)}, s28, {v(vMA)}')
    for k in range(7):
        A(f's_add_u32 s23, s{16 + k}, {MIMG}')
        A(f'v_add_u32 {v(vM(k))}, s23, {v(vMA)}')
    A(f'v_add_u32 {v(vMA)}, {L.MEMA}, {v(vMA)}')
    A(f'v_and_b32 {v(t2)}, 7, {v(vL)}')
    A(f'v_lshlrev_b32 {v(t2)}, 4, {v(t2)}')
    A(f's_mul_i32 s23, s13, {7 * 256}')
    A(f's_add_u32 s23, s23, {MIMG}')
    A(f'v_lshrrev_b32 {v(t3)}, 1, {v(t1)}')
    A(f'v_lshl_add_u32 {v(vMKa)}, {v(t3)}, 8, {v(t2)}')
    A(f'v_and_b32 {v(t3)}, 1, {v(t1)}')
    A(f'v_lshl_add_u32 {v(vMKa)}, {v(t3)}, 3, {v(vMKa)}')
    A(f'v_add_u32 {v(vMKa)}, s23, {v(vMKa)}')
    A(f'v_add_u32 {v(vMKb)}, 1024, {v(vMKa)}')
    A(f'v_lshl_add_u32 {v(vMK3)}, {v(t1)}, 2, {v(t2)}')
    A(f's_add_u32 s23, s23, {6 * 256}')
    A(f'v_add_u32 {v(vMK3)}, s23, {v(vMK3)}')
    A(f'v_and_b32 {v(t2)}, 6, {v(t0)}')
    A(f'v_lshlrev_b32 {v(t2)}, 1, {v(t2)}')
    A(f'v_lshrrev_b32 {v(t3)}, 3, {v(t0)}')
    A(f'v_lshl_add_u32 {v(t2)}, {v(t3)}, 1, {v(t2)}')
    A(f'v_and_b32 {v(t3)}, 1, {v(t0)}')
    A(f'v_add_u32 {v(t2)}, {v(t3)}, {v(t2)}')
    A(f'v_lshlrev_b32 {v(t2)}, 4, {v(t2)}')
    A(f'v_lshl_add_u32 {v(vXK)}, {v(t1)}, 9, {v(t2)}')
    A(f'v_lshrrev_b32 {v(t3)}, 1, {v(t1)}')
    A(f'v_lshl_add_u32 {v(vXK3)}, {v(t3)}, 9, {v(t2)}')
    A(f'v_and_b32 {v(t3)}, 1, {v(t1)}')
    A(f'v_lshl_add_u32 {v(vXK3)}, {v(t3)}, 3, {v(vXK3)}')
    A(f'v_add_u32 {v(vXK3)}, {6 * 1024}, {v(vXK3)}')
    A(f's_lshl_b32 s30, s13, 11')
    A(f's_mul_i32 s23, s13, 4352')
    A(f's_add_u32 s23, s23, {TIMG}')
    def plane(dst, src, tmp):
        A(f'v_lshlrev_b32 {v(dst)}, 10, {v(src)}')
        A(f'v_and_b32 {v(tmp)}, 1, {v(src)}')
        A(f'v_lshl_add_u32 {v(dst)}, {v(tmp)}, 5, {v(dst)}')
        A(f'v_lshrrev_b32 {v(tmp)}, 1, {v(src)}')
        A(f'v_lshl_add_u32 {v(dst)}, {v(tmp)}, 7, {v(dst)}')
    plane(t2, t1, t3)
    A(f'v_lshl_add_u32 {v(vTW)}, {v(t0)}, 3, {v(t2)}')
    A(f'v_add_u32 {v(vTW)}, s23, {v(vTW)}')
    A(f'v_and_b32 {v(vTR)}, 3, {v(vL)}')
    plane(t2, vTR, t3)
    A(f'v_bfe_u32 {v(t3)}, {v(vL)}, 2, 2')
    A(f'v_lshl_add_u32 {v(t2)}, {v(t3)}, 3, {v(t2)}')
    A(f'v_lshl_add_u32 {v(vTR)}, {v(t1)}, 6, {v(t2)}')
    A(f'v_add_u32 {v(vTR)}, s23, {v(vTR)}')
    A(f'v_lshl_add_u32 {v(vTR3)}, {v(t1)}, 5, {v(t2)}')
    A(f'v_add_u32 {v(vTR3)}, {96 * 8}, {v(vTR3)}')
    A(f'v_add_u32 {v(vTR3)}, s23, {v(vTR3)}')
    A(f's_add_u32 s23, s30, {SIMG}')
    A(f'v_lshrrev_b32 {v(t3)}, 3, {v(t0)}')
    A(f'v_lshl_add_u32 {v(t2)}, {v(t3)}, 2, {v(t1)}')
    A(f'v_mul_u32_u24 {v(t2)}, {QS}, {v(t2)}')
    A(f'v_and_b32 {v(vSW2)}, 7, {v(t0)}')
    A(f'v_lshl_add_u32 {v(vSW)}, {v(vSW2)}, 4, {v(t2)}')
    A(f'v_add_u32 {v(vSW)}, s23, {v(vSW)}')
    A(f'v_lshlrev_b32 {v(vSW2)}, 4, {v(vSW2)}')
    A(f'v_lshl_add_u32 {v(vSW2)}, {v(t3)}, 3, {v(vSW2)}')
    A(f'v_add_u32 {v(t2)}, 8, {v(t1)}')
    A(f'v_mul_u32_u24 {v(t2)}, {QS}, {v(t2)}')
    A(f'v_add3_u32 {v(vSW2)}, {v(vSW2)}, {v(t2)}, s23')
    A('s_mov_b32 s36, 0xff00ff00')
    A('s_mov_b32 s37, 0xff00ff00')
    A(f'v_mov_b32 {v(t3)}, 12')
    A(f'v_cmp_gt_u32 vcc, 10, {v(t0)}')
    A(f'v_cndmask_b32 {v(t2)}, {v(t3)}, {v(t0)}, vcc')
    A(f'v_mul_u32_u24 {v(t2)}, {QS}, {v(t2)}')
    A(f's_lshl_b32 s23, s13, 2')
    A(f'v_add_u32 {v(t3)}, s23, {v(t1)}')
    A(f'v_and_b32 {v(t3)}, 7, {v(t3)}')
    A(f'v_lshl_add_u32 {v(vSR)}, {v(t3)}, 4, {v(t2)}')
    A(f'v_add_u32 {v(vSR)}, {SIMG}, {v(vSR)}')
    A(f'v_lshrrev_b32 {v(t2)}, 1, {v(t0)}')
    A(f'v_lshlrev_b32 {v(t2)}, 7, {v(t2)}')
    A(f'v_lshl_add_u32 {v(t2)}, {v(t3)}, 4, {v(t2)}')
    A(f'v_and_b32 {v(t3)}, 1, {v(t0)}')
    A(f'v_lshl_add_u32 {v(t2)}, {v(t3)}, 3, {v(t2)}')
    A(f'v_mov_b32 {v(t3)}, 0x40000000')
    A(f'v_cndmask_b32 {v(vPS)}, {v(t3)}, {v(t2)}, vcc')
    A(f'v_mov_b32 {v(t2)}, 0xf149f2ca')
    A(f'v_and_b32 {v(t3)}, 31, {v(vL)}')
    A(f'v_lshlrev_b32 {v(t3)}, 2, {v(t3)}')
    A(f's_add_u32 s23, s30, {SIMG + 12 * QS}')
    A(f'v_add_u32 {v(t3)}, s23, {v(t3)}')
    A(f'ds_write_b32 {v(t3)}, {v(t2)}')
    A('s_waitcnt vmcnt(0)')
    A(f'v_lshlrev_b32 {v(vPF)}, 7, {v(vL)}')
    A(f's_mul_i32 s24, s14, 640')
    A(f's_add_u32 s24, s24, {L.PBUF}')
    A(f's_mul_i32 s25, s13, 7168')
    A(f's_add_u32 s25, s25, {L.XF}')
    NT = cfg.get('ntouch', 2)
    A(f's_mul_i32 s26, s14, {NT}')
    A(f's_add_u32 s26, s26, s13')
    A(f's_min_u32 s26, s26, 55')
    A(f's_lshl_b32 s26, s26, 13')
    A(f's_add_u32 s26, s26, {L.YF + cfg.get("pfdist", 2) * 16 * 28672}')
    A(f's_cmp_ge_u32 s13, {NT}')
    A(f's_cselect_b32 s23, 0x40000000, 0')
    A(f'v_add_u32 {v(vPF)}, s23, {v(vPF)}')
    A(f's_mov_b32 s15, 0')
    A('s_lshl_b32 s31, s14, 2')
    A('s_add_u32 s31, s31, s13')
    A(f'v_and_b32 {v(vFA)}, 31, {v(vL)}')
    A(f'v_lshlrev_b32 {v(vFA)}, 3, {v(vFA)}')
    if cfg.get('stamps'):
        A(f's_lshl_b32 s32, s14, 2')
        A(f's_add_u32 s32, s32, s13')
        A(f's_lshl_b32 s32, s32, 12')
        A(f's_add_u32 s32, s32, {L.STAMP}')

    def xload():
        for q in range(3):
            if q == 2:
                A(f's_add_u32 s23, s25, 4096')
            for tt in range(2):
                if q < 2:
                    A(f'buffer_load_dwordx4 {v(XK(q, tt), 4)}, {v(vXK)}, {SRD}, s25 offen offset:{q * 2048 + tt * 256} sc1')
                else:
                    A(f'buffer_load_dwordx4 {v(XK(q, tt), 4)}, {v(vXK)}, {SRD}, s23 offen offset:{tt * 256} sc1')
        for tt in range(2):
            A(f'buffer_load_dwordx2 {v(XK3(tt), 2)}, {v(vXK3)}, {SRD}, s25 offen offset:{tt * 256} sc1')
        A(f's_add_u32 s25, s25, 28672')

    A('s_waitcnt vmcnt(0) lgkmcnt(0)')
    tl(A, cfg, 's14', 1, vT0 + 4, 0x18000)
    loaded_flag(A, cfg, 0, M(4))
    start_gate(A, cfg, M(0))
    tl(A, cfg, 's14', 2, vT0 + 4, 0x18000)
    dbgmax(A, cfg, 8, vT0 + 4)
    xload()
    A('s_barrier')

    top = A.newlabel('A_top')
    poll = A.newlabel('A_poll')
    var1 = A.newlabel('A_var1')
    common = A.newlabel('A_common')
    nxt = A.newlabel('A_next')
    def w5read(k):
        for eh in range(2):
            A(f'ds_read_b128 {v(WS5(k % 3) + 4 * eh, 4)}, {v(vW5)} offset:{(k * 2 + eh) * 1024}')

    def prepare():
        for k in range(3):
            w5read(k)
        for r in range(12):
            A(f'v_mov_b32 {v(SACC(0) + r)}, 0')
        for r in range(28):
            A(f'v_mov_b32 {v(ACC(0) + r)}, 0')
    prepare()
    A.label(top)
    A.forget()
    dual_prep(A, 's24', 's34', 's35')
    gate_prep(A, cfg)
    A('s_cmp_lt_u32 s39, 0x40000000')
    A('s_cselect_b32 s30, 1, 0')
    A('s_cmp_eq_u32 s15, 0')
    A('s_cselect_b32 s30, 1, s30')
    A('s_waitcnt lgkmcnt(0)')
    if cfg.get('asleep', 5):
        A(f's_sleep {cfg.get("asleep", 5)}')

    SPLIT = cfg.get('split', 0)

    def pissue(r):
        for k in range(2):
            A(f'buffer_load_dwordx4 {v(PSET(r) + 4 * k, 4)}, {v(vMA)}, {SRD}, s{16 + k} offen sc1')
            if k == 0 and SPLIT:
                A(f's_nop {cfg.get("kgap", 11)}')
    var0 = A.newlabel('A_var0')

    def quick(r):
        keepalive(A, vDUM + 1, cfg.get('kap', 12), cfg)
        check_regs(A, t0, [PSET(r) + i for i in range(4 if SPLIT else 8)])
    keepalive(A, vDUM + 1, cfg.get('adel', 0), {})
    pissue(0)
    keepalive(A, vDUM + 1, cfg.get('pgapA', 20), {})
    align(A, cfg, 'alAp')
    A.label(poll, keep=True)
    guard(A)
    pissue(1)
    quick(0)
    A(f's_cbranch_vccz {var0}')
    pissue(0)
    quick(1)
    A(f's_cbranch_vccnz {poll}')

    E6 = cfg.get('early6', 2)
    BPOS = cfg.get('bpos', 5)
    tiles01 = [1, 0, 2, 3, 4, 5] + ([6] if E6 else [])

    def mf(n, k, mreg):
        wreg = v(WS5(k % 3), 8) if n == LT else W(n, k)
        return f'v_smfmac_f32_16x16x64_bf16 {v(ACC(n), 4)}, {v(mreg, 4)}, {wreg}, {v(vIDX)}'

    lates = []

    def variant(r):
        A.vm = [set(('v', PSET(1 - r) + i) for i in range(4)), set(('v', PSET(1 - r) + 4 + i) for i in range(4))]
        if SPLIT:
            A.vm.insert(0, set(('v', PSET(r) + 4 + i) for i in range(4)))
        A.lg = []
        A.smem_out = []
        stamp(A, cfg, 0)
        seq = [(n, k) for k in range(2) for n in tiles01]
        rd = [k for k in range(2, 7)] + ([] if E6 else [0, 1])
        Q = PSET(r) + 4
        C1 = cfg.get('c1pos', 2)
        late, late_back = A.newlabel('A_late'), A.newlabel('A_lb')
        w5q = []
        for i, (n, k) in enumerate(seq):
            A(mf(n, k, PSET(r) + 4 * k))
            if i == 0 or (i == 1 and not SPLIT):
                A(f'ds_write_b128 {v(vM(i))}, {v(PSET(r) + 4 * i, 4)}')
            if SPLIT:
                if i == C1:
                    A('s_waitcnt vmcnt(2)')
                    A(f'ds_write_b128 {v(vM(1))}, {v(Q, 4)}')
                    A(f'v_max3_u32 {v(t0)}, {v(Q)}, {v(Q + 1)}, {v(Q + 2)}')
                if i == C1 + 1:
                    A(f'v_max_u32 {v(t0)}, {v(t0)}, {v(Q + 3)}')
                if i == C1 + 2:
                    A(f'v_cmp_eq_u32 vcc, -1, {v(t0)}')
                    A(f's_cbranch_vccnz {late}')
                    A.label(late_back, keep=True)
                    lates.append((late, late_back, Q))
            if i == BPOS - 1:
                assert not SPLIT or i >= C1 + 2
                stamp(A, cfg, 5)
                A('s_waitcnt lgkmcnt(0)')
                A('s_barrier')
                stamp(A, cfg, 6)
            if n == LT:
                w5q += [(k + 3, 0), (k + 3, 1)]
            if i >= BPOS - 1:
                if rd:
                    kk = rd.pop(0)
                    A(f'ds_read_b128 {v(M(kk), 4)}, {v(vM(kk))}')
                elif w5q:
                    kk, eh = w5q.pop(0)
                    A(f'ds_read_b128 {v(WS5(kk % 3) + 4 * eh, 4)}, {v(vW5)} offset:{(kk * 2 + eh) * 1024}')
        assert not rd
        for kk, eh in w5q:
            A(f'ds_read_b128 {v(WS5(kk % 3) + 4 * eh, 4)}, {v(vW5)} offset:{(kk * 2 + eh) * 1024}')

    A.label(var1)
    variant(1)
    A(f's_branch {common}')
    align(A, cfg, 'alA0')
    A.label(var0)
    variant(0)
    A.label(common, keep=True)
    A.vm = [set(('v', PSET(0) + i) for i in range(16))]

    seq = []
    for n in (2, 3, 4, 5, 0, 1, 6):
        for k in range(E6 if n == 6 else 2, 7):
            seq.append((n, k))
    for k, pos in ((2, 0), (3, 5)):
        seq.remove((LT, k))
        seq.insert(pos, (LT, k))
    NS = len(seq)
    rare, rare_back = A.newlabel('A_rare'), A.newlabel('A_rb')
    memq = []
    memq.append((0, f'buffer_load_dword {v(vDUM)}, {v(vPF)}, {SRD}, s26 offen'))
    memq.append((16, 'RARE'))
    for i, (n, k) in enumerate(seq):
        if n == LT and k + 3 < 7:
            for eh in range(2):
                memq.append((i, f'ds_read_b128 {v(WS5((k + 3) % 3) + 4 * eh, 4)}, {v(vW5)} offset:{((k + 3) * 2 + eh) * 1024}'))
    mkstart = cfg.get('mkpos', 3)
    memq.append((mkstart, 's_waitcnt vmcnt(1)'))
    for q in range(3):
        ad = v(vMKa) if q < 2 else v(vMKb)
        o = 128 * q if q < 2 else 0
        memq.append((mkstart, f'ds_read2_b32 {v(MK(q), 2)}, {ad} offset0:{o} offset1:{o + 32}'))
        memq.append((mkstart, f'ds_read2_b32 {v(MK(q) + 2, 2)}, {ad} offset0:{o + 1} offset1:{o + 33}'))
    memq.append((mkstart, f'ds_read2_b32 {v(MK(3), 2)}, {v(vMK3)} offset0:0 offset1:32'))
    memq.sort(key=lambda x: x[0])
    done = {}
    for i, (n, k) in enumerate(seq):
        done[n] = i
    post = []

    def tpost(n):
        C = ACC(n)
        ops = [f'v_cvt_pk_bf16_f32 {v(C)}, {v(C)}, {v(C + 1)}', f'v_cvt_pk_bf16_f32 {v(C + 1)}, {v(C + 2)}, {v(C + 3)}',
               f'ds_write_b64 {v(vTW)}, {v(C, 2)} offset:{128 * n}']
        if n == 6:
            ops += [f'ds_read_b64_tr_b16 {v(TB(3), 2)}, {v(vTR3)}']
        elif n & 1:
            p = n >> 1
            ops += [f'ds_read_b64_tr_b16 {v(TB(p), 2)}, {v(vTR)} offset:{256 * p}',
                    f'ds_read_b64_tr_b16 {v(TB(p) + 2, 2)}, {v(vTR)} offset:{256 * p + 32}']
        return ops
    for n in (2, 3, 4, 5, 0, 1):
        post.append((done[n] + cfg.get('pdelay', 2), tpost(n)))
    smf = []
    for p in PORD:
        for t in range(3):
            key = v(XK(p, t), 4) if t < 2 else v(MK(p), 4)
            smf.append(f'v_mfma_f32_16x16x32_bf16 {v(SACC(t), 4)}, {key}, {v(TB(p), 4)}, {v(SACC(t), 4)}')
    NEARLY = cfg.get('searly', 2)
    queue = []
    A.mfma_states = cfg.get('mfstates', 1)
    for i, (n, k) in enumerate(seq):
        if i in (0, 1, 10, 20, 30):
            stamp(A, cfg, 7 + (0, 1, 10, 20, 30).index(i))
        if i == NS - 3:
            for _ in range(NEARLY):
                A.auto(smf.pop(0))
        A.auto(mf(n, k, M(k)))
        for st, ops in post:
            if st == i:
                queue += ops
        nm = 0
        if queue and not queue[0].startswith('v_'):
            A(queue.pop(0))
            nm = 1
        while memq and memq[0][0] <= i and nm < 1:
            o = memq.pop(0)[1]
            if o == 'RARE':
                A('s_cmp_lg_u32 s30, 0')
                A(f's_cbranch_scc1 {rare}')
                A.label(rare_back, keep=True)
                nm += 1
                continue
            A(o)
            if not o.startswith('s_'):
                nm += 1
        if queue and queue[0].startswith('v_') and A.pad_needed(queue[0]) <= cfg.get('maxpad', 0):
            A(queue.pop(0))
    assert not memq
    tailops = queue
    stamp(A, cfg, 1)
    for o in tailops:
        A(o)
    A.auto(smf.pop(0))
    A.auto(smf.pop(0))
    for o in tpost(6):
        A(o)
    stamp(A, cfg, 13)
    for m_ in smf:
        A.auto(m_)
    for t in range(3):
        key = v(XK3(t), 2) if t < 2 else v(MK(3), 2)
        A.auto(f'v_mfma_f32_16x16x16_bf16 {v(SACC(t), 4)}, {key}, {v(TB(3), 2)}, {v(SACC(t), 4)}')
    stamp(A, cfg, 12)
    for r in range(4):
        A(f'v_add_f32_dpp {v(SACC(0) + r)}, {v(SACC(0) + r)}, {v(SACC(0) + r)} row_ror:8 row_mask:0xf bank_mask:0x3')
    for r in range(4):
        A(f'v_add_f32_dpp {v(SACC(0) + r)}, {v(SACC(1) + r)}, {v(SACC(1) + r)} row_ror:8 row_mask:0xf bank_mask:0xc')
    A(f'ds_write_b128 {v(vSW)}, {v(SACC(0), 4)}')
    for r in range(2):
        A(f'v_add_f32_dpp {v(SACC(2) + r)}, {v(SACC(2) + r)}, {v(SACC(2) + r)} row_ror:8 row_mask:0xf bank_mask:0x3')
    for r in range(2):
        A(f'v_add_f32_dpp {v(SACC(2) + r)}, {v(SACC(2) + 2 + r)}, {v(SACC(2) + 2 + r)} row_ror:8 row_mask:0xf bank_mask:0xc')
    A(f'ds_write_b64 {v(vSW2)}, {v(SACC(2), 2)}')
    A('s_cmp_ge_u32 s13, 2')
    keepalive(A, vDUM + 1, cfg.get('ka1', 8), cfg)
    warm_mfma(A, M(0), cfg)
    A('s_waitcnt lgkmcnt(0)')
    A('s_barrier')
    stamp(A, cfg, 2)
    A(f's_cbranch_scc1 {nxt}')
    R = lambda w: ACC(0) + 4 * w
    for w in range(4):
        A(f'ds_read_b128 {v(R(w), 4)}, {v(vSR)} offset:{w * 2048}')
        keepalive(A, vDUM + 1, 1, cfg)
    keepalive(A, vDUM + 1, cfg.get('ka2', 8), cfg)
    s0 = R(0)
    ml, m, ll, f, e0, cm2 = R(4), R(4) + 2, R(5), R(5) + 2, R(2), R(6)
    A(f'v_mov_b32 {v(cm2)}, -2')
    A.auto(f'v_pk_add_f32 {v(R(0), 2)}, {v(R(0), 2)}, {v(R(1), 2)}')
    A(f'v_pk_add_f32 {v(R(0) + 2, 2)}, {v(R(0) + 2, 2)}, {v(R(1) + 2, 2)}')
    A.auto(f'v_pk_add_f32 {v(R(2), 2)}, {v(R(2), 2)}, {v(R(3), 2)}')
    A(f'v_pk_add_f32 {v(R(2) + 2, 2)}, {v(R(2) + 2, 2)}, {v(R(3) + 2, 2)}')
    A(f'v_pk_add_f32 {v(R(0), 2)}, {v(R(0), 2)}, {v(R(2), 2)}')
    A(f'v_pk_add_f32 {v(R(0) + 2, 2)}, {v(R(0) + 2, 2)}, {v(R(2) + 2, 2)}')
    dpp = 'row_mask:0xf bank_mask:0xf'
    A(f'v_max3_f32 {v(ml)}, {v(s0)}, {v(s0 + 1)}, {v(s0 + 2)}')
    A(f'v_max_f32 {v(ml)}, {v(ml)}, {v(s0 + 3)}')
    A(f'v_sub_f32 {v(e0)}, {v(s0)}, {v(ml)}')
    A(f'v_sub_f32 {v(e0 + 1)}, {v(s0 + 1)}, {v(ml)}')
    A(f'v_max_f32_dpp {v(m)}, {v(ml)}, {v(ml)} row_ror:8 {dpp}')
    A(f'v_sub_f32 {v(e0 + 2)}, {v(s0 + 2)}, {v(ml)}')
    A(f'v_sub_f32 {v(e0 + 3)}, {v(s0 + 3)}, {v(ml)}')
    A(f'v_max_f32_dpp {v(m)}, {v(m)}, {v(m)} row_ror:4 {dpp}')
    A(f'v_exp_f32 {v(e0)}, {v(e0)}')
    A(f'v_exp_f32 {v(e0 + 1)}, {v(e0 + 1)}')
    A(f'v_max_f32_dpp {v(m)}, {v(m)}, {v(m)} row_ror:2 {dpp}')
    A(f'v_exp_f32 {v(e0 + 2)}, {v(e0 + 2)}')
    A(f'v_exp_f32 {v(e0 + 3)}, {v(e0 + 3)}')
    A(f'v_max_f32_dpp {v(m)}, {v(m)}, {v(m)} row_ror:1 {dpp}')
    if cfg.get('sm2', 1):
        A(f'v_sub_f32 {v(f)}, {v(ml)}, {v(m)}')
        A(f'v_pk_add_f32 {v(ll, 2)}, {v(e0, 2)}, {v(e0 + 2, 2)}')
        A(f'v_exp_f32 {v(f)}, {v(f)}')
        A(f'v_add_f32 {v(ll)}, {v(ll)}, {v(ll + 1)}')
        A(f'v_mul_f32 {v(ll)}, {v(ll)}, {v(f)}')
        A(f'v_mul_f32 {v(e0)}, {v(e0)}, {v(f)}')
        A(f'v_mul_f32 {v(e0 + 1)}, {v(e0 + 1)}, {v(f)}')
        A(f'v_add_f32_dpp {v(ll)}, {v(ll)}, {v(ll)} row_ror:8 {dpp}')
        A(f'v_mul_f32 {v(e0 + 2)}, {v(e0 + 2)}, {v(f)}')
        A(f'v_mul_f32 {v(e0 + 3)}, {v(e0 + 3)}, {v(f)}')
        A(f'v_add_f32_dpp {v(ll)}, {v(ll)}, {v(ll)} row_ror:4 {dpp}')
        A(f'v_add_f32_dpp {v(ll)}, {v(ll)}, {v(ll)} row_ror:2 {dpp}')
        A(f'v_add_f32_dpp {v(ll)}, {v(ll)}, {v(ll)} row_ror:1 {dpp}')
        A(f'v_rcp_f32 {v(ll)}, {v(ll)}')
        A(f'v_pk_mul_f32 {v(e0, 2)}, {v(e0, 2)}, {v(ll, 2)} op_sel_hi:[1,0]')
        A(f'v_pk_mul_f32 {v(e0 + 2, 2)}, {v(e0 + 2, 2)}, {v(ll, 2)} op_sel_hi:[1,0]')
    else:
        A(f'v_pk_add_f32 {v(ll, 2)}, {v(e0, 2)}, {v(e0 + 2, 2)}')
        A(f'v_sub_f32 {v(f)}, {v(ml)}, {v(m)}')
        A(f'v_exp_f32 {v(f)}, {v(f)}')
        A(f'v_add_f32 {v(ll)}, {v(ll)}, {v(ll + 1)}')
        A(f'v_mul_f32 {v(ll)}, {v(ll)}, {v(f)}')
        A(f'v_mul_f32 {v(e0)}, {v(e0)}, {v(f)}')
        A(f'v_mul_f32 {v(e0 + 1)}, {v(e0 + 1)}, {v(f)}')
        A(f'v_add_f32_dpp {v(ll)}, {v(ll)}, {v(ll)} row_ror:8 {dpp}')
        A(f'v_mul_f32 {v(e0 + 2)}, {v(e0 + 2)}, {v(f)}')
        A(f'v_mul_f32 {v(e0 + 3)}, {v(e0 + 3)}, {v(f)}')
        A(f'v_add_f32_dpp {v(ll)}, {v(ll)}, {v(ll)} row_ror:4 {dpp}')
        A(f'v_add_f32_dpp {v(ll)}, {v(ll)}, {v(ll)} row_ror:2 {dpp}')
        A(f'v_add_f32_dpp {v(ll)}, {v(ll)}, {v(ll)} row_ror:1 {dpp}')
        A(f'v_rcp_f32 {v(ll)}, {v(ll)}')
        for i in range(4):
            A(f'v_mul_f32 {v(e0 + i)}, {v(e0 + i)}, {v(ll)}')
    A(f'v_cvt_pk_bf16_f32 {v(s0)}, {v(e0)}, {v(e0 + 1)}')
    A(f'v_cvt_pk_bf16_f32 {v(s0 + 1)}, {v(e0 + 2)}, {v(e0 + 3)}')
    A(f'v_min_u32 {v(s0)}, {v(s0)}, {v(cm2)}')
    A(f'v_min_u32 {v(s0 + 1)}, {v(s0 + 1)}, {v(cm2)}')
    dual_store(A, f'buffer_store_dwordx2 {v(s0, 2)}, {v(vPS)}, {SRD}, {{s}} offen', 's34', 's35')
    A.label(nxt, keep=True)
    stamp(A, cfg, 3)
    rstamp(A, cfg, 4)
    if not cfg.get('nohold'):
        A('s_barrier')
    A('s_nop 1')
    prepare()
    if cfg.get('xdelay', 0):
        A(f's_sleep {cfg.get("xdelay", 0)}')
    xload()
    mid_gate(A, cfg, vT0, vFL)
    if cfg.get('tl'):
        skp = A.newlabel('TLS')
        A('s_add_u32 s38, s14, s13')
        A('s_cmp_lg_u32 s38, 18')
        A(f's_cbranch_scc1 {skp}')
        tl(A, cfg, 's15', 0, vT0 + 4, 0x10000)
        A('s_memtime s[98:99]')
        A('s_waitcnt lgkmcnt(0)')
        A(f'v_mov_b32 {v(vT0 + 4)}, s98')
        A(f'buffer_store_dword {v(vT0 + 4)}, {v(vT0 + 5)}, {SRD}, s101 offen offset:4')
        A.label(skp, keep=True)
    stamp_flush(A, cfg, 14, 32, vT0 + 4)
    A(f'v_add_u32 {v(vMA)}, 8192, {v(vMA)}')
    A(f's_add_u32 s24, s24, 16384')
    A(f's_add_u32 s26, s26, {16 * 28672}')
    A(f's_add_u32 s15, s15, 1')
    if cfg.get('dbg'):
        for stp, wd in ((8, 9), (32, 10), (2, 6), (4, 7)):
            sk = A.newlabel('DB')
            A(f's_cmp_lg_u32 s15, {stp}')
            A(f's_cbranch_scc1 {sk}')
            dbgmax(A, cfg, wd, vT0 + 4)
            A.label(sk, keep=True)
    A(f's_cmp_lt_u32 s15, {NSTEP}')
    A(f's_cbranch_scc1 {top}')
    dbgmax(A, cfg, 11, vT0 + 4)
    A('s_endpgm')
    A.label(rare)
    A.forget()
    A(f'buffer_load_dwordx2 {v(vFL, 2)}, {v(vFA)}, {SRD}, s39 offen sc1')
    for back in range(cfg.get('pfdist', 2) - 1, 0, -1):
        A(f's_sub_u32 s38, s26, {back * 16 * 28672}')
        A('s_cmp_eq_u32 s15, 0')
        A('s_cselect_b32 s38, s38, 0x40000000')
        A(f'buffer_load_dword {v(vDUM)}, {v(vPF)}, {SRD}, s38 offen')
    A(f's_branch {rare_back}')
    for late, late_back, Q in lates:
        A.label(late)
        A.forget()
        guard(A)
        A(f'buffer_load_dwordx4 {v(Q, 4)}, {v(vMA)}, {SRD}, s17 offen sc1')
        A('s_waitcnt vmcnt(0)')
        check_regs(A, t0, [Q + i for i in range(4)])
        A(f's_cbranch_vccnz {late}')
        A(f'ds_write_b128 {v(vM(1))}, {v(Q, 4)}')
        A(f's_branch {late_back}')
    flush_deferred(A)


def emit_B(A, cfg):
    WL = 0x0000
    RIMG = 0x20000
    MIMG = 0x23000
    vL, vIDX, vMA, vWL, vYX, vP, vP2, vRW, vRR, vSA, vSK, vYM, vPF = range(1, 14)
    vT0 = 14
    M = lambda k: 20 + 4 * k
    YACC = lambda hh, t: 48 + 4 * (hh * 2 + t)
    YX = lambda k, t: 80 + 8 * (k * 2 + t)
    YB = lambda t: 112 + 4 * t
    M2 = 120
    YBN = lambda t: 180 + 4 * t
    OACC = lambda t: 128 + 4 * t
    ST = lambda b: 136 + 8 * b
    P = lambda r, k: ((20 if r == 0 else 120) + 4 * k) if k < 2 else 182 + 2 * r
    Pregs = lambda r: [P(r, 0) + i for i in range(8)] + [P(r, 2), P(r, 2) + 1]
    vM = lambda k: 168 + k
    vDUM = 176

    def W(ht, k):
        i = ht * 5 + k
        return a(8 * i, 8) if i < 32 else v(192 + 8 * (i - 32), 8)

    def Whalf(ht, k, eh):
        i = ht * 5 + k
        return a(8 * i + 4 * eh, 4) if i < 32 else v(192 + 8 * (i - 32) + 4 * eh, 4)

    t0, t1, t2, t3 = vT0, vT0 + 1, vT0 + 2, vT0 + 3
    lane_fields(A, vL)
    emit_koffs(A)
    A(f'v_and_b32 {v(t0)}, 15, {v(vL)}')
    A(f'v_lshrrev_b32 {v(t1)}, 4, {v(vL)}')
    sparse_idx(A, vIDX, vL, t2, t3)
    A(f'v_lshlrev_b32 {v(t2)}, 9, {v(t1)}')
    A(f'v_lshl_add_u32 {v(vYX)}, {v(t0)}, 4, {v(t2)}')
    if cfg.get('fused'):
        A('s_lshl_b32 s23, s13, 5')
        A(f's_add_u32 s23, s23, {L.F_AB + 128}')
        flag_wait(A, 's23', 32, 20, sleep=2)
    A(f's_mul_i32 s25, s13, 56')
    A(f's_add_u32 s25, s25, s14')
    A(f's_mul_i32 s25, s25, 28672')
    A(f's_add_u32 s25, s25, {L.WF + L.NB_B * 28672}')
    A(f's_lshl_b32 s28, s13, 15')
    cnt = 0
    for hh in range(4):
        for k in range(7):
            A(f's_lshl_b32 s23, s{16 + k}, 2')
            A(f's_add_u32 s23, s23, s25')
            A(f's_add_u32 s23, s23, {hh * 14 * 28672}')
            for eh in range(2):
                for t in range(2):
                    ht = hh * 2 + t
                    if k >= 5:
                        A(f's_add_u32 s24, s28, {WL + ((ht * 2 + (k - 5)) * 2 + eh) * 1024}')
                        A(f's_mov_b32 m0, s24')
                        A(f's_add_u32 s24, s23, {2048 * eh + 256 * t}')
                        A(f'buffer_load_dwordx4 {v(vYX)}, {SRD}, s24 offen sc1 lds')
                    else:
                        A(f'buffer_load_dwordx4 {Whalf(ht, k, eh)}, {v(vYX)}, {SRD}, s23 offen offset:{2048 * eh + 256 * t} sc1')
                    cnt += 1
                    if cnt % 16 == 0:
                        A('s_waitcnt vmcnt(40)')
    A(f'v_lshlrev_b32 {v(vMA)}, 4, {v(vL)}')
    A(f'v_add_u32 {v(vWL)}, s28, {v(vMA)}')
    A(f'v_add_u32 {v(vYM)}, 0, {v(vMA)}')
    for k in range(7):
        A(f's_add_u32 s23, s{16 + k}, {MIMG}')
        A(f'v_add_u32 {v(vM(k))}, s23, {v(vMA)}')
    A(f'v_add_u32 {v(vMA)}, {L.MEMA}, {v(vMA)}')
    A(f'v_lshrrev_b32 {v(t2)}, 1, {v(t1)}')
    A(f'v_mul_u32_u24 {v(t2)}, 640, {v(t2)}')
    A(f'v_and_b32 {v(t3)}, 1, {v(t1)}')
    A(f'v_lshl_add_u32 {v(t2)}, {v(t3)}, 8, {v(t2)}')
    A(f'v_lshl_add_u32 {v(vP)}, {v(t0)}, 4, {v(t2)}')
    A(f'v_lshrrev_b32 {v(t2)}, 1, {v(t1)}')
    A(f'v_bfe_u32 {v(t3)}, {v(vL)}, 3, 1')
    A(f'v_lshl_add_u32 {v(t2)}, {v(t3)}, 1, {v(t2)}')
    A(f'v_mul_u32_u24 {v(t2)}, 640, {v(t2)}')
    A(f'v_and_b32 {v(t3)}, 7, {v(vL)}')
    A(f'v_lshl_add_u32 {v(t2)}, {v(t3)}, 4, {v(t2)}')
    A(f'v_and_b32 {v(t3)}, 1, {v(t1)}')
    A(f'v_lshl_add_u32 {v(t2)}, {v(t3)}, 3, {v(t2)}')
    A(f'v_add_u32 {v(vP2)}, 512, {v(t2)}')
    A(f's_mul_i32 s23, s13, 3072')
    A(f's_add_u32 s23, s23, {RIMG}')
    A(f'v_mul_u32_u24 {v(t2)}, {4 * 192}, {v(t1)}')
    A(f'v_lshl_add_u32 {v(vRW)}, {v(t0)}, 3, {v(t2)}')
    A(f'v_add_u32 {v(vRW)}, s23, {v(vRW)}')
    A(f'v_lshrrev_b32 {v(t3)}, 3, {v(vL)}')
    A(f'v_and_b32 {v(t2)}, 3, {v(vL)}')
    A(f'v_lshlrev_b32 {v(vSA)}, 2, {v(t2)}')
    A(f'v_lshlrev_b32 {v(t2)}, 1, {v(t2)}')
    A(f'v_bfe_u32 {v(t0)}, {v(vL)}, 2, 1')
    A(f'v_lshl_add_u32 {v(vSA)}, {v(t0)}, 7, {v(vSA)}')
    A(f'v_lshl_add_u32 {v(vSA)}, {v(t3)}, 4, {v(vSA)}')
    A(f'v_add_u32 {v(t2)}, {v(t2)}, {v(t0)}')
    A(f's_and_b32 s23, s13, 1')
    A(f's_lshl_b32 s23, s23, 3')
    A(f'v_add_u32 {v(t0)}, s23, {v(t2)}')
    A(f'v_mul_u32_u24 {v(t2)}, 192, {v(t3)}')
    A(f'v_lshl_add_u32 {v(vRR)}, {v(t0)}, 3, {v(t2)}')
    A(f'v_add_u32 {v(vRR)}, {RIMG}, {v(vRR)}')
    A(f's_lshl_b32 s23, s14, 9')
    A(f's_and_b32 s24, s13, 1')
    A(f's_lshl_b32 s24, s24, 8')
    A(f's_add_u32 s24, s24, s23')
    A(f'v_add_u32 {v(vSA)}, s24, {v(vSA)}')
    A(f'v_lshlrev_b32 {v(vSK)}, 4, {v(t3)}')
    A(f'v_lshrrev_b32 {v(t2)}, 2, {v(t0)}')
    A(f'v_lshl_add_u32 {v(vSK)}, {v(t2)}, 7, {v(vSK)}')
    A(f'v_and_b32 {v(t2)}, 3, {v(t0)}')
    A(f'v_lshl_add_u32 {v(vSK)}, {v(t2)}, 2, {v(vSK)}')
    A(f'v_add_u32 {v(vSK)}, s23, {v(vSK)}')
    A(f's_cmp_ge_u32 s13, 2')
    A(f's_cselect_b32 s23, 0x40000000, 0')
    A(f'v_add_u32 {v(vSK)}, s23, {v(vSK)}')
    A(f's_mul_i32 s24, s13, {4 * 640}')
    A(f's_add_u32 s24, s24, {L.PBUF}')
    A(f's_mul_i32 s25, s13, 56')
    A(f's_add_u32 s25, s25, s14')
    A(f's_lshl_b32 s25, s25, 11')
    A(f's_add_u32 s25, s25, {L.YF}')
    A(f's_mov_b32 s26, {L.MEMA + 8192}')
    A(f's_mov_b32 s29, {L.MEMX}')
    A(f's_lshl_b32 s31, s14, 2')
    A(f's_add_u32 s31, s31, s13')
    A(f's_lshl_b32 s31, s31, 11')
    A(f's_add_u32 s31, s31, {L.YM}')
    NTA = cfg.get('ntouch', 2)
    NT = cfg.get('ntouchB', 0)
    A(f's_mul_i32 s34, s14, {NT}')
    A(f's_add_u32 s34, s34, {16 * NTA}')
    A(f's_add_u32 s34, s34, s13')
    A(f's_min_u32 s34, s34, 55')
    A(f's_lshl_b32 s34, s34, 13')
    A(f's_add_u32 s34, s34, {L.YF + cfg.get("pfdist", 2) * 16 * 28672}')
    A(f'v_lshlrev_b32 {v(vPF)}, 7, {v(vL)}')
    A(f's_cmp_ge_u32 s13, {NT}')
    A(f's_cselect_b32 s23, 0x40000000, 0')
    A(f'v_add_u32 {v(vPF)}, s23, {v(vPF)}')
    A(f's_mov_b32 s15, 0')
    A(f's_mov_b32 s35, 0x40000000')
    if cfg.get('stamps'):
        A(f's_add_u32 s32, s14, 16')
        A(f's_lshl_b32 s32, s32, 2')
        A(f's_add_u32 s32, s32, s13')
        A(f's_lshl_b32 s32, s32, 12')
        A(f's_add_u32 s32, s32, {L.STAMP}')
    vNON, vF0 = 178, 180
    A(f'v_mov_b32 {v(vNON)}, s96')
    A(f'v_mov_b32 {v(vNON + 1)}, s97')
    A(f'v_mov_b32 {v(t2)}, 0x40000000')
    A(f'v_cmp_eq_u32 vcc, 0, {v(vL)}')
    A(f'v_cndmask_b32 {v(vF0)}, {v(t2)}, {v(vL)}, vcc')
    A('s_lshl_b32 s27, s14, 2')
    A('s_add_u32 s27, s27, s13')
    A('s_lshl_b32 s27, s27, 3')
    A(f's_add_u32 s27, s27, {L.FLAGS + 8 * L.F_YM - 2 * 56 * 8}')
    ymflag = lambda sreg: f'buffer_store_dwordx2 {v(vNON, 2)}, {v(vF0)}, {SRD}, {sreg} offen sc1'
    vOUT = vT0 + 5
    A(f'v_mov_b32 {v(vOUT)}, 0')
    for r in range(8):
        A(f'v_mov_b32 {v(YB(0) + r)}, 0')

    def yx_list():
        out = []
        for k in range(2):
            for eh in range(2):
                for t in range(2):
                    out.append([f's_add_u32 s23, s25, {(2 * k + eh) * 14 * 2048}',
                                f'buffer_load_dwordx4 {v(YX(k, t) + 4 * eh, 4)}, {v(vYX)}, {SRD}, s23 offen offset:{256 * t} sc1'])
        return out

    def ym_list(sreg):
        return [[f'buffer_store_dwordx4 {v(YB(t), 4)}, {v(vYM)}, {SRD}, {sreg} offen offset:{t * 1024} sc1'] for t in range(2)]

    A('s_waitcnt vmcnt(0)')
    tl(A, cfg, 's14', 1, vT0 + 2, 0x18400)
    loaded_flag(A, cfg, 16, M(4))
    start_gate(A, cfg, M(0))
    tl(A, cfg, 's14', 2, vT0 + 2, 0x18400)
    dbgmax(A, cfg, 12, vT0 + 2)
    top = A.newlabel('B_top')
    mpoll = A.newlabel('B_mpoll')
    ppoll = A.newlabel('B_ppoll')
    nxt = A.newlabel('B_next')
    fin = A.newlabel('B_fin')
    A.label(top)
    A.forget()
    zero = [f'v_mov_b32 {v(YACC(0, 0) + r)}, 0' for r in range(32)] + [f'v_mov_b32 {v(OACC(0) + r)}, 0' for r in range(8)]
    if cfg.get('yxearly'):
        for x in yx_list():
            for y in x:
                A(y)
    ZP = cfg.get('zpre', 12)
    for x in zero[:ZP]:
        A(x)
    ldsq = [(hh * 2 + t, k) for t in range(2) for pr in range(2) for k in (5, 6) for hh in (2 * pr, 2 * pr + 1)]

    def wlread(j):
        ht, k = ldsq[j]
        for eh in range(2):
            A(f'ds_read_b128 {v(ST(j & 3) + 4 * eh, 4)}, {v(vWL)} offset:{((ht * 2 + (k - 5)) * 2 + eh) * 1024}')
    for j in range(4):
        wlread(j)
    if cfg.get('bsleep', 0):
        A(f's_sleep {cfg["bsleep"]}')
    MS = lambda r: (M(0) if r == 0 else M2)
    A(f's_add_u32 s36, s31, s35')

    def missue(r):
        for k in range(2):
            A(f'buffer_load_dwordx4 {v(MS(r) + 4 * k, 4)}, {v(vMA)}, {SRD}, s{16 + k} offen sc1')
    mv0, mv1, mcommon = A.newlabel('B_mv0'), A.newlabel('B_mv1'), A.newlabel('B_mc')
    missue(0)
    for x in zero[ZP:]:
        A(x)
    A.label(mpoll, keep=True)
    guard(A)
    missue(1)
    check_regs(A, t0, [MS(0) + i for i in range(8)])
    A(f's_cbranch_vccz {mv0}')
    missue(0)
    check_regs(A, t0, [MS(1) + i for i in range(8)])
    A(f's_cbranch_vccnz {mpoll}')
    lgsnap = [set(x) for x in A.lg]

    def allmem():
        ld_ = yx_list() if not (cfg.get('noyx') or cfg.get('yxearly')) else []
        st_ = ym_list('s36') if not cfg.get('noym') else []
        return st_ + ld_ if cfg.get('stfirst') else ld_ + st_
    left = []

    def mvariant(r):
        A.vm = [set(('v', MS(1 - r) + i) for i in range(8))]
        A.lg = [set(x) for x in lgsnap]
        A.smem_out = []
        stamp(A, cfg, 0)
        vmem = allmem()
        for i, (ht, k) in enumerate([(ht, k) for k in range(2) for ht in range(8)]):
            A(f'v_smfmac_f32_16x16x64_bf16 {v(YACC(ht >> 1, ht & 1), 4)}, {v(MS(r) + 4 * k, 4)}, {W(ht, k)}, {v(vIDX)}')
            if i < 2:
                A(f'ds_write_b128 {v(vM(i))}, {v(MS(r) + 4 * i, 4)}')
            if i == 4:
                A('s_waitcnt lgkmcnt(0)')
                A('s_barrier')
            if 4 <= i < 9:
                A(f'ds_read_b128 {v(M(i - 2), 4)}, {v(vM(i - 2))}')
            if i >= 5 and (i - 5) % cfg.get('vgap', 2) == 0 and vmem:
                for x in vmem.pop(0):
                    A(x)
            if i == 4:
                stamp(A, cfg, 8)
        left[:] = vmem
    A.label(mv1, keep=True)
    mvariant(1)
    A(f's_branch {mcommon}')
    align(A, cfg, 'alBm')
    A.label(mv0)
    mvariant(0)
    A.label(mcommon, keep=True)
    A.vm = [set(('v', M(0) + i) for i in range(8)) | set(('v', M2 + i) for i in range(8)) | set(('v', YX(0, 0) + i) for i in range(32))]
    mem = list(left)
    if NT:
        mem += [[f'buffer_load_dword {v(vDUM)}, {v(vPF)}, {SRD}, s34 offen']]
    def pissue(r):
        A(f'buffer_load_dwordx4 {v(P(r, 0), 4)}, {v(vP)}, {SRD}, s24 offen sc1')
        A(f'buffer_load_dwordx4 {v(P(r, 1), 4)}, {v(vP)}, {SRD}, s24 offen offset:1280 sc1')
        A(f'buffer_load_dwordx2 {v(P(r, 2), 2)}, {v(vP2)}, {SRD}, s24 offen sc1')
    seq = []
    groups = [(pr, t) for t in range(2) for pr in range(2)]
    for pr, t in groups:
        ha, hb = (2 * pr) * 2 + t, (2 * pr + 1) * 2 + t
        seq += [(ha, 5), (ha, 2), (hb, 2), (hb, 5), (ha, 3), (ha, 6), (hb, 3), (ha, 4), (hb, 6), (hb, 4)]
    assert [x for x in seq if x[1] >= 5] == ldsq
    lj = 0
    vq = []
    dq = []
    GAP = cfg.get('bmemgap', 2)

    def gpost(pr, t):
        Ya, Yb = YACC(2 * pr, t), YACC(2 * pr + 1, t)
        ops = [f'v_permlane32_swap_b32 {v(Ya + r)}, {v(Yb + r)}' for r in range(4)]
        ops += [f'v_add_f32 {v(Ya + r)}, {v(Ya + r)}, {v(Yb + r)}' for r in range(4)]
        ops += [f'v_cvt_pk_bf16_f32 {v(YB(t) + 2 * p + pr)}, {v(Ya + 2 * p)}, {v(Ya + 2 * p + 1)}' for p in range(2)]
        return ops
    sani = [f'v_min_u32 {v(YB(0) + r)}, -2, {v(YB(0) + r)}' for r in range(8)]
    for i, (ht, k) in enumerate(seq):
        if i % 10 == 0:
            stamp(A, cfg, 9 + i // 10)
        if k >= 5:
            A.auto(f'v_smfmac_f32_16x16x64_bf16 {v(YACC(ht >> 1, ht & 1), 4)}, {v(M(k), 4)}, {v(ST(lj & 3), 8)}, {v(vIDX)}')
            if lj + 4 < 16:
                h2, k2 = ldsq[lj + 4]
                for eh in range(2):
                    dq.append(f'ds_read_b128 {v(ST(lj & 3) + 4 * eh, 4)}, {v(vWL)} offset:{((h2 * 2 + (k2 - 5)) * 2 + eh) * 1024}')
            lj += 1
        else:
            A.auto(f'v_smfmac_f32_16x16x64_bf16 {v(YACC(ht >> 1, ht & 1), 4)}, {v(M(k), 4)}, {W(ht, k)}, {v(vIDX)}')
        if i % 10 == 9:
            vq += gpost(*groups[i // 10])
        if dq:
            A(dq.pop(0))
        if i >= cfg.get('yxstart', 0) and i % GAP == 0 and mem:
            for x in mem.pop(0):
                A(x)
        if i == cfg.get('pearly', -1):
            pissue(0)
        if vq and A.pad_needed(vq[0]) == 0:
            A(vq.pop(0))
    assert not mem and not dq
    stamp(A, cfg, 13)
    for o in vq:
        A(o)
    A(f's_cmp_eq_u32 s15, 0')
    A(f's_cselect_b32 s23, 0, {14 * 4 * 2048}')
    A(f's_add_u32 s31, s31, s23')
    A(f's_mov_b32 s35, 0')
    A(f's_add_u32 s27, s27, {56 * 8}')
    A(f's_add_u32 s25, s25, {16 * 28672}')
    A(f's_add_u32 s34, s34, {16 * 28672}')
    stamp(A, cfg, 1)
    A(f's_cmp_eq_u32 s15, {NSTEP}')
    A(f's_cbranch_scc1 {fin}')
    A('s_cmp_ge_u32 s13, 2')
    A('s_cselect_b32 s23, 0x40000000, s26')
    dual_prep(A, 's23', 's29', 's37')
    stamp(A, cfg, 5)
    if cfg.get('psleep', 0):
        A(f's_sleep {cfg["psleep"]}')

    var0 = A.newlabel('B_var0')
    var1 = A.newlabel('B_var1')
    common = A.newlabel('B_common')
    redo = A.newlabel('B_redo')

    def quick(r):
        keepalive(A, vDUM + 1, cfg.get('kbp', 0), cfg)
        A('s_waitcnt vmcnt(3)')
        A(f'v_max3_u32 {v(t0)}, {v(P(r, 0) + 3)}, {v(P(r, 1) + 3)}, {v(P(r, 2) + 1)}')
        A(f'v_cmp_eq_u32 vcc, -1, {v(t0)}')
    if cfg.get('pearly', -1) < 0:
        keepalive(A, vDUM + 1, cfg.get('pdel', 32), {})
        pissue(0)
        keepalive(A, vDUM + 1, cfg.get('pgapB', 8), {})
    align(A, cfg, 'alBp', -1)
    A.label(ppoll, keep=True)
    guard(A)
    pissue(1)
    quick(0)
    A(f's_cbranch_vccz {var0}')
    pissue(0)
    quick(1)
    A(f's_cbranch_vccnz {ppoll}')
    bad = A.newlabel('B_bad')

    def variant(r):
        A.vm = [set(('v', x) for x in Pregs(1 - r))]
        A.lg = []
        A.smem_out = []
        stamp(A, cfg, 2)
        Q = P(r, 0)
        full = [f'v_max3_u32 {v(t0)}, {v(Q)}, {v(Q + 1)}, {v(Q + 2)}', f'v_max3_u32 {v(t0)}, {v(t0)}, {v(Q + 4)}, {v(Q + 5)}',
                f'v_max3_u32 {v(t0)}, {v(t0)}, {v(Q + 6)}, {v(P(r, 2))}',
                f'v_cmp_eq_u32 vcc, -1, {v(t0)}']
        for k in ((2, 0, 1) if cfg.get('kord') else (0, 1, 2)):
            for t in range(2):
                if k < 2:
                    A(f'v_smfmac_f32_16x16x64_bf16 {v(OACC(t), 4)}, {v(P(r, k), 4)}, {v(YX(k, t), 8)}, {v(vIDX)}')
                else:
                    A(f'v_smfmac_f32_16x16x32_bf16 {v(OACC(t), 4)}, {v(P(r, k), 2)}, {v(YB(t), 4)}, {v(vIDX)}')
        NF = cfg.get('nfull', 2)
        for x in full[:NF]:
            A(x)
        for rr in range(4):
            A(f'ds_write2_b32 {v(vRW)}, {v(OACC(0) + rr)}, {v(OACC(1) + rr)} offset0:{rr * 48} offset1:{rr * 48 + 1}')
        for x in full[NF:]:
            A(x)
        A(f's_cbranch_vccnz {bad}')
    A.label(var1)
    variant(1)
    A(f's_branch {common}')
    A.label(bad)
    A('s_waitcnt vmcnt(0) lgkmcnt(0)')
    A('s_nop 7')
    for r in range(8):
        A(f'v_mov_b32 {v(OACC(0) + r)}, 0')
    pissue(0)
    A(f's_branch {ppoll}')
    align(A, cfg, 'alB0')
    A.label(var0)
    variant(0)
    A.label(common, keep=True)
    A.vm = [set(('v', x) for x in Pregs(0) + Pregs(1))]
    A('s_cmp_ge_u32 s13, 2')
    keepalive(A, vDUM + 1, cfg.get('kb1', 0), cfg)
    stamp(A, cfg, 6)
    warm_mfma(A, ST(0), cfg)
    A('s_waitcnt lgkmcnt(0)')
    A('s_barrier')
    stamp(A, cfg, 7)
    A(f's_cbranch_scc1 {nxt}')
    R = lambda w: YACC(0, 0) + 4 * w
    for w in range(4):
        A(f'ds_read2st64_b64 {v(R(w), 4)}, {v(vRR)} offset0:{6 * w} offset1:{6 * w + 3}')
    keepalive(A, vDUM + 1, cfg.get('kb2', 3), cfg)
    A(f'v_mov_b32 {v(t1)}, -2')
    A.auto(f'v_pk_add_f32 {v(R(0), 2)}, {v(R(0), 2)}, {v(R(0) + 2, 2)}')
    A.auto(f'v_pk_add_f32 {v(R(1), 2)}, {v(R(1), 2)}, {v(R(1) + 2, 2)}')
    A(f'v_pk_add_f32 {v(R(0), 2)}, {v(R(0), 2)}, {v(R(1), 2)}')
    A.auto(f'v_pk_add_f32 {v(R(2), 2)}, {v(R(2), 2)}, {v(R(2) + 2, 2)}')
    A(f'v_pk_add_f32 {v(R(0), 2)}, {v(R(0), 2)}, {v(R(2), 2)}')
    A.auto(f'v_pk_add_f32 {v(R(3), 2)}, {v(R(3), 2)}, {v(R(3) + 2, 2)}')
    A(f'v_pk_add_f32 {v(R(0), 2)}, {v(R(0), 2)}, {v(R(3), 2)}')
    A(f'v_cvt_pk_bf16_f32 {v(vOUT)}, {v(R(0))}, {v(R(0) + 1)}')
    A(f'v_min_u32 {v(vOUT)}, {v(vOUT)}, {v(t1)}')
    A.label(nxt, keep=True)
    dual_store(A, f'buffer_store_dword {v(vOUT)}, {v(vSA)}, {SRD}, {{s}} offen', 's29', 's37')
    stamp(A, cfg, 3)
    rstamp(A, cfg, 4)
    if not cfg.get('nohold'):
        A('s_barrier')
    nl = A.newlabel('B_nl')
    A(f's_cmp_lg_u32 s15, {NSTEP - 1}')
    A(f's_cbranch_scc1 {nl}')
    A(f's_mov_b32 s23, {L.MEMX + 63 * 8192}')
    A('s_waitcnt vmcnt(2)')
    A(f'buffer_store_dword {v(vOUT)}, {v(vSK)}, {SRD}, s23 offen sc1')
    A(f's_branch {nl}x')
    A.label(nl, keep=True)
    A('s_waitcnt vmcnt(2)')
    A.label(nl + 'x', keep=True)
    stamp_flush(A, cfg, 14, 32, vT0 + 2)
    A(f'v_add_u32 {v(vMA)}, 8192, {v(vMA)}')
    A(f's_add_u32 s24, s24, 16384')
    A(f's_add_u32 s26, s26, 8192')
    A(f's_add_u32 s15, s15, 1')
    A(f's_branch {top}')
    A.label(fin)
    for x in ym_list('s31'):
        A(x[0])
    A('s_waitcnt vmcnt(0)')
    A(ymflag('s27'))
    A(f's_add_u32 s27, s27, {56 * 8}')
    A(ymflag('s27'))
    A('s_endpgm')
    flush_deferred(A)


def emit_C(A, cfg):
    NT = cfg.get('ntouch', 2)
    D = cfg.get('cdist', 3)
    first = min(16 * NT + 14 * cfg.get('ntouchB', 0), 56)
    nrounds = (56 - first + 7) // 8
    vL, vPF, vPL, vD, vLW, vLR, vST, t0, t1 = 1, 2, 3, 4, 5, 6, 7, 8, 9
    Q = 12
    A.pipe_model = False
    lane_fields(A, vL)
    A(f'v_lshlrev_b32 {v(vPF)}, 7, {v(vL)}')
    A('s_lshl_b32 s16, s14, 2')
    A('s_add_u32 s16, s16, s13')
    A('s_cmp_eq_u32 s16, 7')
    A('s_cselect_b32 s19, 0, s16')
    A('s_lshl_b32 s19, s19, 10')
    A(f'v_lshlrev_b32 {v(vST)}, 4, {v(vL)}')
    A('s_lshl_b32 s23, s13, 10')
    A(f'v_add_u32 {v(vLW)}, s23, {v(vST)}')
    A(f'v_lshrrev_b32 {v(t0)}, 4, {v(vL)}')
    A(f'v_lshlrev_b32 {v(vLR)}, 8, {v(t0)}')
    A(f'v_and_b32 {v(t0)}, 7, {v(vL)}')
    A(f'v_lshl_add_u32 {v(vLR)}, {v(t0)}, 4, {v(vLR)}')
    A(f'v_bfe_u32 {v(t0)}, {v(vL)}, 3, 1')
    A(f'v_lshl_add_u32 {v(vLR)}, {v(t0)}, 3, {v(vLR)}')
    A(f'v_add_u32 {v(vLR)}, s23, {v(vLR)}')
    A(f'v_add_u32 {v(vST)}, s19, {v(vST)}')
    A(f'v_add_u32 {v(vPL)}, {L.MEMA + 8192}, {v(vST)}')
    A('s_cmp_eq_u32 s16, 7')
    A(f's_cselect_b32 s19, 0x40000000, 0')
    A(f's_add_u32 s19, s19, {L.MEMX + 8192}')
    A('s_lshl_b32 s17, s16, 13')
    A(f's_add_u32 s17, s17, {L.XF}')
    A('s_mov_b32 s18, 28672')
    A('s_cmp_ge_u32 s16, 4')
    A(f's_cselect_b32 s17, {L.MEMA + 8192}, s17')
    A(f's_cselect_b32 s18, 8192, s18')
    A('s_cmp_eq_u32 s16, 6')
    A(f's_cselect_b32 s17, {L.PBUF}, s17')
    A('s_cmp_eq_u32 s16, 7')
    A(f's_cselect_b32 s17, {L.PBUF + 8192}, s17')
    A('s_cmp_ge_u32 s16, 6')
    A(f's_cselect_b32 s18, 16384, s18')
    for r in range(nrounds):
        A(f's_add_u32 s{24 + r}, s16, {first + 8 * r}')
        A(f's_min_u32 s{24 + r}, s{24 + r}, 55')
        A(f's_lshl_b32 s{24 + r}, s{24 + r}, 13')
        A(f's_add_u32 s{24 + r}, s{24 + r}, {L.YF}')
    assert nrounds == 0 or not cfg.get('fused')

    def touches():
        A(f'buffer_load_dword {v(vD)}, {v(vPF)}, {SRD}, s17 offen')
        A('s_add_u32 s17, s17, s18')
        for r in range(nrounds):
            A(f'buffer_load_dword {v(vD)}, {v(vPF)}, {SRD}, s{24 + r} offen')
            A(f's_add_u32 s{24 + r}, s{24 + r}, {16 * 28672}')
    if cfg.get('fused'):
        flag_wait_multi(A, [L.F_LN, L.F_LN + 64, L.F_LN + 128, L.F_LN + 192], Q)
    A(f's_mov_b32 s23, {L.MEMA}')
    A(f'buffer_load_dword {v(vD)}, {v(vPF)}, {SRD}, s23 offen')
    for _ in range(D):
        touches()
    def code_touch():
        if not cfg.get('ctouch', 0) or not cfg.get('fused'):
            return
        lab = A.newlabel('CPC')
        A.raw('    s_getpc_b64 s[26:27]')
        A.raw(f'{lab}:')
        A.raw(f'    s_sub_u32 s26, s26, {lab} - CHAIN_BEGIN')
        A('s_subb_u32 s27, s27, 0')
        A('s_lshl_b32 s23, s16, 12')
        A(f'v_lshlrev_b32 {v(t1)}, 6, {v(vL)}')
        A(f'v_add_u32 {v(t1)}, s23, {v(t1)}')
        A(f'global_load_dword {v(vD)}, {v(t1)}, s[26:27]')
    if cfg.get('fused') and cfg.get('ctouch', 0):
        soft_wait(A, L.F_INIT, cfg.get('ctn', 8), Q, 40, 4)
    code_touch()
    start_gate(A, cfg, Q, [L.F_Y0])
    for sg in range(1):
        for r in range(7):
            A(f's_add_u32 s23, s16, {8 * r}')
            A(f's_lshl_b32 s23, s23, 13')
            A(f's_add_u32 s23, s23, {L.YF + sg * 16 * 28672}')
            A(f'buffer_load_dword {v(vD)}, {v(vPF)}, {SRD}, s23 offen')
    A('s_mov_b32 s15, 1')
    top = A.newlabel('C_top')
    skip = A.newlabel('C_skip')
    A.label(top)
    A.forget()
    guard(A)
    A(f's_sleep 1')
    A(f'buffer_load_dwordx4 {v(Q, 4)}, {v(vPL)}, {SRD}, 0 offen sc1')
    A('s_waitcnt vmcnt(0)')
    check_regs(A, t0, [Q + i for i in range(4)])
    A(f's_cbranch_vccnz {top}')
    A(f'ds_write_b128 {v(vLW)}, {v(Q, 4)}')
    A(f'ds_read2_b32 {v(Q + 4, 2)}, {v(vLR)} offset0:0 offset1:32')
    A(f'ds_read2_b32 {v(Q + 6, 2)}, {v(vLR)} offset0:1 offset1:33')
    A('s_waitcnt lgkmcnt(0)')
    A(f'buffer_store_dwordx4 {v(Q + 4, 4)}, {v(vST)}, {SRD}, s19 offen sc1')
    A(f'v_add_u32 {v(vPL)}, 8192, {v(vPL)}')
    A('s_add_u32 s19, s19, 8192')
    A(f's_cmp_gt_u32 s15, {64 - D}')
    A(f's_cbranch_scc1 {skip}')
    touches()
    A.label(skip)
    A('s_add_u32 s15, s15, 1')
    A(f's_cmp_lt_u32 s15, 64')
    A(f's_cbranch_scc1 {top}')
    A('s_endpgm')
```

```python
import struct
from asmdsl import v, a, s
import layout as L
import gemm as G
from prep import tr_addr, rne_bf16, CSCALE, srd
import chain
CFG = {}

SRD = 's[8:11]'
STG = 45056


def ln2_issue(A, srdx):
    VL = G.VL
    vA = 20
    A(f'v_lshrrev_b32 v21, 5, {v(VL)}')
    A(f'v_and_b32 v22, 31, {v(VL)}')
    A(f'v_mul_u32_u24 {v(vA)}, 896, v21')
    A(f'v_lshl_add_u32 {v(vA)}, v22, 4, {v(vA)}')
    A(f'v_mov_b32 v23, 0x40000000')
    A(f'v_cmp_gt_u32 vcc, 28, v22')
    A(f'v_cndmask_b32 {v(vA)}, v23, {v(vA)}, vcc')
    A('s_lshl_b32 s50, s2, 2')
    A('s_add_u32 s50, s50, s13')
    A(f's_mul_i32 s79, s50, {2 * 896}')
    A(f'buffer_load_dwordx4 v[208:211], {v(vA)}, {srdx}, s79 offen')
    A(f'buffer_load_dwordx4 v[212:215], {v(vA)}, {srdx}, s79 offen offset:448')


def ln2_compute(A, nyounger):
    VL = G.VL
    X, F = 208, 216
    t0, sm, sq, vS, t1 = 232, 233, 234, 235, 236
    A(f's_waitcnt vmcnt({nyounger})')
    A.vm = []
    for i in range(8):
        A(f'v_lshlrev_b32 {v(F + 2 * i)}, 16, {v(X + i)}')
        A(f'v_and_b32 {v(F + 2 * i + 1)}, 0xffff0000, {v(X + i)}')

    def red32(r):
        for pat in ('quad_perm:[1,0,3,2]', 'quad_perm:[2,3,0,1]', 'row_half_mirror', 'row_mirror'):
            A(f'v_add_f32_dpp {v(r)}, {v(r)}, {v(r)} {pat} row_mask:0xf bank_mask:0xf')
        A(f'v_mov_b32 {v(t1)}, {v(r)}')
        A(f'v_permlane16_swap_b32 {v(r)}, {v(t1)}')
        A(f'v_add_f32 {v(r)}, {v(r)}, {v(t1)}')
    A(f'v_add_f32 {v(sm)}, {v(F)}, {v(F + 1)}')
    for i in range(2, 16):
        A(f'v_add_f32 {v(sm)}, {v(sm)}, {v(F + i)}')
    red32(sm)
    inv = struct.unpack('<I', struct.pack('<f', 1.0 / 448.0))[0]
    A(f'v_mul_f32 {v(sm)}, {inv:#x}, {v(sm)}')
    A(f'v_mov_b32 {v(sq)}, 0')
    for i in range(16):
        A(f'v_sub_f32 {v(t0)}, {v(F + i)}, {v(sm)}')
        A(f'v_fmac_f32 {v(sq)}, {v(t0)}, {v(t0)}')
    A(f'v_and_b32 {v(t0)}, 31, {v(VL)}')
    A(f'v_cmp_gt_u32 vcc, 28, {v(t0)}')
    A(f'v_cndmask_b32 {v(sq)}, 0, {v(sq)}, vcc')
    red32(sq)
    A(f'v_mul_f32 {v(sq)}, {inv:#x}, {v(sq)}')
    rne_bf16(A, sm, t0)
    rne_bf16(A, sq, t0)
    eps = struct.unpack('<I', struct.pack('<f', 1e-5))[0]
    A(f'v_add_f32 {v(sq)}, {eps:#x}, {v(sq)}')
    rne_bf16(A, sq, t0)
    A(f'v_sqrt_f32 {v(sq)}, {v(sq)}')
    rne_bf16(A, sq, t0)
    A(f'v_rcp_f32 {v(sq)}, {v(sq)}')
    for i in range(8):
        r = F + 2 * i
        A(f'v_sub_f32 {v(r)}, {v(r)}, {v(sm)}')
        A(f'v_sub_f32 {v(r + 1)}, {v(r + 1)}, {v(sm)}')
        A(f'v_cvt_pk_bf16_f32 {v(t1)}, {v(r)}, {v(r + 1)}')
        A(f'v_lshlrev_b32 {v(r)}, 16, {v(t1)}')
        A(f'v_and_b32 {v(r + 1)}, 0xffff0000, {v(t1)}')
        A(f'v_mul_f32 {v(r)}, {v(r)}, {v(sq)}')
        A(f'v_mul_f32 {v(r + 1)}, {v(r + 1)}, {v(sq)}')
        A(f'v_cvt_pk_bf16_f32 {v(X + i)}, {v(r)}, {v(r + 1)}')
    A(f'v_lshlrev_b32 {v(vS)}, 9, {v(t0)}')
    A(f'v_lshrrev_b32 {v(t1)}, 5, {v(VL)}')
    A(f'v_lshl_add_u32 {v(vS)}, {v(t1)}, 4, {v(vS)}')
    A(f'v_mov_b32 {v(t1)}, 0x40000000')
    A(f'v_cndmask_b32 {v(vS)}, {v(t1)}, {v(vS)}, vcc')
    A('s_lshr_b32 s50, s2, 2')
    A('s_mul_i32 s50, s50, 28672')
    A('s_and_b32 s51, s2, 3')
    A('s_lshl_b32 s51, s51, 2')
    A('s_add_u32 s51, s51, s13')
    A('s_lshl_b32 s51, s51, 5')
    A('s_add_u32 s50, s50, s51')
    A(f's_add_u32 s79, s50, {L.XF}')
    return [f'buffer_store_dwordx4 {v(X, 4)}, {v(vS)}, {SRD}, s79 offen sc1',
            f's_add_u32 s79, s79, {28 * 512}',
            f'buffer_store_dwordx4 {v(X + 4, 4)}, {v(vS)}, {SRD}, s79 offen sc1']


def item_ab2(A, mat):
    VL, VLIN, VPERM = G.VL, G.VLIN, G.VPERM
    acc = lambda nb: G.ACC0 + 16 * nb
    vS0, vS1, vWo, vSt, t0, t1, t2 = 5, 6, 7, 24, 8, 9, 10
    RO = lambda kq: 12 + kq
    RS = lambda kq: 16 + kq
    WOV = 196
    A(f'v_lshrrev_b32 {v(t0)}, 3, {v(VL)}')
    A(f'v_and_b32 {v(t1)}, 7, {v(VL)}')
    A(f'v_lshrrev_b32 {v(t2)}, 1, {v(t0)}')
    A(f'v_xor_b32 {v(t1)}, {v(t1)}, {v(t2)}')
    A(f'v_lshlrev_b32 {v(t0)}, 13, {v(t0)}')
    A(f'v_lshl_add_u32 {v(vS0)}, {v(t1)}, 4, {v(t0)}')
    A(f'v_xor_b32 {v(vS1)}, 64, {v(vS0)}')
    A('s_lshl_b32 s44, s54, 2')
    A('s_add_u32 s44, s44, s13')
    A('s_min_u32 s50, s44, 13')
    A('s_lshl_b32 s45, s50, 18')
    A('s_lshl_b32 s51, s53, 9')
    A('s_add_u32 s45, s45, s51')
    A('s_lshl_b32 s46, s13, 12')

    def frag_addr(dst4, rowreg):
        A(f'v_bfe_u32 {v(t1)}, {v(rowreg)}, 1, 3')
        A(f'v_lshrrev_b32 {v(t2)}, 5, {v(VL)}')
        A(f'v_xor_b32 {v(t1)}, {v(t1)}, {v(t2)}')
        A(f'v_lshlrev_b32 {v(t1)}, 4, {v(t1)}')
        A(f'v_lshl_add_u32 {v(t1)}, {v(rowreg)}, 7, {v(t1)}')
        for kq in range(4):
            A(f'v_xor_b32 {v(dst4(kq))}, {32 * kq}, {v(t1)}')
    A(f'v_lshrrev_b32 {v(t0)}, 4, {v(VPERM)}')
    A(f'v_and_b32 {v(t0)}, 31, {v(t0)}')
    frag_addr(RO, t0)
    for kq in range(4):
        A(f'v_add_u32 {v(RO(kq))}, s46, {v(RO(kq))}')
    if mat == 0:
        A(f'v_and_b32 {v(t0)}, 31, {v(VL)}')
        frag_addr(RS, t0)
        A(f's_mul_i32 s47, s55, {7 << 18}')
        A('s_add_u32 s47, s47, s51')
        A('s_lshl_b32 s50, s13, 16')
        A('s_add_u32 s47, s47, s50')
        A('s_and_b32 s50, s13, 1')
        A('s_lshl_b32 s50, s50, 6')
        A(f'v_xor_b32 {v(vWo)}, s50, {v(vS0)}')
        nb_step, st_step = 1 << 18, 128
        A(f'v_mov_b32 {v(vSt)}, {v(VLIN)}')
    else:
        for j in range(7):
            A(f'v_add_u32 {v(t0)}, {64 * j}, {v(VL)}')
            A(f'v_mul_u32_u24 {v(t1)}, 2341, {v(t0)}')
            A(f'v_lshrrev_b32 {v(t1)}, 16, {v(t1)}')
            A(f'v_mul_u32_u24 {v(t2)}, {896 - 448}, {v(t1)}')
            A(f'v_lshl_add_u32 {v(WOV + j)}, {v(t0)}, 4, {v(t2)}')
        A(f's_mul_i32 s47, s53, {256 * 896}')
        A(f's_mul_i32 s50, s55, {7 * 64}')
        A('s_add_u32 s47, s47, s50')
        A(f's_mul_i32 s50, s13, {16 * 896}')
        A('s_add_u32 s47, s47, s50')
        nb_step, st_step = 64, 64 * 896
        A(f'v_lshrrev_b32 {v(t0)}, 5, {v(VL)}')
        A(f'v_lshlrev_b32 {v(t0)}, 3, {v(t0)}')
        A(f'v_bfe_u32 {v(t1)}, {v(VL)}, 2, 2')
        A(f'v_add_u32 {v(t0)}, {v(t0)}, {v(t1)}')
        A(f'v_mul_u32_u24 {v(RS(0))}, 448, {v(t0)}')
        A(f'v_bfe_u32 {v(t0)}, {v(VL)}, 4, 1')
        A(f'v_lshl_add_u32 {v(RS(0))}, {v(t0)}, 5, {v(RS(0))}')
        A(f'v_and_b32 {v(t0)}, 3, {v(VL)}')
        A(f'v_lshl_add_u32 {v(RS(0))}, {v(t0)}, 3, {v(RS(0))}')
        A(f'v_and_b32 {v(t0)}, 1, {v(VL)}')
        A(f'v_lshlrev_b32 {v(vSt)}, 4, {v(t0)}')
        A(f'v_bfe_u32 {v(t0)}, {v(VL)}, 1, 4')
        A(f'v_add_u32 {v(vSt)}, {v(vSt)}, {v(t0)}')
        A(f'v_lshrrev_b32 {v(t1)}, 5, {v(VL)}')
        A(f'v_lshl_add_u32 {v(vSt)}, {v(t1)}, 5, {v(vSt)}')
        A(f'v_lshlrev_b32 {v(vSt)}, 4, {v(vSt)}')
    A('s_lshl_b32 s48, s13, 10' if mat == 0 else 's_mul_i32 s48, s13, 7168')

    def issue(st):
        buf = (st % 3) * STG
        for j in range(4):
            A(f's_add_u32 s50, s46, {buf + j * 1024}')
            A('s_mov_b32 m0, s50')
            A(f's_add_u32 s51, s45, {st * 128 + j * 65536}')
            A(f'buffer_load_dwordx4 {v(vS1 if j & 1 else vS0)}, s[68:71], s51 offen lds')
        for nb in range(7):
            A(f's_add_u32 s50, s48, {buf + 16384 + nb * (4096 if mat == 0 else 1024)}')
            A('s_mov_b32 m0, s50')
            if mat == 0:
                A(f's_add_u32 s51, s47, {st * st_step + nb * nb_step}')
                A(f'buffer_load_dwordx4 {v(vWo)}, s[72:75], s51 offen lds')
            else:
                A(f's_add_u32 s51, s47, {st * st_step}')
                A(f'buffer_load_dwordx4 {v(WOV + nb)}, s[72:75], s51 offen lds')
    for st in range(3):
        issue(st)
    lnst = ln2_compute(A, 33)
    for r in range(112):
        A(f'v_mov_b32 {v(G.ACC0 + r)}, 0')
    OB = lambda par: 4 * par
    WB = lambda par, nb: 8 + (par * 7 + nb) * 4
    vB = {}

    def rd(st, kq, par):
        buf = (st % 3) * STG
        hi_ = buf >= 45056 * 1.4
        out = []
        ro = v(RO(kq))
        if mat == 0:
            rs = v(RS(kq))
            so = 16384
        else:
            rs = v(RS(0))
            so = 16384 + kq * 7168
        out.append([f'ds_read_b128 {a(OB(par), 4)}, {ro} offset:{0}'])
        for nb in range(7):
            if mat == 0:
                out.append([f'ds_read_b128 {a(WB(par, nb), 4)}, {rs} offset:{so + nb * 4096}'])
            else:
                out.append([f'ds_read_b64_tr_b16 {a(WB(par, nb), 2)}, {rs} offset:{so + nb * 64}',
                            f'ds_read_b64_tr_b16 {a(WB(par, nb) + 2, 2)}, {rs} offset:{so + nb * 64 + 1792}'])
        return out

    def shift(delta):
        for r in range(12, 20):
            A(f'v_add_u32 {v(r)}, {delta & 0xffffffff:#x}, {v(r)}')
    waits = [22, 11 + 2, 11, 0]
    for st in range(4):
        A.forget()
        A(f's_waitcnt vmcnt({(22, 13, 13, 0)[st]})')
        A('s_barrier')
        if st == 0 and CFG.get('tl'):
            A('s_memrealtime s[92:93]')
        if st == 0:
            for x in lnst:
                A(x)
        if st == 1:
            issue(3)
        for g in rd(st, 0, 0):
            for x in g:
                A(x)
        for kq in range(4):
            par = kq & 1
            nxt = rd(st, kq + 1, par ^ 1) if kq < 3 else []
            if nxt:
                for x in nxt.pop(0):
                    A(x)
            for nb in range(7):
                A.auto(f'v_mfma_f32_32x32x16_bf16 {v(acc(nb), 16)}, {a(OB(par), 4)}, {a(WB(par, nb), 4)}, {v(acc(nb), 16)}')
                if nxt:
                    for x in nxt.pop(0):
                        A(x)
        if st < 3:
            shift(STG if st < 2 else -2 * STG)
    if CFG.get('tl'):
        A('s_memrealtime s[94:95]')
    A('s_mul_i32 s42, s53, 14')
    A('s_mul_i32 s50, s55, 7')
    A('s_add_u32 s42, s42, s50')
    A('s_mul_i32 s42, s42, 28672')
    A(f's_add_u32 s42, s42, {L.WF + (L.NB_A if mat == 0 else L.NB_B) * 28672}')
    A(f's_mov_b32 s52, {CSCALE}')
    A('s_lshl_b32 s51, s44, 11')
    A('s_add_u32 s51, s51, s42')
    A('s_cmp_gt_u32 s44, 13')
    A('s_cselect_b32 s51, 0x40000000, s51')
    KEEP = CFG.get('l2keep', 0)
    if KEEP:
        A(f's_cmp_eq_u32 s12, {CFG.get("xcc", 0)}')
        A('s_cselect_b32 s49, 0, 0x40000000')
    n = 0
    for nb in range(7):
        for ph in range(2):
            t = 160 + 4 * (n % 8)
            n += 1
            for j in range(4):
                r = acc(nb) + 8 * ph + 2 * j
                if mat == 0:
                    A(f'v_mul_f32 {v(r)}, s52, {v(r)}')
                    A(f'v_mul_f32 {v(r + 1)}, s52, {v(r + 1)}')
                A(f'v_cvt_pk_bf16_f32 {v(t + j)}, {v(r)}, {v(r + 1)}')
            A(f'buffer_store_dwordx4 {v(t, 4)}, {v(vSt)}, {SRD}, s51 offen offset:{ph * 1024} sc1')
            if KEEP:
                if ph == 0:
                    A('s_or_b32 s50, s51, s49')
                A(f'buffer_store_dwordx4 {v(t, 4)}, {v(vSt)}, {SRD}, s50 offen offset:{ph * 1024}')
        A('s_add_u32 s51, s51, 28672')
```

```python
from asmdsl import v, a, s
import layout as L

SRD = 's[8:11]'
NSTEP = 63


def stamp(A, cfg, slot):
    if cfg.get('stamps'):
        A(f's_memtime s[{40 + 2 * slot}:{41 + 2 * slot}]')


def rstamp(A, cfg, slot):
    if cfg.get('stamps'):
        A(f's_memrealtime s[{40 + 2 * slot}:{41 + 2 * slot}]')


def stamp_flush(A, cfg, nslots, base_sreg, vt):
    if not cfg.get('stamps'):
        return
    A('s_waitcnt lgkmcnt(0)')
    for k in range(nslots):
        A(f'v_mov_b32 {v(vt)}, s{40 + 2 * k}')
        A(f'v_mov_b32 {v(vt + 1)}, 0')
        A(f'buffer_store_dword {v(vt)}, {v(vt + 1)}, {SRD}, s{base_sreg} offen offset:{4 * k}')
    A(f's_add_u32 s{base_sreg}, s{base_sreg}, 64')


def guard(A):
    A('s_add_u32 s33, s33, 1')
    A('s_cmp_gt_u32 s33, 0x200000')
    A('s_cbranch_scc1 L_bail')


def tl(A, cfg, idx_sreg_or_int, slot, vt, base=0):
    if not cfg.get('tl'):
        return
    A('s_memrealtime s[100:101]')
    A('s_waitcnt lgkmcnt(0)')
    A(f'v_mov_b32 {v(vt)}, s100')
    A(f'v_mov_b32 {v(vt + 1)}, 0')
    if isinstance(idx_sreg_or_int, int):
        A(f's_mov_b32 s101, {L.STAMP + base + idx_sreg_or_int * 16}')
    else:
        A(f's_lshl_b32 s101, {idx_sreg_or_int}, 4')
        A(f's_add_u32 s101, s101, {L.STAMP + base}')
    A(f'buffer_store_dword {v(vt)}, {v(vt + 1)}, {SRD}, s101 offen offset:{slot * 4}')


def dbgmax(A, cfg, word, vt, sel=('s14', 13)):
    if not cfg.get('dbg'):
        return
    sk = A.newlabel('DM')
    A(f's_cmp_lg_u32 {sel[0]}, {sel[1]}')
    A(f's_cbranch_scc1 {sk}')
    A('s_cmp_lg_u32 s13, 3')
    A(f's_cbranch_scc1 {sk}')
    A('s_memrealtime s[100:101]')
    A('s_waitcnt lgkmcnt(0)')
    A('s_sub_u32 s100, s100, s96')
    A(f'v_mov_b32 {v(vt)}, s100')
    A(f'v_mov_b32 {v(vt + 1)}, 0')
    A(f'global_store_dword {v(vt + 1)}, {v(vt)}, s[4:5] offset:{4 * word}')
    A.label(sk, keep=True)


def flag_wait(A, first, n, vt, sleep=8):
    A(f'v_and_b32 {v(vt)}, 63, v0')
    A(f'v_min_u32 {v(vt)}, {n - 1}, {v(vt)}')
    A(f'v_lshlrev_b32 {v(vt)}, 3, {v(vt)}')
    if isinstance(first, int):
        A(f's_mov_b32 s38, {L.FLAGS + 8 * first}')
    else:
        A(f's_lshl_b32 s38, {first}, 3')
        A(f's_add_u32 s38, s38, {L.FLAGS}')
    lab, ok = A.newlabel('FW'), A.newlabel('FWok')
    A.label(lab, keep=True)
    guard(A)
    A(f'buffer_load_dwordx2 {v(vt + 2, 2)}, {v(vt)}, {SRD}, s38 offen sc1')
    A('s_waitcnt vmcnt(0)')
    A(f'v_cmp_ne_u64 vcc, s[96:97], {v(vt + 2, 2)}')
    A(f's_cbranch_vccz {ok}')
    A(f's_sleep {sleep}')
    A(f's_branch {lab}')
    A.label(ok, keep=True)


def flag_wait_multi(A, firsts, vt, sleep=4):
    A(f'v_and_b32 {v(vt)}, 63, v0')
    A(f'v_lshlrev_b32 {v(vt)}, 3, {v(vt)}')
    lab, ok = A.newlabel('FM'), A.newlabel('FMok')
    A.label(lab, keep=True)
    guard(A)
    for i, f in enumerate(firsts):
        A(f's_mov_b32 s38, {L.FLAGS + 8 * f}')
        A(f'buffer_load_dwordx2 {v(vt + 2 + 2 * i, 2)}, {v(vt)}, {SRD}, s38 offen sc1')
    A('s_waitcnt vmcnt(0)')
    A('s_mov_b64 s[40:41], 0')
    for i in range(len(firsts)):
        A(f'v_cmp_ne_u64 vcc, s[96:97], {v(vt + 2 + 2 * i, 2)}')
        A('s_or_b64 s[40:41], s[40:41], vcc')
    A(f's_cbranch_scc0 {ok}')
    A(f's_sleep {sleep}')
    A(f's_branch {lab}')
    A.label(ok, keep=True)


def loaded_flag(A, cfg, add, vt):
    if not cfg.get('fused'):
        return
    sk = A.newlabel('LF')
    A('s_cmp_lg_u32 s13, 3')
    A(f's_cbranch_scc1 {sk}')
    A(f's_add_u32 s38, s14, {L.F_INIT + add}')
    A('s_lshl_b32 s38, s38, 3')
    A(f's_add_u32 s38, s38, {L.FLAGS}')
    A(f'v_mov_b32 {v(vt)}, s96')
    A(f'v_mov_b32 {v(vt + 1)}, s97')
    A(f'v_mov_b32 {v(vt + 2)}, 0')
    A('s_mov_b64 exec, 1')
    A(f'buffer_store_dwordx2 {v(vt, 2)}, {v(vt + 2)}, {SRD}, s38 offen sc1')
    A('s_mov_b64 exec, -1')
    A.label(sk, keep=True)


def soft_wait(A, first, n, vt, maxpolls, sleep):
    A(f'v_and_b32 {v(vt)}, 63, v0')
    A(f'v_min_u32 {v(vt)}, {n - 1}, {v(vt)}')
    A(f'v_lshlrev_b32 {v(vt)}, 3, {v(vt)}')
    A(f's_mov_b32 s38, {L.FLAGS + 8 * first}')
    A(f's_mov_b32 s40, {maxpolls}')
    lab, ok = A.newlabel('SW'), A.newlabel('SWok')
    A.label(lab, keep=True)
    A(f'buffer_load_dwordx2 {v(vt + 2, 2)}, {v(vt)}, {SRD}, s38 offen sc1')
    A('s_waitcnt vmcnt(0)')
    A(f'v_cmp_ne_u64 vcc, s[96:97], {v(vt + 2, 2)}')
    A(f's_cbranch_vccz {ok}')
    A(f's_sleep {sleep}')
    A('s_sub_u32 s40, s40, 1')
    A('s_cmp_lg_u32 s40, 0')
    A(f's_cbranch_scc1 {lab}')
    A.label(ok, keep=True)


def fill_share(A, base, kb_per_wave, widx_sreg, vt, vlin):
    for r in range(4):
        A(f'v_mov_b32 {v(vt + r)}, -1')
    A(f's_mul_i32 s38, {widx_sreg}, {kb_per_wave * 1024}')
    A(f's_add_u32 s38, s38, {base}')
    for k in range(kb_per_wave):
        if k and k % 4 == 0:
            A('s_add_u32 s38, s38, 4096')
        A(f'buffer_store_dwordx4 {v(vt, 4)}, {v(vlin)}, {SRD}, s38 offen offset:{(k & 3) * 1024} sc1')


def start_gate(A, cfg, vt, ranges=None):
    if not cfg.get('fused'):
        A('s_mov_b32 s12, 0')
        return
    firsts = ranges or [L.F_Y0, L.F_LN, L.F_LN + 64, L.F_LN + 128, L.F_LN + 192]
    A(f'v_and_b32 {v(vt)}, 63, v0')
    A(f'v_lshlrev_b32 {v(vt)}, 3, {v(vt)}')
    A(f'v_mov_b32 {v(vt + 1)}, 0')
    lab, ok, again = A.newlabel('SG'), A.newlabel('SGok'), A.newlabel('SGa')
    A.label(lab, keep=True)
    guard(A)
    for i, f in enumerate(firsts):
        A(f's_mov_b32 s38, {L.FLAGS + 8 * f}')
        A(f'buffer_load_dwordx2 {v(vt + 2 + 2 * i, 2)}, {v(vt)}, {SRD}, s38 offen sc1')
    A(f'global_load_dword {v(vt + 14)}, {v(vt + 1)}, s[4:5] offset:8 sc1')
    A('s_waitcnt vmcnt(0)')
    A(f'v_readfirstlane_b32 s12, {v(vt + 14)}')
    A('s_mov_b64 s[40:41], 0')
    for i in range(len(firsts)):
        A(f'v_cmp_ne_u64 vcc, s[96:97], {v(vt + 2 + 2 * i, 2)}')
        A('s_or_b64 s[40:41], s[40:41], vcc')
    A(f's_cbranch_scc1 {again}')
    A('s_and_b32 s38, s12, 63')
    A('s_cmp_ge_u32 s38, 32')
    A(f's_cbranch_scc1 {ok}')
    A.label(again, keep=True)
    A('s_sleep 3')
    A(f's_branch {lab}')
    A.label(ok, keep=True)
    A('s_bfe_u32 s38, s12, 0x90006')
    A('s_mul_i32 s38, s38, s38')
    A('s_lshr_b32 s12, s12, 15')
    A('s_lshl_b32 s12, s12, 5')
    A('s_cmp_lg_u32 s12, s38')
    A('s_cselect_b32 s12, 1, 0')


def mid_gate(A, cfg, vt, vfl):
    if not cfg.get('fused'):
        return
    skip = A.newlabel('MG')
    A('s_cmp_ge_u32 s39, 0x40000000')
    A(f's_cbranch_scc1 {skip}')
    A('s_waitcnt vmcnt(0)')
    A(f'v_cmp_ne_u64 vcc, s[96:97], {v(vfl, 2)}')
    A(f's_cbranch_vccz {skip}')
    A(f's_sub_u32 s39, s39, {L.FLAGS}')
    A('s_lshr_b32 s39, s39, 3')
    flag_wait(A, 's39', 32, vt, sleep=2)
    A.label(skip, keep=True)


def gate_prep(A, cfg):
    if not cfg.get('fused'):
        A('s_mov_b32 s39, 0x40000000')
        return
    A('s_lshr_b32 s39, s15, 3')
    A('s_add_u32 s39, s39, 1')
    A('s_min_u32 s39, s39, 7')
    A('s_lshl_b32 s39, s39, 8')
    A(f's_add_u32 s39, s39, {L.FLAGS}')
    A('s_and_b32 s38, s15, 7')
    A('s_lshl_b32 s38, s38, 8')
    A('s_add_u32 s38, s38, s31')
    A(f's_cmp_eq_u32 s38, {((6 - cfg.get("pfdist", 2)) << 8) + 3}')
    A('s_cselect_b32 s39, s39, 0x40000000')


def dual_prep(A, sreg, sfast, sslow):
    A('s_cmp_eq_u32 s12, 0')
    A(f's_cselect_b32 {sfast}, {sreg}, 0x40000000')
    A(f's_cselect_b32 {sslow}, 0x40000000, {sreg}')


def dual_store(A, fmt, sfast, sslow):
    A(fmt.format(s=sfast))
    A(fmt.format(s=sslow) + ' sc1')


def flush_deferred(A):
    for slow, text, done in A.deferred:
        A.label(slow)
        A.raw('    ' + text)
        A.raw(f'    s_branch {done}')
    A.deferred = []


def align(A, cfg, key, default=0):
    n = cfg.get(key, default)
    if n < 0:
        return
    A.raw('    .p2align 6')
    for _ in range(n // 4):
        A.raw('    s_nop 0')


def WFL(cfg):
    return {0: ' sc1', 1: ' sc1 nt'}[cfg.get('wnt', 0)]


def lane_fields(A, vl):
    A(f'v_and_b32 {v(vl)}, 63, v0')


def emit_koffs(A):
    A('s_lshl_b32 s23, s13, 1')
    for k in range(7):
        A(f's_add_u32 s{16 + k}, s23, {k}')
        A(f's_cmp_ge_u32 s{16 + k}, 7')
        A(f's_cselect_b32 s24, 7, 0')
        A(f's_sub_u32 s{16 + k}, s{16 + k}, s24')
        A(f's_lshl_b32 s{16 + k}, s{16 + k}, 10')


def warm_vm(A, n, vw, cfg):
    if cfg.get('nowarm'):
        A(f's_waitcnt vmcnt({n})')
        return
    lab = A.newlabel('W')
    A.label(lab, keep=True)
    A(f'v_mov_b32 {v(vw)}, {v(vw)}')
    A(f's_getreg_b32 s38, hwreg(HW_REG_IB_STS, 0, 4)')
    A(f's_cmp_gt_u32 s38, {n}')
    A(f'v_mov_b32 {v(vw)}, {v(vw)}')
    A(f's_cbranch_scc1 {lab}')
    A(f's_waitcnt vmcnt({n})')


def keepalive(A, vw, n, cfg):
    if cfg.get('nowarm'):
        return
    for _ in range(n):
        A(f'v_mov_b32 {v(vw)}, {v(vw)}')


def warm_mfma(A, base, cfg):
    if cfg.get('nowarm'):
        return
    A(f'v_mfma_f32_32x32x16_bf16 {v(base, 16)}, {v(base + 16, 4)}, {v(base + 16, 4)}, {v(base, 16)}')


def check_regs(A, tmp, regs, autowait=True):
    E = A.auto if autowait else A
    E(f'v_max3_u32 {v(tmp)}, {v(regs[0])}, {v(regs[1])}, {v(regs[2])}')
    i = 3
    while i + 1 < len(regs):
        E(f'v_max3_u32 {v(tmp)}, {v(tmp)}, {v(regs[i])}, {v(regs[i + 1])}')
        i += 2
    if i < len(regs):
        E(f'v_max_u32 {v(tmp)}, {v(tmp)}, {v(regs[i])}')
    A(f'v_cmp_eq_u32 vcc, -1, {v(tmp)}')


def sparse_idx(A, vIDX, vL, t2, t3):
    A(f'v_and_b32 {v(t2)}, 8, {v(vL)}')
    A(f'v_cmp_ne_u32 vcc, 0, {v(t2)}')
    A(f'v_mov_b32 {v(t2)}, 0x4444')
    A(f'v_mov_b32 {v(t3)}, 0xeeee')
    A(f'v_cndmask_b32 {v(vIDX)}, {v(t2)}, {v(t3)}, vcc')


def emit_A(A, cfg):
    W5 = 0x0000
    MIMG = 0xE000
    TIMG = 0x10000
    SIMG = 0x14800
    QS = cfg.get('qs', 160)
    vL, vIDX, vMA, vMKa, vMKb, vMK3, vW5, vXK, vXK3, vTW, vTW6, vTR, vTR3, vSW, vSR, vPS, vPF = range(1, 18)
    vM = lambda k: 18 + k
    vSW2 = 25
    vT0 = 26
    M = lambda k: 32 + 4 * k
    ACC = lambda n: 60 + 4 * n
    WS5 = lambda b: 88 + 8 * b
    XK = lambda q, t: 112 + 8 * q + 4 * t
    XK3 = lambda t: 136 + 2 * t
    PSET = lambda r: 140 + 8 * r
    MK = lambda q: 140 + 4 * q
    TB = lambda q: (ACC(2 * q) if q < 3 else ACC(6) + 2)
    SACC = lambda t: 156 + 4 * t
    vDUM = 168
    vFL, vFA = 170, 172
    LT = 1
    PORD = [1, 2, 0]
    regtiles = [0, 2, 3, 4, 5, 6]

    def W(n, k):
        i = regtiles.index(n) * 7 + k
        return a(8 * i, 8) if i < 32 else v(176 + 8 * (i - 32), 8)

    def Whalf(n, k, eh):
        i = regtiles.index(n) * 7 + k
        return a(8 * i + 4 * eh, 4) if i < 32 else v(176 + 8 * (i - 32) + 4 * eh, 4)

    t0, t1, t2, t3 = vT0, vT0 + 1, vT0 + 2, vT0 + 3
    A.pipe_model = bool(cfg.get('pipe', 1))
    tl(A, cfg, 's14', 0, 30, 0x18000)
    lane_fields(A, vL)
    emit_koffs(A)
    A(f'v_and_b32 {v(t0)}, 15, {v(vL)}')
    A(f'v_lshrrev_b32 {v(t1)}, 4, {v(vL)}')
    sparse_idx(A, vIDX, vL, t2, t3)
    A(f'v_lshlrev_b32 {v(t2)}, 9, {v(t1)}')
    A(f'v_lshl_add_u32 {v(vPF)}, {v(t0)}, 4, {v(t2)}')
    if cfg.get('fused'):
        A('s_lshl_b32 s23, s14, 3')
        A('s_lshr_b32 s24, s13, 1')
        A('s_lshl_b32 s24, s24, 2')
        A('s_add_u32 s23, s23, s24')
        A(f's_add_u32 s23, s23, {L.F_AB}')
        flag_wait(A, 's23', 4, 32, sleep=2)
    A(f's_mul_i32 s25, s14, {14 * 28672}')
    A(f's_add_u32 s25, s25, {L.WF + L.NB_A * 28672}')
    A(f's_mul_i32 s26, s13, 7')
    A(f's_mul_i32 s28, s13, 14336')
    cnt = 0
    for n in range(7):
        A(f's_add_u32 s23, s26, {n}')
        A(f's_lshr_b32 s24, s23, 1')
        A(f's_mul_i32 s24, s24, 28672')
        A(f's_and_b32 s23, s23, 1')
        A(f's_lshl_b32 s23, s23, 8')
        A(f's_add_u32 s27, s25, s24')
        A(f's_add_u32 s27, s27, s23')
        for k in range(7):
            A(f's_lshl_b32 s23, s{16 + k}, 2')
            A(f's_add_u32 s23, s23, s27')
            for eh in range(2):
                if n == LT:
                    A(f's_add_u32 s24, s28, {W5 + (k * 2 + eh) * 1024}')
                    A(f's_mov_b32 m0, s24')
                    if eh:
                        A(f's_add_u32 s23, s23, 2048')
                    A(f'buffer_load_dwordx4 {v(vPF)}, {SRD}, s23 offen{WFL(cfg)} lds')
                else:
                    A(f'buffer_load_dwordx4 {Whalf(n, k, eh)}, {v(vPF)}, {SRD}, s23 offen offset:{2048 * eh}{WFL(cfg)}')
                cnt += 1
                if cnt % 16 == 0:
                    A(f's_waitcnt vmcnt({cfg.get("wdepth", 40)})')
    A(f'v_lshlrev_b32 {v(vMA)}, 4, {v(vL)}')
    A(f'v_add_u32 {v(vW5)}, s28, {v(vMA)}')
    for k in range(7):
        A(f's_add_u32 s23, s{16 + k}, {MIMG}')
        A(f'v_add_u32 {v(vM(k))}, s23, {v(vMA)}')
    A(f'v_add_u32 {v(vMA)}, {L.MEMA}, {v(vMA)}')
    A(f'v_and_b32 {v(t2)}, 7, {v(vL)}')
    A(f'v_lshlrev_b32 {v(t2)}, 4, {v(t2)}')
    A(f's_mul_i32 s23, s13, {7 * 256}')
    A(f's_add_u32 s23, s23, {MIMG}')
    A(f'v_lshrrev_b32 {v(t3)}, 1, {v(t1)}')
    A(f'v_lshl_add_u32 {v(vMKa)}, {v(t3)}, 8, {v(t2)}')
    A(f'v_and_b32 {v(t3)}, 1, {v(t1)}')
    A(f'v_lshl_add_u32 {v(vMKa)}, {v(t3)}, 3, {v(vMKa)}')
    A(f'v_add_u32 {v(vMKa)}, s23, {v(vMKa)}')
    A(f'v_add_u32 {v(vMKb)}, 1024, {v(vMKa)}')
    A(f'v_lshl_add_u32 {v(vMK3)}, {v(t1)}, 2, {v(t2)}')
    A(f's_add_u32 s23, s23, {6 * 256}')
    A(f'v_add_u32 {v(vMK3)}, s23, {v(vMK3)}')
    A(f'v_and_b32 {v(t2)}, 6, {v(t0)}')
    A(f'v_lshlrev_b32 {v(t2)}, 1, {v(t2)}')
    A(f'v_lshrrev_b32 {v(t3)}, 3, {v(t0)}')
    A(f'v_lshl_add_u32 {v(t2)}, {v(t3)}, 1, {v(t2)}')
    A(f'v_and_b32 {v(t3)}, 1, {v(t0)}')
    A(f'v_add_u32 {v(t2)}, {v(t3)}, {v(t2)}')
    A(f'v_lshlrev_b32 {v(t2)}, 4, {v(t2)}')
    A(f'v_lshl_add_u32 {v(vXK)}, {v(t1)}, 9, {v(t2)}')
    A(f'v_lshrrev_b32 {v(t3)}, 1, {v(t1)}')
    A(f'v_lshl_add_u32 {v(vXK3)}, {v(t3)}, 9, {v(t2)}')
    A(f'v_and_b32 {v(t3)}, 1, {v(t1)}')
    A(f'v_lshl_add_u32 {v(vXK3)}, {v(t3)}, 3, {v(vXK3)}')
    A(f'v_add_u32 {v(vXK3)}, {6 * 1024}, {v(vXK3)}')
    A(f's_lshl_b32 s30, s13, 11')
    A(f's_mul_i32 s23, s13, 4352')
    A(f's_add_u32 s23, s23, {TIMG}')
    def plane(dst, src, tmp):
        A(f'v_lshlrev_b32 {v(dst)}, 10, {v(src)}')
        A(f'v_and_b32 {v(tmp)}, 1, {v(src)}')
        A(f'v_lshl_add_u32 {v(dst)}, {v(tmp)}, 5, {v(dst)}')
        A(f'v_lshrrev_b32 {v(tmp)}, 1, {v(src)}')
        A(f'v_lshl_add_u32 {v(dst)}, {v(tmp)}, 7, {v(dst)}')
    plane(t2, t1, t3)
    A(f'v_lshl_add_u32 {v(vTW)}, {v(t0)}, 3, {v(t2)}')
    A(f'v_add_u32 {v(vTW)}, s23, {v(vTW)}')
    A(f'v_and_b32 {v(vTR)}, 3, {v(vL)}')
    plane(t2, vTR, t3)
    A(f'v_bfe_u32 {v(t3)}, {v(vL)}, 2, 2')
    A(f'v_lshl_add_u32 {v(t2)}, {v(t3)}, 3, {v(t2)}')
    A(f'v_lshl_add_u32 {v(vTR)}, {v(t1)}, 6, {v(t2)}')
    A(f'v_add_u32 {v(vTR)}, s23, {v(vTR)}')
    A(f'v_lshl_add_u32 {v(vTR3)}, {v(t1)}, 5, {v(t2)}')
    A(f'v_add_u32 {v(vTR3)}, {96 * 8}, {v(vTR3)}')
    A(f'v_add_u32 {v(vTR3)}, s23, {v(vTR3)}')
    A(f's_add_u32 s23, s30, {SIMG}')
    A(f'v_lshrrev_b32 {v(t3)}, 3, {v(t0)}')
    A(f'v_lshl_add_u32 {v(t2)}, {v(t3)}, 2, {v(t1)}')
    A(f'v_mul_u32_u24 {v(t2)}, {QS}, {v(t2)}')
    A(f'v_and_b32 {v(vSW2)}, 7, {v(t0)}')
    A(f'v_lshl_add_u32 {v(vSW)}, {v(vSW2)}, 4, {v(t2)}')
    A(f'v_add_u32 {v(vSW)}, s23, {v(vSW)}')
    A(f'v_lshlrev_b32 {v(vSW2)}, 4, {v(vSW2)}')
    A(f'v_lshl_add_u32 {v(vSW2)}, {v(t3)}, 3, {v(vSW2)}')
    A(f'v_add_u32 {v(t2)}, 8, {v(t1)}')
    A(f'v_mul_u32_u24 {v(t2)}, {QS}, {v(t2)}')
    A(f'v_add3_u32 {v(vSW2)}, {v(vSW2)}, {v(t2)}, s23')
    A('s_mov_b32 s36, 0xff00ff00')
    A('s_mov_b32 s37, 0xff00ff00')
    A(f'v_mov_b32 {v(t3)}, 12')
    A(f'v_cmp_gt_u32 vcc, 10, {v(t0)}')
    A(f'v_cndmask_b32 {v(t2)}, {v(t3)}, {v(t0)}, vcc')
    A(f'v_mul_u32_u24 {v(t2)}, {QS}, {v(t2)}')
    A(f's_lshl_b32 s23, s13, 2')
    A(f'v_add_u32 {v(t3)}, s23, {v(t1)}')
    A(f'v_and_b32 {v(t3)}, 7, {v(t3)}')
    A(f'v_lshl_add_u32 {v(vSR)}, {v(t3)}, 4, {v(t2)}')
    A(f'v_add_u32 {v(vSR)}, {SIMG}, {v(vSR)}')
    A(f'v_lshrrev_b32 {v(t2)}, 1, {v(t0)}')
    A(f'v_lshlrev_b32 {v(t2)}, 7, {v(t2)}')
    A(f'v_lshl_add_u32 {v(t2)}, {v(t3)}, 4, {v(t2)}')
    A(f'v_and_b32 {v(t3)}, 1, {v(t0)}')
    A(f'v_lshl_add_u32 {v(t2)}, {v(t3)}, 3, {v(t2)}')
    A(f'v_mov_b32 {v(t3)}, 0x40000000')
    A(f'v_cndmask_b32 {v(vPS)}, {v(t3)}, {v(t2)}, vcc')
    A(f'v_mov_b32 {v(t2)}, 0xf149f2ca')
    A(f'v_and_b32 {v(t3)}, 31, {v(vL)}')
    A(f'v_lshlrev_b32 {v(t3)}, 2, {v(t3)}')
    A(f's_add_u32 s23, s30, {SIMG + 12 * QS}')
    A(f'v_add_u32 {v(t3)}, s23, {v(t3)}')
    A(f'ds_write_b32 {v(t3)}, {v(t2)}')
    A('s_waitcnt vmcnt(0)')
    A(f'v_lshlrev_b32 {v(vPF)}, 7, {v(vL)}')
    A(f's_mul_i32 s24, s14, 640')
    A(f's_add_u32 s24, s24, {L.PBUF}')
    A(f's_mul_i32 s25, s13, 7168')
    A(f's_add_u32 s25, s25, {L.XF}')
    NT = cfg.get('ntouch', 2)
    A(f's_mul_i32 s26, s14, {NT}')
    A(f's_add_u32 s26, s26, s13')
    A(f's_min_u32 s26, s26, 55')
    A(f's_lshl_b32 s26, s26, 13')
    A(f's_add_u32 s26, s26, {L.YF + cfg.get("pfdist", 2) * 16 * 28672}')
    A(f's_cmp_ge_u32 s13, {NT}')
    A(f's_cselect_b32 s23, 0x40000000, 0')
    A(f'v_add_u32 {v(vPF)}, s23, {v(vPF)}')
    A(f's_mov_b32 s15, 0')
    A('s_lshl_b32 s31, s14, 2')
    A('s_add_u32 s31, s31, s13')
    A(f'v_and_b32 {v(vFA)}, 31, {v(vL)}')
    A(f'v_lshlrev_b32 {v(vFA)}, 3, {v(vFA)}')
    if cfg.get('stamps'):
        A(f's_lshl_b32 s32, s14, 2')
        A(f's_add_u32 s32, s32, s13')
        A(f's_lshl_b32 s32, s32, 12')
        A(f's_add_u32 s32, s32, {L.STAMP}')

    def xload():
        for q in range(3):
            if q == 2:
                A(f's_add_u32 s23, s25, 4096')
            for tt in range(2):
                if q < 2:
                    A(f'buffer_load_dwordx4 {v(XK(q, tt), 4)}, {v(vXK)}, {SRD}, s25 offen offset:{q * 2048 + tt * 256} sc1')
                else:
                    A(f'buffer_load_dwordx4 {v(XK(q, tt), 4)}, {v(vXK)}, {SRD}, s23 offen offset:{tt * 256} sc1')
        for tt in range(2):
            A(f'buffer_load_dwordx2 {v(XK3(tt), 2)}, {v(vXK3)}, {SRD}, s25 offen offset:{tt * 256} sc1')
        A(f's_add_u32 s25, s25, 28672')

    A('s_waitcnt vmcnt(0) lgkmcnt(0)')
    tl(A, cfg, 's14', 1, vT0 + 4, 0x18000)
    loaded_flag(A, cfg, 0, M(4))
    start_gate(A, cfg, M(0))
    tl(A, cfg, 's14', 2, vT0 + 4, 0x18000)
    dbgmax(A, cfg, 8, vT0 + 4)
    xload()
    A('s_barrier')

    top = A.newlabel('A_top')
    poll = A.newlabel('A_poll')
    var1 = A.newlabel('A_var1')
    common = A.newlabel('A_common')
    nxt = A.newlabel('A_next')
    def w5read(k):
        for eh in range(2):
            A(f'ds_read_b128 {v(WS5(k % 3) + 4 * eh, 4)}, {v(vW5)} offset:{(k * 2 + eh) * 1024}')

    def prepare():
        for k in range(3):
            w5read(k)
        for r in range(12):
            A(f'v_mov_b32 {v(SACC(0) + r)}, 0')
        for r in range(28):
            A(f'v_mov_b32 {v(ACC(0) + r)}, 0')
    prepare()
    A.label(top)
    A.forget()
    dual_prep(A, 's24', 's34', 's35')
    gate_prep(A, cfg)
    A('s_cmp_lt_u32 s39, 0x40000000')
    A('s_cselect_b32 s30, 1, 0')
    A('s_cmp_eq_u32 s15, 0')
    A('s_cselect_b32 s30, 1, s30')
    A('s_waitcnt lgkmcnt(0)')
    if cfg.get('asleep', 5):
        A(f's_sleep {cfg.get("asleep", 5)}')

    SPLIT = cfg.get('split', 0)

    def pissue(r):
        for k in range(2):
            A(f'buffer_load_dwordx4 {v(PSET(r) + 4 * k, 4)}, {v(vMA)}, {SRD}, s{16 + k} offen sc1')
            if k == 0 and SPLIT:
                A(f's_nop {cfg.get("kgap", 11)}')
    var0 = A.newlabel('A_var0')

    def quick(r):
        keepalive(A, vDUM + 1, cfg.get('kap', 12), cfg)
        check_regs(A, t0, [PSET(r) + i for i in range(4 if SPLIT else 8)])
    keepalive(A, vDUM + 1, cfg.get('adel', 0), {})
    pissue(0)
    keepalive(A, vDUM + 1, cfg.get('pgapA', 20), {})
    align(A, cfg, 'alAp')
    A.label(poll, keep=True)
    guard(A)
    pissue(1)
    quick(0)
    A(f's_cbranch_vccz {var0}')
    pissue(0)
    quick(1)
    A(f's_cbranch_vccnz {poll}')

    E6 = cfg.get('early6', 2)
    BPOS = cfg.get('bpos', 5)
    tiles01 = [1, 0, 2, 3, 4, 5] + ([6] if E6 else [])

    def mf(n, k, mreg):
        wreg = v(WS5(k % 3), 8) if n == LT else W(n, k)
        return f'v_smfmac_f32_16x16x64_bf16 {v(ACC(n), 4)}, {v(mreg, 4)}, {wreg}, {v(vIDX)}'

    lates = []

    def variant(r):
        A.vm = [set(('v', PSET(1 - r) + i) for i in range(4)), set(('v', PSET(1 - r) + 4 + i) for i in range(4))]
        if SPLIT:
            A.vm.insert(0, set(('v', PSET(r) + 4 + i) for i in range(4)))
        A.lg = []
        A.smem_out = []
        stamp(A, cfg, 0)
        seq = [(n, k) for k in range(2) for n in tiles01]
        rd = [k for k in range(2, 7)] + ([] if E6 else [0, 1])
        Q = PSET(r) + 4
        C1 = cfg.get('c1pos', 2)
        late, late_back = A.newlabel('A_late'), A.newlabel('A_lb')
        w5q = []
        for i, (n, k) in enumerate(seq):
            A(mf(n, k, PSET(r) + 4 * k))
            if i == 0 or (i == 1 and not SPLIT):
                A(f'ds_write_b128 {v(vM(i))}, {v(PSET(r) + 4 * i, 4)}')
            if SPLIT:
                if i == C1:
                    A('s_waitcnt vmcnt(2)')
                    A(f'ds_write_b128 {v(vM(1))}, {v(Q, 4)}')
                    A(f'v_max3_u32 {v(t0)}, {v(Q)}, {v(Q + 1)}, {v(Q + 2)}')
                if i == C1 + 1:
                    A(f'v_max_u32 {v(t0)}, {v(t0)}, {v(Q + 3)}')
                if i == C1 + 2:
                    A(f'v_cmp_eq_u32 vcc, -1, {v(t0)}')
                    A(f's_cbranch_vccnz {late}')
                    A.label(late_back, keep=True)
                    lates.append((late, late_back, Q))
            if i == BPOS - 1:
                assert not SPLIT or i >= C1 + 2
                stamp(A, cfg, 5)
                A('s_waitcnt lgkmcnt(0)')
                A('s_barrier')
                stamp(A, cfg, 6)
            if n == LT:
                w5q += [(k + 3, 0), (k + 3, 1)]
            if i >= BPOS - 1:
                if rd:
                    kk = rd.pop(0)
                    A(f'ds_read_b128 {v(M(kk), 4)}, {v(vM(kk))}')
                elif w5q:
                    kk, eh = w5q.pop(0)
                    A(f'ds_read_b128 {v(WS5(kk % 3) + 4 * eh, 4)}, {v(vW5)} offset:{(kk * 2 + eh) * 1024}')
        assert not rd
        for kk, eh in w5q:
            A(f'ds_read_b128 {v(WS5(kk % 3) + 4 * eh, 4)}, {v(vW5)} offset:{(kk * 2 + eh) * 1024}')

    A.label(var1)
    variant(1)
    A(f's_branch {common}')
    align(A, cfg, 'alA0')
    A.label(var0)
    variant(0)
    A.label(common, keep=True)
    A.vm = [set(('v', PSET(0) + i) for i in range(16))]

    seq = []
    for n in (2, 3, 4, 5, 0, 1, 6):
        for k in range(E6 if n == 6 else 2, 7):
            seq.append((n, k))
    for k, pos in ((2, 0), (3, 5)):
        seq.remove((LT, k))
        seq.insert(pos, (LT, k))
    NS = len(seq)
    rare, rare_back = A.newlabel('A_rare'), A.newlabel('A_rb')
    memq = []
    memq.append((0, f'buffer_load_dword {v(vDUM)}, {v(vPF)}, {SRD}, s26 offen'))
    memq.append((16, 'RARE'))
    for i, (n, k) in enumerate(seq):
        if n == LT and k + 3 < 7:
            for eh in range(2):
                memq.append((i, f'ds_read_b128 {v(WS5((k + 3) % 3) + 4 * eh, 4)}, {v(vW5)} offset:{((k + 3) * 2 + eh) * 1024}'))
    mkstart = cfg.get('mkpos', 3)
    memq.append((mkstart, 's_waitcnt vmcnt(1)'))
    for q in range(3):
        ad = v(vMKa) if q < 2 else v(vMKb)
        o = 128 * q if q < 2 else 0
        memq.append((mkstart, f'ds_read2_b32 {v(MK(q), 2)}, {ad} offset0:{o} offset1:{o + 32}'))
        memq.append((mkstart, f'ds_read2_b32 {v(MK(q) + 2, 2)}, {ad} offset0:{o + 1} offset1:{o + 33}'))
    memq.append((mkstart, f'ds_read2_b32 {v(MK(3), 2)}, {v(vMK3)} offset0:0 offset1:32'))
    memq.sort(key=lambda x: x[0])
    done = {}
    for i, (n, k) in enumerate(seq):
        done[n] = i
    post = []

    def tpost(n):
        C = ACC(n)
        ops = [f'v_cvt_pk_bf16_f32 {v(C)}, {v(C)}, {v(C + 1)}', f'v_cvt_pk_bf16_f32 {v(C + 1)}, {v(C + 2)}, {v(C + 3)}',
               f'ds_write_b64 {v(vTW)}, {v(C, 2)} offset:{128 * n}']
        if n == 6:
            ops += [f'ds_read_b64_tr_b16 {v(TB(3), 2)}, {v(vTR3)}']
        elif n & 1:
            p = n >> 1
            ops += [f'ds_read_b64_tr_b16 {v(TB(p), 2)}, {v(vTR)} offset:{256 * p}',
                    f'ds_read_b64_tr_b16 {v(TB(p) + 2, 2)}, {v(vTR)} offset:{256 * p + 32}']
        return ops
    for n in (2, 3, 4, 5, 0, 1):
        post.append((done[n] + cfg.get('pdelay', 2), tpost(n)))
    smf = []
    for p in PORD:
        for t in range(3):
            key = v(XK(p, t), 4) if t < 2 else v(MK(p), 4)
            smf.append(f'v_mfma_f32_16x16x32_bf16 {v(SACC(t), 4)}, {key}, {v(TB(p), 4)}, {v(SACC(t), 4)}')
    NEARLY = cfg.get('searly', 2)
    queue = []
    A.mfma_states = cfg.get('mfstates', 1)
    for i, (n, k) in enumerate(seq):
        if i in (0, 1, 10, 20, 30):
            stamp(A, cfg, 7 + (0, 1, 10, 20, 30).index(i))
        if i == NS - 3:
            for _ in range(NEARLY):
                A.auto(smf.pop(0))
        A.auto(mf(n, k, M(k)))
        for st, ops in post:
            if st == i:
                queue += ops
        nm = 0
        if queue and not queue[0].startswith('v_'):
            A(queue.pop(0))
            nm = 1
        while memq and memq[0][0] <= i and nm < 1:
            o = memq.pop(0)[1]
            if o == 'RARE':
                A('s_cmp_lg_u32 s30, 0')
                A(f's_cbranch_scc1 {rare}')
                A.label(rare_back, keep=True)
                nm += 1
                continue
            A(o)
            if not o.startswith('s_'):
                nm += 1
        if queue and queue[0].startswith('v_') and A.pad_needed(queue[0]) <= cfg.get('maxpad', 0):
            A(queue.pop(0))
    assert not memq
    tailops = queue
    stamp(A, cfg, 1)
    for o in tailops:
        A(o)
    A.auto(smf.pop(0))
    A.auto(smf.pop(0))
    for o in tpost(6):
        A(o)
    stamp(A, cfg, 13)
    for m_ in smf:
        A.auto(m_)
    for t in range(3):
        key = v(XK3(t), 2) if t < 2 else v(MK(3), 2)
        A.auto(f'v_mfma_f32_16x16x16_bf16 {v(SACC(t), 4)}, {key}, {v(TB(3), 2)}, {v(SACC(t), 4)}')
    stamp(A, cfg, 12)
    for r in range(4):
        A(f'v_add_f32_dpp {v(SACC(0) + r)}, {v(SACC(0) + r)}, {v(SACC(0) + r)} row_ror:8 row_mask:0xf bank_mask:0x3')
    for r in range(4):
        A(f'v_add_f32_dpp {v(SACC(0) + r)}, {v(SACC(1) + r)}, {v(SACC(1) + r)} row_ror:8 row_mask:0xf bank_mask:0xc')
    A(f'ds_write_b128 {v(vSW)}, {v(SACC(0), 4)}')
    for r in range(2):
        A(f'v_add_f32_dpp {v(SACC(2) + r)}, {v(SACC(2) + r)}, {v(SACC(2) + r)} row_ror:8 row_mask:0xf bank_mask:0x3')
    for r in range(2):
        A(f'v_add_f32_dpp {v(SACC(2) + r)}, {v(SACC(2) + 2 + r)}, {v(SACC(2) + 2 + r)} row_ror:8 row_mask:0xf bank_mask:0xc')
    A(f'ds_write_b64 {v(vSW2)}, {v(SACC(2), 2)}')
    A('s_cmp_ge_u32 s13, 2')
    keepalive(A, vDUM + 1, cfg.get('ka1', 8), cfg)
    warm_mfma(A, M(0), cfg)
    A('s_waitcnt lgkmcnt(0)')
    A('s_barrier')
    stamp(A, cfg, 2)
    A(f's_cbranch_scc1 {nxt}')
    R = lambda w: ACC(0) + 4 * w
    for w in range(4):
        A(f'ds_read_b128 {v(R(w), 4)}, {v(vSR)} offset:{w * 2048}')
        keepalive(A, vDUM + 1, 1, cfg)
    keepalive(A, vDUM + 1, cfg.get('ka2', 8), cfg)
    s0 = R(0)
    ml, m, ll, f, e0, cm2 = R(4), R(4) + 2, R(5), R(5) + 2, R(2), R(6)
    A(f'v_mov_b32 {v(cm2)}, -2')
    A.auto(f'v_pk_add_f32 {v(R(0), 2)}, {v(R(0), 2)}, {v(R(1), 2)}')
    A(f'v_pk_add_f32 {v(R(0) + 2, 2)}, {v(R(0) + 2, 2)}, {v(R(1) + 2, 2)}')
    A.auto(f'v_pk_add_f32 {v(R(2), 2)}, {v(R(2), 2)}, {v(R(3), 2)}')
    A(f'v_pk_add_f32 {v(R(2) + 2, 2)}, {v(R(2) + 2, 2)}, {v(R(3) + 2, 2)}')
    A(f'v_pk_add_f32 {v(R(0), 2)}, {v(R(0), 2)}, {v(R(2), 2)}')
    A(f'v_pk_add_f32 {v(R(0) + 2, 2)}, {v(R(0) + 2, 2)}, {v(R(2) + 2, 2)}')
    dpp = 'row_mask:0xf bank_mask:0xf'
    A(f'v_max3_f32 {v(ml)}, {v(s0)}, {v(s0 + 1)}, {v(s0 + 2)}')
    A(f'v_max_f32 {v(ml)}, {v(ml)}, {v(s0 + 3)}')
    A(f'v_sub_f32 {v(e0)}, {v(s0)}, {v(ml)}')
    A(f'v_sub_f32 {v(e0 + 1)}, {v(s0 + 1)}, {v(ml)}')
    A(f'v_max_f32_dpp {v(m)}, {v(ml)}, {v(ml)} row_ror:8 {dpp}')
    A(f'v_sub_f32 {v(e0 + 2)}, {v(s0 + 2)}, {v(ml)}')
    A(f'v_sub_f32 {v(e0 + 3)}, {v(s0 + 3)}, {v(ml)}')
    A(f'v_max_f32_dpp {v(m)}, {v(m)}, {v(m)} row_ror:4 {dpp}')
    A(f'v_exp_f32 {v(e0)}, {v(e0)}')
    A(f'v_exp_f32 {v(e0 + 1)}, {v(e0 + 1)}')
    A(f'v_max_f32_dpp {v(m)}, {v(m)}, {v(m)} row_ror:2 {dpp}')
    A(f'v_exp_f32 {v(e0 + 2)}, {v(e0 + 2)}')
    A(f'v_exp_f32 {v(e0 + 3)}, {v(e0 + 3)}')
    A(f'v_max_f32_dpp {v(m)}, {v(m)}, {v(m)} row_ror:1 {dpp}')
    if cfg.get('sm2', 1):
        A(f'v_sub_f32 {v(f)}, {v(ml)}, {v(m)}')
        A(f'v_pk_add_f32 {v(ll, 2)}, {v(e0, 2)}, {v(e0 + 2, 2)}')
        A(f'v_exp_f32 {v(f)}, {v(f)}')
        A(f'v_add_f32 {v(ll)}, {v(ll)}, {v(ll + 1)}')
        A(f'v_mul_f32 {v(ll)}, {v(ll)}, {v(f)}')
        A(f'v_mul_f32 {v(e0)}, {v(e0)}, {v(f)}')
        A(f'v_mul_f32 {v(e0 + 1)}, {v(e0 + 1)}, {v(f)}')
        A(f'v_add_f32_dpp {v(ll)}, {v(ll)}, {v(ll)} row_ror:8 {dpp}')
        A(f'v_mul_f32 {v(e0 + 2)}, {v(e0 + 2)}, {v(f)}')
        A(f'v_mul_f32 {v(e0 + 3)}, {v(e0 + 3)}, {v(f)}')
        A(f'v_add_f32_dpp {v(ll)}, {v(ll)}, {v(ll)} row_ror:4 {dpp}')
        A(f'v_add_f32_dpp {v(ll)}, {v(ll)}, {v(ll)} row_ror:2 {dpp}')
        A(f'v_add_f32_dpp {v(ll)}, {v(ll)}, {v(ll)} row_ror:1 {dpp}')
        A(f'v_rcp_f32 {v(ll)}, {v(ll)}')
        A(f'v_pk_mul_f32 {v(e0, 2)}, {v(e0, 2)}, {v(ll, 2)} op_sel_hi:[1,0]')
        A(f'v_pk_mul_f32 {v(e0 + 2, 2)}, {v(e0 + 2, 2)}, {v(ll, 2)} op_sel_hi:[1,0]')
    else:
        A(f'v_pk_add_f32 {v(ll, 2)}, {v(e0, 2)}, {v(e0 + 2, 2)}')
        A(f'v_sub_f32 {v(f)}, {v(ml)}, {v(m)}')
        A(f'v_exp_f32 {v(f)}, {v(f)}')
        A(f'v_add_f32 {v(ll)}, {v(ll)}, {v(ll + 1)}')
        A(f'v_mul_f32 {v(ll)}, {v(ll)}, {v(f)}')
        A(f'v_mul_f32 {v(e0)}, {v(e0)}, {v(f)}')
        A(f'v_mul_f32 {v(e0 + 1)}, {v(e0 + 1)}, {v(f)}')
        A(f'v_add_f32_dpp {v(ll)}, {v(ll)}, {v(ll)} row_ror:8 {dpp}')
        A(f'v_mul_f32 {v(e0 + 2)}, {v(e0 + 2)}, {v(f)}')
        A(f'v_mul_f32 {v(e0 + 3)}, {v(e0 + 3)}, {v(f)}')
        A(f'v_add_f32_dpp {v(ll)}, {v(ll)}, {v(ll)} row_ror:4 {dpp}')
        A(f'v_add_f32_dpp {v(ll)}, {v(ll)}, {v(ll)} row_ror:2 {dpp}')
        A(f'v_add_f32_dpp {v(ll)}, {v(ll)}, {v(ll)} row_ror:1 {dpp}')
        A(f'v_rcp_f32 {v(ll)}, {v(ll)}')
        for i in range(4):
            A(f'v_mul_f32 {v(e0 + i)}, {v(e0 + i)}, {v(ll)}')
    A(f'v_cvt_pk_bf16_f32 {v(s0)}, {v(e0)}, {v(e0 + 1)}')
    A(f'v_cvt_pk_bf16_f32 {v(s0 + 1)}, {v(e0 + 2)}, {v(e0 + 3)}')
    A(f'v_min_u32 {v(s0)}, {v(s0)}, {v(cm2)}')
    A(f'v_min_u32 {v(s0 + 1)}, {v(s0 + 1)}, {v(cm2)}')
    dual_store(A, f'buffer_store_dwordx2 {v(s0, 2)}, {v(vPS)}, {SRD}, {{s}} offen', 's34', 's35')
    A.label(nxt, keep=True)
    stamp(A, cfg, 3)
    rstamp(A, cfg, 4)
    if not cfg.get('nohold'):
        A('s_barrier')
    A('s_nop 1')
    prepare()
    if cfg.get('xdelay', 0):
        A(f's_sleep {cfg.get("xdelay", 0)}')
    xload()
    mid_gate(A, cfg, vT0, vFL)
    if cfg.get('tl'):
        skp = A.newlabel('TLS')
        A('s_add_u32 s38, s14, s13')
        A('s_cmp_lg_u32 s38, 18')
        A(f's_cbranch_scc1 {skp}')
        tl(A, cfg, 's15', 0, vT0 + 4, 0x10000)
        A('s_memtime s[98:99]')
        A('s_waitcnt lgkmcnt(0)')
        A(f'v_mov_b32 {v(vT0 + 4)}, s98')
        A(f'buffer_store_dword {v(vT0 + 4)}, {v(vT0 + 5)}, {SRD}, s101 offen offset:4')
        A.label(skp, keep=True)
    stamp_flush(A, cfg, 14, 32, vT0 + 4)
    A(f'v_add_u32 {v(vMA)}, 8192, {v(vMA)}')
    A(f's_add_u32 s24, s24, 16384')
    A(f's_add_u32 s26, s26, {16 * 28672}')
    A(f's_add_u32 s15, s15, 1')
    if cfg.get('dbg'):
        for stp, wd in ((8, 9), (32, 10), (2, 6), (4, 7)):
            sk = A.newlabel('DB')
            A(f's_cmp_lg_u32 s15, {stp}')
            A(f's_cbranch_scc1 {sk}')
            dbgmax(A, cfg, wd, vT0 + 4)
            A.label(sk, keep=True)
    A(f's_cmp_lt_u32 s15, {NSTEP}')
    A(f's_cbranch_scc1 {top}')
    dbgmax(A, cfg, 11, vT0 + 4)
    A('s_endpgm')
    A.label(rare)
    A.forget()
    A(f'buffer_load_dwordx2 {v(vFL, 2)}, {v(vFA)}, {SRD}, s39 offen sc1')
    for back in range(cfg.get('pfdist', 2) - 1, 0, -1):
        A(f's_sub_u32 s38, s26, {back * 16 * 28672}')
        A('s_cmp_eq_u32 s15, 0')
        A('s_cselect_b32 s38, s38, 0x40000000')
        A(f'buffer_load_dword {v(vDUM)}, {v(vPF)}, {SRD}, s38 offen')
    A(f's_branch {rare_back}')
    for late, late_back, Q in lates:
        A.label(late)
        A.forget()
        guard(A)
        A(f'buffer_load_dwordx4 {v(Q, 4)}, {v(vMA)}, {SRD}, s17 offen sc1')
        A('s_waitcnt vmcnt(0)')
        check_regs(A, t0, [Q + i for i in range(4)])
        A(f's_cbranch_vccnz {late}')
        A(f'ds_write_b128 {v(vM(1))}, {v(Q, 4)}')
        A(f's_branch {late_back}')
    flush_deferred(A)


def emit_B(A, cfg):
    WL = 0x0000
    RIMG = 0x20000
    MIMG = 0x23000
    vL, vIDX, vMA, vWL, vYX, vP, vP2, vRW, vRR, vSA, vSK, vYM, vPF = range(1, 14)
    vT0 = 14
    M = lambda k: 20 + 4 * k
    YACC = lambda hh, t: 48 + 4 * (hh * 2 + t)
    YX = lambda k, t: 80 + 8 * (k * 2 + t)
    YB = lambda t: 112 + 4 * t
    M2 = 120
    YBN = lambda t: 180 + 4 * t
    OACC = lambda t: 128 + 4 * t
    ST = lambda b: 136 + 8 * b
    P = lambda r, k: ((20 if r == 0 else 120) + 4 * k) if k < 2 else 182 + 2 * r
    Pregs = lambda r: [P(r, 0) + i for i in range(8)] + [P(r, 2), P(r, 2) + 1]
    vM = lambda k: 168 + k
    vDUM = 176

    def W(ht, k):
        i = ht * 5 + k
        return a(8 * i, 8) if i < 32 else v(192 + 8 * (i - 32), 8)

    def Whalf(ht, k, eh):
        i = ht * 5 + k
        return a(8 * i + 4 * eh, 4) if i < 32 else v(192 + 8 * (i - 32) + 4 * eh, 4)

    t0, t1, t2, t3 = vT0, vT0 + 1, vT0 + 2, vT0 + 3
    lane_fields(A, vL)
    emit_koffs(A)
    A(f'v_and_b32 {v(t0)}, 15, {v(vL)}')
    A(f'v_lshrrev_b32 {v(t1)}, 4, {v(vL)}')
    sparse_idx(A, vIDX, vL, t2, t3)
    A(f'v_lshlrev_b32 {v(t2)}, 9, {v(t1)}')
    A(f'v_lshl_add_u32 {v(vYX)}, {v(t0)}, 4, {v(t2)}')
    if cfg.get('fused'):
        A('s_lshl_b32 s23, s13, 5')
        A(f's_add_u32 s23, s23, {L.F_AB + 128}')
        flag_wait(A, 's23', 32, 20, sleep=2)
    A(f's_mul_i32 s25, s13, 56')
    A(f's_add_u32 s25, s25, s14')
    A(f's_mul_i32 s25, s25, 28672')
    A(f's_add_u32 s25, s25, {L.WF + L.NB_B * 28672}')
    A(f's_lshl_b32 s28, s13, 15')
    cnt = 0
    for hh in range(4):
        for k in range(7):
            A(f's_lshl_b32 s23, s{16 + k}, 2')
            A(f's_add_u32 s23, s23, s25')
            A(f's_add_u32 s23, s23, {hh * 14 * 28672}')
            for eh in range(2):
                for t in range(2):
                    ht = hh * 2 + t
                    if k >= 5:
                        A(f's_add_u32 s24, s28, {WL + ((ht * 2 + (k - 5)) * 2 + eh) * 1024}')
                        A(f's_mov_b32 m0, s24')
                        A(f's_add_u32 s24, s23, {2048 * eh + 256 * t}')
                        A(f'buffer_load_dwordx4 {v(vYX)}, {SRD}, s24 offen{WFL(cfg)} lds')
                    else:
                        A(f'buffer_load_dwordx4 {Whalf(ht, k, eh)}, {v(vYX)}, {SRD}, s23 offen offset:{2048 * eh + 256 * t}{WFL(cfg)}')
                    cnt += 1
                    if cnt % 16 == 0:
                        A(f's_waitcnt vmcnt({cfg.get("wdepth", 40)})')
    A(f'v_lshlrev_b32 {v(vMA)}, 4, {v(vL)}')
    A(f'v_add_u32 {v(vWL)}, s28, {v(vMA)}')
    A(f'v_add_u32 {v(vYM)}, 0, {v(vMA)}')
    for k in range(7):
        A(f's_add_u32 s23, s{16 + k}, {MIMG}')
        A(f'v_add_u32 {v(vM(k))}, s23, {v(vMA)}')
    A(f'v_add_u32 {v(vMA)}, {L.MEMA}, {v(vMA)}')
    A(f'v_lshrrev_b32 {v(t2)}, 1, {v(t1)}')
    A(f'v_mul_u32_u24 {v(t2)}, 640, {v(t2)}')
    A(f'v_and_b32 {v(t3)}, 1, {v(t1)}')
    A(f'v_lshl_add_u32 {v(t2)}, {v(t3)}, 8, {v(t2)}')
    A(f'v_lshl_add_u32 {v(vP)}, {v(t0)}, 4, {v(t2)}')
    A(f'v_lshrrev_b32 {v(t2)}, 1, {v(t1)}')
    A(f'v_bfe_u32 {v(t3)}, {v(vL)}, 3, 1')
    A(f'v_lshl_add_u32 {v(t2)}, {v(t3)}, 1, {v(t2)}')
    A(f'v_mul_u32_u24 {v(t2)}, 640, {v(t2)}')
    A(f'v_and_b32 {v(t3)}, 7, {v(vL)}')
    A(f'v_lshl_add_u32 {v(t2)}, {v(t3)}, 4, {v(t2)}')
    A(f'v_and_b32 {v(t3)}, 1, {v(t1)}')
    A(f'v_lshl_add_u32 {v(t2)}, {v(t3)}, 3, {v(t2)}')
    A(f'v_add_u32 {v(vP2)}, 512, {v(t2)}')
    A(f's_mul_i32 s23, s13, 3072')
    A(f's_add_u32 s23, s23, {RIMG}')
    A(f'v_mul_u32_u24 {v(t2)}, {4 * 192}, {v(t1)}')
    A(f'v_lshl_add_u32 {v(vRW)}, {v(t0)}, 3, {v(t2)}')
    A(f'v_add_u32 {v(vRW)}, s23, {v(vRW)}')
    A(f'v_lshrrev_b32 {v(t3)}, 3, {v(vL)}')
    A(f'v_and_b32 {v(t2)}, 3, {v(vL)}')
    A(f'v_lshlrev_b32 {v(vSA)}, 2, {v(t2)}')
    A(f'v_lshlrev_b32 {v(t2)}, 1, {v(t2)}')
    A(f'v_bfe_u32 {v(t0)}, {v(vL)}, 2, 1')
    A(f'v_lshl_add_u32 {v(vSA)}, {v(t0)}, 7, {v(vSA)}')
    A(f'v_lshl_add_u32 {v(vSA)}, {v(t3)}, 4, {v(vSA)}')
    A(f'v_add_u32 {v(t2)}, {v(t2)}, {v(t0)}')
    A(f's_and_b32 s23, s13, 1')
    A(f's_lshl_b32 s23, s23, 3')
    A(f'v_add_u32 {v(t0)}, s23, {v(t2)}')
    A(f'v_mul_u32_u24 {v(t2)}, 192, {v(t3)}')
    A(f'v_lshl_add_u32 {v(vRR)}, {v(t0)}, 3, {v(t2)}')
    A(f'v_add_u32 {v(vRR)}, {RIMG}, {v(vRR)}')
    A(f's_lshl_b32 s23, s14, 9')
    A(f's_and_b32 s24, s13, 1')
    A(f's_lshl_b32 s24, s24, 8')
    A(f's_add_u32 s24, s24, s23')
    A(f'v_add_u32 {v(vSA)}, s24, {v(vSA)}')
    A(f'v_lshlrev_b32 {v(vSK)}, 4, {v(t3)}')
    A(f'v_lshrrev_b32 {v(t2)}, 2, {v(t0)}')
    A(f'v_lshl_add_u32 {v(vSK)}, {v(t2)}, 7, {v(vSK)}')
    A(f'v_and_b32 {v(t2)}, 3, {v(t0)}')
    A(f'v_lshl_add_u32 {v(vSK)}, {v(t2)}, 2, {v(vSK)}')
    A(f'v_add_u32 {v(vSK)}, s23, {v(vSK)}')
    A(f's_cmp_ge_u32 s13, 2')
    A(f's_cselect_b32 s23, 0x40000000, 0')
    A(f'v_add_u32 {v(vSK)}, s23, {v(vSK)}')
    A(f's_mul_i32 s24, s13, {4 * 640}')
    A(f's_add_u32 s24, s24, {L.PBUF}')
    A(f's_mul_i32 s25, s13, 56')
    A(f's_add_u32 s25, s25, s14')
    A(f's_lshl_b32 s25, s25, 11')
    A(f's_add_u32 s25, s25, {L.YF}')
    A(f's_mov_b32 s26, {L.MEMA + 8192}')
    A(f's_mov_b32 s29, {L.MEMX}')
    A(f's_lshl_b32 s31, s14, 2')
    A(f's_add_u32 s31, s31, s13')
    A(f's_lshl_b32 s31, s31, 11')
    A(f's_add_u32 s31, s31, {L.YM}')
    NTA = cfg.get('ntouch', 2)
    NT = cfg.get('ntouchB', 0)
    A(f's_mul_i32 s34, s14, {NT}')
    A(f's_add_u32 s34, s34, {16 * NTA}')
    A(f's_add_u32 s34, s34, s13')
    A(f's_min_u32 s34, s34, 55')
    A(f's_lshl_b32 s34, s34, 13')
    A(f's_add_u32 s34, s34, {L.YF + cfg.get("pfdist", 2) * 16 * 28672}')
    A(f'v_lshlrev_b32 {v(vPF)}, 7, {v(vL)}')
    A(f's_cmp_ge_u32 s13, {NT}')
    A(f's_cselect_b32 s23, 0x40000000, 0')
    A(f'v_add_u32 {v(vPF)}, s23, {v(vPF)}')
    A(f's_mov_b32 s15, 0')
    A(f's_mov_b32 s35, 0x40000000')
    if cfg.get('stamps'):
        A(f's_add_u32 s32, s14, 16')
        A(f's_lshl_b32 s32, s32, 2')
        A(f's_add_u32 s32, s32, s13')
        A(f's_lshl_b32 s32, s32, 12')
        A(f's_add_u32 s32, s32, {L.STAMP}')
    vNON, vF0 = 178, 180
    A(f'v_mov_b32 {v(vNON)}, s96')
    A(f'v_mov_b32 {v(vNON + 1)}, s97')
    A(f'v_mov_b32 {v(t2)}, 0x40000000')
    A(f'v_cmp_eq_u32 vcc, 0, {v(vL)}')
    A(f'v_cndmask_b32 {v(vF0)}, {v(t2)}, {v(vL)}, vcc')
    A('s_lshl_b32 s27, s14, 2')
    A('s_add_u32 s27, s27, s13')
    A('s_lshl_b32 s27, s27, 3')
    A(f's_add_u32 s27, s27, {L.FLAGS + 8 * L.F_YM - 2 * 56 * 8}')
    ymflag = lambda sreg: f'buffer_store_dwordx2 {v(vNON, 2)}, {v(vF0)}, {SRD}, {sreg} offen sc1'
    vOUT = vT0 + 5
    A(f'v_mov_b32 {v(vOUT)}, 0')
    for r in range(8):
        A(f'v_mov_b32 {v(YB(0) + r)}, 0')

    def yx_list():
        out = []
        for k in range(2):
            for eh in range(2):
                for t in range(2):
                    out.append([f's_add_u32 s23, s25, {(2 * k + eh) * 14 * 2048}',
                                f'buffer_load_dwordx4 {v(YX(k, t) + 4 * eh, 4)}, {v(vYX)}, {SRD}, s23 offen offset:{256 * t} sc1'])
        return out

    def ym_list(sreg):
        return [[f'buffer_store_dwordx4 {v(YB(t), 4)}, {v(vYM)}, {SRD}, {sreg} offen offset:{t * 1024} sc1'] for t in range(2)]

    A('s_waitcnt vmcnt(0)')
    tl(A, cfg, 's14', 1, vT0 + 2, 0x18400)
    loaded_flag(A, cfg, 16, M(4))
    start_gate(A, cfg, M(0))
    tl(A, cfg, 's14', 2, vT0 + 2, 0x18400)
    dbgmax(A, cfg, 12, vT0 + 2)
    top = A.newlabel('B_top')
    mpoll = A.newlabel('B_mpoll')
    ppoll = A.newlabel('B_ppoll')
    nxt = A.newlabel('B_next')
    fin = A.newlabel('B_fin')
    A.label(top)
    A.forget()
    zero = [f'v_mov_b32 {v(YACC(0, 0) + r)}, 0' for r in range(32)] + [f'v_mov_b32 {v(OACC(0) + r)}, 0' for r in range(8)]
    if cfg.get('yxearly'):
        for x in yx_list():
            for y in x:
                A(y)
    ZP = cfg.get('zpre', 12)
    for x in zero[:ZP]:
        A(x)
    ldsq = [(hh * 2 + t, k) for t in range(2) for pr in range(2) for k in (5, 6) for hh in (2 * pr, 2 * pr + 1)]

    def wlread(j):
        ht, k = ldsq[j]
        for eh in range(2):
            A(f'ds_read_b128 {v(ST(j & 3) + 4 * eh, 4)}, {v(vWL)} offset:{((ht * 2 + (k - 5)) * 2 + eh) * 1024}')
    for j in range(4):
        wlread(j)
    if cfg.get('bsleep', 0):
        A(f's_sleep {cfg["bsleep"]}')
    MS = lambda r: (M(0) if r == 0 else M2)
    A(f's_add_u32 s36, s31, s35')

    def missue(r):
        for k in range(2):
            A(f'buffer_load_dwordx4 {v(MS(r) + 4 * k, 4)}, {v(vMA)}, {SRD}, s{16 + k} offen sc1')
    mv0, mv1, mcommon = A.newlabel('B_mv0'), A.newlabel('B_mv1'), A.newlabel('B_mc')
    missue(0)
    for x in zero[ZP:]:
        A(x)
    A.label(mpoll, keep=True)
    guard(A)
    missue(1)
    check_regs(A, t0, [MS(0) + i for i in range(8)])
    A(f's_cbranch_vccz {mv0}')
    missue(0)
    check_regs(A, t0, [MS(1) + i for i in range(8)])
    A(f's_cbranch_vccnz {mpoll}')
    lgsnap = [set(x) for x in A.lg]

    def allmem():
        ld_ = yx_list() if not (cfg.get('noyx') or cfg.get('yxearly')) else []
        st_ = ym_list('s36') if not cfg.get('noym') else []
        return st_ + ld_ if cfg.get('stfirst') else ld_ + st_
    left = []

    def mvariant(r):
        A.vm = [set(('v', MS(1 - r) + i) for i in range(8))]
        A.lg = [set(x) for x in lgsnap]
        A.smem_out = []
        stamp(A, cfg, 0)
        vmem = allmem()
        for i, (ht, k) in enumerate([(ht, k) for k in range(2) for ht in range(8)]):
            A(f'v_smfmac_f32_16x16x64_bf16 {v(YACC(ht >> 1, ht & 1), 4)}, {v(MS(r) + 4 * k, 4)}, {W(ht, k)}, {v(vIDX)}')
            if i < 2:
                A(f'ds_write_b128 {v(vM(i))}, {v(MS(r) + 4 * i, 4)}')
            if i == 4:
                A('s_waitcnt lgkmcnt(0)')
                A('s_barrier')
            if 4 <= i < 9:
                A(f'ds_read_b128 {v(M(i - 2), 4)}, {v(vM(i - 2))}')
            if i >= 5 and (i - 5) % cfg.get('vgap', 2) == 0 and vmem:
                for x in vmem.pop(0):
                    A(x)
            if i == 4:
                stamp(A, cfg, 8)
        left[:] = vmem
    A.label(mv1, keep=True)
    mvariant(1)
    A(f's_branch {mcommon}')
    align(A, cfg, 'alBm')
    A.label(mv0)
    mvariant(0)
    A.label(mcommon, keep=True)
    A.vm = [set(('v', M(0) + i) for i in range(8)) | set(('v', M2 + i) for i in range(8)) | set(('v', YX(0, 0) + i) for i in range(32))]
    mem = list(left)
    if NT:
        mem += [[f'buffer_load_dword {v(vDUM)}, {v(vPF)}, {SRD}, s34 offen']]
    def pissue(r):
        A(f'buffer_load_dwordx4 {v(P(r, 0), 4)}, {v(vP)}, {SRD}, s24 offen sc1')
        A(f'buffer_load_dwordx4 {v(P(r, 1), 4)}, {v(vP)}, {SRD}, s24 offen offset:1280 sc1')
        A(f'buffer_load_dwordx2 {v(P(r, 2), 2)}, {v(vP2)}, {SRD}, s24 offen sc1')
    seq = []
    groups = [(pr, t) for t in range(2) for pr in range(2)]
    for pr, t in groups:
        ha, hb = (2 * pr) * 2 + t, (2 * pr + 1) * 2 + t
        seq += [(ha, 5), (ha, 2), (hb, 2), (hb, 5), (ha, 3), (ha, 6), (hb, 3), (ha, 4), (hb, 6), (hb, 4)]
    assert [x for x in seq if x[1] >= 5] == ldsq
    lj = 0
    vq = []
    dq = []
    GAP = cfg.get('bmemgap', 2)

    def gpost(pr, t):
        Ya, Yb = YACC(2 * pr, t), YACC(2 * pr + 1, t)
        ops = [f'v_permlane32_swap_b32 {v(Ya + r)}, {v(Yb + r)}' for r in range(4)]
        ops += [f'v_add_f32 {v(Ya + r)}, {v(Ya + r)}, {v(Yb + r)}' for r in range(4)]
        ops += [f'v_cvt_pk_bf16_f32 {v(YB(t) + 2 * p + pr)}, {v(Ya + 2 * p)}, {v(Ya + 2 * p + 1)}' for p in range(2)]
        return ops
    sani = [f'v_min_u32 {v(YB(0) + r)}, -2, {v(YB(0) + r)}' for r in range(8)]
    for i, (ht, k) in enumerate(seq):
        if i % 10 == 0:
            stamp(A, cfg, 9 + i // 10)
        if k >= 5:
            A.auto(f'v_smfmac_f32_16x16x64_bf16 {v(YACC(ht >> 1, ht & 1), 4)}, {v(M(k), 4)}, {v(ST(lj & 3), 8)}, {v(vIDX)}')
            if lj + 4 < 16:
                h2, k2 = ldsq[lj + 4]
                for eh in range(2):
                    dq.append(f'ds_read_b128 {v(ST(lj & 3) + 4 * eh, 4)}, {v(vWL)} offset:{((h2 * 2 + (k2 - 5)) * 2 + eh) * 1024}')
            lj += 1
        else:
            A.auto(f'v_smfmac_f32_16x16x64_bf16 {v(YACC(ht >> 1, ht & 1), 4)}, {v(M(k), 4)}, {W(ht, k)}, {v(vIDX)}')
        if i % 10 == 9:
            vq += gpost(*groups[i // 10])
        if dq:
            A(dq.pop(0))
        if i >= cfg.get('yxstart', 0) and i % GAP == 0 and mem:
            for x in mem.pop(0):
                A(x)
        if i == cfg.get('pearly', -1):
            pissue(0)
        if vq and A.pad_needed(vq[0]) == 0:
            A(vq.pop(0))
    assert not mem and not dq
    stamp(A, cfg, 13)
    for o in vq:
        A(o)
    A(f's_cmp_eq_u32 s15, 0')
    A(f's_cselect_b32 s23, 0, {14 * 4 * 2048}')
    A(f's_add_u32 s31, s31, s23')
    A(f's_mov_b32 s35, 0')
    A(f's_add_u32 s27, s27, {56 * 8}')
    A(f's_add_u32 s25, s25, {16 * 28672}')
    A(f's_add_u32 s34, s34, {16 * 28672}')
    stamp(A, cfg, 1)
    A(f's_cmp_eq_u32 s15, {NSTEP}')
    A(f's_cbranch_scc1 {fin}')
    A('s_cmp_ge_u32 s13, 2')
    A('s_cselect_b32 s23, 0x40000000, s26')
    dual_prep(A, 's23', 's29', 's37')
    stamp(A, cfg, 5)
    if cfg.get('psleep', 0):
        A(f's_sleep {cfg["psleep"]}')

    var0 = A.newlabel('B_var0')
    var1 = A.newlabel('B_var1')
    common = A.newlabel('B_common')
    redo = A.newlabel('B_redo')

    def quick(r):
        keepalive(A, vDUM + 1, cfg.get('kbp', 0), cfg)
        A('s_waitcnt vmcnt(3)')
        A(f'v_max3_u32 {v(t0)}, {v(P(r, 0) + 3)}, {v(P(r, 1) + 3)}, {v(P(r, 2) + 1)}')
        A(f'v_cmp_eq_u32 vcc, -1, {v(t0)}')
    if cfg.get('pearly', -1) < 0:
        keepalive(A, vDUM + 1, cfg.get('pdel', 32), {})
        pissue(0)
        keepalive(A, vDUM + 1, cfg.get('pgapB', 8), {})
    align(A, cfg, 'alBp', -1)
    A.label(ppoll, keep=True)
    guard(A)
    pissue(1)
    quick(0)
    A(f's_cbranch_vccz {var0}')
    pissue(0)
    quick(1)
    A(f's_cbranch_vccnz {ppoll}')
    bad = A.newlabel('B_bad')

    def variant(r):
        A.vm = [set(('v', x) for x in Pregs(1 - r))]
        A.lg = []
        A.smem_out = []
        stamp(A, cfg, 2)
        Q = P(r, 0)
        full = [f'v_max3_u32 {v(t0)}, {v(Q)}, {v(Q + 1)}, {v(Q + 2)}', f'v_max3_u32 {v(t0)}, {v(t0)}, {v(Q + 4)}, {v(Q + 5)}',
                f'v_max3_u32 {v(t0)}, {v(t0)}, {v(Q + 6)}, {v(P(r, 2))}',
                f'v_cmp_eq_u32 vcc, -1, {v(t0)}']
        for k in ((2, 0, 1) if cfg.get('kord') else (0, 1, 2)):
            for t in range(2):
                if k < 2:
                    A(f'v_smfmac_f32_16x16x64_bf16 {v(OACC(t), 4)}, {v(P(r, k), 4)}, {v(YX(k, t), 8)}, {v(vIDX)}')
                else:
                    A(f'v_smfmac_f32_16x16x32_bf16 {v(OACC(t), 4)}, {v(P(r, k), 2)}, {v(YB(t), 4)}, {v(vIDX)}')
        NF = cfg.get('nfull', 2)
        for x in full[:NF]:
            A(x)
        for rr in range(4):
            A(f'ds_write2_b32 {v(vRW)}, {v(OACC(0) + rr)}, {v(OACC(1) + rr)} offset0:{rr * 48} offset1:{rr * 48 + 1}')
        for x in full[NF:]:
            A(x)
        A(f's_cbranch_vccnz {bad}')
    A.label(var1)
    variant(1)
    A(f's_branch {common}')
    A.label(bad)
    A('s_waitcnt vmcnt(0) lgkmcnt(0)')
    A('s_nop 7')
    for r in range(8):
        A(f'v_mov_b32 {v(OACC(0) + r)}, 0')
    pissue(0)
    A(f's_branch {ppoll}')
    align(A, cfg, 'alB0')
    A.label(var0)
    variant(0)
    A.label(common, keep=True)
    A.vm = [set(('v', x) for x in Pregs(0) + Pregs(1))]
    A('s_cmp_ge_u32 s13, 2')
    keepalive(A, vDUM + 1, cfg.get('kb1', 0), cfg)
    stamp(A, cfg, 6)
    warm_mfma(A, ST(0), cfg)
    A('s_waitcnt lgkmcnt(0)')
    A('s_barrier')
    stamp(A, cfg, 7)
    A(f's_cbranch_scc1 {nxt}')
    R = lambda w: YACC(0, 0) + 4 * w
    for w in range(4):
        A(f'ds_read2st64_b64 {v(R(w), 4)}, {v(vRR)} offset0:{6 * w} offset1:{6 * w + 3}')
    keepalive(A, vDUM + 1, cfg.get('kb2', 3), cfg)
    A(f'v_mov_b32 {v(t1)}, -2')
    A.auto(f'v_pk_add_f32 {v(R(0), 2)}, {v(R(0), 2)}, {v(R(0) + 2, 2)}')
    A.auto(f'v_pk_add_f32 {v(R(1), 2)}, {v(R(1), 2)}, {v(R(1) + 2, 2)}')
    A(f'v_pk_add_f32 {v(R(0), 2)}, {v(R(0), 2)}, {v(R(1), 2)}')
    A.auto(f'v_pk_add_f32 {v(R(2), 2)}, {v(R(2), 2)}, {v(R(2) + 2, 2)}')
    A(f'v_pk_add_f32 {v(R(0), 2)}, {v(R(0), 2)}, {v(R(2), 2)}')
    A.auto(f'v_pk_add_f32 {v(R(3), 2)}, {v(R(3), 2)}, {v(R(3) + 2, 2)}')
    A(f'v_pk_add_f32 {v(R(0), 2)}, {v(R(0), 2)}, {v(R(3), 2)}')
    A(f'v_cvt_pk_bf16_f32 {v(vOUT)}, {v(R(0))}, {v(R(0) + 1)}')
    A(f'v_min_u32 {v(vOUT)}, {v(vOUT)}, {v(t1)}')
    A.label(nxt, keep=True)
    dual_store(A, f'buffer_store_dword {v(vOUT)}, {v(vSA)}, {SRD}, {{s}} offen', 's29', 's37')
    stamp(A, cfg, 3)
    rstamp(A, cfg, 4)
    if not cfg.get('nohold'):
        A('s_barrier')
    nl = A.newlabel('B_nl')
    A(f's_cmp_lg_u32 s15, {NSTEP - 1}')
    A(f's_cbranch_scc1 {nl}')
    A(f's_mov_b32 s23, {L.MEMX + 63 * 8192}')
    A('s_waitcnt vmcnt(2)')
    A(f'buffer_store_dword {v(vOUT)}, {v(vSK)}, {SRD}, s23 offen sc1')
    A(f's_branch {nl}x')
    A.label(nl, keep=True)
    A('s_waitcnt vmcnt(2)')
    A.label(nl + 'x', keep=True)
    stamp_flush(A, cfg, 14, 32, vT0 + 2)
    A(f'v_add_u32 {v(vMA)}, 8192, {v(vMA)}')
    A(f's_add_u32 s24, s24, 16384')
    A(f's_add_u32 s26, s26, 8192')
    A(f's_add_u32 s15, s15, 1')
    A(f's_branch {top}')
    A.label(fin)
    for x in ym_list('s31'):
        A(x[0])
    A('s_waitcnt vmcnt(0)')
    A(ymflag('s27'))
    A(f's_add_u32 s27, s27, {56 * 8}')
    A(ymflag('s27'))
    A('s_endpgm')
    flush_deferred(A)


def emit_C(A, cfg):
    NT = cfg.get('ntouch', 2)
    D = cfg.get('cdist', 3)
    first = min(16 * NT + 14 * cfg.get('ntouchB', 0), 56)
    nrounds = (56 - first + 7) // 8
    vL, vPF, vPL, vD, vLW, vLR, vST, t0, t1 = 1, 2, 3, 4, 5, 6, 7, 8, 9
    Q = 12
    A.pipe_model = False
    lane_fields(A, vL)
    A(f'v_lshlrev_b32 {v(vPF)}, 7, {v(vL)}')
    A('s_lshl_b32 s16, s14, 2')
    A('s_add_u32 s16, s16, s13')
    A('s_cmp_eq_u32 s16, 7')
    A('s_cselect_b32 s19, 0, s16')
    A('s_lshl_b32 s19, s19, 10')
    A(f'v_lshlrev_b32 {v(vST)}, 4, {v(vL)}')
    A('s_lshl_b32 s23, s13, 10')
    A(f'v_add_u32 {v(vLW)}, s23, {v(vST)}')
    A(f'v_lshrrev_b32 {v(t0)}, 4, {v(vL)}')
    A(f'v_lshlrev_b32 {v(vLR)}, 8, {v(t0)}')
    A(f'v_and_b32 {v(t0)}, 7, {v(vL)}')
    A(f'v_lshl_add_u32 {v(vLR)}, {v(t0)}, 4, {v(vLR)}')
    A(f'v_bfe_u32 {v(t0)}, {v(vL)}, 3, 1')
    A(f'v_lshl_add_u32 {v(vLR)}, {v(t0)}, 3, {v(vLR)}')
    A(f'v_add_u32 {v(vLR)}, s23, {v(vLR)}')
    A(f'v_add_u32 {v(vST)}, s19, {v(vST)}')
    A(f'v_add_u32 {v(vPL)}, {L.MEMA + 8192}, {v(vST)}')
    A('s_cmp_eq_u32 s16, 7')
    A(f's_cselect_b32 s19, 0x40000000, 0')
    A(f's_add_u32 s19, s19, {L.MEMX + 8192}')
    A('s_lshl_b32 s17, s16, 13')
    A(f's_add_u32 s17, s17, {L.XF}')
    A('s_mov_b32 s18, 28672')
    A('s_cmp_ge_u32 s16, 4')
    A(f's_cselect_b32 s17, {L.MEMA + 8192}, s17')
    A(f's_cselect_b32 s18, 8192, s18')
    A('s_cmp_eq_u32 s16, 6')
    A(f's_cselect_b32 s17, {L.PBUF}, s17')
    A('s_cmp_eq_u32 s16, 7')
    A(f's_cselect_b32 s17, {L.PBUF + 8192}, s17')
    A('s_cmp_ge_u32 s16, 6')
    A(f's_cselect_b32 s18, 16384, s18')
    for r in range(nrounds):
        A(f's_add_u32 s{24 + r}, s16, {first + 8 * r}')
        A(f's_min_u32 s{24 + r}, s{24 + r}, 55')
        A(f's_lshl_b32 s{24 + r}, s{24 + r}, 13')
        A(f's_add_u32 s{24 + r}, s{24 + r}, {L.YF}')
    assert nrounds == 0 or not cfg.get('fused')

    def touches():
        A(f'buffer_load_dword {v(vD)}, {v(vPF)}, {SRD}, s17 offen')
        A('s_add_u32 s17, s17, s18')
        for r in range(nrounds):
            A(f'buffer_load_dword {v(vD)}, {v(vPF)}, {SRD}, s{24 + r} offen')
            A(f's_add_u32 s{24 + r}, s{24 + r}, {16 * 28672}')
    if cfg.get('fused'):
        flag_wait_multi(A, [L.F_LN, L.F_LN + 64, L.F_LN + 128, L.F_LN + 192], Q)
    A(f's_mov_b32 s23, {L.MEMA}')
    A(f'buffer_load_dword {v(vD)}, {v(vPF)}, {SRD}, s23 offen')
    for _ in range(D):
        touches()
    def code_touch():
        if not cfg.get('ctouch', 0) or not cfg.get('fused'):
            return
        lab = A.newlabel('CPC')
        A.raw('    s_getpc_b64 s[26:27]')
        A.raw(f'{lab}:')
        A.raw(f'    s_sub_u32 s26, s26, {lab} - CHAIN_BEGIN')
        A('s_subb_u32 s27, s27, 0')
        A('s_lshl_b32 s23, s16, 12')
        A(f'v_lshlrev_b32 {v(t1)}, 6, {v(vL)}')
        A(f'v_add_u32 {v(t1)}, s23, {v(t1)}')
        A(f'global_load_dword {v(vD)}, {v(t1)}, s[26:27]')
    if cfg.get('fused') and cfg.get('ctouch', 0):
        soft_wait(A, L.F_INIT, cfg.get('ctn', 8), Q, 40, 4)
    code_touch()
    start_gate(A, cfg, Q, [L.F_Y0])
    for sg in range(1):
        for r in range(7):
            A(f's_add_u32 s23, s16, {8 * r}')
            A(f's_lshl_b32 s23, s23, 13')
            A(f's_add_u32 s23, s23, {L.YF + sg * 16 * 28672}')
            A(f'buffer_load_dword {v(vD)}, {v(vPF)}, {SRD}, s23 offen')
    A('s_mov_b32 s15, 1')
    top = A.newlabel('C_top')
    skip = A.newlabel('C_skip')
    A.label(top)
    A.forget()
    guard(A)
    A(f's_sleep 1')
    A(f'buffer_load_dwordx4 {v(Q, 4)}, {v(vPL)}, {SRD}, 0 offen sc1')
    A('s_waitcnt vmcnt(0)')
    check_regs(A, t0, [Q + i for i in range(4)])
    A(f's_cbranch_vccnz {top}')
    A(f'ds_write_b128 {v(vLW)}, {v(Q, 4)}')
    A(f'ds_read2_b32 {v(Q + 4, 2)}, {v(vLR)} offset0:0 offset1:32')
    A(f'ds_read2_b32 {v(Q + 6, 2)}, {v(vLR)} offset0:1 offset1:33')
    A('s_waitcnt lgkmcnt(0)')
    A(f'buffer_store_dwordx4 {v(Q + 4, 4)}, {v(vST)}, {SRD}, s19 offen sc1')
    A(f'v_add_u32 {v(vPL)}, 8192, {v(vPL)}')
    A('s_add_u32 s19, s19, 8192')
    A(f's_cmp_gt_u32 s15, {64 - D}')
    A(f's_cbranch_scc1 {skip}')
    touches()
    A.label(skip)
    A('s_add_u32 s15, s15, 1')
    A(f's_cmp_lt_u32 s15, 64')
    A(f's_cbranch_scc1 {top}')
    A('s_endpgm')
```

```python
import struct
from asmdsl import v, a, s
import layout as L
import gemm as G
from prep import tr_addr, rne_bf16, CSCALE, srd
import chain
CFG = {}

SRD = 's[8:11]'
STG = 45056


def ln2_issue(A, srdx):
    VL = G.VL
    vA = 20
    A(f'v_lshrrev_b32 v21, 5, {v(VL)}')
    A(f'v_and_b32 v22, 31, {v(VL)}')
    A(f'v_mul_u32_u24 {v(vA)}, 896, v21')
    A(f'v_lshl_add_u32 {v(vA)}, v22, 4, {v(vA)}')
    A(f'v_mov_b32 v23, 0x40000000')
    A(f'v_cmp_gt_u32 vcc, 28, v22')
    A(f'v_cndmask_b32 {v(vA)}, v23, {v(vA)}, vcc')
    A('s_lshl_b32 s50, s2, 2')
    A('s_add_u32 s50, s50, s13')
    A(f's_mul_i32 s79, s50, {2 * 896}')
    A(f'buffer_load_dwordx4 v[208:211], {v(vA)}, {srdx}, s79 offen')
    A(f'buffer_load_dwordx4 v[212:215], {v(vA)}, {srdx}, s79 offen offset:448')


def ln2_compute(A, nyounger):
    VL = G.VL
    X, F = 208, 216
    t0, sm, sq, vS, t1 = 232, 233, 234, 235, 236
    A(f's_waitcnt vmcnt({nyounger})')
    A.vm = []
    for i in range(8):
        A(f'v_lshlrev_b32 {v(F + 2 * i)}, 16, {v(X + i)}')
        A(f'v_and_b32 {v(F + 2 * i + 1)}, 0xffff0000, {v(X + i)}')

    def red32(r):
        for pat in ('quad_perm:[1,0,3,2]', 'quad_perm:[2,3,0,1]', 'row_half_mirror', 'row_mirror'):
            A(f'v_add_f32_dpp {v(r)}, {v(r)}, {v(r)} {pat} row_mask:0xf bank_mask:0xf')
        A(f'v_mov_b32 {v(t1)}, {v(r)}')
        A(f'v_permlane16_swap_b32 {v(r)}, {v(t1)}')
        A(f'v_add_f32 {v(r)}, {v(r)}, {v(t1)}')
    A(f'v_add_f32 {v(sm)}, {v(F)}, {v(F + 1)}')
    for i in range(2, 16):
        A(f'v_add_f32 {v(sm)}, {v(sm)}, {v(F + i)}')
    red32(sm)
    inv = struct.unpack('<I', struct.pack('<f', 1.0 / 448.0))[0]
    A(f'v_mul_f32 {v(sm)}, {inv:#x}, {v(sm)}')
    A(f'v_mov_b32 {v(sq)}, 0')
    for i in range(16):
        A(f'v_sub_f32 {v(t0)}, {v(F + i)}, {v(sm)}')
        A(f'v_fmac_f32 {v(sq)}, {v(t0)}, {v(t0)}')
    A(f'v_and_b32 {v(t0)}, 31, {v(VL)}')
    A(f'v_cmp_gt_u32 vcc, 28, {v(t0)}')
    A(f'v_cndmask_b32 {v(sq)}, 0, {v(sq)}, vcc')
    red32(sq)
    A(f'v_mul_f32 {v(sq)}, {inv:#x}, {v(sq)}')
    rne_bf16(A, sm, t0)
    rne_bf16(A, sq, t0)
    eps = struct.unpack('<I', struct.pack('<f', 1e-5))[0]
    A(f'v_add_f32 {v(sq)}, {eps:#x}, {v(sq)}')
    rne_bf16(A, sq, t0)
    A(f'v_sqrt_f32 {v(sq)}, {v(sq)}')
    rne_bf16(A, sq, t0)
    A(f'v_rcp_f32 {v(sq)}, {v(sq)}')
    for i in range(8):
        r = F + 2 * i
        A(f'v_sub_f32 {v(r)}, {v(r)}, {v(sm)}')
        A(f'v_sub_f32 {v(r + 1)}, {v(r + 1)}, {v(sm)}')
        A(f'v_cvt_pk_bf16_f32 {v(t1)}, {v(r)}, {v(r + 1)}')
        A(f'v_lshlrev_b32 {v(r)}, 16, {v(t1)}')
        A(f'v_and_b32 {v(r + 1)}, 0xffff0000, {v(t1)}')
        A(f'v_mul_f32 {v(r)}, {v(r)}, {v(sq)}')
        A(f'v_mul_f32 {v(r + 1)}, {v(r + 1)}, {v(sq)}')
        A(f'v_cvt_pk_bf16_f32 {v(X + i)}, {v(r)}, {v(r + 1)}')
    A(f'v_lshlrev_b32 {v(vS)}, 9, {v(t0)}')
    A(f'v_lshrrev_b32 {v(t1)}, 5, {v(VL)}')
    A(f'v_lshl_add_u32 {v(vS)}, {v(t1)}, 4, {v(vS)}')
    A(f'v_mov_b32 {v(t1)}, 0x40000000')
    A(f'v_cndmask_b32 {v(vS)}, {v(t1)}, {v(vS)}, vcc')
    A('s_lshr_b32 s50, s2, 2')
    A('s_mul_i32 s50, s50, 28672')
    A('s_and_b32 s51, s2, 3')
    A('s_lshl_b32 s51, s51, 2')
    A('s_add_u32 s51, s51, s13')
    A('s_lshl_b32 s51, s51, 5')
    A('s_add_u32 s50, s50, s51')
    A(f's_add_u32 s79, s50, {L.XF}')
    return [f'buffer_store_dwordx4 {v(X, 4)}, {v(vS)}, {SRD}, s79 offen sc1',
            f's_add_u32 s79, s79, {28 * 512}',
            f'buffer_store_dwordx4 {v(X + 4, 4)}, {v(vS)}, {SRD}, s79 offen sc1']


def item_ab2(A, mat):
    VL, VLIN, VPERM = G.VL, G.VLIN, G.VPERM
    acc = lambda nb: G.ACC0 + 16 * nb
    vS0, vS1, vWo, vSt, t0, t1, t2 = 5, 6, 7, 24, 8, 9, 10
    RO = lambda kq: 12 + kq
    RS = lambda kq: 16 + kq
    WOV = 196
    NT = ' nt' if CFG.get('abnt', 0) else ''
    ND = ' nt' if CFG.get('abnd', 0) else ''
    if CFG.get('abtouch', 0):
        A('s_lshr_b32 s50, s2, 3')
        A('s_lshl_b32 s50, s50, 2')
        A('s_add_u32 s50, s50, s13')
        A('s_mul_i32 s50, s50, 56')
        A(f'v_min_u32 {v(t0)}, 55, {v(VL)}')
        A(f'v_add_u32 {v(t0)}, s50, {v(t0)}')
        A(f'v_lshrrev_b32 {v(t1)}, 4, {v(t0)}')
        A(f'v_lshlrev_b32 {v(t1)}, 13, {v(t1)}')
        A(f'v_and_b32 {v(t2)}, 15, {v(t0)}')
        A(f'v_lshl_add_u32 {v(t1)}, {v(t2)}, 7, {v(t1)}')
        A('s_and_b32 s50, s2, 3')
        A('s_lshl_b32 s51, s50, 11')
        A(f'buffer_load_dword v248, {v(t1)}, s[68:71], s51 offen{NT}')
        if mat == 0:
            A(f'buffer_load_dword v249, {v(t1)}, s[72:75], s51 offen{NT}')
        else:
            A(f'v_lshlrev_b32 {v(t2)}, 7, {v(t0)}')
            A(f's_mul_i32 s51, s50, {4 * 256 * 896}')
            A(f'buffer_load_dword v249, {v(t2)}, s[72:75], s51 offen{NT}')
    A(f'v_lshrrev_b32 {v(t0)}, 3, {v(VL)}')
    A(f'v_and_b32 {v(t1)}, 7, {v(VL)}')
    A(f'v_lshrrev_b32 {v(t2)}, 1, {v(t0)}')
    A(f'v_xor_b32 {v(t1)}, {v(t1)}, {v(t2)}')
    A(f'v_lshlrev_b32 {v(t0)}, 13, {v(t0)}')
    A(f'v_lshl_add_u32 {v(vS0)}, {v(t1)}, 4, {v(t0)}')
    A(f'v_xor_b32 {v(vS1)}, 64, {v(vS0)}')
    A('s_lshl_b32 s44, s54, 2')
    A('s_add_u32 s44, s44, s13')
    A('s_min_u32 s50, s44, 13')
    A('s_lshl_b32 s45, s50, 18')
    A('s_lshl_b32 s51, s53, 9')
    A('s_add_u32 s45, s45, s51')
    A('s_lshl_b32 s46, s13, 12')

    def frag_addr(dst4, rowreg):
        A(f'v_bfe_u32 {v(t1)}, {v(rowreg)}, 1, 3')
        A(f'v_lshrrev_b32 {v(t2)}, 5, {v(VL)}')
        A(f'v_xor_b32 {v(t1)}, {v(t1)}, {v(t2)}')
        A(f'v_lshlrev_b32 {v(t1)}, 4, {v(t1)}')
        A(f'v_lshl_add_u32 {v(t1)}, {v(rowreg)}, 7, {v(t1)}')
        for kq in range(4):
            A(f'v_xor_b32 {v(dst4(kq))}, {32 * kq}, {v(t1)}')
    A(f'v_lshrrev_b32 {v(t0)}, 4, {v(VPERM)}')
    A(f'v_and_b32 {v(t0)}, 31, {v(t0)}')
    frag_addr(RO, t0)
    for kq in range(4):
        A(f'v_add_u32 {v(RO(kq))}, s46, {v(RO(kq))}')
    if mat == 0:
        A(f'v_and_b32 {v(t0)}, 31, {v(VL)}')
        frag_addr(RS, t0)
        A(f's_mul_i32 s47, s55, {7 << 18}')
        A('s_add_u32 s47, s47, s51')
        A('s_lshl_b32 s50, s13, 16')
        A('s_add_u32 s47, s47, s50')
        A('s_and_b32 s50, s13, 1')
        A('s_lshl_b32 s50, s50, 6')
        A(f'v_xor_b32 {v(vWo)}, s50, {v(vS0)}')
        nb_step, st_step = 1 << 18, 128
        A(f'v_mov_b32 {v(vSt)}, {v(VLIN)}')
    else:
        for j in range(7):
            A(f'v_add_u32 {v(t0)}, {64 * j}, {v(VL)}')
            A(f'v_mul_u32_u24 {v(t1)}, 2341, {v(t0)}')
            A(f'v_lshrrev_b32 {v(t1)}, 16, {v(t1)}')
            A(f'v_mul_u32_u24 {v(t2)}, {896 - 448}, {v(t1)}')
            A(f'v_lshl_add_u32 {v(WOV + j)}, {v(t0)}, 4, {v(t2)}')
        A(f's_mul_i32 s47, s53, {256 * 896}')
        A(f's_mul_i32 s50, s55, {7 * 64}')
        A('s_add_u32 s47, s47, s50')
        A(f's_mul_i32 s50, s13, {16 * 896}')
        A('s_add_u32 s47, s47, s50')
        nb_step, st_step = 64, 64 * 896
        A(f'v_lshrrev_b32 {v(t0)}, 5, {v(VL)}')
        A(f'v_lshlrev_b32 {v(t0)}, 3, {v(t0)}')
        A(f'v_bfe_u32 {v(t1)}, {v(VL)}, 2, 2')
        A(f'v_add_u32 {v(t0)}, {v(t0)}, {v(t1)}')
        A(f'v_mul_u32_u24 {v(RS(0))}, 448, {v(t0)}')
        A(f'v_bfe_u32 {v(t0)}, {v(VL)}, 4, 1')
        A(f'v_lshl_add_u32 {v(RS(0))}, {v(t0)}, 5, {v(RS(0))}')
        A(f'v_and_b32 {v(t0)}, 3, {v(VL)}')
        A(f'v_lshl_add_u32 {v(RS(0))}, {v(t0)}, 3, {v(RS(0))}')
        A(f'v_and_b32 {v(t0)}, 1, {v(VL)}')
        A(f'v_lshlrev_b32 {v(vSt)}, 4, {v(t0)}')
        A(f'v_bfe_u32 {v(t0)}, {v(VL)}, 1, 4')
        A(f'v_add_u32 {v(vSt)}, {v(vSt)}, {v(t0)}')
        A(f'v_lshrrev_b32 {v(t1)}, 5, {v(VL)}')
        A(f'v_lshl_add_u32 {v(vSt)}, {v(t1)}, 5, {v(vSt)}')
        A(f'v_lshlrev_b32 {v(vSt)}, 4, {v(vSt)}')
    A('s_lshl_b32 s48, s13, 10' if mat == 0 else 's_mul_i32 s48, s13, 7168')

    def issue_list(st):
        buf = (st % 3) * STG
        out = []
        for j in range(4):
            out.append([f's_add_u32 s50, s46, {buf + j * 1024}', 's_mov_b32 m0, s50', f's_add_u32 s51, s45, {st * 128 + j * 65536}',
                        f'buffer_load_dwordx4 {v(vS1 if j & 1 else vS0)}, s[68:71], s51 offen{ND} lds'])
        for nb in range(7):
            g = [f's_add_u32 s50, s48, {buf + 16384 + nb * (4096 if mat == 0 else 1024)}', 's_mov_b32 m0, s50']
            if mat == 0:
                g += [f's_add_u32 s51, s47, {st * st_step + nb * nb_step}', f'buffer_load_dwordx4 {v(vWo)}, s[72:75], s51 offen{ND} lds']
            else:
                g += [f's_add_u32 s51, s47, {st * st_step}', f'buffer_load_dwordx4 {v(WOV + nb)}, s[72:75], s51 offen{ND} lds']
            out.append(g)
        return out

    def issue(st):
        for g in issue_list(st):
            for x in g:
                A(x)
    NPRE = CFG.get('abpre', 2)
    for st in range(NPRE):
        issue(st)
    if CFG.get('tl') == 2:
        A('s_memrealtime s[92:93]')
    lnst = ln2_compute(A, 11 * NPRE)
    if CFG.get('tl') == 2:
        A('s_memrealtime s[94:95]')
    for r in range(112):
        A(f'v_mov_b32 {v(G.ACC0 + r)}, 0')
    OB = lambda par: 4 * par
    WB = lambda par, nb: 8 + (par * 7 + nb) * 4
    vB = {}

    def rd(st, kq, par):
        buf = (st % 3) * STG
        hi_ = buf >= 45056 * 1.4
        out = []
        ro = v(RO(kq))
        if mat == 0:
            rs = v(RS(kq))
            so = 16384
        else:
            rs = v(RS(0))
            so = 16384 + kq * 7168
        out.append([f'ds_read_b128 {a(OB(par), 4)}, {ro} offset:{0}'])
        for nb in range(7):
            if mat == 0:
                out.append([f'ds_read_b128 {a(WB(par, nb), 4)}, {rs} offset:{so + nb * 4096}'])
            else:
                out.append([f'ds_read_b64_tr_b16 {a(WB(par, nb), 2)}, {rs} offset:{so + nb * 64}',
                            f'ds_read_b64_tr_b16 {a(WB(par, nb) + 2, 2)}, {rs} offset:{so + nb * 64 + 1792}'])
        return out

    def shift(delta):
        for r in range(12, 20):
            A(f'v_add_u32 {v(r)}, {delta & 0xffffffff:#x}, {v(r)}')
    for st in range(4):
        A.forget()
        A(f's_waitcnt vmcnt({((22, 13, 13, 0) if NPRE == 3 else (11, 13, 11, 0))[st]})')
        A('s_barrier')
        if st == 0 and CFG.get('tl') == 1:
            A('s_memrealtime s[92:93]')
        later = []
        if st == 0:
            for x in lnst:
                A(x)
            if NPRE == 2:
                later = issue_list(2)
        if st == 1:
            later = issue_list(3)
        for g in rd(st, 0, 0):
            for x in g:
                A(x)
        for kq in range(4):
            par = kq & 1
            nxt = rd(st, kq + 1, par ^ 1) if kq < 3 else []
            if nxt:
                for x in nxt.pop(0):
                    A(x)
            for nb in range(7):
                A.auto(f'v_mfma_f32_32x32x16_bf16 {v(acc(nb), 16)}, {a(OB(par), 4)}, {a(WB(par, nb), 4)}, {v(acc(nb), 16)}')
                if nxt:
                    for x in nxt.pop(0):
                        A(x)
                if later and nb % 2 == 0:
                    for x in later.pop(0):
                        A(x)
        assert not later
        if st < 3:
            shift(STG if st < 2 else -2 * STG)
    if CFG.get('tl') == 1:
        A('s_memrealtime s[94:95]')
    A('s_mul_i32 s42, s53, 14')
    A('s_mul_i32 s50, s55, 7')
    A('s_add_u32 s42, s42, s50')
    A('s_mul_i32 s42, s42, 28672')
    A(f's_add_u32 s42, s42, {L.WF + (L.NB_A if mat == 0 else L.NB_B) * 28672}')
    A(f's_mov_b32 s52, {CSCALE}')
    A('s_lshl_b32 s51, s44, 11')
    A('s_add_u32 s51, s51, s42')
    A('s_cmp_gt_u32 s44, 13')
    A('s_cselect_b32 s51, 0x40000000, s51')
    KEEP = CFG.get('l2keep', 0)
    if KEEP:
        A(f's_cmp_eq_u32 s12, {CFG.get("xcc", 0)}')
        A('s_cselect_b32 s49, 0, 0x40000000')
    n = 0
    for nb in range(7):
        for ph in range(2):
            t = 160 + 4 * (n % 8)
            n += 1
            for j in range(4):
                r = acc(nb) + 8 * ph + 2 * j
                if mat == 0:
                    A(f'v_mul_f32 {v(r)}, s52, {v(r)}')
                    A(f'v_mul_f32 {v(r + 1)}, s52, {v(r + 1)}')
                A(f'v_cvt_pk_bf16_f32 {v(t + j)}, {v(r)}, {v(r + 1)}')
            A(f'buffer_store_dwordx4 {v(t, 4)}, {v(vSt)}, {SRD}, s51 offen offset:{ph * 1024} sc1')
            if KEEP:
                if ph == 0:
                    A('s_or_b32 s50, s51, s49')
                A(f'buffer_store_dwordx4 {v(t, 4)}, {v(vSt)}, {SRD}, s50 offen offset:{ph * 1024}')
        A('s_add_u32 s51, s51, 28672')
```

```python
import sys
from asmdsl import Asm, v, a, s
import layout as L
import gemm as G
import items as I
import prep
import prep2
import chain
from build_multi import KD, srd

SRD = 's[8:11]'
LDSW = 0x24f00
NAME = 'parallel_sum__memory_aug_recurrent_mem_tr__glu_gated_bilinear__prompt_kernel'


def flag_store(A, idx_sreg):
    A(f's_lshl_b32 s38, {idx_sreg}, 3')
    A(f's_add_u32 s38, s38, {L.FLAGS}')
    A('v_mov_b32 v24, s96')
    A('v_mov_b32 v25, s97')
    A(f'buffer_store_dwordx2 v[24:25], v31, {SRD}, s38 offen sc1')


def emit_main(A, cfg):
    XC = cfg.get('xcc', 0)
    tl = chain.tl
    A('s_cmp_ge_u32 s2, 256')
    A('s_cbranch_scc1 L_bail')
    A('s_load_dwordx4 s[4:7], s[0:1], 96')
    A('s_load_dwordx16 s[80:95], s[0:1], 0')
    A('s_load_dwordx8 s[16:23], s[0:1], 64')
    A('s_memrealtime s[98:99]')
    A('v_lshrrev_b32 v1, 6, v0')
    A('v_readfirstlane_b32 s13, v1')
    A('s_mov_b32 s33, 0')
    A('s_getreg_b32 s12, hwreg(HW_REG_XCC_ID)')
    A('s_and_b32 s12, s12, 15')
    A(f'v_mov_b32 v28, {LDSW}')
    A('v_mov_b32 v31, 0')
    A('v_mov_b32 v29, 32')
    A('s_add_u32 s75, s12, 6')
    A('s_mul_hi_u32 s38, s75, 0x24924925')
    A('s_mul_i32 s38, s38, 7')
    A('s_sub_u32 s77, s75, s38')
    A('s_mov_b32 s78, 7')
    G.emit_common_regs(A)
    if cfg.get('codepf', 0):
        A.raw('    s_getpc_b64 s[24:25]')
        A.raw('CODE_PC:')
        A('s_lshr_b32 s26, s2, 3')
        A('s_lshl_b32 s26, s26, 2')
        A('s_add_u32 s26, s26, s13')
        A.raw('    s_cmp_ge_u32 s26, (CODE_END - CODE_PC) / 8192')
        A('s_cbranch_scc1 E_pf')
        A('s_lshl_b32 s26, s26, 13')
        A('v_lshlrev_b32 v4, 7, v1')
        A('v_add_u32 v4, s26, v4')
        A('global_load_dword v247, v4, s[24:25]')
        A.label('E_pf', keep=True)
        A.vm = []
    A('s_waitcnt lgkmcnt(0)')
    srd(A, 8, 6, 7, L.WS_BYTES)
    srd(A, 56, 80, 81, 2048 * 896)
    srd(A, 60, 22, 23, 2048 * 896)
    A('s_mov_b64 s[34:35], s[16:17]')
    A('s_mov_b64 s[36:37], s[18:19]')
    A('s_mov_b64 s[64:65], s[20:21]')
    A('s_mov_b64 s[66:67], s[82:83]')
    tl(A, cfg, 's2', 0, 24, 0x1c000)
    A('s_cmp_lg_u32 s13, 0')
    A('s_cbranch_scc1 E_1')
    A('s_mov_b64 exec, 1')
    A('s_or_b32 s98, s98, 1')
    A('v_mov_b32 v240, s98')
    A('v_mov_b32 v241, s99')
    A('v_mov_b32 v242, 0')
    A('v_mov_b32 v243, 0')
    A('global_atomic_cmpswap_x2 v[244:245], v31, v[240:243], s[4:5] offset:16 sc0')
    A('v_mov_b32 v246, 64')
    A(f's_cmp_eq_u32 s12, {XC}')
    A('s_cbranch_scc0 E_0')
    A('v_mov_b32 v246, 1')
    A('global_atomic_add v246, v31, v246, s[4:5] sc0')
    A.label('E_0')
    A('s_mov_b64 exec, -1')
    A.label('E_1')
    A.forget()
    prep2.ln2_issue(A, 's[56:59]')
    A('s_and_b32 s50, s2, 7')
    A('s_lshl_b32 s50, s50, 2')
    A('s_bfe_u32 s51, s2, 0x20003')
    A('s_add_u32 s50, s50, s51')
    A('s_lshr_b32 s51, s2, 5')
    A('s_lshl_b32 s69, s50, 3')
    A('s_add_u32 s3, s69, s51')
    A('s_and_b32 s53, s50, 15')
    A('s_and_b32 s54, s51, 3')
    A('s_lshr_b32 s55, s51, 2')
    A('s_cmp_ge_u32 s50, 16')
    A('s_cbranch_scc1 E_B')
    srd(A, 68, 84, 85, 448 * 8192)
    srd(A, 72, 86, 87, 448 * 8192)
    prep2.item_ab2(A, 0)
    A('s_branch E_2')
    A.label('E_B')
    A.forget()
    srd(A, 68, 88, 89, 448 * 8192)
    srd(A, 72, 90, 91, 4096 * 896)
    prep2.item_ab2(A, 1)
    A.label('E_2')
    A.forget()
    for r in range(4):
        A(f'v_mov_b32 v{12 + r}, -1')
    A('s_lshl_b32 s50, s2, 2')
    A('s_add_u32 s50, s50, s13')
    A('s_mul_i32 s52, s50, 3072')
    A(f's_add_u32 s52, s52, {L.PX}')
    A('s_and_b32 s51, s50, 0x2fc')
    A('s_lshl_b32 s50, s50, 11')
    A(f's_add_u32 s50, s50, {L.MEMA}')
    A('s_cmp_eq_u32 s51, 0')
    A('s_cselect_b32 s50, 0x40000000, s50')
    A(f'buffer_store_dwordx4 v[12:15], {v(G.VLIN)}, {SRD}, s50 offen sc1')
    A(f'buffer_store_dwordx4 v[12:15], {v(G.VLIN)}, {SRD}, s50 offen offset:1024 sc1')
    for k in range(3):
        A(f'buffer_store_dwordx4 v[12:15], {v(G.VLIN)}, {SRD}, s52 offen offset:{k * 1024} sc1')
    A('s_cmp_ge_u32 s2, 2')
    A('s_cbranch_scc1 E_2b')
    A('s_lshl_b32 s39, s2, 2')
    A('s_add_u32 s39, s39, s13')
    A('s_min_u32 s39, s39, 6')
    srd(A, 68, 66, 67, 8 * 896)
    A('s_nop 1')
    prep.wave_mem0(A, 's[68:71]', ' sc1', 32)
    A.label('E_2b')
    A.forget()
    A('s_mov_b32 s75, s77')
    A('s_mov_b32 s76, s78')
    A('s_waitcnt vmcnt(0)')
    tl(A, cfg, 's2', 1, 24, 0x1c000)
    if cfg.get('tl'):
        A('v_mov_b32 v24, s92')
        A(f'buffer_store_dword v24, v25, {SRD}, s101 offen offset:8')
        A('v_mov_b32 v26, s94')
        A(f'buffer_store_dword v26, v25, {SRD}, s101 offen offset:12')
    A('s_cmp_lg_u32 s13, 0')
    A('s_cbranch_scc1 E_3')
    A('s_mov_b64 exec, 1')
    A('v_cmp_eq_u64 vcc, 0, v[244:245]')
    A('v_cndmask_b32 v244, v244, v240, vcc')
    A('v_cndmask_b32 v245, v245, v241, vcc')
    A('ds_write_b64 v28, v[244:245] offset:8')
    A('ds_write_b32 v28, v246')
    A('s_waitcnt lgkmcnt(0)')
    A('s_mov_b64 exec, -1')
    A.label('E_3')
    A('s_barrier')
    A('ds_read_b64 v[26:27], v28 offset:8')
    A('ds_read_b32 v30, v28')
    A('s_waitcnt lgkmcnt(0)')
    A('v_readfirstlane_b32 s96, v26')
    A('v_readfirstlane_b32 s97, v27')
    A('v_readfirstlane_b32 s14, v30')
    A('s_cmp_lg_u32 s13, 0')
    A('s_cbranch_scc1 E_4')
    A('s_mov_b64 exec, 1')
    A(f's_add_u32 s69, s3, {L.F_AB}')
    flag_store(A, 's69')
    A(f's_add_u32 s69, s2, {L.F_LN}')
    flag_store(A, 's69')
    A('s_mov_b64 exec, -1')
    A.label('E_4')
    A.forget()
    A('s_branch CL_got')
    A.label('CLAIM')
    A.forget()
    A('s_cmp_lg_u32 s13, 0')
    A('s_cbranch_scc1 CL_w')
    A('s_mov_b64 exec, 1')
    A('v_mov_b32 v30, 1')
    A('global_atomic_add v30, v31, v30, s[4:5] sc0')
    A('s_waitcnt vmcnt(0)')
    A('ds_write_b32 v28, v30')
    A('s_waitcnt lgkmcnt(0)')
    A('s_mov_b64 exec, -1')
    A.label('CL_w')
    A('s_barrier')
    A('ds_read_b32 v30, v28')
    A('s_waitcnt lgkmcnt(0)')
    A('v_readfirstlane_b32 s14, v30')
    A.label('CL_got')
    A('s_barrier')
    A('v_mov_b32 v29, 32')
    A('s_cmp_ge_u32 s14, 32')
    A('s_cbranch_scc1 W_deq')
    A('s_cmp_lg_u32 s13, 0')
    A('s_cbranch_scc1 CL_r')
    A('s_mov_b64 exec, 1')
    A('s_mul_i32 s38, s12, s12')
    A('s_lshl_b32 s38, s38, 9')
    A('s_add_u32 s38, s38, s12')
    A('s_lshl_b32 s38, s38, 6')
    A('s_add_u32 s38, s38, 1')
    A('v_mov_b32 v30, s38')
    A('global_atomic_add v31, v30, s[4:5] offset:8')
    A('s_mov_b64 exec, -1')
    A.label('CL_r')
    A.forget()
    A('s_cmp_ge_u32 s14, 30')
    A('s_cbranch_scc1 L_roleC')
    A('s_cmp_ge_u32 s14, 16')
    A('s_cbranch_scc1 L_roleB')
    A.raw('CHAIN_BEGIN:')
    chain.emit_A(A, cfg)
    A.label('L_roleB')
    A.forget()
    A('s_sub_u32 s14, s14, 16')
    chain.emit_B(A, cfg)
    A.label('L_roleC')
    A.forget()
    A('s_sub_u32 s14, s14, 30')
    chain.emit_C(A, cfg)
    A.label('L_bail')
    A('s_endpgm')

    def dequeue():
        A('s_lshl_b32 s38, s75, 2')
        A('v_mov_b32 v26, s38')
        A('v_mov_b32 v30, 1')
        A('global_atomic_add v30, v26, v30, s[4:5] offset:128 sc0')

    A.label('W_deq')
    A.forget()
    A('s_cmp_lg_u32 s13, 0')
    A('s_cbranch_scc1 W_f2')
    A('s_mov_b64 exec, 1')
    dequeue()
    A('s_waitcnt vmcnt(0)')
    A('ds_write_b32 v28, v30')
    A('s_waitcnt lgkmcnt(0)')
    A('s_mov_b64 exec, -1')
    A.label('W_f2')
    A('s_barrier')
    A.label('W_next')
    A.forget()
    A('ds_read_b32 v26, v28')
    A('s_waitcnt lgkmcnt(0)')
    A('v_readfirstlane_b32 s68, v26')
    A('s_cmp_eq_u32 s68, -1')
    A('s_cbranch_scc1 W_claim')
    A('s_cmp_eq_u32 s75, 7')
    A('s_cbranch_scc1 W_late')
    c0 = 0
    phases = ((32, 2, 'W_y0', 0), (32, 7, 'W_y', 1), (16, 7, 'W_pk', 0), (56, 1, 'W_pw', 0), (16, 8, 'W_gu', 1), (16, 8, 'W_t1', 1),
              (64, 1, 'W_g2', 1), (16, 8, 'W_t2', 1))
    for ncol, nrow, lab, adv in phases:
        A(f's_add_u32 s70, s75, {(7 - c0 % 7) % 7}')
        A('s_cmp_ge_u32 s70, 7')
        A('s_cselect_b32 s38, 7, 0')
        A('s_sub_u32 s70, s70, s38')
        full, rem = divmod(ncol, 7)
        A(f's_cmp_lt_u32 s70, {rem}')
        A(f's_cselect_b32 s71, {full + 1}, {full}')
        A(f's_cselect_b32 s72, {-(-65536 // (full + 1))}, 0')
        A(f's_cselect_b32 s38, 0, {-(-65536 // full)}')
        A('s_add_u32 s72, s72, s38')
        A(f's_mul_i32 s38, s71, {nrow}')
        A('s_cmp_lt_u32 s68, s38')
        A(f's_cbranch_scc1 {lab}')
        A('s_sub_u32 s68, s68, s38')
        if adv:
            c0 += ncol
    sizes = []
    for x in range(7):
        c0_, tot = 0, 0
        for ncol, nrow, lab, adv in phases:
            f = (x - c0_) % 7
            tot += len(range(f, ncol, 7)) * nrow
            if adv:
                c0_ += ncol
        sizes.append(tot)
    A('v_and_b32 v8, 7, v0')
    A('v_lshlrev_b32 v8, 2, v8')
    A('global_load_dword v9, v8, s[4:5] offset:128 sc1')
    A('v_mov_b32 v10, 0')
    for x in range(7):
        A(f's_mov_b32 s38, {sizes[x]}')
        A(f'v_writelane_b32 v10, s38, {x}')
    A('s_waitcnt vmcnt(0)')
    A('v_cmp_lt_u32 vcc, v9, v10')
    A('s_and_b32 s38, vcc_lo, 0x7f')
    A('s_or_b32 s38, s38, 0x80')
    A('s_ff1_i32_b32 s38, s38')
    A('v_mov_b32 v9, s38')
    A('s_barrier')
    A('s_cmp_lg_u32 s13, 0')
    A('s_cbranch_scc1 W_x1')
    A('ds_write_b32 v28, v9 offset:4')
    A('s_waitcnt lgkmcnt(0)')
    A.label('W_x1')
    A('s_barrier')
    A('ds_read_b32 v9, v28 offset:4')
    A('s_waitcnt lgkmcnt(0)')
    A('v_readfirstlane_b32 s75, v9')
    A('s_branch W_deq')

    def rbct():
        A('s_mul_i32 s73, s68, s72')
        A('s_lshr_b32 s73, s73, 16')
        A('s_mul_i32 s74, s73, s71')
        A('s_sub_u32 s74, s68, s74')
        A('s_mul_i32 s74, s74, 7')
        A('s_add_u32 s74, s74, s70')

    def fw(base, sreg, shift, n, sleep=4):
        A(f's_lshl_b32 s70, {sreg}, {shift}')
        A(f's_add_u32 s70, s70, {base}')
        chain.flag_wait(A, 's70', n, 8, sleep=sleep)

    A.label('W_y0')
    A.forget()
    rbct()
    A('s_lshl_b32 s39, s73, 5')
    A('s_add_u32 s39, s39, s74')
    A(f's_add_u32 s69, s39, {L.F_Y0}')
    tl(A, cfg, 's69', 0, 24)
    fw(L.F_LN, 's73', 4, 16)
    fw(L.F_AB + 128, 's74', 2, 4)
    I.item_y0(A)
    chain.dbgmax(A, cfg, 14, 24, ('s39', 40))
    A('s_branch W_end')
    A.label('W_t2')
    A('s_add_u32 s70, s70, 16')
    for lab, kind, sh, fb, add in (('W_t1', 'T', 5, L.F_T, 0), ('W_y', 'Y', 5, L.F_Y, 1), ('W_gu', 'GU', 4, L.F_GU, 0)):
        A.label(lab)
        A.forget()
        rbct()
        if add:
            A(f's_add_u32 s73, s73, {add}')
        A(f's_lshl_b32 s39, s73, {sh}')
        A('s_add_u32 s39, s39, s74')
        A(f's_add_u32 s69, s39, {fb}')
        tl(A, cfg, 's69', 0, 24)
        if kind == 'Y' and cfg.get('yield', 2) < 8:
            A(f's_cmp_lt_u32 s73, {cfg.get("yield", 2)}')
            A('s_cbranch_scc1 W_ny')
            A('s_cmp_lg_u32 s13, 0')
            A('s_cbranch_scc1 W_ny2')
            chain.soft_wait(A, L.F_INIT, 30, 8, cfg.get('ypolls', 7), 24)
            A.label('W_ny2', keep=True)
            A('s_barrier')
            A.label('W_ny', keep=True)
        fw(L.F_LN, 's73', 5, 32)
        if kind == 'GU':
            A('s_mul_i32 s74, s74, 7')
            fw(L.F_PK, 's74', 0, 7)
        else:
            fw(L.F_AB + (128 if kind == 'Y' else 0), 's74', 2, 4)
        I.item_gemm1(A, kind)
        if kind == 'Y' and cfg.get('rest', 0):
            A('s_lshr_b32 s38, s2, 3')
            A(f's_and_b32 s38, s38, 7')
            A(f's_cmp_lt_u32 s38, {cfg["rest"]}')
            A('s_cselect_b32 s75, 7, s75')
        A('s_branch W_end')
    A.label('W_pk')
    A.forget()
    rbct()
    A('s_mul_i32 s74, s74, 7')
    A('s_add_u32 s74, s74, s73')
    A(f's_add_u32 s43, s74, {L.F_PK}')
    A('s_lshl_b32 s39, s74, 2')
    A('s_add_u32 s39, s39, s13')
    A('s_mov_b64 s[46:47], s[74:75]')
    srd(A, 68, 34, 35, 448 * 3584)
    srd(A, 72, 36, 37, 448 * 3584)
    prep.wave_pack(A, 'GU', 7, ' sc1')
    A('s_mov_b64 s[74:75], s[46:47]')
    A('s_mov_b32 s69, s43')
    A('s_barrier')
    A('s_branch W_end')
    A.label('W_pw')
    A.forget()
    rbct()
    A(f's_add_u32 s43, s74, {L.F_PK + 112}')
    A('s_lshl_b32 s39, s74, 2')
    A('s_add_u32 s39, s39, s13')
    srd(A, 68, 64, 65, 1792 * 896)
    prep.wave_pack(A, 'WD', 7, ' sc1', 's[68:71]')
    A('s_mov_b32 s69, s43')
    A('s_barrier')
    A('s_branch W_end')
    A.label('W_g2')
    A.forget()
    rbct()
    A('s_mov_b32 s39, s74')
    A(f's_add_u32 s69, s39, {L.F_G2}')
    tl(A, cfg, 's69', 0, 24)
    chain.flag_wait(A, L.F_PK + 112, 56, 8, sleep=8)
    A('s_lshr_b32 s70, s39, 3')
    A('s_lshl_b32 s70, s70, 4')
    A('s_and_b32 s38, s39, 1')
    A('s_lshl_b32 s38, s38, 3')
    A('s_add_u32 s70, s70, s38')
    A(f's_add_u32 s70, s70, {L.F_GU}')
    chain.flag_wait(A, 's70', 8, 8, sleep=16)
    I.item_gemm2(A)
    chain.dbgmax(A, cfg, 15, 24, ('s39', 60))
    A('s_branch W_end')
    A.label('W_late')
    A.forget()
    LAG = cfg.get('lag', 5)
    A('s_cmp_eq_u32 s78, 0')
    A('s_cbranch_scc1 W_l2')
    chain.flag_wait_multi(A, [L.F_LN, L.F_LN + 64, L.F_LN + 128, L.F_LN + 192], 8)
    A('s_mov_b32 s78, 0')
    A.label('W_l2')
    A.forget()
    A(f's_cmp_ge_u32 s68, {(64 + LAG) * 11}')
    A('s_cbranch_scc1 L_bail')
    A('s_mul_hi_u32 s71, s68, 0x1745d175')
    A('s_mul_i32 s38, s71, 11')
    A('s_sub_u32 s72, s68, s38')
    A('s_cmp_ge_u32 s72, 4')
    A('s_cbranch_scc1 W_pv')
    A('s_cmp_ge_u32 s71, 64')
    A('s_cbranch_scc1 W_skip')
    A('s_lshl_b32 s39, s71, 2')
    A('s_add_u32 s39, s39, s72')
    A(f's_add_u32 s69, s39, {L.F_P}')
    tl(A, cfg, 's69', 0, 24)
    A('s_lshr_b32 s70, s71, 3')
    A('s_lshl_b32 s70, s70, 5')
    A('s_lshl_b32 s38, s72, 3')
    A('s_add_u32 s70, s70, s38')
    A(f's_add_u32 s70, s70, {L.F_T}')
    chain.flag_wait(A, 's70', 8, 8, sleep=16)
    def early_deq2(A):
        A('s_cmp_lg_u32 s13, 0')
        A('s_cbranch_scc1 W_ed2')
        A('s_mov_b64 exec, 1')
        dequeue()
        A('s_mov_b64 exec, -1')
        A.label('W_ed2', keep=True)
    I.item_punit(A, hook=early_deq2)
    A.forget()
    A('s_waitcnt vmcnt(3)')
    A('s_branch W_nf')
    A.label('W_skip')
    A('s_barrier')
    A('s_branch W_deq')
    A.label('W_pv')
    A.forget()
    A(f's_cmp_lt_u32 s71, {LAG}')
    A('s_cbranch_scc1 W_skip')
    A(f's_sub_u32 s71, s71, {LAG}')
    A('s_mul_i32 s39, s71, 7')
    A('s_add_u32 s39, s39, s72')
    A('s_sub_u32 s39, s39, 4')
    A(f's_add_u32 s69, s39, {L.F_PV}')
    tl(A, cfg, 's69', 0, 24)
    A('s_lshr_b32 s70, s71, 3')
    A('s_lshl_b32 s70, s70, 5')
    A('s_lshr_b32 s38, s71, 2')
    A('s_lshl_b32 s38, s38, 5')
    A(f's_add_u32 s38, s38, {L.F_Y0}')
    A('s_cmp_lt_u32 s71, 8')
    A('s_cselect_b32 s70, s38, s70')
    chain.flag_wait(A, 's70', 32, 8, sleep=16)
    A('s_lshr_b32 s70, s71, 2')
    A('s_lshl_b32 s70, s70, 2')
    A(f's_add_u32 s70, s70, {L.F_G2}')
    chain.flag_wait(A, 's70', 4, 8, sleep=16)

    def wait_px(A):
        I.approach(A, 's71', 12, 0)
        A('s_cmp_ge_u32 s71, 62')
        A('s_cbranch_scc1 W_ymf')
        A('s_add_u32 s38, s71, 2')
        A('s_lshl_b32 s38, s38, 13')
        A('s_lshl_b32 s70, s54, 9')
        A('s_add_u32 s38, s38, s70')
        A(f's_add_u32 s38, s38, {L.MEMX}')
        A('v_mov_b32 v12, 0')
        A.label('W_ymp', keep=True)
        I.guard(A)
        A(f'buffer_load_dword v13, v12, {SRD}, s38 offen sc1')
        A('s_waitcnt vmcnt(0)')
        A('v_cmp_eq_u32 vcc, -1, v13')
        A('s_cbranch_vccz W_ymok')
        A('s_sleep 16')
        A('s_branch W_ymp')
        A.label('W_ymf', keep=True)
        chain.flag_wait(A, 's43', 2, 12, sleep=4)
        A.label('W_ymok', keep=True)
    def early_deq(A):
        A('s_cmp_lg_u32 s13, 0')
        A('s_cbranch_scc1 W_ed')
        A('s_mov_b64 exec, 1')
        dequeue()
        A('s_mov_b64 exec, -1')
        A.label('W_ed', keep=True)
    I.item_pvunit(A, wait_px, hook=early_deq)
    A.forget()
    chain.dbgmax(A, cfg, 13, 24, ('s39', 447))
    A.label('W_nf')
    tl(A, cfg, 's69', 1, 24)
    A('s_cmp_lg_u32 s13, 0')
    A('s_cbranch_scc1 W_e2')
    A('s_mov_b64 exec, 1')
    A('ds_write_b32 v28, v30')
    A('s_mov_b64 exec, -1')
    A('s_waitcnt lgkmcnt(0)')
    A('s_barrier')
    A('s_branch W_next')
    A.label('W_end')
    A.forget()
    A('s_cmp_lg_u32 s13, 0')
    A('s_cbranch_scc1 W_e1')
    A('v_readfirstlane_b32 s38, v29')
    A('v_mov_b32 v30, -1')
    A('s_cmp_lt_u32 s38, 32')
    A('s_cbranch_scc1 W_e1')
    A('s_mov_b64 exec, 1')
    dequeue()
    A('s_mov_b64 exec, -1')
    A('global_load_dword v29, v31, s[4:5] sc1')
    A.label('W_e1')
    A('s_waitcnt vmcnt(0)')
    tl(A, cfg, 's69', 1, 24)
    A('s_cmp_lg_u32 s13, 0')
    A('s_cbranch_scc1 W_e2')
    A('s_mov_b64 exec, 1')
    A('ds_write_b32 v28, v30')
    A('s_waitcnt lgkmcnt(0)')
    A('s_barrier')
    flag_store(A, 's69')
    A('s_mov_b64 exec, -1')
    A('s_branch W_next')
    A.label('W_e2')
    A('s_barrier')
    A('s_branch W_next')
    A.label('W_claim')
    A('s_barrier')
    A('s_branch CLAIM')


def build(cfg):
    cfg = dict(cfg)
    cfg['fused'] = 1
    I.CFG.update(cfg)
    prep2.CFG.update(cfg)
    A = Asm()
    cfg.setdefault('ntouch', 4)
    if cfg.get('aslist'):
        A.raw(f'; @launch kernel={NAME} grid=(256,1,1) block=(256,1,1) lds=151552')
    else:
        A.raw('; @launch grid=(256,1,1) block=(256,1,1) lds=151552')
    A.raw('.amdgcn_target "amdgcn-amd-amdhsa--gfx950"\n.text')
    A.raw(f'.globl {NAME}\n.p2align 8\n.type {NAME},@function')
    A.label(NAME)
    emit_main(A, cfg)
    A.raw('CODE_END:')
    A.raw('.section .rodata,"a"')
    A.raw('.p2align 6')
    A.raw(KD.format(name=NAME))
    return A.text()


if __name__ == '__main__':
    cfg = {}
    for kv in sys.argv[2:]:
        k, val = kv.split('=')
        cfg[k] = int(val)
    open(sys.argv[1], 'w').write(build(cfg))
```

```python
from asmdsl import v, a, s
import layout as L

SRD = 's[8:11]'
NSTEP = 63


def stamp(A, cfg, slot):
    if cfg.get('stamps'):
        A(f's_memtime s[{40 + 2 * slot}:{41 + 2 * slot}]')


def rstamp(A, cfg, slot):
    if cfg.get('stamps'):
        A(f's_memrealtime s[{40 + 2 * slot}:{41 + 2 * slot}]')


def stamp_flush(A, cfg, nslots, base_sreg, vt):
    if not cfg.get('stamps'):
        return
    A('s_waitcnt lgkmcnt(0)')
    for k in range(nslots):
        A(f'v_mov_b32 {v(vt)}, s{40 + 2 * k}')
        A(f'v_mov_b32 {v(vt + 1)}, 0')
        A(f'buffer_store_dword {v(vt)}, {v(vt + 1)}, {SRD}, s{base_sreg} offen offset:{4 * k}')
    A(f's_add_u32 s{base_sreg}, s{base_sreg}, 64')


def guard(A):
    A('s_add_u32 s33, s33, 1')
    A('s_cmp_gt_u32 s33, 0x200000')
    A('s_cbranch_scc1 L_bail')


def tl(A, cfg, idx_sreg_or_int, slot, vt, base=0):
    if not cfg.get('tl'):
        return
    A('s_memrealtime s[100:101]')
    A('s_waitcnt lgkmcnt(0)')
    A(f'v_mov_b32 {v(vt)}, s100')
    A(f'v_mov_b32 {v(vt + 1)}, 0')
    if isinstance(idx_sreg_or_int, int):
        A(f's_mov_b32 s101, {L.STAMP + base + idx_sreg_or_int * 16}')
    else:
        A(f's_lshl_b32 s101, {idx_sreg_or_int}, 4')
        A(f's_add_u32 s101, s101, {L.STAMP + base}')
    A(f'buffer_store_dword {v(vt)}, {v(vt + 1)}, {SRD}, s101 offen offset:{slot * 4}')


def dbgmax(A, cfg, word, vt, sel=('s14', 13)):
    if not cfg.get('dbg'):
        return
    sk = A.newlabel('DM')
    A(f's_cmp_lg_u32 {sel[0]}, {sel[1]}')
    A(f's_cbranch_scc1 {sk}')
    A('s_cmp_lg_u32 s13, 3')
    A(f's_cbranch_scc1 {sk}')
    A('s_memrealtime s[100:101]')
    A('s_waitcnt lgkmcnt(0)')
    A('s_sub_u32 s100, s100, s96')
    A(f'v_mov_b32 {v(vt)}, s100')
    A(f'v_mov_b32 {v(vt + 1)}, 0')
    A(f'global_store_dword {v(vt + 1)}, {v(vt)}, s[4:5] offset:{4 * word}')
    A.label(sk, keep=True)


def flag_wait(A, first, n, vt, sleep=8):
    A(f'v_and_b32 {v(vt)}, 63, v0')
    A(f'v_min_u32 {v(vt)}, {n - 1}, {v(vt)}')
    A(f'v_lshlrev_b32 {v(vt)}, 3, {v(vt)}')
    if isinstance(first, int):
        A(f's_mov_b32 s38, {L.FLAGS + 8 * first}')
    else:
        A(f's_lshl_b32 s38, {first}, 3')
        A(f's_add_u32 s38, s38, {L.FLAGS}')
    lab, ok = A.newlabel('FW'), A.newlabel('FWok')
    A.label(lab, keep=True)
    guard(A)
    A(f'buffer_load_dwordx2 {v(vt + 2, 2)}, {v(vt)}, {SRD}, s38 offen sc1')
    A('s_waitcnt vmcnt(0)')
    A(f'v_cmp_ne_u64 vcc, s[96:97], {v(vt + 2, 2)}')
    A(f's_cbranch_vccz {ok}')
    A(f's_sleep {sleep}')
    A(f's_branch {lab}')
    A.label(ok, keep=True)


def flag_wait_multi(A, firsts, vt, sleep=4):
    A(f'v_and_b32 {v(vt)}, 63, v0')
    A(f'v_lshlrev_b32 {v(vt)}, 3, {v(vt)}')
    lab, ok = A.newlabel('FM'), A.newlabel('FMok')
    A.label(lab, keep=True)
    guard(A)
    for i, f in enumerate(firsts):
        A(f's_mov_b32 s38, {L.FLAGS + 8 * f}')
        A(f'buffer_load_dwordx2 {v(vt + 2 + 2 * i, 2)}, {v(vt)}, {SRD}, s38 offen sc1')
    A('s_waitcnt vmcnt(0)')
    A('s_mov_b64 s[40:41], 0')
    for i in range(len(firsts)):
        A(f'v_cmp_ne_u64 vcc, s[96:97], {v(vt + 2 + 2 * i, 2)}')
        A('s_or_b64 s[40:41], s[40:41], vcc')
    A(f's_cbranch_scc0 {ok}')
    A(f's_sleep {sleep}')
    A(f's_branch {lab}')
    A.label(ok, keep=True)


def loaded_flag(A, cfg, add, vt):
    if not cfg.get('fused'):
        return
    sk = A.newlabel('LF')
    A('s_cmp_lg_u32 s13, 3')
    A(f's_cbranch_scc1 {sk}')
    A(f's_add_u32 s38, s14, {L.F_INIT + add}')
    A('s_lshl_b32 s38, s38, 3')
    A(f's_add_u32 s38, s38, {L.FLAGS}')
    A(f'v_mov_b32 {v(vt)}, s96')
    A(f'v_mov_b32 {v(vt + 1)}, s97')
    A(f'v_mov_b32 {v(vt + 2)}, 0')
    A('s_mov_b64 exec, 1')
    A(f'buffer_store_dwordx2 {v(vt, 2)}, {v(vt + 2)}, {SRD}, s38 offen sc1')
    A('s_mov_b64 exec, -1')
    A.label(sk, keep=True)


def soft_wait(A, first, n, vt, maxpolls, sleep):
    A(f'v_and_b32 {v(vt)}, 63, v0')
    A(f'v_min_u32 {v(vt)}, {n - 1}, {v(vt)}')
    A(f'v_lshlrev_b32 {v(vt)}, 3, {v(vt)}')
    A(f's_mov_b32 s38, {L.FLAGS + 8 * first}')
    A(f's_mov_b32 s40, {maxpolls}')
    lab, ok = A.newlabel('SW'), A.newlabel('SWok')
    A.label(lab, keep=True)
    A(f'buffer_load_dwordx2 {v(vt + 2, 2)}, {v(vt)}, {SRD}, s38 offen sc1')
    A('s_waitcnt vmcnt(0)')
    A(f'v_cmp_ne_u64 vcc, s[96:97], {v(vt + 2, 2)}')
    A(f's_cbranch_vccz {ok}')
    A(f's_sleep {sleep}')
    A('s_sub_u32 s40, s40, 1')
    A('s_cmp_lg_u32 s40, 0')
    A(f's_cbranch_scc1 {lab}')
    A.label(ok, keep=True)


def fill_share(A, base, kb_per_wave, widx_sreg, vt, vlin):
    for r in range(4):
        A(f'v_mov_b32 {v(vt + r)}, -1')
    A(f's_mul_i32 s38, {widx_sreg}, {kb_per_wave * 1024}')
    A(f's_add_u32 s38, s38, {base}')
    for k in range(kb_per_wave):
        if k and k % 4 == 0:
            A('s_add_u32 s38, s38, 4096')
        A(f'buffer_store_dwordx4 {v(vt, 4)}, {v(vlin)}, {SRD}, s38 offen offset:{(k & 3) * 1024} sc1')


def start_gate(A, cfg, vt, ranges=None):
    if not cfg.get('fused'):
        A('s_mov_b32 s12, 0')
        return
    firsts = ranges or [L.F_Y0, L.F_LN, L.F_LN + 64, L.F_LN + 128, L.F_LN + 192]
    A(f'v_and_b32 {v(vt)}, 63, v0')
    A(f'v_lshlrev_b32 {v(vt)}, 3, {v(vt)}')
    A(f'v_mov_b32 {v(vt + 1)}, 0')
    lab, ok, again = A.newlabel('SG'), A.newlabel('SGok'), A.newlabel('SGa')
    A.label(lab, keep=True)
    guard(A)
    for i, f in enumerate(firsts):
        A(f's_mov_b32 s38, {L.FLAGS + 8 * f}')
        A(f'buffer_load_dwordx2 {v(vt + 2 + 2 * i, 2)}, {v(vt)}, {SRD}, s38 offen sc1')
    A(f'global_load_dword {v(vt + 14)}, {v(vt + 1)}, s[4:5] offset:8 sc1')
    A('s_waitcnt vmcnt(0)')
    A(f'v_readfirstlane_b32 s12, {v(vt + 14)}')
    A('s_mov_b64 s[40:41], 0')
    for i in range(len(firsts)):
        A(f'v_cmp_ne_u64 vcc, s[96:97], {v(vt + 2 + 2 * i, 2)}')
        A('s_or_b64 s[40:41], s[40:41], vcc')
    A(f's_cbranch_scc1 {again}')
    A('s_and_b32 s38, s12, 63')
    A('s_cmp_ge_u32 s38, 32')
    A(f's_cbranch_scc1 {ok}')
    A.label(again, keep=True)
    A('s_sleep 3')
    A(f's_branch {lab}')
    A.label(ok, keep=True)
    A('s_bfe_u32 s38, s12, 0x90006')
    A('s_mul_i32 s38, s38, s38')
    A('s_lshr_b32 s12, s12, 15')
    A('s_lshl_b32 s12, s12, 5')
    A('s_cmp_lg_u32 s12, s38')
    A('s_cselect_b32 s12, 1, 0')


def mid_gate(A, cfg, vt, vfl):
    if not cfg.get('fused'):
        return
    skip = A.newlabel('MG')
    A('s_cmp_ge_u32 s39, 0x40000000')
    A(f's_cbranch_scc1 {skip}')
    A('s_waitcnt vmcnt(0)')
    A(f'v_cmp_ne_u64 vcc, s[96:97], {v(vfl, 2)}')
    A(f's_cbranch_vccz {skip}')
    A(f's_sub_u32 s39, s39, {L.FLAGS}')
    A('s_lshr_b32 s39, s39, 3')
    flag_wait(A, 's39', 32, vt, sleep=2)
    A.label(skip, keep=True)


def gate_prep(A, cfg):
    if not cfg.get('fused'):
        A('s_mov_b32 s39, 0x40000000')
        return
    A('s_lshr_b32 s39, s15, 3')
    A('s_add_u32 s39, s39, 1')
    A('s_min_u32 s39, s39, 7')
    A('s_lshl_b32 s39, s39, 8')
    A(f's_add_u32 s39, s39, {L.FLAGS}')
    A('s_and_b32 s38, s15, 7')
    A('s_lshl_b32 s38, s38, 8')
    A('s_add_u32 s38, s38, s31')
    A(f's_cmp_eq_u32 s38, {((6 - cfg.get("pfdist", 2)) << 8) + 3}')
    A('s_cselect_b32 s39, s39, 0x40000000')


def dual_prep(A, sreg, sfast, sslow):
    A('s_cmp_eq_u32 s12, 0')
    A(f's_cselect_b32 {sfast}, {sreg}, 0x40000000')
    A(f's_cselect_b32 {sslow}, 0x40000000, {sreg}')


def dual_store(A, fmt, sfast, sslow):
    A(fmt.format(s=sfast))
    A(fmt.format(s=sslow) + ' sc1')


def flush_deferred(A):
    for slow, text, done in A.deferred:
        A.label(slow)
        A.raw('    ' + text)
        A.raw(f'    s_branch {done}')
    A.deferred = []


def align(A, cfg, key, default=0):
    n = cfg.get(key, default)
    if n < 0:
        return
    A.raw('    .p2align 6')
    for _ in range(n // 4):
        A.raw('    s_nop 0')


def WFL(cfg):
    return {0: ' sc1', 1: ' sc1 nt'}[cfg.get('wnt', 0)]


def dump_cnt(A, cfg, add, vt, regs):
    if not cfg.get('cnt'):
        return
    A(f's_add_u32 s38, s14, {add}')
    A('s_lshl_b32 s38, s38, 2')
    A('s_add_u32 s38, s38, s13')
    A('s_lshl_b32 s38, s38, 4')
    A(f's_add_u32 s38, s38, {L.STAMP + 0x30000}')
    A(f'v_mov_b32 {v(vt + 1)}, 0')
    for i, r in enumerate(regs):
        A(f'v_mov_b32 {v(vt)}, {r}')
        A(f'buffer_store_dword {v(vt)}, {v(vt + 1)}, {SRD}, s38 offen offset:{4 * i}')


def lane_fields(A, vl):
    A(f'v_and_b32 {v(vl)}, 63, v0')


def emit_koffs(A):
    A('s_lshl_b32 s23, s13, 1')
    for k in range(7):
        A(f's_add_u32 s{16 + k}, s23, {k}')
        A(f's_cmp_ge_u32 s{16 + k}, 7')
        A(f's_cselect_b32 s24, 7, 0')
        A(f's_sub_u32 s{16 + k}, s{16 + k}, s24')
        A(f's_lshl_b32 s{16 + k}, s{16 + k}, 10')


def warm_vm(A, n, vw, cfg):
    if cfg.get('nowarm'):
        A(f's_waitcnt vmcnt({n})')
        return
    lab = A.newlabel('W')
    A.label(lab, keep=True)
    A(f'v_mov_b32 {v(vw)}, {v(vw)}')
    A(f's_getreg_b32 s38, hwreg(HW_REG_IB_STS, 0, 4)')
    A(f's_cmp_gt_u32 s38, {n}')
    A(f'v_mov_b32 {v(vw)}, {v(vw)}')
    A(f's_cbranch_scc1 {lab}')
    A(f's_waitcnt vmcnt({n})')


def keepalive(A, vw, n, cfg):
    if cfg.get('nowarm'):
        return
    if n > 1:
        A.comment('keep the VALU active while data is in flight (an idle VALU restarts throttled) / space the polls')
    for _ in range(n):
        A(f'v_mov_b32 {v(vw)}, {v(vw)}')


def warm_mfma(A, base, cfg):
    if cfg.get('nowarm'):
        return
    A(f'v_mfma_f32_32x32x16_bf16 {v(base, 16)}, {v(base + 16, 4)}, {v(base + 16, 4)}, {v(base, 16)}')


def check_regs(A, tmp, regs, autowait=True):
    E = A.auto if autowait else A
    E(f'v_max3_u32 {v(tmp)}, {v(regs[0])}, {v(regs[1])}, {v(regs[2])}')
    i = 3
    while i + 1 < len(regs):
        E(f'v_max3_u32 {v(tmp)}, {v(tmp)}, {v(regs[i])}, {v(regs[i + 1])}')
        i += 2
    if i < len(regs):
        E(f'v_max_u32 {v(tmp)}, {v(tmp)}, {v(regs[i])}')
    A(f'v_cmp_eq_u32 vcc, -1, {v(tmp)}')


def sparse_idx(A, vIDX, vL, t2, t3):
    A(f'v_and_b32 {v(t2)}, 8, {v(vL)}')
    A(f'v_cmp_ne_u32 vcc, 0, {v(t2)}')
    A(f'v_mov_b32 {v(t2)}, 0x4444')
    A(f'v_mov_b32 {v(t3)}, 0xeeee')
    A(f'v_cndmask_b32 {v(vIDX)}, {v(t2)}, {v(t3)}, vcc')


def emit_A(A, cfg):
    W5 = 0x0000
    MIMG = 0xE000
    TIMG = 0x10000
    SIMG = 0x14800
    QS = cfg.get('qs', 160)
    vL, vIDX, vMA, vMKa, vMKb, vMK3, vW5, vXK, vXK3, vTW, vTW6, vTR, vTR3, vSW, vSR, vPS, vPF = range(1, 18)
    vM = lambda k: 18 + k
    vSW2 = 25
    vT0 = 26
    M = lambda k: 32 + 4 * k
    ACC = lambda n: 60 + 4 * n
    WS5 = lambda b: 88 + 8 * b
    XK = lambda q, t: 112 + 8 * q + 4 * t
    XK3 = lambda t: 136 + 2 * t
    PSET = lambda r: 140 + 8 * r
    MK = lambda q: 140 + 4 * q
    TB = lambda q: (ACC(2 * q) if q < 3 else ACC(6) + 2)
    SACC = lambda t: 156 + 4 * t
    vDUM = 168
    vFL, vFA = 170, 172
    LT = 1
    PORD = [1, 2, 0]
    regtiles = [0, 2, 3, 4, 5, 6]

    def W(n, k):
        i = regtiles.index(n) * 7 + k
        return a(8 * i, 8) if i < 32 else v(176 + 8 * (i - 32), 8)

    def Whalf(n, k, eh):
        i = regtiles.index(n) * 7 + k
        return a(8 * i + 4 * eh, 4) if i < 32 else v(176 + 8 * (i - 32) + 4 * eh, 4)

    t0, t1, t2, t3 = vT0, vT0 + 1, vT0 + 2, vT0 + 3
    A.pipe_model = bool(cfg.get('pipe', 1))
    tl(A, cfg, 's14', 0, 30, 0x18000)
    lane_fields(A, vL)
    emit_koffs(A)
    A(f'v_and_b32 {v(t0)}, 15, {v(vL)}')
    A(f'v_lshrrev_b32 {v(t1)}, 4, {v(vL)}')
    sparse_idx(A, vIDX, vL, t2, t3)
    A(f'v_lshlrev_b32 {v(t2)}, 9, {v(t1)}')
    A(f'v_lshl_add_u32 {v(vPF)}, {v(t0)}, 4, {v(t2)}')
    if cfg.get('fused'):
        A('s_lshl_b32 s23, s14, 3')
        A('s_lshr_b32 s24, s13, 1')
        A('s_lshl_b32 s24, s24, 2')
        A('s_add_u32 s23, s23, s24')
        A(f's_add_u32 s23, s23, {L.F_AB}')
        flag_wait(A, 's23', 4, 32, sleep=2)
    A(f's_mul_i32 s25, s14, {14 * 28672}')
    A(f's_add_u32 s25, s25, {L.WF + L.NB_A * 28672}')
    A(f's_mul_i32 s26, s13, 7')
    A(f's_mul_i32 s28, s13, 14336')
    cnt = 0
    for n in range(7):
        A(f's_add_u32 s23, s26, {n}')
        A(f's_lshr_b32 s24, s23, 1')
        A(f's_mul_i32 s24, s24, 28672')
        A(f's_and_b32 s23, s23, 1')
        A(f's_lshl_b32 s23, s23, 8')
        A(f's_add_u32 s27, s25, s24')
        A(f's_add_u32 s27, s27, s23')
        for k in range(7):
            A(f's_lshl_b32 s23, s{16 + k}, 2')
            A(f's_add_u32 s23, s23, s27')
            for eh in range(2):
                if n == LT:
                    A(f's_add_u32 s24, s28, {W5 + (k * 2 + eh) * 1024}')
                    A(f's_mov_b32 m0, s24')
                    if eh:
                        A(f's_add_u32 s23, s23, 2048')
                    A(f'buffer_load_dwordx4 {v(vPF)}, {SRD}, s23 offen{WFL(cfg)} lds')
                else:
                    A(f'buffer_load_dwordx4 {Whalf(n, k, eh)}, {v(vPF)}, {SRD}, s23 offen offset:{2048 * eh}{WFL(cfg)}')
                cnt += 1
                if cnt % 16 == 0:
                    A(f's_waitcnt vmcnt({cfg.get("wdepth", 40)})')
    A(f'v_lshlrev_b32 {v(vMA)}, 4, {v(vL)}')
    A(f'v_add_u32 {v(vW5)}, s28, {v(vMA)}')
    for k in range(7):
        A(f's_add_u32 s23, s{16 + k}, {MIMG}')
        A(f'v_add_u32 {v(vM(k))}, s23, {v(vMA)}')
    A(f'v_add_u32 {v(vMA)}, {L.MEMA}, {v(vMA)}')
    A(f'v_and_b32 {v(t2)}, 7, {v(vL)}')
    A(f'v_lshlrev_b32 {v(t2)}, 4, {v(t2)}')
    A(f's_mul_i32 s23, s13, {7 * 256}')
    A(f's_add_u32 s23, s23, {MIMG}')
    A(f'v_lshrrev_b32 {v(t3)}, 1, {v(t1)}')
    A(f'v_lshl_add_u32 {v(vMKa)}, {v(t3)}, 8, {v(t2)}')
    A(f'v_and_b32 {v(t3)}, 1, {v(t1)}')
    A(f'v_lshl_add_u32 {v(vMKa)}, {v(t3)}, 3, {v(vMKa)}')
    A(f'v_add_u32 {v(vMKa)}, s23, {v(vMKa)}')
    A(f'v_add_u32 {v(vMKb)}, 1024, {v(vMKa)}')
    A(f'v_lshl_add_u32 {v(vMK3)}, {v(t1)}, 2, {v(t2)}')
    A(f's_add_u32 s23, s23, {6 * 256}')
    A(f'v_add_u32 {v(vMK3)}, s23, {v(vMK3)}')
    A(f'v_and_b32 {v(t2)}, 6, {v(t0)}')
    A(f'v_lshlrev_b32 {v(t2)}, 1, {v(t2)}')
    A(f'v_lshrrev_b32 {v(t3)}, 3, {v(t0)}')
    A(f'v_lshl_add_u32 {v(t2)}, {v(t3)}, 1, {v(t2)}')
    A(f'v_and_b32 {v(t3)}, 1, {v(t0)}')
    A(f'v_add_u32 {v(t2)}, {v(t3)}, {v(t2)}')
    A(f'v_lshlrev_b32 {v(t2)}, 4, {v(t2)}')
    A(f'v_lshl_add_u32 {v(vXK)}, {v(t1)}, 9, {v(t2)}')
    A(f'v_lshrrev_b32 {v(t3)}, 1, {v(t1)}')
    A(f'v_lshl_add_u32 {v(vXK3)}, {v(t3)}, 9, {v(t2)}')
    A(f'v_and_b32 {v(t3)}, 1, {v(t1)}')
    A(f'v_lshl_add_u32 {v(vXK3)}, {v(t3)}, 3, {v(vXK3)}')
    A(f'v_add_u32 {v(vXK3)}, {6 * 1024}, {v(vXK3)}')
    A(f's_lshl_b32 s30, s13, 11')
    A(f's_mul_i32 s23, s13, 4352')
    A(f's_add_u32 s23, s23, {TIMG}')
    def plane(dst, src, tmp):
        A(f'v_lshlrev_b32 {v(dst)}, 10, {v(src)}')
        A(f'v_and_b32 {v(tmp)}, 1, {v(src)}')
        A(f'v_lshl_add_u32 {v(dst)}, {v(tmp)}, 5, {v(dst)}')
        A(f'v_lshrrev_b32 {v(tmp)}, 1, {v(src)}')
        A(f'v_lshl_add_u32 {v(dst)}, {v(tmp)}, 7, {v(dst)}')
    plane(t2, t1, t3)
    A(f'v_lshl_add_u32 {v(vTW)}, {v(t0)}, 3, {v(t2)}')
    A(f'v_add_u32 {v(vTW)}, s23, {v(vTW)}')
    A(f'v_and_b32 {v(vTR)}, 3, {v(vL)}')
    plane(t2, vTR, t3)
    A(f'v_bfe_u32 {v(t3)}, {v(vL)}, 2, 2')
    A(f'v_lshl_add_u32 {v(t2)}, {v(t3)}, 3, {v(t2)}')
    A(f'v_lshl_add_u32 {v(vTR)}, {v(t1)}, 6, {v(t2)}')
    A(f'v_add_u32 {v(vTR)}, s23, {v(vTR)}')
    A(f'v_lshl_add_u32 {v(vTR3)}, {v(t1)}, 5, {v(t2)}')
    A(f'v_add_u32 {v(vTR3)}, {96 * 8}, {v(vTR3)}')
    A(f'v_add_u32 {v(vTR3)}, s23, {v(vTR3)}')
    A(f's_add_u32 s23, s30, {SIMG}')
    A(f'v_lshrrev_b32 {v(t3)}, 3, {v(t0)}')
    A(f'v_lshl_add_u32 {v(t2)}, {v(t3)}, 2, {v(t1)}')
    A(f'v_mul_u32_u24 {v(t2)}, {QS}, {v(t2)}')
    A(f'v_and_b32 {v(vSW2)}, 7, {v(t0)}')
    A(f'v_lshl_add_u32 {v(vSW)}, {v(vSW2)}, 4, {v(t2)}')
    A(f'v_add_u32 {v(vSW)}, s23, {v(vSW)}')
    A(f'v_lshlrev_b32 {v(vSW2)}, 4, {v(vSW2)}')
    A(f'v_lshl_add_u32 {v(vSW2)}, {v(t3)}, 3, {v(vSW2)}')
    A(f'v_add_u32 {v(t2)}, 8, {v(t1)}')
    A(f'v_mul_u32_u24 {v(t2)}, {QS}, {v(t2)}')
    A(f'v_add3_u32 {v(vSW2)}, {v(vSW2)}, {v(t2)}, s23')
    A('s_mov_b32 s36, 0xff00ff00')
    A('s_mov_b32 s37, 0xff00ff00')
    A(f'v_mov_b32 {v(t3)}, 12')
    A(f'v_cmp_gt_u32 vcc, 10, {v(t0)}')
    A(f'v_cndmask_b32 {v(t2)}, {v(t3)}, {v(t0)}, vcc')
    A(f'v_mul_u32_u24 {v(t2)}, {QS}, {v(t2)}')
    A(f's_lshl_b32 s23, s13, 2')
    A(f'v_add_u32 {v(t3)}, s23, {v(t1)}')
    A(f'v_and_b32 {v(t3)}, 7, {v(t3)}')
    A(f'v_lshl_add_u32 {v(vSR)}, {v(t3)}, 4, {v(t2)}')
    A(f'v_add_u32 {v(vSR)}, {SIMG}, {v(vSR)}')
    A(f'v_lshrrev_b32 {v(t2)}, 1, {v(t0)}')
    A(f'v_lshlrev_b32 {v(t2)}, 7, {v(t2)}')
    A(f'v_lshl_add_u32 {v(t2)}, {v(t3)}, 4, {v(t2)}')
    A(f'v_and_b32 {v(t3)}, 1, {v(t0)}')
    A(f'v_lshl_add_u32 {v(t2)}, {v(t3)}, 3, {v(t2)}')
    A(f'v_mov_b32 {v(t3)}, 0x40000000')
    A(f'v_cndmask_b32 {v(vPS)}, {v(t3)}, {v(t2)}, vcc')
    A(f'v_mov_b32 {v(t2)}, 0xf149f2ca')
    A(f'v_and_b32 {v(t3)}, 31, {v(vL)}')
    A(f'v_lshlrev_b32 {v(t3)}, 2, {v(t3)}')
    A(f's_add_u32 s23, s30, {SIMG + 12 * QS}')
    A(f'v_add_u32 {v(t3)}, s23, {v(t3)}')
    A(f'ds_write_b32 {v(t3)}, {v(t2)}')
    A('s_waitcnt vmcnt(0)')
    A(f'v_lshlrev_b32 {v(vPF)}, 7, {v(vL)}')
    A(f's_mul_i32 s24, s14, 640')
    A(f's_add_u32 s24, s24, {L.PBUF}')
    A(f's_mul_i32 s25, s13, 7168')
    A(f's_add_u32 s25, s25, {L.XF}')
    NT = cfg.get('ntouch', 2)
    A(f's_mul_i32 s26, s14, {NT}')
    A(f's_add_u32 s26, s26, s13')
    A(f's_min_u32 s26, s26, 55')
    A(f's_lshl_b32 s26, s26, 13')
    A(f's_add_u32 s26, s26, {L.YF + cfg.get("pfdist", 2) * 16 * 28672}')
    A(f's_cmp_ge_u32 s13, {NT}')
    A(f's_cselect_b32 s23, 0x40000000, 0')
    A(f'v_add_u32 {v(vPF)}, s23, {v(vPF)}')
    A(f's_mov_b32 s15, 0')
    A('s_lshl_b32 s31, s14, 2')
    A('s_add_u32 s31, s31, s13')
    A(f'v_and_b32 {v(vFA)}, 31, {v(vL)}')
    A(f'v_lshlrev_b32 {v(vFA)}, 3, {v(vFA)}')
    if cfg.get('stamps'):
        A(f's_lshl_b32 s32, s14, 2')
        A(f's_add_u32 s32, s32, s13')
        A(f's_lshl_b32 s32, s32, 12')
        A(f's_add_u32 s32, s32, {L.STAMP}')

    def xload():
        for q in range(3):
            if q == 2:
                A(f's_add_u32 s23, s25, 4096')
            for tt in range(2):
                if q < 2:
                    A(f'buffer_load_dwordx4 {v(XK(q, tt), 4)}, {v(vXK)}, {SRD}, s25 offen offset:{q * 2048 + tt * 256} sc1')
                else:
                    A(f'buffer_load_dwordx4 {v(XK(q, tt), 4)}, {v(vXK)}, {SRD}, s23 offen offset:{tt * 256} sc1')
        for tt in range(2):
            A(f'buffer_load_dwordx2 {v(XK3(tt), 2)}, {v(vXK3)}, {SRD}, s25 offen offset:{tt * 256} sc1')
        A(f's_add_u32 s25, s25, 28672')

    A('s_waitcnt vmcnt(0) lgkmcnt(0)')
    tl(A, cfg, 's14', 1, vT0 + 4, 0x18000)
    loaded_flag(A, cfg, 0, M(4))
    start_gate(A, cfg, M(0))
    tl(A, cfg, 's14', 2, vT0 + 4, 0x18000)
    dbgmax(A, cfg, 8, vT0 + 4)
    xload()
    A('s_barrier')

    top = A.newlabel('A_top')
    poll = A.newlabel('A_poll')
    var1 = A.newlabel('A_var1')
    common = A.newlabel('A_common')
    nxt = A.newlabel('A_next')
    def w5read(k):
        for eh in range(2):
            A(f'ds_read_b128 {v(WS5(k % 3) + 4 * eh, 4)}, {v(vW5)} offset:{(k * 2 + eh) * 1024}')

    def prepare():
        for k in range(3):
            w5read(k)
        for r in range(12):
            A(f'v_mov_b32 {v(SACC(0) + r)}, 0')
        for r in range(28):
            A(f'v_mov_b32 {v(ACC(0) + r)}, 0')
    prepare()
    A.label(top)
    A.forget()
    dual_prep(A, 's24', 's34', 's35')
    gate_prep(A, cfg)
    A('s_cmp_lt_u32 s39, 0x40000000')
    A('s_cselect_b32 s30, 1, 0')
    A('s_cmp_eq_u32 s15, 0')
    A('s_cselect_b32 s30, 1, s30')
    A('s_waitcnt lgkmcnt(0)')
    if cfg.get('asleep', 5):
        A.comment('poll back-off: the next mem cannot be there yet, early polls only load the L2 the hand-offs go through')
        A(f's_sleep {cfg.get("asleep", 5)}')

    SPLIT = cfg.get('split', 0)

    def pissue(r):
        for k in range(2):
            A(f'buffer_load_dwordx4 {v(PSET(r) + 4 * k, 4)}, {v(vMA)}, {SRD}, s{16 + k} offen sc1')
            if k == 0 and SPLIT:
                A(f's_nop {cfg.get("kgap", 11)}')
    var0 = A.newlabel('A_var0')

    def quick(r):
        keepalive(A, vDUM + 1, cfg.get('kap', 12), cfg)
        check_regs(A, t0, [PSET(r) + i for i in range(4 if SPLIT else 8)])
    keepalive(A, vDUM + 1, cfg.get('adel', 0), {})
    pissue(0)
    keepalive(A, vDUM + 1, cfg.get('pgapA', 20), {})
    align(A, cfg, 'alAp')
    A.label(poll, keep=True)
    guard(A)
    pissue(1)
    quick(0)
    A(f's_cbranch_vccz {var0}')
    pissue(0)
    quick(1)
    A(f's_cbranch_vccnz {poll}')

    E6 = cfg.get('early6', 2)
    BPOS = cfg.get('bpos', 5)
    tiles01 = [1, 0, 2, 3, 4, 5] + ([6] if E6 else [])

    def mf(n, k, mreg):
        wreg = v(WS5(k % 3), 8) if n == LT else W(n, k)
        return f'v_smfmac_f32_16x16x64_bf16 {v(ACC(n), 4)}, {v(mreg, 4)}, {wreg}, {v(vIDX)}'

    lates = []

    def variant(r):
        A.vm = [set(('v', PSET(1 - r) + i) for i in range(4)), set(('v', PSET(1 - r) + 4 + i) for i in range(4))]
        if SPLIT:
            A.vm.insert(0, set(('v', PSET(r) + 4 + i) for i in range(4)))
        A.lg = []
        A.smem_out = []
        stamp(A, cfg, 0)
        seq = [(n, k) for k in range(2) for n in tiles01]
        rd = [k for k in range(2, 7)] + ([] if E6 else [0, 1])
        Q = PSET(r) + 4
        C1 = cfg.get('c1pos', 2)
        late, late_back = A.newlabel('A_late'), A.newlabel('A_lb')
        w5q = []
        for i, (n, k) in enumerate(seq):
            A(mf(n, k, PSET(r) + 4 * k))
            if i == 0 or (i == 1 and not SPLIT):
                A(f'ds_write_b128 {v(vM(i))}, {v(PSET(r) + 4 * i, 4)}')
            if SPLIT:
                if i == C1:
                    A('s_waitcnt vmcnt(2)')
                    A(f'ds_write_b128 {v(vM(1))}, {v(Q, 4)}')
                    A(f'v_max3_u32 {v(t0)}, {v(Q)}, {v(Q + 1)}, {v(Q + 2)}')
                if i == C1 + 1:
                    A(f'v_max_u32 {v(t0)}, {v(t0)}, {v(Q + 3)}')
                if i == C1 + 2:
                    A(f'v_cmp_eq_u32 vcc, -1, {v(t0)}')
                    A(f's_cbranch_vccnz {late}')
                    A.label(late_back, keep=True)
                    lates.append((late, late_back, Q))
            if i == BPOS - 1:
                assert not SPLIT or i >= C1 + 2
                stamp(A, cfg, 5)
                A('s_waitcnt lgkmcnt(0)')
                A('s_barrier')
                stamp(A, cfg, 6)
            if n == LT:
                w5q += [(k + 3, 0), (k + 3, 1)]
            if i >= BPOS - 1:
                if rd:
                    kk = rd.pop(0)
                    A(f'ds_read_b128 {v(M(kk), 4)}, {v(vM(kk))}')
                elif w5q:
                    kk, eh = w5q.pop(0)
                    A(f'ds_read_b128 {v(WS5(kk % 3) + 4 * eh, 4)}, {v(vW5)} offset:{(kk * 2 + eh) * 1024}')
        assert not rd
        for kk, eh in w5q:
            A(f'ds_read_b128 {v(WS5(kk % 3) + 4 * eh, 4)}, {v(vW5)} offset:{(kk * 2 + eh) * 1024}')

    A.label(var1)
    variant(1)
    if cfg.get('cnt'):
        A('s_add_u32 s70, s70, 1')
    A(f's_branch {common}')
    align(A, cfg, 'alA0')
    A.label(var0)
    variant(0)
    A.label(common, keep=True)
    A.vm = [set(('v', PSET(0) + i) for i in range(16))]

    seq = []
    for n in (2, 3, 4, 5, 0, 1, 6):
        for k in range(E6 if n == 6 else 2, 7):
            seq.append((n, k))
    for k, pos in ((2, 0), (3, 5)):
        seq.remove((LT, k))
        seq.insert(pos, (LT, k))
    NS = len(seq)
    rare, rare_back = A.newlabel('A_rare'), A.newlabel('A_rb')
    memq = []
    memq.append((0, f'buffer_load_dword {v(vDUM)}, {v(vPF)}, {SRD}, s26 offen'))
    memq.append((16, 'RARE'))
    for i, (n, k) in enumerate(seq):
        if n == LT and k + 3 < 7:
            for eh in range(2):
                memq.append((i, f'ds_read_b128 {v(WS5((k + 3) % 3) + 4 * eh, 4)}, {v(vW5)} offset:{((k + 3) * 2 + eh) * 1024}'))
    mkstart = cfg.get('mkpos', 3)
    memq.append((mkstart, 's_waitcnt vmcnt(1)'))
    for q in range(3):
        ad = v(vMKa) if q < 2 else v(vMKb)
        o = 128 * q if q < 2 else 0
        memq.append((mkstart, f'ds_read2_b32 {v(MK(q), 2)}, {ad} offset0:{o} offset1:{o + 32}'))
        memq.append((mkstart, f'ds_read2_b32 {v(MK(q) + 2, 2)}, {ad} offset0:{o + 1} offset1:{o + 33}'))
    memq.append((mkstart, f'ds_read2_b32 {v(MK(3), 2)}, {v(vMK3)} offset0:0 offset1:32'))
    memq.sort(key=lambda x: x[0])
    done = {}
    for i, (n, k) in enumerate(seq):
        done[n] = i
    post = []

    def tpost(n):
        C = ACC(n)
        ops = [f'v_cvt_pk_bf16_f32 {v(C)}, {v(C)}, {v(C + 1)}', f'v_cvt_pk_bf16_f32 {v(C + 1)}, {v(C + 2)}, {v(C + 3)}',
               f'ds_write_b64 {v(vTW)}, {v(C, 2)} offset:{128 * n}']
        if n == 6:
            ops += [f'ds_read_b64_tr_b16 {v(TB(3), 2)}, {v(vTR3)}']
        elif n & 1:
            p = n >> 1
            ops += [f'ds_read_b64_tr_b16 {v(TB(p), 2)}, {v(vTR)} offset:{256 * p}',
                    f'ds_read_b64_tr_b16 {v(TB(p) + 2, 2)}, {v(vTR)} offset:{256 * p + 32}']
        return ops
    for n in (2, 3, 4, 5, 0, 1):
        post.append((done[n] + cfg.get('pdelay', 2), tpost(n)))
    smf = []
    for p in PORD:
        for t in range(3):
            key = v(XK(p, t), 4) if t < 2 else v(MK(p), 4)
            smf.append(f'v_mfma_f32_16x16x32_bf16 {v(SACC(t), 4)}, {key}, {v(TB(p), 4)}, {v(SACC(t), 4)}')
    NEARLY = cfg.get('searly', 2)
    queue = []
    A.mfma_states = cfg.get('mfstates', 1)
    for i, (n, k) in enumerate(seq):
        if i in (0, 1, 10, 20, 30):
            stamp(A, cfg, 7 + (0, 1, 10, 20, 30).index(i))
        if i == NS - 3:
            for _ in range(NEARLY):
                A.auto(smf.pop(0))
        A.auto(mf(n, k, M(k)))
        for st, ops in post:
            if st == i:
                queue += ops
        nm = 0
        if queue and not queue[0].startswith('v_'):
            A(queue.pop(0))
            nm = 1
        while memq and memq[0][0] <= i and nm < 1:
            o = memq.pop(0)[1]
            if o == 'RARE':
                A('s_cmp_lg_u32 s30, 0')
                A(f's_cbranch_scc1 {rare}')
                A.label(rare_back, keep=True)
                nm += 1
                continue
            A(o)
            if not o.startswith('s_'):
                nm += 1
        if queue and queue[0].startswith('v_') and A.pad_needed(queue[0]) <= cfg.get('maxpad', 0):
            A(queue.pop(0))
    assert not memq
    tailops = queue
    stamp(A, cfg, 1)
    for o in tailops:
        A(o)
    A.auto(smf.pop(0))
    A.auto(smf.pop(0))
    for o in tpost(6):
        A(o)
    stamp(A, cfg, 13)
    for m_ in smf:
        A.auto(m_)
    for t in range(3):
        key = v(XK3(t), 2) if t < 2 else v(MK(3), 2)
        A.auto(f'v_mfma_f32_16x16x16_bf16 {v(SACC(t), 4)}, {key}, {v(TB(3), 2)}, {v(SACC(t), 4)}')
    stamp(A, cfg, 12)
    for r in range(4):
        A(f'v_add_f32_dpp {v(SACC(0) + r)}, {v(SACC(0) + r)}, {v(SACC(0) + r)} row_ror:8 row_mask:0xf bank_mask:0x3')
    for r in range(4):
        A(f'v_add_f32_dpp {v(SACC(0) + r)}, {v(SACC(1) + r)}, {v(SACC(1) + r)} row_ror:8 row_mask:0xf bank_mask:0xc')
    A(f'ds_write_b128 {v(vSW)}, {v(SACC(0), 4)}')
    for r in range(2):
        A(f'v_add_f32_dpp {v(SACC(2) + r)}, {v(SACC(2) + r)}, {v(SACC(2) + r)} row_ror:8 row_mask:0xf bank_mask:0x3')
    for r in range(2):
        A(f'v_add_f32_dpp {v(SACC(2) + r)}, {v(SACC(2) + 2 + r)}, {v(SACC(2) + 2 + r)} row_ror:8 row_mask:0xf bank_mask:0xc')
    A(f'ds_write_b64 {v(vSW2)}, {v(SACC(2), 2)}')
    A('s_cmp_ge_u32 s13, 2')
    keepalive(A, vDUM + 1, cfg.get('ka1', 8), cfg)
    warm_mfma(A, M(0), cfg)
    A('s_waitcnt lgkmcnt(0)')
    A('s_barrier')
    stamp(A, cfg, 2)
    A(f's_cbranch_scc1 {nxt}')
    R = lambda w: ACC(0) + 4 * w
    for w in range(4):
        A(f'ds_read_b128 {v(R(w), 4)}, {v(vSR)} offset:{w * 2048}')
        keepalive(A, vDUM + 1, 1, cfg)
    keepalive(A, vDUM + 1, cfg.get('ka2', 8), cfg)
    s0 = R(0)
    ml, m, ll, f, e0, cm2 = R(4), R(4) + 2, R(5), R(5) + 2, R(2), R(6)
    A(f'v_mov_b32 {v(cm2)}, -2')
    A.auto(f'v_pk_add_f32 {v(R(0), 2)}, {v(R(0), 2)}, {v(R(1), 2)}')
    A(f'v_pk_add_f32 {v(R(0) + 2, 2)}, {v(R(0) + 2, 2)}, {v(R(1) + 2, 2)}')
    A.auto(f'v_pk_add_f32 {v(R(2), 2)}, {v(R(2), 2)}, {v(R(3), 2)}')
    A(f'v_pk_add_f32 {v(R(2) + 2, 2)}, {v(R(2) + 2, 2)}, {v(R(3) + 2, 2)}')
    A(f'v_pk_add_f32 {v(R(0), 2)}, {v(R(0), 2)}, {v(R(2), 2)}')
    A(f'v_pk_add_f32 {v(R(0) + 2, 2)}, {v(R(0) + 2, 2)}, {v(R(2) + 2, 2)}')
    dpp = 'row_mask:0xf bank_mask:0xf'
    A(f'v_max3_f32 {v(ml)}, {v(s0)}, {v(s0 + 1)}, {v(s0 + 2)}')
    A(f'v_max_f32 {v(ml)}, {v(ml)}, {v(s0 + 3)}')
    A(f'v_sub_f32 {v(e0)}, {v(s0)}, {v(ml)}')
    A(f'v_sub_f32 {v(e0 + 1)}, {v(s0 + 1)}, {v(ml)}')
    A(f'v_max_f32_dpp {v(m)}, {v(ml)}, {v(ml)} row_ror:8 {dpp}')
    A(f'v_sub_f32 {v(e0 + 2)}, {v(s0 + 2)}, {v(ml)}')
    A(f'v_sub_f32 {v(e0 + 3)}, {v(s0 + 3)}, {v(ml)}')
    A(f'v_max_f32_dpp {v(m)}, {v(m)}, {v(m)} row_ror:4 {dpp}')
    A(f'v_exp_f32 {v(e0)}, {v(e0)}')
    A(f'v_exp_f32 {v(e0 + 1)}, {v(e0 + 1)}')
    A(f'v_max_f32_dpp {v(m)}, {v(m)}, {v(m)} row_ror:2 {dpp}')
    A(f'v_exp_f32 {v(e0 + 2)}, {v(e0 + 2)}')
    A(f'v_exp_f32 {v(e0 + 3)}, {v(e0 + 3)}')
    A(f'v_max_f32_dpp {v(m)}, {v(m)}, {v(m)} row_ror:1 {dpp}')
    if cfg.get('sm2', 1):
        A(f'v_sub_f32 {v(f)}, {v(ml)}, {v(m)}')
        A(f'v_pk_add_f32 {v(ll, 2)}, {v(e0, 2)}, {v(e0 + 2, 2)}')
        A(f'v_exp_f32 {v(f)}, {v(f)}')
        A(f'v_add_f32 {v(ll)}, {v(ll)}, {v(ll + 1)}')
        A(f'v_mul_f32 {v(ll)}, {v(ll)}, {v(f)}')
        A(f'v_mul_f32 {v(e0)}, {v(e0)}, {v(f)}')
        A(f'v_mul_f32 {v(e0 + 1)}, {v(e0 + 1)}, {v(f)}')
        A(f'v_add_f32_dpp {v(ll)}, {v(ll)}, {v(ll)} row_ror:8 {dpp}')
        A(f'v_mul_f32 {v(e0 + 2)}, {v(e0 + 2)}, {v(f)}')
        A(f'v_mul_f32 {v(e0 + 3)}, {v(e0 + 3)}, {v(f)}')
        A(f'v_add_f32_dpp {v(ll)}, {v(ll)}, {v(ll)} row_ror:4 {dpp}')
        A(f'v_add_f32_dpp {v(ll)}, {v(ll)}, {v(ll)} row_ror:2 {dpp}')
        A(f'v_add_f32_dpp {v(ll)}, {v(ll)}, {v(ll)} row_ror:1 {dpp}')
        A(f'v_rcp_f32 {v(ll)}, {v(ll)}')
        A(f'v_pk_mul_f32 {v(e0, 2)}, {v(e0, 2)}, {v(ll, 2)} op_sel_hi:[1,0]')
        A(f'v_pk_mul_f32 {v(e0 + 2, 2)}, {v(e0 + 2, 2)}, {v(ll, 2)} op_sel_hi:[1,0]')
    else:
        A(f'v_pk_add_f32 {v(ll, 2)}, {v(e0, 2)}, {v(e0 + 2, 2)}')
        A(f'v_sub_f32 {v(f)}, {v(ml)}, {v(m)}')
        A(f'v_exp_f32 {v(f)}, {v(f)}')
        A(f'v_add_f32 {v(ll)}, {v(ll)}, {v(ll + 1)}')
        A(f'v_mul_f32 {v(ll)}, {v(ll)}, {v(f)}')
        A(f'v_mul_f32 {v(e0)}, {v(e0)}, {v(f)}')
        A(f'v_mul_f32 {v(e0 + 1)}, {v(e0 + 1)}, {v(f)}')
        A(f'v_add_f32_dpp {v(ll)}, {v(ll)}, {v(ll)} row_ror:8 {dpp}')
        A(f'v_mul_f32 {v(e0 + 2)}, {v(e0 + 2)}, {v(f)}')
        A(f'v_mul_f32 {v(e0 + 3)}, {v(e0 + 3)}, {v(f)}')
        A(f'v_add_f32_dpp {v(ll)}, {v(ll)}, {v(ll)} row_ror:4 {dpp}')
        A(f'v_add_f32_dpp {v(ll)}, {v(ll)}, {v(ll)} row_ror:2 {dpp}')
        A(f'v_add_f32_dpp {v(ll)}, {v(ll)}, {v(ll)} row_ror:1 {dpp}')
        A(f'v_rcp_f32 {v(ll)}, {v(ll)}')
        for i in range(4):
            A(f'v_mul_f32 {v(e0 + i)}, {v(e0 + i)}, {v(ll)}')
    A(f'v_cvt_pk_bf16_f32 {v(s0)}, {v(e0)}, {v(e0 + 1)}')
    A(f'v_cvt_pk_bf16_f32 {v(s0 + 1)}, {v(e0 + 2)}, {v(e0 + 3)}')
    A(f'v_min_u32 {v(s0)}, {v(s0)}, {v(cm2)}')
    A(f'v_min_u32 {v(s0 + 1)}, {v(s0 + 1)}, {v(cm2)}')
    dual_store(A, f'buffer_store_dwordx2 {v(s0, 2)}, {v(vPS)}, {SRD}, {{s}} offen', 's34', 's35')
    A.label(nxt, keep=True)
    stamp(A, cfg, 3)
    rstamp(A, cfg, 4)
    if not cfg.get('nohold'):
        A('s_barrier')
    A('s_nop 1')
    prepare()
    if cfg.get('xdelay', 0):
        A(f's_sleep {cfg.get("xdelay", 0)}')
    xload()
    mid_gate(A, cfg, vT0, vFL)
    if cfg.get('tl'):
        skp = A.newlabel('TLS')
        A('s_add_u32 s38, s14, s13')
        A('s_cmp_lg_u32 s38, 18')
        A(f's_cbranch_scc1 {skp}')
        tl(A, cfg, 's15', 0, vT0 + 4, 0x10000)
        A('s_memtime s[98:99]')
        A('s_waitcnt lgkmcnt(0)')
        A(f'v_mov_b32 {v(vT0 + 4)}, s98')
        A(f'buffer_store_dword {v(vT0 + 4)}, {v(vT0 + 5)}, {SRD}, s101 offen offset:4')
        A.label(skp, keep=True)
    stamp_flush(A, cfg, 14, 32, vT0 + 4)
    A(f'v_add_u32 {v(vMA)}, 8192, {v(vMA)}')
    A(f's_add_u32 s24, s24, 16384')
    A(f's_add_u32 s26, s26, {16 * 28672}')
    A(f's_add_u32 s15, s15, 1')
    if cfg.get('dbg'):
        for stp, wd in ((8, 9), (32, 10), (2, 6), (4, 7)):
            sk = A.newlabel('DB')
            A(f's_cmp_lg_u32 s15, {stp}')
            A(f's_cbranch_scc1 {sk}')
            dbgmax(A, cfg, wd, vT0 + 4)
            A.label(sk, keep=True)
    A(f's_cmp_lt_u32 s15, {NSTEP}')
    A(f's_cbranch_scc1 {top}')
    dbgmax(A, cfg, 11, vT0 + 4)
    dump_cnt(A, cfg, 0, vT0 + 4, ['s33', 's70'])
    A('s_endpgm')
    A.label(rare)
    A.forget()
    A(f'buffer_load_dwordx2 {v(vFL, 2)}, {v(vFA)}, {SRD}, s39 offen sc1')
    for back in range(cfg.get('pfdist', 2) - 1, 0, -1):
        A(f's_sub_u32 s38, s26, {back * 16 * 28672}')
        A('s_cmp_eq_u32 s15, 0')
        A('s_cselect_b32 s38, s38, 0x40000000')
        A(f'buffer_load_dword {v(vDUM)}, {v(vPF)}, {SRD}, s38 offen')
    A(f's_branch {rare_back}')
    for late, late_back, Q in lates:
        A.label(late)
        A.forget()
        guard(A)
        A(f'buffer_load_dwordx4 {v(Q, 4)}, {v(vMA)}, {SRD}, s17 offen sc1')
        A('s_waitcnt vmcnt(0)')
        check_regs(A, t0, [Q + i for i in range(4)])
        A(f's_cbranch_vccnz {late}')
        A(f'ds_write_b128 {v(vM(1))}, {v(Q, 4)}')
        A(f's_branch {late_back}')
    flush_deferred(A)


def emit_B(A, cfg):
    WL = 0x0000
    RIMG = 0x20000
    MIMG = 0x23000
    vL, vIDX, vMA, vWL, vYX, vP, vP2, vRW, vRR, vSA, vSK, vYM, vPF = range(1, 14)
    vT0 = 14
    M = lambda k: 20 + 4 * k
    YACC = lambda hh, t: 48 + 4 * (hh * 2 + t)
    YX = lambda k, t: 80 + 8 * (k * 2 + t)
    YB = lambda t: 112 + 4 * t
    M2 = 120
    YBN = lambda t: 180 + 4 * t
    OACC = lambda t: 128 + 4 * t
    ST = lambda b: 136 + 8 * b
    P = lambda r, k: ((20 if r == 0 else 120) + 4 * k) if k < 2 else 182 + 2 * r
    Pregs = lambda r: [P(r, 0) + i for i in range(8)] + [P(r, 2), P(r, 2) + 1]
    vM = lambda k: 168 + k
    vDUM = 176

    def W(ht, k):
        i = ht * 5 + k
        return a(8 * i, 8) if i < 32 else v(192 + 8 * (i - 32), 8)

    def Whalf(ht, k, eh):
        i = ht * 5 + k
        return a(8 * i + 4 * eh, 4) if i < 32 else v(192 + 8 * (i - 32) + 4 * eh, 4)

    t0, t1, t2, t3 = vT0, vT0 + 1, vT0 + 2, vT0 + 3
    lane_fields(A, vL)
    emit_koffs(A)
    A(f'v_and_b32 {v(t0)}, 15, {v(vL)}')
    A(f'v_lshrrev_b32 {v(t1)}, 4, {v(vL)}')
    sparse_idx(A, vIDX, vL, t2, t3)
    A(f'v_lshlrev_b32 {v(t2)}, 9, {v(t1)}')
    A(f'v_lshl_add_u32 {v(vYX)}, {v(t0)}, 4, {v(t2)}')
    if cfg.get('fused'):
        A('s_lshl_b32 s23, s13, 5')
        A(f's_add_u32 s23, s23, {L.F_AB + 128}')
        flag_wait(A, 's23', 32, 20, sleep=2)
    A(f's_mul_i32 s25, s13, 56')
    A(f's_add_u32 s25, s25, s14')
    A(f's_mul_i32 s25, s25, 28672')
    A(f's_add_u32 s25, s25, {L.WF + L.NB_B * 28672}')
    A(f's_lshl_b32 s28, s13, 15')
    cnt = 0
    for hh in range(4):
        for k in range(7):
            A(f's_lshl_b32 s23, s{16 + k}, 2')
            A(f's_add_u32 s23, s23, s25')
            A(f's_add_u32 s23, s23, {hh * 14 * 28672}')
            for eh in range(2):
                for t in range(2):
                    ht = hh * 2 + t
                    if k >= 5:
                        A(f's_add_u32 s24, s28, {WL + ((ht * 2 + (k - 5)) * 2 + eh) * 1024}')
                        A(f's_mov_b32 m0, s24')
                        A(f's_add_u32 s24, s23, {2048 * eh + 256 * t}')
                        A(f'buffer_load_dwordx4 {v(vYX)}, {SRD}, s24 offen{WFL(cfg)} lds')
                    else:
                        A(f'buffer_load_dwordx4 {Whalf(ht, k, eh)}, {v(vYX)}, {SRD}, s23 offen offset:{2048 * eh + 256 * t}{WFL(cfg)}')
                    cnt += 1
                    if cnt % 16 == 0:
                        A(f's_waitcnt vmcnt({cfg.get("wdepth", 40)})')
    A(f'v_lshlrev_b32 {v(vMA)}, 4, {v(vL)}')
    A(f'v_add_u32 {v(vWL)}, s28, {v(vMA)}')
    A(f'v_add_u32 {v(vYM)}, 0, {v(vMA)}')
    for k in range(7):
        A(f's_add_u32 s23, s{16 + k}, {MIMG}')
        A(f'v_add_u32 {v(vM(k))}, s23, {v(vMA)}')
    A(f'v_add_u32 {v(vMA)}, {L.MEMA}, {v(vMA)}')
    A(f'v_lshrrev_b32 {v(t2)}, 1, {v(t1)}')
    A(f'v_mul_u32_u24 {v(t2)}, 640, {v(t2)}')
    A(f'v_and_b32 {v(t3)}, 1, {v(t1)}')
    A(f'v_lshl_add_u32 {v(t2)}, {v(t3)}, 8, {v(t2)}')
    A(f'v_lshl_add_u32 {v(vP)}, {v(t0)}, 4, {v(t2)}')
    A(f'v_lshrrev_b32 {v(t2)}, 1, {v(t1)}')
    A(f'v_bfe_u32 {v(t3)}, {v(vL)}, 3, 1')
    A(f'v_lshl_add_u32 {v(t2)}, {v(t3)}, 1, {v(t2)}')
    A(f'v_mul_u32_u24 {v(t2)}, 640, {v(t2)}')
    A(f'v_and_b32 {v(t3)}, 7, {v(vL)}')
    A(f'v_lshl_add_u32 {v(t2)}, {v(t3)}, 4, {v(t2)}')
    A(f'v_and_b32 {v(t3)}, 1, {v(t1)}')
    A(f'v_lshl_add_u32 {v(t2)}, {v(t3)}, 3, {v(t2)}')
    A(f'v_add_u32 {v(vP2)}, 512, {v(t2)}')
    A(f's_mul_i32 s23, s13, 3072')
    A(f's_add_u32 s23, s23, {RIMG}')
    A(f'v_mul_u32_u24 {v(t2)}, {4 * 192}, {v(t1)}')
    A(f'v_lshl_add_u32 {v(vRW)}, {v(t0)}, 3, {v(t2)}')
    A(f'v_add_u32 {v(vRW)}, s23, {v(vRW)}')
    A(f'v_lshrrev_b32 {v(t3)}, 3, {v(vL)}')
    A(f'v_and_b32 {v(t2)}, 3, {v(vL)}')
    A(f'v_lshlrev_b32 {v(vSA)}, 2, {v(t2)}')
    A(f'v_lshlrev_b32 {v(t2)}, 1, {v(t2)}')
    A(f'v_bfe_u32 {v(t0)}, {v(vL)}, 2, 1')
    A(f'v_lshl_add_u32 {v(vSA)}, {v(t0)}, 7, {v(vSA)}')
    A(f'v_lshl_add_u32 {v(vSA)}, {v(t3)}, 4, {v(vSA)}')
    A(f'v_add_u32 {v(t2)}, {v(t2)}, {v(t0)}')
    A(f's_and_b32 s23, s13, 1')
    A(f's_lshl_b32 s23, s23, 3')
    A(f'v_add_u32 {v(t0)}, s23, {v(t2)}')
    A(f'v_mul_u32_u24 {v(t2)}, 192, {v(t3)}')
    A(f'v_lshl_add_u32 {v(vRR)}, {v(t0)}, 3, {v(t2)}')
    A(f'v_add_u32 {v(vRR)}, {RIMG}, {v(vRR)}')
    A(f's_lshl_b32 s23, s14, 9')
    A(f's_and_b32 s24, s13, 1')
    A(f's_lshl_b32 s24, s24, 8')
    A(f's_add_u32 s24, s24, s23')
    A(f'v_add_u32 {v(vSA)}, s24, {v(vSA)}')
    A(f'v_lshlrev_b32 {v(vSK)}, 4, {v(t3)}')
    A(f'v_lshrrev_b32 {v(t2)}, 2, {v(t0)}')
    A(f'v_lshl_add_u32 {v(vSK)}, {v(t2)}, 7, {v(vSK)}')
    A(f'v_and_b32 {v(t2)}, 3, {v(t0)}')
    A(f'v_lshl_add_u32 {v(vSK)}, {v(t2)}, 2, {v(vSK)}')
    A(f'v_add_u32 {v(vSK)}, s23, {v(vSK)}')
    A(f's_cmp_ge_u32 s13, 2')
    A(f's_cselect_b32 s23, 0x40000000, 0')
    A(f'v_add_u32 {v(vSK)}, s23, {v(vSK)}')
    A(f's_mul_i32 s24, s13, {4 * 640}')
    A(f's_add_u32 s24, s24, {L.PBUF}')
    A(f's_mul_i32 s25, s13, 56')
    A(f's_add_u32 s25, s25, s14')
    A(f's_lshl_b32 s25, s25, 11')
    A(f's_add_u32 s25, s25, {L.YF}')
    A(f's_mov_b32 s26, {L.MEMA + 8192}')
    A(f's_mov_b32 s29, {L.MEMX}')
    A(f's_lshl_b32 s31, s14, 2')
    A(f's_add_u32 s31, s31, s13')
    A(f's_lshl_b32 s31, s31, 11')
    A(f's_add_u32 s31, s31, {L.YM}')
    NTA = cfg.get('ntouch', 2)
    NT = cfg.get('ntouchB', 0)
    A(f's_mul_i32 s34, s14, {NT}')
    A(f's_add_u32 s34, s34, {16 * NTA}')
    A(f's_add_u32 s34, s34, s13')
    A(f's_min_u32 s34, s34, 55')
    A(f's_lshl_b32 s34, s34, 13')
    A(f's_add_u32 s34, s34, {L.YF + cfg.get("pfdist", 2) * 16 * 28672}')
    A(f'v_lshlrev_b32 {v(vPF)}, 7, {v(vL)}')
    A(f's_cmp_ge_u32 s13, {NT}')
    A(f's_cselect_b32 s23, 0x40000000, 0')
    A(f'v_add_u32 {v(vPF)}, s23, {v(vPF)}')
    A(f's_mov_b32 s15, 0')
    A(f's_mov_b32 s35, 0x40000000')
    if cfg.get('stamps'):
        A(f's_add_u32 s32, s14, 16')
        A(f's_lshl_b32 s32, s32, 2')
        A(f's_add_u32 s32, s32, s13')
        A(f's_lshl_b32 s32, s32, 12')
        A(f's_add_u32 s32, s32, {L.STAMP}')
    vNON, vF0 = 178, 180
    A(f'v_mov_b32 {v(vNON)}, s96')
    A(f'v_mov_b32 {v(vNON + 1)}, s97')
    A(f'v_mov_b32 {v(t2)}, 0x40000000')
    A(f'v_cmp_eq_u32 vcc, 0, {v(vL)}')
    A(f'v_cndmask_b32 {v(vF0)}, {v(t2)}, {v(vL)}, vcc')
    A('s_lshl_b32 s27, s14, 2')
    A('s_add_u32 s27, s27, s13')
    A('s_lshl_b32 s27, s27, 3')
    A(f's_add_u32 s27, s27, {L.FLAGS + 8 * L.F_YM - 2 * 56 * 8}')
    ymflag = lambda sreg: f'buffer_store_dwordx2 {v(vNON, 2)}, {v(vF0)}, {SRD}, {sreg} offen sc1'
    vOUT = vT0 + 5
    A(f'v_mov_b32 {v(vOUT)}, 0')
    for r in range(8):
        A(f'v_mov_b32 {v(YB(0) + r)}, 0')

    def yx_list():
        out = []
        for k in range(2):
            for eh in range(2):
                for t in range(2):
                    out.append([f's_add_u32 s23, s25, {(2 * k + eh) * 14 * 2048}',
                                f'buffer_load_dwordx4 {v(YX(k, t) + 4 * eh, 4)}, {v(vYX)}, {SRD}, s23 offen offset:{256 * t} sc1'])
        return out

    def ym_list(sreg):
        return [[f'buffer_store_dwordx4 {v(YB(t), 4)}, {v(vYM)}, {SRD}, {sreg} offen offset:{t * 1024} sc1'] for t in range(2)]

    A('s_waitcnt vmcnt(0)')
    tl(A, cfg, 's14', 1, vT0 + 2, 0x18400)
    loaded_flag(A, cfg, 16, M(4))
    start_gate(A, cfg, M(0))
    tl(A, cfg, 's14', 2, vT0 + 2, 0x18400)
    dbgmax(A, cfg, 12, vT0 + 2)
    top = A.newlabel('B_top')
    mpoll = A.newlabel('B_mpoll')
    ppoll = A.newlabel('B_ppoll')
    nxt = A.newlabel('B_next')
    fin = A.newlabel('B_fin')
    A.label(top)
    A.forget()
    zero = [f'v_mov_b32 {v(YACC(0, 0) + r)}, 0' for r in range(32)] + [f'v_mov_b32 {v(OACC(0) + r)}, 0' for r in range(8)]
    if cfg.get('yxearly'):
        for x in yx_list():
            for y in x:
                A(y)
    ZP = cfg.get('zpre', 12)
    for x in zero[:ZP]:
        A(x)
    ldsq = [(hh * 2 + t, k) for t in range(2) for pr in range(2) for k in (5, 6) for hh in (2 * pr, 2 * pr + 1)]

    def wlread(j):
        ht, k = ldsq[j]
        for eh in range(2):
            A(f'ds_read_b128 {v(ST(j & 3) + 4 * eh, 4)}, {v(vWL)} offset:{((ht * 2 + (k - 5)) * 2 + eh) * 1024}')
    for j in range(4):
        wlread(j)
    if cfg.get('bsleep', 0):
        A(f's_sleep {cfg["bsleep"]}')
    MS = lambda r: (M(0) if r == 0 else M2)
    A(f's_add_u32 s36, s31, s35')

    def missue(r):
        for k in range(2):
            A(f'buffer_load_dwordx4 {v(MS(r) + 4 * k, 4)}, {v(vMA)}, {SRD}, s{16 + k} offen sc1')
    mv0, mv1, mcommon = A.newlabel('B_mv0'), A.newlabel('B_mv1'), A.newlabel('B_mc')
    missue(0)
    for x in zero[ZP:]:
        A(x)
    A.label(mpoll, keep=True)
    guard(A)
    missue(1)
    check_regs(A, t0, [MS(0) + i for i in range(8)])
    A(f's_cbranch_vccz {mv0}')
    missue(0)
    check_regs(A, t0, [MS(1) + i for i in range(8)])
    A(f's_cbranch_vccnz {mpoll}')
    lgsnap = [set(x) for x in A.lg]

    def allmem():
        ld_ = yx_list() if not (cfg.get('noyx') or cfg.get('yxearly')) else []
        st_ = ym_list('s36') if not cfg.get('noym') else []
        return st_ + ld_ if cfg.get('stfirst') else ld_ + st_
    left = []

    def mvariant(r):
        A.vm = [set(('v', MS(1 - r) + i) for i in range(8))]
        A.lg = [set(x) for x in lgsnap]
        A.smem_out = []
        stamp(A, cfg, 0)
        vmem = allmem()
        for i, (ht, k) in enumerate([(ht, k) for k in range(2) for ht in range(8)]):
            A(f'v_smfmac_f32_16x16x64_bf16 {v(YACC(ht >> 1, ht & 1), 4)}, {v(MS(r) + 4 * k, 4)}, {W(ht, k)}, {v(vIDX)}')
            if i < 2:
                A(f'ds_write_b128 {v(vM(i))}, {v(MS(r) + 4 * i, 4)}')
            if i == 4:
                A('s_waitcnt lgkmcnt(0)')
                A('s_barrier')
            if 4 <= i < 9:
                A(f'ds_read_b128 {v(M(i - 2), 4)}, {v(vM(i - 2))}')
            if i >= 5 and (i - 5) % cfg.get('vgap', 2) == 0 and vmem:
                for x in vmem.pop(0):
                    A(x)
            if i == 4:
                stamp(A, cfg, 8)
        left[:] = vmem
    A.label(mv1, keep=True)
    mvariant(1)
    if cfg.get('cnt'):
        A('s_add_u32 s72, s72, 1')
    A(f's_branch {mcommon}')
    align(A, cfg, 'alBm')
    A.label(mv0)
    mvariant(0)
    A.label(mcommon, keep=True)
    A.vm = [set(('v', M(0) + i) for i in range(8)) | set(('v', M2 + i) for i in range(8)) | set(('v', YX(0, 0) + i) for i in range(32))]
    mem = list(left)
    if NT:
        mem += [[f'buffer_load_dword {v(vDUM)}, {v(vPF)}, {SRD}, s34 offen']]
    def pissue(r):
        A(f'buffer_load_dwordx4 {v(P(r, 0), 4)}, {v(vP)}, {SRD}, s24 offen sc1')
        A(f'buffer_load_dwordx4 {v(P(r, 1), 4)}, {v(vP)}, {SRD}, s24 offen offset:1280 sc1')
        A(f'buffer_load_dwordx2 {v(P(r, 2), 2)}, {v(vP2)}, {SRD}, s24 offen sc1')
    seq = []
    groups = [(pr, t) for t in range(2) for pr in range(2)]
    for pr, t in groups:
        ha, hb = (2 * pr) * 2 + t, (2 * pr + 1) * 2 + t
        seq += [(ha, 5), (ha, 2), (hb, 2), (hb, 5), (ha, 3), (ha, 6), (hb, 3), (ha, 4), (hb, 6), (hb, 4)]
    assert [x for x in seq if x[1] >= 5] == ldsq
    lj = 0
    vq = []
    dq = []
    GAP = cfg.get('bmemgap', 2)

    def gpost(pr, t):
        Ya, Yb = YACC(2 * pr, t), YACC(2 * pr + 1, t)
        ops = [f'v_permlane32_swap_b32 {v(Ya + r)}, {v(Yb + r)}' for r in range(4)]
        ops += [f'v_add_f32 {v(Ya + r)}, {v(Ya + r)}, {v(Yb + r)}' for r in range(4)]
        ops += [f'v_cvt_pk_bf16_f32 {v(YB(t) + 2 * p + pr)}, {v(Ya + 2 * p)}, {v(Ya + 2 * p + 1)}' for p in range(2)]
        return ops
    sani = [f'v_min_u32 {v(YB(0) + r)}, -2, {v(YB(0) + r)}' for r in range(8)]
    for i, (ht, k) in enumerate(seq):
        if i % 10 == 0:
            stamp(A, cfg, 9 + i // 10)
        if k >= 5:
            A.auto(f'v_smfmac_f32_16x16x64_bf16 {v(YACC(ht >> 1, ht & 1), 4)}, {v(M(k), 4)}, {v(ST(lj & 3), 8)}, {v(vIDX)}')
            if lj + 4 < 16:
                h2, k2 = ldsq[lj + 4]
                for eh in range(2):
                    dq.append(f'ds_read_b128 {v(ST(lj & 3) + 4 * eh, 4)}, {v(vWL)} offset:{((h2 * 2 + (k2 - 5)) * 2 + eh) * 1024}')
            lj += 1
        else:
            A.auto(f'v_smfmac_f32_16x16x64_bf16 {v(YACC(ht >> 1, ht & 1), 4)}, {v(M(k), 4)}, {W(ht, k)}, {v(vIDX)}')
        if i % 10 == 9:
            vq += gpost(*groups[i // 10])
        if dq:
            A(dq.pop(0))
        if i >= cfg.get('yxstart', 0) and i % GAP == 0 and mem:
            for x in mem.pop(0):
                A(x)
        if i == cfg.get('pearly', -1):
            pissue(0)
        if vq and A.pad_needed(vq[0]) == 0:
            A(vq.pop(0))
    assert not mem and not dq
    stamp(A, cfg, 13)
    for o in vq:
        A(o)
    A(f's_cmp_eq_u32 s15, 0')
    A(f's_cselect_b32 s23, 0, {14 * 4 * 2048}')
    A(f's_add_u32 s31, s31, s23')
    A(f's_mov_b32 s35, 0')
    A(f's_add_u32 s27, s27, {56 * 8}')
    A(f's_add_u32 s25, s25, {16 * 28672}')
    A(f's_add_u32 s34, s34, {16 * 28672}')
    stamp(A, cfg, 1)
    A(f's_cmp_eq_u32 s15, {NSTEP}')
    A(f's_cbranch_scc1 {fin}')
    A('s_cmp_ge_u32 s13, 2')
    A('s_cselect_b32 s23, 0x40000000, s26')
    dual_prep(A, 's23', 's29', 's37')
    stamp(A, cfg, 5)
    if cfg.get('psleep', 0):
        A(f's_sleep {cfg["psleep"]}')

    var0 = A.newlabel('B_var0')
    var1 = A.newlabel('B_var1')
    common = A.newlabel('B_common')
    redo = A.newlabel('B_redo')

    def quick(r):
        keepalive(A, vDUM + 1, cfg.get('kbp', 0), cfg)
        A('s_waitcnt vmcnt(3)')
        A(f'v_max3_u32 {v(t0)}, {v(P(r, 0) + 3)}, {v(P(r, 1) + 3)}, {v(P(r, 2) + 1)}')
        A(f'v_cmp_eq_u32 vcc, -1, {v(t0)}')
    if cfg.get('pearly', -1) < 0:
        keepalive(A, vDUM + 1, cfg.get('pdel', 32), {})
        pissue(0)
        keepalive(A, vDUM + 1, cfg.get('pgapB', 8), {})
    chk0 = A.newlabel('B_chk0')
    if cfg.get('kb0', 0):
        snap = A.snapshot()
        pissue(1)
        keepalive(A, vDUM + 1, cfg['kb0'], {})
        A(f's_branch {chk0}')
        A.restore(snap)
    align(A, cfg, 'alBp', -1)
    A.label(ppoll, keep=True)
    guard(A)
    if cfg.get('cnt'):
        A('s_add_u32 s71, s71, 1')
    pissue(1)
    A.label(chk0, keep=True)
    quick(0)
    A(f's_cbranch_vccz {var0}')
    pissue(0)
    quick(1)
    A(f's_cbranch_vccnz {ppoll}')
    bad = A.newlabel('B_bad')

    def variant(r):
        A.vm = [set(('v', x) for x in Pregs(1 - r))]
        A.lg = []
        A.smem_out = []
        stamp(A, cfg, 2)
        Q = P(r, 0)
        full = [f'v_max3_u32 {v(t0)}, {v(Q)}, {v(Q + 1)}, {v(Q + 2)}', f'v_max3_u32 {v(t0)}, {v(t0)}, {v(Q + 4)}, {v(Q + 5)}',
                f'v_max3_u32 {v(t0)}, {v(t0)}, {v(Q + 6)}, {v(P(r, 2))}',
                f'v_cmp_eq_u32 vcc, -1, {v(t0)}']
        for k in ((2, 0, 1) if cfg.get('kord') else (0, 1, 2)):
            for t in range(2):
                if k < 2:
                    A(f'v_smfmac_f32_16x16x64_bf16 {v(OACC(t), 4)}, {v(P(r, k), 4)}, {v(YX(k, t), 8)}, {v(vIDX)}')
                else:
                    A(f'v_smfmac_f32_16x16x32_bf16 {v(OACC(t), 4)}, {v(P(r, k), 2)}, {v(YB(t), 4)}, {v(vIDX)}')
        NF = cfg.get('nfull', 2)
        for x in full[:NF]:
            A(x)
        for rr in range(4):
            A(f'ds_write2_b32 {v(vRW)}, {v(OACC(0) + rr)}, {v(OACC(1) + rr)} offset0:{rr * 48} offset1:{rr * 48 + 1}')
        for x in full[NF:]:
            A(x)
        A(f's_cbranch_vccnz {bad}')
    A.label(var1)
    variant(1)
    if cfg.get('cnt'):
        A('s_add_u32 s70, s70, 1')
    A(f's_branch {common}')
    A.label(bad)
    A('s_waitcnt vmcnt(0) lgkmcnt(0)')
    A('s_nop 7')
    for r in range(8):
        A(f'v_mov_b32 {v(OACC(0) + r)}, 0')
    pissue(0)
    A(f's_branch {ppoll}')
    align(A, cfg, 'alB0')
    A.label(var0)
    variant(0)
    A.label(common, keep=True)
    A.vm = [set(('v', x) for x in Pregs(0) + Pregs(1))]
    A('s_cmp_ge_u32 s13, 2')
    keepalive(A, vDUM + 1, cfg.get('kb1', 0), cfg)
    stamp(A, cfg, 6)
    warm_mfma(A, ST(0), cfg)
    A('s_waitcnt lgkmcnt(0)')
    A('s_barrier')
    stamp(A, cfg, 7)
    A(f's_cbranch_scc1 {nxt}')
    R = lambda w: YACC(0, 0) + 4 * w
    for w in range(4):
        A(f'ds_read2st64_b64 {v(R(w), 4)}, {v(vRR)} offset0:{6 * w} offset1:{6 * w + 3}')
    keepalive(A, vDUM + 1, cfg.get('kb2', 3), cfg)
    A(f'v_mov_b32 {v(t1)}, -2')
    A.auto(f'v_pk_add_f32 {v(R(0), 2)}, {v(R(0), 2)}, {v(R(0) + 2, 2)}')
    A.auto(f'v_pk_add_f32 {v(R(1), 2)}, {v(R(1), 2)}, {v(R(1) + 2, 2)}')
    A(f'v_pk_add_f32 {v(R(0), 2)}, {v(R(0), 2)}, {v(R(1), 2)}')
    A.auto(f'v_pk_add_f32 {v(R(2), 2)}, {v(R(2), 2)}, {v(R(2) + 2, 2)}')
    A(f'v_pk_add_f32 {v(R(0), 2)}, {v(R(0), 2)}, {v(R(2), 2)}')
    A.auto(f'v_pk_add_f32 {v(R(3), 2)}, {v(R(3), 2)}, {v(R(3) + 2, 2)}')
    A(f'v_pk_add_f32 {v(R(0), 2)}, {v(R(0), 2)}, {v(R(3), 2)}')
    A(f'v_cvt_pk_bf16_f32 {v(vOUT)}, {v(R(0))}, {v(R(0) + 1)}')
    A(f'v_min_u32 {v(vOUT)}, {v(vOUT)}, {v(t1)}')
    A.label(nxt, keep=True)
    dual_store(A, f'buffer_store_dword {v(vOUT)}, {v(vSA)}, {SRD}, {{s}} offen', 's29', 's37')
    stamp(A, cfg, 3)
    rstamp(A, cfg, 4)
    if not cfg.get('nohold'):
        A('s_barrier')
    nl = A.newlabel('B_nl')
    A(f's_cmp_lg_u32 s15, {NSTEP - 1}')
    A(f's_cbranch_scc1 {nl}')
    A(f's_mov_b32 s23, {L.MEMX + 63 * 8192}')
    A('s_waitcnt vmcnt(2)')
    A(f'buffer_store_dword {v(vOUT)}, {v(vSK)}, {SRD}, s23 offen sc1')
    A(f's_branch {nl}x')
    A.label(nl, keep=True)
    A('s_waitcnt vmcnt(2)')
    A.label(nl + 'x', keep=True)
    stamp_flush(A, cfg, 14, 32, vT0 + 2)
    A(f'v_add_u32 {v(vMA)}, 8192, {v(vMA)}')
    A(f's_add_u32 s24, s24, 16384')
    A(f's_add_u32 s26, s26, 8192')
    A(f's_add_u32 s15, s15, 1')
    A(f's_branch {top}')
    A.label(fin)
    for x in ym_list('s31'):
        A(x[0])
    A('s_waitcnt vmcnt(0)')
    A(ymflag('s27'))
    A(f's_add_u32 s27, s27, {56 * 8}')
    A(ymflag('s27'))
    dump_cnt(A, cfg, 16, vT0, ['s33', 's70', 's71', 's72'])
    A('s_endpgm')
    flush_deferred(A)


def emit_C(A, cfg):
    NT = cfg.get('ntouch', 2)
    D = cfg.get('cdist', 3)
    first = min(16 * NT + 14 * cfg.get('ntouchB', 0), 56)
    nrounds = (56 - first + 7) // 8
    vL, vPF, vPL, vD, vLW, vLR, vST, t0, t1 = 1, 2, 3, 4, 5, 6, 7, 8, 9
    Q = 12
    A.pipe_model = False
    lane_fields(A, vL)
    A(f'v_lshlrev_b32 {v(vPF)}, 7, {v(vL)}')
    A('s_lshl_b32 s16, s14, 2')
    A('s_add_u32 s16, s16, s13')
    A('s_cmp_eq_u32 s16, 7')
    A('s_cselect_b32 s19, 0, s16')
    A('s_lshl_b32 s19, s19, 10')
    A(f'v_lshlrev_b32 {v(vST)}, 4, {v(vL)}')
    A('s_lshl_b32 s23, s13, 10')
    A(f'v_add_u32 {v(vLW)}, s23, {v(vST)}')
    A(f'v_lshrrev_b32 {v(t0)}, 4, {v(vL)}')
    A(f'v_lshlrev_b32 {v(vLR)}, 8, {v(t0)}')
    A(f'v_and_b32 {v(t0)}, 7, {v(vL)}')
    A(f'v_lshl_add_u32 {v(vLR)}, {v(t0)}, 4, {v(vLR)}')
    A(f'v_bfe_u32 {v(t0)}, {v(vL)}, 3, 1')
    A(f'v_lshl_add_u32 {v(vLR)}, {v(t0)}, 3, {v(vLR)}')
    A(f'v_add_u32 {v(vLR)}, s23, {v(vLR)}')
    A(f'v_add_u32 {v(vST)}, s19, {v(vST)}')
    A(f'v_add_u32 {v(vPL)}, {L.MEMA + 8192}, {v(vST)}')
    A('s_cmp_eq_u32 s16, 7')
    A(f's_cselect_b32 s19, 0x40000000, 0')
    A(f's_add_u32 s19, s19, {L.MEMX + 8192}')
    A('s_lshl_b32 s17, s16, 13')
    A(f's_add_u32 s17, s17, {L.XF}')
    A('s_mov_b32 s18, 28672')
    A('s_cmp_ge_u32 s16, 4')
    A(f's_cselect_b32 s17, {L.MEMA + 8192}, s17')
    A(f's_cselect_b32 s18, 8192, s18')
    A('s_cmp_eq_u32 s16, 6')
    A(f's_cselect_b32 s17, {L.PBUF}, s17')
    A('s_cmp_eq_u32 s16, 7')
    A(f's_cselect_b32 s17, {L.PBUF + 8192}, s17')
    A('s_cmp_ge_u32 s16, 6')
    A(f's_cselect_b32 s18, 16384, s18')
    for r in range(nrounds):
        A(f's_add_u32 s{24 + r}, s16, {first + 8 * r}')
        A(f's_min_u32 s{24 + r}, s{24 + r}, 55')
        A(f's_lshl_b32 s{24 + r}, s{24 + r}, 13')
        A(f's_add_u32 s{24 + r}, s{24 + r}, {L.YF}')
    assert nrounds == 0 or not cfg.get('fused')

    def touches():
        A(f'buffer_load_dword {v(vD)}, {v(vPF)}, {SRD}, s17 offen')
        A('s_add_u32 s17, s17, s18')
        for r in range(nrounds):
            A(f'buffer_load_dword {v(vD)}, {v(vPF)}, {SRD}, s{24 + r} offen')
            A(f's_add_u32 s{24 + r}, s{24 + r}, {16 * 28672}')
    if cfg.get('fused'):
        flag_wait_multi(A, [L.F_LN, L.F_LN + 64, L.F_LN + 128, L.F_LN + 192], Q)
    A(f's_mov_b32 s23, {L.MEMA}')
    A(f'buffer_load_dword {v(vD)}, {v(vPF)}, {SRD}, s23 offen')
    for _ in range(D):
        touches()
    def code_touch():
        if not cfg.get('ctouch', 0) or not cfg.get('fused'):
            return
        lab = A.newlabel('CPC')
        A.raw('    s_getpc_b64 s[26:27]')
        A.raw(f'{lab}:')
        A.raw(f'    s_sub_u32 s26, s26, {lab} - CHAIN_BEGIN')
        A('s_subb_u32 s27, s27, 0')
        A('s_lshl_b32 s23, s16, 12')
        A(f'v_lshlrev_b32 {v(t1)}, 6, {v(vL)}')
        A(f'v_add_u32 {v(t1)}, s23, {v(t1)}')
        A(f'global_load_dword {v(vD)}, {v(t1)}, s[26:27]')
    if cfg.get('fused') and cfg.get('ctouch', 0):
        soft_wait(A, L.F_INIT, cfg.get('ctn', 8), Q, 40, 4)
    code_touch()
    start_gate(A, cfg, Q, [L.F_Y0])
    for sg in range(1):
        for r in range(7):
            A(f's_add_u32 s23, s16, {8 * r}')
            A(f's_lshl_b32 s23, s23, 13')
            A(f's_add_u32 s23, s23, {L.YF + sg * 16 * 28672}')
            A(f'buffer_load_dword {v(vD)}, {v(vPF)}, {SRD}, s23 offen')
    A('s_mov_b32 s15, 1')
    top = A.newlabel('C_top')
    skip = A.newlabel('C_skip')
    A.label(top)
    A.forget()
    guard(A)
    A(f's_sleep 1')
    A(f'buffer_load_dwordx4 {v(Q, 4)}, {v(vPL)}, {SRD}, 0 offen sc1')
    A('s_waitcnt vmcnt(0)')
    check_regs(A, t0, [Q + i for i in range(4)])
    A(f's_cbranch_vccnz {top}')
    A(f'ds_write_b128 {v(vLW)}, {v(Q, 4)}')
    A(f'ds_read2_b32 {v(Q + 4, 2)}, {v(vLR)} offset0:0 offset1:32')
    A(f'ds_read2_b32 {v(Q + 6, 2)}, {v(vLR)} offset0:1 offset1:33')
    A('s_waitcnt lgkmcnt(0)')
    A(f'buffer_store_dwordx4 {v(Q + 4, 4)}, {v(vST)}, {SRD}, s19 offen sc1')
    A(f'v_add_u32 {v(vPL)}, 8192, {v(vPL)}')
    A('s_add_u32 s19, s19, 8192')
    A(f's_cmp_gt_u32 s15, {64 - D}')
    A(f's_cbranch_scc1 {skip}')
    touches()
    A.label(skip)
    A('s_add_u32 s15, s15, 1')
    A(f's_cmp_lt_u32 s15, 64')
    A(f's_cbranch_scc1 {top}')
    A('s_endpgm')
```

```python
import sys
from asmdsl import Asm, v, a, s
import layout as L
import gemm as G
import items as I
import prep
import prep2
import chain
from build_multi import KD, srd

SRD = 's[8:11]'
LDSW = 0x24f00
NAME = 'parallel_sum__memory_aug_recurrent_mem_tr__glu_gated_bilinear__prompt_kernel'


HEADER = """
Generated by my own scripts (gen/build_one.py and friends).  One persistent launch, one workgroup per CU.
Exact reformulation: A_h = Wq_h Wk_h^T * log2(e)/16, B_h = Wv_h Wo_h, so scores = q-token * A_h * k-token^T and
out = sum_h softmax(.) * (k-token * B_h).
 1. every workgroup: one tile group of A or B, layernorm of 8 tokens, arming of the hand-off slots
 2. 32 workgroups (normally one XCD; any placement works, then hand-offs are written through) run the 63-step memory
    recurrence with A/B resident in registers/LDS (sparse MFMA: 8 tokens split over the 16 rows)
 3. the others take tiles of xn*[B|Wg,Wu|A], the down projection and the x-query attention from work lists
Flags carry a per-launch nonce (agreed through d_debug); slots use an all-ones sentinel written in this launch.
"""


def flag_store(A, idx_sreg):
    A(f's_lshl_b32 s38, {idx_sreg}, 3')
    A(f's_add_u32 s38, s38, {L.FLAGS}')
    A('v_mov_b32 v24, s96')
    A('v_mov_b32 v25, s97')
    A(f'buffer_store_dwordx2 v[24:25], v31, {SRD}, s38 offen sc1')


def emit_main(A, cfg):
    XC = cfg.get('xcc', 0)
    tl = chain.tl
    A('s_cmp_ge_u32 s2, 256')
    A('s_cbranch_scc1 L_bail')
    A('s_load_dwordx4 s[4:7], s[0:1], 96')
    A('s_load_dwordx16 s[80:95], s[0:1], 0')
    A('s_load_dwordx8 s[16:23], s[0:1], 64')
    A('s_memrealtime s[98:99]')
    A('v_lshrrev_b32 v1, 6, v0')
    A('v_readfirstlane_b32 s13, v1')
    A('s_mov_b32 s33, 0')
    A('s_getreg_b32 s12, hwreg(HW_REG_XCC_ID)')
    A('s_and_b32 s12, s12, 15')
    A(f'v_mov_b32 v28, {LDSW}')
    A('v_mov_b32 v31, 0')
    A('v_mov_b32 v29, 32')
    A('s_add_u32 s75, s12, 6')
    A('s_mul_hi_u32 s38, s75, 0x24924925')
    A('s_mul_i32 s38, s38, 7')
    A('s_sub_u32 s77, s75, s38')
    A('s_mov_b32 s78, 7')
    G.emit_common_regs(A)
    if cfg.get('codepf', 0):
        A.raw('    s_getpc_b64 s[24:25]')
        A.raw('CODE_PC:')
        A('s_lshr_b32 s26, s2, 3')
        A('s_lshl_b32 s26, s26, 2')
        A('s_add_u32 s26, s26, s13')
        A.raw('    s_cmp_ge_u32 s26, (CODE_END - CODE_PC) / 8192')
        A('s_cbranch_scc1 E_pf')
        A('s_lshl_b32 s26, s26, 13')
        A('v_lshlrev_b32 v4, 7, v1')
        A('v_add_u32 v4, s26, v4')
        A('global_load_dword v247, v4, s[24:25]')
        A.label('E_pf', keep=True)
        A.vm = []
    A('s_waitcnt lgkmcnt(0)')
    srd(A, 8, 6, 7, L.WS_BYTES)
    srd(A, 56, 80, 81, 2048 * 896)
    srd(A, 60, 22, 23, 2048 * 896)
    A('s_mov_b64 s[34:35], s[16:17]')
    A('s_mov_b64 s[36:37], s[18:19]')
    A('s_mov_b64 s[64:65], s[20:21]')
    A('s_mov_b64 s[66:67], s[82:83]')
    tl(A, cfg, 's2', 0, 24, 0x1c000)
    A('s_cmp_lg_u32 s13, 0')
    A('s_cbranch_scc1 E_1')
    A('s_mov_b64 exec, 1')
    A('s_or_b32 s98, s98, 1')
    A('v_mov_b32 v240, s98')
    A('v_mov_b32 v241, s99')
    A('v_mov_b32 v242, 0')
    A('v_mov_b32 v243, 0')
    A('global_atomic_cmpswap_x2 v[244:245], v31, v[240:243], s[4:5] offset:16 sc0')
    A('v_mov_b32 v246, 64')
    A(f's_cmp_eq_u32 s12, {XC}')
    A('s_cbranch_scc0 E_0')
    A('v_mov_b32 v246, 1')
    A('global_atomic_add v246, v31, v246, s[4:5] sc0')
    A.label('E_0')
    A('s_mov_b64 exec, -1')
    A.label('E_1')
    A.forget()
    prep2.ln2_issue(A, 's[56:59]')
    A('s_and_b32 s50, s2, 7')
    A('s_lshl_b32 s50, s50, 2')
    A('s_bfe_u32 s51, s2, 0x20003')
    A('s_add_u32 s50, s50, s51')
    A('s_lshr_b32 s51, s2, 5')
    A('s_lshl_b32 s69, s50, 3')
    A('s_add_u32 s3, s69, s51')
    A('s_and_b32 s53, s50, 15')
    A('s_and_b32 s54, s51, 3')
    A('s_lshr_b32 s55, s51, 2')
    A('s_cmp_ge_u32 s50, 16')
    A('s_cbranch_scc1 E_B')
    srd(A, 68, 84, 85, 448 * 8192)
    srd(A, 72, 86, 87, 448 * 8192)
    prep2.item_ab2(A, 0)
    A('s_branch E_2')
    A.label('E_B')
    A.forget()
    srd(A, 68, 88, 89, 448 * 8192)
    srd(A, 72, 90, 91, 4096 * 896)
    prep2.item_ab2(A, 1)
    A.label('E_2')
    A.forget()
    for r in range(4):
        A(f'v_mov_b32 v{12 + r}, -1')
    A('s_lshl_b32 s50, s2, 2')
    A('s_add_u32 s50, s50, s13')
    A('s_mul_i32 s52, s50, 3072')
    A(f's_add_u32 s52, s52, {L.PX}')
    A('s_and_b32 s51, s50, 0x2fc')
    A('s_lshl_b32 s50, s50, 11')
    A(f's_add_u32 s50, s50, {L.MEMA}')
    A('s_cmp_eq_u32 s51, 0')
    A('s_cselect_b32 s50, 0x40000000, s50')
    A(f'buffer_store_dwordx4 v[12:15], {v(G.VLIN)}, {SRD}, s50 offen sc1')
    A(f'buffer_store_dwordx4 v[12:15], {v(G.VLIN)}, {SRD}, s50 offen offset:1024 sc1')
    for k in range(3):
        A(f'buffer_store_dwordx4 v[12:15], {v(G.VLIN)}, {SRD}, s52 offen offset:{k * 1024} sc1')
    A('s_cmp_ge_u32 s2, 2')
    A('s_cbranch_scc1 E_2b')
    A('s_lshl_b32 s39, s2, 2')
    A('s_add_u32 s39, s39, s13')
    A('s_min_u32 s39, s39, 6')
    srd(A, 68, 66, 67, 8 * 896)
    A('s_nop 1')
    prep.wave_mem0(A, 's[68:71]', ' sc1', 32)
    A.label('E_2b')
    A.forget()
    A('s_mov_b32 s75, s77')
    A('s_mov_b32 s76, s78')
    A('s_waitcnt vmcnt(0)')
    tl(A, cfg, 's2', 1, 24, 0x1c000)
    if cfg.get('tl'):
        A('v_mov_b32 v24, s92')
        A(f'buffer_store_dword v24, v25, {SRD}, s101 offen offset:8')
        A('v_mov_b32 v26, s94')
        A(f'buffer_store_dword v26, v25, {SRD}, s101 offen offset:12')
    A('s_cmp_lg_u32 s13, 0')
    A('s_cbranch_scc1 E_3')
    A('s_mov_b64 exec, 1')
    A('v_cmp_eq_u64 vcc, 0, v[244:245]')
    A('v_cndmask_b32 v244, v244, v240, vcc')
    A('v_cndmask_b32 v245, v245, v241, vcc')
    A('ds_write_b64 v28, v[244:245] offset:8')
    A('ds_write_b32 v28, v246')
    A('s_waitcnt lgkmcnt(0)')
    A('s_mov_b64 exec, -1')
    A.label('E_3')
    A('s_barrier')
    A('ds_read_b64 v[26:27], v28 offset:8')
    A('ds_read_b32 v30, v28')
    A('s_waitcnt lgkmcnt(0)')
    A('v_readfirstlane_b32 s96, v26')
    A('v_readfirstlane_b32 s97, v27')
    A('v_readfirstlane_b32 s14, v30')
    A('s_cmp_lg_u32 s13, 0')
    A('s_cbranch_scc1 E_4')
    A('s_mov_b64 exec, 1')
    A(f's_add_u32 s69, s3, {L.F_AB}')
    flag_store(A, 's69')
    A(f's_add_u32 s69, s2, {L.F_LN}')
    flag_store(A, 's69')
    A('s_mov_b64 exec, -1')
    A.label('E_4')
    A.forget()
    A('s_branch CL_got')
    A.label('CLAIM')
    A.forget()
    A('s_cmp_lg_u32 s13, 0')
    A('s_cbranch_scc1 CL_w')
    A('s_mov_b64 exec, 1')
    A('v_mov_b32 v30, 1')
    A('global_atomic_add v30, v31, v30, s[4:5] sc0')
    A('s_waitcnt vmcnt(0)')
    A('ds_write_b32 v28, v30')
    A('s_waitcnt lgkmcnt(0)')
    A('s_mov_b64 exec, -1')
    A.label('CL_w')
    A('s_barrier')
    A('ds_read_b32 v30, v28')
    A('s_waitcnt lgkmcnt(0)')
    A('v_readfirstlane_b32 s14, v30')
    A.label('CL_got')
    A('s_barrier')
    A('v_mov_b32 v29, 32')
    A('s_cmp_ge_u32 s14, 32')
    A('s_cbranch_scc1 W_deq')
    A('s_cmp_lg_u32 s13, 0')
    A('s_cbranch_scc1 CL_r')
    A('s_mov_b64 exec, 1')
    A('s_mul_i32 s38, s12, s12')
    A('s_lshl_b32 s38, s38, 9')
    A('s_add_u32 s38, s38, s12')
    A('s_lshl_b32 s38, s38, 6')
    A('s_add_u32 s38, s38, 1')
    A('v_mov_b32 v30, s38')
    A('global_atomic_add v31, v30, s[4:5] offset:8')
    A('s_mov_b64 exec, -1')
    A.label('CL_r')
    A.forget()
    A('s_cmp_ge_u32 s14, 30')
    A('s_cbranch_scc1 L_roleC')
    A('s_cmp_ge_u32 s14, 16')
    A('s_cbranch_scc1 L_roleB')
    A.raw('CHAIN_BEGIN:')
    chain.emit_A(A, cfg)
    A.label('L_roleB')
    A.forget()
    A('s_sub_u32 s14, s14, 16')
    chain.emit_B(A, cfg)
    A.label('L_roleC')
    A.forget()
    A('s_sub_u32 s14, s14, 30')
    chain.emit_C(A, cfg)
    A.label('L_bail')
    A('s_endpgm')

    def dequeue():
        A('s_lshl_b32 s38, s75, 2')
        A('v_mov_b32 v26, s38')
        A('v_mov_b32 v30, 1')
        A('global_atomic_add v30, v26, v30, s[4:5] offset:128 sc0')

    A.label('W_deq')
    A.forget()
    A('s_cmp_lg_u32 s13, 0')
    A('s_cbranch_scc1 W_f2')
    A('s_mov_b64 exec, 1')
    dequeue()
    A('s_waitcnt vmcnt(0)')
    A('ds_write_b32 v28, v30')
    A('s_waitcnt lgkmcnt(0)')
    A('s_mov_b64 exec, -1')
    A.label('W_f2')
    A('s_barrier')
    A.label('W_next')
    A.forget()
    A('ds_read_b32 v26, v28')
    A('s_waitcnt lgkmcnt(0)')
    A('v_readfirstlane_b32 s68, v26')
    A('s_cmp_eq_u32 s68, -1')
    A('s_cbranch_scc1 W_claim')
    A('s_cmp_eq_u32 s75, 7')
    A('s_cbranch_scc1 W_late')
    c0 = 0
    phases = ((32, 2, 'W_y0', 0), (32, 7, 'W_y', 1), (16, 7, 'W_pk', 0), (56, 1, 'W_pw', 0), (16, 8, 'W_gu', 1), (16, 8, 'W_t1', 1),
              (64, 1, 'W_g2', 1), (16, 8, 'W_t2', 1))
    for ncol, nrow, lab, adv in phases:
        A(f's_add_u32 s70, s75, {(7 - c0 % 7) % 7}')
        A('s_cmp_ge_u32 s70, 7')
        A('s_cselect_b32 s38, 7, 0')
        A('s_sub_u32 s70, s70, s38')
        full, rem = divmod(ncol, 7)
        A(f's_cmp_lt_u32 s70, {rem}')
        A(f's_cselect_b32 s71, {full + 1}, {full}')
        A(f's_cselect_b32 s72, {-(-65536 // (full + 1))}, 0')
        A(f's_cselect_b32 s38, 0, {-(-65536 // full)}')
        A('s_add_u32 s72, s72, s38')
        A(f's_mul_i32 s38, s71, {nrow}')
        A('s_cmp_lt_u32 s68, s38')
        A(f's_cbranch_scc1 {lab}')
        A('s_sub_u32 s68, s68, s38')
        if adv:
            c0 += ncol
    sizes = []
    for x in range(7):
        c0_, tot = 0, 0
        for ncol, nrow, lab, adv in phases:
            f = (x - c0_) % 7
            tot += len(range(f, ncol, 7)) * nrow
            if adv:
                c0_ += ncol
        sizes.append(tot)
    A('v_and_b32 v8, 7, v0')
    A('v_lshlrev_b32 v8, 2, v8')
    A('global_load_dword v9, v8, s[4:5] offset:128 sc1')
    A('v_mov_b32 v10, 0')
    for x in range(7):
        A(f's_mov_b32 s38, {sizes[x]}')
        A(f'v_writelane_b32 v10, s38, {x}')
    A('s_waitcnt vmcnt(0)')
    A('v_cmp_lt_u32 vcc, v9, v10')
    A('s_and_b32 s38, vcc_lo, 0x7f')
    A('s_or_b32 s38, s38, 0x80')
    A('s_ff1_i32_b32 s38, s38')
    A('v_mov_b32 v9, s38')
    A('s_barrier')
    A('s_cmp_lg_u32 s13, 0')
    A('s_cbranch_scc1 W_x1')
    A('ds_write_b32 v28, v9 offset:4')
    A('s_waitcnt lgkmcnt(0)')
    A.label('W_x1')
    A('s_barrier')
    A('ds_read_b32 v9, v28 offset:4')
    A('s_waitcnt lgkmcnt(0)')
    A('v_readfirstlane_b32 s75, v9')
    A('s_branch W_deq')

    def rbct():
        A('s_mul_i32 s73, s68, s72')
        A('s_lshr_b32 s73, s73, 16')
        A('s_mul_i32 s74, s73, s71')
        A('s_sub_u32 s74, s68, s74')
        A('s_mul_i32 s74, s74, 7')
        A('s_add_u32 s74, s74, s70')

    def fw(base, sreg, shift, n, sleep=4):
        A(f's_lshl_b32 s70, {sreg}, {shift}')
        A(f's_add_u32 s70, s70, {base}')
        chain.flag_wait(A, 's70', n, 8, sleep=sleep)

    A.label('W_y0')
    A.forget()
    rbct()
    A('s_lshl_b32 s39, s73, 5')
    A('s_add_u32 s39, s39, s74')
    A(f's_add_u32 s69, s39, {L.F_Y0}')
    tl(A, cfg, 's69', 0, 24)
    fw(L.F_LN, 's73', 4, 16)
    fw(L.F_AB + 128, 's74', 2, 4)
    I.item_y0(A)
    chain.dbgmax(A, cfg, 14, 24, ('s39', 40))
    A('s_branch W_end')
    A.label('W_t2')
    A('s_add_u32 s70, s70, 16')
    for lab, kind, sh, fb, add in (('W_t1', 'T', 5, L.F_T, 0), ('W_y', 'Y', 5, L.F_Y, 1), ('W_gu', 'GU', 4, L.F_GU, 0)):
        A.label(lab)
        A.forget()
        rbct()
        if add:
            A(f's_add_u32 s73, s73, {add}')
        A(f's_lshl_b32 s39, s73, {sh}')
        A('s_add_u32 s39, s39, s74')
        A(f's_add_u32 s69, s39, {fb}')
        tl(A, cfg, 's69', 0, 24)
        if kind == 'Y' and cfg.get('yield', 2) < 8:
            A(f's_cmp_lt_u32 s73, {cfg.get("yield", 2)}')
            A('s_cbranch_scc1 W_ny')
            A('s_cmp_lg_u32 s13, 0')
            A('s_cbranch_scc1 W_ny2')
            chain.soft_wait(A, L.F_INIT, 30, 8, cfg.get('ypolls', 7), 24)
            A.label('W_ny2', keep=True)
            A('s_barrier')
            A.label('W_ny', keep=True)
        fw(L.F_LN, 's73', 5, 32)
        if kind == 'GU':
            A('s_mul_i32 s74, s74, 7')
            fw(L.F_PK, 's74', 0, 7)
        else:
            fw(L.F_AB + (128 if kind == 'Y' else 0), 's74', 2, 4)
        I.item_gemm1(A, kind)
        if kind == 'Y' and cfg.get('rest', 0):
            A('s_lshr_b32 s38, s2, 3')
            A(f's_and_b32 s38, s38, 7')
            A(f's_cmp_lt_u32 s38, {cfg["rest"]}')
            A('s_cselect_b32 s75, 7, s75')
        A('s_branch W_end')
    A.label('W_pk')
    A.forget()
    rbct()
    A('s_mul_i32 s74, s74, 7')
    A('s_add_u32 s74, s74, s73')
    A(f's_add_u32 s43, s74, {L.F_PK}')
    A('s_lshl_b32 s39, s74, 2')
    A('s_add_u32 s39, s39, s13')
    A('s_mov_b64 s[46:47], s[74:75]')
    srd(A, 68, 34, 35, 448 * 3584)
    srd(A, 72, 36, 37, 448 * 3584)
    prep.wave_pack(A, 'GU', 7, ' sc1')
    A('s_mov_b64 s[74:75], s[46:47]')
    A('s_mov_b32 s69, s43')
    A('s_barrier')
    A('s_branch W_end')
    A.label('W_pw')
    A.forget()
    rbct()
    A(f's_add_u32 s43, s74, {L.F_PK + 112}')
    A('s_lshl_b32 s39, s74, 2')
    A('s_add_u32 s39, s39, s13')
    srd(A, 68, 64, 65, 1792 * 896)
    prep.wave_pack(A, 'WD', 7, ' sc1', 's[68:71]')
    A('s_mov_b32 s69, s43')
    A('s_barrier')
    A('s_branch W_end')
    A.label('W_g2')
    A.forget()
    rbct()
    A('s_mov_b32 s39, s74')
    A(f's_add_u32 s69, s39, {L.F_G2}')
    tl(A, cfg, 's69', 0, 24)
    chain.flag_wait(A, L.F_PK + 112, 56, 8, sleep=8)
    A('s_lshr_b32 s70, s39, 3')
    A('s_lshl_b32 s70, s70, 4')
    A('s_and_b32 s38, s39, 1')
    A('s_lshl_b32 s38, s38, 3')
    A('s_add_u32 s70, s70, s38')
    A(f's_add_u32 s70, s70, {L.F_GU}')
    chain.flag_wait(A, 's70', 8, 8, sleep=16)
    I.item_gemm2(A)
    chain.dbgmax(A, cfg, 15, 24, ('s39', 60))
    A('s_branch W_end')
    A.label('W_late')
    A.forget()
    LAG = cfg.get('lag', 5)
    A('s_cmp_eq_u32 s78, 0')
    A('s_cbranch_scc1 W_l2')
    chain.flag_wait_multi(A, [L.F_LN, L.F_LN + 64, L.F_LN + 128, L.F_LN + 192], 8)
    A('s_mov_b32 s78, 0')
    A.label('W_l2')
    A.forget()
    A(f's_cmp_ge_u32 s68, {(64 + LAG) * 11}')
    A('s_cbranch_scc1 L_bail')
    A('s_mul_hi_u32 s71, s68, 0x1745d175')
    A('s_mul_i32 s38, s71, 11')
    A('s_sub_u32 s72, s68, s38')
    A('s_cmp_ge_u32 s72, 4')
    A('s_cbranch_scc1 W_pv')
    A('s_cmp_ge_u32 s71, 64')
    A('s_cbranch_scc1 W_skip')
    A('s_lshl_b32 s39, s71, 2')
    A('s_add_u32 s39, s39, s72')
    A(f's_add_u32 s69, s39, {L.F_P}')
    tl(A, cfg, 's69', 0, 24)
    A('s_lshr_b32 s70, s71, 3')
    A('s_lshl_b32 s70, s70, 5')
    A('s_lshl_b32 s38, s72, 3')
    A('s_add_u32 s70, s70, s38')
    A(f's_add_u32 s70, s70, {L.F_T}')
    chain.flag_wait(A, 's70', 8, 8, sleep=16)
    def early_deq2(A):
        A('s_cmp_lg_u32 s13, 0')
        A('s_cbranch_scc1 W_ed2')
        A('s_mov_b64 exec, 1')
        dequeue()
        A('s_mov_b64 exec, -1')
        A.label('W_ed2', keep=True)
    I.item_punit(A, hook=early_deq2)
    A.forget()
    A('s_waitcnt vmcnt(3)')
    A('s_branch W_nf')
    A.label('W_skip')
    A('s_barrier')
    A('s_branch W_deq')
    A.label('W_pv')
    A.forget()
    A(f's_cmp_lt_u32 s71, {LAG}')
    A('s_cbranch_scc1 W_skip')
    A(f's_sub_u32 s71, s71, {LAG}')
    A('s_mul_i32 s39, s71, 7')
    A('s_add_u32 s39, s39, s72')
    A('s_sub_u32 s39, s39, 4')
    A(f's_add_u32 s69, s39, {L.F_PV}')
    tl(A, cfg, 's69', 0, 24)
    A('s_lshr_b32 s70, s71, 3')
    A('s_lshl_b32 s70, s70, 5')
    A('s_lshr_b32 s38, s71, 2')
    A('s_lshl_b32 s38, s38, 5')
    A(f's_add_u32 s38, s38, {L.F_Y0}')
    A('s_cmp_lt_u32 s71, 8')
    A('s_cselect_b32 s70, s38, s70')
    chain.flag_wait(A, 's70', 32, 8, sleep=16)
    A('s_lshr_b32 s70, s71, 2')
    A('s_lshl_b32 s70, s70, 2')
    A(f's_add_u32 s70, s70, {L.F_G2}')
    chain.flag_wait(A, 's70', 4, 8, sleep=16)

    def wait_px(A):
        I.approach(A, 's71', 12, 0)
        A('s_cmp_ge_u32 s71, 62')
        A('s_cbranch_scc1 W_ymok')
        A('s_add_u32 s38, s71, 2')
        A('s_lshl_b32 s38, s38, 13')
        A('s_lshl_b32 s70, s54, 9')
        A('s_add_u32 s38, s38, s70')
        A(f's_add_u32 s38, s38, {L.MEMX}')
        A('v_mov_b32 v12, 0')
        A.label('W_ymp', keep=True)
        I.guard(A)
        A(f'buffer_load_dword v13, v12, {SRD}, s38 offen sc1')
        A('s_waitcnt vmcnt(0)')
        A('v_cmp_eq_u32 vcc, -1, v13')
        A('s_cbranch_vccz W_ymok')
        A('s_sleep 16')
        A('s_branch W_ymp')
        A.label('W_ymok', keep=True)
    def early_deq(A):
        A('s_cmp_lg_u32 s13, 0')
        A('s_cbranch_scc1 W_ed')
        A('s_mov_b64 exec, 1')
        dequeue()
        A('s_mov_b64 exec, -1')
        A.label('W_ed', keep=True)
    I.item_pvunit(A, wait_px, hook=early_deq)
    A.forget()
    chain.dbgmax(A, cfg, 13, 24, ('s39', 447))
    A.label('W_nf')
    tl(A, cfg, 's69', 1, 24)
    A('s_cmp_lg_u32 s13, 0')
    A('s_cbranch_scc1 W_e2')
    A('s_mov_b64 exec, 1')
    A('ds_write_b32 v28, v30')
    A('s_mov_b64 exec, -1')
    A('s_waitcnt lgkmcnt(0)')
    A('s_barrier')
    A('s_branch W_next')
    A.label('W_end')
    A.forget()
    A('s_cmp_lg_u32 s13, 0')
    A('s_cbranch_scc1 W_e1')
    A('v_readfirstlane_b32 s38, v29')
    A('v_mov_b32 v30, -1')
    A('s_cmp_lt_u32 s38, 32')
    A('s_cbranch_scc1 W_e1')
    A('s_mov_b64 exec, 1')
    dequeue()
    A('s_mov_b64 exec, -1')
    A('global_load_dword v29, v31, s[4:5] sc1')
    A.label('W_e1')
    A('s_waitcnt vmcnt(0)')
    tl(A, cfg, 's69', 1, 24)
    A('s_cmp_lg_u32 s13, 0')
    A('s_cbranch_scc1 W_e2')
    A('s_mov_b64 exec, 1')
    A('ds_write_b32 v28, v30')
    A('s_waitcnt lgkmcnt(0)')
    A('s_barrier')
    flag_store(A, 's69')
    A('s_mov_b64 exec, -1')
    A('s_branch W_next')
    A.label('W_e2')
    A('s_barrier')
    A('s_branch W_next')
    A.label('W_claim')
    A('s_barrier')
    A('s_branch CLAIM')


def build(cfg):
    cfg = dict(cfg)
    cfg['fused'] = 1
    I.CFG.update(cfg)
    prep2.CFG.update(cfg)
    A = Asm()
    for line in HEADER.strip().split('\n'):
        A.raw('; ' + line)
    cfg.setdefault('ntouch', 4)
    if cfg.get('aslist'):
        A.raw(f'; @launch kernel={NAME} grid=(256,1,1) block=(256,1,1) lds=151552')
    else:
        A.raw('; @launch grid=(256,1,1) block=(256,1,1) lds=151552')
    A.raw('.amdgcn_target "amdgcn-amd-amdhsa--gfx950"\n.text')
    A.raw(f'.globl {NAME}\n.p2align 8\n.type {NAME},@function')
    A.label(NAME)
    emit_main(A, cfg)
    A.raw('CODE_END:')
    A.raw('.section .rodata,"a"')
    A.raw('.p2align 6')
    A.raw(KD.format(name=NAME))
    return A.text()


if __name__ == '__main__':
    cfg = {}
    for kv in sys.argv[2:]:
        k, val = kv.split('=')
        cfg[k] = int(val)
    open(sys.argv[1], 'w').write(build(cfg))
```

```python
from asmdsl import v, a, s
import layout as L

SRD = 's[8:11]'
NSTEP = 63


def stamp(A, cfg, slot):
    if cfg.get('stamps'):
        A(f's_memtime s[{40 + 2 * slot}:{41 + 2 * slot}]')


def rstamp(A, cfg, slot):
    if cfg.get('stamps'):
        A(f's_memrealtime s[{40 + 2 * slot}:{41 + 2 * slot}]')


def stamp_flush(A, cfg, nslots, base_sreg, vt):
    if not cfg.get('stamps'):
        return
    A('s_waitcnt lgkmcnt(0)')
    for k in range(nslots):
        A(f'v_mov_b32 {v(vt)}, s{40 + 2 * k}')
        A(f'v_mov_b32 {v(vt + 1)}, 0')
        A(f'buffer_store_dword {v(vt)}, {v(vt + 1)}, {SRD}, s{base_sreg} offen offset:{4 * k}')
    A(f's_add_u32 s{base_sreg}, s{base_sreg}, 64')


def guard(A):
    A('s_add_u32 s33, s33, 1')
    A('s_cmp_gt_u32 s33, 0x200000')
    A('s_cbranch_scc1 L_bail')


def tl(A, cfg, idx_sreg_or_int, slot, vt, base=0):
    if not cfg.get('tl'):
        return
    A('s_memrealtime s[100:101]')
    A('s_waitcnt lgkmcnt(0)')
    A(f'v_mov_b32 {v(vt)}, s100')
    A(f'v_mov_b32 {v(vt + 1)}, 0')
    if isinstance(idx_sreg_or_int, int):
        A(f's_mov_b32 s101, {L.STAMP + base + idx_sreg_or_int * 16}')
    else:
        A(f's_lshl_b32 s101, {idx_sreg_or_int}, 4')
        A(f's_add_u32 s101, s101, {L.STAMP + base}')
    A(f'buffer_store_dword {v(vt)}, {v(vt + 1)}, {SRD}, s101 offen offset:{slot * 4}')


def dbgmax(A, cfg, word, vt, sel=('s14', 13)):
    if not cfg.get('dbg'):
        return
    sk = A.newlabel('DM')
    A(f's_cmp_lg_u32 {sel[0]}, {sel[1]}')
    A(f's_cbranch_scc1 {sk}')
    A('s_cmp_lg_u32 s13, 3')
    A(f's_cbranch_scc1 {sk}')
    A('s_memrealtime s[100:101]')
    A('s_waitcnt lgkmcnt(0)')
    A('s_sub_u32 s100, s100, s96')
    A(f'v_mov_b32 {v(vt)}, s100')
    A(f'v_mov_b32 {v(vt + 1)}, 0')
    A(f'global_store_dword {v(vt + 1)}, {v(vt)}, s[4:5] offset:{4 * word}')
    A.label(sk, keep=True)


def flag_wait(A, first, n, vt, sleep=8):
    A(f'v_and_b32 {v(vt)}, 63, v0')
    A(f'v_min_u32 {v(vt)}, {n - 1}, {v(vt)}')
    A(f'v_lshlrev_b32 {v(vt)}, 3, {v(vt)}')
    if isinstance(first, int):
        A(f's_mov_b32 s38, {L.FLAGS + 8 * first}')
    else:
        A(f's_lshl_b32 s38, {first}, 3')
        A(f's_add_u32 s38, s38, {L.FLAGS}')
    lab, ok = A.newlabel('FW'), A.newlabel('FWok')
    A.label(lab, keep=True)
    guard(A)
    A(f'buffer_load_dwordx2 {v(vt + 2, 2)}, {v(vt)}, {SRD}, s38 offen sc1')
    A('s_waitcnt vmcnt(0)')
    A(f'v_cmp_ne_u64 vcc, s[96:97], {v(vt + 2, 2)}')
    A(f's_cbranch_vccz {ok}')
    A(f's_sleep {sleep}')
    A(f's_branch {lab}')
    A.label(ok, keep=True)


def flag_wait_multi(A, firsts, vt, sleep=4):
    A(f'v_and_b32 {v(vt)}, 63, v0')
    A(f'v_lshlrev_b32 {v(vt)}, 3, {v(vt)}')
    lab, ok = A.newlabel('FM'), A.newlabel('FMok')
    A.label(lab, keep=True)
    guard(A)
    for i, f in enumerate(firsts):
        A(f's_mov_b32 s38, {L.FLAGS + 8 * f}')
        A(f'buffer_load_dwordx2 {v(vt + 2 + 2 * i, 2)}, {v(vt)}, {SRD}, s38 offen sc1')
    A('s_waitcnt vmcnt(0)')
    A('s_mov_b64 s[40:41], 0')
    for i in range(len(firsts)):
        A(f'v_cmp_ne_u64 vcc, s[96:97], {v(vt + 2 + 2 * i, 2)}')
        A('s_or_b64 s[40:41], s[40:41], vcc')
    A(f's_cbranch_scc0 {ok}')
    A(f's_sleep {sleep}')
    A(f's_branch {lab}')
    A.label(ok, keep=True)


def loaded_flag(A, cfg, add, vt):
    if not cfg.get('fused'):
        return
    sk = A.newlabel('LF')
    A('s_cmp_lg_u32 s13, 3')
    A(f's_cbranch_scc1 {sk}')
    A(f's_add_u32 s38, s14, {L.F_INIT + add}')
    A('s_lshl_b32 s38, s38, 3')
    A(f's_add_u32 s38, s38, {L.FLAGS}')
    A(f'v_mov_b32 {v(vt)}, s96')
    A(f'v_mov_b32 {v(vt + 1)}, s97')
    A(f'v_mov_b32 {v(vt + 2)}, 0')
    A('s_mov_b64 exec, 1')
    A(f'buffer_store_dwordx2 {v(vt, 2)}, {v(vt + 2)}, {SRD}, s38 offen sc1')
    A('s_mov_b64 exec, -1')
    A.label(sk, keep=True)


def soft_wait(A, first, n, vt, maxpolls, sleep):
    A(f'v_and_b32 {v(vt)}, 63, v0')
    A(f'v_min_u32 {v(vt)}, {n - 1}, {v(vt)}')
    A(f'v_lshlrev_b32 {v(vt)}, 3, {v(vt)}')
    A(f's_mov_b32 s38, {L.FLAGS + 8 * first}')
    A(f's_mov_b32 s40, {maxpolls}')
    lab, ok = A.newlabel('SW'), A.newlabel('SWok')
    A.label(lab, keep=True)
    A(f'buffer_load_dwordx2 {v(vt + 2, 2)}, {v(vt)}, {SRD}, s38 offen sc1')
    A('s_waitcnt vmcnt(0)')
    A(f'v_cmp_ne_u64 vcc, s[96:97], {v(vt + 2, 2)}')
    A(f's_cbranch_vccz {ok}')
    A(f's_sleep {sleep}')
    A('s_sub_u32 s40, s40, 1')
    A('s_cmp_lg_u32 s40, 0')
    A(f's_cbranch_scc1 {lab}')
    A.label(ok, keep=True)


def fill_share(A, base, kb_per_wave, widx_sreg, vt, vlin):
    for r in range(4):
        A(f'v_mov_b32 {v(vt + r)}, -1')
    A(f's_mul_i32 s38, {widx_sreg}, {kb_per_wave * 1024}')
    A(f's_add_u32 s38, s38, {base}')
    for k in range(kb_per_wave):
        if k and k % 4 == 0:
            A('s_add_u32 s38, s38, 4096')
        A(f'buffer_store_dwordx4 {v(vt, 4)}, {v(vlin)}, {SRD}, s38 offen offset:{(k & 3) * 1024} sc1')


def start_gate(A, cfg, vt, ranges=None):
    if not cfg.get('fused'):
        A('s_mov_b32 s12, 0')
        return
    firsts = ranges or [L.F_Y0, L.F_LN, L.F_LN + 64, L.F_LN + 128, L.F_LN + 192]
    A(f'v_and_b32 {v(vt)}, 63, v0')
    A(f'v_lshlrev_b32 {v(vt)}, 3, {v(vt)}')
    A(f'v_mov_b32 {v(vt + 1)}, 0')
    lab, ok, again = A.newlabel('SG'), A.newlabel('SGok'), A.newlabel('SGa')
    A.label(lab, keep=True)
    guard(A)
    for i, f in enumerate(firsts):
        A(f's_mov_b32 s38, {L.FLAGS + 8 * f}')
        A(f'buffer_load_dwordx2 {v(vt + 2 + 2 * i, 2)}, {v(vt)}, {SRD}, s38 offen sc1')
    A(f'global_load_dword {v(vt + 14)}, {v(vt + 1)}, s[4:5] offset:8 sc1')
    A('s_waitcnt vmcnt(0)')
    A(f'v_readfirstlane_b32 s12, {v(vt + 14)}')
    A('s_mov_b64 s[40:41], 0')
    for i in range(len(firsts)):
        A(f'v_cmp_ne_u64 vcc, s[96:97], {v(vt + 2 + 2 * i, 2)}')
        A('s_or_b64 s[40:41], s[40:41], vcc')
    A(f's_cbranch_scc1 {again}')
    A('s_and_b32 s38, s12, 63')
    A('s_cmp_ge_u32 s38, 32')
    A(f's_cbranch_scc1 {ok}')
    A.label(again, keep=True)
    A('s_sleep 3')
    A(f's_branch {lab}')
    A.label(ok, keep=True)
    A('s_bfe_u32 s38, s12, 0x90006')
    A('s_mul_i32 s38, s38, s38')
    A('s_lshr_b32 s12, s12, 15')
    A('s_lshl_b32 s12, s12, 5')
    A('s_cmp_lg_u32 s12, s38')
    A('s_cselect_b32 s12, 1, 0')


def mid_gate(A, cfg, vt, vfl):
    if not cfg.get('fused'):
        return
    skip = A.newlabel('MG')
    A('s_cmp_ge_u32 s39, 0x40000000')
    A(f's_cbranch_scc1 {skip}')
    A('s_waitcnt vmcnt(0)')
    A(f'v_cmp_ne_u64 vcc, s[96:97], {v(vfl, 2)}')
    A(f's_cbranch_vccz {skip}')
    A(f's_sub_u32 s39, s39, {L.FLAGS}')
    A('s_lshr_b32 s39, s39, 3')
    flag_wait(A, 's39', 32, vt, sleep=2)
    A.label(skip, keep=True)


def gate_prep(A, cfg):
    if not cfg.get('fused'):
        A('s_mov_b32 s39, 0x40000000')
        return
    A('s_lshr_b32 s39, s15, 3')
    A('s_add_u32 s39, s39, 1')
    A('s_min_u32 s39, s39, 7')
    A('s_lshl_b32 s39, s39, 8')
    A(f's_add_u32 s39, s39, {L.FLAGS}')
    A('s_and_b32 s38, s15, 7')
    A('s_lshl_b32 s38, s38, 8')
    A('s_add_u32 s38, s38, s31')
    A(f's_cmp_eq_u32 s38, {((6 - cfg.get("pfdist", 2)) << 8) + 3}')
    A('s_cselect_b32 s39, s39, 0x40000000')


def dual_prep(A, sreg, sfast, sslow):
    A('s_cmp_eq_u32 s12, 0')
    A(f's_cselect_b32 {sfast}, {sreg}, 0x40000000')
    A(f's_cselect_b32 {sslow}, 0x40000000, {sreg}')


def dual_store(A, fmt, sfast, sslow):
    A(fmt.format(s=sfast))
    A(fmt.format(s=sslow) + ' sc1')


def flush_deferred(A):
    for slow, text, done in A.deferred:
        A.label(slow)
        A.raw('    ' + text)
        A.raw(f'    s_branch {done}')
    A.deferred = []


def align(A, cfg, key, default=0):
    n = cfg.get(key, default)
    if n < 0:
        return
    A.raw('    .p2align 6')
    for _ in range(n // 4):
        A.raw('    s_nop 0')


def WFL(cfg):
    return {0: ' sc1', 1: ' sc1 nt'}[cfg.get('wnt', 0)]


def dump_cnt(A, cfg, add, vt, regs):
    if not cfg.get('cnt'):
        return
    A(f's_add_u32 s38, s14, {add}')
    A('s_lshl_b32 s38, s38, 2')
    A('s_add_u32 s38, s38, s13')
    A('s_lshl_b32 s38, s38, 4')
    A(f's_add_u32 s38, s38, {L.STAMP + 0x30000}')
    A(f'v_mov_b32 {v(vt + 1)}, 0')
    for i, r in enumerate(regs):
        A(f'v_mov_b32 {v(vt)}, {r}')
        A(f'buffer_store_dword {v(vt)}, {v(vt + 1)}, {SRD}, s38 offen offset:{4 * i}')


def lane_fields(A, vl):
    A(f'v_and_b32 {v(vl)}, 63, v0')


def emit_koffs(A):
    A('s_lshl_b32 s23, s13, 1')
    for k in range(7):
        A(f's_add_u32 s{16 + k}, s23, {k}')
        A(f's_cmp_ge_u32 s{16 + k}, 7')
        A(f's_cselect_b32 s24, 7, 0')
        A(f's_sub_u32 s{16 + k}, s{16 + k}, s24')
        A(f's_lshl_b32 s{16 + k}, s{16 + k}, 10')


def warm_vm(A, n, vw, cfg):
    if cfg.get('nowarm'):
        A(f's_waitcnt vmcnt({n})')
        return
    lab = A.newlabel('W')
    A.label(lab, keep=True)
    A(f'v_mov_b32 {v(vw)}, {v(vw)}')
    A(f's_getreg_b32 s38, hwreg(HW_REG_IB_STS, 0, 4)')
    A(f's_cmp_gt_u32 s38, {n}')
    A(f'v_mov_b32 {v(vw)}, {v(vw)}')
    A(f's_cbranch_scc1 {lab}')
    A(f's_waitcnt vmcnt({n})')


def keepalive(A, vw, n, cfg):
    if cfg.get('nowarm'):
        return
    if n > 1:
        A.comment('keep the VALU active while data is in flight (an idle VALU restarts throttled) / space the polls')
    for _ in range(n):
        A(f'v_mov_b32 {v(vw)}, {v(vw)}')


def warm_mfma(A, base, cfg):
    if cfg.get('nowarm'):
        return
    A(f'v_mfma_f32_32x32x16_bf16 {v(base, 16)}, {v(base + 16, 4)}, {v(base + 16, 4)}, {v(base, 16)}')


def check_regs(A, tmp, regs, autowait=True):
    E = A.auto if autowait else A
    E(f'v_max3_u32 {v(tmp)}, {v(regs[0])}, {v(regs[1])}, {v(regs[2])}')
    i = 3
    while i + 1 < len(regs):
        E(f'v_max3_u32 {v(tmp)}, {v(tmp)}, {v(regs[i])}, {v(regs[i + 1])}')
        i += 2
    if i < len(regs):
        E(f'v_max_u32 {v(tmp)}, {v(tmp)}, {v(regs[i])}')
    A(f'v_cmp_eq_u32 vcc, -1, {v(tmp)}')


def sparse_idx(A, vIDX, vL, t2, t3):
    A(f'v_and_b32 {v(t2)}, 8, {v(vL)}')
    A(f'v_cmp_ne_u32 vcc, 0, {v(t2)}')
    A(f'v_mov_b32 {v(t2)}, 0x4444')
    A(f'v_mov_b32 {v(t3)}, 0xeeee')
    A(f'v_cndmask_b32 {v(vIDX)}, {v(t2)}, {v(t3)}, vcc')


def emit_A(A, cfg):
    W5 = 0x0000
    MIMG = 0xE000
    TIMG = 0x10000
    SIMG = 0x14800
    QS = cfg.get('qs', 160)
    vL, vIDX, vMA, vMKa, vMKb, vMK3, vW5, vXK, vXK3, vTW, vTW6, vTR, vTR3, vSW, vSR, vPS, vPF = range(1, 18)
    vM = lambda k: 18 + k
    vSW2 = 25
    vT0 = 26
    M = lambda k: 32 + 4 * k
    ACC = lambda n: 60 + 4 * n
    WS5 = lambda b: 88 + 8 * b
    XK = lambda q, t: 112 + 8 * q + 4 * t
    XK3 = lambda t: 136 + 2 * t
    PSET = lambda r: 140 + 8 * r
    MK = lambda q: 140 + 4 * q
    TB = lambda q: (ACC(2 * q) if q < 3 else ACC(6) + 2)
    SACC = lambda t: 156 + 4 * t
    vDUM = 168
    vFL, vFA = 170, 172
    LT = 1
    PORD = [1, 2, 0]
    regtiles = [0, 2, 3, 4, 5, 6]

    def W(n, k):
        i = regtiles.index(n) * 7 + k
        return a(8 * i, 8) if i < 32 else v(176 + 8 * (i - 32), 8)

    def Whalf(n, k, eh):
        i = regtiles.index(n) * 7 + k
        return a(8 * i + 4 * eh, 4) if i < 32 else v(176 + 8 * (i - 32) + 4 * eh, 4)

    t0, t1, t2, t3 = vT0, vT0 + 1, vT0 + 2, vT0 + 3
    A.pipe_model = bool(cfg.get('pipe', 1))
    tl(A, cfg, 's14', 0, 30, 0x18000)
    lane_fields(A, vL)
    emit_koffs(A)
    A(f'v_and_b32 {v(t0)}, 15, {v(vL)}')
    A(f'v_lshrrev_b32 {v(t1)}, 4, {v(vL)}')
    sparse_idx(A, vIDX, vL, t2, t3)
    A(f'v_lshlrev_b32 {v(t2)}, 9, {v(t1)}')
    A(f'v_lshl_add_u32 {v(vPF)}, {v(t0)}, 4, {v(t2)}')
    if cfg.get('fused'):
        A('s_lshl_b32 s23, s14, 3')
        A('s_lshr_b32 s24, s13, 1')
        A('s_lshl_b32 s24, s24, 2')
        A('s_add_u32 s23, s23, s24')
        A(f's_add_u32 s23, s23, {L.F_AB}')
        flag_wait(A, 's23', 4, 32, sleep=2)
    A(f's_mul_i32 s25, s14, {14 * 28672}')
    A(f's_add_u32 s25, s25, {L.WF + L.NB_A * 28672}')
    A(f's_mul_i32 s26, s13, 7')
    A(f's_mul_i32 s28, s13, 14336')
    cnt = 0
    for n in range(7):
        A(f's_add_u32 s23, s26, {n}')
        A(f's_lshr_b32 s24, s23, 1')
        A(f's_mul_i32 s24, s24, 28672')
        A(f's_and_b32 s23, s23, 1')
        A(f's_lshl_b32 s23, s23, 8')
        A(f's_add_u32 s27, s25, s24')
        A(f's_add_u32 s27, s27, s23')
        for k in range(7):
            A(f's_lshl_b32 s23, s{16 + k}, 2')
            A(f's_add_u32 s23, s23, s27')
            for eh in range(2):
                if n == LT:
                    A(f's_add_u32 s24, s28, {W5 + (k * 2 + eh) * 1024}')
                    A(f's_mov_b32 m0, s24')
                    if eh:
                        A(f's_add_u32 s23, s23, 2048')
                    A(f'buffer_load_dwordx4 {v(vPF)}, {SRD}, s23 offen{WFL(cfg)} lds')
                else:
                    A(f'buffer_load_dwordx4 {Whalf(n, k, eh)}, {v(vPF)}, {SRD}, s23 offen offset:{2048 * eh}{WFL(cfg)}')
                cnt += 1
                if cnt % 16 == 0:
                    A(f's_waitcnt vmcnt({cfg.get("wdepth", 40)})')
    A(f'v_lshlrev_b32 {v(vMA)}, 4, {v(vL)}')
    A(f'v_add_u32 {v(vW5)}, s28, {v(vMA)}')
    for k in range(7):
        A(f's_add_u32 s23, s{16 + k}, {MIMG}')
        A(f'v_add_u32 {v(vM(k))}, s23, {v(vMA)}')
    A(f'v_add_u32 {v(vMA)}, {L.MEMA}, {v(vMA)}')
    A(f'v_and_b32 {v(t2)}, 7, {v(vL)}')
    A(f'v_lshlrev_b32 {v(t2)}, 4, {v(t2)}')
    A(f's_mul_i32 s23, s13, {7 * 256}')
    A(f's_add_u32 s23, s23, {MIMG}')
    A(f'v_lshrrev_b32 {v(t3)}, 1, {v(t1)}')
    A(f'v_lshl_add_u32 {v(vMKa)}, {v(t3)}, 8, {v(t2)}')
    A(f'v_and_b32 {v(t3)}, 1, {v(t1)}')
    A(f'v_lshl_add_u32 {v(vMKa)}, {v(t3)}, 3, {v(vMKa)}')
    A(f'v_add_u32 {v(vMKa)}, s23, {v(vMKa)}')
    A(f'v_add_u32 {v(vMKb)}, 1024, {v(vMKa)}')
    A(f'v_lshl_add_u32 {v(vMK3)}, {v(t1)}, 2, {v(t2)}')
    A(f's_add_u32 s23, s23, {6 * 256}')
    A(f'v_add_u32 {v(vMK3)}, s23, {v(vMK3)}')
    A(f'v_and_b32 {v(t2)}, 6, {v(t0)}')
    A(f'v_lshlrev_b32 {v(t2)}, 1, {v(t2)}')
    A(f'v_lshrrev_b32 {v(t3)}, 3, {v(t0)}')
    A(f'v_lshl_add_u32 {v(t2)}, {v(t3)}, 1, {v(t2)}')
    A(f'v_and_b32 {v(t3)}, 1, {v(t0)}')
    A(f'v_add_u32 {v(t2)}, {v(t3)}, {v(t2)}')
    A(f'v_lshlrev_b32 {v(t2)}, 4, {v(t2)}')
    A(f'v_lshl_add_u32 {v(vXK)}, {v(t1)}, 9, {v(t2)}')
    A(f'v_lshrrev_b32 {v(t3)}, 1, {v(t1)}')
    A(f'v_lshl_add_u32 {v(vXK3)}, {v(t3)}, 9, {v(t2)}')
    A(f'v_and_b32 {v(t3)}, 1, {v(t1)}')
    A(f'v_lshl_add_u32 {v(vXK3)}, {v(t3)}, 3, {v(vXK3)}')
    A(f'v_add_u32 {v(vXK3)}, {6 * 1024}, {v(vXK3)}')
    A(f's_lshl_b32 s30, s13, 11')
    A(f's_mul_i32 s23, s13, 4352')
    A(f's_add_u32 s23, s23, {TIMG}')
    def plane(dst, src, tmp):
        A(f'v_lshlrev_b32 {v(dst)}, 10, {v(src)}')
        A(f'v_and_b32 {v(tmp)}, 1, {v(src)}')
        A(f'v_lshl_add_u32 {v(dst)}, {v(tmp)}, 5, {v(dst)}')
        A(f'v_lshrrev_b32 {v(tmp)}, 1, {v(src)}')
        A(f'v_lshl_add_u32 {v(dst)}, {v(tmp)}, 7, {v(dst)}')
    plane(t2, t1, t3)
    A(f'v_lshl_add_u32 {v(vTW)}, {v(t0)}, 3, {v(t2)}')
    A(f'v_add_u32 {v(vTW)}, s23, {v(vTW)}')
    A(f'v_and_b32 {v(vTR)}, 3, {v(vL)}')
    plane(t2, vTR, t3)
    A(f'v_bfe_u32 {v(t3)}, {v(vL)}, 2, 2')
    A(f'v_lshl_add_u32 {v(t2)}, {v(t3)}, 3, {v(t2)}')
    A(f'v_lshl_add_u32 {v(vTR)}, {v(t1)}, 6, {v(t2)}')
    A(f'v_add_u32 {v(vTR)}, s23, {v(vTR)}')
    A(f'v_lshl_add_u32 {v(vTR3)}, {v(t1)}, 5, {v(t2)}')
    A(f'v_add_u32 {v(vTR3)}, {96 * 8}, {v(vTR3)}')
    A(f'v_add_u32 {v(vTR3)}, s23, {v(vTR3)}')
    A(f's_add_u32 s23, s30, {SIMG}')
    A(f'v_lshrrev_b32 {v(t3)}, 3, {v(t0)}')
    A(f'v_lshl_add_u32 {v(t2)}, {v(t3)}, 2, {v(t1)}')
    A(f'v_mul_u32_u24 {v(t2)}, {QS}, {v(t2)}')
    A(f'v_and_b32 {v(vSW2)}, 7, {v(t0)}')
    A(f'v_lshl_add_u32 {v(vSW)}, {v(vSW2)}, 4, {v(t2)}')
    A(f'v_add_u32 {v(vSW)}, s23, {v(vSW)}')
    A(f'v_lshlrev_b32 {v(vSW2)}, 4, {v(vSW2)}')
    A(f'v_lshl_add_u32 {v(vSW2)}, {v(t3)}, 3, {v(vSW2)}')
    A(f'v_add_u32 {v(t2)}, 8, {v(t1)}')
    A(f'v_mul_u32_u24 {v(t2)}, {QS}, {v(t2)}')
    A(f'v_add3_u32 {v(vSW2)}, {v(vSW2)}, {v(t2)}, s23')
    A('s_mov_b32 s36, 0xff00ff00')
    A('s_mov_b32 s37, 0xff00ff00')
    A(f'v_mov_b32 {v(t3)}, 12')
    A(f'v_cmp_gt_u32 vcc, 10, {v(t0)}')
    A(f'v_cndmask_b32 {v(t2)}, {v(t3)}, {v(t0)}, vcc')
    A(f'v_mul_u32_u24 {v(t2)}, {QS}, {v(t2)}')
    A(f's_lshl_b32 s23, s13, 2')
    A(f'v_add_u32 {v(t3)}, s23, {v(t1)}')
    A(f'v_and_b32 {v(t3)}, 7, {v(t3)}')
    A(f'v_lshl_add_u32 {v(vSR)}, {v(t3)}, 4, {v(t2)}')
    A(f'v_add_u32 {v(vSR)}, {SIMG}, {v(vSR)}')
    A(f'v_lshrrev_b32 {v(t2)}, 1, {v(t0)}')
    A(f'v_lshlrev_b32 {v(t2)}, 7, {v(t2)}')
    A(f'v_lshl_add_u32 {v(t2)}, {v(t3)}, 4, {v(t2)}')
    A(f'v_and_b32 {v(t3)}, 1, {v(t0)}')
    A(f'v_lshl_add_u32 {v(t2)}, {v(t3)}, 3, {v(t2)}')
    A(f'v_mov_b32 {v(t3)}, 0x40000000')
    A(f'v_cndmask_b32 {v(vPS)}, {v(t3)}, {v(t2)}, vcc')
    A(f'v_mov_b32 {v(t2)}, 0xf149f2ca')
    A(f'v_and_b32 {v(t3)}, 31, {v(vL)}')
    A(f'v_lshlrev_b32 {v(t3)}, 2, {v(t3)}')
    A(f's_add_u32 s23, s30, {SIMG + 12 * QS}')
    A(f'v_add_u32 {v(t3)}, s23, {v(t3)}')
    A(f'ds_write_b32 {v(t3)}, {v(t2)}')
    A('s_waitcnt vmcnt(0)')
    A(f'v_lshlrev_b32 {v(vPF)}, 7, {v(vL)}')
    A(f's_mul_i32 s24, s14, 640')
    A(f's_add_u32 s24, s24, {L.PBUF}')
    A(f's_mul_i32 s25, s13, 7168')
    A(f's_add_u32 s25, s25, {L.XF}')
    NT = cfg.get('ntouch', 2)
    A(f's_mul_i32 s26, s14, {NT}')
    A(f's_add_u32 s26, s26, s13')
    A(f's_min_u32 s26, s26, 55')
    A(f's_lshl_b32 s26, s26, 13')
    A(f's_add_u32 s26, s26, {L.YF + cfg.get("pfdist", 2) * 16 * 28672}')
    A(f's_cmp_ge_u32 s13, {NT}')
    A(f's_cselect_b32 s23, 0x40000000, 0')
    A(f'v_add_u32 {v(vPF)}, s23, {v(vPF)}')
    A(f's_mov_b32 s15, 0')
    A('s_lshl_b32 s31, s14, 2')
    A('s_add_u32 s31, s31, s13')
    A(f'v_and_b32 {v(vFA)}, 31, {v(vL)}')
    A(f'v_lshlrev_b32 {v(vFA)}, 3, {v(vFA)}')
    if cfg.get('stamps'):
        A(f's_lshl_b32 s32, s14, 2')
        A(f's_add_u32 s32, s32, s13')
        A(f's_lshl_b32 s32, s32, 12')
        A(f's_add_u32 s32, s32, {L.STAMP}')

    def xload():
        for q in range(3):
            if q == 2:
                A(f's_add_u32 s23, s25, 4096')
            for tt in range(2):
                if q < 2:
                    A(f'buffer_load_dwordx4 {v(XK(q, tt), 4)}, {v(vXK)}, {SRD}, s25 offen offset:{q * 2048 + tt * 256} sc1')
                else:
                    A(f'buffer_load_dwordx4 {v(XK(q, tt), 4)}, {v(vXK)}, {SRD}, s23 offen offset:{tt * 256} sc1')
        for tt in range(2):
            A(f'buffer_load_dwordx2 {v(XK3(tt), 2)}, {v(vXK3)}, {SRD}, s25 offen offset:{tt * 256} sc1')
        A(f's_add_u32 s25, s25, 28672')

    A('s_waitcnt vmcnt(0) lgkmcnt(0)')
    tl(A, cfg, 's14', 1, vT0 + 4, 0x18000)
    loaded_flag(A, cfg, 0, M(4))
    start_gate(A, cfg, M(0))
    tl(A, cfg, 's14', 2, vT0 + 4, 0x18000)
    dbgmax(A, cfg, 8, vT0 + 4)
    xload()
    A('s_barrier')

    top = A.newlabel('A_top')
    poll = A.newlabel('A_poll')
    var1 = A.newlabel('A_var1')
    common = A.newlabel('A_common')
    nxt = A.newlabel('A_next')
    def w5read(k):
        for eh in range(2):
            A(f'ds_read_b128 {v(WS5(k % 3) + 4 * eh, 4)}, {v(vW5)} offset:{(k * 2 + eh) * 1024}')

    def prepare():
        for k in range(3):
            w5read(k)
        for r in range(12):
            A(f'v_mov_b32 {v(SACC(0) + r)}, 0')
        for r in range(28):
            A(f'v_mov_b32 {v(ACC(0) + r)}, 0')
    prepare()
    A.label(top)
    A.forget()
    dual_prep(A, 's24', 's34', 's35')
    gate_prep(A, cfg)
    A('s_cmp_lt_u32 s39, 0x40000000')
    A('s_cselect_b32 s30, 1, 0')
    A('s_cmp_eq_u32 s15, 0')
    A('s_cselect_b32 s30, 1, s30')
    A('s_waitcnt lgkmcnt(0)')
    if cfg.get('asleep', 5):
        A.comment('poll back-off: the next mem cannot be there yet, early polls only load the L2 the hand-offs go through')
        A(f's_sleep {cfg.get("asleep", 5)}')

    SPLIT = cfg.get('split', 0)

    def pissue(r):
        for k in range(2):
            A(f'buffer_load_dwordx4 {v(PSET(r) + 4 * k, 4)}, {v(vMA)}, {SRD}, s{16 + k} offen sc1')
            if k == 0 and SPLIT:
                A(f's_nop {cfg.get("kgap", 11)}')
    var0 = A.newlabel('A_var0')

    def quick(r):
        keepalive(A, vDUM + 1, cfg.get('kap', 12), cfg)
        check_regs(A, t0, [PSET(r) + i for i in range(4 if SPLIT else 8)])
    keepalive(A, vDUM + 1, cfg.get('adel', 0), {})
    pissue(0)
    keepalive(A, vDUM + 1, cfg.get('pgapA', 20), {})
    align(A, cfg, 'alAp')
    A.label(poll, keep=True)
    guard(A)
    pissue(1)
    quick(0)
    A(f's_cbranch_vccz {var0}')
    pissue(0)
    quick(1)
    A(f's_cbranch_vccnz {poll}')

    E6 = cfg.get('early6', 2)
    BPOS = cfg.get('bpos', 5)
    tiles01 = [1, 0, 2, 3, 4, 5] + ([6] if E6 else [])

    def mf(n, k, mreg):
        wreg = v(WS5(k % 3), 8) if n == LT else W(n, k)
        return f'v_smfmac_f32_16x16x64_bf16 {v(ACC(n), 4)}, {v(mreg, 4)}, {wreg}, {v(vIDX)}'

    lates = []

    def variant(r):
        A.vm = [set(('v', PSET(1 - r) + i) for i in range(4)), set(('v', PSET(1 - r) + 4 + i) for i in range(4))]
        if SPLIT:
            A.vm.insert(0, set(('v', PSET(r) + 4 + i) for i in range(4)))
        A.lg = []
        A.smem_out = []
        stamp(A, cfg, 0)
        seq = [(n, k) for k in range(2) for n in tiles01]
        rd = [k for k in range(2, 7)] + ([] if E6 else [0, 1])
        Q = PSET(r) + 4
        C1 = cfg.get('c1pos', 2)
        late, late_back = A.newlabel('A_late'), A.newlabel('A_lb')
        w5q = []
        for i, (n, k) in enumerate(seq):
            A(mf(n, k, PSET(r) + 4 * k))
            if i == 0 or (i == 1 and not SPLIT):
                A(f'ds_write_b128 {v(vM(i))}, {v(PSET(r) + 4 * i, 4)}')
            if SPLIT:
                if i == C1:
                    A('s_waitcnt vmcnt(2)')
                    A(f'ds_write_b128 {v(vM(1))}, {v(Q, 4)}')
                    A(f'v_max3_u32 {v(t0)}, {v(Q)}, {v(Q + 1)}, {v(Q + 2)}')
                if i == C1 + 1:
                    A(f'v_max_u32 {v(t0)}, {v(t0)}, {v(Q + 3)}')
                if i == C1 + 2:
                    A(f'v_cmp_eq_u32 vcc, -1, {v(t0)}')
                    A(f's_cbranch_vccnz {late}')
                    A.label(late_back, keep=True)
                    lates.append((late, late_back, Q))
            if i == BPOS - 1:
                assert not SPLIT or i >= C1 + 2
                stamp(A, cfg, 5)
                A('s_waitcnt lgkmcnt(0)')
                A('s_barrier')
                stamp(A, cfg, 6)
            if n == LT:
                w5q += [(k + 3, 0), (k + 3, 1)]
            if i >= BPOS - 1:
                if rd:
                    kk = rd.pop(0)
                    A(f'ds_read_b128 {v(M(kk), 4)}, {v(vM(kk))}')
                elif w5q:
                    kk, eh = w5q.pop(0)
                    A(f'ds_read_b128 {v(WS5(kk % 3) + 4 * eh, 4)}, {v(vW5)} offset:{(kk * 2 + eh) * 1024}')
        assert not rd
        for kk, eh in w5q:
            A(f'ds_read_b128 {v(WS5(kk % 3) + 4 * eh, 4)}, {v(vW5)} offset:{(kk * 2 + eh) * 1024}')

    A.label(var1)
    variant(1)
    if cfg.get('cnt'):
        A('s_add_u32 s70, s70, 1')
    A(f's_branch {common}')
    align(A, cfg, 'alA0')
    A.label(var0)
    variant(0)
    A.label(common, keep=True)
    A.vm = [set(('v', PSET(0) + i) for i in range(16))]

    seq = []
    for n in (2, 3, 4, 5, 0, 1, 6):
        for k in range(E6 if n == 6 else 2, 7):
            seq.append((n, k))
    for k, pos in ((2, 0), (3, 5)):
        seq.remove((LT, k))
        seq.insert(pos, (LT, k))
    NS = len(seq)
    rare, rare_back = A.newlabel('A_rare'), A.newlabel('A_rb')
    memq = []
    memq.append((0, f'buffer_load_dword {v(vDUM)}, {v(vPF)}, {SRD}, s26 offen'))
    memq.append((16, 'RARE'))
    for i, (n, k) in enumerate(seq):
        if n == LT and k + 3 < 7:
            for eh in range(2):
                memq.append((i, f'ds_read_b128 {v(WS5((k + 3) % 3) + 4 * eh, 4)}, {v(vW5)} offset:{((k + 3) * 2 + eh) * 1024}'))
    mkstart = cfg.get('mkpos', 3)
    memq.append((mkstart, 's_waitcnt vmcnt(1)'))
    for q in range(3):
        ad = v(vMKa) if q < 2 else v(vMKb)
        o = 128 * q if q < 2 else 0
        memq.append((mkstart, f'ds_read2_b32 {v(MK(q), 2)}, {ad} offset0:{o} offset1:{o + 32}'))
        memq.append((mkstart, f'ds_read2_b32 {v(MK(q) + 2, 2)}, {ad} offset0:{o + 1} offset1:{o + 33}'))
    memq.append((mkstart, f'ds_read2_b32 {v(MK(3), 2)}, {v(vMK3)} offset0:0 offset1:32'))
    memq.sort(key=lambda x: x[0])
    done = {}
    for i, (n, k) in enumerate(seq):
        done[n] = i
    post = []

    def tpost(n):
        C = ACC(n)
        ops = [f'v_cvt_pk_bf16_f32 {v(C)}, {v(C)}, {v(C + 1)}', f'v_cvt_pk_bf16_f32 {v(C + 1)}, {v(C + 2)}, {v(C + 3)}',
               f'ds_write_b64 {v(vTW)}, {v(C, 2)} offset:{128 * n}']
        if n == 6:
            ops += [f'ds_read_b64_tr_b16 {v(TB(3), 2)}, {v(vTR3)}']
        elif n & 1:
            p = n >> 1
            ops += [f'ds_read_b64_tr_b16 {v(TB(p), 2)}, {v(vTR)} offset:{256 * p}',
                    f'ds_read_b64_tr_b16 {v(TB(p) + 2, 2)}, {v(vTR)} offset:{256 * p + 32}']
        return ops
    for n in (2, 3, 4, 5, 0, 1):
        post.append((done[n] + cfg.get('pdelay', 2), tpost(n)))
    smf = []
    for p in PORD:
        for t in range(3):
            key = v(XK(p, t), 4) if t < 2 else v(MK(p), 4)
            smf.append(f'v_mfma_f32_16x16x32_bf16 {v(SACC(t), 4)}, {key}, {v(TB(p), 4)}, {v(SACC(t), 4)}')
    NEARLY = cfg.get('searly', 2)
    queue = []
    A.mfma_states = cfg.get('mfstates', 1)
    for i, (n, k) in enumerate(seq):
        if i in (0, 1, 10, 20, 30):
            stamp(A, cfg, 7 + (0, 1, 10, 20, 30).index(i))
        if i == NS - 3:
            for _ in range(NEARLY):
                A.auto(smf.pop(0))
        A.auto(mf(n, k, M(k)))
        for st, ops in post:
            if st == i:
                queue += ops
        nm = 0
        if queue and not queue[0].startswith('v_'):
            A(queue.pop(0))
            nm = 1
        while memq and memq[0][0] <= i and nm < 1:
            o = memq.pop(0)[1]
            if o == 'RARE':
                A('s_cmp_lg_u32 s30, 0')
                A(f's_cbranch_scc1 {rare}')
                A.label(rare_back, keep=True)
                nm += 1
                continue
            A(o)
            if not o.startswith('s_'):
                nm += 1
        if queue and queue[0].startswith('v_') and A.pad_needed(queue[0]) <= cfg.get('maxpad', 0):
            A(queue.pop(0))
    assert not memq
    tailops = queue
    stamp(A, cfg, 1)
    for o in tailops:
        A(o)
    A.auto(smf.pop(0))
    A.auto(smf.pop(0))
    for o in tpost(6):
        A(o)
    stamp(A, cfg, 13)
    for m_ in smf:
        A.auto(m_)
    for t in range(3):
        key = v(XK3(t), 2) if t < 2 else v(MK(3), 2)
        A.auto(f'v_mfma_f32_16x16x16_bf16 {v(SACC(t), 4)}, {key}, {v(TB(3), 2)}, {v(SACC(t), 4)}')
    stamp(A, cfg, 12)
    for r in range(4):
        A(f'v_add_f32_dpp {v(SACC(0) + r)}, {v(SACC(0) + r)}, {v(SACC(0) + r)} row_ror:8 row_mask:0xf bank_mask:0x3')
    for r in range(4):
        A(f'v_add_f32_dpp {v(SACC(0) + r)}, {v(SACC(1) + r)}, {v(SACC(1) + r)} row_ror:8 row_mask:0xf bank_mask:0xc')
    A(f'ds_write_b128 {v(vSW)}, {v(SACC(0), 4)}')
    for r in range(2):
        A(f'v_add_f32_dpp {v(SACC(2) + r)}, {v(SACC(2) + r)}, {v(SACC(2) + r)} row_ror:8 row_mask:0xf bank_mask:0x3')
    for r in range(2):
        A(f'v_add_f32_dpp {v(SACC(2) + r)}, {v(SACC(2) + 2 + r)}, {v(SACC(2) + 2 + r)} row_ror:8 row_mask:0xf bank_mask:0xc')
    A(f'ds_write_b64 {v(vSW2)}, {v(SACC(2), 2)}')
    A('s_cmp_ge_u32 s13, 2')
    keepalive(A, vDUM + 1, cfg.get('ka1', 8), cfg)
    warm_mfma(A, M(0), cfg)
    A('s_waitcnt lgkmcnt(0)')
    A('s_barrier')
    stamp(A, cfg, 2)
    A(f's_cbranch_scc1 {nxt}')
    R = lambda w: ACC(0) + 4 * w
    for w in range(4):
        A(f'ds_read_b128 {v(R(w), 4)}, {v(vSR)} offset:{w * 2048}')
        keepalive(A, vDUM + 1, 1, cfg)
    keepalive(A, vDUM + 1, cfg.get('ka2', 8), cfg)
    s0 = R(0)
    ml, m, ll, f, e0, cm2 = R(4), R(4) + 2, R(5), R(5) + 2, R(2), R(6)
    A(f'v_mov_b32 {v(cm2)}, -2')
    A.auto(f'v_pk_add_f32 {v(R(0), 2)}, {v(R(0), 2)}, {v(R(1), 2)}')
    A(f'v_pk_add_f32 {v(R(0) + 2, 2)}, {v(R(0) + 2, 2)}, {v(R(1) + 2, 2)}')
    A.auto(f'v_pk_add_f32 {v(R(2), 2)}, {v(R(2), 2)}, {v(R(3), 2)}')
    A(f'v_pk_add_f32 {v(R(2) + 2, 2)}, {v(R(2) + 2, 2)}, {v(R(3) + 2, 2)}')
    A(f'v_pk_add_f32 {v(R(0), 2)}, {v(R(0), 2)}, {v(R(2), 2)}')
    A(f'v_pk_add_f32 {v(R(0) + 2, 2)}, {v(R(0) + 2, 2)}, {v(R(2) + 2, 2)}')
    dpp = 'row_mask:0xf bank_mask:0xf'
    A(f'v_max3_f32 {v(ml)}, {v(s0)}, {v(s0 + 1)}, {v(s0 + 2)}')
    A(f'v_max_f32 {v(ml)}, {v(ml)}, {v(s0 + 3)}')
    A(f'v_sub_f32 {v(e0)}, {v(s0)}, {v(ml)}')
    A(f'v_sub_f32 {v(e0 + 1)}, {v(s0 + 1)}, {v(ml)}')
    A(f'v_max_f32_dpp {v(m)}, {v(ml)}, {v(ml)} row_ror:8 {dpp}')
    A(f'v_sub_f32 {v(e0 + 2)}, {v(s0 + 2)}, {v(ml)}')
    A(f'v_sub_f32 {v(e0 + 3)}, {v(s0 + 3)}, {v(ml)}')
    A(f'v_max_f32_dpp {v(m)}, {v(m)}, {v(m)} row_ror:4 {dpp}')
    A(f'v_exp_f32 {v(e0)}, {v(e0)}')
    A(f'v_exp_f32 {v(e0 + 1)}, {v(e0 + 1)}')
    A(f'v_max_f32_dpp {v(m)}, {v(m)}, {v(m)} row_ror:2 {dpp}')
    A(f'v_exp_f32 {v(e0 + 2)}, {v(e0 + 2)}')
    A(f'v_exp_f32 {v(e0 + 3)}, {v(e0 + 3)}')
    A(f'v_max_f32_dpp {v(m)}, {v(m)}, {v(m)} row_ror:1 {dpp}')
    if cfg.get('sm2', 1):
        A(f'v_sub_f32 {v(f)}, {v(ml)}, {v(m)}')
        A(f'v_pk_add_f32 {v(ll, 2)}, {v(e0, 2)}, {v(e0 + 2, 2)}')
        A(f'v_exp_f32 {v(f)}, {v(f)}')
        A(f'v_add_f32 {v(ll)}, {v(ll)}, {v(ll + 1)}')
        A(f'v_mul_f32 {v(ll)}, {v(ll)}, {v(f)}')
        A(f'v_mul_f32 {v(e0)}, {v(e0)}, {v(f)}')
        A(f'v_mul_f32 {v(e0 + 1)}, {v(e0 + 1)}, {v(f)}')
        A(f'v_add_f32_dpp {v(ll)}, {v(ll)}, {v(ll)} row_ror:8 {dpp}')
        A(f'v_mul_f32 {v(e0 + 2)}, {v(e0 + 2)}, {v(f)}')
        A(f'v_mul_f32 {v(e0 + 3)}, {v(e0 + 3)}, {v(f)}')
        A(f'v_add_f32_dpp {v(ll)}, {v(ll)}, {v(ll)} row_ror:4 {dpp}')
        A(f'v_add_f32_dpp {v(ll)}, {v(ll)}, {v(ll)} row_ror:2 {dpp}')
        A(f'v_add_f32_dpp {v(ll)}, {v(ll)}, {v(ll)} row_ror:1 {dpp}')
        A(f'v_rcp_f32 {v(ll)}, {v(ll)}')
        A(f'v_pk_mul_f32 {v(e0, 2)}, {v(e0, 2)}, {v(ll, 2)} op_sel_hi:[1,0]')
        A(f'v_pk_mul_f32 {v(e0 + 2, 2)}, {v(e0 + 2, 2)}, {v(ll, 2)} op_sel_hi:[1,0]')
    else:
        A(f'v_pk_add_f32 {v(ll, 2)}, {v(e0, 2)}, {v(e0 + 2, 2)}')
        A(f'v_sub_f32 {v(f)}, {v(ml)}, {v(m)}')
        A(f'v_exp_f32 {v(f)}, {v(f)}')
        A(f'v_add_f32 {v(ll)}, {v(ll)}, {v(ll + 1)}')
        A(f'v_mul_f32 {v(ll)}, {v(ll)}, {v(f)}')
        A(f'v_mul_f32 {v(e0)}, {v(e0)}, {v(f)}')
        A(f'v_mul_f32 {v(e0 + 1)}, {v(e0 + 1)}, {v(f)}')
        A(f'v_add_f32_dpp {v(ll)}, {v(ll)}, {v(ll)} row_ror:8 {dpp}')
        A(f'v_mul_f32 {v(e0 + 2)}, {v(e0 + 2)}, {v(f)}')
        A(f'v_mul_f32 {v(e0 + 3)}, {v(e0 + 3)}, {v(f)}')
        A(f'v_add_f32_dpp {v(ll)}, {v(ll)}, {v(ll)} row_ror:4 {dpp}')
        A(f'v_add_f32_dpp {v(ll)}, {v(ll)}, {v(ll)} row_ror:2 {dpp}')
        A(f'v_add_f32_dpp {v(ll)}, {v(ll)}, {v(ll)} row_ror:1 {dpp}')
        A(f'v_rcp_f32 {v(ll)}, {v(ll)}')
        for i in range(4):
            A(f'v_mul_f32 {v(e0 + i)}, {v(e0 + i)}, {v(ll)}')
    A(f'v_cvt_pk_bf16_f32 {v(s0)}, {v(e0)}, {v(e0 + 1)}')
    A(f'v_cvt_pk_bf16_f32 {v(s0 + 1)}, {v(e0 + 2)}, {v(e0 + 3)}')
    A(f'v_min_u32 {v(s0)}, {v(s0)}, {v(cm2)}')
    A(f'v_min_u32 {v(s0 + 1)}, {v(s0 + 1)}, {v(cm2)}')
    dual_store(A, f'buffer_store_dwordx2 {v(s0, 2)}, {v(vPS)}, {SRD}, {{s}} offen', 's34', 's35')
    A.label(nxt, keep=True)
    stamp(A, cfg, 3)
    rstamp(A, cfg, 4)
    if not cfg.get('nohold'):
        A('s_barrier')
    A('s_nop 1')
    prepare()
    if cfg.get('xdelay', 0):
        A(f's_sleep {cfg.get("xdelay", 0)}')
    xload()
    mid_gate(A, cfg, vT0, vFL)
    if cfg.get('tl'):
        skp = A.newlabel('TLS')
        A('s_add_u32 s38, s14, s13')
        A('s_cmp_lg_u32 s38, 18')
        A(f's_cbranch_scc1 {skp}')
        tl(A, cfg, 's15', 0, vT0 + 4, 0x10000)
        A('s_memtime s[98:99]')
        A('s_waitcnt lgkmcnt(0)')
        A(f'v_mov_b32 {v(vT0 + 4)}, s98')
        A(f'buffer_store_dword {v(vT0 + 4)}, {v(vT0 + 5)}, {SRD}, s101 offen offset:4')
        A.label(skp, keep=True)
    stamp_flush(A, cfg, 14, 32, vT0 + 4)
    A(f'v_add_u32 {v(vMA)}, 8192, {v(vMA)}')
    A(f's_add_u32 s24, s24, 16384')
    A(f's_add_u32 s26, s26, {16 * 28672}')
    A(f's_add_u32 s15, s15, 1')
    if cfg.get('dbg'):
        for stp, wd in ((8, 9), (32, 10), (2, 6), (4, 7)):
            sk = A.newlabel('DB')
            A(f's_cmp_lg_u32 s15, {stp}')
            A(f's_cbranch_scc1 {sk}')
            dbgmax(A, cfg, wd, vT0 + 4)
            A.label(sk, keep=True)
    A(f's_cmp_lt_u32 s15, {NSTEP}')
    A(f's_cbranch_scc1 {top}')
    dbgmax(A, cfg, 11, vT0 + 4)
    dump_cnt(A, cfg, 0, vT0 + 4, ['s33', 's70'])
    A('s_endpgm')
    A.label(rare)
    A.forget()
    A(f'buffer_load_dwordx2 {v(vFL, 2)}, {v(vFA)}, {SRD}, s39 offen sc1')
    for back in range(cfg.get('pfdist', 2) - 1, 0, -1):
        A(f's_sub_u32 s38, s26, {back * 16 * 28672}')
        A('s_cmp_eq_u32 s15, 0')
        A('s_cselect_b32 s38, s38, 0x40000000')
        A(f'buffer_load_dword {v(vDUM)}, {v(vPF)}, {SRD}, s38 offen')
    A(f's_branch {rare_back}')
    for late, late_back, Q in lates:
        A.label(late)
        A.forget()
        guard(A)
        A(f'buffer_load_dwordx4 {v(Q, 4)}, {v(vMA)}, {SRD}, s17 offen sc1')
        A('s_waitcnt vmcnt(0)')
        check_regs(A, t0, [Q + i for i in range(4)])
        A(f's_cbranch_vccnz {late}')
        A(f'ds_write_b128 {v(vM(1))}, {v(Q, 4)}')
        A(f's_branch {late_back}')
    flush_deferred(A)


def emit_B(A, cfg):
    WL = 0x0000
    RIMG = 0x20000
    MIMG = 0x23000
    vL, vIDX, vMA, vWL, vYX, vP, vP2, vRW, vRR, vSA, vSK, vYM, vPF = range(1, 14)
    vT0 = 14
    M = lambda k: 20 + 4 * k
    YACC = lambda hh, t: 48 + 4 * (hh * 2 + t)
    YX = lambda k, t: 80 + 8 * (k * 2 + t)
    YB = lambda t: 112 + 4 * t
    M2 = 120
    YBN = lambda t: 180 + 4 * t
    OACC = lambda t: 128 + 4 * t
    ST = lambda b: 136 + 8 * b
    P = lambda r, k: ((20 if r == 0 else 120) + 4 * k) if k < 2 else 182 + 2 * r
    Pregs = lambda r: [P(r, 0) + i for i in range(8)] + [P(r, 2), P(r, 2) + 1]
    vM = lambda k: 168 + k
    vDUM = 176

    def W(ht, k):
        i = ht * 5 + k
        return a(8 * i, 8) if i < 32 else v(192 + 8 * (i - 32), 8)

    def Whalf(ht, k, eh):
        i = ht * 5 + k
        return a(8 * i + 4 * eh, 4) if i < 32 else v(192 + 8 * (i - 32) + 4 * eh, 4)

    t0, t1, t2, t3 = vT0, vT0 + 1, vT0 + 2, vT0 + 3
    lane_fields(A, vL)
    emit_koffs(A)
    A(f'v_and_b32 {v(t0)}, 15, {v(vL)}')
    A(f'v_lshrrev_b32 {v(t1)}, 4, {v(vL)}')
    sparse_idx(A, vIDX, vL, t2, t3)
    A(f'v_lshlrev_b32 {v(t2)}, 9, {v(t1)}')
    A(f'v_lshl_add_u32 {v(vYX)}, {v(t0)}, 4, {v(t2)}')
    if cfg.get('fused'):
        A('s_lshl_b32 s23, s13, 5')
        A(f's_add_u32 s23, s23, {L.F_AB + 128}')
        flag_wait(A, 's23', 32, 20, sleep=2)
    A(f's_mul_i32 s25, s13, 56')
    A(f's_add_u32 s25, s25, s14')
    A(f's_mul_i32 s25, s25, 28672')
    A(f's_add_u32 s25, s25, {L.WF + L.NB_B * 28672}')
    A(f's_lshl_b32 s28, s13, 15')
    cnt = 0
    for hh in range(4):
        for k in range(7):
            A(f's_lshl_b32 s23, s{16 + k}, 2')
            A(f's_add_u32 s23, s23, s25')
            A(f's_add_u32 s23, s23, {hh * 14 * 28672}')
            for eh in range(2):
                for t in range(2):
                    ht = hh * 2 + t
                    if k >= 5:
                        A(f's_add_u32 s24, s28, {WL + ((ht * 2 + (k - 5)) * 2 + eh) * 1024}')
                        A(f's_mov_b32 m0, s24')
                        A(f's_add_u32 s24, s23, {2048 * eh + 256 * t}')
                        A(f'buffer_load_dwordx4 {v(vYX)}, {SRD}, s24 offen{WFL(cfg)} lds')
                    else:
                        A(f'buffer_load_dwordx4 {Whalf(ht, k, eh)}, {v(vYX)}, {SRD}, s23 offen offset:{2048 * eh + 256 * t}{WFL(cfg)}')
                    cnt += 1
                    if cnt % 16 == 0:
                        A(f's_waitcnt vmcnt({cfg.get("wdepth", 40)})')
    A(f'v_lshlrev_b32 {v(vMA)}, 4, {v(vL)}')
    A(f'v_add_u32 {v(vWL)}, s28, {v(vMA)}')
    A(f'v_add_u32 {v(vYM)}, 0, {v(vMA)}')
    for k in range(7):
        A(f's_add_u32 s23, s{16 + k}, {MIMG}')
        A(f'v_add_u32 {v(vM(k))}, s23, {v(vMA)}')
    A(f'v_add_u32 {v(vMA)}, {L.MEMA}, {v(vMA)}')
    A(f'v_lshrrev_b32 {v(t2)}, 1, {v(t1)}')
    A(f'v_mul_u32_u24 {v(t2)}, 640, {v(t2)}')
    A(f'v_and_b32 {v(t3)}, 1, {v(t1)}')
    A(f'v_lshl_add_u32 {v(t2)}, {v(t3)}, 8, {v(t2)}')
    A(f'v_lshl_add_u32 {v(vP)}, {v(t0)}, 4, {v(t2)}')
    A(f'v_lshrrev_b32 {v(t2)}, 1, {v(t1)}')
    A(f'v_bfe_u32 {v(t3)}, {v(vL)}, 3, 1')
    A(f'v_lshl_add_u32 {v(t2)}, {v(t3)}, 1, {v(t2)}')
    A(f'v_mul_u32_u24 {v(t2)}, 640, {v(t2)}')
    A(f'v_and_b32 {v(t3)}, 7, {v(vL)}')
    A(f'v_lshl_add_u32 {v(t2)}, {v(t3)}, 4, {v(t2)}')
    A(f'v_and_b32 {v(t3)}, 1, {v(t1)}')
    A(f'v_lshl_add_u32 {v(t2)}, {v(t3)}, 3, {v(t2)}')
    A(f'v_add_u32 {v(vP2)}, 512, {v(t2)}')
    A(f's_mul_i32 s23, s13, 3072')
    A(f's_add_u32 s23, s23, {RIMG}')
    A(f'v_mul_u32_u24 {v(t2)}, {4 * 192}, {v(t1)}')
    A(f'v_lshl_add_u32 {v(vRW)}, {v(t0)}, 3, {v(t2)}')
    A(f'v_add_u32 {v(vRW)}, s23, {v(vRW)}')
    A(f'v_lshrrev_b32 {v(t3)}, 3, {v(vL)}')
    A(f'v_and_b32 {v(t2)}, 3, {v(vL)}')
    A(f'v_lshlrev_b32 {v(vSA)}, 2, {v(t2)}')
    A(f'v_lshlrev_b32 {v(t2)}, 1, {v(t2)}')
    A(f'v_bfe_u32 {v(t0)}, {v(vL)}, 2, 1')
    A(f'v_lshl_add_u32 {v(vSA)}, {v(t0)}, 7, {v(vSA)}')
    A(f'v_lshl_add_u32 {v(vSA)}, {v(t3)}, 4, {v(vSA)}')
    A(f'v_add_u32 {v(t2)}, {v(t2)}, {v(t0)}')
    A(f's_and_b32 s23, s13, 1')
    A(f's_lshl_b32 s23, s23, 3')
    A(f'v_add_u32 {v(t0)}, s23, {v(t2)}')
    A(f'v_mul_u32_u24 {v(t2)}, 192, {v(t3)}')
    A(f'v_lshl_add_u32 {v(vRR)}, {v(t0)}, 3, {v(t2)}')
    A(f'v_add_u32 {v(vRR)}, {RIMG}, {v(vRR)}')
    A(f's_lshl_b32 s23, s14, 9')
    A(f's_and_b32 s24, s13, 1')
    A(f's_lshl_b32 s24, s24, 8')
    A(f's_add_u32 s24, s24, s23')
    A(f'v_add_u32 {v(vSA)}, s24, {v(vSA)}')
    A(f'v_lshlrev_b32 {v(vSK)}, 4, {v(t3)}')
    A(f'v_lshrrev_b32 {v(t2)}, 2, {v(t0)}')
    A(f'v_lshl_add_u32 {v(vSK)}, {v(t2)}, 7, {v(vSK)}')
    A(f'v_and_b32 {v(t2)}, 3, {v(t0)}')
    A(f'v_lshl_add_u32 {v(vSK)}, {v(t2)}, 2, {v(vSK)}')
    A(f'v_add_u32 {v(vSK)}, s23, {v(vSK)}')
    A(f's_cmp_ge_u32 s13, 2')
    A(f's_cselect_b32 s23, 0x40000000, 0')
    A(f'v_add_u32 {v(vSK)}, s23, {v(vSK)}')
    A(f's_mul_i32 s24, s13, {4 * 640}')
    A(f's_add_u32 s24, s24, {L.PBUF}')
    A(f's_mul_i32 s25, s13, 56')
    A(f's_add_u32 s25, s25, s14')
    A(f's_lshl_b32 s25, s25, 11')
    A(f's_add_u32 s25, s25, {L.YF}')
    A(f's_mov_b32 s26, {L.MEMA + 8192}')
    A(f's_mov_b32 s29, {L.MEMX}')
    A(f's_lshl_b32 s31, s14, 2')
    A(f's_add_u32 s31, s31, s13')
    A(f's_lshl_b32 s31, s31, 11')
    A(f's_add_u32 s31, s31, {L.YM}')
    NTA = cfg.get('ntouch', 2)
    NT = cfg.get('ntouchB', 0)
    A(f's_mul_i32 s34, s14, {NT}')
    A(f's_add_u32 s34, s34, {16 * NTA}')
    A(f's_add_u32 s34, s34, s13')
    A(f's_min_u32 s34, s34, 55')
    A(f's_lshl_b32 s34, s34, 13')
    A(f's_add_u32 s34, s34, {L.YF + cfg.get("pfdist", 2) * 16 * 28672}')
    A(f'v_lshlrev_b32 {v(vPF)}, 7, {v(vL)}')
    A(f's_cmp_ge_u32 s13, {NT}')
    A(f's_cselect_b32 s23, 0x40000000, 0')
    A(f'v_add_u32 {v(vPF)}, s23, {v(vPF)}')
    A(f's_mov_b32 s15, 0')
    A(f's_mov_b32 s35, 0x40000000')
    if cfg.get('stamps'):
        A(f's_add_u32 s32, s14, 16')
        A(f's_lshl_b32 s32, s32, 2')
        A(f's_add_u32 s32, s32, s13')
        A(f's_lshl_b32 s32, s32, 12')
        A(f's_add_u32 s32, s32, {L.STAMP}')
    vNON, vF0 = 178, 180
    A(f'v_mov_b32 {v(vNON)}, s96')
    A(f'v_mov_b32 {v(vNON + 1)}, s97')
    A(f'v_mov_b32 {v(t2)}, 0x40000000')
    A(f'v_cmp_eq_u32 vcc, 0, {v(vL)}')
    A(f'v_cndmask_b32 {v(vF0)}, {v(t2)}, {v(vL)}, vcc')
    A('s_lshl_b32 s27, s14, 2')
    A('s_add_u32 s27, s27, s13')
    A('s_lshl_b32 s27, s27, 3')
    A(f's_add_u32 s27, s27, {L.FLAGS + 8 * L.F_YM - 2 * 56 * 8}')
    ymflag = lambda sreg: f'buffer_store_dwordx2 {v(vNON, 2)}, {v(vF0)}, {SRD}, {sreg} offen sc1'
    vOUT = vT0 + 5
    A(f'v_mov_b32 {v(vOUT)}, 0')
    for r in range(8):
        A(f'v_mov_b32 {v(YB(0) + r)}, 0')

    def yx_list():
        out = []
        for k in range(2):
            for eh in range(2):
                for t in range(2):
                    out.append([f's_add_u32 s23, s25, {(2 * k + eh) * 14 * 2048}',
                                f'buffer_load_dwordx4 {v(YX(k, t) + 4 * eh, 4)}, {v(vYX)}, {SRD}, s23 offen offset:{256 * t} sc1'])
        return out

    def ym_list(sreg):
        return [[f'buffer_store_dwordx4 {v(YB(t), 4)}, {v(vYM)}, {SRD}, {sreg} offen offset:{t * 1024} sc1'] for t in range(2)]

    A('s_waitcnt vmcnt(0)')
    tl(A, cfg, 's14', 1, vT0 + 2, 0x18400)
    loaded_flag(A, cfg, 16, M(4))
    start_gate(A, cfg, M(0))
    tl(A, cfg, 's14', 2, vT0 + 2, 0x18400)
    dbgmax(A, cfg, 12, vT0 + 2)
    top = A.newlabel('B_top')
    mpoll = A.newlabel('B_mpoll')
    ppoll = A.newlabel('B_ppoll')
    nxt = A.newlabel('B_next')
    fin = A.newlabel('B_fin')
    A.label(top)
    A.forget()
    zero = [f'v_mov_b32 {v(YACC(0, 0) + r)}, 0' for r in range(32)] + [f'v_mov_b32 {v(OACC(0) + r)}, 0' for r in range(8)]
    if cfg.get('yxearly'):
        for x in yx_list():
            for y in x:
                A(y)
    ZP = cfg.get('zpre', 12)
    for x in zero[:ZP]:
        A(x)
    ldsq = [(hh * 2 + t, k) for t in range(2) for pr in range(2) for k in (5, 6) for hh in (2 * pr, 2 * pr + 1)]

    def wlread(j):
        ht, k = ldsq[j]
        for eh in range(2):
            A(f'ds_read_b128 {v(ST(j & 3) + 4 * eh, 4)}, {v(vWL)} offset:{((ht * 2 + (k - 5)) * 2 + eh) * 1024}')
    for j in range(4):
        wlread(j)
    if cfg.get('bsleep', 0):
        A(f's_sleep {cfg["bsleep"]}')
    MS = lambda r: (M(0) if r == 0 else M2)
    A(f's_add_u32 s36, s31, s35')

    def missue(r):
        for k in range(2):
            A(f'buffer_load_dwordx4 {v(MS(r) + 4 * k, 4)}, {v(vMA)}, {SRD}, s{16 + k} offen sc1')
    mv0, mv1, mcommon = A.newlabel('B_mv0'), A.newlabel('B_mv1'), A.newlabel('B_mc')
    missue(0)
    for x in zero[ZP:]:
        A(x)
    A.label(mpoll, keep=True)
    guard(A)
    missue(1)
    check_regs(A, t0, [MS(0) + i for i in range(8)])
    A(f's_cbranch_vccz {mv0}')
    missue(0)
    check_regs(A, t0, [MS(1) + i for i in range(8)])
    A(f's_cbranch_vccnz {mpoll}')
    lgsnap = [set(x) for x in A.lg]

    def allmem():
        ld_ = yx_list() if not (cfg.get('noyx') or cfg.get('yxearly')) else []
        st_ = ym_list('s36') if not cfg.get('noym') else []
        return st_ + ld_ if cfg.get('stfirst') else ld_ + st_
    left = []

    def mvariant(r):
        A.vm = [set(('v', MS(1 - r) + i) for i in range(8))]
        A.lg = [set(x) for x in lgsnap]
        A.smem_out = []
        stamp(A, cfg, 0)
        vmem = allmem()
        for i, (ht, k) in enumerate([(ht, k) for k in range(2) for ht in range(8)]):
            A(f'v_smfmac_f32_16x16x64_bf16 {v(YACC(ht >> 1, ht & 1), 4)}, {v(MS(r) + 4 * k, 4)}, {W(ht, k)}, {v(vIDX)}')
            if i < 2:
                A(f'ds_write_b128 {v(vM(i))}, {v(MS(r) + 4 * i, 4)}')
            if i == 4:
                A('s_waitcnt lgkmcnt(0)')
                A('s_barrier')
            if 4 <= i < 9:
                A(f'ds_read_b128 {v(M(i - 2), 4)}, {v(vM(i - 2))}')
            if i >= 5 and (i - 5) % cfg.get('vgap', 2) == 0 and vmem:
                for x in vmem.pop(0):
                    A(x)
            if i == 4:
                stamp(A, cfg, 8)
        left[:] = vmem
    A.label(mv1, keep=True)
    mvariant(1)
    if cfg.get('cnt'):
        A('s_add_u32 s72, s72, 1')
    A(f's_branch {mcommon}')
    align(A, cfg, 'alBm')
    A.label(mv0)
    mvariant(0)
    A.label(mcommon, keep=True)
    A.vm = [set(('v', M(0) + i) for i in range(8)) | set(('v', M2 + i) for i in range(8)) | set(('v', YX(0, 0) + i) for i in range(32))]
    mem = list(left)
    if NT:
        mem += [[f'buffer_load_dword {v(vDUM)}, {v(vPF)}, {SRD}, s34 offen']]
    def pissue(r):
        A(f'buffer_load_dwordx4 {v(P(r, 0), 4)}, {v(vP)}, {SRD}, s24 offen sc1')
        A(f'buffer_load_dwordx4 {v(P(r, 1), 4)}, {v(vP)}, {SRD}, s24 offen offset:1280 sc1')
        A(f'buffer_load_dwordx2 {v(P(r, 2), 2)}, {v(vP2)}, {SRD}, s24 offen sc1')
    seq = []
    groups = [(pr, t) for t in range(2) for pr in range(2)]
    for pr, t in groups:
        ha, hb = (2 * pr) * 2 + t, (2 * pr + 1) * 2 + t
        seq += [(ha, 5), (ha, 2), (hb, 2), (hb, 5), (ha, 3), (ha, 6), (hb, 3), (ha, 4), (hb, 6), (hb, 4)]
    assert [x for x in seq if x[1] >= 5] == ldsq
    lj = 0
    vq = []
    dq = []
    GAP = cfg.get('bmemgap', 2)

    def gpost(pr, t):
        Ya, Yb = YACC(2 * pr, t), YACC(2 * pr + 1, t)
        ops = [f'v_permlane32_swap_b32 {v(Ya + r)}, {v(Yb + r)}' for r in range(4)]
        ops += [f'v_add_f32 {v(Ya + r)}, {v(Ya + r)}, {v(Yb + r)}' for r in range(4)]
        ops += [f'v_cvt_pk_bf16_f32 {v(YB(t) + 2 * p + pr)}, {v(Ya + 2 * p)}, {v(Ya + 2 * p + 1)}' for p in range(2)]
        return ops
    sani = [f'v_min_u32 {v(YB(0) + r)}, -2, {v(YB(0) + r)}' for r in range(8)]
    for i, (ht, k) in enumerate(seq):
        if i % 10 == 0:
            stamp(A, cfg, 9 + i // 10)
        if k >= 5:
            A.auto(f'v_smfmac_f32_16x16x64_bf16 {v(YACC(ht >> 1, ht & 1), 4)}, {v(M(k), 4)}, {v(ST(lj & 3), 8)}, {v(vIDX)}')
            if lj + 4 < 16:
                h2, k2 = ldsq[lj + 4]
                for eh in range(2):
                    dq.append(f'ds_read_b128 {v(ST(lj & 3) + 4 * eh, 4)}, {v(vWL)} offset:{((h2 * 2 + (k2 - 5)) * 2 + eh) * 1024}')
            lj += 1
        else:
            A.auto(f'v_smfmac_f32_16x16x64_bf16 {v(YACC(ht >> 1, ht & 1), 4)}, {v(M(k), 4)}, {W(ht, k)}, {v(vIDX)}')
        if i % 10 == 9:
            vq += gpost(*groups[i // 10])
        if dq:
            A(dq.pop(0))
        if i >= cfg.get('yxstart', 0) and i % GAP == 0 and mem:
            for x in mem.pop(0):
                A(x)
        if i == cfg.get('pearly', -1):
            pissue(0)
        if vq and A.pad_needed(vq[0]) == 0:
            A(vq.pop(0))
    assert not mem and not dq
    stamp(A, cfg, 13)
    for o in vq:
        A(o)
    A(f's_cmp_eq_u32 s15, 0')
    A(f's_cselect_b32 s23, 0, {14 * 4 * 2048}')
    A(f's_add_u32 s31, s31, s23')
    A(f's_mov_b32 s35, 0')
    A(f's_add_u32 s27, s27, {56 * 8}')
    A(f's_add_u32 s25, s25, {16 * 28672}')
    A(f's_add_u32 s34, s34, {16 * 28672}')
    stamp(A, cfg, 1)
    lastq, lastb = A.newlabel('B_lq'), A.newlabel('B_lqb')
    A(f's_cmp_ge_u32 s15, {NSTEP - 1}')
    A(f's_cbranch_scc1 {lastq}')
    A.label(lastb, keep=True)
    A('s_cmp_ge_u32 s13, 2')
    A('s_cselect_b32 s23, 0x40000000, s26')
    dual_prep(A, 's23', 's29', 's37')
    stamp(A, cfg, 5)
    if cfg.get('psleep', 0):
        A(f's_sleep {cfg["psleep"]}')

    var0 = A.newlabel('B_var0')
    var1 = A.newlabel('B_var1')
    common = A.newlabel('B_common')
    redo = A.newlabel('B_redo')

    def quick(r):
        keepalive(A, vDUM + 1, cfg.get('kbp', 0), cfg)
        A('s_waitcnt vmcnt(3)')
        A(f'v_max3_u32 {v(t0)}, {v(P(r, 0) + 3)}, {v(P(r, 1) + 3)}, {v(P(r, 2) + 1)}')
        A(f'v_cmp_eq_u32 vcc, -1, {v(t0)}')
    if cfg.get('pearly', -1) < 0:
        keepalive(A, vDUM + 1, cfg.get('pdel', 32), {})
        pissue(0)
        keepalive(A, vDUM + 1, cfg.get('pgapB', 8), {})
    chk0 = A.newlabel('B_chk0')
    if cfg.get('kb0', 0):
        snap = A.snapshot()
        pissue(1)
        keepalive(A, vDUM + 1, cfg['kb0'], {})
        A(f's_branch {chk0}')
        A.restore(snap)
    align(A, cfg, 'alBp', -1)
    A.label(ppoll, keep=True)
    guard(A)
    if cfg.get('cnt'):
        A('s_add_u32 s71, s71, 1')
    pissue(1)
    A.label(chk0, keep=True)
    quick(0)
    A(f's_cbranch_vccz {var0}')
    pissue(0)
    quick(1)
    A(f's_cbranch_vccnz {ppoll}')
    bad = A.newlabel('B_bad')

    def variant(r):
        A.vm = [set(('v', x) for x in Pregs(1 - r))]
        A.lg = []
        A.smem_out = []
        stamp(A, cfg, 2)
        Q = P(r, 0)
        full = [f'v_max3_u32 {v(t0)}, {v(Q)}, {v(Q + 1)}, {v(Q + 2)}', f'v_max3_u32 {v(t0)}, {v(t0)}, {v(Q + 4)}, {v(Q + 5)}',
                f'v_max3_u32 {v(t0)}, {v(t0)}, {v(Q + 6)}, {v(P(r, 2))}',
                f'v_cmp_eq_u32 vcc, -1, {v(t0)}']
        for k in ((2, 0, 1) if cfg.get('kord') else (0, 1, 2)):
            for t in range(2):
                if k < 2:
                    A(f'v_smfmac_f32_16x16x64_bf16 {v(OACC(t), 4)}, {v(P(r, k), 4)}, {v(YX(k, t), 8)}, {v(vIDX)}')
                else:
                    A(f'v_smfmac_f32_16x16x32_bf16 {v(OACC(t), 4)}, {v(P(r, k), 2)}, {v(YB(t), 4)}, {v(vIDX)}')
        NF = cfg.get('nfull', 2)
        for x in full[:NF]:
            A(x)
        for rr in range(4):
            A(f'ds_write2_b32 {v(vRW)}, {v(OACC(0) + rr)}, {v(OACC(1) + rr)} offset0:{rr * 48} offset1:{rr * 48 + 1}')
        for x in full[NF:]:
            A(x)
        A(f's_cbranch_vccnz {bad}')
    A.label(var1)
    variant(1)
    if cfg.get('cnt'):
        A('s_add_u32 s70, s70, 1')
    A(f's_branch {common}')
    A.label(bad)
    A('s_waitcnt vmcnt(0) lgkmcnt(0)')
    A('s_nop 7')
    for r in range(8):
        A(f'v_mov_b32 {v(OACC(0) + r)}, 0')
    pissue(0)
    A(f's_branch {ppoll}')
    align(A, cfg, 'alB0')
    A.label(var0)
    variant(0)
    A.label(common, keep=True)
    A.vm = [set(('v', x) for x in Pregs(0) + Pregs(1))]
    A('s_cmp_ge_u32 s13, 2')
    keepalive(A, vDUM + 1, cfg.get('kb1', 0), cfg)
    stamp(A, cfg, 6)
    warm_mfma(A, ST(0), cfg)
    A('s_waitcnt lgkmcnt(0)')
    A('s_barrier')
    stamp(A, cfg, 7)
    A(f's_cbranch_scc1 {nxt}')
    R = lambda w: YACC(0, 0) + 4 * w
    for w in range(4):
        A(f'ds_read2st64_b64 {v(R(w), 4)}, {v(vRR)} offset0:{6 * w} offset1:{6 * w + 3}')
    keepalive(A, vDUM + 1, cfg.get('kb2', 3), cfg)
    A(f'v_mov_b32 {v(t1)}, -2')
    A.auto(f'v_pk_add_f32 {v(R(0), 2)}, {v(R(0), 2)}, {v(R(0) + 2, 2)}')
    A.auto(f'v_pk_add_f32 {v(R(1), 2)}, {v(R(1), 2)}, {v(R(1) + 2, 2)}')
    A(f'v_pk_add_f32 {v(R(0), 2)}, {v(R(0), 2)}, {v(R(1), 2)}')
    A.auto(f'v_pk_add_f32 {v(R(2), 2)}, {v(R(2), 2)}, {v(R(2) + 2, 2)}')
    A(f'v_pk_add_f32 {v(R(0), 2)}, {v(R(0), 2)}, {v(R(2), 2)}')
    A.auto(f'v_pk_add_f32 {v(R(3), 2)}, {v(R(3), 2)}, {v(R(3) + 2, 2)}')
    A(f'v_pk_add_f32 {v(R(0), 2)}, {v(R(0), 2)}, {v(R(3), 2)}')
    A(f'v_cvt_pk_bf16_f32 {v(vOUT)}, {v(R(0))}, {v(R(0) + 1)}')
    A(f'v_min_u32 {v(vOUT)}, {v(vOUT)}, {v(t1)}')
    A.label(nxt, keep=True)
    dual_store(A, f'buffer_store_dword {v(vOUT)}, {v(vSA)}, {SRD}, {{s}} offen', 's29', 's37')
    stamp(A, cfg, 3)
    rstamp(A, cfg, 4)
    if not cfg.get('nohold'):
        A('s_barrier')
    nl = A.newlabel('B_nl')
    A(f's_cmp_lg_u32 s15, {NSTEP - 1}')
    A(f's_cbranch_scc1 {nl}')
    A(f's_mov_b32 s23, {L.MEMX + 63 * 8192}')
    A('s_waitcnt vmcnt(2)')
    A(f'buffer_store_dword {v(vOUT)}, {v(vSK)}, {SRD}, s23 offen sc1')
    A(f's_branch {nl}x')
    A.label(nl, keep=True)
    A('s_waitcnt vmcnt(2)')
    A.label(nl + 'x', keep=True)
    stamp_flush(A, cfg, 14, 32, vT0 + 2)
    A(f'v_add_u32 {v(vMA)}, 8192, {v(vMA)}')
    A(f's_add_u32 s24, s24, 16384')
    A(f's_add_u32 s26, s26, 8192')
    A(f's_add_u32 s15, s15, 1')
    A(f's_branch {top}')
    A.label(lastq)
    A.forget()
    for x in sani:
        A(x)
    A(f's_cmp_eq_u32 s15, {NSTEP}')
    A(f's_cbranch_scc1 {fin}')
    A(f's_add_u32 s31, s31, {L.YMT_DELTA:#x}')
    A('s_nop 1')
    A(f's_branch {lastb}')
    A.label(fin)
    for x in ym_list('s31'):
        A(x[0])
    dump_cnt(A, cfg, 16, vT0, ['s33', 's70', 's71', 's72'])
    A('s_endpgm')
    flush_deferred(A)


def emit_C(A, cfg):
    NT = cfg.get('ntouch', 2)
    D = cfg.get('cdist', 3)
    first = min(16 * NT + 14 * cfg.get('ntouchB', 0), 56)
    nrounds = (56 - first + 7) // 8
    vL, vPF, vPL, vD, vLW, vLR, vST, t0, t1 = 1, 2, 3, 4, 5, 6, 7, 8, 9
    Q = 12
    A.pipe_model = False
    lane_fields(A, vL)
    A(f'v_lshlrev_b32 {v(vPF)}, 7, {v(vL)}')
    A('s_lshl_b32 s16, s14, 2')
    A('s_add_u32 s16, s16, s13')
    A('s_cmp_eq_u32 s16, 7')
    A('s_cselect_b32 s19, 0, s16')
    A('s_lshl_b32 s19, s19, 10')
    A(f'v_lshlrev_b32 {v(vST)}, 4, {v(vL)}')
    A('s_lshl_b32 s23, s13, 10')
    A(f'v_add_u32 {v(vLW)}, s23, {v(vST)}')
    A(f'v_lshrrev_b32 {v(t0)}, 4, {v(vL)}')
    A(f'v_lshlrev_b32 {v(vLR)}, 8, {v(t0)}')
    A(f'v_and_b32 {v(t0)}, 7, {v(vL)}')
    A(f'v_lshl_add_u32 {v(vLR)}, {v(t0)}, 4, {v(vLR)}')
    A(f'v_bfe_u32 {v(t0)}, {v(vL)}, 3, 1')
    A(f'v_lshl_add_u32 {v(vLR)}, {v(t0)}, 3, {v(vLR)}')
    A(f'v_add_u32 {v(vLR)}, s23, {v(vLR)}')
    A(f'v_add_u32 {v(vST)}, s19, {v(vST)}')
    A(f'v_add_u32 {v(vPL)}, {L.MEMA + 8192}, {v(vST)}')
    A('s_cmp_eq_u32 s16, 7')
    A(f's_cselect_b32 s19, 0x40000000, 0')
    A(f's_add_u32 s19, s19, {L.MEMX + 8192}')
    A('s_lshl_b32 s17, s16, 13')
    A(f's_add_u32 s17, s17, {L.XF}')
    A('s_mov_b32 s18, 28672')
    A('s_cmp_ge_u32 s16, 4')
    A(f's_cselect_b32 s17, {L.MEMA + 8192}, s17')
    A(f's_cselect_b32 s18, 8192, s18')
    A('s_cmp_eq_u32 s16, 6')
    A(f's_cselect_b32 s17, {L.PBUF}, s17')
    A('s_cmp_eq_u32 s16, 7')
    A(f's_cselect_b32 s17, {L.PBUF + 8192}, s17')
    A('s_cmp_ge_u32 s16, 6')
    A(f's_cselect_b32 s18, 16384, s18')
    for r in range(nrounds):
        A(f's_add_u32 s{24 + r}, s16, {first + 8 * r}')
        A(f's_min_u32 s{24 + r}, s{24 + r}, 55')
        A(f's_lshl_b32 s{24 + r}, s{24 + r}, 13')
        A(f's_add_u32 s{24 + r}, s{24 + r}, {L.YF}')
    assert nrounds == 0 or not cfg.get('fused')

    def touches():
        A(f'buffer_load_dword {v(vD)}, {v(vPF)}, {SRD}, s17 offen')
        A('s_add_u32 s17, s17, s18')
        for r in range(nrounds):
            A(f'buffer_load_dword {v(vD)}, {v(vPF)}, {SRD}, s{24 + r} offen')
            A(f's_add_u32 s{24 + r}, s{24 + r}, {16 * 28672}')
    if cfg.get('fused'):
        flag_wait_multi(A, [L.F_LN, L.F_LN + 64, L.F_LN + 128, L.F_LN + 192], Q)
    A(f's_mov_b32 s23, {L.MEMA}')
    A(f'buffer_load_dword {v(vD)}, {v(vPF)}, {SRD}, s23 offen')
    for _ in range(D):
        touches()
    def code_touch():
        if not cfg.get('ctouch', 0) or not cfg.get('fused'):
            return
        lab = A.newlabel('CPC')
        A.raw('    s_getpc_b64 s[26:27]')
        A.raw(f'{lab}:')
        A.raw(f'    s_sub_u32 s26, s26, {lab} - CHAIN_BEGIN')
        A('s_subb_u32 s27, s27, 0')
        A('s_lshl_b32 s23, s16, 12')
        A(f'v_lshlrev_b32 {v(t1)}, 6, {v(vL)}')
        A(f'v_add_u32 {v(t1)}, s23, {v(t1)}')
        A(f'global_load_dword {v(vD)}, {v(t1)}, s[26:27]')
    if cfg.get('fused') and cfg.get('ctouch', 0):
        soft_wait(A, L.F_INIT, cfg.get('ctn', 8), Q, 40, 4)
    code_touch()
    start_gate(A, cfg, Q, [L.F_Y0])
    for sg in range(1):
        for r in range(7):
            A(f's_add_u32 s23, s16, {8 * r}')
            A(f's_lshl_b32 s23, s23, 13')
            A(f's_add_u32 s23, s23, {L.YF + sg * 16 * 28672}')
            A(f'buffer_load_dword {v(vD)}, {v(vPF)}, {SRD}, s23 offen')
    A('s_mov_b32 s15, 1')
    top = A.newlabel('C_top')
    skip = A.newlabel('C_skip')
    A.label(top)
    A.forget()
    guard(A)
    A(f's_sleep 1')
    A(f'buffer_load_dwordx4 {v(Q, 4)}, {v(vPL)}, {SRD}, 0 offen sc1')
    A('s_waitcnt vmcnt(0)')
    check_regs(A, t0, [Q + i for i in range(4)])
    A(f's_cbranch_vccnz {top}')
    A(f'ds_write_b128 {v(vLW)}, {v(Q, 4)}')
    A(f'ds_read2_b32 {v(Q + 4, 2)}, {v(vLR)} offset0:0 offset1:32')
    A(f'ds_read2_b32 {v(Q + 6, 2)}, {v(vLR)} offset0:1 offset1:33')
    A('s_waitcnt lgkmcnt(0)')
    A(f'buffer_store_dwordx4 {v(Q + 4, 4)}, {v(vST)}, {SRD}, s19 offen sc1')
    A(f'v_add_u32 {v(vPL)}, 8192, {v(vPL)}')
    A('s_add_u32 s19, s19, 8192')
    A(f's_cmp_gt_u32 s15, {64 - D}')
    A(f's_cbranch_scc1 {skip}')
    touches()
    A.label(skip)
    A('s_add_u32 s15, s15, 1')
    A(f's_cmp_lt_u32 s15, 64')
    A(f's_cbranch_scc1 {top}')
    A('s_endpgm')
```

```python
from asmdsl import v, a, s
import layout as L
import gemm as G
import chain
CFG = {}

SRD = 's[8:11]'
SRD_X = 's[56:59]'
SRD_OUT = 's[60:63]'


def item_gemm1(A, kind, ld=' sc1', st=' sc1'):
    sh = 5 if kind != 'GU' else 4
    A(f's_lshr_b32 s53, s39, {sh}')
    A(f's_and_b32 s54, s39, {(1 << sh) - 1}')
    A('s_lshl_b32 s55, s53, 3')
    A('s_lshl_b32 s50, s13, 1')
    A('s_add_u32 s55, s55, s50')
    A('s_mul_i32 s40, s55, 28672')
    A(f's_add_u32 s40, s40, {L.XF}')
    nb0 = {'Y': L.NB_B, 'T': L.NB_A, 'GU': L.NB_GU}[kind]
    A(f's_mul_i32 s41, s54, {7 * 28672}')
    A(f's_add_u32 s41, s41, {L.WF + nb0 * 28672}')
    if kind == 'GU':
        A(f's_mul_i32 s42, s55, {112 * 1024}')
        A(f's_mul_i32 s50, s54, {7 * 1024}')
        A('s_add_u32 s42, s42, s50')
        A(f's_add_u32 s42, s42, {L.HF}')
    else:
        A(f's_mul_i32 s42, s55, {16 * 28672}')
        A(f's_mul_i32 s50, s54, {7 * 2048}')
        A('s_add_u32 s42, s42, s50')
        A(f's_add_u32 s42, s42, {L.YF if kind == "Y" else L.TF}')
    chain.tl(A, CFG, 's69', 2, 24)
    acc = G.emit_gemm_main(A, 'g1' + kind, 2, 28, 28672, 28672, kind == 'Y', ld, ld, NBUF=3)
    chain.tl(A, CFG, 's69', 3, 24)
    if kind == 'GU':
        G.emit_epi_gu(A, acc, 2, 112 * 1024, st)
    else:
        G.emit_epi_pack(A, acc, 2, 16 * 28672, st)


def item_y0(A):
    A('s_lshr_b32 s53, s39, 5')
    A('s_and_b32 s54, s39, 31')
    A('s_lshl_b32 s55, s53, 2')
    A('s_add_u32 s55, s55, s13')
    A('s_mul_i32 s40, s55, 28672')
    A(f's_add_u32 s40, s40, {L.XF}')
    A(f's_mul_i32 s41, s54, {7 * 28672}')
    A(f's_add_u32 s41, s41, {L.WF + L.NB_B * 28672}')
    A(f's_mul_i32 s42, s55, {16 * 28672}')
    A(f's_mul_i32 s50, s54, {7 * 2048}')
    A('s_add_u32 s42, s42, s50')
    A(f's_add_u32 s42, s42, {L.YF}')
    acc = G.emit_gemm_main(A, 'y0', 1, 28, 0, 28672, True, ' sc1', ' sc1', NBUF=3)
    G.emit_epi_pack(A, acc, 1, 0)


def item_gemm2(A):
    A('s_and_b32 s52, s39, 1')
    A('s_lshr_b32 s53, s39, 2')
    A('s_bfe_u32 s54, s39, 0x10001')
    A('s_lshl_b32 s55, s53, 2')
    A('s_add_u32 s55, s55, s13')
    A(f's_mul_i32 s51, s52, {56 * 1024}')
    A(f's_mul_i32 s40, s55, {112 * 1024}')
    A('s_add_u32 s40, s40, s51')
    A(f's_add_u32 s40, s40, {L.HF}')
    A(f's_mul_i32 s41, s54, {7 * 112 * 1024}')
    A('s_add_u32 s41, s41, s51')
    A(f's_add_u32 s41, s41, {L.WDF}')
    A(f's_mul_i32 s42, s55, {14 * 2048}')
    A(f's_mul_i32 s50, s54, {7 * 2048}')
    A('s_add_u32 s42, s42, s50')
    A(f's_mul_i32 s50, s52, {L.PS1 - L.PS}')
    A('s_add_u32 s42, s42, s50')
    A(f's_add_u32 s42, s42, {L.PS}')
    chain.tl(A, CFG, 's69', 2, 24)
    acc = G.emit_gemm_main(A, 'g2', 1, 56, 0, 112 * 1024, False, ' sc1', ' sc1', NBUF=5)
    chain.tl(A, CFG, 's69', 3, 24)
    G.emit_epi_pack(A, acc, 1, 0)


PXS = 40960


def guard(A):
    A('s_add_u32 s33, s33, 1')
    A('s_cmp_gt_u32 s33, 0x200000')
    A('s_cbranch_scc1 L_bail')


def sent_check(A, tmp, regs):
    A(f'v_max3_u32 {v(tmp)}, {v(regs[0])}, {v(regs[1])}, {v(regs[2])}')
    i = 3
    while i + 1 < len(regs):
        A(f'v_max3_u32 {v(tmp)}, {v(tmp)}, {v(regs[i])}, {v(regs[i + 1])}')
        i += 2
    if i < len(regs):
        A(f'v_max_u32 {v(tmp)}, {v(tmp)}, {v(regs[i])}')
    A(f'v_cmp_eq_u32 vcc, -1, {v(tmp)}')


def pregate(A, sseg, back, vt, sleeps):
    A(f's_max_u32 s38, {sseg}, {back}')
    A(f's_sub_u32 s38, s38, {back}')
    A(f's_lshl_b32 s38, s38, 13')
    A(f's_add_u32 s38, s38, {L.MEMX}')
    A(f'v_mov_b32 {v(vt)}, 0')
    lab, ok = A.newlabel('PG'), A.newlabel('PGok')
    A.label(lab, keep=True)
    guard(A)
    A(f'buffer_load_dword {v(vt + 1)}, {v(vt)}, {SRD}, s38 offen sc1')
    A('s_waitcnt vmcnt(0)')
    A(f'v_cmp_eq_u32 vcc, -1, {v(vt + 1)}')
    A(f's_cbranch_vccz {ok}')
    for sl in sleeps:
        A(f's_sleep {sl}')
    A(f's_branch {lab}')
    A.label(ok, keep=True)


def approach(A, sseg, vt, last_back):
    skip = A.newlabel('AP')
    A('s_cmp_lg_u32 s13, 0')
    A(f's_cbranch_scc1 {skip}')
    pregate(A, sseg, last_back + 6, vt, (127, 127))
    pregate(A, sseg, last_back + 2, vt, (48,))
    pregate(A, sseg, last_back, vt, (10,))
    A.label(skip, keep=True)
    A('s_barrier')


def item_punit(A, ld=' sc1', st=' sc1', hook=None):
    VL, VLIN, VPERM = G.VL, G.VLIN, G.VPERM
    XL, ML, PM = 0, 28672, 28672 + 8192
    SX, SM, KB, Q = 32, 48, 64, 96
    vMR, vTT, vPW, t0, t1, t2 = 5, 6, 7, 8, 9, 10
    chain.tl(A, CFG, 's69', 2, 24)
    A('s_lshr_b32 s53, s39, 2')
    A('s_and_b32 s54, s39, 3')
    A('s_lshl_b32 s55, s54, 2')
    A('s_add_u32 s55, s55, s13')
    A('s_lshl_b32 s50, s53, 4')
    A('s_add_u32 s50, s50, s55')
    A('s_mul_i32 s40, s50, 28672')
    A(f's_add_u32 s40, s40, {L.TF}')
    A('s_mul_i32 s41, s53, 28672')
    A('s_mul_i32 s50, s13, 7168')
    A('s_add_u32 s41, s41, s50')
    A(f's_add_u32 s41, s41, {L.XF}')
    A(f's_add_u32 s50, s50, {XL}')
    A('s_mov_b32 m0, s50')
    for c in range(7):
        if c == 4:
            A('s_add_u32 s50, s50, 4096')
            A('s_mov_b32 m0, s50')
            A('s_add_u32 s41, s41, 4096')
        A(f'buffer_load_dwordx4 {v(VLIN)}, {SRD}, s41 offen offset:{(c & 3) * 1024}{ld} lds')
    for ks in range(28):
        if ks and ks % 4 == 0:
            A('s_add_u32 s40, s40, 4096')
        A(f'buffer_load_dwordx4 {a(4 * ks, 4)}, {v(VLIN)}, {SRD}, s40 offen offset:{(ks & 3) * 1024}{ld}')
    A('s_lshl_b32 s44, s53, 13')
    A('s_lshl_b32 s46, s13, 11')
    A('s_add_u32 s44, s44, s46')
    A(f's_add_u32 s44, s44, {L.MEMX}')
    A('s_cmp_eq_u32 s13, 3')
    A('s_cselect_b32 s45, 0, 1024')
    A('s_add_u32 s45, s45, s44')
    A(f'buffer_load_dwordx4 {v(Q, 4)}, {v(VLIN)}, {SRD}, s44 offen sc1')
    A(f'buffer_load_dwordx4 {v(Q + 4, 4)}, {v(VLIN)}, {SRD}, s45 offen sc1')
    for r in range(32):
        A(f'v_mov_b32 {v(SX + r)}, 0')
    A(f'v_lshrrev_b32 {v(t0)}, 5, {v(VL)}')
    A(f'v_and_b32 {v(t1)}, 7, {v(VL)}')
    A(f'v_lshlrev_b32 {v(vMR)}, 4, {v(t1)}')
    A(f'v_lshl_add_u32 {v(vMR)}, {v(t0)}, 7, {v(vMR)}')
    A(f'v_add_u32 {v(vMR)}, {ML}, {v(vMR)}')
    A(f'v_and_b32 {v(t1)}, 31, {v(VL)}')
    A(f'v_lshlrev_b32 {v(t0)}, 3, {v(t0)}')
    A(f'v_sub_u32 {v(vTT)}, {v(t1)}, {v(t0)}')
    A('s_waitcnt vmcnt(30)')
    A('s_barrier')

    def pass_(accr, addr, stride):
        D = 6
        for ks in range(D):
            A(f'ds_read_b128 {v(KB + 4 * (ks % 8), 4)}, {v(addr)} offset:{ks * stride}')
        for ks in range(28):
            A.auto(f'v_mfma_f32_32x32x16_bf16 {v(accr, 16)}, {v(KB + 4 * (ks % 8), 4)}, {a(4 * ks, 4)}, {v(accr, 16)}')
            if ks + D < 28:
                A(f'ds_read_b128 {v(KB + 4 * ((ks + D) % 8), 4)}, {v(addr)} offset:{(ks + D) * stride}')
    pass_(SX, VPERM, 1024)
    A(f'v_mov_b32 {v(t2)}, 0xf149f2ca')
    for r in range(16):
        A(f'v_cmp_le_i32 vcc, {16 * (r >> 3) + (r & 7)}, {v(vTT)}')
        A(f'v_cndmask_b32 {v(SX + r)}, {v(t2)}, {v(SX + r)}, vcc')
    chain.tl(A, CFG, 's69', 3, 24)
    ok = A.newlabel('P_ok')
    near = A.newlabel('P_near')
    A('s_waitcnt vmcnt(0)')
    sent_check(A, t1, [Q + i for i in range(8)])
    A('s_mov_b64 s[48:49], vcc')
    A('s_cmp_lg_u32 s13, 0')
    A(f's_cbranch_scc1 {near}')
    A(f's_cbranch_vccz {near}')
    pregate(A, 's53', 7, t0, (127, 127))
    pregate(A, 's53', 3, t0, (48,))
    pregate(A, 's53', 1, t0, (10,))
    A.label(near, keep=True)
    A('s_barrier')
    A('s_cmp_eq_u64 s[48:49], 0')
    A(f's_cbranch_scc1 {ok}')
    poll = A.newlabel('P_poll')
    A.label(poll, keep=True)
    guard(A)
    A(f'buffer_load_dwordx4 {v(Q, 4)}, {v(VLIN)}, {SRD}, s44 offen sc1')
    A(f'buffer_load_dwordx4 {v(Q + 4, 4)}, {v(VLIN)}, {SRD}, s45 offen sc1')
    A('s_waitcnt vmcnt(0)')
    sent_check(A, t1, [Q + i for i in range(8)])
    A(f's_cbranch_vccz {ok}')
    A('s_sleep 2')
    A(f's_branch {poll}')
    A.label(ok, keep=True)
    if hook:
        hook(A)
    A(f'v_add_u32 {v(t0)}, s46, {v(VLIN)}')
    A(f'v_add_u32 {v(t0)}, {ML}, {v(t0)}')
    A(f'ds_write_b128 {v(t0)}, {v(Q, 4)}')
    A(f'ds_write_b128 {v(t0)}, {v(Q + 4, 4)} offset:1024')
    A('s_waitcnt lgkmcnt(0)')
    A('s_barrier')
    pass_(SM, vMR, 256)
    vals = [SX + r for r in range(16)] + [SM + r for r in range(4)]
    m, m2, l_, l2 = 11, 12, 13, 14
    A(f'v_max3_f32 {v(m)}, {v(vals[0])}, {v(vals[1])}, {v(vals[2])}')
    for i in range(3, 19, 2):
        A(f'v_max3_f32 {v(m)}, {v(m)}, {v(vals[i])}, {v(vals[i + 1])}')
    A(f'v_max_f32 {v(m)}, {v(m)}, {v(vals[19])}')
    A(f'v_mov_b32 {v(m2)}, {v(m)}')
    A(f'v_permlane32_swap_b32 {v(m)}, {v(m2)}')
    A(f'v_max_f32 {v(m)}, {v(m)}, {v(m2)}')
    for x in vals:
        A(f'v_sub_f32 {v(x)}, {v(x)}, {v(m)}')
    for x in vals:
        A(f'v_exp_f32 {v(x)}, {v(x)}')
    A(f'v_add_f32 {v(l_)}, {v(vals[0])}, {v(vals[1])}')
    A(f'v_add_f32 {v(l2)}, {v(vals[2])}, {v(vals[3])}')
    for i in range(4, 20, 2):
        A(f'v_add_f32 {v(l_)}, {v(l_)}, {v(vals[i])}')
        A(f'v_add_f32 {v(l2)}, {v(l2)}, {v(vals[i + 1])}')
    A(f'v_add_f32 {v(l_)}, {v(l_)}, {v(l2)}')
    A(f'v_mov_b32 {v(l2)}, {v(l_)}')
    A(f'v_permlane32_swap_b32 {v(l_)}, {v(l2)}')
    A(f'v_add_f32 {v(l_)}, {v(l_)}, {v(l2)}')
    A(f'v_rcp_f32 {v(l_)}, {v(l_)}')
    for x in vals:
        A(f'v_mul_f32 {v(x)}, {v(x)}, {v(l_)}')
    for i in range(10):
        A(f'v_cvt_pk_bf16_f32 {v(Q + i)}, {v(vals[2 * i])}, {v(vals[2 * i + 1])}')
    for i in range(10):
        A(f'v_min_u32 {v(Q + i)}, -2, {v(Q + i)}')
    A(f's_mul_i32 s42, s53, {PXS}')
    A(f's_add_u32 s42, s42, {L.PX}')
    A('s_lshl_b32 s50, s55, 11')
    A('s_add_u32 s50, s50, s42')
    for ph in range(2):
        A(f'buffer_store_dwordx4 {v(Q + 4 * ph, 4)}, {v(VLIN)}, {SRD}, s50 offen offset:{ph * 1024}{st}')
    A('s_and_b32 s50, s13, 1')
    A('s_lshl_b32 s50, s50, 10')
    A('s_lshr_b32 s51, s13, 1')
    A('s_lshl_b32 s51, s51, 2')
    A('s_add_u32 s51, s51, s50')
    A(f's_add_u32 s51, s51, {PM}')
    A(f'v_add_u32 {v(vPW)}, s51, {v(VLIN)}')
    A(f'ds_write2_b32 {v(vPW)}, {v(Q + 8)}, {v(Q + 9)} offset0:0 offset1:2')
    A('s_waitcnt lgkmcnt(0)')
    A('s_barrier')
    done = A.newlabel('P_done')
    A('s_cmp_ge_u32 s13, 2')
    A(f's_cbranch_scc1 {done}')
    A(f'ds_read_b128 {v(Q + 12, 4)}, {v(vPW)}')
    A('s_lshl_b32 s51, s54, 11')
    A('s_add_u32 s50, s50, s51')
    A('s_add_u32 s50, s50, s42')
    A(f's_add_u32 s50, s50, 32768')
    A('s_waitcnt lgkmcnt(0)')
    A(f'buffer_store_dwordx4 {v(Q + 12, 4)}, {v(VLIN)}, {SRD}, s50 offen{st}')
    A.label(done, keep=True)


def item_pvunit(A, wait_px=None, ld=' sc1', hook=None):
    VL, VLIN = G.VL, G.VLIN
    ACC, YMR, RR = 32, 48, 64
    vY, vYM, vO, t0, t1, t2 = 5, 6, 7, 8, 9, 10
    chain.tl(A, CFG, 's69', 2, 24)
    A('s_mul_hi_u32 s53, s39, 0x24924925')
    A('s_mul_i32 s50, s53, 7')
    A('s_sub_u32 s54, s39, s50')
    A('s_lshl_b32 s54, s54, 1')
    A('s_and_b32 s50, s13, 1')
    A('s_add_u32 s54, s54, s50')
    A('s_lshr_b32 s55, s13, 1')
    A(f'v_lshrrev_b32 {v(t0)}, 4, {v(G.VPERM)}')
    A(f'v_and_b32 {v(t0)}, 31, {v(t0)}')
    A(f'v_and_b32 {v(t1)}, 1, {v(t0)}')
    A(f'v_lshrrev_b32 {v(t0)}, 1, {v(t0)}')
    A(f'v_lshrrev_b32 {v(t2)}, 5, {v(VL)}')
    A(f'v_lshlrev_b32 {v(vY)}, 4, {v(t0)}')
    A(f'v_lshl_add_u32 {v(vYM)}, {v(t1)}, 10, {v(vY)}')
    A(f'v_lshl_add_u32 {v(vYM)}, {v(t2)}, 8, {v(vYM)}')
    A(f'v_lshl_add_u32 {v(vY)}, {v(t1)}, 8, {v(vY)}')
    A(f'v_lshl_add_u32 {v(vY)}, {v(t2)}, 9, {v(vY)}')
    A(f'v_and_b32 {v(t0)}, 31, {v(VL)}')
    A(f'v_mul_u32_u24 {v(vO)}, 896, {v(t0)}')
    A(f'v_lshl_add_u32 {v(vO)}, {v(t2)}, 4, {v(vO)}')
    A('s_lshl_b32 s50, s53, 4')
    A('s_lshl_b32 s51, s55, 3')
    A('s_add_u32 s50, s50, s51')
    A('s_mul_i32 s50, s50, 14')
    A('s_add_u32 s50, s50, s54')
    A('s_lshl_b32 s40, s50, 11')
    A(f's_add_u32 s40, s40, {L.YF}')
    for hh in range(8):
        for ph in range(2):
            A(f'buffer_load_dwordx4 {a((hh * 2 + ph) * 4, 4)}, {v(vY)}, {SRD}, s40 offen offset:{ph * 1024}{ld}')
        A(f's_add_u32 s40, s40, {14 * 2048}')
    A('s_mul_i32 s41, s53, 14')
    A('s_add_u32 s41, s41, s54')
    A('s_lshl_b32 s42, s41, 11')
    A(f's_mul_i32 s50, s55, {L.PS1 - L.PS}')
    A('s_add_u32 s42, s42, s50')
    A(f's_add_u32 s42, s42, {L.PS}')
    PSR, XR = 80, 88
    for ph in range(2):
        A(f'buffer_load_dwordx4 {v(PSR + 4 * ph, 4)}, {v(VLIN)}, {SRD}, s42 offen offset:{ph * 1024}{ld}')
    A(f's_mul_i32 s44, s53, {32 * 896}')
    A('s_lshl_b32 s51, s54, 6')
    A('s_add_u32 s44, s44, s51')
    A('s_cmp_eq_u32 s55, 0')
    A('s_cselect_b32 s50, s44, 0x40000000')
    for ph in range(2):
        A(f'buffer_load_dwordx4 {v(XR + 4 * ph, 4)}, {v(vO)}, {SRD_X}, s50 offen offset:{ph * 32}')
    A('s_lshl_b32 s41, s41, 2')
    A('s_lshl_b32 s50, s55, 1')
    A('s_add_u32 s41, s41, s50')
    A(f's_add_u32 s43, s41, {L.F_YM}')
    A('s_lshl_b32 s41, s41, 11')
    A(f's_add_u32 s41, s41, {L.YM}')
    A(f's_add_u32 s50, s41, {L.YMT_DELTA:#x}')
    A('s_cmp_ge_u32 s53, 62')
    A('s_cselect_b32 s41, s50, s41')
    if wait_px:
        wait_px(A)
    chain.tl(A, CFG, 's69', 3, 24)
    if hook:
        hook(A)
    for i in range(8):
        A(f'v_lshlrev_b32 {v(ACC + 2 * i)}, 16, {v(PSR + i)}')
        A(f'v_and_b32 {v(ACC + 2 * i + 1)}, 0xffff0000, {v(PSR + i)}')
        A(f'v_lshlrev_b32 {v(t0)}, 16, {v(XR + i)}')
        A(f'v_and_b32 {v(t1)}, 0xffff0000, {v(XR + i)}')
        A(f'v_add_f32 {v(ACC + 2 * i)}, {v(ACC + 2 * i)}, {v(t0)}')
        A(f'v_add_f32 {v(ACC + 2 * i + 1)}, {v(ACC + 2 * i + 1)}, {v(t1)}')
    PR = 96
    A(f's_mul_i32 s42, s53, {PXS}')
    A(f's_add_u32 s42, s42, {L.PX}')
    poll, ok = A.newlabel('PV_poll'), A.newlabel('PV_ok')
    A.label(poll, keep=True)
    guard(A)
    A('s_lshl_b32 s50, s55, 14')
    A('s_add_u32 s40, s42, s50')
    for k in range(16):
        if k and k % 4 == 0:
            A('s_add_u32 s40, s40, 4096')
        A(f'buffer_load_dwordx4 {v(PR + 4 * k, 4)}, {v(VLIN)}, {SRD}, s40 offen offset:{(k & 3) * 1024} sc1')
    A('s_lshl_b32 s50, s55, 12')
    A('s_add_u32 s40, s42, s50')
    A('s_add_u32 s40, s40, 32768')
    for k in range(4):
        A(f'buffer_load_dwordx4 {v(PR + 64 + 4 * k, 4)}, {v(VLIN)}, {SRD}, s40 offen offset:{k * 1024} sc1')
    for wq in range(2):
        for u in range(2):
            A(f'buffer_load_dwordx4 {v(YMR + (wq * 2 + u) * 4, 4)}, {v(vYM)}, {SRD}, s41 offen offset:{wq * 2048 + u * 512} sc1')
    A(f'v_mov_b32 {v(t0)}, 0')
    for i in range(40):
        A.auto(f'v_max3_u32 {v(t0)}, {v(t0)}, {v(PR + 2 * i)}, {v(PR + 2 * i + 1)}')
    nym = A.newlabel('PV_ny')
    A('s_waitcnt vmcnt(0)')
    A('s_cmp_lt_u32 s53, 62')
    A(f's_cbranch_scc1 {nym}')
    for i in range(8):
        A(f'v_max3_u32 {v(t0)}, {v(t0)}, {v(YMR + 2 * i)}, {v(YMR + 2 * i + 1)}')
    A.label(nym, keep=True)
    A(f'v_cmp_eq_u32 vcc, -1, {v(t0)}')
    A(f's_cbranch_vccz {ok}')
    A('s_sleep 2')
    A(f's_branch {poll}')
    A.label(ok, keep=True)
    for k in range(16):
        A.auto(f'v_mfma_f32_32x32x16_bf16 {v(ACC, 16)}, {a(4 * k, 4)}, {v(PR + 4 * k, 4)}, {v(ACC, 16)}')
    for k in range(4):
        A.auto(f'v_mfma_f32_32x32x16_bf16 {v(ACC, 16)}, {v(YMR + 4 * k, 4)}, {v(PR + 64 + 4 * k, 4)}, {v(ACC, 16)}')
    A('s_and_b32 s50, s13, 1')
    A('s_lshl_b32 s50, s50, 12')
    A(f'v_add_u32 {v(t0)}, s50, {v(VLIN)}')
    lo = A.newlabel('PV_lo')
    done = A.newlabel('PV_done')
    A('s_cmp_eq_u32 s55, 0')
    A(f's_cbranch_scc1 {lo}')
    for q in range(4):
        A(f'ds_write_b128 {v(t0)}, {v(ACC + 4 * q, 4)} offset:{q * 1024}')
    A('s_waitcnt lgkmcnt(0)')
    A('s_barrier')
    A(f's_branch {done}')
    A.label(lo)
    A('s_barrier')
    for q in range(4):
        A(f'ds_read_b128 {v(RR + 4 * q, 4)}, {v(t0)} offset:{q * 1024}')
    A('s_nop 7')
    for r in range(8):
        A.auto(f'v_pk_add_f32 {v(ACC + 2 * r, 2)}, {v(ACC + 2 * r, 2)}, {v(RR + 2 * r, 2)}')
    for i in range(8):
        A(f'v_cvt_pk_bf16_f32 {v(RR + i)}, {v(ACC + 2 * i)}, {v(ACC + 2 * i + 1)}')
    for ph in range(2):
        A(f'buffer_store_dwordx4 {v(RR + 4 * ph, 4)}, {v(vO)}, {SRD_OUT}, s44 offen offset:{ph * 32}')
    A.label(done, keep=True)
```
